```python
import torch

def _softmax(x, axis=-1):
    return torch.softmax(x, dim=axis)
def _gelu(x):
    return torch.nn.functional.gelu(x, approximate="tanh")
def _silu(x):
    return torch.nn.functional.silu(x)
def _sigmoid(x):
    return torch.sigmoid(x)
def _layernorm(x, axis=-1, eps=1e-5):
    m = x.mean(dim=axis, keepdim=True)
    v = x.var(dim=axis, keepdim=True, unbiased=False)
    return (x - m) / torch.sqrt(v + eps)
def _scatter_add(tgt, idx, src, axis=0):
    return tgt.clone().index_add_(axis, idx, src)
def _segment_sum(src, seg, n):
    out = torch.zeros((n,) + src.shape[1:], dtype=src.dtype)
    return out.index_add_(0, seg, src)
def _pad(x, pw):
    flat = tuple(v for pair in reversed(pw) for v in pair)
    return torch.nn.functional.pad(x, flat)

kernel_name = 'interleave_layers__sliding_block_cached__dense_activation_mish__decode'

def setup_inputs():

    _w = (lambda a: (lambda t: t.to(torch.bfloat16) if t.is_floating_point() else t)(torch.as_tensor(a)))
    def _A_setup():
        B, Sq, D = 1, 1, 640
        Hq, Hkv, Sk, Dh = 32, 32, 8192, 192
        assert Hq % Hkv == 0, (Hq, Hkv)
        return {
            "x": _w((lambda *s: torch.randn(*s, dtype=torch.bfloat16) * 0.1)(B, Sq, D)),
            "k_cache": _w((lambda *s: torch.randn(*s, dtype=torch.bfloat16) * 0.8)(B, Hkv, Sk, Dh)),
            "v_cache": _w((lambda *s: torch.randn(*s, dtype=torch.bfloat16) * 3.2)(B, Hkv, Sk, Dh)),
            "wq": _w((lambda *s: torch.randn(*s, dtype=torch.bfloat16) * 0.8)(D, Hq * Dh) * (D ** -0.5)),
            "wo": _w((lambda *s: torch.randn(*s, dtype=torch.bfloat16) * 3.2)(Hq * Dh, D) * ((Hq * Dh) ** -0.5)),
        }
    _A_in = _A_setup()

    def _B_setup():
        B, S, D, F = 1, 1, 640, 1536
        return {
            "x": _w((lambda *s: torch.randn(*s, dtype=torch.bfloat16) * 0.1)(B, S, D)),
            "w1": _w((lambda *s: torch.randn(*s, dtype=torch.bfloat16) * 1.6)(D, F) * (D ** -0.5)),
            "b1": _w((lambda *s: torch.randn(*s, dtype=torch.bfloat16) * 0.4)(F)),
            "w2": _w((lambda *s: torch.randn(*s, dtype=torch.bfloat16) * 0.4)(F, D) * (F ** -0.5)),
        }
    _B_in = _B_setup()

    return {
        "A_x": _A_in["x"],
        "A_k_cache": _A_in["k_cache"],
        "A_v_cache": _A_in["v_cache"],
        "A_wq": _A_in["wq"],
        "A_wo": _A_in["wo"],
        "B_x": _B_in["x"],
        "B_w1": _B_in["w1"],
        "B_b1": _B_in["b1"],
        "B_w2": _B_in["w2"],
    }

def reference(A_x, A_k_cache, A_v_cache, A_wq, A_wo, B_x, B_w1, B_b1, B_w2):
    def _A_ref(x, k_cache, v_cache, wq, wo):
        B, Sq, D = x.shape
        Hq, Dh = 32, 192
        Hkv, Sk = k_cache.shape[1], k_cache.shape[2]
        W = min(4096, max(256, Sk // 4))
        rep = Hq // Hkv
        q = (lambda x, *d: x.permute(*d))((x @ wq).reshape(B, Sq, Hq, Dh), 0, 2, 1, 3)
        k = (lambda x, n, axis: torch.repeat_interleave(x, n, dim=axis))(k_cache[:, :, Sk - W:, :], rep, axis=1)
        v = (lambda x, n, axis: torch.repeat_interleave(x, n, dim=axis))(v_cache[:, :, Sk - W:, :], rep, axis=1)
        scores = torch.einsum("bhqd,bhkd->bhqk", q, k) * (Dh ** -0.5)
        p = _softmax(scores, axis=-1)
        o = torch.einsum("bhqk,bhkd->bhqd", p, v)
        return (lambda x, *d: x.permute(*d))(o, 0, 2, 1, 3).reshape(B, Sq, Hq * Dh) @ wo

    def _B_ref(x, w1, b1, w2):
        h = torch.einsum("bsd,df->bsf", x, w1) + b1
        sp = torch.log1p(torch.exp(-torch.abs(h))) + torch.where(h > 0, h, torch.zeros_like(h))
        act = h * torch.tanh(sp)
        return torch.einsum("bsf,fd->bsd", act, w2)

    x = A_x
    x = x + _A_ref(_layernorm(x, axis=-1), A_k_cache, A_v_cache, A_wq, A_wo)
    x = x + _B_ref(_layernorm(x, axis=-1), B_w1, B_b1, B_w2)
    x = x + _A_ref(_layernorm(x, axis=-1), A_k_cache, A_v_cache, A_wq, A_wo)
    x = x + _B_ref(_layernorm(x, axis=-1), B_w1, B_b1, B_w2)
    return x
```

```python
import re

_REG = re.compile(r'\b([vsa])(\d+)\b|\b([vsa])\[(\d+):(\d+)\]|\b(vcc|exec|m0|scc)\b')
TRANS = ('v_exp_f32', 'v_log_f32', 'v_rcp_f32', 'v_rsq_f32', 'v_sqrt_f32', 'v_sin_f32', 'v_cos_f32')

def regs_of(op):
    out = set()
    for m in _REG.finditer(op):
        if m.group(1):
            out.add((m.group(1), int(m.group(2))))
        elif m.group(3):
            for i in range(int(m.group(4)), int(m.group(5)) + 1):
                out.add((m.group(3), i))
        else:
            out.add((m.group(6), 0))
    return out

class Ins:
    def __init__(self, text):
        self.text = text
        t = text.split(';')[0].strip()
        parts = t.split(None, 1)
        self.mn = parts[0]
        rest = parts[1] if len(parts) > 1 else ''
        ops = [o.strip() for o in rest.split(',')] if rest else []
        self.ops = ops
        mn = self.mn
        self.mfma = mn.startswith('v_mfma')
        self.valu = mn.startswith('v_') and not self.mfma
        self.trans = any(mn.startswith(x) for x in TRANS)
        self.dpp = ('row_' in rest) or ('quad_perm' in rest)
        self.permlane = mn.startswith('v_permlane')
        self.readlane = mn.startswith('v_readlane') or mn.startswith('v_readfirstlane')
        self.vmem = mn.startswith('buffer_') or mn.startswith('global_')
        self.ds = mn.startswith('ds_')
        self.salu = mn.startswith('s_')
        self.ldsdma = self.vmem and re.search(r'\blds\b', rest) is not None
        self.w = set(); self.r = set(); self.srcC = set(); self.srcAB = set(); self.storedata = set()
        allr = [regs_of(o) for o in ops]
        if self.mfma:
            self.w = allr[0]; self.srcAB = allr[1] | allr[2]; self.srcC = allr[3]; self.r = self.srcAB | self.srcC
        elif self.permlane:
            self.w = allr[0] | allr[1]; self.r = allr[0] | allr[1]
        elif self.valu:
            self.w = allr[0]
            for a in allr[1:]: self.r |= a
            if mn.startswith('v_cmp') and not e64(ops[0]): pass
            if mn.startswith('v_fmac') or mn.startswith('v_dot2c'): self.r |= allr[0]
            if mn.startswith('v_cndmask') and len(ops) == 3: self.r.add(('vcc', 0))
            if mn.startswith('v_add_co') or mn.startswith('v_addc_co') or mn.startswith('v_sub_co'):
                self.w = allr[0] | allr[1]
        elif self.vmem:
            if 'store' in mn or ('atomic' in mn):
                for a in allr: self.r |= a
                if 'x4' in mn or 'x3' in mn:
                    self.storedata = allr[0] if mn.startswith('buffer_') else allr[1]
            elif self.ldsdma:
                for a in allr: self.r |= a
                self.r.add(('m0', 0))
            else:
                self.w = allr[0]
                for a in allr[1:]: self.r |= a
        elif self.ds:
            if 'write' in mn or 'add' in mn:
                for a in allr: self.r |= a
            else:
                self.w = allr[0]
                for a in allr[1:]: self.r |= a
        elif self.salu:
            if mn.startswith('s_cmp') or mn.startswith('s_cbranch') or mn in ('s_branch', 's_nop', 's_waitcnt', 's_barrier', 's_sleep', 's_setprio', 's_endpgm'):
                for a in allr: self.r |= a
            elif allr:
                self.w = allr[0]
                for a in allr[1:]: self.r |= a
        self.states = 1
        if mn == 's_nop': self.states = int(ops[0], 0) + 1

def e64(op): return False

def need(P, C):
    n = 0
    def vg(s): return {x for x in s if x[0] in 'va'}
    def sg(s): return {x for x in s if x[0] in ('s', 'vcc')}
    if P.valu:
        wv = vg(P.w)
        if wv:
            if C.valu and C.dpp and (wv & C.r): n = max(n, 2)
            if C.permlane and (wv & C.r): n = max(n, 2)
            if C.readlane and (wv & C.r): n = max(n, 1)
            if P.trans and (C.valu or C.vmem or C.ds or C.mfma) and (wv & C.r): n = max(n, 1)
            if C.mfma and (wv & C.r): n = max(n, 2)
        ws = sg(P.w)
        if ws:
            if C.valu and (ws & C.r): n = max(n, 4 if C.readlane else 2)
            if C.vmem and (ws & C.r): n = max(n, 5)
            if C.salu and (ws & C.r): n = max(n, 1)
    if P.mfma:
        D = P.w
        if C.mfma:
            if D & C.srcAB: n = max(n, 8)
            if D & C.srcC and C.srcC != D: n = max(n, 6)
            if D & C.w and C.srcC != D: n = max(n, 6)
        elif (C.valu or C.vmem or C.ds) and (D & (C.r | C.w)): n = max(n, 8)
        if C.valu and (P.srcC & C.w): n = max(n, 3)
    if P.salu and ('m0', 0) in P.w and C.ldsdma: n = max(n, 1)
    if P.storedata and (P.storedata & C.w): n = max(n, 2)
    return n

class Asm:
    def __init__(self):
        self.items = []
    def __call__(self, text):
        for line in text.strip().split('\n'):
            line = line.strip()
            if not line: continue
            if line.startswith(';') or line.startswith('.'):
                self.items.append(('raw', line))
            elif line.endswith(':'):
                self.items.append(('l', line[:-1]))
            else:
                self.items.append(('i', Ins(line)))
    def label(self, n): self.items.append(('l', n))
    def render(self):
        out = []
        hist = []
        pend = {}
        WINDOW = 10
        for kind, x in self.items:
            if kind == 'raw':
                out.append(x); continue
            if kind == 'l':
                out.append(x + ':')
                if x in pend:
                    hist = hist + pend.pop(x)
                continue
            req = 0
            for P, d in hist:
                r = need(P, x) - d
                if r > req: req = r
            if req > 0:
                out.append(f'    s_nop {req-1}')
                hist = [(P, d + req) for P, d in hist]
            out.append('    ' + x.text)
            hist = [(P, d + x.states) for P, d in hist if d + x.states < WINDOW]
            if x.mn.startswith('s_cbranch') or x.mn == 's_branch':
                tgt = x.ops[0]
                pend.setdefault(tgt, [])
                pend[tgt] += list(hist)
                if x.mn == 's_branch': hist = []
            elif x.mn == 's_endpgm':
                hist = []
            else:
                hist.append((x, 0))
        return '\n'.join(out) + '\n'
```

```python
import sys
sys.path.insert(0, "gen")
from asmlib import Asm

KNAME = "interleave_layers__sliding_block_cached__dense_activation_mish__decode_kernel"
BS = 3456
QP = [0, 384]; OP = [768, 1280]; YO = [1792, 1920]
HPR = [2048, 2688]; HPC = 2304; HPS = [2560, 2944]
X1O = 3072; ZO = [3200, 3328]
WS_USED = 256 * BS
PROF_OFF = 1 << 20
L_K = 8192
L_CTRL = 0
L_STATS = L_CTRL + 64
L_ML = L_CTRL + 128
L_P = L_CTRL + 256
L_X = L_CTRL + 768
L_O = L_CTRL + 2048
L_YR = L_O + 3072
L_ZR = L_YR + 1024
LDS_BYTES = L_K + 98304
assert L_ZR + 1024 <= L_K
POLL_LIMIT = 200000

ONES = 4; SEL = 8; AB = [12, 16]; ACC = 20; GB = 36; XA = 60
aQG = 70; aP32 = 71; aROW = 72; aML = 73; aST = 74; ldsP = 75; lane4 = 76
CS0 = 77; CS1 = 78; X0 = 79; X1 = 80; B1V = 81; CSW1 = 82
T = [83, 84, 85, 86, 87, 1, 2, 3]
KV = 88; WA = 184; WB = 224

def q4(r): return f"v[{r}:{r+3}]"
DPPALL = "row_mask:0xf bank_mask:0xf"

class Gen:
    def __init__(self, prof=False):
        self.a = Asm(); self.prof = prof; self.uid = 0; self.nstamp = 0
    def L(self, base):
        self.uid += 1
        return f"L_{base}_{self.uid}"
    def stamp(self, i):
        if self.prof: self.a(f"s_memrealtime s[{76+2*i}:{77+2*i}]")
    def dump_stamps(self):
        if not self.prof: return
        a = self.a
        a("s_waitcnt lgkmcnt(0)")
        a(f"v_mov_b32 v{T[0]}, 0")
        for i in range(13):
            a(f"v_writelane_b32 v{T[0]}, s{76+2*i}, {i}")
        a("s_lshl_b32 s58, s2, 3\ns_add_u32 s58, s58, s3\ns_lshl_b32 s58, s58, 1\ns_add_u32 s58, s58, s54\ns_lshl_b32 s58, s58, 6")
        a(f"s_add_u32 s58, s58, {PROF_OFF}")
        a("s_mov_b64 exec, 0xffff")
        a(f"buffer_store_dword v{T[0]}, v{lane4}, s[48:51], s58 offen")
        a("s_mov_b64 exec, -1")
        for i in range(13):
            a(f"s_mov_b64 s[{76+2*i}:{77+2*i}], 0")
    def local_store(self, instr_fmt):
        a = self.a
        ls, ld = self.L("sl"), self.L("sd")
        a(f"s_cmp_eq_u32 s55, 0\ns_cbranch_scc1 {ls}")
        a(instr_fmt.format(f=""))
        a(f"s_branch {ld}\n{ls}:")
        a(instr_fmt.format(f=" sc1"))
        a(f"{ld}:")
    def poll(self, loads, regs, pre=None):
        a = self.a
        lp, ld = self.L("poll"), self.L("got")
        a("s_mov_b32 s70, 0")
        a(f"{lp}:")
        for x in loads: a(x)
        a("s_waitcnt vmcnt(0)")
        t = T[7]
        rs = list(regs)
        if len(rs) == 1:
            a(f"v_cmp_eq_u32 vcc, -1, v{rs[0]}")
        else:
            if len(rs) == 2:
                a(f"v_max_u32 v{t}, v{rs[0]}, v{rs[1]}"); rs = []
            else:
                a(f"v_max3_u32 v{t}, v{rs[0]}, v{rs[1]}, v{rs[2]}"); rs = rs[3:]
            while rs:
                if len(rs) >= 2:
                    a(f"v_max3_u32 v{t}, v{t}, v{rs[0]}, v{rs[1]}"); rs = rs[2:]
                else:
                    a(f"v_max_u32 v{t}, v{t}, v{rs[0]}"); rs = rs[1:]
            a(f"v_cmp_eq_u32 vcc, -1, v{t}")
        a(f"s_cbranch_vccz {ld}")
        a(f"s_add_u32 s70, s70, 1\ns_cmp_lt_u32 s70, {POLL_LIMIT}\ns_cbranch_scc1 {lp}")
        a(f"{ld}:")
    def build_A(self, dst, src):
        for d in range(4):
            self.a(f"v_perm_b32 v{dst+d}, v{src}, v{src}, v{SEL+d}")
    def mfma(self, D, A, B, first):
        self.a(f"v_mfma_f32_16x16x32_bf16 {q4(D)}, {q4(A)}, {q4(B)}, {'0' if first else q4(D)}")
    def pair32(self, D, t0, t1):
        self.a(f"v_add_f32_dpp v{t0}, v{D+1}, v{D} row_ror:8 {DPPALL}")
        self.a(f"v_add_f32_dpp v{t1}, v{D+3}, v{D+2} row_ror:8 {DPPALL}")
    def l64(self, D, t):
        self.a(f"v_add_f32_dpp v{t}, v{D+1}, v{D} row_ror:8 row_mask:0xf bank_mask:0x3")
        self.a(f"v_add_f32_dpp v{t}, v{D+2}, v{D+3} row_ror:8 row_mask:0xf bank_mask:0xc")
    def gemv_bcast(self, D, pair, W, n):
        a = self.a
        tb = [T[5], T[6]]
        a(f"v_mov_b32_dpp v{tb[0]}, v{pair} row_newbcast:0 {DPPALL}")
        for t in range(n):
            if t + 1 < n:
                a(f"v_mov_b32_dpp v{tb[(t+1)&1]}, v{pair} row_newbcast:{t+1} {DPPALL}")
            self.build_A(AB[t & 1], tb[t & 1])
            if t > 0: self.mfma(D, AB[(t-1) & 1], W + 4 * (t-1), t == 1)
        self.mfma(D, AB[(n-1) & 1], W + 4 * (n-1), n == 1)
    def bf16r(self, dst, src):
        self.a(f"v_cvt_pk_bf16_f32 v{dst}, v{src}, v{src}\nv_lshlrev_b32 v{dst}, 16, v{dst}")
    def ln_scalars(self, s1, s2):
        a = self.a
        t = T[5]
        inv = "0x3acccccd"
        a(f"v_mul_f32 v{s1}, {inv}, v{s1}")
        a(f"v_mul_f32 v{s2}, {inv}, v{s2}")
        a(f"v_fma_f32 v{s2}, -v{s1}, v{s1}, v{s2}")
        a(f"v_max_f32 v{s2}, 0, v{s2}")
        a(f"v_cvt_pk_bf16_f32 v{t}, v{s1}, v{s2}")
        a(f"v_lshlrev_b32 v{s1}, 16, v{t}")
        a(f"v_and_b32 v{s2}, 0xffff0000, v{t}")
        a(f"v_add_f32 v{s2}, 0x3727c5ac, v{s2}")
        self.bf16r(s2, s2)
        a(f"v_sqrt_f32 v{s2}, v{s2}")
        self.bf16r(s2, s2)
        a(f"v_rcp_f32 v{s2}, v{s2}")
    def red2_to_halves(self, s1, s2, steps, tmp):
        a = self.a
        a(f"v_permlane32_swap_b32 v{s1}, v{s2}")
        a(f"v_add_f32 v{s1}, v{s1}, v{s2}")
        a(f"v_mov_b32 v{tmp}, v{s1}")
        a(f"v_permlane16_swap_b32 v{s1}, v{tmp}")
        a(f"v_add_f32 v{s1}, v{s1}, v{tmp}")
        for c in steps:
            a(f"v_add_f32_dpp v{s1}, v{s1}, v{s1} {c} {DPPALL}")
    def allred64(self, op, v, tmp):
        a = self.a
        for c in ("quad_perm:[1,0,3,2]", "quad_perm:[2,3,0,1]", "row_half_mirror", "row_mirror"):
            a(f"{op}_dpp v{v}, v{v}, v{v} {c} {DPPALL}")
        a(f"v_mov_b32 v{tmp}, v{v}\nv_permlane16_swap_b32 v{v}, v{tmp}\n{op} v{v}, v{v}, v{tmp}")
        a(f"v_mov_b32 v{tmp}, v{v}\nv_permlane32_swap_b32 v{v}, v{tmp}\n{op} v{v}, v{v}, v{tmp}")
    def sel_layer(self, dst, arr, add=None):
        a = self.a
        a(f"s_mul_i32 s{dst}, s54, {arr[1]-arr[0]}")
        if arr[0]: a(f"s_add_u32 s{dst}, s{dst}, {arr[0]}")
        if add is not None: a(f"s_add_u32 s{dst}, s{dst}, s{add}")
    def lds_wait_flag(self, off, dst_s=None):
        a = self.a
        lp, ld = self.L("lw"), self.L("lg")
        t = T[5]; t2 = T[6]
        a(f"v_mov_b32 v{t2}, {off}\ns_mov_b32 s70, 0")
        a(f"{lp}:\nds_read_b32 v{t}, v{t2}\ns_waitcnt lgkmcnt(0)\nv_readfirstlane_b32 s58, v{t}")
        a(f"s_cmp_lg_u32 s58, 0\ns_cbranch_scc1 {ld}")
        a(f"s_sleep 1\ns_add_u32 s70, s70, 1\ns_cmp_lt_u32 s70, {4*POLL_LIMIT}\ns_cbranch_scc1 {lp}")
        a(f"{ld}:")
        if dst_s is not None: a(f"s_lshr_b32 s{dst_s}, s58, 1")
    def k_dma(self):
        a = self.a
        t = T[0]; t2 = T[1]
        a(f"v_lshrrev_b32 v{t}, 3, v0\nv_and_b32 v{t2}, 6, v{t}\nv_xor_b32 v{t2}, v{t2}, v0\nv_and_b32 v{t2}, 7, v{t2}")
        a(f"v_mul_u32_u24 v{t}, 384, v{t}\nv_lshl_add_u32 v{t}, v{t2}, 4, v{t}")
        a("s_mul_i32 s60, s3, 24576")
        for n in range(24):
            rg, th = divmod(n, 3)
            a(f"s_add_u32 s58, s59, {rg*8*384 + th*128}")
            a(f"s_add_u32 m0, s60, {L_K + n*1024}")
            a(f"buffer_load_dwordx4 v{t}, s[12:15], s58 offen nt lds")
    def k_to_regs(self):
        a = self.a
        t = T[0]; t2 = T[1]; t3 = T[2]
        a("s_waitcnt vmcnt(0)")
        a(f"v_and_b32 v{t}, 7, v0\nv_lshrrev_b32 v{t2}, 4, v0\nv_and_b32 v{t3}, 6, v0\nv_xor_b32 v{t2}, v{t2}, v{t3}")
        a(f"v_lshlrev_b32 v{t}, 7, v{t}\nv_bfe_u32 v{t3}, v0, 3, 1\nv_mul_u32_u24 v{t3}, 3072, v{t3}\nv_add_u32 v{t}, v{t}, v{t3}")
        a(f"s_mul_i32 s60, s3, 24576\nv_add_u32 v{t}, s60, v{t}")
        a(f"v_lshl_add_u32 v{t3}, v{t2}, 4, v{t}")
        a(f"v_xor_b32 v{t2}, 4, v{t2}\nv_lshl_add_u32 v{t2}, v{t2}, 4, v{t}")
        for tile in range(4):
            for u in range(6):
                off = L_K + (2 * tile * 3 + (u >> 1)) * 1024
                a(f"ds_read_b128 {q4(KV + (tile*6+u)*4)}, v{t2 if (u & 1) else t3} offset:{off}")
            if tile == 1: a("s_waitcnt lgkmcnt(0)")
        a("s_waitcnt lgkmcnt(0)")

    def gen(self):
        a = self.a
        a(f"; @launch grid=(256,1,1) block=(512,1,1) lds={LDS_BYTES}")
        a('.amdgcn_target "amdgcn-amd-amdhsa--gfx950"\n.text')
        a(f".globl {KNAME}\n.p2align 8\n.type {KNAME},@function")
        a(f"{KNAME}:")
        a("s_cmp_ge_u32 s2, 256\ns_cbranch_scc1 L_end")
        if self.prof:
            for i in range(13): a(f"s_mov_b64 s[{76+2*i}:{77+2*i}], 0")
        self.stamp(0)
        ptr = {8: 0, 12: 8, 16: 16, 20: 24, 24: 32, 28: 48, 32: 56, 36: 64, 40: 72, 44: 80, 48: 88}
        size = {8: 1280, 12: 100663296, 16: 100663296, 20: 7864320, 24: 7864320, 28: 1966080, 32: 3072, 36: 1966080, 40: 1280, 44: 256,
                48: (PROF_OFF + 256 * 8 * 2 * 64) if self.prof else WS_USED}
        for s, off in ptr.items():
            a(f"s_load_dwordx2 s[{s}:{s+1}], s[0:1], {off}")
        a("v_lshrrev_b32 v1, 6, v0\nv_and_b32 v0, 63, v0\nv_readfirstlane_b32 s3, v1")
        for s in ptr:
            a(f"s_mov_b32 s{s+2}, {size[s]}\ns_mov_b32 s{s+3}, 0x20000")
        a("s_and_b32 s4, s2, 7\ns_lshr_b32 s5, s2, 3\ns_lshr_b32 s6, s5, 3\ns_and_b32 s7, s5, 7")
        a(f"s_mul_i32 s53, s4, {32*BS}\ns_mul_i32 s52, s5, {BS}\ns_add_u32 s52, s52, s53")
        a("s_mov_b32 s54, 0\ns_mov_b32 s55, 0")
        a("s_cmp_ge_u32 s5, 10\ns_cselect_b32 s57, 1, 0\ns_cmp_ge_u32 s5, 20\ns_cselect_b32 s57, 2, s57\ns_cmp_ge_u32 s5, 30\ns_cselect_b32 s57, 3, s57")
        a("s_mul_i32 s58, s57, 10\ns_sub_u32 s56, s5, s58")
        a("s_mov_b32 s64, 0x00ff00ff\ns_mov_b32 s65, 0x00ff00ff")
        a("s_mov_b32 s66, 0xaaaaaaaa\ns_mov_b32 s67, 0xaaaaaaaa\ns_mov_b32 s68, 0xcccccccc\ns_mov_b32 s69, 0xcccccccc")
        a("s_lshl_b32 s58, s4, 2\ns_add_u32 s58, s58, s6\ns_mul_i32 s59, s58, 3145728")
        a("s_lshl_b32 s58, s7, 8\ns_and_b32 s60, s3, 3\ns_lshl_b32 s60, s60, 6\ns_add_u32 s58, s58, s60\ns_add_u32 s58, s58, 6144\ns_mul_i32 s58, s58, 384\ns_add_u32 s59, s59, s58")
        a("v_and_b32 v1, 7, v0\nv_lshrrev_b32 v2, 3, v0\nv_lshrrev_b32 v3, 4, v0")
        a(f"v_lshlrev_b32 v{lane4}, 2, v0")
        a(f"v_lshlrev_b32 v{aP32}, 4, v1\nv_lshl_add_u32 v{aP32}, v3, 2, v{aP32}")
        a("s_waitcnt lgkmcnt(0)")
        a("s_cmp_ge_u32 s3, 4\ns_cbranch_scc1 L_pro_v")
        a("s_cmp_eq_u32 s3, 3\ns_cbranch_scc1 L_pro_c")
        XS = GB
        a(f"v_lshlrev_b32 v{T[0]}, 4, v0")
        a(f"buffer_load_dwordx4 {q4(XS)}, v{T[0]}, s[8:11], 0 offen")
        a(f"buffer_load_dword v{XS+4}, v{lane4}, s[8:11], 0 offen offset:1024")
        a(f"v_lshlrev_b32 v{T[1]}, 2, v3\ns_mul_i32 s58, s7, 160")
        for t in range(10):
            a(f"buffer_load_dword v{XA+t}, v{T[1]}, s[8:11], s58 offen offset:{16*t}")
        a(f"v_mul_u32_u24 v{T[2]}, 12288, v2\nv_lshl_add_u32 v{T[2]}, v1, 4, v{T[2]}")
        a("s_lshl_b32 s58, s4, 2\ns_add_u32 s58, s58, s6\ns_mul_i32 s58, s58, 384\ns_lshl_b32 s60, s3, 7\ns_add_u32 s58, s58, s60\ns_mul_i32 s60, s7, 983040\ns_add_u32 s58, s58, s60")
        for t in range(10):
            a(f"buffer_load_dwordx4 {q4(WA+4*t)}, v{T[2]}, s[20:23], s58 offen nt")
            if t < 9: a(f"s_add_u32 s58, s58, {8*12288}")
        a("s_barrier")
        self.consts()
        self.kwave_addrs()
        a("s_waitcnt vmcnt(20)")
        s1, s2 = T[0], T[1]
        a(f"v_mov_b32 v{s1}, 0\nv_mov_b32 v{s2}, 0")
        for i in range(5):
            a(f"v_lshlrev_b32 v{T[2]}, 16, v{XS+i}\nv_and_b32 v{T[3]}, 0xffff0000, v{XS+i}")
            a(f"v_add_f32 v{s1}, v{s1}, v{T[2]}\nv_fmac_f32 v{s2}, v{T[2]}, v{T[2]}\nv_add_f32 v{s1}, v{s1}, v{T[3]}\nv_fmac_f32 v{s2}, v{T[3]}, v{T[3]}")
        self.red2_to_halves(s1, s2, ("quad_perm:[1,0,3,2]", "quad_perm:[2,3,0,1]", "row_half_mirror", "row_mirror"), T[2])
        a(f"v_readlane_b32 s58, v{s1}, 0\nv_readlane_b32 s60, v{s1}, 32")
        a(f"v_mov_b32 v{s1}, s58\nv_mov_b32 v{s2}, s60")
        a("s_waitcnt vmcnt(0)")
        for t in range(10):
            self.mfma(ACC, ONES, WA + 4 * t, t == 0)
        self.pair32(ACC, CS0, CS1)
        a("s_branch L_p1b")
        a("L_pro_c:")
        a("s_setprio 3")
        a(f"v_mov_b32 v{T[0]}, 0\nv_mov_b32 v{T[1]}, 0\nv_mov_b32 v{T[2]}, {L_CTRL}")
        a(f"ds_write_b64 v{T[2]}, v[{T[0]}:{T[1]}]") if T[0] % 2 == 0 else a(f"ds_write_b32 v{T[2]}, v{T[0]}\nds_write_b32 v{T[2]}, v{T[0]} offset:4")
        for i in range(4): a(f"v_mov_b32 v{GB+i}, -1")
        a(f"v_lshlrev_b32 v{T[3]}, 4, v0")
        for i in range(3):
            a(f"buffer_store_dwordx4 {q4(GB)}, v{T[3]}, s[48:51], s52 offen offset:{1024*i} sc1")
        a("s_mov_b64 exec, 0xffffff")
        a(f"buffer_store_dwordx4 {q4(GB)}, v{T[3]}, s[48:51], s52 offen offset:3072 sc1")
        a("s_mov_b64 exec, -1")
        a("s_waitcnt lgkmcnt(0)\ns_barrier")
        a(f"s_lshl_b32 s58, s56, 7\nbuffer_load_dword v{GB+4}, v{aP32}, s[8:11], s58 offen")
        a("s_getreg_b32 s61, hwreg(HW_REG_XCC_ID)\ns_and_b32 s61, s61, 15\ns_or_b32 s61, s61, 0x80")
        a(f"v_mov_b32 v{T[0]}, 1\nv_mov_b32 v{T[1]}, s61\nv_mov_b32 v{T[3]}, s2")
        a("s_waitcnt vmcnt(0)")
        a(f"ds_write_b32 v{T[2]}, v{T[0]}")
        a("s_mov_b64 exec, 1")
        a(f"buffer_store_byte v{T[1]}, v{T[3]}, s[44:47], 0 offen sc1")
        a("s_mov_b64 exec, -1")
        a(f"v_lshlrev_b32 v{X0}, 16, v{GB+4}\nv_and_b32 v{X1}, 0xffff0000, v{GB+4}")
        self.stamp(1)
        self.k_dma()
        a("s_setprio 0")
        self.consts()
        self.kwave_addrs()
        lp, ld = self.L("fp"), self.L("fg")
        a("s_mov_b32 s70, 0\ns_mov_b32 s62, 0x80808080")
        a(f"{lp}:\nbuffer_load_dword v{GB}, v{lane4}, s[44:47], 0 offen sc1\ns_waitcnt vmcnt(0)")
        a(f"v_and_b32 v{T[0]}, s62, v{GB}\nv_cmp_ne_u32 vcc, s62, v{T[0]}\ns_cbranch_vccz {ld}")
        a(f"s_sleep 4\ns_add_u32 s70, s70, 1\ns_cmp_lt_u32 s70, {POLL_LIMIT}\ns_cbranch_scc1 {lp}\n{ld}:")
        a("s_and_b32 s58, s4, 3\ns_lshl_b32 s58, s58, 3")
        a(f"v_lshrrev_b32 v{T[0]}, s58, v{GB}\nv_and_b32 v{T[0]}, 0xff, v{T[0]}\nv_cmp_ne_u32 vcc, s61, v{T[0]}")
        a("s_not_b64 s[72:73], s[66:67]\ns_cmp_ge_u32 s4, 4\ns_cselect_b64 s[72:73], s[66:67], s[72:73]")
        a("s_and_b64 s[72:73], s[72:73], vcc\ns_cselect_b32 s55, 0, 1")
        a("s_lshl_b32 s58, s55, 1\ns_or_b32 s58, s58, 1")
        a(f"v_mov_b32 v{T[0]}, s58\nv_mov_b32 v{T[2]}, {L_CTRL}\nds_write_b32 v{T[2]}, v{T[0]} offset:4")
        self.stamp(2)
        self.k_to_regs()
        a("s_branch L_p2a")
        a("L_pro_v:")
        a("s_barrier")
        a(f"v_mul_u32_u24 v{T[0]}, 384, v2\nv_lshl_add_u32 v{T[0]}, v1, 4, v{T[0]}")
        for n in range(24):
            rg, th = divmod(n, 3)
            if th == 0: a(f"s_add_u32 s58, s59, {rg*8*384}")
            a(f"buffer_load_dwordx4 {q4(KV+4*n)}, v{T[0]}, s[16:19], s58 offen offset:{th*128} nt")
        a(f"v_mul_u32_u24 v{T[1]}, 1280, v2\nv_lshl_add_u32 v{T[1]}, v1, 4, v{T[1]}")
        a("s_min_u32 s61, s57, 2\ns_mul_i32 s58, s4, 768\ns_lshl_b32 s60, s61, 8\ns_add_u32 s58, s58, s60\ns_and_b32 s60, s3, 3\ns_lshl_b32 s60, s60, 6\ns_add_u32 s58, s58, s60")
        a("s_mul_i32 s58, s58, 1280\ns_lshl_b32 s60, s56, 7\ns_add_u32 s58, s58, s60")
        for t in range(8):
            a(f"buffer_load_dwordx4 {q4(WA+4*t)}, v{T[1]}, s[24:27], s58 offen nt")
            if t < 7: a(f"s_add_u32 s58, s58, {8*1280}")
        self.stamp(1)
        self.consts()
        a("s_lshl_b32 s58, s61, 2\ns_and_b32 s60, s3, 3\ns_add_u32 s58, s58, s60\ns_mul_i32 s60, s58, 43\ns_lshr_b32 s60, s60, 7")
        a("s_mul_i32 s61, s60, 3\ns_sub_u32 s58, s58, s61")
        a(f"s_mul_i32 s60, s60, {8*BS}\ns_add_u32 s60, s60, s53\ns_lshl_b32 s58, s58, 7\ns_add_u32 s58, s58, s60")
        a("v_and_b32 v1, 7, v0\nv_lshrrev_b32 v2, 3, v0\nv_lshrrev_b32 v3, 4, v0")
        a(f"v_mul_u32_u24 v{aQG}, {BS}, v2\nv_lshl_add_u32 v{aQG}, v1, 4, v{aQG}\nv_add_u32 v{aQG}, s58, v{aQG}")
        a(f"v_lshl_add_u32 v{aML}, v3, 1, v0\nv_and_b32 v{aML}, 7, v{aML}\nv_mul_u32_u24 v{aML}, {BS}, v{aML}\nv_add_u32 v{aML}, s60, v{aML}")
        a(f"s_and_b32 s58, s3, 3\ns_lshl_b32 s58, s58, 7\ns_add_u32 s58, s58, {L_P}\nv_lshlrev_b32 v{ldsP}, 5, v3\nv_add_u32 v{ldsP}, s58, v{ldsP}")
        a(f"v_mov_b32 v{aST}, 0")
        a("s_branch L_b2")

        a("L_loop:")
        a(f"s_add_u32 s58, s3, 8\ns_cmp_lt_u32 s3, 2\ns_cselect_b32 s58, s58, s3\ns_cselect_b32 s63, 1.0, 0")
        a(f"s_mul_i32 s60, s3, {BS}\ns_mul_i32 s61, s58, {BS}")
        a(f"s_add_u32 s62, s60, s53\ns_add_u32 s71, s61, s53\ns_add_u32 s60, s60, {22*BS}\ns_add_u32 s61, s61, {22*BS}")
        self.poll([f"buffer_load_dwordx4 {q4(GB)}, v{aROW}, s[48:51], s60 offen offset:{ZO[0]} sc1",
                   f"buffer_load_dwordx4 {q4(GB+4)}, v{aROW}, s[48:51], s61 offen offset:{ZO[0]} sc1",
                   f"buffer_load_dword v{GB+8}, v{aP32}, s[48:51], s62 offen offset:{X1O} sc1",
                   f"buffer_load_dword v{GB+9}, v{aP32}, s[48:51], s71 offen offset:{X1O} sc1"], range(GB, GB + 10))
        self.stamp(1)
        self.mfma(ACC, ONES, GB, True)
        self.mfma(ACC + 4, ONES, GB + 4, True)
        s1, s2 = T[0], T[1]
        a(f"v_mov_b32 v{s1}, 0\nv_mov_b32 v{s2}, 0")
        a(f"s_lshl_b32 s60, s3, 7\ns_lshl_b32 s61, s58, 7")
        a(f"v_add_u32 v{GB+16}, s60, v{aP32}\nv_add_u32 v{GB+17}, s61, v{aP32}")
        for k in range(2):
            b = GB + 10 + 3 * k
            a(f"v_lshlrev_b32 v{GB+18+2*k}, 16, v{GB+8+k}\nv_and_b32 v{GB+19+2*k}, 0xffff0000, v{GB+8+k}")
        for k in range(2):
            b = GB + 10 + 3 * k
            self.pair32(ACC + 4 * k, b, b + 1)
        a("s_mov_b64 exec, s[64:65]")
        for k in range(2):
            b = GB + 10 + 3 * k
            a(f"v_cvt_pk_bf16_f32 v{b+2}, v{b}, v{b+1}")
            a(f"v_lshlrev_b32 v{b}, 16, v{b+2}\nv_and_b32 v{b+1}, 0xffff0000, v{b+2}")
            a(f"v_add_f32 v{b}, v{b}, v{GB+18+2*k}\nv_add_f32 v{b+1}, v{b+1}, v{GB+19+2*k}")
            a(f"v_cvt_pk_bf16_f32 v{b+2}, v{b}, v{b+1}")
            a(f"ds_write_b32 v{GB+16+k}, v{b+2} offset:{L_X}")
            a(f"v_lshlrev_b32 v{b}, 16, v{b+2}\nv_and_b32 v{b+1}, 0xffff0000, v{b+2}")
            if k == 1:
                a(f"v_mul_f32 v{b}, s63, v{b}\nv_mul_f32 v{b+1}, s63, v{b+1}")
            a(f"v_add_f32 v{s1}, v{s1}, v{b}\nv_fmac_f32 v{s2}, v{b}, v{b}\nv_add_f32 v{s1}, v{s1}, v{b+1}\nv_fmac_f32 v{s2}, v{b+1}, v{b+1}")
        a("s_mov_b64 exec, -1")
        self.red2_to_halves(s1, s2, ("quad_perm:[1,0,3,2]", "quad_perm:[2,3,0,1]", "row_half_mirror"), T[2])
        a(f"v_lshrrev_b32 v{T[2]}, 5, v0\ns_lshl_b32 s60, s3, 3\nv_lshl_add_u32 v{T[2]}, v{T[2]}, 2, s60")
        a("s_mov_b32 exec_lo, 1\ns_mov_b32 exec_hi, 1")
        a(f"ds_write_b32 v{T[2]}, v{s1} offset:{L_STATS}")
        a("s_mov_b64 exec, -1")
        a("s_waitcnt lgkmcnt(0)\ns_barrier")
        self.stamp(2)
        a("s_cmp_ge_u32 s3, 4\ns_cbranch_scc1 L_b2")
        a("s_cmp_eq_u32 s3, 3\ns_cbranch_scc1 L_p1_c")
        a(f"v_lshrrev_b32 v{T[2]}, 4, v0\ns_mul_i32 s58, s7, 160\nv_lshl_add_u32 v{T[2]}, v{T[2]}, 2, s58")
        for t in range(5):
            a(f"ds_read2_b32 v[{XA+2*t}:{XA+2*t+1}], v{T[2]} offset0:{(L_X-L_CTRL)//4*0 + 8*t} offset1:{8*t+4}") if False else None
        a(f"v_add_u32 v{T[2]}, {L_X}, v{T[2]}")
        for t in range(5):
            a(f"ds_read2_b32 v[{XA+2*t}:{XA+2*t+1}], v{T[2]} offset0:{8*t} offset1:{8*t+4}")
        a(f"v_and_b32 v{T[3]}, 7, v0\nv_lshlrev_b32 v{T[3]}, 3, v{T[3]}")
        a(f"ds_read_b32 v{T[0]}, v{T[3]} offset:{L_STATS}\nds_read_b32 v{T[1]}, v{T[3]} offset:{L_STATS+4}")
        a("s_waitcnt lgkmcnt(0)")
        for c in ("quad_perm:[1,0,3,2]", "quad_perm:[2,3,0,1]", "row_half_mirror"):
            a(f"v_add_f32_dpp v{T[0]}, v{T[0]}, v{T[0]} {c} {DPPALL}\nv_add_f32_dpp v{T[1]}, v{T[1]}, v{T[1]} {c} {DPPALL}")
        a("L_p1b:")
        for t in range(10):
            self.build_A(AB[t & 1], XA + t)
            if t > 0: self.mfma(ACC, AB[(t-1) & 1], WA + 4 * (t-1), t == 1)
        self.mfma(ACC, AB[1], WA + 36, False)
        self.ln_scalars(T[0], T[1])
        self.pair32(ACC, T[2], T[3])
        a(f"v_fma_f32 v{T[2]}, -v{T[0]}, v{CS0}, v{T[2]}\nv_fma_f32 v{T[3]}, -v{T[0]}, v{CS1}, v{T[3]}")
        a(f"v_mul_f32 v{T[2]}, v{T[2]}, v{T[1]}\nv_mul_f32 v{T[3]}, v{T[3]}, v{T[1]}")
        a(f"v_cvt_pk_bf16_f32 v{T[4]}, v{T[2]}, v{T[3]}")
        a("s_cmp_lg_u32 s54, 0\ns_cbranch_scc1 L_p1b_st")
        self.lds_wait_flag(L_CTRL)
        a("L_p1b_st:")
        self.sel_layer(58, QP, 52)
        a("s_lshl_b32 s60, s3, 7\ns_add_u32 s58, s58, s60")
        a("s_mov_b64 exec, s[64:65]")
        self.local_store(f"buffer_store_dword v{T[4]}, v{aP32}, s[48:51], s58 offen{{f}}")
        a("s_mov_b64 exec, -1")
        self.stamp(3)
        a("s_cmp_lg_u32 s54, 0\ns_cbranch_scc1 L_p2a")
        self.k_dma()
        self.lds_wait_flag(L_CTRL + 4, 55)
        self.k_to_regs()
        a("s_branch L_p2a")
        a("L_p1_c:")
        a(f"s_lshl_b32 s58, s56, 7\nv_add_u32 v{T[2]}, s58, v{aP32}\nds_read_b32 v{T[0]}, v{T[2]} offset:{L_X}\ns_waitcnt lgkmcnt(0)")
        a(f"v_lshlrev_b32 v{X0}, 16, v{T[0]}\nv_and_b32 v{X1}, 0xffff0000, v{T[0]}")
        a("L_p2a:")
        self.sel_layer(58, QP)
        self.poll([f"buffer_load_dwordx4 {q4(GB+4*u)}, v{aQG}, s[48:51], s58 offen offset:{64*u} sc1" for u in range(6)], range(GB, GB + 24))
        self.stamp(4)
        R = [XA, XA + 1, XA + 2, XA + 3]
        def lvl(t):
            for r in range(4):
                a(f"v_add_f32_dpp v{R[t]}, v{ACC+4*t+r}, v{ACC+4*t+r} row_half_mirror row_mask:0xf bank_mask:{hex(1<<r)}")
            a(f"v_add_f32_dpp v{R[t]}, v{R[t]}, v{R[t]} quad_perm:[1,0,3,2] {DPPALL}")
            a(f"v_add_f32_dpp v{R[t]}, v{R[t]}, v{R[t]} quad_perm:[2,3,0,1] {DPPALL}")
        for t in range(4):
            for u in range(6):
                self.mfma(ACC + 4 * t, KV + (t * 6 + u) * 4, GB + 4 * u, u == 0)
        for t in range(4): lvl(t)
        S = T[0]; M = T[1]
        a(f"v_cndmask_b32 v{R[0]}, v{R[0]}, v{R[1]}, s[66:67]\nv_cndmask_b32 v{R[2]}, v{R[2]}, v{R[3]}, s[66:67]\nv_cndmask_b32 v{S}, v{R[0]}, v{R[2]}, s[68:69]")
        a(f"v_mul_f32 v{S}, 0x3dd53b95, v{S}")
        a(f"v_mov_b32 v{M}, v{S}")
        self.allred64("v_max_f32", M, T[2])
        a(f"v_sub_f32 v{S}, v{S}, v{M}\nv_exp_f32 v{S}, v{S}")
        a(f"v_cvt_pk_bf16_f32 v{S}, v{S}, v{S}")
        a(f"ds_write_b16 v{ldsP}, v{S}")
        a("s_cmp_lg_u32 s54, 0\ns_cbranch_scc1 L_p2a_nl")
        self.late_loads()
        a("L_p2a_nl:")
        a("s_waitcnt lgkmcnt(0)")
        self.stamp(5)
        a("L_b2:")
        a("s_barrier")
        a("s_cmp_ge_u32 s3, 4\ns_cbranch_scc1 L_p2b")
        a(f"v_lshlrev_b32 v{S}, 16, v{S}")
        self.allred64("v_add_f32", S, T[2])
        a(f"s_lshl_b32 s58, s3, 3\nv_mov_b32 v{T[2]}, s58")
        a("s_mov_b64 exec, 1")
        a(f"ds_write_b32 v{T[2]}, v{M} offset:{L_ML}\nds_write_b32 v{T[2]}, v{S} offset:{L_ML+4}")
        a("s_mov_b64 exec, -1")
        a("s_branch L_b3")
        a("L_p2b:")
        self.stamp(5)
        a(f"ds_read_b128 {q4(GB)}, v{ldsP}\nds_read_b128 {q4(GB+4)}, v{ldsP} offset:16")
        a(f"v_mov_b32 v{T[2]}, {L_CTRL+4}\nds_read_b32 v{T[3]}, v{T[2]}")
        a("s_waitcnt lgkmcnt(0)")
        a(f"v_readfirstlane_b32 s55, v{T[3]}\ns_lshr_b32 s55, s55, 1")
        self.build_A(AB[0], GB)
        for G in range(8):
            if G + 1 < 8: self.build_A(AB[(G + 1) & 1], GB + G + 1)
            a(f"s_waitcnt vmcnt({8 + 21 - 3*G})")
            for th in range(3):
                self.mfma(ACC + 4 * th, AB[G & 1], KV + (G * 3 + th) * 4, G == 0)
        a(f"s_and_b32 s58, s3, 3\ns_mul_i32 s58, s58, 768\nv_add_u32 v{T[3]}, s58, v{lane4}")
        for th in range(3):
            self.l64(ACC + 4 * th, T[th])
        for th in range(3):
            a(f"ds_write_b32 v{T[3]}, v{T[th]} offset:{L_O + 256*th}")
        a("L_b3:")
        a("s_waitcnt lgkmcnt(0)\ns_barrier")
        self.stamp(6)
        a("s_cmp_lt_u32 s3, 4\ns_cbranch_scc1 L_k_b4")
        a("s_cmp_eq_u32 s3, 7\ns_cbranch_scc1 L_p3a")
        a(f"s_and_b32 s60, s3, 3\ns_lshl_b32 s58, s60, 8\nv_add_u32 v{T[3]}, s58, v{lane4}\nv_mov_b32 v{T[4]}, {L_ML}")
        a(f"ds_read_b128 {q4(GB)}, v{T[4]}\nds_read_b128 {q4(GB+4)}, v{T[4]} offset:16")
        for w in range(4):
            a(f"ds_read_b32 v{GB+8+w}, v{T[3]} offset:{L_O + 768*w}")
        a("s_waitcnt lgkmcnt(0)")
        M = GB + 12; Lr = GB + 13
        a(f"v_max3_f32 v{M}, v{GB}, v{GB+2}, v{GB+4}\nv_max_f32 v{M}, v{M}, v{GB+6}")
        for w in range(4): a(f"v_sub_f32 v{GB+2*w}, v{GB+2*w}, v{M}")
        for w in range(4): a(f"v_exp_f32 v{GB+2*w}, v{GB+2*w}")
        a(f"v_mul_f32 v{Lr}, v{GB}, v{GB+1}\nv_mul_f32 v{T[0]}, v{GB}, v{GB+8}")
        for w in range(1, 4):
            a(f"v_fmac_f32 v{Lr}, v{GB+2*w}, v{GB+2*w+1}\nv_fmac_f32 v{T[0]}, v{GB+2*w}, v{GB+8+w}")
        a(f"v_rcp_f32 v{T[1]}, v{Lr}\nv_mul_f32 v{T[0]}, v{T[0]}, v{T[1]}")
        a(f"v_mov_b32_dpp v{T[1]}, v{T[0]} row_ror:8 {DPPALL}\nv_cvt_pk_bf16_f32 v{T[0]}, v{T[0]}, v{T[1]}")
        self.sel_layer(58, OP, 52)
        a("s_lshl_b32 s60, s60, 7\ns_add_u32 s60, s60, s58")
        a("s_mov_b64 exec, s[64:65]")
        self.local_store(f"buffer_store_dword v{T[0]}, v{aP32}, s[48:51], s60 offen{{f}}")
        a("s_cmp_lg_u32 s3, 4\ns_cbranch_scc1 L_p2c_d")
        a("s_mov_b64 exec, 1")
        self.local_store(f"buffer_store_dwordx2 v[{M}:{Lr}], v{aP32}, s[48:51], s58 offen offset:384{{f}}")
        a("L_p2c_d:")
        a("s_mov_b64 exec, -1")
        self.stamp(7)
        a("L_p3a:")
        a("s_cmp_ge_u32 s5, 30\ns_cbranch_scc1 L_v_b5")
        self.sel_layer(58, OP)
        self.poll([f"buffer_load_dwordx4 {q4(GB)}, v{aQG}, s[48:51], s58 offen sc1",
                   f"buffer_load_dwordx2 v[{GB+4}:{GB+5}], v{aML}, s[48:51], s58 offen offset:384 sc1"], range(GB, GB + 6))
        self.stamp(8)
        M = T[0]; W = T[1]
        a(f"v_max_f32_dpp v{M}, v{GB+4}, v{GB+4} quad_perm:[1,0,3,2] {DPPALL}")
        a(f"v_max_f32_dpp v{M}, v{M}, v{M} quad_perm:[2,3,0,1] {DPPALL}\nv_max_f32_dpp v{M}, v{M}, v{M} row_half_mirror {DPPALL}")
        a(f"v_sub_f32 v{W}, v{GB+4}, v{M}\nv_exp_f32 v{W}, v{W}\nv_mul_f32 v{W}, v{W}, v{GB+5}")
        a(f"v_mov_b32_dpp v{T[2]}, v{W} row_newbcast:0 {DPPALL}\nv_mov_b32_dpp v{T[3]}, v{W} row_newbcast:1 {DPPALL}")
        a(f"v_cvt_pk_bf16_f32 v{T[2]}, v{T[2]}, v{T[3]}")
        self.build_A(AB[0], T[2])
        self.mfma(ACC, AB[0], GB, True)
        self.bf16r(W, W)
        for c in ("quad_perm:[1,0,3,2]", "quad_perm:[2,3,0,1]", "row_half_mirror"):
            a(f"v_add_f32_dpp v{W}, v{W}, v{W} {c} {DPPALL}")
        a(f"v_rcp_f32 v{W}, v{W}")
        self.pair32(ACC, T[2], T[3])
        a(f"v_mul_f32 v{T[2]}, v{T[2]}, v{W}\nv_mul_f32 v{T[3]}, v{T[3]}, v{W}\nv_cvt_pk_bf16_f32 v{T[4]}, v{T[2]}, v{T[3]}")
        self.gemv_bcast(ACC + 4, T[4], WA, 8)
        a(f"s_and_b32 s58, s3, 3\ns_lshl_b32 s58, s58, 8\nv_add_u32 v{T[3]}, s58, v{lane4}")
        self.l64(ACC + 4, T[0])
        a(f"ds_write_b32 v{T[3]}, v{T[0]} offset:{L_YR}")
        a("s_waitcnt lgkmcnt(0)\ns_barrier")
        a("s_cmp_lg_u32 s3, 7\ns_cbranch_scc1 L_v_b5")
        for w in range(4): a(f"ds_read_b32 v{GB+w}, v{lane4} offset:{L_YR + 256*w}")
        self.sel_layer(58, YO, 52)
        a("s_waitcnt lgkmcnt(0)")
        a(f"v_add_f32 v{GB}, v{GB}, v{GB+1}\nv_add_f32 v{GB+2}, v{GB+2}, v{GB+3}\nv_add_f32 v{T[0]}, v{GB}, v{GB+2}")
        a(f"v_mov_b32_dpp v{T[1]}, v{T[0]} row_ror:8 {DPPALL}\nv_cvt_pk_bf16_f32 v{T[0]}, v{T[0]}, v{T[1]}")
        a("s_mov_b64 exec, s[64:65]")
        a(f"buffer_store_dword v{T[0]}, v{aP32}, s[48:51], s58 offen sc1")
        a("s_mov_b64 exec, -1")
        self.stamp(9)
        a("L_v_b5:")
        a("s_cmp_lt_u32 s5, 22\ns_cbranch_scc1 L_next")
        a("s_barrier")
        a("s_branch L_next")
        a("L_k_b4:")
        a("s_cmp_ge_u32 s5, 30\ns_cbranch_scc1 L_k_nob4")
        a("s_barrier")
        a("L_k_nob4:")
        a("s_cmp_lg_u32 s3, 3\ns_cbranch_scc1 L_p5a")
        a("s_cmp_ge_u32 s5, 30\ns_cbranch_scc1 L_v_b5")
        a("s_cmp_lg_u32 s54, 0\ns_cbranch_scc1 L_p4_nocs")
        a("s_waitcnt vmcnt(0)")
        for t in range(8): self.mfma(ACC, ONES, WB + 4 * t, t == 0)
        self.l64(ACC, CS0)
        self.local_store(f"buffer_store_dword v{CS0}, v{aST}, s[48:51], s52 offen offset:{HPC}{{f}}")
        a("L_p4_nocs:")
        self.sel_layer(58, YO)
        a(f"s_mul_i32 s60, s56, {BS}\ns_add_u32 s58, s58, s60\ns_add_u32 s60, s58, {10*BS}\ns_add_u32 s61, s58, {20*BS}")
        self.poll([f"buffer_load_dwordx4 {q4(GB+4*n)}, v{aROW}, s[48:51], s{(58,60,61)[n]} offen sc1" for n in range(3)], range(GB, GB + 12))
        self.stamp(8)
        for n in range(3): self.mfma(ACC, ONES, GB + 4 * n, n == 0)
        self.resid_add()
        self.gemv_bcast(ACC + 4, T[4], WB, 8)
        s1, s2 = T[0], T[1]
        a(f"v_add_f32 v{s1}, v{X0}, v{X1}\nv_mul_f32 v{s2}, v{X0}, v{X0}\nv_fmac_f32 v{s2}, v{X1}, v{X1}")
        self.red2_to_halves(s1, s2, ("quad_perm:[1,0,3,2]", "quad_perm:[2,3,0,1]", "row_half_mirror"), T[2])
        self.l64(ACC + 4, T[3])
        self.sel_layer(58, HPR, 52)
        self.sel_layer(60, HPS, 52)
        a(f"v_lshrrev_b32 v{T[2]}, 3, v0\nv_and_b32 v{T[2]}, 4, v{T[2]}")
        ls, ld = self.L("sl"), self.L("sd")
        a(f"s_cmp_eq_u32 s55, 0\ns_cbranch_scc1 {ls}")
        for f in ("", " sc1"):
            a(f"buffer_store_dword v{T[3]}, v{aST}, s[48:51], s58 offen{f}")
            a("s_mov_b32 exec_lo, 1\ns_mov_b32 exec_hi, 1")
            a(f"buffer_store_dword v{s1}, v{T[2]}, s[48:51], s60 offen{f}")
            a("s_mov_b64 exec, s[64:65]")
            a(f"buffer_store_dword v{T[4]}, v{aP32}, s[48:51], s52 offen offset:{X1O}{f}")
            if f == "": a(f"s_branch {ld}\n{ls}:")
        a(f"{ld}:")
        a("s_mov_b64 exec, -1")
        self.stamp(9)
        a("s_branch L_v_b5")
        a("L_p5a:")
        a("s_cmp_lt_u32 s5, 22\ns_cbranch_scc1 L_next")
        a(f"s_mul_i32 s62, s3, {10*BS}\ns_add_u32 s62, s62, s53")
        def hp_gather(off_s, with_stats):
            for i in range(8, 14): a(f"v_mov_b32 v{GB+i}, 0")
            loads = [f"buffer_load_dwordx4 {q4(GB)}, v{aML}, s[48:51], s58 offen sc1",
                     f"buffer_load_dwordx4 {q4(GB+4)}, v{aML}, s[48:51], s60 offen sc1",
                     "s_mov_b32 exec_hi, 0",
                     f"buffer_load_dwordx4 {q4(GB+8)}, v{aML}, s[48:51], s61 offen sc1"]
            if with_stats:
                loads += ["s_mov_b32 exec_lo, 0x03ff03ff\ns_mov_b32 exec_hi, 0x03ff03ff",
                          f"buffer_load_dwordx2 v[{GB+12}:{GB+13}], v{aST}, s[48:51], s63 offen sc1"]
            loads += ["s_mov_b64 exec, -1"]
            self.poll(loads, range(GB, GB + (14 if with_stats else 12)))
        def hp_reduce(dst):
            for i in range(4): a(f"v_add_f32 v{GB+i}, v{GB+i}, v{GB+4+i}")
            for i in range(4): a(f"v_add_f32 v{GB+i}, v{GB+i}, v{GB+8+i}")
            a(f"v_permlane32_swap_b32 v{GB}, v{GB+2}\nv_permlane32_swap_b32 v{GB+1}, v{GB+3}")
            a(f"v_add_f32 v{GB}, v{GB}, v{GB+2}\nv_add_f32 v{GB+1}, v{GB+1}, v{GB+3}")
            a(f"v_permlane16_swap_b32 v{GB}, v{GB+1}\nv_add_f32 v{dst}, v{GB}, v{GB+1}")
        a("s_cmp_lg_u32 s54, 0\ns_cbranch_scc1 L_p5_nocs")
        a(f"s_add_u32 s58, s62, {HPC}\ns_add_u32 s60, s58, {4*BS}\ns_add_u32 s61, s58, {8*BS}")
        hp_gather(58, False)
        hp_reduce(CSW1)
        a(f"v_lshlrev_b32 v{B1V}, 16, v{B1V}")
        a("L_p5_nocs:")
        self.sel_layer(58, HPR, 62)
        self.sel_layer(63, HPS, 62)
        a(f"s_add_u32 s60, s58, {4*BS}\ns_add_u32 s61, s58, {8*BS}")
        hp_gather(58, True)
        self.stamp(8)
        s1, s2 = GB + 12, GB + 13
        for c in ("quad_perm:[1,0,3,2]", "quad_perm:[2,3,0,1]", "row_half_mirror", "row_mirror"):
            a(f"v_add_f32_dpp v{s1}, v{s1}, v{s1} {c} {DPPALL}\nv_add_f32_dpp v{s2}, v{s2}, v{s2} {c} {DPPALL}")
        H = T[0]
        hp_reduce(H)
        self.ln_scalars(s1, s2)
        a(f"v_fma_f32 v{H}, -v{s1}, v{CSW1}, v{H}\nv_mul_f32 v{H}, v{H}, v{s2}")
        self.bf16r(H, H)
        a(f"v_add_f32 v{H}, v{H}, v{B1V}")
        self.bf16r(H, H)
        E = T[1]; N = T[2]; Dn = T[3]
        a(f"v_mul_f32 v{E}, 0x3fb8aa3b, v{H}\nv_exp_f32 v{E}, -|v{E}|")
        a(f"v_cmp_gt_f32 vcc, 0, v{H}")
        a(f"v_fma_f32 v{N}, v{E}, 2.0, 1.0\nv_add_f32 v{Dn}, 2.0, v{E}\nv_mul_f32 v{Dn}, v{Dn}, v{E}")
        a(f"v_mul_f32 v{E}, v{E}, v{E}\nv_add_f32 v{E}, v{E}, v{E}")
        a(f"v_cndmask_b32 v{N}, v{N}, v{Dn}, vcc\nv_cndmask_b32 v{E}, v{E}, 2.0, vcc") if False else None
        a(f"v_cndmask_b32 v{N}, v{N}, v{Dn}, vcc\nv_mov_b32 v{Dn}, 2.0\nv_cndmask_b32 v{E}, v{E}, v{Dn}, vcc")
        a(f"v_add_f32 v{Dn}, v{N}, v{E}\nv_rcp_f32 v{Dn}, v{Dn}\nv_mul_f32 v{N}, v{N}, v{H}\nv_mul_f32 v{N}, v{N}, v{Dn}")
        a(f"v_mov_b32_dpp v{E}, v{N} row_ror:8 {DPPALL}\nv_cvt_pk_bf16_f32 v{T[4]}, v{N}, v{E}")
        self.gemv_bcast(ACC, T[4], WB, 8)
        a(f"s_lshl_b32 s58, s3, 8\nv_add_u32 v{T[3]}, s58, v{lane4}")
        self.l64(ACC, T[0])
        a(f"ds_write_b32 v{T[3]}, v{T[0]} offset:{L_ZR}")
        a("s_waitcnt lgkmcnt(0)\ns_barrier")
        a("s_cmp_lg_u32 s3, 0\ns_cbranch_scc1 L_next")
        for w in range(3): a(f"ds_read_b32 v{GB+w}, v{lane4} offset:{L_ZR + 256*w}")
        self.sel_layer(58, ZO, 52)
        a("s_waitcnt lgkmcnt(0)")
        a(f"v_add_f32 v{GB}, v{GB}, v{GB+1}\nv_add_f32 v{T[0]}, v{GB}, v{GB+2}")
        a(f"v_mov_b32_dpp v{T[1]}, v{T[0]} row_ror:8 {DPPALL}\nv_cvt_pk_bf16_f32 v{T[0]}, v{T[0]}, v{T[1]}")
        a("s_mov_b64 exec, s[64:65]")
        a(f"buffer_store_dword v{T[0]}, v{aP32}, s[48:51], s58 offen sc1")
        a("s_mov_b64 exec, -1")
        self.stamp(9)
        a("L_next:")
        a("s_cmp_lg_u32 s54, 0\ns_cbranch_scc1 L_final")
        self.dump_stamps()
        a("s_mov_b32 s54, 1\ns_branch L_loop")
        a("L_final:")
        a("s_cmp_lg_u32 s3, 3\ns_cbranch_scc1 L_fin2\ns_cmp_lg_u32 s4, 0\ns_cbranch_scc1 L_fin2\ns_cmp_ge_u32 s5, 10\ns_cbranch_scc1 L_fin2")
        a(f"s_mul_i32 s58, s5, {BS}\ns_add_u32 s58, s58, {22*BS}")
        self.poll([f"buffer_load_dwordx4 {q4(GB)}, v{aROW}, s[48:51], s58 offen offset:{ZO[1]} sc1"], range(GB, GB + 4))
        self.stamp(10)
        self.mfma(ACC, ONES, GB, True)
        self.resid_add()
        a("s_lshl_b32 s58, s5, 7")
        a("s_mov_b64 exec, s[64:65]")
        a(f"buffer_store_dword v{T[4]}, v{aP32}, s[40:43], s58 offen")
        a("s_mov_b64 exec, -1")
        self.stamp(11)
        a("L_fin2:")
        self.dump_stamps()
        a("L_end:\ns_endpgm")
        a('.section .rodata,"a"\n.p2align 6')
        a(f".amdhsa_kernel {KNAME}")
        a(".amdhsa_next_free_vgpr 256\n.amdhsa_next_free_sgpr 102\n.amdhsa_accum_offset 256\n.amdhsa_group_segment_fixed_size 0\n.amdhsa_kernarg_size 96")
        a(".amdhsa_user_sgpr_count 2\n.amdhsa_user_sgpr_kernarg_segment_ptr 1\n.amdhsa_system_sgpr_workgroup_id_x 1\n.end_amdhsa_kernel")
        return a.render()

    def resid_add(self):
        a = self.a
        self.pair32(ACC, T[2], T[3])
        a(f"v_cvt_pk_bf16_f32 v{T[4]}, v{T[2]}, v{T[3]}")
        a(f"v_lshlrev_b32 v{T[2]}, 16, v{T[4]}\nv_and_b32 v{T[3]}, 0xffff0000, v{T[4]}")
        a(f"v_add_f32 v{T[2]}, v{T[2]}, v{X0}\nv_add_f32 v{T[3]}, v{T[3]}, v{X1}")
        a(f"v_cvt_pk_bf16_f32 v{T[4]}, v{T[2]}, v{T[3]}")
        a(f"v_lshlrev_b32 v{X0}, 16, v{T[4]}\nv_and_b32 v{X1}, 0xffff0000, v{T[4]}")

    def consts(self):
        a = self.a
        t0, t1, t2 = T[0], T[1], T[2]
        a(f"v_and_b32 v{t0}, 1, v0\nv_mul_u32_u24 v{t0}, 0x202, v{t0}\nv_add_u32 v{t0}, 0x100, v{t0}")
        a(f"v_bfe_u32 v{t1}, v0, 1, 1\nv_lshlrev_b32 v{t1}, 4, v{t1}\nv_lshlrev_b32 v{t0}, v{t1}, v{t0}")
        a(f"v_mov_b32 v{t2}, 0x0c0c0000\nv_lshrrev_b32 v{t2}, v{t1}, v{t2}\nv_and_b32 v{t2}, 0x0c0c0c0c, v{t2}")
        a(f"v_or_b32 v{t0}, v{t0}, v{t2}")
        a(f"v_bfe_u32 v{t1}, v0, 2, 2\nv_mov_b32 v{t2}, 0x0c0c0c0c")
        for d in range(4):
            a(f"v_cmp_eq_u32 vcc, {d}, v{t1}\nv_cndmask_b32 v{SEL+d}, v{t2}, v{t0}, vcc")
        a(f"v_mov_b32 v{t0}, 0x3f803f80")
        self.build_A(ONES, t0)
        a(f"v_lshrrev_b32 v{t0}, 3, v0\nv_and_b32 v{t1}, 7, v0\ns_mov_b32 s58, {32*BS}\nv_mul_lo_u32 v{aROW}, s58, v{t0}\nv_lshl_add_u32 v{aROW}, v{t1}, 4, v{aROW}")

    def kwave_addrs(self):
        a = self.a
        t0, t1, t2 = T[0], T[1], T[2]
        a(f"v_and_b32 v{t0}, 7, v0\nv_mul_u32_u24 v{aQG}, {BS}, v{t0}\nv_lshrrev_b32 v{t1}, 4, v0\nv_lshl_add_u32 v{aQG}, v{t1}, 4, v{aQG}")
        a(f"s_mul_i32 s58, s6, {8*BS}\ns_add_u32 s58, s58, s53\nv_add_u32 v{aQG}, s58, v{aQG}")
        a(f"v_and_b32 v{t0}, 3, v0\nv_lshlrev_b32 v{t0}, 4, v{t0}\nv_lshl_add_u32 v{t0}, v{t1}, 2, v{t0}\nv_bfe_u32 v{t2}, v0, 2, 2\nv_add_u32 v{t0}, v{t0}, v{t2}")
        a(f"v_bfe_u32 v{t2}, v{t0}, 1, 2\nv_lshlrev_b32 v{ldsP}, 5, v{t2}\nv_lshrrev_b32 v{t2}, 3, v{t0}\nv_lshl_add_u32 v{ldsP}, v{t2}, 2, v{ldsP}")
        a(f"v_and_b32 v{t2}, 1, v{t0}\nv_lshl_add_u32 v{ldsP}, v{t2}, 1, v{ldsP}")
        a(f"s_lshl_b32 s58, s3, 7\ns_add_u32 s58, s58, {L_P}\nv_add_u32 v{ldsP}, s58, v{ldsP}")
        a(f"v_and_b32 v{t0}, 15, v0\nv_mul_u32_u24 v{aML}, {BS}, v{t1}\nv_lshl_add_u32 v{aML}, v{t0}, 4, v{aML}")
        a(f"v_mul_u32_u24 v{aST}, {BS}, v{t0}\nv_lshlrev_b32 v{t2}, 4, v{t0}\nv_lshl_add_u32 v{t2}, v{t1}, 2, v{t2}")
        a(f"s_cmp_eq_u32 s3, 3\ns_cselect_b64 vcc, -1, 0\nv_cndmask_b32 v{aST}, v{aST}, v{t2}, vcc")

    def late_loads(self):
        a = self.a
        t0, t1, t2 = T[2], T[3], T[4]
        l3, ld = self.L("ll3"), self.L("lld")
        a(f"v_lshrrev_b32 v{t0}, 3, v0\nv_and_b32 v{t1}, 7, v0")
        a(f"s_cmp_eq_u32 s3, 3\ns_cbranch_scc1 {l3}")
        a(f"s_cmp_lt_u32 s5, 22\ns_cbranch_scc1 {ld}")
        a(f"v_mul_u32_u24 v{t0}, 1280, v{t0}\nv_lshl_add_u32 v{t0}, v{t1}, 4, v{t0}")
        a("s_mul_i32 s58, s4, 192\ns_lshl_b32 s60, s3, 6\ns_add_u32 s61, s58, s60\ns_mul_i32 s58, s61, 1280\ns_sub_u32 s60, s5, 22\ns_lshl_b32 s60, s60, 7\ns_add_u32 s58, s58, s60")
        for t in range(8):
            a(f"buffer_load_dwordx4 {q4(WB+4*t)}, v{t0}, s[36:39], s58 offen nt")
            if t < 7: a(f"s_add_u32 s58, s58, {8*1280}")
        a(f"v_bfe_u32 v{t0}, v0, 3, 1\nv_lshl_add_u32 v{t0}, v{t0}, 1, v{aP32}\ns_lshl_b32 s61, s61, 1")
        a(f"buffer_load_ushort v{B1V}, v{t0}, s[32:35], s61 offen")
        a(f"s_branch {ld}\n{l3}:")
        a(f"s_cmp_ge_u32 s5, 30\ns_cbranch_scc1 {ld}")
        a(f"v_mul_u32_u24 v{t0}, 3072, v{t0}\nv_lshl_add_u32 v{t0}, v{t1}, 4, v{t0}")
        a(f"s_mul_i32 s58, s56, {64*3072}\ns_mul_i32 s60, s4, 384\ns_add_u32 s58, s58, s60\ns_lshl_b32 s60, s57, 7\ns_add_u32 s58, s58, s60")
        for t in range(8):
            a(f"buffer_load_dwordx4 {q4(WB+4*t)}, v{t0}, s[28:31], s58 offen nt")
            if t < 7: a(f"s_add_u32 s58, s58, {8*3072}")
        a(f"{ld}:")

HEADER = open("interleave_layers__sliding_block_cached__dense_activation_mish__decode.s.ref").read().split("; Override")[0] if __import__('os').path.exists("interleave_layers__sliding_block_cached__dense_activation_mish__decode.s.ref") else ""

if __name__ == "__main__":
    prof = len(sys.argv) > 2 and sys.argv[2] == "prof"
    txt = HEADER + Gen(prof).gen()
    open(sys.argv[1], "w").write(txt)
```

```python
import sys
sys.path.insert(0, "gen")
from asmlib import Asm

KNAME = "interleave_layers__sliding_block_cached__dense_activation_mish__decode_kernel"
BS = 3456
QP = [0, 384]; OP = [768, 1280]; YO = [1792, 1920]
HPR = [2048, 2688]; HPC = 2304; HPS = [2560, 2944]
X1O = 3072; ZO = [3200, 3328]
WS_USED = 256 * BS
PROF_OFF = 1 << 20
L_K = 8192
L_CTRL = 0
L_STATS = L_CTRL + 64
L_ML = L_CTRL + 128
L_P = L_CTRL + 256
L_X = L_CTRL + 768
L_O = L_CTRL + 2048
L_YR = L_O + 3072
L_ZR = L_YR + 1024
LDS_BYTES = L_K + 98304
assert L_ZR + 1024 <= L_K
POLL_LIMIT = 200000

ONES = 4; SEL = 8; AB = [12, 16]; ACC = 20; GB = 36; XA = 60
aQG = 70; aP32 = 71; aROW = 72; aML = 73; aST = 74; ldsP = 75; lane4 = 76
CS0 = 77; CS1 = 78; X0 = 79; X1 = 80; B1V = 81; CSW1 = 82
T = [83, 84, 85, 86, 87, 1, 2, 3]
KV = 88; WA = 184; WB = 224

def q4(r): return f"v[{r}:{r+3}]"
DPPALL = "row_mask:0xf bank_mask:0xf"

class Gen:
    def __init__(self, prof=False):
        self.a = Asm(); self.prof = prof; self.uid = 0; self.nstamp = 0
    def L(self, base):
        self.uid += 1
        return f"L_{base}_{self.uid}"
    def stamp(self, i):
        if self.prof: self.a(f"s_memrealtime s[{76+2*i}:{77+2*i}]")
    def dump_stamps(self, final=False):
        if not self.prof: return
        a = self.a
        if self.prof == 2:
            a("s_waitcnt lgkmcnt(0)")
            sel = [1, 2, 4, 5, 6, 8, 9, 11] if final else [0, 1, 2, 4, 5, 6, 8, 9]
            if not final: a(f"v_mov_b32 v{CSW1}, 0\ns_mov_b32 s75, s76") if False else None
            for n, i in enumerate(sel):
                a(f"s_sub_u32 s58, s{76+2*i}, s76")
                a(f"v_writelane_b32 v{XA+9}, s58, {n + (8 if final else 0)}")
            if final:
                le = self.L("nd")
                a(f"s_cmp_lg_u32 s2, 0\ns_cbranch_scc1 {le}\ns_cmp_lg_u32 s3, 3\ns_cbranch_scc1 {le}")
                a("s_mov_b64 exec, 0xffff")
                a(f"buffer_store_dword v{XA+9}, v{lane4}, s[44:47], 0 offen sc1")
                a("s_mov_b64 exec, -1")
                a(f"{le}:")
            return
        a("s_waitcnt lgkmcnt(0)")
        a(f"v_mov_b32 v{T[0]}, 0")
        for i in range(13):
            a(f"v_writelane_b32 v{T[0]}, s{76+2*i}, {i}")
        a("s_lshl_b32 s58, s2, 3\ns_add_u32 s58, s58, s3\ns_lshl_b32 s58, s58, 1\ns_add_u32 s58, s58, s54\ns_lshl_b32 s58, s58, 6")
        a(f"s_add_u32 s58, s58, {PROF_OFF}")
        a("s_mov_b64 exec, 0xffff")
        a(f"buffer_store_dword v{T[0]}, v{lane4}, s[48:51], s58 offen")
        a("s_mov_b64 exec, -1")
        for i in range(13):
            a(f"s_mov_b64 s[{76+2*i}:{77+2*i}], 0")
    def local_store(self, instr_fmt):
        a = self.a
        ls, ld = self.L("sl"), self.L("sd")
        a(f"s_cmp_eq_u32 s55, 0\ns_cbranch_scc1 {ls}")
        a(instr_fmt.format(f=""))
        a(f"s_branch {ld}\n{ls}:")
        a(instr_fmt.format(f=" sc1"))
        a(f"{ld}:")
    def poll(self, loads, regs, pre=None):
        a = self.a
        lp, ld = self.L("poll"), self.L("got")
        a("s_mov_b32 s70, 0")
        a(f"{lp}:")
        for x in loads: a(x)
        a("s_waitcnt vmcnt(0)")
        t = T[7]
        rs = list(regs)
        if len(rs) == 1:
            a(f"v_cmp_eq_u32 vcc, -1, v{rs[0]}")
        else:
            if len(rs) == 2:
                a(f"v_max_u32 v{t}, v{rs[0]}, v{rs[1]}"); rs = []
            else:
                a(f"v_max3_u32 v{t}, v{rs[0]}, v{rs[1]}, v{rs[2]}"); rs = rs[3:]
            while rs:
                if len(rs) >= 2:
                    a(f"v_max3_u32 v{t}, v{t}, v{rs[0]}, v{rs[1]}"); rs = rs[2:]
                else:
                    a(f"v_max_u32 v{t}, v{t}, v{rs[0]}"); rs = rs[1:]
            a(f"v_cmp_eq_u32 vcc, -1, v{t}")
        a(f"s_cbranch_vccz {ld}")
        a(f"s_add_u32 s70, s70, 1\ns_cmp_lt_u32 s70, {POLL_LIMIT}\ns_cbranch_scc1 {lp}")
        a(f"{ld}:")
    def build_A(self, dst, src):
        for d in range(4):
            self.a(f"v_perm_b32 v{dst+d}, v{src}, v{src}, v{SEL+d}")
    def mfma(self, D, A, B, first):
        self.a(f"v_mfma_f32_16x16x32_bf16 {q4(D)}, {q4(A)}, {q4(B)}, {'0' if first else q4(D)}")
    def pair32(self, D, t0, t1):
        self.a(f"v_add_f32_dpp v{t0}, v{D+1}, v{D} row_ror:8 {DPPALL}")
        self.a(f"v_add_f32_dpp v{t1}, v{D+3}, v{D+2} row_ror:8 {DPPALL}")
    def l64(self, D, t):
        self.a(f"v_add_f32_dpp v{t}, v{D+1}, v{D} row_ror:8 row_mask:0xf bank_mask:0x3")
        self.a(f"v_add_f32_dpp v{t}, v{D+2}, v{D+3} row_ror:8 row_mask:0xf bank_mask:0xc")
    def gemv_bcast(self, D, pair, W, n):
        a = self.a
        tb = [T[5], T[6]]
        a(f"v_mov_b32_dpp v{tb[0]}, v{pair} row_newbcast:0 {DPPALL}")
        for t in range(n):
            if t + 1 < n:
                a(f"v_mov_b32_dpp v{tb[(t+1)&1]}, v{pair} row_newbcast:{t+1} {DPPALL}")
            self.build_A(AB[t & 1], tb[t & 1])
            if t > 0: self.mfma(D, AB[(t-1) & 1], W + 4 * (t-1), t == 1)
        self.mfma(D, AB[(n-1) & 1], W + 4 * (n-1), n == 1)
    def bf16r(self, dst, src):
        self.a(f"v_cvt_pk_bf16_f32 v{dst}, v{src}, v{src}\nv_lshlrev_b32 v{dst}, 16, v{dst}")
    def ln_scalars(self, s1, s2):
        a = self.a
        t = T[5]
        inv = "0x3acccccd"
        a(f"v_mul_f32 v{s1}, {inv}, v{s1}")
        a(f"v_mul_f32 v{s2}, {inv}, v{s2}")
        a(f"v_fma_f32 v{s2}, -v{s1}, v{s1}, v{s2}")
        a(f"v_max_f32 v{s2}, 0, v{s2}")
        a(f"v_cvt_pk_bf16_f32 v{t}, v{s1}, v{s2}")
        a(f"v_lshlrev_b32 v{s1}, 16, v{t}")
        a(f"v_and_b32 v{s2}, 0xffff0000, v{t}")
        a(f"v_add_f32 v{s2}, 0x3727c5ac, v{s2}")
        self.bf16r(s2, s2)
        a(f"v_sqrt_f32 v{s2}, v{s2}")
        self.bf16r(s2, s2)
        a(f"v_rcp_f32 v{s2}, v{s2}")
    def red2_to_halves(self, s1, s2, steps, tmp):
        a = self.a
        a(f"v_permlane32_swap_b32 v{s1}, v{s2}")
        a(f"v_add_f32 v{s1}, v{s1}, v{s2}")
        a(f"v_mov_b32 v{tmp}, v{s1}")
        a(f"v_permlane16_swap_b32 v{s1}, v{tmp}")
        a(f"v_add_f32 v{s1}, v{s1}, v{tmp}")
        for c in steps:
            a(f"v_add_f32_dpp v{s1}, v{s1}, v{s1} {c} {DPPALL}")
    def allred64(self, op, v, tmp):
        a = self.a
        for c in ("quad_perm:[1,0,3,2]", "quad_perm:[2,3,0,1]", "row_half_mirror", "row_mirror"):
            a(f"{op}_dpp v{v}, v{v}, v{v} {c} {DPPALL}")
        a(f"v_mov_b32 v{tmp}, v{v}\nv_permlane16_swap_b32 v{v}, v{tmp}\n{op} v{v}, v{v}, v{tmp}")
        a(f"v_mov_b32 v{tmp}, v{v}\nv_permlane32_swap_b32 v{v}, v{tmp}\n{op} v{v}, v{v}, v{tmp}")
    def sel_layer(self, dst, arr, add=None):
        a = self.a
        a(f"s_mul_i32 s{dst}, s54, {arr[1]-arr[0]}")
        if arr[0]: a(f"s_add_u32 s{dst}, s{dst}, {arr[0]}")
        if add is not None: a(f"s_add_u32 s{dst}, s{dst}, s{add}")
    def lds_wait_flag(self, off, dst_s=None):
        a = self.a
        lp, ld = self.L("lw"), self.L("lg")
        t = T[5]; t2 = T[6]
        a(f"v_mov_b32 v{t2}, {off}\ns_mov_b32 s70, 0")
        a(f"{lp}:\nds_read_b32 v{t}, v{t2}\ns_waitcnt lgkmcnt(0)\nv_readfirstlane_b32 s58, v{t}")
        a(f"s_cmp_lg_u32 s58, 0\ns_cbranch_scc1 {ld}")
        a(f"s_sleep 1\ns_add_u32 s70, s70, 1\ns_cmp_lt_u32 s70, {4*POLL_LIMIT}\ns_cbranch_scc1 {lp}")
        a(f"{ld}:")
        if dst_s is not None: a(f"s_lshr_b32 s{dst_s}, s58, 1")
    def k_dma(self):
        a = self.a
        t = T[0]; t2 = T[1]
        a(f"v_lshrrev_b32 v{t}, 3, v0\nv_and_b32 v{t2}, 6, v{t}\nv_xor_b32 v{t2}, v{t2}, v0\nv_and_b32 v{t2}, 7, v{t2}")
        a(f"v_mul_u32_u24 v{t}, 384, v{t}\nv_lshl_add_u32 v{t}, v{t2}, 4, v{t}")
        a("s_mul_i32 s60, s3, 24576")
        for n in range(24):
            rg, th = divmod(n, 3)
            a(f"s_add_u32 s58, s59, {rg*8*384 + th*128}")
            a(f"s_add_u32 m0, s60, {L_K + n*1024}")
            a(f"buffer_load_dwordx4 v{t}, s[12:15], s58 offen nt lds")
    def k_to_regs(self):
        a = self.a
        t = T[0]; t2 = T[1]; t3 = T[2]
        a("s_waitcnt vmcnt(0)")
        a(f"v_and_b32 v{t}, 7, v0\nv_lshrrev_b32 v{t2}, 4, v0\nv_and_b32 v{t3}, 6, v0\nv_xor_b32 v{t2}, v{t2}, v{t3}")
        a(f"v_lshlrev_b32 v{t}, 7, v{t}\nv_bfe_u32 v{t3}, v0, 3, 1\nv_mul_u32_u24 v{t3}, 3072, v{t3}\nv_add_u32 v{t}, v{t}, v{t3}")
        a(f"s_mul_i32 s60, s3, 24576\nv_add_u32 v{t}, s60, v{t}")
        a(f"v_lshl_add_u32 v{t3}, v{t2}, 4, v{t}")
        a(f"v_xor_b32 v{t2}, 4, v{t2}\nv_lshl_add_u32 v{t2}, v{t2}, 4, v{t}")
        for tile in range(4):
            for u in range(6):
                off = L_K + (2 * tile * 3 + (u >> 1)) * 1024
                a(f"ds_read_b128 {q4(KV + (tile*6+u)*4)}, v{t2 if (u & 1) else t3} offset:{off}")
            if tile == 1: a("s_waitcnt lgkmcnt(0)")
        a("s_waitcnt lgkmcnt(0)")

    def gen(self):
        a = self.a
        a(f"; @launch grid=(256,1,1) block=(512,1,1) lds={LDS_BYTES}")
        a('.amdgcn_target "amdgcn-amd-amdhsa--gfx950"\n.text')
        a(f".globl {KNAME}\n.p2align 8\n.type {KNAME},@function")
        a(f"{KNAME}:")
        a("s_cmp_ge_u32 s2, 256\ns_cbranch_scc1 L_end")
        if self.prof:
            for i in range(13): a(f"s_mov_b64 s[{76+2*i}:{77+2*i}], 0")
        self.stamp(0)
        ptr = {8: 0, 12: 8, 16: 16, 20: 24, 24: 32, 28: 48, 32: 56, 36: 64, 40: 72, 44: 80, 48: 88}
        size = {8: 1280, 12: 100663296, 16: 100663296, 20: 7864320, 24: 7864320, 28: 1966080, 32: 3072, 36: 1966080, 40: 1280, 44: 256,
                48: (PROF_OFF + 256 * 8 * 2 * 64) if self.prof else WS_USED}
        for s, off in ptr.items():
            a(f"s_load_dwordx2 s[{s}:{s+1}], s[0:1], {off}")
        a("v_lshrrev_b32 v1, 6, v0\nv_and_b32 v0, 63, v0\nv_readfirstlane_b32 s3, v1")
        for s in ptr:
            a(f"s_mov_b32 s{s+2}, {size[s]}\ns_mov_b32 s{s+3}, 0x20000")
        a("s_and_b32 s4, s2, 7\ns_lshr_b32 s5, s2, 3\ns_lshr_b32 s6, s5, 3\ns_and_b32 s7, s5, 7")
        a(f"s_mul_i32 s53, s4, {32*BS}\ns_mul_i32 s52, s5, {BS}\ns_add_u32 s52, s52, s53")
        a("s_mov_b32 s54, 0\ns_mov_b32 s55, 0")
        a("s_cmp_ge_u32 s5, 10\ns_cselect_b32 s57, 1, 0\ns_cmp_ge_u32 s5, 20\ns_cselect_b32 s57, 2, s57\ns_cmp_ge_u32 s5, 30\ns_cselect_b32 s57, 3, s57")
        a("s_mul_i32 s58, s57, 10\ns_sub_u32 s56, s5, s58")
        a("s_mov_b32 s64, 0x00ff00ff\ns_mov_b32 s65, 0x00ff00ff")
        a("s_mov_b32 s66, 0xaaaaaaaa\ns_mov_b32 s67, 0xaaaaaaaa\ns_mov_b32 s68, 0xcccccccc\ns_mov_b32 s69, 0xcccccccc")
        a("s_lshl_b32 s58, s4, 2\ns_add_u32 s58, s58, s6\ns_mul_i32 s59, s58, 3145728")
        a("s_lshl_b32 s58, s7, 8\ns_and_b32 s60, s3, 3\ns_lshl_b32 s60, s60, 6\ns_add_u32 s58, s58, s60\ns_add_u32 s58, s58, 6144\ns_mul_i32 s58, s58, 384\ns_add_u32 s59, s59, s58")
        a("v_and_b32 v1, 7, v0\nv_lshrrev_b32 v2, 3, v0\nv_lshrrev_b32 v3, 4, v0")
        a(f"v_lshlrev_b32 v{lane4}, 2, v0")
        a(f"v_lshlrev_b32 v{aP32}, 4, v1\nv_lshl_add_u32 v{aP32}, v3, 2, v{aP32}")
        a("s_waitcnt lgkmcnt(0)")
        a("s_cmp_ge_u32 s3, 4\ns_cbranch_scc1 L_pro_v")
        a("s_cmp_eq_u32 s3, 3\ns_cbranch_scc1 L_pro_c")
        XS = GB
        a(f"v_lshlrev_b32 v{T[0]}, 4, v0")
        a(f"buffer_load_dwordx4 {q4(XS)}, v{T[0]}, s[8:11], 0 offen")
        a(f"buffer_load_dword v{XS+4}, v{lane4}, s[8:11], 0 offen offset:1024")
        a(f"v_lshlrev_b32 v{T[1]}, 2, v3\ns_mul_i32 s58, s7, 160")
        for t in range(10):
            a(f"buffer_load_dword v{XA+t}, v{T[1]}, s[8:11], s58 offen offset:{16*t}")
        a(f"v_mul_u32_u24 v{T[2]}, 12288, v2\nv_lshl_add_u32 v{T[2]}, v1, 4, v{T[2]}")
        a("s_lshl_b32 s58, s4, 2\ns_add_u32 s58, s58, s6\ns_mul_i32 s58, s58, 384\ns_lshl_b32 s60, s3, 7\ns_add_u32 s58, s58, s60\ns_mul_i32 s60, s7, 983040\ns_add_u32 s58, s58, s60")
        for t in range(10):
            a(f"buffer_load_dwordx4 {q4(WA+4*t)}, v{T[2]}, s[20:23], s58 offen nt")
            if t < 9: a(f"s_add_u32 s58, s58, {8*12288}")
        a("s_barrier")
        self.consts()
        self.kwave_addrs()
        a("s_waitcnt vmcnt(20)")
        s1, s2 = T[0], T[1]
        a(f"v_mov_b32 v{s1}, 0\nv_mov_b32 v{s2}, 0")
        for i in range(5):
            a(f"v_lshlrev_b32 v{T[2]}, 16, v{XS+i}\nv_and_b32 v{T[3]}, 0xffff0000, v{XS+i}")
            a(f"v_add_f32 v{s1}, v{s1}, v{T[2]}\nv_fmac_f32 v{s2}, v{T[2]}, v{T[2]}\nv_add_f32 v{s1}, v{s1}, v{T[3]}\nv_fmac_f32 v{s2}, v{T[3]}, v{T[3]}")
        self.red2_to_halves(s1, s2, ("quad_perm:[1,0,3,2]", "quad_perm:[2,3,0,1]", "row_half_mirror", "row_mirror"), T[2])
        a(f"v_readlane_b32 s58, v{s1}, 0\nv_readlane_b32 s60, v{s1}, 32")
        a(f"v_mov_b32 v{s1}, s58\nv_mov_b32 v{s2}, s60")
        a("s_waitcnt vmcnt(0)")
        for t in range(10):
            self.mfma(ACC, ONES, WA + 4 * t, t == 0)
        self.pair32(ACC, CS0, CS1)
        a("s_branch L_p1b")
        a("L_pro_c:")
        a("s_setprio 3")
        a(f"v_mov_b32 v{T[0]}, 0\nv_mov_b32 v{T[1]}, 0\nv_mov_b32 v{T[2]}, {L_CTRL}")
        a(f"ds_write_b64 v{T[2]}, v[{T[0]}:{T[1]}]") if T[0] % 2 == 0 else a(f"ds_write_b32 v{T[2]}, v{T[0]}\nds_write_b32 v{T[2]}, v{T[0]} offset:4")
        for i in range(4): a(f"v_mov_b32 v{GB+i}, -1")
        a(f"v_lshlrev_b32 v{T[3]}, 4, v0")
        for i in range(3):
            a(f"buffer_store_dwordx4 {q4(GB)}, v{T[3]}, s[48:51], s52 offen offset:{1024*i} sc1")
        a("s_mov_b64 exec, 0xffffff")
        a(f"buffer_store_dwordx4 {q4(GB)}, v{T[3]}, s[48:51], s52 offen offset:3072 sc1")
        a("s_mov_b64 exec, -1")
        a("s_waitcnt lgkmcnt(0)\ns_barrier")
        a(f"s_lshl_b32 s58, s56, 7\nbuffer_load_dword v{GB+4}, v{aP32}, s[8:11], s58 offen")
        a("s_getreg_b32 s61, hwreg(HW_REG_XCC_ID)\ns_and_b32 s61, s61, 15\ns_or_b32 s61, s61, 0x80")
        a(f"v_mov_b32 v{T[0]}, 1\nv_mov_b32 v{T[1]}, s61\nv_mov_b32 v{T[3]}, s2")
        a("s_waitcnt vmcnt(0)")
        a(f"ds_write_b32 v{T[2]}, v{T[0]}")
        a("s_mov_b64 exec, 1")
        a(f"buffer_store_byte v{T[1]}, v{T[3]}, s[44:47], 0 offen sc1")
        a("s_mov_b64 exec, -1")
        a(f"v_lshlrev_b32 v{X0}, 16, v{GB+4}\nv_and_b32 v{X1}, 0xffff0000, v{GB+4}")
        self.stamp(1)
        self.k_dma()
        a("s_setprio 0")
        self.consts()
        self.kwave_addrs()
        lp, ld = self.L("fp"), self.L("fg")
        a("s_mov_b32 s70, 0\ns_mov_b32 s62, 0x80808080")
        a(f"{lp}:\nbuffer_load_dword v{GB}, v{lane4}, s[44:47], 0 offen sc1\ns_waitcnt vmcnt(0)")
        a(f"v_and_b32 v{T[0]}, s62, v{GB}\nv_cmp_ne_u32 vcc, s62, v{T[0]}\ns_cbranch_vccz {ld}")
        a(f"s_sleep 4\ns_add_u32 s70, s70, 1\ns_cmp_lt_u32 s70, {POLL_LIMIT}\ns_cbranch_scc1 {lp}\n{ld}:")
        a("s_and_b32 s58, s4, 3\ns_lshl_b32 s58, s58, 3")
        a(f"v_lshrrev_b32 v{T[0]}, s58, v{GB}\nv_and_b32 v{T[0]}, 0xff, v{T[0]}\nv_cmp_ne_u32 vcc, s61, v{T[0]}")
        a("s_not_b64 s[72:73], s[66:67]\ns_cmp_ge_u32 s4, 4\ns_cselect_b64 s[72:73], s[66:67], s[72:73]")
        a("s_and_b64 s[72:73], s[72:73], vcc\ns_cselect_b32 s55, 0, 1")
        a("s_lshl_b32 s58, s55, 1\ns_or_b32 s58, s58, 1")
        a(f"v_mov_b32 v{T[0]}, s58\nv_mov_b32 v{T[2]}, {L_CTRL}\nds_write_b32 v{T[2]}, v{T[0]} offset:4")
        self.stamp(2)
        self.k_to_regs()
        a("s_branch L_p2a")
        a("L_pro_v:")
        a("s_barrier")
        a(f"v_mul_u32_u24 v{T[0]}, 384, v2\nv_lshl_add_u32 v{T[0]}, v1, 4, v{T[0]}")
        for n in range(24):
            rg, th = divmod(n, 3)
            if th == 0: a(f"s_add_u32 s58, s59, {rg*8*384}")
            a(f"buffer_load_dwordx4 {q4(KV+4*n)}, v{T[0]}, s[16:19], s58 offen offset:{th*128} nt")
        a(f"v_mul_u32_u24 v{T[1]}, 1280, v2\nv_lshl_add_u32 v{T[1]}, v1, 4, v{T[1]}")
        a("s_min_u32 s61, s57, 2\ns_mul_i32 s58, s4, 768\ns_lshl_b32 s60, s61, 8\ns_add_u32 s58, s58, s60\ns_and_b32 s60, s3, 3\ns_lshl_b32 s60, s60, 6\ns_add_u32 s58, s58, s60")
        a("s_mul_i32 s58, s58, 1280\ns_lshl_b32 s60, s56, 7\ns_add_u32 s58, s58, s60")
        for t in range(8):
            a(f"buffer_load_dwordx4 {q4(WA+4*t)}, v{T[1]}, s[24:27], s58 offen nt")
            if t < 7: a(f"s_add_u32 s58, s58, {8*1280}")
        self.stamp(1)
        self.consts()
        a("s_lshl_b32 s58, s61, 2\ns_and_b32 s60, s3, 3\ns_add_u32 s58, s58, s60\ns_mul_i32 s60, s58, 43\ns_lshr_b32 s60, s60, 7")
        a("s_mul_i32 s61, s60, 3\ns_sub_u32 s58, s58, s61")
        a(f"s_mul_i32 s60, s60, {8*BS}\ns_add_u32 s60, s60, s53\ns_lshl_b32 s58, s58, 7\ns_add_u32 s58, s58, s60")
        a("v_and_b32 v1, 7, v0\nv_lshrrev_b32 v2, 3, v0\nv_lshrrev_b32 v3, 4, v0")
        a(f"v_mul_u32_u24 v{aQG}, {BS}, v2\nv_lshl_add_u32 v{aQG}, v1, 4, v{aQG}\nv_add_u32 v{aQG}, s58, v{aQG}")
        a(f"v_lshl_add_u32 v{aML}, v3, 1, v0\nv_and_b32 v{aML}, 7, v{aML}\nv_mul_u32_u24 v{aML}, {BS}, v{aML}\nv_add_u32 v{aML}, s60, v{aML}")
        a(f"s_and_b32 s58, s3, 3\ns_lshl_b32 s58, s58, 7\ns_add_u32 s58, s58, {L_P}\nv_lshlrev_b32 v{ldsP}, 5, v3\nv_add_u32 v{ldsP}, s58, v{ldsP}")
        a(f"v_mov_b32 v{aST}, 0")
        a("s_branch L_b2")

        a("L_loop:")
        a(f"s_add_u32 s58, s3, 8\ns_cmp_lt_u32 s3, 2\ns_cselect_b32 s58, s58, s3\ns_cselect_b32 s63, 1.0, 0")
        a(f"s_mul_i32 s60, s3, {BS}\ns_mul_i32 s61, s58, {BS}")
        a(f"s_add_u32 s62, s60, s53\ns_add_u32 s71, s61, s53\ns_add_u32 s60, s60, {22*BS}\ns_add_u32 s61, s61, {22*BS}")
        self.poll([f"buffer_load_dwordx4 {q4(GB)}, v{aROW}, s[48:51], s60 offen offset:{ZO[0]} sc1",
                   f"buffer_load_dwordx4 {q4(GB+4)}, v{aROW}, s[48:51], s61 offen offset:{ZO[0]} sc1",
                   f"buffer_load_dword v{GB+8}, v{aP32}, s[48:51], s62 offen offset:{X1O} sc1",
                   f"buffer_load_dword v{GB+9}, v{aP32}, s[48:51], s71 offen offset:{X1O} sc1"], range(GB, GB + 10))
        self.stamp(1)
        self.mfma(ACC, ONES, GB, True)
        self.mfma(ACC + 4, ONES, GB + 4, True)
        s1, s2 = T[0], T[1]
        a(f"v_mov_b32 v{s1}, 0\nv_mov_b32 v{s2}, 0")
        a(f"s_lshl_b32 s60, s3, 7\ns_lshl_b32 s61, s58, 7")
        a(f"v_add_u32 v{GB+16}, s60, v{aP32}\nv_add_u32 v{GB+17}, s61, v{aP32}")
        for k in range(2):
            b = GB + 10 + 3 * k
            a(f"v_lshlrev_b32 v{GB+18+2*k}, 16, v{GB+8+k}\nv_and_b32 v{GB+19+2*k}, 0xffff0000, v{GB+8+k}")
        for k in range(2):
            b = GB + 10 + 3 * k
            self.pair32(ACC + 4 * k, b, b + 1)
        a("s_mov_b64 exec, s[64:65]")
        for k in range(2):
            b = GB + 10 + 3 * k
            a(f"v_cvt_pk_bf16_f32 v{b+2}, v{b}, v{b+1}")
            a(f"v_lshlrev_b32 v{b}, 16, v{b+2}\nv_and_b32 v{b+1}, 0xffff0000, v{b+2}")
            a(f"v_add_f32 v{b}, v{b}, v{GB+18+2*k}\nv_add_f32 v{b+1}, v{b+1}, v{GB+19+2*k}")
            a(f"v_cvt_pk_bf16_f32 v{b+2}, v{b}, v{b+1}")
            a(f"ds_write_b32 v{GB+16+k}, v{b+2} offset:{L_X}")
            a(f"v_lshlrev_b32 v{b}, 16, v{b+2}\nv_and_b32 v{b+1}, 0xffff0000, v{b+2}")
            if k == 1:
                a(f"v_mul_f32 v{b}, s63, v{b}\nv_mul_f32 v{b+1}, s63, v{b+1}")
            a(f"v_add_f32 v{s1}, v{s1}, v{b}\nv_fmac_f32 v{s2}, v{b}, v{b}\nv_add_f32 v{s1}, v{s1}, v{b+1}\nv_fmac_f32 v{s2}, v{b+1}, v{b+1}")
        a("s_mov_b64 exec, -1")
        self.red2_to_halves(s1, s2, ("quad_perm:[1,0,3,2]", "quad_perm:[2,3,0,1]", "row_half_mirror"), T[2])
        a(f"v_lshrrev_b32 v{T[2]}, 5, v0\ns_lshl_b32 s60, s3, 3\nv_lshl_add_u32 v{T[2]}, v{T[2]}, 2, s60")
        a("s_mov_b32 exec_lo, 1\ns_mov_b32 exec_hi, 1")
        a(f"ds_write_b32 v{T[2]}, v{s1} offset:{L_STATS}")
        a("s_mov_b64 exec, -1")
        a("s_waitcnt lgkmcnt(0)\ns_barrier")
        self.stamp(2)
        a("s_cmp_ge_u32 s3, 4\ns_cbranch_scc1 L_b2")
        a("s_cmp_eq_u32 s3, 3\ns_cbranch_scc1 L_p1_c")
        a(f"v_lshrrev_b32 v{T[2]}, 4, v0\ns_mul_i32 s58, s7, 160\nv_lshl_add_u32 v{T[2]}, v{T[2]}, 2, s58")
        for t in range(5):
            a(f"ds_read2_b32 v[{XA+2*t}:{XA+2*t+1}], v{T[2]} offset0:{(L_X-L_CTRL)//4*0 + 8*t} offset1:{8*t+4}") if False else None
        a(f"v_add_u32 v{T[2]}, {L_X}, v{T[2]}")
        for t in range(5):
            a(f"ds_read2_b32 v[{XA+2*t}:{XA+2*t+1}], v{T[2]} offset0:{8*t} offset1:{8*t+4}")
        a(f"v_and_b32 v{T[3]}, 7, v0\nv_lshlrev_b32 v{T[3]}, 3, v{T[3]}")
        a(f"ds_read_b32 v{T[0]}, v{T[3]} offset:{L_STATS}\nds_read_b32 v{T[1]}, v{T[3]} offset:{L_STATS+4}")
        a("s_waitcnt lgkmcnt(0)")
        for c in ("quad_perm:[1,0,3,2]", "quad_perm:[2,3,0,1]", "row_half_mirror"):
            a(f"v_add_f32_dpp v{T[0]}, v{T[0]}, v{T[0]} {c} {DPPALL}\nv_add_f32_dpp v{T[1]}, v{T[1]}, v{T[1]} {c} {DPPALL}")
        a("L_p1b:")
        for t in range(10):
            self.build_A(AB[t & 1], XA + t)
            if t > 0: self.mfma(ACC, AB[(t-1) & 1], WA + 4 * (t-1), t == 1)
        self.mfma(ACC, AB[1], WA + 36, False)
        self.ln_scalars(T[0], T[1])
        self.pair32(ACC, T[2], T[3])
        a(f"v_fma_f32 v{T[2]}, -v{T[0]}, v{CS0}, v{T[2]}\nv_fma_f32 v{T[3]}, -v{T[0]}, v{CS1}, v{T[3]}")
        a(f"v_mul_f32 v{T[2]}, v{T[2]}, v{T[1]}\nv_mul_f32 v{T[3]}, v{T[3]}, v{T[1]}")
        a(f"v_cvt_pk_bf16_f32 v{T[4]}, v{T[2]}, v{T[3]}")
        a("s_cmp_lg_u32 s54, 0\ns_cbranch_scc1 L_p1b_st")
        self.lds_wait_flag(L_CTRL)
        a("L_p1b_st:")
        self.sel_layer(58, QP, 52)
        a("s_lshl_b32 s60, s3, 7\ns_add_u32 s58, s58, s60")
        a("s_mov_b64 exec, s[64:65]")
        self.local_store(f"buffer_store_dword v{T[4]}, v{aP32}, s[48:51], s58 offen{{f}}")
        a("s_mov_b64 exec, -1")
        self.stamp(3)
        a("s_cmp_lg_u32 s54, 0\ns_cbranch_scc1 L_p2a")
        self.k_dma()
        self.lds_wait_flag(L_CTRL + 4, 55)
        self.k_to_regs()
        a("s_branch L_p2a")
        a("L_p1_c:")
        a(f"s_lshl_b32 s58, s56, 7\nv_add_u32 v{T[2]}, s58, v{aP32}\nds_read_b32 v{T[0]}, v{T[2]} offset:{L_X}\ns_waitcnt lgkmcnt(0)")
        a(f"v_lshlrev_b32 v{X0}, 16, v{T[0]}\nv_and_b32 v{X1}, 0xffff0000, v{T[0]}")
        a("L_p2a:")
        self.sel_layer(58, QP)
        self.poll([f"buffer_load_dwordx4 {q4(GB+4*u)}, v{aQG}, s[48:51], s58 offen offset:{64*u} sc1" for u in range(6)], range(GB, GB + 24))
        self.stamp(4)
        R = [XA, XA + 1, XA + 2, XA + 3]
        def lvl(t):
            for r in range(4):
                a(f"v_add_f32_dpp v{R[t]}, v{ACC+4*t+r}, v{ACC+4*t+r} row_half_mirror row_mask:0xf bank_mask:{hex(1<<r)}")
            a(f"v_add_f32_dpp v{R[t]}, v{R[t]}, v{R[t]} quad_perm:[1,0,3,2] {DPPALL}")
            a(f"v_add_f32_dpp v{R[t]}, v{R[t]}, v{R[t]} quad_perm:[2,3,0,1] {DPPALL}")
        for t in range(4):
            for u in range(6):
                self.mfma(ACC + 4 * t, KV + (t * 6 + u) * 4, GB + 4 * u, u == 0)
        for t in range(4): lvl(t)
        S = T[0]; M = T[1]
        a(f"v_cndmask_b32 v{R[0]}, v{R[0]}, v{R[1]}, s[66:67]\nv_cndmask_b32 v{R[2]}, v{R[2]}, v{R[3]}, s[66:67]\nv_cndmask_b32 v{S}, v{R[0]}, v{R[2]}, s[68:69]")
        a(f"v_mul_f32 v{S}, 0x3dd53b95, v{S}")
        a(f"v_mov_b32 v{M}, v{S}")
        self.allred64("v_max_f32", M, T[2])
        a(f"v_sub_f32 v{S}, v{S}, v{M}\nv_exp_f32 v{S}, v{S}")
        a(f"v_cvt_pk_bf16_f32 v{S}, v{S}, v{S}")
        a(f"ds_write_b16 v{ldsP}, v{S}")
        a("s_cmp_lg_u32 s54, 0\ns_cbranch_scc1 L_p2a_nl")
        self.late_loads()
        a("L_p2a_nl:")
        a("s_waitcnt lgkmcnt(0)")
        self.stamp(5)
        a("L_b2:")
        a("s_barrier")
        a("s_cmp_ge_u32 s3, 4\ns_cbranch_scc1 L_p2b")
        a(f"v_lshlrev_b32 v{S}, 16, v{S}")
        self.allred64("v_add_f32", S, T[2])
        a(f"s_lshl_b32 s58, s3, 3\nv_mov_b32 v{T[2]}, s58")
        a("s_mov_b64 exec, 1")
        a(f"ds_write_b32 v{T[2]}, v{M} offset:{L_ML}\nds_write_b32 v{T[2]}, v{S} offset:{L_ML+4}")
        a("s_mov_b64 exec, -1")
        a("s_branch L_b3")
        a("L_p2b:")
        self.stamp(5)
        a(f"ds_read_b128 {q4(GB)}, v{ldsP}\nds_read_b128 {q4(GB+4)}, v{ldsP} offset:16")
        a(f"v_mov_b32 v{T[2]}, {L_CTRL+4}\nds_read_b32 v{T[3]}, v{T[2]}")
        a("s_waitcnt lgkmcnt(0)")
        a(f"v_readfirstlane_b32 s55, v{T[3]}\ns_lshr_b32 s55, s55, 1")
        self.build_A(AB[0], GB)
        for G in range(8):
            if G + 1 < 8: self.build_A(AB[(G + 1) & 1], GB + G + 1)
            a(f"s_waitcnt vmcnt({8 + 21 - 3*G})")
            for th in range(3):
                self.mfma(ACC + 4 * th, AB[G & 1], KV + (G * 3 + th) * 4, G == 0)
        a(f"s_and_b32 s58, s3, 3\ns_mul_i32 s58, s58, 768\nv_add_u32 v{T[3]}, s58, v{lane4}")
        for th in range(3):
            self.l64(ACC + 4 * th, T[th])
        for th in range(3):
            a(f"ds_write_b32 v{T[3]}, v{T[th]} offset:{L_O + 256*th}")
        a("L_b3:")
        a("s_waitcnt lgkmcnt(0)\ns_barrier")
        self.stamp(6)
        a("s_cmp_lt_u32 s3, 4\ns_cbranch_scc1 L_k_b4")
        a("s_cmp_eq_u32 s3, 7\ns_cbranch_scc1 L_p3a")
        a(f"s_and_b32 s60, s3, 3\ns_lshl_b32 s58, s60, 8\nv_add_u32 v{T[3]}, s58, v{lane4}\nv_mov_b32 v{T[4]}, {L_ML}")
        a(f"ds_read_b128 {q4(GB)}, v{T[4]}\nds_read_b128 {q4(GB+4)}, v{T[4]} offset:16")
        for w in range(4):
            a(f"ds_read_b32 v{GB+8+w}, v{T[3]} offset:{L_O + 768*w}")
        a("s_waitcnt lgkmcnt(0)")
        M = GB + 12; Lr = GB + 13
        a(f"v_max3_f32 v{M}, v{GB}, v{GB+2}, v{GB+4}\nv_max_f32 v{M}, v{M}, v{GB+6}")
        for w in range(4): a(f"v_sub_f32 v{GB+2*w}, v{GB+2*w}, v{M}")
        for w in range(4): a(f"v_exp_f32 v{GB+2*w}, v{GB+2*w}")
        a(f"v_mul_f32 v{Lr}, v{GB}, v{GB+1}\nv_mul_f32 v{T[0]}, v{GB}, v{GB+8}")
        for w in range(1, 4):
            a(f"v_fmac_f32 v{Lr}, v{GB+2*w}, v{GB+2*w+1}\nv_fmac_f32 v{T[0]}, v{GB+2*w}, v{GB+8+w}")
        a(f"v_rcp_f32 v{T[1]}, v{Lr}\nv_mul_f32 v{T[0]}, v{T[0]}, v{T[1]}")
        a(f"v_mov_b32_dpp v{T[1]}, v{T[0]} row_ror:8 {DPPALL}\nv_cvt_pk_bf16_f32 v{T[0]}, v{T[0]}, v{T[1]}")
        self.sel_layer(58, OP, 52)
        a("s_lshl_b32 s60, s60, 7\ns_add_u32 s60, s60, s58")
        a("s_mov_b64 exec, s[64:65]")
        self.local_store(f"buffer_store_dword v{T[0]}, v{aP32}, s[48:51], s60 offen{{f}}")
        a("s_cmp_lg_u32 s3, 4\ns_cbranch_scc1 L_p2c_d")
        a("s_mov_b64 exec, 1")
        self.local_store(f"buffer_store_dwordx2 v[{M}:{Lr}], v{aP32}, s[48:51], s58 offen offset:384{{f}}")
        a("L_p2c_d:")
        a("s_mov_b64 exec, -1")
        self.stamp(7)
        a("L_p3a:")
        a("s_cmp_ge_u32 s5, 30\ns_cbranch_scc1 L_v_b5")
        self.sel_layer(58, OP)
        self.poll([f"buffer_load_dwordx4 {q4(GB)}, v{aQG}, s[48:51], s58 offen sc1",
                   f"buffer_load_dwordx2 v[{GB+4}:{GB+5}], v{aML}, s[48:51], s58 offen offset:384 sc1"], range(GB, GB + 6))
        self.stamp(8)
        M = T[0]; W = T[1]
        a(f"v_max_f32_dpp v{M}, v{GB+4}, v{GB+4} quad_perm:[1,0,3,2] {DPPALL}")
        a(f"v_max_f32_dpp v{M}, v{M}, v{M} quad_perm:[2,3,0,1] {DPPALL}\nv_max_f32_dpp v{M}, v{M}, v{M} row_half_mirror {DPPALL}")
        a(f"v_sub_f32 v{W}, v{GB+4}, v{M}\nv_exp_f32 v{W}, v{W}\nv_mul_f32 v{W}, v{W}, v{GB+5}")
        a(f"v_mov_b32_dpp v{T[2]}, v{W} row_newbcast:0 {DPPALL}\nv_mov_b32_dpp v{T[3]}, v{W} row_newbcast:1 {DPPALL}")
        a(f"v_cvt_pk_bf16_f32 v{T[2]}, v{T[2]}, v{T[3]}")
        self.build_A(AB[0], T[2])
        self.mfma(ACC, AB[0], GB, True)
        self.bf16r(W, W)
        for c in ("quad_perm:[1,0,3,2]", "quad_perm:[2,3,0,1]", "row_half_mirror"):
            a(f"v_add_f32_dpp v{W}, v{W}, v{W} {c} {DPPALL}")
        a(f"v_rcp_f32 v{W}, v{W}")
        self.pair32(ACC, T[2], T[3])
        a(f"v_mul_f32 v{T[2]}, v{T[2]}, v{W}\nv_mul_f32 v{T[3]}, v{T[3]}, v{W}\nv_cvt_pk_bf16_f32 v{T[4]}, v{T[2]}, v{T[3]}")
        self.gemv_bcast(ACC + 4, T[4], WA, 8)
        a(f"s_and_b32 s58, s3, 3\ns_lshl_b32 s58, s58, 8\nv_add_u32 v{T[3]}, s58, v{lane4}")
        self.l64(ACC + 4, T[0])
        a(f"ds_write_b32 v{T[3]}, v{T[0]} offset:{L_YR}")
        a("s_waitcnt lgkmcnt(0)\ns_barrier")
        a("s_cmp_lg_u32 s3, 7\ns_cbranch_scc1 L_v_b5")
        for w in range(4): a(f"ds_read_b32 v{GB+w}, v{lane4} offset:{L_YR + 256*w}")
        self.sel_layer(58, YO, 52)
        a("s_waitcnt lgkmcnt(0)")
        a(f"v_add_f32 v{GB}, v{GB}, v{GB+1}\nv_add_f32 v{GB+2}, v{GB+2}, v{GB+3}\nv_add_f32 v{T[0]}, v{GB}, v{GB+2}")
        a(f"v_mov_b32_dpp v{T[1]}, v{T[0]} row_ror:8 {DPPALL}\nv_cvt_pk_bf16_f32 v{T[0]}, v{T[0]}, v{T[1]}")
        a("s_mov_b64 exec, s[64:65]")
        a(f"buffer_store_dword v{T[0]}, v{aP32}, s[48:51], s58 offen sc1")
        a("s_mov_b64 exec, -1")
        self.stamp(9)
        a("L_v_b5:")
        a("s_cmp_lt_u32 s5, 22\ns_cbranch_scc1 L_next")
        a("s_barrier")
        a("s_branch L_next")
        a("L_k_b4:")
        a("s_cmp_ge_u32 s5, 30\ns_cbranch_scc1 L_k_nob4")
        a("s_barrier")
        a("L_k_nob4:")
        a("s_cmp_lg_u32 s3, 3\ns_cbranch_scc1 L_p5a")
        a("s_cmp_ge_u32 s5, 30\ns_cbranch_scc1 L_v_b5")
        a("s_cmp_lg_u32 s54, 0\ns_cbranch_scc1 L_p4_nocs")
        a("s_waitcnt vmcnt(0)")
        for t in range(8): self.mfma(ACC, ONES, WB + 4 * t, t == 0)
        self.l64(ACC, CS0)
        self.local_store(f"buffer_store_dword v{CS0}, v{aST}, s[48:51], s52 offen offset:{HPC}{{f}}")
        a("L_p4_nocs:")
        self.sel_layer(58, YO)
        a(f"s_mul_i32 s60, s56, {BS}\ns_add_u32 s58, s58, s60\ns_add_u32 s60, s58, {10*BS}\ns_add_u32 s61, s58, {20*BS}")
        self.poll([f"buffer_load_dwordx4 {q4(GB+4*n)}, v{aROW}, s[48:51], s{(58,60,61)[n]} offen sc1" for n in range(3)], range(GB, GB + 12))
        self.stamp(8)
        for n in range(3): self.mfma(ACC, ONES, GB + 4 * n, n == 0)
        self.resid_add()
        self.gemv_bcast(ACC + 4, T[4], WB, 8)
        s1, s2 = T[0], T[1]
        a(f"v_add_f32 v{s1}, v{X0}, v{X1}\nv_mul_f32 v{s2}, v{X0}, v{X0}\nv_fmac_f32 v{s2}, v{X1}, v{X1}")
        self.red2_to_halves(s1, s2, ("quad_perm:[1,0,3,2]", "quad_perm:[2,3,0,1]", "row_half_mirror"), T[2])
        self.l64(ACC + 4, T[3])
        self.sel_layer(58, HPR, 52)
        self.sel_layer(60, HPS, 52)
        a(f"v_lshrrev_b32 v{T[2]}, 3, v0\nv_and_b32 v{T[2]}, 4, v{T[2]}")
        ls, ld = self.L("sl"), self.L("sd")
        a(f"s_cmp_eq_u32 s55, 0\ns_cbranch_scc1 {ls}")
        for f in ("", " sc1"):
            a(f"buffer_store_dword v{T[3]}, v{aST}, s[48:51], s58 offen{f}")
            a("s_mov_b32 exec_lo, 1\ns_mov_b32 exec_hi, 1")
            a(f"buffer_store_dword v{s1}, v{T[2]}, s[48:51], s60 offen{f}")
            a("s_mov_b64 exec, s[64:65]")
            a(f"buffer_store_dword v{T[4]}, v{aP32}, s[48:51], s52 offen offset:{X1O}{f}")
            if f == "": a(f"s_branch {ld}\n{ls}:")
        a(f"{ld}:")
        a("s_mov_b64 exec, -1")
        self.stamp(9)
        a("s_branch L_v_b5")
        a("L_p5a:")
        a("s_cmp_lt_u32 s5, 22\ns_cbranch_scc1 L_next")
        a(f"s_mul_i32 s62, s3, {10*BS}\ns_add_u32 s62, s62, s53")
        def hp_gather(off_s, with_stats):
            for i in range(8, 14): a(f"v_mov_b32 v{GB+i}, 0")
            loads = [f"buffer_load_dwordx4 {q4(GB)}, v{aML}, s[48:51], s58 offen sc1",
                     f"buffer_load_dwordx4 {q4(GB+4)}, v{aML}, s[48:51], s60 offen sc1",
                     "s_mov_b32 exec_hi, 0",
                     f"buffer_load_dwordx4 {q4(GB+8)}, v{aML}, s[48:51], s61 offen sc1"]
            if with_stats:
                loads += ["s_mov_b32 exec_lo, 0x03ff03ff\ns_mov_b32 exec_hi, 0x03ff03ff",
                          f"buffer_load_dwordx2 v[{GB+12}:{GB+13}], v{aST}, s[48:51], s63 offen sc1"]
            loads += ["s_mov_b64 exec, -1"]
            self.poll(loads, range(GB, GB + (14 if with_stats else 12)))
        def hp_reduce(dst):
            for i in range(4): a(f"v_add_f32 v{GB+i}, v{GB+i}, v{GB+4+i}")
            for i in range(4): a(f"v_add_f32 v{GB+i}, v{GB+i}, v{GB+8+i}")
            a(f"v_permlane32_swap_b32 v{GB}, v{GB+2}\nv_permlane32_swap_b32 v{GB+1}, v{GB+3}")
            a(f"v_add_f32 v{GB}, v{GB}, v{GB+2}\nv_add_f32 v{GB+1}, v{GB+1}, v{GB+3}")
            a(f"v_permlane16_swap_b32 v{GB}, v{GB+1}\nv_add_f32 v{dst}, v{GB}, v{GB+1}")
        a("s_cmp_lg_u32 s54, 0\ns_cbranch_scc1 L_p5_nocs")
        a(f"s_add_u32 s58, s62, {HPC}\ns_add_u32 s60, s58, {4*BS}\ns_add_u32 s61, s58, {8*BS}")
        hp_gather(58, False)
        hp_reduce(CSW1)
        a(f"v_lshlrev_b32 v{B1V}, 16, v{B1V}")
        a("L_p5_nocs:")
        self.sel_layer(58, HPR, 62)
        self.sel_layer(63, HPS, 62)
        a(f"s_add_u32 s60, s58, {4*BS}\ns_add_u32 s61, s58, {8*BS}")
        hp_gather(58, True)
        self.stamp(8)
        s1, s2 = GB + 12, GB + 13
        for c in ("quad_perm:[1,0,3,2]", "quad_perm:[2,3,0,1]", "row_half_mirror", "row_mirror"):
            a(f"v_add_f32_dpp v{s1}, v{s1}, v{s1} {c} {DPPALL}\nv_add_f32_dpp v{s2}, v{s2}, v{s2} {c} {DPPALL}")
        H = T[0]
        hp_reduce(H)
        self.ln_scalars(s1, s2)
        a(f"v_fma_f32 v{H}, -v{s1}, v{CSW1}, v{H}\nv_mul_f32 v{H}, v{H}, v{s2}")
        self.bf16r(H, H)
        a(f"v_add_f32 v{H}, v{H}, v{B1V}")
        self.bf16r(H, H)
        E = T[1]; N = T[2]; Dn = T[3]
        a(f"v_mul_f32 v{E}, 0x3fb8aa3b, v{H}\nv_exp_f32 v{E}, -|v{E}|")
        a(f"v_cmp_gt_f32 vcc, 0, v{H}")
        a(f"v_fma_f32 v{N}, v{E}, 2.0, 1.0\nv_add_f32 v{Dn}, 2.0, v{E}\nv_mul_f32 v{Dn}, v{Dn}, v{E}")
        a(f"v_mul_f32 v{E}, v{E}, v{E}\nv_add_f32 v{E}, v{E}, v{E}")
        a(f"v_cndmask_b32 v{N}, v{N}, v{Dn}, vcc\nv_cndmask_b32 v{E}, v{E}, 2.0, vcc") if False else None
        a(f"v_cndmask_b32 v{N}, v{N}, v{Dn}, vcc\nv_mov_b32 v{Dn}, 2.0\nv_cndmask_b32 v{E}, v{E}, v{Dn}, vcc")
        a(f"v_add_f32 v{Dn}, v{N}, v{E}\nv_rcp_f32 v{Dn}, v{Dn}\nv_mul_f32 v{N}, v{N}, v{H}\nv_mul_f32 v{N}, v{N}, v{Dn}")
        a(f"v_mov_b32_dpp v{E}, v{N} row_ror:8 {DPPALL}\nv_cvt_pk_bf16_f32 v{T[4]}, v{N}, v{E}")
        self.gemv_bcast(ACC, T[4], WB, 8)
        a(f"s_lshl_b32 s58, s3, 8\nv_add_u32 v{T[3]}, s58, v{lane4}")
        self.l64(ACC, T[0])
        a(f"ds_write_b32 v{T[3]}, v{T[0]} offset:{L_ZR}")
        a("s_waitcnt lgkmcnt(0)\ns_barrier")
        a("s_cmp_lg_u32 s3, 0\ns_cbranch_scc1 L_next")
        for w in range(3): a(f"ds_read_b32 v{GB+w}, v{lane4} offset:{L_ZR + 256*w}")
        self.sel_layer(58, ZO, 52)
        a("s_waitcnt lgkmcnt(0)")
        a(f"v_add_f32 v{GB}, v{GB}, v{GB+1}\nv_add_f32 v{T[0]}, v{GB}, v{GB+2}")
        a(f"v_mov_b32_dpp v{T[1]}, v{T[0]} row_ror:8 {DPPALL}\nv_cvt_pk_bf16_f32 v{T[0]}, v{T[0]}, v{T[1]}")
        a("s_mov_b64 exec, s[64:65]")
        a(f"buffer_store_dword v{T[0]}, v{aP32}, s[48:51], s58 offen sc1")
        a("s_mov_b64 exec, -1")
        self.stamp(9)
        a("L_next:")
        a("s_cmp_lg_u32 s54, 0\ns_cbranch_scc1 L_final")
        self.dump_stamps()
        a("s_mov_b32 s54, 1\ns_branch L_loop")
        a("L_final:")
        a("s_cmp_lg_u32 s3, 3\ns_cbranch_scc1 L_fin2\ns_cmp_lg_u32 s4, 0\ns_cbranch_scc1 L_fin2\ns_cmp_ge_u32 s5, 10\ns_cbranch_scc1 L_fin2")
        a(f"s_mul_i32 s58, s5, {BS}\ns_add_u32 s58, s58, {22*BS}")
        self.poll([f"buffer_load_dwordx4 {q4(GB)}, v{aROW}, s[48:51], s58 offen offset:{ZO[1]} sc1"], range(GB, GB + 4))
        self.stamp(10)
        self.mfma(ACC, ONES, GB, True)
        self.resid_add()
        a("s_lshl_b32 s58, s5, 7")
        a("s_mov_b64 exec, s[64:65]")
        a(f"buffer_store_dword v{T[4]}, v{aP32}, s[40:43], s58 offen")
        a("s_mov_b64 exec, -1")
        self.stamp(11)
        a("L_fin2:")
        self.dump_stamps(True)
        a("L_end:\ns_endpgm")
        a('.section .rodata,"a"\n.p2align 6')
        a(f".amdhsa_kernel {KNAME}")
        a(".amdhsa_next_free_vgpr 256\n.amdhsa_next_free_sgpr 102\n.amdhsa_accum_offset 256\n.amdhsa_group_segment_fixed_size 0\n.amdhsa_kernarg_size 96")
        a(".amdhsa_user_sgpr_count 2\n.amdhsa_user_sgpr_kernarg_segment_ptr 1\n.amdhsa_system_sgpr_workgroup_id_x 1\n.end_amdhsa_kernel")
        return a.render()

    def resid_add(self):
        a = self.a
        self.pair32(ACC, T[2], T[3])
        a(f"v_cvt_pk_bf16_f32 v{T[4]}, v{T[2]}, v{T[3]}")
        a(f"v_lshlrev_b32 v{T[2]}, 16, v{T[4]}\nv_and_b32 v{T[3]}, 0xffff0000, v{T[4]}")
        a(f"v_add_f32 v{T[2]}, v{T[2]}, v{X0}\nv_add_f32 v{T[3]}, v{T[3]}, v{X1}")
        a(f"v_cvt_pk_bf16_f32 v{T[4]}, v{T[2]}, v{T[3]}")
        a(f"v_lshlrev_b32 v{X0}, 16, v{T[4]}\nv_and_b32 v{X1}, 0xffff0000, v{T[4]}")

    def consts(self):
        a = self.a
        t0, t1, t2 = T[0], T[1], T[2]
        a(f"v_and_b32 v{t0}, 1, v0\nv_mul_u32_u24 v{t0}, 0x202, v{t0}\nv_add_u32 v{t0}, 0x100, v{t0}")
        a(f"v_bfe_u32 v{t1}, v0, 1, 1\nv_lshlrev_b32 v{t1}, 4, v{t1}\nv_lshlrev_b32 v{t0}, v{t1}, v{t0}")
        a(f"v_mov_b32 v{t2}, 0x0c0c0000\nv_lshrrev_b32 v{t2}, v{t1}, v{t2}\nv_and_b32 v{t2}, 0x0c0c0c0c, v{t2}")
        a(f"v_or_b32 v{t0}, v{t0}, v{t2}")
        a(f"v_bfe_u32 v{t1}, v0, 2, 2\nv_mov_b32 v{t2}, 0x0c0c0c0c")
        for d in range(4):
            a(f"v_cmp_eq_u32 vcc, {d}, v{t1}\nv_cndmask_b32 v{SEL+d}, v{t2}, v{t0}, vcc")
        a(f"v_mov_b32 v{t0}, 0x3f803f80")
        self.build_A(ONES, t0)
        a(f"v_lshrrev_b32 v{t0}, 3, v0\nv_and_b32 v{t1}, 7, v0\ns_mov_b32 s58, {32*BS}\nv_mul_lo_u32 v{aROW}, s58, v{t0}\nv_lshl_add_u32 v{aROW}, v{t1}, 4, v{aROW}")

    def kwave_addrs(self):
        a = self.a
        t0, t1, t2 = T[0], T[1], T[2]
        a(f"v_and_b32 v{t0}, 7, v0\nv_mul_u32_u24 v{aQG}, {BS}, v{t0}\nv_lshrrev_b32 v{t1}, 4, v0\nv_lshl_add_u32 v{aQG}, v{t1}, 4, v{aQG}")
        a(f"s_mul_i32 s58, s6, {8*BS}\ns_add_u32 s58, s58, s53\nv_add_u32 v{aQG}, s58, v{aQG}")
        a(f"v_and_b32 v{t0}, 3, v0\nv_lshlrev_b32 v{t0}, 4, v{t0}\nv_lshl_add_u32 v{t0}, v{t1}, 2, v{t0}\nv_bfe_u32 v{t2}, v0, 2, 2\nv_add_u32 v{t0}, v{t0}, v{t2}")
        a(f"v_bfe_u32 v{t2}, v{t0}, 1, 2\nv_lshlrev_b32 v{ldsP}, 5, v{t2}\nv_lshrrev_b32 v{t2}, 3, v{t0}\nv_lshl_add_u32 v{ldsP}, v{t2}, 2, v{ldsP}")
        a(f"v_and_b32 v{t2}, 1, v{t0}\nv_lshl_add_u32 v{ldsP}, v{t2}, 1, v{ldsP}")
        a(f"s_lshl_b32 s58, s3, 7\ns_add_u32 s58, s58, {L_P}\nv_add_u32 v{ldsP}, s58, v{ldsP}")
        a(f"v_and_b32 v{t0}, 15, v0\nv_mul_u32_u24 v{aML}, {BS}, v{t1}\nv_lshl_add_u32 v{aML}, v{t0}, 4, v{aML}")
        a(f"v_mul_u32_u24 v{aST}, {BS}, v{t0}\nv_lshlrev_b32 v{t2}, 4, v{t0}\nv_lshl_add_u32 v{t2}, v{t1}, 2, v{t2}")
        a(f"s_cmp_eq_u32 s3, 3\ns_cselect_b64 vcc, -1, 0\nv_cndmask_b32 v{aST}, v{aST}, v{t2}, vcc")

    def late_loads(self):
        a = self.a
        t0, t1, t2 = T[2], T[3], T[4]
        l3, ld = self.L("ll3"), self.L("lld")
        a(f"v_lshrrev_b32 v{t0}, 3, v0\nv_and_b32 v{t1}, 7, v0")
        a(f"s_cmp_eq_u32 s3, 3\ns_cbranch_scc1 {l3}")
        a(f"s_cmp_lt_u32 s5, 22\ns_cbranch_scc1 {ld}")
        a(f"v_mul_u32_u24 v{t0}, 1280, v{t0}\nv_lshl_add_u32 v{t0}, v{t1}, 4, v{t0}")
        a("s_mul_i32 s58, s4, 192\ns_lshl_b32 s60, s3, 6\ns_add_u32 s61, s58, s60\ns_mul_i32 s58, s61, 1280\ns_sub_u32 s60, s5, 22\ns_lshl_b32 s60, s60, 7\ns_add_u32 s58, s58, s60")
        for t in range(8):
            a(f"buffer_load_dwordx4 {q4(WB+4*t)}, v{t0}, s[36:39], s58 offen nt")
            if t < 7: a(f"s_add_u32 s58, s58, {8*1280}")
        a(f"v_bfe_u32 v{t0}, v0, 3, 1\nv_lshl_add_u32 v{t0}, v{t0}, 1, v{aP32}\ns_lshl_b32 s61, s61, 1")
        a(f"buffer_load_ushort v{B1V}, v{t0}, s[32:35], s61 offen")
        a(f"s_branch {ld}\n{l3}:")
        a(f"s_cmp_ge_u32 s5, 30\ns_cbranch_scc1 {ld}")
        a(f"v_mul_u32_u24 v{t0}, 3072, v{t0}\nv_lshl_add_u32 v{t0}, v{t1}, 4, v{t0}")
        a(f"s_mul_i32 s58, s56, {64*3072}\ns_mul_i32 s60, s4, 384\ns_add_u32 s58, s58, s60\ns_lshl_b32 s60, s57, 7\ns_add_u32 s58, s58, s60")
        for t in range(8):
            a(f"buffer_load_dwordx4 {q4(WB+4*t)}, v{t0}, s[28:31], s58 offen nt")
            if t < 7: a(f"s_add_u32 s58, s58, {8*3072}")
        a(f"{ld}:")

HEADER = open("interleave_layers__sliding_block_cached__dense_activation_mish__decode.s.ref").read().split("; Override")[0] if __import__('os').path.exists("interleave_layers__sliding_block_cached__dense_activation_mish__decode.s.ref") else ""

if __name__ == "__main__":
    prof = {"prof": 1, "prof2": 2}.get(sys.argv[2], 0) if len(sys.argv) > 2 else 0
    txt = HEADER + Gen(prof).gen()
    open(sys.argv[1], "w").write(txt)
```

```python
import sys
sys.path.insert(0, "gen")
from asmlib import Asm

KNAME = "interleave_layers__sliding_block_cached__dense_activation_mish__decode_kernel"
BS = 4736
YO = [0, 128]; ZO = [256, 384]
QP1 = 512; OP = [896, 1408]
HPR = [1920, 2560]; HPC = 2176; HPS = [2432, 2816]
X1O = 2944
QP0T = 3072
GEN_OFF = 256 * BS
FL1 = GEN_OFF + 4096; FL2 = GEN_OFF + 8192
WS_USED = GEN_OFF + 12288
PROF_OFF = 2 << 20
L_K = 12288
L_CTRL = 0
L_STATS = L_CTRL + 64
L_ML = L_CTRL + 128
L_P = L_CTRL + 256
L_X = L_CTRL + 768
L_O = L_CTRL + 2048
L_YR = L_O + 3072
L_ZR = L_YR + 1024
L_Q = L_ZR + 1024
LDS_BYTES = L_K + 98304
assert L_Q + 3072 <= L_K
POLL_LIMIT = 200000

ONES = 4; SEL = 8; AB = [12, 16]; ACC = 20; GB = 36; XA = 60
aQG = 70; aP32 = 71; aROW = 72; aML = 73; aST = 74; ldsP = 75; lane4 = 76
CS0 = 77; CS1 = 78; X0 = 79; X1 = 80; B1V = 81; CSW1 = 82
T = [83, 84, 85, 86, 87, 1, 2, 3]
KV = 88; WA = 184; WB = 224

def q4(r): return f"v[{r}:{r+3}]"
DPPALL = "row_mask:0xf bank_mask:0xf"

class Gen:
    def __init__(self, prof=False, knobs=()):
        self.knobs = set(knobs)
        self.WO = 0; self.WOG = 4; self.LL = 1; self.NB = 8; self.QSLEEP0 = 64; self.QSLEEP1 = 24; self.B0N = -1
        for k in knobs:
            if '=' in k: setattr(self, k.split('=')[0], int(k.split('=')[1]))
        self.a = Asm(); self.prof = prof; self.uid = 0; self.nstamp = 0
    def L(self, base):
        self.uid += 1
        return f"L_{base}_{self.uid}"
    def stamp(self, i):
        if self.prof: self.a(f"s_memrealtime s[{76+2*i}:{77+2*i}]")
    def dump_stamps(self, final=False):
        if not self.prof: return
        a = self.a
        if self.prof == 2:
            a("s_waitcnt lgkmcnt(0)")
            sel = [1, 2, 4, 5, 6, 8, 9, 11] if final else [0, 1, 2, 4, 5, 6, 8, 9]
            if not final: a(f"v_mov_b32 v{CSW1}, 0\ns_mov_b32 s75, s76") if False else None
            for n, i in enumerate(sel):
                a(f"s_sub_u32 s58, s{76+2*i}, s76")
                a(f"v_writelane_b32 v{XA+9}, s58, {n + (8 if final else 0)}")
            if final:
                le = self.L("nd")
                a(f"s_cmp_lg_u32 s2, 0\ns_cbranch_scc1 {le}\ns_cmp_lg_u32 s3, 3\ns_cbranch_scc1 {le}")
                a("s_mov_b64 exec, 0xffff")
                a(f"buffer_store_dword v{XA+9}, v{lane4}, s[44:47], 0 offen sc1")
                a("s_mov_b64 exec, -1")
                a(f"{le}:")
            return
        a("s_waitcnt lgkmcnt(0)")
        a(f"v_mov_b32 v{T[0]}, 0")
        for i in range(13):
            a(f"v_writelane_b32 v{T[0]}, s{76+2*i}, {i}")
        a("s_lshl_b32 s58, s2, 3\ns_add_u32 s58, s58, s3\ns_lshl_b32 s58, s58, 1\ns_add_u32 s58, s58, s54\ns_lshl_b32 s58, s58, 6")
        a(f"s_add_u32 s58, s58, {PROF_OFF}")
        a("s_mov_b64 exec, 0xffff")
        a(f"buffer_store_dword v{T[0]}, v{lane4}, s[48:51], s58 offen")
        a("s_mov_b64 exec, -1")
        for i in range(13):
            a(f"s_mov_b64 s[{76+2*i}:{77+2*i}], 0")
    def local_store(self, instr_fmt):
        a = self.a
        ls, ld = self.L("sl"), self.L("sd")
        a(f"s_cmp_eq_u32 s55, 0\ns_cbranch_scc1 {ls}")
        a(instr_fmt.format(f=""))
        a(f"s_branch {ld}\n{ls}:")
        a(instr_fmt.format(f=" sc1"))
        a(f"{ld}:")
    def poll(self, loads, regs, pre=None):
        a = self.a
        lp, ld = self.L("poll"), self.L("got")
        a("s_mov_b32 s70, 0")
        a(f"{lp}:")
        for x in loads: a(x)
        a("s_waitcnt vmcnt(0)")
        t = T[7]
        rs = list(regs)
        if len(rs) == 1:
            a(f"v_cmp_eq_u32 vcc, -1, v{rs[0]}")
        else:
            if len(rs) == 2:
                a(f"v_max_u32 v{t}, v{rs[0]}, v{rs[1]}"); rs = []
            else:
                a(f"v_max3_u32 v{t}, v{rs[0]}, v{rs[1]}, v{rs[2]}"); rs = rs[3:]
            while rs:
                if len(rs) >= 2:
                    a(f"v_max3_u32 v{t}, v{t}, v{rs[0]}, v{rs[1]}"); rs = rs[2:]
                else:
                    a(f"v_max_u32 v{t}, v{t}, v{rs[0]}"); rs = rs[1:]
            a(f"v_cmp_eq_u32 vcc, -1, v{t}")
        a(f"s_cbranch_vccz {ld}")
        a(f"s_add_u32 s70, s70, 1\ns_cmp_lt_u32 s70, {POLL_LIMIT}\ns_cbranch_scc1 {lp}")
        a(f"{ld}:")
    def build_A(self, dst, src):
        for d in range(4):
            self.a(f"v_perm_b32 v{dst+d}, v{src}, v{src}, v{SEL+d}")
    def mfma(self, D, A, B, first):
        self.a(f"v_mfma_f32_16x16x32_bf16 {q4(D)}, {q4(A)}, {q4(B)}, {'0' if first else q4(D)}")
    def pair32(self, D, t0, t1):
        self.a(f"v_add_f32_dpp v{t0}, v{D+1}, v{D} row_ror:8 {DPPALL}")
        self.a(f"v_add_f32_dpp v{t1}, v{D+3}, v{D+2} row_ror:8 {DPPALL}")
    def l64(self, D, t):
        self.a(f"v_add_f32_dpp v{t}, v{D+1}, v{D} row_ror:8 row_mask:0xf bank_mask:0x3")
        self.a(f"v_add_f32_dpp v{t}, v{D+2}, v{D+3} row_ror:8 row_mask:0xf bank_mask:0xc")
    def gemv_bcast(self, D, pair, W, n):
        a = self.a
        tb = [T[5], T[6]]
        a(f"v_mov_b32_dpp v{tb[0]}, v{pair} row_newbcast:0 {DPPALL}")
        for t in range(n):
            if t + 1 < n:
                a(f"v_mov_b32_dpp v{tb[(t+1)&1]}, v{pair} row_newbcast:{t+1} {DPPALL}")
            self.build_A(AB[t & 1], tb[t & 1])
            if t > 0: self.mfma(D, AB[(t-1) & 1], W + 4 * (t-1), t == 1)
        self.mfma(D, AB[(n-1) & 1], W + 4 * (n-1), n == 1)
    def bf16r(self, dst, src):
        self.a(f"v_cvt_pk_bf16_f32 v{dst}, v{src}, v{src}\nv_lshlrev_b32 v{dst}, 16, v{dst}")
    def ln_scalars(self, s1, s2):
        a = self.a
        t = T[5]
        inv = "0x3acccccd"
        a(f"v_mul_f32 v{s1}, {inv}, v{s1}")
        a(f"v_mul_f32 v{s2}, {inv}, v{s2}")
        a(f"v_fma_f32 v{s2}, -v{s1}, v{s1}, v{s2}")
        a(f"v_max_f32 v{s2}, 0, v{s2}")
        a(f"v_cvt_pk_bf16_f32 v{t}, v{s1}, v{s2}")
        a(f"v_lshlrev_b32 v{s1}, 16, v{t}")
        a(f"v_and_b32 v{s2}, 0xffff0000, v{t}")
        a(f"v_add_f32 v{s2}, 0x3727c5ac, v{s2}")
        self.bf16r(s2, s2)
        a(f"v_sqrt_f32 v{s2}, v{s2}")
        self.bf16r(s2, s2)
        a(f"v_rcp_f32 v{s2}, v{s2}")
    def red2_to_halves(self, s1, s2, steps, tmp):
        a = self.a
        a(f"v_permlane32_swap_b32 v{s1}, v{s2}")
        a(f"v_add_f32 v{s1}, v{s1}, v{s2}")
        a(f"v_mov_b32 v{tmp}, v{s1}")
        a(f"v_permlane16_swap_b32 v{s1}, v{tmp}")
        a(f"v_add_f32 v{s1}, v{s1}, v{tmp}")
        for c in steps:
            a(f"v_add_f32_dpp v{s1}, v{s1}, v{s1} {c} {DPPALL}")
    def allred64(self, op, v, tmp):
        a = self.a
        for c in ("quad_perm:[1,0,3,2]", "quad_perm:[2,3,0,1]", "row_half_mirror", "row_mirror"):
            a(f"{op}_dpp v{v}, v{v}, v{v} {c} {DPPALL}")
        a(f"v_mov_b32 v{tmp}, v{v}\nv_permlane16_swap_b32 v{v}, v{tmp}\n{op} v{v}, v{v}, v{tmp}")
        a(f"v_mov_b32 v{tmp}, v{v}\nv_permlane32_swap_b32 v{v}, v{tmp}\n{op} v{v}, v{v}, v{tmp}")
    def sel_layer(self, dst, arr, add=None):
        a = self.a
        a(f"s_mul_i32 s{dst}, s54, {arr[1]-arr[0]}")
        if arr[0]: a(f"s_add_u32 s{dst}, s{dst}, {arr[0]}")
        if add is not None: a(f"s_add_u32 s{dst}, s{dst}, s{add}")
    def lds_wait_flag(self, off, dst_s=None):
        a = self.a
        lp, ld = self.L("lw"), self.L("lg")
        t = T[5]; t2 = T[6]
        a(f"v_mov_b32 v{t2}, {off}\ns_mov_b32 s70, 0")
        a(f"{lp}:\nds_read_b32 v{t}, v{t2}\ns_waitcnt lgkmcnt(0)\nv_readfirstlane_b32 s58, v{t}")
        a(f"s_cmp_lg_u32 s58, 0\ns_cbranch_scc1 {ld}")
        a(f"s_sleep 1\ns_add_u32 s70, s70, 1\ns_cmp_lt_u32 s70, {4*POLL_LIMIT}\ns_cbranch_scc1 {lp}")
        a(f"{ld}:")
        if dst_s is not None: a(f"s_lshr_b32 s{dst_s}, s58, 1")
    def k_dma(self):
        a = self.a
        t = T[0]; t2 = T[1]
        a(f"v_lshrrev_b32 v{t}, 3, v0\nv_and_b32 v{t2}, 6, v{t}\nv_xor_b32 v{t2}, v{t2}, v0\nv_and_b32 v{t2}, 7, v{t2}")
        a(f"v_mul_u32_u24 v{t}, 384, v{t}\nv_lshl_add_u32 v{t}, v{t2}, 4, v{t}")
        a("s_and_b32 s60, s3, 3\ns_mul_i32 s60, s60, 24576")
        if self.B0N < 0: a("s_barrier")
        for n in range(24):
            rg, th = divmod(n, 3)
            a(f"s_add_u32 s58, s59, {rg*8*384 + th*128}")
            a(f"s_add_u32 m0, s60, {L_K + n*1024}")
            a(f"buffer_load_dwordx4 v{t}, s[12:15], s58 offen nt lds")
            if n == self.B0N: a("s_barrier")
    def k_to_regs(self, nv=0):
        a = self.a
        t = T[0]; t2 = T[1]; t3 = T[2]
        a(f"s_waitcnt vmcnt({nv})")
        a(f"v_and_b32 v{t}, 7, v0\nv_lshrrev_b32 v{t2}, 4, v0\nv_and_b32 v{t3}, 6, v0\nv_xor_b32 v{t2}, v{t2}, v{t3}")
        a(f"v_lshlrev_b32 v{t}, 7, v{t}\nv_bfe_u32 v{t3}, v0, 3, 1\nv_mul_u32_u24 v{t3}, 3072, v{t3}\nv_add_u32 v{t}, v{t}, v{t3}")
        a(f"s_mul_i32 s60, s3, 24576\nv_add_u32 v{t}, s60, v{t}")
        a(f"v_lshl_add_u32 v{t3}, v{t2}, 4, v{t}")
        a(f"v_xor_b32 v{t2}, 4, v{t2}\nv_lshl_add_u32 v{t2}, v{t2}, 4, v{t}")
        for tile in range(4):
            for u in range(6):
                off = L_K + (2 * tile * 3 + (u >> 1)) * 1024
                a(f"ds_read_b128 {q4(KV + (tile*6+u)*4)}, v{t2 if (u & 1) else t3} offset:{off}")
            if tile in (0, 2): a("s_waitcnt lgkmcnt(0)")
        a("s_waitcnt lgkmcnt(0)")

    def gen(self):
        a = self.a
        a(f"; @launch grid=(256,1,1) block=(512,1,1) lds={LDS_BYTES}")
        a('.amdgcn_target "amdgcn-amd-amdhsa--gfx950"\n.text')
        a(f".globl {KNAME}\n.p2align 8\n.type {KNAME},@function")
        a(f"{KNAME}:")
        a("s_cmp_ge_u32 s2, 256\ns_cbranch_scc1 L_end")
        if self.prof:
            for i in range(13): a(f"s_mov_b64 s[{76+2*i}:{77+2*i}], 0")
        self.stamp(0)
        ptr = {8: 0, 12: 8, 16: 16, 20: 24, 24: 32, 28: 48, 32: 56, 36: 64, 40: 72, 44: 80, 48: 88}
        size = {8: 1280, 12: 100663296, 16: 100663296, 20: 7864320, 24: 7864320, 28: 1966080, 32: 3072, 36: 1966080, 40: 1280, 44: 256,
                48: (PROF_OFF + 256 * 8 * 2 * 64) if self.prof else WS_USED}
        for s, off in ptr.items():
            a(f"s_load_dwordx2 s[{s}:{s+1}], s[0:1], {off}")
        a("v_lshrrev_b32 v1, 6, v0\nv_and_b32 v0, 63, v0\nv_readfirstlane_b32 s3, v1")
        for s in ptr:
            a(f"s_mov_b32 s{s+2}, {size[s]}\ns_mov_b32 s{s+3}, 0x20000")
        a("s_and_b32 s4, s2, 7\ns_lshr_b32 s5, s2, 3\ns_lshr_b32 s6, s5, 3\ns_and_b32 s7, s5, 7")
        a(f"s_mul_i32 s53, s4, {32*BS}\ns_mul_i32 s52, s5, {BS}\ns_add_u32 s52, s52, s53")
        a("s_mov_b32 s54, 0\ns_mov_b32 s55, 0")
        a("s_getreg_b32 s75, hwreg(HW_REG_XCC_ID)\ns_and_b32 s75, s75, 15")
        a("s_cmp_ge_u32 s5, 10\ns_cselect_b32 s57, 1, 0\ns_cmp_ge_u32 s5, 20\ns_cselect_b32 s57, 2, s57\ns_cmp_ge_u32 s5, 30\ns_cselect_b32 s57, 3, s57")
        a("s_mul_i32 s58, s57, 10\ns_sub_u32 s56, s5, s58")
        a("s_mov_b32 s64, 0x00ff00ff\ns_mov_b32 s65, 0x00ff00ff")
        a("s_mov_b32 s66, 0xaaaaaaaa\ns_mov_b32 s67, 0xaaaaaaaa\ns_mov_b32 s68, 0xcccccccc\ns_mov_b32 s69, 0xcccccccc")
        a("s_lshl_b32 s58, s4, 2\ns_add_u32 s58, s58, s6\ns_mul_i32 s59, s58, 3145728")
        a("s_lshl_b32 s58, s7, 8\ns_and_b32 s60, s3, 3\ns_lshl_b32 s60, s60, 6\ns_add_u32 s58, s58, s60\ns_add_u32 s58, s58, 6144\ns_mul_i32 s58, s58, 384\ns_add_u32 s59, s59, s58")
        a("v_and_b32 v1, 7, v0\nv_lshrrev_b32 v2, 3, v0\nv_lshrrev_b32 v3, 4, v0")
        a(f"v_lshlrev_b32 v{lane4}, 2, v0")
        a(f"v_lshlrev_b32 v{aP32}, 4, v1\nv_lshl_add_u32 v{aP32}, v3, 2, v{aP32}")
        a("s_waitcnt lgkmcnt(0)")
        a("s_cmp_ge_u32 s3, 4\ns_cbranch_scc1 L_pro_v")
        a("s_setprio 3")
        a("s_cmp_eq_u32 s3, 3\ns_cbranch_scc1 L_pro_c")
        XS = GB
        a(f"v_lshlrev_b32 v{T[0]}, 4, v0\nv_mov_b32 v{T[3]}, {GEN_OFF}")
        K = self.knobs
        a(f"buffer_load_dword v{XS+5}, v{T[3]}, s[48:51], 0 offen sc1")
        a(f"buffer_load_dwordx4 {q4(XS)}, v{T[0]}, s[8:11], 0 offen")
        a(f"buffer_load_dword v{XS+4}, v{lane4}, s[8:11], 0 offen offset:1024")
        a(f"v_mul_u32_u24 v{T[1]}, 40, v3\ns_mul_i32 s58, s7, 160")
        a(f"buffer_load_dwordx4 {q4(XA)}, v{T[1]}, s[8:11], s58 offen\nbuffer_load_dwordx4 {q4(XA+4)}, v{T[1]}, s[8:11], s58 offen offset:16")
        a(f"buffer_load_dwordx2 v[{XA+8}:{XA+9}], v{T[1]}, s[8:11], s58 offen offset:32")
        a(f"v_mul_u32_u24 v{T[2]}, 20, v3\nv_and_b32 v{T[4]}, 1, v2\nv_add_u32 v{T[2]}, v{T[2]}, v{T[4]}")
        a(f"v_mul_u32_u24 v{T[2]}, 12288, v{T[2]}\nv_lshl_add_u32 v{T[2]}, v1, 4, v{T[2]}")
        a("s_lshl_b32 s58, s4, 2\ns_add_u32 s58, s58, s6\ns_mul_i32 s58, s58, 384\ns_lshl_b32 s60, s3, 7\ns_add_u32 s58, s58, s60\ns_mul_i32 s60, s7, 983040\ns_add_u32 s58, s58, s60")
        for t in range(10):
            a(f"buffer_load_dwordx4 {q4(WA+4*t)}, v{T[2]}, s[20:23], s58 offen nt")
            if t < 9: a(f"s_add_u32 s58, s58, {2*12288}")
        a("s_barrier")
        self.consts()
        self.kwave_addrs()
        a("s_waitcnt vmcnt(13)")
        self.make_tag(XS + 5)
        s1, s2 = T[0], T[1]
        a(f"v_mov_b32 v{s1}, 0\nv_mov_b32 v{s2}, 0")
        for i in range(5):
            a(f"v_lshlrev_b32 v{T[2]}, 16, v{XS+i}\nv_and_b32 v{T[3]}, 0xffff0000, v{XS+i}")
            a(f"v_add_f32 v{s1}, v{s1}, v{T[2]}\nv_fmac_f32 v{s2}, v{T[2]}, v{T[2]}\nv_add_f32 v{s1}, v{s1}, v{T[3]}\nv_fmac_f32 v{s2}, v{T[3]}, v{T[3]}")
        self.red2_to_halves(s1, s2, ("quad_perm:[1,0,3,2]", "quad_perm:[2,3,0,1]", "row_half_mirror", "row_mirror"), T[2])
        a(f"v_readlane_b32 s58, v{s1}, 0\nv_readlane_b32 s60, v{s1}, 32")
        a(f"v_mov_b32 v{s1}, s58\nv_mov_b32 v{s2}, s60")
        a("s_waitcnt vmcnt(0)")
        self.stamp(1)
        for t in range(10):
            self.mfma(ACC, ONES, WA + 4 * t, t == 0)
        self.pair32(ACC, CS0, CS1)
        a("s_branch L_p1b")
        a("L_pro_c:")
        a(f"v_mov_b32 v{T[4]}, {GEN_OFF}\nv_mov_b32 v{T[0]}, 0")
        a("s_mov_b64 exec, 0xffff")
        a(f"ds_write_b32 v{lane4}, v{T[0]} offset:{L_CTRL}")
        a("s_mov_b64 exec, -1")
        a(f"buffer_load_dword v{GB+5}, v{T[4]}, s[48:51], 0 offen sc1")
        self.clears(False)
        a(f"s_lshl_b32 s58, s56, 7\nbuffer_load_dword v{GB+4}, v{aP32}, s[8:11], s58 offen")
        a("s_waitcnt lgkmcnt(0)\ns_barrier")
        self.consts()
        self.kwave_addrs()
        a("s_waitcnt vmcnt(0)")
        self.make_tag(GB + 5)
        self.flag_store(FL1)
        self.stamp(1)
        a(f"v_lshlrev_b32 v{X0}, 16, v{GB+4}\nv_and_b32 v{X1}, 0xffff0000, v{GB+4}")
        a("s_branch L_p2a0")
        a("L_pro_v:")
        self.k_dma()
        a(f"v_mul_u32_u24 v{T[0]}, 384, v2\nv_lshl_add_u32 v{T[0]}, v1, 4, v{T[0]}")
        for n in range(24):
            rg, th = divmod(n, 3)
            if n == self.NB:
                self.stamp(10)
                a(f"s_lshl_b32 s60, s3, 2\nv_mov_b32 v{T[2]}, s60\nv_mov_b32 v{T[3]}, 1")
                a(f"s_waitcnt vmcnt({self.NB})\nds_write_b32 v{T[2]}, v{T[3]} offset:{L_CTRL}")
                self.stamp(11)
            if th == 0: a(f"s_add_u32 s58, s59, {rg*8*384}")
            a(f"buffer_load_dwordx4 {q4(KV+4*n)}, v{T[0]}, s[16:19], s58 offen offset:{th*128} nt")
        a("s_min_u32 s61, s57, 2")
        if self.WO == 0: self.wo_loads()
        self.stamp(1)
        if "lo" in K:
            a("s_waitcnt vmcnt(8)")
            self.stamp(3)
            a("L_lo:\ns_waitcnt vmcnt(0)")
            self.stamp(2)
            self.dump_stamps()
            a("s_endpgm")
        self.consts()
        a("s_lshl_b32 s58, s61, 2\ns_and_b32 s60, s3, 3\ns_add_u32 s58, s58, s60\ns_mul_i32 s60, s58, 43\ns_lshr_b32 s60, s60, 7")
        a("s_mul_i32 s61, s60, 3\ns_sub_u32 s58, s58, s61")
        a(f"s_mul_i32 s60, s60, {8*BS}\ns_add_u32 s60, s60, s53\ns_lshl_b32 s58, s58, 7\ns_add_u32 s58, s58, s60")
        a("v_and_b32 v1, 7, v0\nv_lshrrev_b32 v2, 3, v0\nv_lshrrev_b32 v3, 4, v0")
        a(f"v_mul_u32_u24 v{aQG}, {BS}, v2\nv_lshl_add_u32 v{aQG}, v1, 4, v{aQG}\nv_add_u32 v{aQG}, s58, v{aQG}")
        a(f"v_lshl_add_u32 v{aML}, v3, 1, v0\nv_and_b32 v{aML}, 7, v{aML}\nv_mul_u32_u24 v{aML}, {BS}, v{aML}\nv_add_u32 v{aML}, s60, v{aML}")
        a(f"s_and_b32 s58, s3, 3\ns_lshl_b32 s58, s58, 7\ns_add_u32 s58, s58, {L_P}\nv_lshlrev_b32 v{ldsP}, 5, v3\nv_add_u32 v{ldsP}, s58, v{ldsP}")
        a(f"v_mov_b32 v{aST}, 0")
        a("s_branch L_b2")

        a("L_loop:")
        a(f"s_add_u32 s58, s3, 8\ns_cmp_lt_u32 s3, 2\ns_cselect_b32 s58, s58, s3\ns_cselect_b32 s63, 1.0, 0")
        a(f"s_mul_i32 s60, s3, {BS}\ns_mul_i32 s61, s58, {BS}")
        a(f"s_add_u32 s62, s60, s53\ns_add_u32 s71, s61, s53\ns_add_u32 s60, s60, {22*BS}\ns_add_u32 s61, s61, {22*BS}")
        self.poll([f"buffer_load_dwordx4 {q4(GB)}, v{aROW}, s[48:51], s60 offen offset:{ZO[0]} sc1",
                   f"buffer_load_dwordx4 {q4(GB+4)}, v{aROW}, s[48:51], s61 offen offset:{ZO[0]} sc1",
                   f"buffer_load_dword v{GB+8}, v{aP32}, s[48:51], s62 offen offset:{X1O} sc1",
                   f"buffer_load_dword v{GB+9}, v{aP32}, s[48:51], s71 offen offset:{X1O} sc1"], range(GB, GB + 10))
        self.stamp(1)
        self.mfma(ACC, ONES, GB, True)
        self.mfma(ACC + 4, ONES, GB + 4, True)
        s1, s2 = T[0], T[1]
        a(f"v_mov_b32 v{s1}, 0\nv_mov_b32 v{s2}, 0")
        a(f"s_lshl_b32 s60, s3, 7\ns_lshl_b32 s61, s58, 7")
        a(f"v_add_u32 v{GB+16}, s60, v{aP32}\nv_add_u32 v{GB+17}, s61, v{aP32}")
        for k in range(2):
            b = GB + 10 + 3 * k
            a(f"v_lshlrev_b32 v{GB+18+2*k}, 16, v{GB+8+k}\nv_and_b32 v{GB+19+2*k}, 0xffff0000, v{GB+8+k}")
        for k in range(2):
            b = GB + 10 + 3 * k
            self.pair32(ACC + 4 * k, b, b + 1)
        a("s_mov_b64 exec, s[64:65]")
        for k in range(2):
            b = GB + 10 + 3 * k
            a(f"v_cvt_pk_bf16_f32 v{b+2}, v{b}, v{b+1}")
            a(f"v_lshlrev_b32 v{b}, 16, v{b+2}\nv_and_b32 v{b+1}, 0xffff0000, v{b+2}")
            a(f"v_add_f32 v{b}, v{b}, v{GB+18+2*k}\nv_add_f32 v{b+1}, v{b+1}, v{GB+19+2*k}")
            a(f"v_cvt_pk_bf16_f32 v{b+2}, v{b}, v{b+1}")
            a(f"ds_write_b32 v{GB+16+k}, v{b+2} offset:{L_X}")
            a(f"v_lshlrev_b32 v{b}, 16, v{b+2}\nv_and_b32 v{b+1}, 0xffff0000, v{b+2}")
            if k == 1:
                a(f"v_mul_f32 v{b}, s63, v{b}\nv_mul_f32 v{b+1}, s63, v{b+1}")
            a(f"v_add_f32 v{s1}, v{s1}, v{b}\nv_fmac_f32 v{s2}, v{b}, v{b}\nv_add_f32 v{s1}, v{s1}, v{b+1}\nv_fmac_f32 v{s2}, v{b+1}, v{b+1}")
        a("s_mov_b64 exec, -1")
        self.red2_to_halves(s1, s2, ("quad_perm:[1,0,3,2]", "quad_perm:[2,3,0,1]", "row_half_mirror"), T[2])
        a(f"v_lshrrev_b32 v{T[2]}, 5, v0\ns_lshl_b32 s60, s3, 3\nv_lshl_add_u32 v{T[2]}, v{T[2]}, 2, s60")
        a("s_mov_b32 exec_lo, 1\ns_mov_b32 exec_hi, 1")
        a(f"ds_write_b32 v{T[2]}, v{s1} offset:{L_STATS}")
        a("s_mov_b64 exec, -1")
        a("s_waitcnt lgkmcnt(0)\ns_barrier")
        self.stamp(2)
        a("s_cmp_ge_u32 s3, 4\ns_cbranch_scc1 L_b2")
        a("s_cmp_eq_u32 s3, 3\ns_cbranch_scc1 L_p1_c")
        a(f"v_lshrrev_b32 v{T[2]}, 4, v0\ns_mul_i32 s58, s7, 160\ns_add_u32 s58, s58, {L_X}\nv_mul_u32_u24 v{T[2]}, 40, v{T[2]}\nv_add_u32 v{T[2]}, s58, v{T[2]}")
        a(f"ds_read2_b64 {q4(XA)}, v{T[2]} offset0:0 offset1:1\nds_read2_b64 {q4(XA+4)}, v{T[2]} offset0:2 offset1:3\nds_read_b64 v[{XA+8}:{XA+9}], v{T[2]} offset:32")
        a(f"v_and_b32 v{T[3]}, 7, v0\nv_lshlrev_b32 v{T[3]}, 3, v{T[3]}")
        a(f"ds_read_b32 v{T[0]}, v{T[3]} offset:{L_STATS}\nds_read_b32 v{T[1]}, v{T[3]} offset:{L_STATS+4}")
        a("s_waitcnt lgkmcnt(0)")
        for c in ("quad_perm:[1,0,3,2]", "quad_perm:[2,3,0,1]", "row_half_mirror"):
            a(f"v_add_f32_dpp v{T[0]}, v{T[0]}, v{T[0]} {c} {DPPALL}\nv_add_f32_dpp v{T[1]}, v{T[1]}, v{T[1]} {c} {DPPALL}")
        a("L_p1b:")
        for t in range(10):
            self.build_A(AB[t & 1], XA + t)
            if t > 0: self.mfma(ACC, AB[(t-1) & 1], WA + 4 * (t-1), t == 1)
        self.mfma(ACC, AB[1], WA + 36, False)
        self.ln_scalars(T[0], T[1])
        self.pair32(ACC, T[2], T[3])
        a(f"v_fma_f32 v{T[2]}, -v{T[0]}, v{CS0}, v{T[2]}\nv_fma_f32 v{T[3]}, -v{T[0]}, v{CS1}, v{T[3]}")
        a(f"v_mul_f32 v{T[2]}, v{T[2]}, v{T[1]}\nv_mul_f32 v{T[3]}, v{T[3]}, v{T[1]}")
        a(f"v_cvt_pk_bf16_f32 v{T[4]}, v{T[2]}, v{T[3]}")
        a("s_cmp_lg_u32 s54, 0\ns_cbranch_scc1 L_p1b_st")
        a(f"v_mov_b32 v{GB}, v{T[4]}\nv_mov_b32 v{GB+1}, s74\nv_lshlrev_b32 v{T[2]}, 1, v{aP32}")
        a("s_lshl_b32 s60, s3, 8\ns_add_u32 s58, s52, s60")
        a("s_mov_b64 exec, s[64:65]")
        a(f"buffer_store_dwordx2 v[{GB}:{GB+1}], v{T[2]}, s[48:51], s58 offen offset:{QP0T+768}")
        a(f"buffer_store_dwordx2 v[{GB}:{GB+1}], v{T[2]}, s[48:51], s58 offen offset:{QP0T} sc1")
        a("s_mov_b64 exec, -1")
        self.stamp(3)
        a("s_branch L_bk")
        a("L_p2a0:")
        QT = [WB + 4 * i for i in range(6)]
        QA = [XA + i for i in range(3)]
        a(f"s_mul_i32 s62, s6, {8*BS}\ns_add_u32 s62, s62, s53")
        for n in range(3):
            a(f"v_add_u32 v{T[0]}, {64*n}, v0\nv_mul_u32_u24 v{T[1]}, 0x556, v{T[0]}\nv_lshrrev_b32 v{T[1]}, 16, v{T[1]}")
            a(f"v_mul_u32_u24 v{T[2]}, {BS - 768}, v{T[1]}\nv_lshl_add_u32 v{QA[n]}, v{T[0]}, 4, v{T[2]}")
        lp, ld = self.L("poll"), self.L("got")
        SETS = [[WA + 24 * k + 4 * i for i in range(6)] for k in range(3)]
        def qissue(k):
            if k < 2: a(f"s_add_u32 s58, s62, 768")
            else: a(f"s_and_b32 s58, s70, 1\ns_cmp_eq_u32 s58, 1\ns_cselect_b32 s58, 0, 768\ns_add_u32 s58, s58, s62")
            a(f"s_add_u32 s60, s58, {4*BS}")
            for n in range(6):
                a(f"buffer_load_dwordx4 {q4(SETS[k][n])}, v{QA[n%3]}, s[48:51], s{58 if n < 3 else 60} offen offset:{QP0T} sc1")
        a(f"s_mov_b32 s70, 0\ns_sleep {self.QSLEEP0}")
        qissue(0); a(f"s_sleep {self.QSLEEP1}"); qissue(1); a(f"s_sleep {self.QSLEEP1}"); qissue(2)
        gots = [self.L("qg") for _ in range(3)]
        a(f"{lp}:")
        for k in range(3):
            a("s_waitcnt vmcnt(12)")
            a(f"v_mov_b32 v{T[0]}, s74\nv_mov_b32 v{T[1]}, s74")
            for r in SETS[k]:
                a(f"v_min3_u32 v{T[0]}, v{T[0]}, v{r+1}, v{r+3}\nv_max3_u32 v{T[1]}, v{T[1]}, v{r+1}, v{r+3}")
            a(f"v_cmp_ne_u32 vcc, v{T[0]}, v{T[1]}\ns_cbranch_vccz {gots[k]}")
            if k == 2: a("s_add_u32 s70, s70, 1")
            qissue(k)
        a(f"s_cmp_lt_u32 s70, {POLL_LIMIT}\ns_cbranch_scc1 {lp}")
        for k in range(3):
            a(f"{gots[k]}:")
            a(f"v_lshlrev_b32 v{T[0]}, 3, v0\nv_add_u32 v{T[0]}, {L_Q}, v{T[0]}")
            for n in range(6):
                if n % 2 == 0 and n: a(f"v_add_u32 v{T[0]}, 1024, v{T[0]}")
                a(f"ds_write2_b32 v{T[0]}, v{SETS[k][n]}, v{SETS[k][n]+2} offset0:{128*(n%2)} offset1:{128*(n%2)+1}")
            if k < 2: a(f"s_branch {ld}")
        a(f"{ld}:")
        a(f"v_mov_b32 v{T[2]}, 1\nv_mov_b32 v{T[3]}, {L_CTRL+32}\ns_waitcnt lgkmcnt(0)\nds_write_b32 v{T[3]}, v{T[2]}")
        self.stamp(2)
        a("L_bk:")
        a(f"s_lshl_b32 s60, s3, 2\ns_add_u32 s60, s60, {L_CTRL+16}")
        self.lds_wait_flag("s60")
        self.stamp(10)
        a("s_cmp_lg_u32 s3, 3\ns_cbranch_scc1 L_bk_nf")
        self.flags_issue(FL1)
        a("L_bk_nf:")
        self.k_to_regs(63)
        self.lds_wait_flag(L_CTRL + 32)
        self.stamp(11)
        a(f"v_and_b32 v{T[3]}, 7, v0\nv_mul_u32_u24 v{T[3]}, 384, v{T[3]}\nv_lshrrev_b32 v{T[4]}, 4, v0\nv_lshl_add_u32 v{T[3]}, v{T[4]}, 4, v{T[3]}")
        for u in range(6):
            a(f"ds_read_b128 {q4(GB+4*u)}, v{T[3]} offset:{L_Q + 64*u}")
        a("s_waitcnt lgkmcnt(0)")
        a("s_branch L_p2a_qk")
        a("L_p1b_st:")
        a(f"s_lshl_b32 s60, s3, 7\ns_add_u32 s58, s52, s60")
        a("s_mov_b64 exec, s[64:65]")
        self.local_store(f"buffer_store_dword v{T[4]}, v{aP32}, s[48:51], s58 offen offset:{QP1}{{f}}")
        a("s_mov_b64 exec, -1")
        self.stamp(3)
        a("s_branch L_p2a")
        a("L_p1_c:")
        a(f"s_lshl_b32 s58, s56, 7\nv_add_u32 v{T[2]}, s58, v{aP32}\nds_read_b32 v{T[0]}, v{T[2]} offset:{L_X}\ns_waitcnt lgkmcnt(0)")
        a(f"v_lshlrev_b32 v{X0}, 16, v{T[0]}\nv_and_b32 v{X1}, 0xffff0000, v{T[0]}")
        a("L_p2a:")
        a("s_mov_b64 exec, s[64:65]")
        self.poll([f"buffer_load_dwordx4 {q4(GB+4*u)}, v{aQG}, s[48:51], 0 offen offset:{QP1 + 64*u} sc1" for u in range(6)], range(GB, GB + 24))
        a("L_p2a_qk:")
        a("s_mov_b64 exec, -1")
        self.stamp(4)
        R = [XA, XA + 1, XA + 2, XA + 3]
        def lvl(t):
            for r in (2, 3, 0, 1):
                a(f"v_add_f32_dpp v{T[2] if r >= 2 else R[t]}, v{ACC+4*t+r}, v{ACC+4*t+r} row_half_mirror row_mask:0xf bank_mask:{hex(1<<(r&1))}")
            a(f"v_mov_b32_dpp v{R[t]}, v{T[2]} row_ror:8 row_mask:0xf bank_mask:0xc")
            a(f"v_add_f32_dpp v{R[t]}, v{R[t]}, v{R[t]} quad_perm:[1,0,3,2] {DPPALL}")
            a(f"v_add_f32_dpp v{R[t]}, v{R[t]}, v{R[t]} quad_perm:[2,3,0,1] {DPPALL}")
        for t in range(4):
            for u in range(6):
                self.mfma(ACC + 4 * t, KV + (t * 6 + u) * 4, GB + 4 * u, u == 0)
        for t in range(4): lvl(t)
        S = T[0]; M = T[1]
        a(f"v_cndmask_b32 v{R[0]}, v{R[0]}, v{R[1]}, s[66:67]\nv_cndmask_b32 v{R[2]}, v{R[2]}, v{R[3]}, s[66:67]\nv_cndmask_b32 v{S}, v{R[0]}, v{R[2]}, s[68:69]")
        a(f"v_mul_f32 v{S}, 0x3dd53b95, v{S}")
        a(f"v_mov_b32 v{M}, v{S}")
        self.allred64("v_max_f32", M, T[2])
        a(f"v_sub_f32 v{S}, v{S}, v{M}\nv_exp_f32 v{S}, v{S}")
        a(f"v_cvt_pk_bf16_f32 v{S}, v{S}, v{S}")
        a(f"ds_write_b16 v{ldsP}, v{S}")
        a("s_waitcnt lgkmcnt(0)")
        self.stamp(5)
        a("L_b2:")
        a("s_barrier")
        a("s_cmp_ge_u32 s3, 4\ns_cbranch_scc1 L_p2b")
        a(f"v_lshlrev_b32 v{S}, 16, v{S}")
        self.allred64("v_add_f32", S, T[2])
        a(f"s_lshl_b32 s58, s3, 3\nv_mov_b32 v{T[2]}, s58")
        a("s_mov_b64 exec, 1")
        a(f"ds_write_b32 v{T[2]}, v{M} offset:{L_ML}\nds_write_b32 v{T[2]}, v{S} offset:{L_ML+4}")
        a("s_mov_b64 exec, -1")
        a("s_cmp_lg_u32 s54, 0\ns_cbranch_scc1 L_b3")
        a("s_cmp_lg_u32 s3, 3\ns_cbranch_scc1 L_b2_nf")
        self.flags_check()
        a("L_b2_nf:")
        if self.LL == 0: self.late_loads()
        a("s_branch L_b3")
        a("L_p2b:")
        self.stamp(5)
        a(f"ds_read_b128 {q4(GB)}, v{ldsP}\nds_read_b128 {q4(GB+4)}, v{ldsP} offset:16")
        a("s_waitcnt lgkmcnt(0)")
        self.build_A(AB[0], GB)
        for G in range(8):
            if G + 1 < 8: self.build_A(AB[(G + 1) & 1], GB + G + 1)
            if self.WO == 3 and G == self.WOG: self.wo_loads(True)
            extra = 8 if (self.WO == 0 or (self.WO == 3 and G >= self.WOG)) else 0
            a(f"s_waitcnt vmcnt({extra + 21 - 3*G})")
            if self.WO == 1 and G == 7: self.wo_loads(True)
            for th in range(3):
                self.mfma(ACC + 4 * th, AB[G & 1], KV + (G * 3 + th) * 4, G == 0)
        a(f"s_and_b32 s58, s3, 3\ns_mul_i32 s58, s58, 768\nv_add_u32 v{T[3]}, s58, v{lane4}")
        for th in range(3):
            self.l64(ACC + 4 * th, T[th])
        for th in range(3):
            a(f"ds_write_b32 v{T[3]}, v{T[th]} offset:{L_O + 256*th}")
        a("L_b3:")
        a("s_waitcnt lgkmcnt(0)\ns_barrier")
        self.stamp(6)
        a("s_cmp_lt_u32 s3, 4\ns_cbranch_scc1 L_k_b4")
        if self.WO == 2: self.wo_loads(True)
        a("s_cmp_eq_u32 s3, 7\ns_cbranch_scc1 L_p3a")
        a(f"s_and_b32 s60, s3, 3\ns_lshl_b32 s58, s60, 8\nv_add_u32 v{T[3]}, s58, v{lane4}\nv_mov_b32 v{T[4]}, {L_ML}")
        a(f"ds_read_b128 {q4(GB)}, v{T[4]}\nds_read_b128 {q4(GB+4)}, v{T[4]} offset:16")
        for w in range(4):
            a(f"ds_read_b32 v{GB+8+w}, v{T[3]} offset:{L_O + 768*w}")
        a(f"v_mov_b32 v{T[2]}, {L_CTRL+4}\nds_read_b32 v{T[2]}, v{T[2]}")
        a("s_waitcnt lgkmcnt(0)")
        a(f"v_readfirstlane_b32 s55, v{T[2]}")
        M = GB + 12; Lr = GB + 13
        a(f"v_max3_f32 v{M}, v{GB}, v{GB+2}, v{GB+4}\nv_max_f32 v{M}, v{M}, v{GB+6}")
        for w in range(4): a(f"v_sub_f32 v{GB+2*w}, v{GB+2*w}, v{M}")
        for w in range(4): a(f"v_exp_f32 v{GB+2*w}, v{GB+2*w}")
        a(f"v_mul_f32 v{Lr}, v{GB}, v{GB+1}\nv_mul_f32 v{T[0]}, v{GB}, v{GB+8}")
        for w in range(1, 4):
            a(f"v_fmac_f32 v{Lr}, v{GB+2*w}, v{GB+2*w+1}\nv_fmac_f32 v{T[0]}, v{GB+2*w}, v{GB+8+w}")
        a(f"v_rcp_f32 v{T[1]}, v{Lr}\nv_mul_f32 v{T[0]}, v{T[0]}, v{T[1]}")
        a(f"v_mov_b32_dpp v{T[1]}, v{T[0]} row_ror:8 {DPPALL}\nv_cvt_pk_bf16_f32 v{T[0]}, v{T[0]}, v{T[1]}")
        self.sel_layer(58, OP, 52)
        a("s_lshl_b32 s60, s60, 7\ns_add_u32 s60, s60, s58")
        a("s_mov_b64 exec, s[64:65]")
        self.local_store(f"buffer_store_dword v{T[0]}, v{aP32}, s[48:51], s60 offen{{f}}")
        a("s_cmp_lg_u32 s3, 4\ns_cbranch_scc1 L_p2c_d")
        a("s_mov_b64 exec, 1")
        self.local_store(f"buffer_store_dwordx2 v[{M}:{Lr}], v{aP32}, s[48:51], s58 offen offset:384{{f}}")
        a("L_p2c_d:")
        a("s_mov_b64 exec, -1")
        self.stamp(7)
        a("L_p3a:")
        a("s_cmp_ge_u32 s5, 30\ns_cbranch_scc1 L_v_b5")
        self.sel_layer(58, OP)
        self.poll([f"buffer_load_dwordx4 {q4(GB)}, v{aQG}, s[48:51], s58 offen sc1",
                   f"buffer_load_dwordx2 v[{GB+4}:{GB+5}], v{aML}, s[48:51], s58 offen offset:384 sc1"], range(GB, GB + 6))
        self.stamp(8)
        M = T[0]; W = T[1]
        a(f"v_max_f32_dpp v{M}, v{GB+4}, v{GB+4} quad_perm:[1,0,3,2] {DPPALL}")
        a(f"v_max_f32_dpp v{M}, v{M}, v{M} quad_perm:[2,3,0,1] {DPPALL}\nv_max_f32_dpp v{M}, v{M}, v{M} row_half_mirror {DPPALL}")
        a(f"v_sub_f32 v{W}, v{GB+4}, v{M}\nv_exp_f32 v{W}, v{W}\nv_mul_f32 v{W}, v{W}, v{GB+5}")
        a(f"v_mov_b32_dpp v{T[2]}, v{W} row_newbcast:0 {DPPALL}\nv_mov_b32_dpp v{T[3]}, v{W} row_newbcast:1 {DPPALL}")
        a(f"v_cvt_pk_bf16_f32 v{T[2]}, v{T[2]}, v{T[3]}")
        self.build_A(AB[0], T[2])
        self.mfma(ACC, AB[0], GB, True)
        self.bf16r(W, W)
        for c in ("quad_perm:[1,0,3,2]", "quad_perm:[2,3,0,1]", "row_half_mirror"):
            a(f"v_add_f32_dpp v{W}, v{W}, v{W} {c} {DPPALL}")
        a(f"v_rcp_f32 v{W}, v{W}")
        self.pair32(ACC, T[2], T[3])
        a(f"v_mul_f32 v{T[2]}, v{T[2]}, v{W}\nv_mul_f32 v{T[3]}, v{T[3]}, v{W}\nv_cvt_pk_bf16_f32 v{T[4]}, v{T[2]}, v{T[3]}")
        self.gemv_bcast(ACC + 4, T[4], WA, 8)
        a(f"s_and_b32 s58, s3, 3\ns_lshl_b32 s58, s58, 8\nv_add_u32 v{T[3]}, s58, v{lane4}")
        self.l64(ACC + 4, T[0])
        a(f"ds_write_b32 v{T[3]}, v{T[0]} offset:{L_YR}")
        a("s_waitcnt lgkmcnt(0)\ns_barrier")
        a("s_cmp_lg_u32 s3, 7\ns_cbranch_scc1 L_v_b5")
        for w in range(4): a(f"ds_read_b32 v{GB+w}, v{lane4} offset:{L_YR + 256*w}")
        self.sel_layer(58, YO, 52)
        a("s_waitcnt lgkmcnt(0)")
        a(f"v_add_f32 v{GB}, v{GB}, v{GB+1}\nv_add_f32 v{GB+2}, v{GB+2}, v{GB+3}\nv_add_f32 v{T[0]}, v{GB}, v{GB+2}")
        a(f"v_mov_b32_dpp v{T[1]}, v{T[0]} row_ror:8 {DPPALL}\nv_cvt_pk_bf16_f32 v{T[0]}, v{T[0]}, v{T[1]}")
        a("s_mov_b64 exec, s[64:65]")
        a(f"buffer_store_dword v{T[0]}, v{aP32}, s[48:51], s58 offen sc1")
        a("s_mov_b64 exec, -1")
        self.stamp(9)
        a("L_v_b5:")
        a("s_cmp_lt_u32 s5, 22\ns_cbranch_scc1 L_next")
        a("s_barrier")
        a("s_branch L_next")
        a("L_k_b4:")
        if self.LL == 1:
            a("s_cmp_lg_u32 s54, 0\ns_cbranch_scc1 L_k_b4a")
            self.late_loads()
            a("L_k_b4a:")
        a(f"v_mov_b32 v{T[2]}, {L_CTRL+4}\nds_read_b32 v{T[2]}, v{T[2]}\ns_waitcnt lgkmcnt(0)\nv_readfirstlane_b32 s55, v{T[2]}")
        a("s_cmp_ge_u32 s5, 30\ns_cbranch_scc1 L_k_nob4")
        a("s_barrier")
        a("L_k_nob4:")
        a("s_cmp_lg_u32 s3, 3\ns_cbranch_scc1 L_p5a")
        a("s_cmp_ge_u32 s5, 30\ns_cbranch_scc1 L_v_b5")
        a("s_cmp_lg_u32 s54, 0\ns_cbranch_scc1 L_p4_nocs")
        a("s_waitcnt vmcnt(0)")
        for t in range(8): self.mfma(ACC, ONES, WB + 4 * t, t == 0)
        self.l64(ACC, CS0)
        self.local_store(f"buffer_store_dword v{CS0}, v{aST}, s[48:51], s52 offen offset:{HPC}{{f}}")
        a("L_p4_nocs:")
        self.sel_layer(58, YO)
        a(f"s_mul_i32 s60, s56, {BS}\ns_add_u32 s58, s58, s60\ns_add_u32 s60, s58, {10*BS}\ns_add_u32 s61, s58, {20*BS}")
        self.poll([f"buffer_load_dwordx4 {q4(GB+4*n)}, v{aROW}, s[48:51], s{(58,60,61)[n]} offen sc1" for n in range(3)], range(GB, GB + 12))
        self.stamp(8)
        for n in range(3): self.mfma(ACC, ONES, GB + 4 * n, n == 0)
        self.resid_add()
        self.gemv_bcast(ACC + 4, T[4], WB, 8)
        s1, s2 = T[0], T[1]
        a(f"v_add_f32 v{s1}, v{X0}, v{X1}\nv_mul_f32 v{s2}, v{X0}, v{X0}\nv_fmac_f32 v{s2}, v{X1}, v{X1}")
        self.red2_to_halves(s1, s2, ("quad_perm:[1,0,3,2]", "quad_perm:[2,3,0,1]", "row_half_mirror"), T[2])
        self.l64(ACC + 4, T[3])
        self.sel_layer(58, HPR, 52)
        self.sel_layer(60, HPS, 52)
        a(f"v_lshrrev_b32 v{T[2]}, 3, v0\nv_and_b32 v{T[2]}, 4, v{T[2]}")
        ls, ld = self.L("sl"), self.L("sd")
        a(f"s_cmp_eq_u32 s55, 0\ns_cbranch_scc1 {ls}")
        for f in ("", " sc1"):
            a(f"buffer_store_dword v{T[3]}, v{aST}, s[48:51], s58 offen{f}")
            a("s_mov_b32 exec_lo, 1\ns_mov_b32 exec_hi, 1")
            a(f"buffer_store_dword v{s1}, v{T[2]}, s[48:51], s60 offen{f}")
            a("s_mov_b64 exec, s[64:65]")
            a(f"buffer_store_dword v{T[4]}, v{aP32}, s[48:51], s52 offen offset:{X1O}{f}")
            if f == "": a(f"s_branch {ld}\n{ls}:")
        a(f"{ld}:")
        a("s_mov_b64 exec, -1")
        self.stamp(9)
        a("s_branch L_v_b5")
        a("L_p5a:")
        a("s_cmp_lt_u32 s5, 22\ns_cbranch_scc1 L_next")
        a(f"s_mul_i32 s62, s3, {10*BS}\ns_add_u32 s62, s62, s53")
        def hp_gather(off_s, with_stats):
            for i in range(8, 14): a(f"v_mov_b32 v{GB+i}, 0")
            loads = [f"buffer_load_dwordx4 {q4(GB)}, v{aML}, s[48:51], s58 offen sc1",
                     f"buffer_load_dwordx4 {q4(GB+4)}, v{aML}, s[48:51], s60 offen sc1",
                     "s_mov_b32 exec_hi, 0",
                     f"buffer_load_dwordx4 {q4(GB+8)}, v{aML}, s[48:51], s61 offen sc1"]
            if with_stats:
                loads += ["s_mov_b32 exec_lo, 0x03ff03ff\ns_mov_b32 exec_hi, 0x03ff03ff",
                          f"buffer_load_dwordx2 v[{GB+12}:{GB+13}], v{aST}, s[48:51], s63 offen sc1"]
            loads += ["s_mov_b64 exec, -1"]
            self.poll(loads, range(GB, GB + (14 if with_stats else 12)))
        def hp_reduce(dst):
            for i in range(4): a(f"v_add_f32 v{GB+i}, v{GB+i}, v{GB+4+i}")
            for i in range(4): a(f"v_add_f32 v{GB+i}, v{GB+i}, v{GB+8+i}")
            a(f"v_permlane32_swap_b32 v{GB}, v{GB+2}\nv_permlane32_swap_b32 v{GB+1}, v{GB+3}")
            a(f"v_add_f32 v{GB}, v{GB}, v{GB+2}\nv_add_f32 v{GB+1}, v{GB+1}, v{GB+3}")
            a(f"v_permlane16_swap_b32 v{GB}, v{GB+1}\nv_add_f32 v{dst}, v{GB}, v{GB+1}")
        a("s_cmp_lg_u32 s54, 0\ns_cbranch_scc1 L_p5_nocs")
        a(f"s_add_u32 s58, s62, {HPC}\ns_add_u32 s60, s58, {4*BS}\ns_add_u32 s61, s58, {8*BS}")
        hp_gather(58, False)
        hp_reduce(CSW1)
        a(f"v_lshlrev_b32 v{B1V}, 16, v{B1V}")
        a("L_p5_nocs:")
        self.sel_layer(58, HPR, 62)
        self.sel_layer(63, HPS, 62)
        a(f"s_add_u32 s60, s58, {4*BS}\ns_add_u32 s61, s58, {8*BS}")
        hp_gather(58, True)
        self.stamp(8)
        s1, s2 = GB + 12, GB + 13
        for c in ("quad_perm:[1,0,3,2]", "quad_perm:[2,3,0,1]", "row_half_mirror", "row_mirror"):
            a(f"v_add_f32_dpp v{s1}, v{s1}, v{s1} {c} {DPPALL}\nv_add_f32_dpp v{s2}, v{s2}, v{s2} {c} {DPPALL}")
        H = T[0]
        hp_reduce(H)
        self.ln_scalars(s1, s2)
        a(f"v_fma_f32 v{H}, -v{s1}, v{CSW1}, v{H}\nv_mul_f32 v{H}, v{H}, v{s2}")
        self.bf16r(H, H)
        a(f"v_add_f32 v{H}, v{H}, v{B1V}")
        self.bf16r(H, H)
        E = T[1]; N = T[2]; Dn = T[3]
        a(f"v_mul_f32 v{E}, 0x3fb8aa3b, v{H}\nv_exp_f32 v{E}, -|v{E}|")
        a(f"v_cmp_gt_f32 vcc, 0, v{H}")
        a(f"v_fma_f32 v{N}, v{E}, 2.0, 1.0\nv_add_f32 v{Dn}, 2.0, v{E}\nv_mul_f32 v{Dn}, v{Dn}, v{E}")
        a(f"v_mul_f32 v{E}, v{E}, v{E}\nv_add_f32 v{E}, v{E}, v{E}")
        a(f"v_cndmask_b32 v{N}, v{N}, v{Dn}, vcc\nv_cndmask_b32 v{E}, v{E}, 2.0, vcc") if False else None
        a(f"v_cndmask_b32 v{N}, v{N}, v{Dn}, vcc\nv_mov_b32 v{Dn}, 2.0\nv_cndmask_b32 v{E}, v{E}, v{Dn}, vcc")
        a(f"v_add_f32 v{Dn}, v{N}, v{E}\nv_rcp_f32 v{Dn}, v{Dn}\nv_mul_f32 v{N}, v{N}, v{H}\nv_mul_f32 v{N}, v{N}, v{Dn}")
        a(f"v_mov_b32_dpp v{E}, v{N} row_ror:8 {DPPALL}\nv_cvt_pk_bf16_f32 v{T[4]}, v{N}, v{E}")
        self.gemv_bcast(ACC, T[4], WB, 8)
        a(f"s_lshl_b32 s58, s3, 8\nv_add_u32 v{T[3]}, s58, v{lane4}")
        self.l64(ACC, T[0])
        a(f"ds_write_b32 v{T[3]}, v{T[0]} offset:{L_ZR}")
        a("s_waitcnt lgkmcnt(0)\ns_barrier")
        a("s_cmp_lg_u32 s3, 0\ns_cbranch_scc1 L_next")
        for w in range(3): a(f"ds_read_b32 v{GB+w}, v{lane4} offset:{L_ZR + 256*w}")
        self.sel_layer(58, ZO, 52)
        a("s_waitcnt lgkmcnt(0)")
        a(f"v_add_f32 v{GB}, v{GB}, v{GB+1}\nv_add_f32 v{T[0]}, v{GB}, v{GB+2}")
        a(f"v_mov_b32_dpp v{T[1]}, v{T[0]} row_ror:8 {DPPALL}\nv_cvt_pk_bf16_f32 v{T[0]}, v{T[0]}, v{T[1]}")
        a("s_mov_b64 exec, s[64:65]")
        a(f"buffer_store_dword v{T[0]}, v{aP32}, s[48:51], s58 offen sc1")
        a("s_mov_b64 exec, -1")
        self.stamp(9)
        a("L_next:")
        a("s_cmp_lg_u32 s54, 0\ns_cbranch_scc1 L_final")
        self.dump_stamps()
        a("s_mov_b32 s54, 1\ns_branch L_loop")
        a("L_final:")
        a("s_cmp_lg_u32 s3, 3\ns_cbranch_scc1 L_fin2\ns_cmp_lg_u32 s4, 0\ns_cbranch_scc1 L_fin2\ns_cmp_ge_u32 s5, 10\ns_cbranch_scc1 L_fin2")
        a(f"s_mul_i32 s58, s5, {BS}\ns_add_u32 s58, s58, {22*BS}")
        self.poll([f"buffer_load_dwordx4 {q4(GB)}, v{aROW}, s[48:51], s58 offen offset:{ZO[1]} sc1"], range(GB, GB + 4))
        self.stamp(10)
        self.mfma(ACC, ONES, GB, True)
        self.resid_add()
        a("s_lshl_b32 s58, s5, 7")
        a("s_mov_b64 exec, s[64:65]")
        a(f"buffer_store_dword v{T[4]}, v{aP32}, s[40:43], s58 offen")
        a("s_cmp_lg_u32 s2, 0\ns_cbranch_scc1 L_fin1")
        a(f"s_mov_b64 exec, 1\nv_mov_b32 v{T[0]}, s74\nv_mov_b32 v{T[1]}, {GEN_OFF}")
        a(f"buffer_store_dword v{T[0]}, v{T[1]}, s[48:51], 0 offen sc1")
        a("L_fin1:")
        a("s_mov_b64 exec, -1")
        self.stamp(11)
        a("L_fin2:")
        self.dump_stamps(True)
        a("L_end:\ns_endpgm")
        a('.section .rodata,"a"\n.p2align 6')
        a(f".amdhsa_kernel {KNAME}")
        a(".amdhsa_next_free_vgpr 256\n.amdhsa_next_free_sgpr 102\n.amdhsa_accum_offset 256\n.amdhsa_group_segment_fixed_size 0\n.amdhsa_kernarg_size 96")
        a(".amdhsa_user_sgpr_count 2\n.amdhsa_user_sgpr_kernarg_segment_ptr 1\n.amdhsa_system_sgpr_workgroup_id_x 1\n.end_amdhsa_kernel")
        return a.render()

    def wo_loads(self, guard=False):
        a = self.a
        le = self.L("wo")
        if guard: a(f"s_cmp_lg_u32 s54, 0\ns_cbranch_scc1 {le}")
        t1 = XA
        a(f"v_lshrrev_b32 v{t1}, 3, v0\nv_mul_u32_u24 v{t1}, 1280, v{t1}\nv_and_b32 v{XA+1}, 7, v0\nv_lshl_add_u32 v{t1}, v{XA+1}, 4, v{t1}")
        a("s_min_u32 s62, s57, 2\ns_mul_i32 s58, s4, 768\ns_lshl_b32 s60, s62, 8\ns_add_u32 s58, s58, s60\ns_and_b32 s60, s3, 3\ns_lshl_b32 s60, s60, 6\ns_add_u32 s58, s58, s60")
        a("s_mul_i32 s58, s58, 1280\ns_lshl_b32 s60, s56, 7\ns_add_u32 s58, s58, s60")
        for t in range(8):
            a(f"buffer_load_dwordx4 {q4(WA+4*t)}, v{t1}, s[24:27], s58 offen nt")
            if t < 7: a(f"s_add_u32 s58, s58, {8*1280}")
        if guard: a(f"{le}:")

    def make_tag(self, r):
        a = self.a
        a(f"v_readfirstlane_b32 s74, v{r}\ns_mul_i32 s74, s74, 1664525\ns_add_u32 s74, s74, 1013904223")

    def clears(self, all_sc1):
        a = self.a
        C = XA + 4
        for i in range(4): a(f"v_mov_b32 v{C+i}, -1")
        a(f"v_lshlrev_b32 v{T[3]}, 4, v0")
        f = " sc1" if all_sc1 else ""
        a("s_mov_b32 exec_hi, 0")
        a(f"buffer_store_dwordx4 {q4(C)}, v{T[3]}, s[48:51], s52 offen sc1")
        a(f"buffer_store_dwordx4 {q4(C)}, v{T[3]}, s[48:51], s52 offen offset:512{f}")
        a("s_mov_b64 exec, -1")
        for i in (1, 2):
            a(f"buffer_store_dwordx4 {q4(C)}, v{T[3]}, s[48:51], s52 offen offset:{1024*i}{f}")

    def flag_store(self, base):
        a = self.a
        C = XA + 4
        if base == FL1:
            a("s_xor_b32 s58, s74, 0x5bd1e995\ns_andn2_b32 s58, s58, 15\ns_or_b32 s75, s75, s58")
        a(f"s_lshl_b32 s58, s4, 5\ns_add_u32 s58, s58, s5\ns_lshl_b32 s58, s58, 3\ns_add_u32 s58, s58, {base}")
        a(f"v_mov_b32 v{C}, s74\nv_mov_b32 v{C+1}, s75")
        a("s_mov_b64 exec, 1")
        a(f"buffer_store_dwordx2 v[{C}:{C+1}], v{aP32}, s[48:51], s58 offen sc1")
        a("s_mov_b64 exec, -1")

    def flags_issue(self, base):
        a = self.a
        F = AB[0]
        a(f"v_lshlrev_b32 v{T[4]}, 5, v0\ns_mov_b32 s60, {base}")
        a(f"buffer_load_dwordx4 {q4(F)}, v{T[4]}, s[48:51], s60 offen sc1\nbuffer_load_dwordx4 {q4(F+4)}, v{T[4]}, s[48:51], s60 offen offset:16 sc1")

    def flags_wait(self, base, group_only):
        a = self.a
        F = AB[0]
        t, t2 = T[2], T[3]
        lp, lc, ld = self.L("fp"), self.L("fc"), self.L("fg")
        a(f"s_mov_b32 s70, 0\ns_or_b32 s61, s75, 15")
        if base == FL1: a(f"s_branch {lc}")
        a(f"{lp}:")
        self.flags_issue(base)
        a(f"{lc}:")
        a("s_waitcnt vmcnt(0)")
        a(f"v_xor_b32 v{t}, s74, v{F}")
        for i in range(1, 4):
            a(f"v_xor_b32 v{t2}, s74, v{F+2*i}\nv_or_b32 v{t}, v{t}, v{t2}")
        for i in range(4):
            a(f"v_or_b32 v{t2}, 15, v{F+2*i+1}\nv_xor_b32 v{t2}, s61, v{t2}\nv_or_b32 v{t}, v{t}, v{t2}")
        a(f"v_cmp_ne_u32 vcc, 0, v{t}")
        if group_only: a(f"s_and_b64 vcc, vcc, s[72:73]\ns_cbranch_scc0 {ld}")
        else: a(f"s_cbranch_vccz {ld}")
        a(f"s_sleep 16\ns_add_u32 s70, s70, 1\ns_cmp_lt_u32 s70, {POLL_LIMIT}\ns_cbranch_scc1 {lp}\n{ld}:")

    def flags_check(self):
        a = self.a
        F = AB[0]; t, t2 = T[2], T[3]
        lf = self.L("fast")
        a("s_lshl_b32 s58, s4, 3\ns_mov_b64 s[72:73], 0xff\ns_lshl_b64 s[72:73], s[72:73], s58")
        self.flags_wait(FL1, False)
        a(f"v_xor_b32 v{t}, s75, v{F+1}")
        for i in range(1, 4):
            a(f"v_xor_b32 v{t2}, s75, v{F+2*i+1}\nv_or_b32 v{t}, v{t}, v{t2}")
        a(f"v_cmp_ne_u32 vcc, 0, v{t}\ns_mov_b32 s55, 1\ns_and_b64 vcc, vcc, s[72:73]")
        if "forceslow" not in self.knobs: a(f"s_cbranch_scc0 {lf}")
        a("s_mov_b32 s55, 0")
        self.clears(True)
        a("s_waitcnt vmcnt(0)")
        self.flag_store(FL2)
        self.flags_wait(FL2, True)
        a(f"{lf}:")
        a(f"v_mov_b32 v{t}, s55\nv_mov_b32 v{T[3]}, {L_CTRL}\nds_write_b32 v{T[3]}, v{t} offset:4")

    def resid_add(self):
        a = self.a
        self.pair32(ACC, T[2], T[3])
        a(f"v_cvt_pk_bf16_f32 v{T[4]}, v{T[2]}, v{T[3]}")
        a(f"v_lshlrev_b32 v{T[2]}, 16, v{T[4]}\nv_and_b32 v{T[3]}, 0xffff0000, v{T[4]}")
        a(f"v_add_f32 v{T[2]}, v{T[2]}, v{X0}\nv_add_f32 v{T[3]}, v{T[3]}, v{X1}")
        a(f"v_cvt_pk_bf16_f32 v{T[4]}, v{T[2]}, v{T[3]}")
        a(f"v_lshlrev_b32 v{X0}, 16, v{T[4]}\nv_and_b32 v{X1}, 0xffff0000, v{T[4]}")

    def consts(self):
        a = self.a
        t0, t1, t2 = T[0], T[1], T[2]
        a(f"v_and_b32 v{t0}, 1, v0\nv_mul_u32_u24 v{t0}, 0x202, v{t0}\nv_add_u32 v{t0}, 0x100, v{t0}")
        a(f"v_bfe_u32 v{t1}, v0, 1, 1\nv_lshlrev_b32 v{t1}, 4, v{t1}\nv_lshlrev_b32 v{t0}, v{t1}, v{t0}")
        a(f"v_mov_b32 v{t2}, 0x0c0c0000\nv_lshrrev_b32 v{t2}, v{t1}, v{t2}\nv_and_b32 v{t2}, 0x0c0c0c0c, v{t2}")
        a(f"v_or_b32 v{t0}, v{t0}, v{t2}")
        a(f"v_bfe_u32 v{t1}, v0, 2, 2\nv_mov_b32 v{t2}, 0x0c0c0c0c")
        for d in range(4):
            a(f"v_cmp_eq_u32 vcc, {d}, v{t1}\nv_cndmask_b32 v{SEL+d}, v{t2}, v{t0}, vcc")
        a(f"v_mov_b32 v{t0}, 0x3f803f80")
        self.build_A(ONES, t0)
        a(f"v_lshrrev_b32 v{t0}, 3, v0\nv_and_b32 v{t1}, 7, v0\ns_mov_b32 s58, {32*BS}\nv_mul_lo_u32 v{aROW}, s58, v{t0}\nv_lshl_add_u32 v{aROW}, v{t1}, 4, v{aROW}")

    def kwave_addrs(self):
        a = self.a
        t0, t1, t2 = T[0], T[1], T[2]
        a(f"v_and_b32 v{t0}, 7, v0\nv_mul_u32_u24 v{aQG}, {BS}, v{t0}\nv_lshrrev_b32 v{t1}, 4, v0\nv_lshl_add_u32 v{aQG}, v{t1}, 4, v{aQG}")
        a(f"s_mul_i32 s58, s6, {8*BS}\ns_add_u32 s58, s58, s53\nv_add_u32 v{aQG}, s58, v{aQG}")
        a(f"v_and_b32 v{t0}, 3, v0\nv_lshlrev_b32 v{t0}, 4, v{t0}\nv_lshl_add_u32 v{t0}, v{t1}, 2, v{t0}\nv_bfe_u32 v{t2}, v0, 2, 2\nv_add_u32 v{t0}, v{t0}, v{t2}")
        a(f"v_bfe_u32 v{t2}, v{t0}, 1, 2\nv_lshlrev_b32 v{ldsP}, 5, v{t2}\nv_lshrrev_b32 v{t2}, 3, v{t0}\nv_lshl_add_u32 v{ldsP}, v{t2}, 2, v{ldsP}")
        a(f"v_and_b32 v{t2}, 1, v{t0}\nv_lshl_add_u32 v{ldsP}, v{t2}, 1, v{ldsP}")
        a(f"s_lshl_b32 s58, s3, 7\ns_add_u32 s58, s58, {L_P}\nv_add_u32 v{ldsP}, s58, v{ldsP}")
        a(f"v_and_b32 v{t0}, 15, v0\nv_mul_u32_u24 v{aML}, {BS}, v{t1}\nv_lshl_add_u32 v{aML}, v{t0}, 4, v{aML}")
        a(f"v_mul_u32_u24 v{aST}, {BS}, v{t0}\nv_lshlrev_b32 v{t2}, 4, v{t0}\nv_lshl_add_u32 v{t2}, v{t1}, 2, v{t2}")
        a(f"s_cmp_eq_u32 s3, 3\ns_cselect_b64 vcc, -1, 0\nv_cndmask_b32 v{aST}, v{aST}, v{t2}, vcc")

    def late_loads(self):
        a = self.a
        t0, t1, t2 = T[2], T[3], T[4]
        l3, ld = self.L("ll3"), self.L("lld")
        a(f"v_lshrrev_b32 v{t0}, 3, v0\nv_and_b32 v{t1}, 7, v0")
        a(f"s_cmp_eq_u32 s3, 3\ns_cbranch_scc1 {l3}")
        a(f"s_cmp_lt_u32 s5, 22\ns_cbranch_scc1 {ld}")
        a(f"v_mul_u32_u24 v{t0}, 1280, v{t0}\nv_lshl_add_u32 v{t0}, v{t1}, 4, v{t0}")
        a("s_mul_i32 s58, s4, 192\ns_lshl_b32 s60, s3, 6\ns_add_u32 s61, s58, s60\ns_mul_i32 s58, s61, 1280\ns_sub_u32 s60, s5, 22\ns_lshl_b32 s60, s60, 7\ns_add_u32 s58, s58, s60")
        for t in range(8):
            a(f"buffer_load_dwordx4 {q4(WB+4*t)}, v{t0}, s[36:39], s58 offen nt")
            if t < 7: a(f"s_add_u32 s58, s58, {8*1280}")
        a(f"v_bfe_u32 v{t0}, v0, 3, 1\nv_lshl_add_u32 v{t0}, v{t0}, 1, v{aP32}\ns_lshl_b32 s61, s61, 1")
        a(f"buffer_load_ushort v{B1V}, v{t0}, s[32:35], s61 offen")
        a(f"s_branch {ld}\n{l3}:")
        a(f"s_cmp_ge_u32 s5, 30\ns_cbranch_scc1 {ld}")
        a(f"v_mul_u32_u24 v{t0}, 3072, v{t0}\nv_lshl_add_u32 v{t0}, v{t1}, 4, v{t0}")
        a(f"s_mul_i32 s58, s56, {64*3072}\ns_mul_i32 s60, s4, 384\ns_add_u32 s58, s58, s60\ns_lshl_b32 s60, s57, 7\ns_add_u32 s58, s58, s60")
        for t in range(8):
            a(f"buffer_load_dwordx4 {q4(WB+4*t)}, v{t0}, s[28:31], s58 offen nt")
            if t < 7: a(f"s_add_u32 s58, s58, {8*3072}")
        a(f"{ld}:")

HEADER = open("interleave_layers__sliding_block_cached__dense_activation_mish__decode.s.ref").read().split("; Override")[0] if __import__('os').path.exists("interleave_layers__sliding_block_cached__dense_activation_mish__decode.s.ref") else ""

if __name__ == "__main__":
    prof = {"prof": 1, "prof2": 2}.get(sys.argv[2], 0) if len(sys.argv) > 2 else 0
    txt = HEADER + Gen(prof, sys.argv[3:]).gen()
    open(sys.argv[1], "w").write(txt)
```

```python
import sys, os
sys.path.insert(0, "gen")
from asmlib import Asm

KNAME = "interleave_layers__sliding_block_cached__dense_activation_mish__decode_kernel"
BS = 4736
YO = [0, 128]; ZO = [256, 384]
QP1 = 512
OP = [896, 1280]
MISC = 1664
HPR = [1792, 2048]; HPC = 2304
X2O = 2560
CLR_END = 2816
QP0T = 3072
GEN_OFF = 256 * BS
FL1 = GEN_OFF + 4096; FL2 = GEN_OFF + 8192
WS_USED = GEN_OFF + 12288
PROF_OFF = 2 << 20
L_CTRL = 0
L_ML = 128
L_P = 256
L_O = 1024
L_YR = 4096
L_Q = 5120
L_K = 8192
L_WQ = L_K + 98304
LDS_BYTES = L_WQ + 3 * 10752
POLL_LIMIT = 200000
ONES = 4; SEL = 8; AB = [12, 16]; ACC = 20; GB = 36; XA = 60
aQG = 70; aP32 = 71; aROW = 72; aML = 73; aST = 74; ldsP = 75; lane4 = 76
CS0 = 77; CS1 = 78; X0 = 79; X1 = 80; B1V = 81; CSW1 = 82
T = [83, 84, 85, 86, 87, 1, 2, 3]
aX2 = 68; aXS = 69
KV = 88; WA = 184; WB = 224
WS = "s[48:51]"

def q4(r): return f"v[{r}:{r+3}]"
DPPALL = "row_mask:0xf bank_mask:0xf"
Q1 = "quad_perm:[1,0,3,2]"; Q2 = "quad_perm:[2,3,0,1]"; HM = "row_half_mirror"; RM = "row_mirror"

class Gen:
    def __init__(self, prof=0, knobs=()):
        self.knobs = set(knobs)
        self.NB = 8; self.QSLEEP0 = 64; self.QSLEEP1 = 24
        self.QSL = 13; self.OSL = 10; self.YSL0 = 12; self.YSL = 16; self.HSL = 11; self.ZSL = 12; self.XSL = 24; self.FSL = 8
        for k in knobs:
            if '=' in k: setattr(self, k.split('=')[0], int(k.split('=')[1]))
        self.a = Asm(); self.prof = prof; self.uid = 0
    def L(self, base):
        self.uid += 1
        return f"L_{base}_{self.uid}"
    def stamp(self, i):
        if self.prof: self.a(f"s_memrealtime s[{76+2*i}:{77+2*i}]")
    def sleep(self, n):
        if n: self.a(f"s_sleep {n}")
    def dump_stamps(self):
        if not self.prof: return
        a = self.a
        a("s_waitcnt lgkmcnt(0)")
        a(f"v_mov_b32 v{T[0]}, 0")
        for i in range(13):
            a(f"v_writelane_b32 v{T[0]}, s{76+2*i}, {i}")
        a("s_lshl_b32 s58, s2, 3\ns_add_u32 s58, s58, s3\ns_lshl_b32 s58, s58, 1\ns_add_u32 s58, s58, s54\ns_lshl_b32 s58, s58, 6")
        a(f"s_add_u32 s58, s58, {PROF_OFF}")
        a("s_mov_b64 exec, 0xffff")
        a(f"buffer_store_dword v{T[0]}, v{lane4}, {WS}, s58 offen")
        a("s_mov_b64 exec, -1")
        for i in range(13):
            a(f"s_mov_b64 s[{76+2*i}:{77+2*i}], 0")
    def dump0(self):
        if not self.prof: return
        l = self.L("nd")
        self.a(f"s_cmp_lg_u32 s54, 0\ns_cbranch_scc1 {l}")
        self.dump_stamps()
        self.a(f"{l}:")
    def local_stores(self, lines):
        a = self.a
        ls, ld = self.L("sl"), self.L("sd")
        a(f"s_cmp_eq_u32 s55, 0\ns_cbranch_scc1 {ls}")
        for x in lines: a(x.replace("{f}", ""))
        a(f"s_branch {ld}\n{ls}:")
        for x in lines: a(x.replace("{f}", " sc1"))
        a(f"{ld}:")
    def poll(self, loads, regs, entry=None, slp=0):
        a = self.a
        lp, ld = self.L("poll"), self.L("got")
        a("s_mov_b32 s70, 0")
        a(f"{lp}:")
        for x in loads: a(x)
        if entry: a(f"{entry}:")
        a("s_waitcnt vmcnt(0)")
        t = T[7]
        rs = list(regs)
        if len(rs) == 1:
            a(f"v_cmp_eq_u32 vcc, -1, v{rs[0]}")
        else:
            if len(rs) == 2:
                a(f"v_max_u32 v{t}, v{rs[0]}, v{rs[1]}"); rs = []
            else:
                a(f"v_max3_u32 v{t}, v{rs[0]}, v{rs[1]}, v{rs[2]}"); rs = rs[3:]
            while rs:
                if len(rs) >= 2:
                    a(f"v_max3_u32 v{t}, v{t}, v{rs[0]}, v{rs[1]}"); rs = rs[2:]
                else:
                    a(f"v_max_u32 v{t}, v{t}, v{rs[0]}"); rs = rs[1:]
            a(f"v_cmp_eq_u32 vcc, -1, v{t}")
        a(f"s_cbranch_vccz {ld}")
        self.sleep(slp)
        a(f"s_add_u32 s70, s70, 1\ns_cmp_lt_u32 s70, {POLL_LIMIT}\ns_cbranch_scc1 {lp}")
        a(f"{ld}:")
    def build_A(self, dst, src):
        for d in range(4):
            self.a(f"v_perm_b32 v{dst+d}, v{src}, v{src}, v{SEL+d}")
    def mfma(self, D, A, B, first):
        self.a(f"v_mfma_f32_16x16x32_bf16 {q4(D)}, {q4(A)}, {q4(B)}, {'0' if first else q4(D)}")
    def pair32(self, D, t0, t1):
        self.a(f"v_add_f32_dpp v{t0}, v{D+1}, v{D} row_ror:8 {DPPALL}")
        self.a(f"v_add_f32_dpp v{t1}, v{D+3}, v{D+2} row_ror:8 {DPPALL}")
    def l64(self, D, t):
        self.a(f"v_add_f32_dpp v{t}, v{D+1}, v{D} row_ror:8 row_mask:0xf bank_mask:0x3")
        self.a(f"v_add_f32_dpp v{t}, v{D+2}, v{D+3} row_ror:8 row_mask:0xf bank_mask:0xc")
    def gemv_bcast(self, D, pair, W, n, fill=()):
        a = self.a
        fill = list(fill)
        tb = [T[5], T[6]]
        a(f"v_mov_b32_dpp v{tb[0]}, v{pair} row_newbcast:0 {DPPALL}")
        for t in range(n):
            if t + 1 < n:
                a(f"v_mov_b32_dpp v{tb[(t+1)&1]}, v{pair} row_newbcast:{t+1} {DPPALL}")
            self.build_A(AB[t & 1], tb[t & 1])
            if t > 0: self.mfma(D, AB[(t-1) & 1], W + 4 * (t-1), t == 1)
            for _ in range(2):
                if fill: a(fill.pop(0))
        self.mfma(D, AB[(n-1) & 1], W + 4 * (n-1), n == 1)
        for x in fill: a(x)
    def bf16r_ops(self, dst, src):
        return [f"v_cvt_pk_bf16_f32 v{dst}, v{src}, v{src}", f"v_lshlrev_b32 v{dst}, 16, v{dst}"]
    def bf16r(self, dst, src):
        for x in self.bf16r_ops(dst, src): self.a(x)
    def ln_ops(self, s1, s2, t):
        inv = "0x3acccccd"
        return [f"v_mul_f32 v{s1}, {inv}, v{s1}", f"v_mul_f32 v{s2}, {inv}, v{s2}", f"v_fma_f32 v{s2}, -v{s1}, v{s1}, v{s2}",
                f"v_max_f32 v{s2}, 0, v{s2}", f"v_cvt_pk_bf16_f32 v{t}, v{s1}, v{s2}", f"v_lshlrev_b32 v{s1}, 16, v{t}",
                f"v_and_b32 v{s2}, 0xffff0000, v{t}", f"v_add_f32 v{s2}, 0x3727c5ac, v{s2}"] + self.bf16r_ops(s2, s2) + \
               [f"v_sqrt_f32 v{s2}, v{s2}"] + self.bf16r_ops(s2, s2) + [f"v_rcp_f32 v{s2}, v{s2}"]
    def red2_ops(self, s1, s2, steps, tmp):
        return [f"v_permlane32_swap_b32 v{s1}, v{s2}", f"v_add_f32 v{s1}, v{s1}, v{s2}", f"v_mov_b32 v{tmp}, v{s1}",
                f"v_permlane16_swap_b32 v{s1}, v{tmp}", f"v_add_f32 v{s1}, v{s1}, v{tmp}"] + \
               [f"v_add_f32_dpp v{s1}, v{s1}, v{s1} {c} {DPPALL}" for c in steps]
    def row16_ops(self, s1, s2):
        out = []
        for c in (Q1, Q2, HM, RM):
            out += [f"v_add_f32_dpp v{s1}, v{s1}, v{s1} {c} {DPPALL}", f"v_add_f32_dpp v{s2}, v{s2}, v{s2} {c} {DPPALL}"]
        return out
    def allred64(self, op, v, tmp):
        a = self.a
        for c in (Q1, Q2, HM, RM):
            a(f"{op}_dpp v{v}, v{v}, v{v} {c} {DPPALL}")
        a(f"v_mov_b32 v{tmp}, v{v}\nv_permlane16_swap_b32 v{v}, v{tmp}\n{op} v{v}, v{v}, v{tmp}")
        a(f"v_mov_b32 v{tmp}, v{v}\nv_permlane32_swap_b32 v{v}, v{tmp}\n{op} v{v}, v{v}, v{tmp}")
    def sel_layer(self, dst, arr, add=None):
        a = self.a
        a(f"s_mul_i32 s{dst}, s54, {arr[1]-arr[0]}")
        if arr[0]: a(f"s_add_u32 s{dst}, s{dst}, {arr[0]}")
        if add is not None: a(f"s_add_u32 s{dst}, s{dst}, s{add}")
    def lds_wait_flag(self, off):
        a = self.a
        lp, ld = self.L("lw"), self.L("lg")
        t = T[5]; t2 = T[6]
        a(f"v_mov_b32 v{t2}, {off}\ns_mov_b32 s70, 0")
        a(f"{lp}:\nds_read_b32 v{t}, v{t2}\ns_waitcnt lgkmcnt(0)\nv_readfirstlane_b32 s58, v{t}")
        a(f"s_cmp_lg_u32 s58, 0\ns_cbranch_scc1 {ld}")
        a(f"s_sleep 1\ns_add_u32 s70, s70, 1\ns_cmp_lt_u32 s70, {4*POLL_LIMIT}\ns_cbranch_scc1 {lp}")
        a(f"{ld}:")
    def read_fast(self):
        self.a(f"v_mov_b32 v{T[2]}, {L_CTRL+4}\nds_read_b32 v{T[2]}, v{T[2]}\ns_waitcnt lgkmcnt(0)\nv_readfirstlane_b32 s55, v{T[2]}")
    def make_tag(self):
        self.a("s_waitcnt lgkmcnt(0)\ns_mul_i32 s74, s74, 1664525\ns_add_u32 s74, s74, 1013904223")
    def resid_add(self):
        a = self.a
        self.pair32(ACC, T[2], T[3])
        a(f"v_cvt_pk_bf16_f32 v{T[4]}, v{T[2]}, v{T[3]}")
        a(f"v_lshlrev_b32 v{T[2]}, 16, v{T[4]}\nv_and_b32 v{T[3]}, 0xffff0000, v{T[4]}")
        a(f"v_add_f32 v{T[2]}, v{T[2]}, v{X0}\nv_add_f32 v{T[3]}, v{T[3]}, v{X1}")
        a(f"v_cvt_pk_bf16_f32 v{T[4]}, v{T[2]}, v{T[3]}")
    def unpackX_ops(self, src):
        return [f"v_lshlrev_b32 v{X0}, 16, v{src}", f"v_and_b32 v{X1}, 0xffff0000, v{src}"]
    def xstats_ops(self, s1, s2, tmp):
        return [f"v_add_f32 v{s1}, v{X0}, v{X1}", f"v_mul_f32 v{s2}, v{X0}, v{X0}", f"v_fmac_f32 v{s2}, v{X1}, v{X1}"] + self.red2_ops(s1, s2, (Q1, Q2, HM), tmp)
    def rows24_loads(self, off_arr):
        a = self.a
        self.sel_layer(58, off_arr)
        a(f"s_mul_i32 s60, s56, {BS}\ns_add_u32 s58, s58, s60\ns_add_u32 s60, s58, {10*BS}\ns_add_u32 s61, s58, {20*BS}")
        return [f"buffer_load_dwordx4 {q4(GB+4*n)}, v{aROW}, {WS}, s{(58,60,61)[n]} offen sc1" for n in range(3)]
    def consts(self):
        a = self.a
        t0, t1, t2 = T[0], T[1], T[2]
        a(f"v_and_b32 v{t0}, 1, v0\nv_mul_u32_u24 v{t0}, 0x202, v{t0}\nv_add_u32 v{t0}, 0x100, v{t0}")
        a(f"v_bfe_u32 v{t1}, v0, 1, 1\nv_lshlrev_b32 v{t1}, 4, v{t1}\nv_lshlrev_b32 v{t0}, v{t1}, v{t0}")
        a(f"v_mov_b32 v{t2}, 0x0c0c0000\nv_lshrrev_b32 v{t2}, v{t1}, v{t2}\nv_or_b32 v{t0}, v{t0}, v{t2}")
        a(f"v_bfe_u32 v{t1}, v0, 2, 2\nv_mov_b32 v{t2}, 0x0c0c0c0c")
        for d in range(4):
            a(f"v_cmp_eq_u32 vcc, {d}, v{t1}\nv_cndmask_b32 v{SEL+d}, v{t2}, v{t0}, vcc")
        a(f"v_mov_b32 v{t0}, 0x3f803f80")
        self.build_A(ONES, t0)
    def kwave_addrs(self):
        a = self.a
        t0, t1, t2 = T[0], T[1], T[2]
        a(f"v_lshrrev_b32 v{t0}, 3, v0\nv_and_b32 v{t1}, 7, v0\ns_mov_b32 s58, {32*BS}\nv_mul_lo_u32 v{aROW}, s58, v{t0}\nv_lshl_add_u32 v{aROW}, v{t1}, 4, v{aROW}")
        a(f"v_mul_u32_u24 v{aX2}, {BS}, v{t1}\nv_lshrrev_b32 v{t1}, 4, v0\nv_lshl_add_u32 v{aX2}, v{t1}, 6, v{aX2}")
        a(f"s_lshl_b32 s58, s56, 2\ns_add_u32 s58, s58, s53\nv_add_u32 v{aX2}, s58, v{aX2}")
        a(f"v_bfe_u32 v{t0}, v0, 3, 1\nv_lshl_add_u32 v{t0}, v{t0}, 2, v{t1}\nv_mul_u32_u24 v{aQG}, {BS}, v{t0}")
        a(f"v_and_b32 v{t0}, 7, v0\nv_lshl_add_u32 v{aQG}, v{t0}, 4, v{aQG}")
        a(f"s_mul_i32 s58, s6, {8*BS}\ns_add_u32 s58, s58, s53\nv_add_u32 v{aQG}, s58, v{aQG}")
        a(f"v_and_b32 v{t0}, 3, v0\nv_lshlrev_b32 v{t0}, 4, v{t0}\nv_lshl_add_u32 v{t0}, v{t1}, 2, v{t0}\nv_bfe_u32 v{t2}, v0, 2, 2\nv_add_u32 v{t0}, v{t0}, v{t2}")
        a(f"v_bfe_u32 v{t2}, v{t0}, 1, 2\nv_lshlrev_b32 v{ldsP}, 5, v{t2}\nv_lshrrev_b32 v{t2}, 3, v{t0}\nv_lshl_add_u32 v{ldsP}, v{t2}, 2, v{ldsP}")
        a(f"v_and_b32 v{t2}, 1, v{t0}\nv_lshl_add_u32 v{ldsP}, v{t2}, 1, v{ldsP}")
        a(f"s_lshl_b32 s58, s3, 7\ns_add_u32 s58, s58, {L_P}\nv_add_u32 v{ldsP}, s58, v{ldsP}")
        a(f"v_and_b32 v{t0}, 15, v0\nv_mul_u32_u24 v{aML}, {BS}, v{t1}\nv_lshl_add_u32 v{aML}, v{t0}, 4, v{aML}")
        a(f"v_lshlrev_b32 v{aST}, 4, v{t0}\nv_lshl_add_u32 v{aST}, v{t1}, 2, v{aST}\nv_lshlrev_b32 v{aXS}, 3, v{t0}")
    def vwave_addrs(self):
        a = self.a
        a("v_and_b32 v1, 7, v0\nv_lshrrev_b32 v2, 3, v0\nv_lshrrev_b32 v3, 4, v0")
        a("s_min_u32 s61, s57, 2\ns_lshl_b32 s58, s61, 2\ns_and_b32 s60, s3, 3\ns_add_u32 s58, s58, s60\ns_mul_i32 s60, s58, 43\ns_lshr_b32 s60, s60, 7")
        a("s_mul_i32 s61, s60, 3\ns_sub_u32 s58, s58, s61")
        a(f"s_mul_i32 s60, s60, {8*BS}\ns_add_u32 s60, s60, s53\ns_lshl_b32 s58, s58, 7\ns_add_u32 s58, s58, s60")
        a(f"v_mul_u32_u24 v{aQG}, {BS}, v2\nv_lshl_add_u32 v{aQG}, v1, 4, v{aQG}\nv_add_u32 v{aQG}, s58, v{aQG}")
        a(f"v_lshl_add_u32 v{aML}, v3, 1, v0\nv_and_b32 v{aML}, 7, v{aML}\nv_lshlrev_b32 v{aML}, 3, v{aML}\nv_add_u32 v{aML}, s60, v{aML}")
        a(f"s_and_b32 s58, s3, 3\ns_lshl_b32 s58, s58, 7\ns_add_u32 s58, s58, {L_P}\nv_lshlrev_b32 v{ldsP}, 5, v3\nv_add_u32 v{ldsP}, s58, v{ldsP}")
        a(f"s_mul_i32 s58, s6, {8*BS}\ns_add_u32 s58, s58, s53\ns_and_b32 s60, s3, 3\ns_lshl_b32 s60, s60, 7\ns_add_u32 s58, s58, s60\ns_lshl_b32 s60, s7, 4\ns_add_u32 s58, s58, s60")
        a(f"v_mul_u32_u24 v{aST}, {BS}, v1\nv_lshl_add_u32 v{aST}, v3, 2, v{aST}\nv_add_u32 v{aST}, s58, v{aST}")
        a(f"s_mul_i32 s58, s7, {BS}\ns_add_u32 s58, s58, s53\nv_add_u32 v{aX2}, s58, v{lane4}")
        a(f"v_and_b32 v{aXS}, 15, v0\nv_lshlrev_b32 v{aXS}, 3, v{aXS}\nv_mov_b32 v{aROW}, 0")
    def k_dma(self):
        a = self.a
        t = T[0]; t2 = T[1]
        a(f"v_lshrrev_b32 v{t}, 3, v0\nv_and_b32 v{t2}, 6, v{t}\nv_xor_b32 v{t2}, v{t2}, v0\nv_and_b32 v{t2}, 7, v{t2}")
        a(f"v_mul_u32_u24 v{t}, 384, v{t}\nv_lshl_add_u32 v{t}, v{t2}, 4, v{t}")
        a("s_and_b32 s60, s3, 3\ns_mul_i32 s60, s60, 24576")
        a("s_barrier")
        for n in range(24):
            rg, th = divmod(n, 3)
            a(f"s_add_u32 s58, s59, {rg*8*384 + th*128}")
            a(f"s_add_u32 m0, s60, {L_K + n*1024}")
            a(f"buffer_load_dwordx4 v{t}, s[12:15], s58 offen nt lds")
    def k_to_regs(self):
        a = self.a
        t = T[0]; t2 = T[1]; t3 = T[2]
        a(f"v_and_b32 v{t}, 7, v0\nv_lshrrev_b32 v{t2}, 4, v0\nv_and_b32 v{t3}, 6, v0\nv_xor_b32 v{t2}, v{t2}, v{t3}")
        a(f"v_lshlrev_b32 v{t}, 7, v{t}\nv_bfe_u32 v{t3}, v0, 3, 1\nv_mul_u32_u24 v{t3}, 3072, v{t3}\nv_add_u32 v{t}, v{t}, v{t3}")
        a(f"s_mul_i32 s60, s3, 24576\nv_add_u32 v{t}, s60, v{t}")
        a(f"v_lshl_add_u32 v{t3}, v{t2}, 4, v{t}")
        a(f"v_xor_b32 v{t2}, 4, v{t2}\nv_lshl_add_u32 v{t2}, v{t2}, 4, v{t}")
        for tile in range(4):
            for u in range(6):
                off = L_K + (2 * tile * 3 + (u >> 1)) * 1024
                a(f"ds_read_b128 {q4(KV + (tile*6+u)*4)}, v{t2 if (u & 1) else t3} offset:{off}")
            if tile == 1: a("s_waitcnt lgkmcnt(0)")
        a("s_waitcnt lgkmcnt(0)")
    def wo_loads(self):
        a = self.a
        t1 = XA
        a(f"v_lshrrev_b32 v{t1}, 3, v0\nv_mul_u32_u24 v{t1}, 1280, v{t1}\nv_and_b32 v{XA+1}, 7, v0\nv_lshl_add_u32 v{t1}, v{XA+1}, 4, v{t1}")
        a("s_min_u32 s62, s57, 2\ns_mul_i32 s58, s4, 768\ns_lshl_b32 s60, s62, 8\ns_add_u32 s58, s58, s60\ns_and_b32 s60, s3, 3\ns_lshl_b32 s60, s60, 6\ns_add_u32 s58, s58, s60")
        a("s_mul_i32 s58, s58, 1280\ns_lshl_b32 s60, s56, 7\ns_add_u32 s58, s58, s60")
        for t in range(8):
            a(f"buffer_load_dwordx4 {q4(WB+4*t)}, v{t1}, s[24:27], s58 offen nt")
            if t < 7: a(f"s_add_u32 s58, s58, {8*1280}")
    def w1_loads(self):
        a = self.a
        t0, t1 = T[2], T[3]
        a(f"v_lshrrev_b32 v{t0}, 3, v0\nv_and_b32 v{t1}, 7, v0\nv_mul_u32_u24 v{t0}, 3072, v{t0}\nv_lshl_add_u32 v{t0}, v{t1}, 4, v{t0}")
        a(f"s_mul_i32 s58, s56, {64*3072}\ns_mul_i32 s60, s4, 384\ns_add_u32 s58, s58, s60\ns_lshl_b32 s60, s57, 7\ns_add_u32 s58, s58, s60")
        for t in range(8):
            a(f"buffer_load_dwordx4 {q4(WB+4*t)}, v{t0}, s[28:31], s58 offen nt")
            if t < 7: a(f"s_add_u32 s58, s58, {8*3072}")
    def w2_loads(self):
        a = self.a
        t0, t1 = T[2], T[3]
        a(f"v_lshrrev_b32 v{t0}, 3, v0\nv_and_b32 v{t1}, 7, v0\nv_mul_u32_u24 v{t0}, 1280, v{t0}\nv_lshl_add_u32 v{t0}, v{t1}, 4, v{t0}")
        a("s_mul_i32 s58, s4, 192\ns_lshl_b32 s60, s57, 6\ns_add_u32 s61, s58, s60\ns_mul_i32 s58, s61, 1280\ns_lshl_b32 s60, s56, 7\ns_add_u32 s58, s58, s60")
        for t in range(8):
            a(f"buffer_load_dwordx4 {q4(WB+4*t)}, v{t0}, s[36:39], s58 offen nt")
            if t < 7: a(f"s_add_u32 s58, s58, {8*1280}")
        a(f"v_bfe_u32 v{t0}, v0, 3, 1\nv_lshl_add_u32 v{t0}, v{t0}, 1, v{aP32}\ns_lshl_b32 s61, s61, 1")
        a(f"buffer_load_ushort v{B1V}, v{t0}, s[32:35], s61 offen")
    def clears(self, all_sc1):
        a = self.a
        C = XA + 4
        for i in range(4): a(f"v_mov_b32 v{C+i}, -1")
        a(f"v_lshlrev_b32 v{T[3]}, 4, v0")
        f = " sc1" if all_sc1 else ""
        a("s_mov_b32 exec_hi, 0")
        a(f"buffer_store_dwordx4 {q4(C)}, v{T[3]}, {WS}, s52 offen sc1")
        a("s_mov_b32 exec_lo, 0xffff")
        a(f"buffer_store_dwordx4 {q4(C)}, v{T[3]}, {WS}, s52 offen offset:2560{f}")
        a("s_mov_b64 exec, -1")
        for o in (512, 1536):
            a(f"buffer_store_dwordx4 {q4(C)}, v{T[3]}, {WS}, s52 offen offset:{o}{f}")
    def flag_store(self, base):
        a = self.a
        C = XA + 4
        if base == FL1:
            a("s_xor_b32 s58, s74, 0x5bd1e995\ns_andn2_b32 s58, s58, 15\ns_or_b32 s75, s75, s58")
        a(f"s_lshl_b32 s58, s4, 5\ns_add_u32 s58, s58, s5\ns_lshl_b32 s58, s58, 3\ns_add_u32 s58, s58, {base}")
        a(f"v_mov_b32 v{C}, s74\nv_mov_b32 v{C+1}, s75")
        a("s_mov_b64 exec, 1")
        a(f"buffer_store_dwordx2 v[{C}:{C+1}], v{aP32}, {WS}, s58 offen sc1")
        a("s_mov_b64 exec, -1")
    def flags_issue(self, base):
        a = self.a
        F = AB[0]
        a(f"v_lshlrev_b32 v{T[4]}, 5, v0\ns_mov_b32 s60, {base}")
        a(f"buffer_load_dwordx4 {q4(F)}, v{T[4]}, {WS}, s60 offen sc1\nbuffer_load_dwordx4 {q4(F+4)}, v{T[4]}, {WS}, s60 offen offset:16 sc1")
    def flags_wait(self, base, group_only):
        a = self.a
        F = AB[0]
        t, t2 = T[2], T[3]
        lp, lc, ld = self.L("fp"), self.L("fc"), self.L("fg")
        a("s_mov_b32 s70, 0\ns_or_b32 s61, s75, 15")
        if base == FL1: a(f"s_branch {lc}")
        a(f"{lp}:")
        self.flags_issue(base)
        a(f"{lc}:")
        a("s_waitcnt vmcnt(0)")
        a(f"v_xor_b32 v{t}, s74, v{F}")
        for i in range(1, 4):
            a(f"v_xor_b32 v{t2}, s74, v{F+2*i}\nv_or_b32 v{t}, v{t}, v{t2}")
        for i in range(4):
            a(f"v_or_b32 v{t2}, 15, v{F+2*i+1}\nv_xor_b32 v{t2}, s61, v{t2}\nv_or_b32 v{t}, v{t}, v{t2}")
        a(f"v_cmp_ne_u32 vcc, 0, v{t}")
        if group_only: a(f"s_and_b64 vcc, vcc, s[72:73]\ns_cbranch_scc0 {ld}")
        else: a(f"s_cbranch_vccz {ld}")
        a(f"s_sleep 16\ns_add_u32 s70, s70, 1\ns_cmp_lt_u32 s70, {POLL_LIMIT}\ns_cbranch_scc1 {lp}\n{ld}:")
    def flags_check(self):
        a = self.a
        F = AB[0]; t, t2 = T[2], T[3]
        lf = self.L("fast")
        a("s_lshl_b32 s58, s4, 3\ns_mov_b64 s[72:73], 0xff\ns_lshl_b64 s[72:73], s[72:73], s58")
        self.flags_wait(FL1, False)
        a(f"v_xor_b32 v{t}, s75, v{F+1}")
        for i in range(1, 4):
            a(f"v_xor_b32 v{t2}, s75, v{F+2*i+1}\nv_or_b32 v{t}, v{t}, v{t2}")
        a(f"v_cmp_ne_u32 vcc, 0, v{t}\ns_mov_b32 s55, 1\ns_and_b64 vcc, vcc, s[72:73]")
        if "forceslow" not in self.knobs: a(f"s_cbranch_scc0 {lf}")
        a("s_mov_b32 s55, 0")
        self.clears(True)
        a("s_waitcnt vmcnt(0)")
        self.flag_store(FL2)
        self.flags_wait(FL2, True)
        a(f"{lf}:")
        a(f"v_mov_b32 v{t}, s55\nv_mov_b32 v{T[3]}, {L_CTRL}\nds_write_b32 v{T[3]}, v{t} offset:4")
    def qproj(self, pair, s1, s2, pre_ops):
        a = self.a
        self.gemv_bcast(ACC, pair, WA, 10, fill=list(pre_ops) + self.ln_ops(s1, s2, T[2]))
        self.pair32(ACC, T[2], T[3])
        a(f"v_fma_f32 v{T[2]}, -v{s1}, v{CS0}, v{T[2]}\nv_fma_f32 v{T[3]}, -v{s1}, v{CS1}, v{T[3]}")
        a(f"v_mul_f32 v{T[2]}, v{T[2]}, v{s2}\nv_mul_f32 v{T[3]}, v{T[3]}, v{s2}")
        a(f"v_cvt_pk_bf16_f32 v{T[4]}, v{T[2]}, v{T[3]}")

    def gen(self):
        a = self.a
        a(f"; @launch grid=(256,1,1) block=(512,1,1) lds={LDS_BYTES}")
        a('.amdgcn_target "amdgcn-amd-amdhsa--gfx950"\n.text')
        a(f".globl {KNAME}\n.p2align 8\n.type {KNAME},@function")
        a(f"{KNAME}:")
        a("s_cmp_ge_u32 s2, 256\ns_cbranch_scc1 L_end")
        if self.prof:
            for i in range(13): a(f"s_mov_b64 s[{76+2*i}:{77+2*i}], 0")
        self.stamp(0)
        ptr = {12: 8, 20: 24, 8: 0, 48: 88, 16: 16, 24: 32, 28: 48, 32: 56, 36: 64, 40: 72}
        size = {8: 1280, 12: 100663296, 16: 100663296, 20: 7864320, 24: 7864320, 28: 1966080, 32: 3072, 36: 1966080, 40: 1280,
                48: (PROF_OFF + 256 * 8 * 2 * 64) if self.prof else WS_USED}
        for s, off in ptr.items():
            a(f"s_load_dwordx2 s[{s}:{s+1}], s[0:1], {off}")
        a("v_lshrrev_b32 v1, 6, v0\nv_and_b32 v0, 63, v0\nv_readfirstlane_b32 s3, v1")
        for s in ptr:
            a(f"s_mov_b32 s{s+2}, {size[s]}\ns_mov_b32 s{s+3}, 0x20000")
        a("s_and_b32 s4, s2, 7\ns_lshr_b32 s5, s2, 3\ns_lshr_b32 s6, s5, 3\ns_and_b32 s7, s5, 7")
        a(f"s_mul_i32 s53, s4, {32*BS}\ns_mul_i32 s52, s5, {BS}\ns_add_u32 s52, s52, s53")
        a("s_mov_b32 s54, 0\ns_mov_b32 s55, 0")
        a("s_getreg_b32 s75, hwreg(HW_REG_XCC_ID)\ns_and_b32 s75, s75, 15")
        a("s_cmp_ge_u32 s5, 10\ns_cselect_b32 s57, 1, 0\ns_cmp_ge_u32 s5, 20\ns_cselect_b32 s57, 2, s57\ns_cmp_ge_u32 s5, 30\ns_cselect_b32 s57, 3, s57")
        a("s_mul_i32 s58, s57, 10\ns_sub_u32 s56, s5, s58")
        a("s_mov_b32 s64, 0x00ff00ff\ns_mov_b32 s65, 0x00ff00ff")
        a("s_mov_b32 s66, 0xaaaaaaaa\ns_mov_b32 s67, 0xaaaaaaaa\ns_mov_b32 s68, 0xcccccccc\ns_mov_b32 s69, 0xcccccccc")
        a("s_mov_b32 s44, 0x03ff03ff\ns_mov_b32 s45, 0x03ff03ff\ns_mov_b32 s46, 1\ns_mov_b32 s47, 1")
        a("s_lshl_b32 s58, s4, 2\ns_add_u32 s58, s58, s6\ns_mul_i32 s59, s58, 3145728")
        a("s_lshl_b32 s58, s7, 8\ns_and_b32 s60, s3, 3\ns_lshl_b32 s60, s60, 6\ns_add_u32 s58, s58, s60\ns_add_u32 s58, s58, 6144\ns_mul_i32 s58, s58, 384\ns_add_u32 s59, s59, s58")
        a("v_and_b32 v1, 7, v0\nv_lshrrev_b32 v2, 3, v0\nv_lshrrev_b32 v3, 4, v0")
        a(f"v_lshlrev_b32 v{lane4}, 2, v0")
        a(f"v_lshlrev_b32 v{aP32}, 4, v1\nv_lshl_add_u32 v{aP32}, v3, 2, v{aP32}")
        a("s_waitcnt lgkmcnt(0)")
        a("s_cmp_ge_u32 s3, 4\ns_cbranch_scc1 L_pro_v")
        a(f"s_setprio 3\ns_mov_b32 s71, {GEN_OFF}")
        a("s_cmp_eq_u32 s3, 3\ns_cbranch_scc1 L_pro_c")
        a(f"s_buffer_load_dword s74, {WS}, s71")
        XS = GB
        a(f"v_lshlrev_b32 v{T[0]}, 4, v0")
        a(f"buffer_load_dwordx4 {q4(XS)}, v{T[0]}, s[8:11], 0 offen")
        a(f"buffer_load_dword v{XS+4}, v{lane4}, s[8:11], 0 offen offset:1024")
        a(f"v_and_b32 v{T[1]}, 15, v0\nv_lshlrev_b32 v{T[1]}, 7, v{T[1]}\nv_lshl_add_u32 v{T[1]}, v3, 2, v{T[1]}\ns_lshl_b32 s58, s7, 4")
        a(f"buffer_load_dword v{XA}, v{T[1]}, s[8:11], s58 offen")
        a(f"v_mul_u32_u24 v{T[2]}, 12288, v2\nv_lshl_add_u32 v{T[2]}, v1, 4, v{T[2]}")
        a(f"s_lshl_b32 s58, s4, 2\ns_add_u32 s58, s58, s6\ns_mul_i32 s58, s58, 384\ns_lshl_b32 s60, s3, 7\ns_add_u32 s58, s58, s60\ns_mul_i32 s60, s7, {8*12288}\ns_add_u32 s58, s58, s60")
        for t in range(10):
            a(f"buffer_load_dwordx4 {q4(WA+4*t)}, v{T[2]}, s[20:23], s58 offen nt")
            if t < 9: a(f"s_add_u32 s58, s58, {64*12288}")
        a("s_barrier")
        self.consts()
        self.kwave_addrs()
        self.make_tag()
        a("s_waitcnt vmcnt(11)")
        s1, s2 = T[0], T[1]
        a(f"v_mov_b32 v{s1}, 0\nv_mov_b32 v{s2}, 0")
        for i in range(5):
            a(f"v_lshlrev_b32 v{T[2]}, 16, v{XS+i}\nv_and_b32 v{T[3]}, 0xffff0000, v{XS+i}")
            a(f"v_add_f32 v{s1}, v{s1}, v{T[2]}\nv_fmac_f32 v{s2}, v{T[2]}, v{T[2]}\nv_add_f32 v{s1}, v{s1}, v{T[3]}\nv_fmac_f32 v{s2}, v{T[3]}, v{T[3]}")
        for x in self.red2_ops(s1, s2, (Q1, Q2, HM, RM), T[2]): a(x)
        a(f"v_readlane_b32 s58, v{s1}, 0\nv_readlane_b32 s60, v{s1}, 32")
        a(f"v_mov_b32 v{s1}, s58\nv_mov_b32 v{s2}, s60")
        a("s_waitcnt vmcnt(0)")
        self.stamp(1)
        for t in range(10):
            self.mfma(ACC + 4, ONES, WA + 4 * t, t == 0)
        self.pair32(ACC + 4, CS0, CS1)
        self.qproj(XA, s1, s2, [])
        a(f"v_mov_b32 v{GB}, v{T[4]}\nv_mov_b32 v{GB+1}, s74\nv_lshlrev_b32 v{T[2]}, 1, v{aP32}")
        a("s_lshl_b32 s60, s3, 8\ns_add_u32 s58, s52, s60")
        a("s_mov_b64 exec, s[64:65]")
        a(f"buffer_store_dwordx2 v[{GB}:{GB+1}], v{T[2]}, {WS}, s58 offen offset:{QP0T+768}")
        a(f"buffer_store_dwordx2 v[{GB}:{GB+1}], v{T[2]}, {WS}, s58 offen offset:{QP0T} sc1")
        a("s_mov_b64 exec, -1")
        self.stamp(3)
        a(f"s_mul_i32 s58, s3, 10752\ns_add_u32 s58, s58, {L_WQ}\nv_lshlrev_b32 v{T[0]}, 4, v0\nv_add_u32 v{T[0]}, s58, v{T[0]}")
        for t in range(10):
            a(f"ds_write_b128 v{T[0]}, {q4(WA+4*t)} offset:{1024*t}")
        a(f"v_add_u32 v{T[1]}, s58, v{lane4}\nds_write_b32 v{T[1]}, v{CS0} offset:10240\nds_write_b32 v{T[1]}, v{CS1} offset:10496")
        a("s_branch L_bk")
        a("L_pro_c:")
        a(f"v_mov_b32 v{T[0]}, 0")
        a("s_mov_b64 exec, 0xffff")
        a(f"ds_write_b32 v{lane4}, v{T[0]} offset:{L_CTRL}")
        a("s_mov_b64 exec, -1")
        self.clears(False)
        a(f"s_lshl_b32 s58, s56, 7\nbuffer_load_dword v{GB+4}, v{aP32}, s[8:11], s58 offen")
        a("s_waitcnt lgkmcnt(0)\ns_barrier")
        a(f"s_buffer_load_dword s74, {WS}, s71")
        self.consts()
        self.kwave_addrs()
        self.make_tag()
        QA = [XA + i for i in range(3)]
        a(f"s_mul_i32 s62, s6, {8*BS}\ns_add_u32 s62, s62, s53")
        for n in range(3):
            a(f"v_add_u32 v{T[0]}, {64*n}, v0\nv_mul_u32_u24 v{T[1]}, 0x556, v{T[0]}\nv_lshrrev_b32 v{T[1]}, 16, v{T[1]}")
            a(f"v_mul_u32_u24 v{T[2]}, {BS - 768}, v{T[1]}\nv_lshl_add_u32 v{QA[n]}, v{T[0]}, 4, v{T[2]}")
        a("s_waitcnt vmcnt(0)")
        self.flag_store(FL1)
        self.stamp(1)
        for x in self.unpackX_ops(GB + 4): a(x)
        lp, ld = self.L("poll"), self.L("got")
        SETS = [[WA + 24 * k + 4 * i for i in range(6)] for k in range(3)]
        def qissue(k):
            if k < 2: a("s_add_u32 s58, s62, 768")
            else: a("s_and_b32 s58, s70, 1\ns_cmp_eq_u32 s58, 1\ns_cselect_b32 s58, 0, 768\ns_add_u32 s58, s58, s62")
            a(f"s_add_u32 s60, s58, {4*BS}")
            for n in range(6):
                a(f"buffer_load_dwordx4 {q4(SETS[k][n])}, v{QA[n%3]}, {WS}, s{58 if n < 3 else 60} offen offset:{QP0T} sc1")
        a(f"s_mov_b32 s70, 0\ns_sleep {self.QSLEEP0}")
        qissue(0); a(f"s_sleep {self.QSLEEP1}"); qissue(1); a(f"s_sleep {self.QSLEEP1}"); qissue(2)
        gots = [self.L("qg") for _ in range(3)]
        a(f"{lp}:")
        for k in range(3):
            a("s_waitcnt vmcnt(12)")
            a(f"v_mov_b32 v{T[0]}, s74\nv_mov_b32 v{T[1]}, s74")
            for r in SETS[k]:
                a(f"v_min3_u32 v{T[0]}, v{T[0]}, v{r+1}, v{r+3}\nv_max3_u32 v{T[1]}, v{T[1]}, v{r+1}, v{r+3}")
            a(f"v_cmp_ne_u32 vcc, v{T[0]}, v{T[1]}\ns_cbranch_vccz {gots[k]}")
            if k == 2: a("s_add_u32 s70, s70, 1")
            qissue(k)
        a(f"s_cmp_lt_u32 s70, {POLL_LIMIT}\ns_cbranch_scc1 {lp}")
        for k in range(3):
            a(f"{gots[k]}:")
            a(f"v_lshlrev_b32 v{T[0]}, 3, v0\nv_add_u32 v{T[0]}, {L_Q}, v{T[0]}")
            for n in range(6):
                if n % 2 == 0 and n: a(f"v_add_u32 v{T[0]}, 1024, v{T[0]}")
                a(f"ds_write2_b32 v{T[0]}, v{SETS[k][n]}, v{SETS[k][n]+2} offset0:{128*(n%2)} offset1:{128*(n%2)+1}")
            if k < 2: a(f"s_branch {ld}")
        a(f"{ld}:")
        a(f"v_mov_b32 v{T[2]}, 1\nv_mov_b32 v{T[3]}, {L_CTRL+32}\ns_waitcnt lgkmcnt(0)\nds_write_b32 v{T[3]}, v{T[2]}")
        self.stamp(2)
        a("L_bk:")
        a(f"s_lshl_b32 s60, s3, 2\ns_add_u32 s60, s60, {L_CTRL+16}")
        self.lds_wait_flag("s60")
        self.stamp(10)
        a("s_cmp_lg_u32 s3, 3\ns_cbranch_scc1 L_bk_nf")
        self.flags_issue(FL1)
        a("L_bk_nf:")
        self.k_to_regs()
        self.lds_wait_flag(L_CTRL + 32)
        self.stamp(11)
        a(f"v_and_b32 v{T[3]}, 7, v0\nv_mul_u32_u24 v{T[3]}, 384, v{T[3]}\nv_lshrrev_b32 v{T[4]}, 4, v0\nv_lshl_add_u32 v{T[3]}, v{T[4]}, 4, v{T[3]}")
        a(f"v_and_b32 v{T[4]}, 8, v0\nv_lshl_add_u32 v{T[3]}, v{T[4]}, 3, v{T[3]}")
        for u in range(3):
            a(f"ds_read_b128 {q4(GB+4*u)}, v{T[3]} offset:{L_Q + 128*u}")
        a("s_waitcnt lgkmcnt(0)")
        a("s_branch L_qk")

        a("L_kloop:")
        a("s_cmp_lg_u32 s3, 3\ns_cbranch_scc1 L_k_b1")
        a("s_cmp_ge_u32 s5, 10\ns_cbranch_scc1 L_k_pt")
        self.zgather(0, self.ZSL)
        s1, s2 = T[0], T[1]
        a("s_mov_b64 exec, s[64:65]")
        self.local_stores([f"buffer_store_dword v{T[4]}, v{aX2}, {WS}, 0 offen offset:{X2O}{{f}}"])
        a("s_mov_b64 exec, -1")
        for x in self.unpackX_ops(T[4]) + self.xstats_ops(s1, s2, T[2]): a(x)
        a(f"v_lshrrev_b32 v{T[2]}, 3, v0\nv_and_b32 v{T[2]}, 4, v{T[2]}\ns_lshl_b32 s58, s56, 3\ns_add_u32 s58, s58, s53\ns_add_u32 s58, s58, {7*BS}")
        a("s_mov_b64 exec, s[46:47]")
        self.local_stores([f"buffer_store_dword v{s1}, v{T[2]}, {WS}, s58 offen offset:{MISC}{{f}}"])
        a("s_mov_b64 exec, -1")
        self.stamp(2)
        a("L_k_pt:")
        a("L_k_b1:")
        a("s_barrier")
        self.sleep(self.QSL)
        self.poll([f"buffer_load_dwordx4 {q4(GB+4*u)}, v{aQG}, {WS}, 0 offen offset:{QP1 + 128*u} sc1" for u in range(3)], range(GB, GB + 12))
        a("L_qk:")
        self.stamp(4)
        R = [XA, XA + 1, XA + 2, XA + 3]
        DE = [ACC, ACC + 8]; DO = [ACC + 4, ACC + 12]
        def lvl_ops(t):
            e, o = DE[t & 1], DO[t & 1]
            hm = lambda d, srcr, bank: f"v_add_f32_dpp v{d}, v{srcr}, v{srcr} row_half_mirror row_mask:0xf bank_mask:{hex(1<<bank)}"
            return [hm(T[2], e + 2, 0), hm(T[2], e + 3, 1), hm(R[t], e, 0), hm(R[t], e + 1, 1),
                    hm(T[2], o, 2), hm(T[2], o + 1, 3), hm(R[t], o + 2, 2), hm(R[t], o + 3, 3),
                    f"v_add_f32_dpp v{R[t]}, v{T[2]}, v{R[t]} row_ror:8 {DPPALL}",
                    f"v_add_f32_dpp v{R[t]}, v{R[t]}, v{R[t]} {Q1} {DPPALL}",
                    f"v_add_f32_dpp v{R[t]}, v{R[t]}, v{R[t]} {Q2} {DPPALL}"]
        pend = []
        for t in range(4):
            for u in range(6):
                self.mfma((DO if u & 1 else DE)[t & 1], KV + (t * 6 + u) * 4, GB + 4 * (u >> 1), u < 2)
                if u >= 2:
                    for _ in range(3 if u < 5 else 2):
                        if pend: a(pend.pop(0))
            pend = lvl_ops(t)
            if t == 2: pend.append(f"v_cndmask_b32 v{R[0]}, v{R[0]}, v{R[1]}, s[66:67]") if False else None
        for x in pend: a(x)
        S = T[0]; M = T[1]
        a(f"v_cndmask_b32 v{R[0]}, v{R[0]}, v{R[1]}, s[66:67]\nv_cndmask_b32 v{R[2]}, v{R[2]}, v{R[3]}, s[66:67]\nv_cndmask_b32 v{S}, v{R[0]}, v{R[2]}, s[68:69]")
        a(f"v_mul_f32 v{S}, 0x3dd53b95, v{S}")
        a(f"v_max_f32_dpp v{M}, v{S}, v{S} {Q1} {DPPALL}")
        for c in (Q2, HM, RM):
            a(f"v_max_f32_dpp v{M}, v{M}, v{M} {c} {DPPALL}")
        a(f"v_mov_b32 v{T[2]}, v{M}\nv_permlane16_swap_b32 v{M}, v{T[2]}\nv_max_f32 v{M}, v{M}, v{T[2]}")
        a(f"v_mov_b32 v{T[2]}, v{M}\nv_permlane32_swap_b32 v{M}, v{T[2]}\nv_max_f32 v{M}, v{M}, v{T[2]}")
        a(f"v_sub_f32 v{S}, v{S}, v{M}\nv_exp_f32 v{S}, v{S}")
        a(f"v_cvt_pk_bf16_f32 v{S}, v{S}, v{S}")
        a(f"ds_write_b16 v{ldsP}, v{S}")
        a("s_waitcnt lgkmcnt(0)")
        self.stamp(5)
        a("s_barrier")
        a(f"v_lshlrev_b32 v{S}, 16, v{S}")
        self.allred64("v_add_f32", S, T[2])
        a(f"s_lshl_b32 s58, s3, 3\nv_mov_b32 v{T[2]}, s58")
        a("s_mov_b64 exec, 1")
        a(f"ds_write_b32 v{T[2]}, v{M} offset:{L_ML}\nds_write_b32 v{T[2]}, v{S} offset:{L_ML+4}")
        a("s_mov_b64 exec, -1")
        a("s_cmp_lg_u32 s3, 3\ns_cbranch_scc1 L_k_b3")
        a("s_cmp_lg_u32 s54, 0\ns_cbranch_scc1 L_c_x2")
        self.flags_check()
        a("s_branch L_c_b3")
        a("L_c_x2:")
        a("s_cmp_lt_u32 s5, 10\ns_cbranch_scc1 L_c_b3")
        self.poll([f"buffer_load_dword v{GB}, v{aX2}, {WS}, 0 offen offset:{X2O} sc1"], [GB])
        for x in self.unpackX_ops(GB): a(x)
        a("L_c_b3:")
        a("s_waitcnt lgkmcnt(0)\ns_barrier")
        a("s_cmp_ge_u32 s5, 30\ns_cbranch_scc1 L_k_next")
        a("s_barrier")
        a("s_cmp_lg_u32 s54, 0\ns_cbranch_scc1 L_p4_nocs")
        self.w1_loads()
        yl = self.rows24_loads(YO)
        self.sleep(self.YSL0)
        for x in yl: a(x)
        a("s_mov_b32 s70, 0\ns_waitcnt vmcnt(3)")
        for t in range(8): self.mfma(ACC, ONES, WB + 4 * t, t == 0)
        self.l64(ACC, CS0)
        self.local_stores([f"buffer_store_dword v{CS0}, v{aST}, {WS}, s52 offen offset:{HPC}{{f}}"])
        a("s_branch L_p4_chk")
        a("L_p4_nocs:")
        yl = self.rows24_loads(YO)
        self.sleep(self.YSL)
        self.poll(yl, range(GB, GB + 12), entry="L_p4_chk")
        for n in range(3): self.mfma(ACC, ONES, GB + 4 * n, n == 0)
        a("s_barrier")
        self.stamp(8)
        self.sel_layer(58, HPR, 52)
        a(f"s_mul_i32 s60, s54, 3\ns_add_u32 s60, s60, s57\ns_add_u32 s60, s60, 1\ns_mul_i32 s60, s60, {BS}\ns_add_u32 s60, s60, s53\ns_lshl_b32 s61, s56, 3\ns_add_u32 s60, s60, s61")
        self.resid_add()
        s1, s2 = T[0], T[1]
        self.gemv_bcast(ACC + 4, T[4], WB, 8, fill=self.unpackX_ops(T[4]) + self.xstats_ops(s1, s2, T[2]) + [f"v_lshrrev_b32 v{T[2]}, 3, v0", f"v_and_b32 v{T[2]}, 4, v{T[2]}"])
        self.l64(ACC + 4, T[3])
        self.local_stores([f"buffer_store_dword v{T[3]}, v{aST}, {WS}, s58 offen{{f}}", "s_mov_b64 exec, s[46:47]",
                           f"buffer_store_dword v{s1}, v{T[2]}, {WS}, s60 offen offset:{MISC}{{f}}"])
        a("s_mov_b64 exec, -1")
        self.stamp(9)
        self.dump0()
        a("s_barrier")
        a("s_cmp_lg_u32 s54, 0\ns_cbranch_scc1 L_final\ns_mov_b32 s54, 1\ns_branch L_kloop")
        a("L_k_b3:")
        a(f"s_lshl_b32 s58, s3, 8\nv_add_u32 v{T[3]}, s58, v{lane4}\nv_mov_b32 v{T[4]}, {L_ML}\nv_mov_b32 v{T[2]}, {L_CTRL+4}")
        self.sel_layer(58, OP, 52)
        a("s_lshl_b32 s60, s3, 7\ns_add_u32 s60, s60, s58")
        a(f"s_mul_i32 s61, s7, {BS - 8}\ns_sub_u32 s61, s52, s61\ns_lshl_b32 s58, s54, 6\ns_add_u32 s61, s61, s58")
        a("s_waitcnt lgkmcnt(0)\ns_barrier")
        self.stamp(6)
        a(f"ds_read_b128 {q4(GB)}, v{T[4]}\nds_read_b128 {q4(GB+4)}, v{T[4]} offset:16")
        for w in range(4):
            a(f"ds_read_b32 v{GB+8+w}, v{T[3]} offset:{L_O + 768*w}")
        a(f"ds_read_b32 v{T[2]}, v{T[2]}")
        a("s_waitcnt lgkmcnt(0)")
        M = GB + 12; Lr = GB + 13
        a(f"v_max3_f32 v{M}, v{GB}, v{GB+2}, v{GB+4}\nv_max_f32 v{M}, v{M}, v{GB+6}")
        a(f"v_readfirstlane_b32 s55, v{T[2]}")
        for w in range(4): a(f"v_sub_f32 v{GB+2*w}, v{GB+2*w}, v{M}")
        for w in range(4): a(f"v_exp_f32 v{GB+2*w}, v{GB+2*w}")
        a(f"v_mul_f32 v{Lr}, v{GB}, v{GB+1}\nv_mul_f32 v{T[0]}, v{GB}, v{GB+8}")
        for w in range(1, 4):
            a(f"v_fmac_f32 v{Lr}, v{GB+2*w}, v{GB+2*w+1}\nv_fmac_f32 v{T[0]}, v{GB+2*w}, v{GB+8+w}")
        a(f"v_rcp_f32 v{T[1]}, v{Lr}\nv_mul_f32 v{T[0]}, v{T[0]}, v{T[1]}")
        a(f"v_mov_b32_dpp v{T[1]}, v{T[0]} row_ror:8 {DPPALL}\nv_cvt_pk_bf16_f32 v{T[0]}, v{T[0]}, v{T[1]}")
        a("s_mov_b64 exec, s[64:65]")
        lz = self.L("z")
        self.local_stores([f"buffer_store_dword v{T[0]}, v{aP32}, {WS}, s60 offen{{f}}"])
        a(f"s_cmp_lg_u32 s3, 1\ns_cbranch_scc1 {lz}\ns_mov_b64 exec, 1")
        self.local_stores([f"buffer_store_dwordx2 v[{M}:{Lr}], v{aP32}, {WS}, s61 offen offset:{MISC}{{f}}"])
        a(f"{lz}:\ns_mov_b64 exec, -1")
        self.stamp(7)
        a("s_cmp_ge_u32 s5, 30\ns_cbranch_scc1 L_k_next")
        a("s_barrier")
        a("s_cmp_eq_u32 s3, 0\ns_cbranch_scc1 L_p5")
        a("s_cmp_lg_u32 s3, 1\ns_cbranch_scc1 L_k_b5")
        self.sel_layer(58, HPR, 52)
        a(f"v_lshlrev_b32 v{T[0]}, 7, v0\ns_mov_b64 exec, 3")
        a(f"buffer_load_dword v{GB}, v{T[0]}, {WS}, s58 offen sc1\nbuffer_load_dword v{GB+1}, v{T[0]}, {WS}, s52 offen offset:{HPC} sc1")
        a(f"buffer_load_dword v{GB+2}, v{lane4}, {WS}, s52 offen offset:{MISC} sc1\ns_mov_b64 exec, -1")
        a("L_k_b5:")
        a("s_barrier\ns_barrier")
        a("s_branch L_k_next")
        a("L_p5:")
        a(f"s_mul_i32 s62, s57, {10*BS}\ns_add_u32 s62, s62, s53")
        def hp_gather(with_stats, slp=0):
            for i in range(8, 14): a(f"v_mov_b32 v{GB+i}, 0")
            loads = [f"buffer_load_dwordx4 {q4(GB)}, v{aML}, {WS}, s58 offen sc1",
                     f"buffer_load_dwordx4 {q4(GB+4)}, v{aML}, {WS}, s60 offen sc1",
                     "s_mov_b32 exec_hi, 0",
                     f"buffer_load_dwordx4 {q4(GB+8)}, v{aML}, {WS}, s61 offen sc1"]
            if with_stats:
                loads += ["s_mov_b64 exec, s[44:45]", f"buffer_load_dwordx2 v[{GB+12}:{GB+13}], v{aXS}, {WS}, s63 offen offset:{MISC} sc1"]
            loads += ["s_mov_b64 exec, -1"]
            return loads, range(GB, GB + (14 if with_stats else 12))
        def hp_reduce_ops(dst):
            o = [f"v_add_f32 v{GB+i}, v{GB+i}, v{GB+4+i}" for i in range(4)] + [f"v_add_f32 v{GB+i}, v{GB+i}, v{GB+8+i}" for i in range(4)]
            o += [f"v_permlane32_swap_b32 v{GB}, v{GB+2}", f"v_permlane32_swap_b32 v{GB+1}, v{GB+3}",
                  f"v_add_f32 v{GB}, v{GB}, v{GB+2}", f"v_add_f32 v{GB+1}, v{GB+1}, v{GB+3}",
                  f"v_permlane16_swap_b32 v{GB}, v{GB+1}", f"v_add_f32 v{dst}, v{GB}, v{GB+1}"]
            return o
        a("s_cmp_lg_u32 s54, 0\ns_cbranch_scc1 L_p5_nocs")
        self.w2_loads()
        a(f"s_add_u32 s58, s62, {HPC}\ns_add_u32 s60, s58, {4*BS}\ns_add_u32 s61, s58, {8*BS}")
        a("s_barrier")
        ld_, rg_ = hp_gather(False)
        self.poll(ld_, rg_)
        for x in hp_reduce_ops(CSW1): a(x)
        a(f"v_lshlrev_b32 v{B1V}, 16, v{B1V}")
        a("s_branch L_p5_g")
        a("L_p5_nocs:")
        a("s_barrier")
        self.sleep(self.HSL)
        a("L_p5_g:")
        self.sel_layer(58, HPR, 62)
        a(f"s_add_u32 s60, s58, {4*BS}\ns_add_u32 s61, s58, {8*BS}")
        a(f"s_mul_i32 s63, s54, 3\ns_add_u32 s63, s63, s57\ns_add_u32 s63, s63, 1\ns_mul_i32 s63, s63, {BS}\ns_add_u32 s63, s63, s53")
        ld_, rg_ = hp_gather(True)
        self.poll(ld_, rg_)
        self.stamp(8)
        s1, s2 = GB + 12, GB + 13
        H = T[0]
        c1 = self.row16_ops(s1, s2) + self.ln_ops(s1, s2, T[5])
        c2 = hp_reduce_ops(H)
        while c1 or c2:
            if c1: a(c1.pop(0))
            if c1 and len(c1) > 14: a(c1.pop(0))
            if c2: a(c2.pop(0))
        self.sel_layer(58, ZO, 52)
        a(f"v_fma_f32 v{H}, -v{s1}, v{CSW1}, v{H}\nv_mul_f32 v{H}, v{H}, v{s2}")
        self.bf16r(H, H)
        a(f"v_add_f32 v{H}, v{H}, v{B1V}")
        self.bf16r(H, H)
        E = T[1]; N = T[2]; Dn = T[3]
        a(f"v_mul_f32 v{E}, 0x3fb8aa3b, v{H}\nv_exp_f32 v{E}, -|v{E}|")
        a(f"v_cmp_gt_f32 vcc, 0, v{H}\nv_mov_b32 v{T[4]}, 2.0")
        a(f"v_fma_f32 v{N}, v{E}, 2.0, 1.0\nv_add_f32 v{Dn}, 2.0, v{E}\nv_mul_f32 v{Dn}, v{Dn}, v{E}")
        a(f"v_mul_f32 v{E}, v{E}, v{E}\nv_add_f32 v{E}, v{E}, v{E}")
        a(f"v_cndmask_b32 v{N}, v{N}, v{Dn}, vcc\nv_cndmask_b32 v{E}, v{E}, v{T[4]}, vcc")
        a(f"v_add_f32 v{Dn}, v{N}, v{E}\nv_rcp_f32 v{Dn}, v{Dn}\nv_mul_f32 v{N}, v{N}, v{H}\nv_mul_f32 v{N}, v{N}, v{Dn}")
        a(f"v_mov_b32_dpp v{E}, v{N} row_ror:8 {DPPALL}\nv_cvt_pk_bf16_f32 v{T[4]}, v{N}, v{E}")
        self.gemv_bcast(ACC, T[4], WB, 8)
        self.pair32(ACC, T[0], T[1])
        a(f"v_cvt_pk_bf16_f32 v{T[0]}, v{T[0]}, v{T[1]}")
        a("s_mov_b64 exec, s[64:65]")
        a(f"buffer_store_dword v{T[0]}, v{aP32}, {WS}, s58 offen sc1")
        a("s_mov_b64 exec, -1")
        self.stamp(9)
        a("s_barrier")
        a("L_k_next:")
        a("s_cmp_lg_u32 s54, 0\ns_cbranch_scc1 L_final")
        self.dump_stamps()
        a("s_mov_b32 s54, 1")
        a("s_cmp_lg_u32 s3, 2\ns_cbranch_scc1 L_kloop")
        for u in range(3):
            a(f"buffer_load_dword v{GB+4+u}, v{aQG}, {WS}, 0 offen offset:{QP1 + 128*u} sc1")
        a("s_branch L_kloop")
        a("L_final:")
        a("s_cmp_lg_u32 s3, 3\ns_cbranch_scc1 L_fin2\ns_cmp_lg_u32 s4, 0\ns_cbranch_scc1 L_fin2\ns_cmp_ge_u32 s5, 10\ns_cbranch_scc1 L_fin2")
        self.zgather(1, self.FSL)
        a("s_lshl_b32 s58, s5, 7")
        a("s_mov_b64 exec, s[64:65]")
        a(f"buffer_store_dword v{T[4]}, v{aP32}, s[40:43], s58 offen")
        a("s_cmp_lg_u32 s2, 0\ns_cbranch_scc1 L_fin1")
        a(f"s_mov_b64 exec, 1\nv_mov_b32 v{T[0]}, s74\nv_mov_b32 v{T[1]}, {GEN_OFF}")
        a(f"buffer_store_dword v{T[0]}, v{T[1]}, {WS}, 0 offen sc1")
        a("L_fin1:")
        a("s_mov_b64 exec, -1")
        self.stamp(11)
        a("L_fin2:")
        self.dump_stamps()
        a("s_endpgm")

        a("L_pro_v:")
        self.k_dma()
        a(f"v_mul_u32_u24 v{T[0]}, 384, v2\nv_lshl_add_u32 v{T[0]}, v1, 4, v{T[0]}")
        for n in range(24):
            rg, th = divmod(n, 3)
            if n == self.NB:
                a(f"s_lshl_b32 s60, s3, 2\nv_mov_b32 v{T[2]}, s60\nv_mov_b32 v{T[3]}, 1")
                a(f"s_waitcnt vmcnt({self.NB})\nds_write_b32 v{T[2]}, v{T[3]} offset:{L_CTRL}")
                self.stamp(11)
            if th == 0: a(f"s_add_u32 s58, s59, {rg*8*384}")
            a(f"buffer_load_dwordx4 {q4(KV+4*n)}, v{T[0]}, s[16:19], s58 offen offset:{th*128} nt")
        self.stamp(1)
        self.consts()
        self.vwave_addrs()
        a("s_branch L_v_b2")
        a("L_vloop:")
        a(f"buffer_load_dword v{XA+2}, v{aQG}, {WS}, 0 offen offset:{OP[1]} sc1")
        a("s_cmp_eq_u32 s3, 7\ns_cbranch_scc1 L_v7_b1")
        a(f"v_mov_b32 v{GB}, 0\nv_mov_b32 v{GB+2}, 0\nv_mov_b32 v{GB+3}, 0\ns_add_u32 s58, s53, {7*BS}")
        self.sleep(self.XSL)
        self.poll(["s_mov_b64 exec, s[44:45]", f"buffer_load_dword v{GB}, v{aX2}, {WS}, 0 offen offset:{X2O} sc1",
                   f"buffer_load_dwordx2 v[{GB+2}:{GB+3}], v{aXS}, {WS}, s58 offen offset:{MISC} sc1", "s_mov_b64 exec, -1"], [GB, GB + 2, GB + 3], slp=1)
        a("s_barrier")
        self.stamp(1)
        self.qproj(GB, GB + 2, GB + 3, self.row16_ops(GB + 2, GB + 3))
        a("s_mov_b64 exec, s[64:65]")
        self.local_stores([f"buffer_store_dword v{T[4]}, v{aST}, {WS}, 0 offen offset:{QP1}{{f}}"])
        a("s_mov_b64 exec, -1")
        self.stamp(3)
        a("s_branch L_v_b2")
        a("L_v7_b1:")
        a("s_barrier")
        a("L_v_b2:")
        a(f"s_and_b32 s58, s3, 3\ns_mul_i32 s58, s58, 768\nv_add_u32 v{T[3]}, s58, v{lane4}")
        a("s_barrier")
        self.stamp(5)
        a(f"ds_read_b128 {q4(GB)}, v{ldsP}\nds_read_b128 {q4(GB+4)}, v{ldsP} offset:16")
        a("s_cmp_lg_u32 s54, 0\ns_cbranch_scc1 L_v_nowo")
        self.wo_loads()
        a("L_v_nowo:")
        a("s_waitcnt lgkmcnt(0)")
        self.build_A(AB[0], GB)
        for G in range(8):
            a(f"s_waitcnt vmcnt({8 + 21 - 3*G})")
            for th in range(3):
                self.mfma(ACC + 4 * th, AB[G & 1], KV + (G * 3 + th) * 4, G == 0)
                if G + 1 < 8 and th < 2:
                    for d in (2 * th, 2 * th + 1):
                        a(f"v_perm_b32 v{AB[(G+1)&1]+d}, v{GB+G+1}, v{GB+G+1}, v{SEL+d}")
        for th in range(3):
            self.l64(ACC + 4 * th, T[th])
            a(f"ds_write_b32 v{T[3]}, v{T[th]} offset:{L_O + 256*th}")
        self.sel_layer(58, OP)
        a("s_lshl_b32 s60, s54, 6")
        a("s_waitcnt lgkmcnt(0)\ns_barrier")
        self.stamp(6)
        a("s_cmp_ge_u32 s5, 30\ns_cbranch_scc1 L_v_next")
        self.sleep(self.OSL)
        self.poll([f"buffer_load_dwordx4 {q4(GB)}, v{aQG}, {WS}, s58 offen sc1",
                   f"buffer_load_dwordx2 v[{GB+4}:{GB+5}], v{aML}, {WS}, s60 offen offset:{MISC} sc1"], range(GB, GB + 6))
        self.stamp(8)
        M = T[0]; W = T[1]
        a(f"v_max_f32_dpp v{M}, v{GB+4}, v{GB+4} {Q1} {DPPALL}")
        a(f"v_max_f32_dpp v{M}, v{M}, v{M} {Q2} {DPPALL}\nv_max_f32_dpp v{M}, v{M}, v{M} {HM} {DPPALL}")
        a(f"v_sub_f32 v{W}, v{GB+4}, v{M}\nv_exp_f32 v{W}, v{W}\nv_mul_f32 v{W}, v{W}, v{GB+5}")
        a(f"v_mov_b32_dpp v{T[2]}, v{W} row_newbcast:0 {DPPALL}\nv_mov_b32_dpp v{T[3]}, v{W} row_newbcast:1 {DPPALL}")
        a(f"v_cvt_pk_bf16_f32 v{T[2]}, v{T[2]}, v{T[3]}")
        self.build_A(AB[0], T[2])
        self.bf16r(W, W)
        self.mfma(ACC, AB[0], GB, True)
        for c in (Q1, Q2, HM):
            a(f"v_add_f32_dpp v{W}, v{W}, v{W} {c} {DPPALL}")
        a(f"v_rcp_f32 v{W}, v{W}")
        self.pair32(ACC, T[2], T[3])
        a(f"v_mul_f32 v{T[2]}, v{T[2]}, v{W}\nv_mul_f32 v{T[3]}, v{T[3]}, v{W}\nv_cvt_pk_bf16_f32 v{T[4]}, v{T[2]}, v{T[3]}")
        self.gemv_bcast(ACC + 4, T[4], WB, 8)
        a(f"s_and_b32 s58, s3, 3\ns_lshl_b32 s58, s58, 8\nv_add_u32 v{T[3]}, s58, v{lane4}")
        self.l64(ACC + 4, T[0])
        a(f"ds_write_b32 v{T[3]}, v{T[0]} offset:{L_YR}")
        self.sel_layer(58, YO, 52)
        a("s_waitcnt lgkmcnt(0)\ns_barrier")
        a("s_cmp_lg_u32 s3, 7\ns_cbranch_scc1 L_v_b5")
        for w in range(4): a(f"ds_read_b32 v{GB+w}, v{lane4} offset:{L_YR + 256*w}")
        a("s_waitcnt lgkmcnt(0)")
        a(f"v_add_f32 v{GB}, v{GB}, v{GB+1}\nv_add_f32 v{GB+2}, v{GB+2}, v{GB+3}\nv_add_f32 v{T[0]}, v{GB}, v{GB+2}")
        a(f"v_mov_b32_dpp v{T[1]}, v{T[0]} row_ror:8 {DPPALL}\nv_cvt_pk_bf16_f32 v{T[0]}, v{T[0]}, v{T[1]}")
        a("s_mov_b64 exec, s[64:65]")
        a(f"buffer_store_dword v{T[0]}, v{aP32}, {WS}, s58 offen sc1")
        a("s_mov_b64 exec, -1")
        self.stamp(9)
        a("L_v_b5:")
        a("s_cmp_lg_u32 s54, 0\ns_cbranch_scc1 L_v_b5b")
        self.v_fetch_wq()
        self.dump_stamps()
        a("L_v_b5b:")
        a("s_barrier\ns_barrier")
        a("s_cmp_lg_u32 s54, 0\ns_cbranch_scc1 L_fin2")
        a("s_mov_b32 s54, 1\ns_branch L_vloop")
        a("L_v_next:")
        a("s_cmp_lg_u32 s54, 0\ns_cbranch_scc1 L_fin2")
        self.v_fetch_wq()
        self.dump_stamps()
        a("s_mov_b32 s54, 1\ns_sleep 48\ns_branch L_vloop")
        a("L_end:\ns_endpgm")
        a('.section .rodata,"a"\n.p2align 6')
        a(f".amdhsa_kernel {KNAME}")
        a(".amdhsa_next_free_vgpr 256\n.amdhsa_next_free_sgpr 102\n.amdhsa_accum_offset 256\n.amdhsa_group_segment_fixed_size 0\n.amdhsa_kernarg_size 96")
        a(".amdhsa_user_sgpr_count 2\n.amdhsa_user_sgpr_kernarg_segment_ptr 1\n.amdhsa_system_sgpr_workgroup_id_x 1\n.end_amdhsa_kernel")
        return a.render()

    def v_fetch_wq(self):
        a = self.a
        a(f"s_and_b32 s58, s3, 3\ns_min_u32 s58, s58, 2\ns_mul_i32 s58, s58, 10752\ns_add_u32 s58, s58, {L_WQ}\nv_lshlrev_b32 v{T[0]}, 4, v0\nv_add_u32 v{T[0]}, s58, v{T[0]}")
        for t in range(10):
            a(f"ds_read_b128 {q4(WA+4*t)}, v{T[0]} offset:{1024*t}")
        a(f"v_add_u32 v{T[1]}, s58, v{lane4}\nds_read_b32 v{CS0}, v{T[1]} offset:10240\nds_read_b32 v{CS1}, v{T[1]} offset:10496")
        self.read_fast()
        a(f"s_add_u32 s58, s53, {7*BS}\nbuffer_load_dword v{XA+3}, v{aX2}, {WS}, 0 offen offset:{X2O} sc1\nbuffer_load_dword v{XA+4}, v{aXS}, {WS}, s58 offen offset:{MISC} sc1")

    def zgather(self, layer, slp):
        a = self.a
        a(f"s_mul_i32 s58, s56, {BS}\ns_add_u32 s60, s58, {10*BS}\ns_add_u32 s61, s58, {20*BS}")
        self.sleep(slp)
        self.poll([f"buffer_load_dwordx4 {q4(GB+4*n)}, v{aROW}, {WS}, s{(58,60,61)[n]} offen offset:{ZO[layer]} sc1" for n in range(3)], range(GB, GB + 12))
        self.stamp(10 if layer else 1)
        for n in range(3): self.mfma(ACC, ONES, GB + 4 * n, n == 0)
        self.resid_add()

REF = "interleave_layers__sliding_block_cached__dense_activation_mish__decode.s.ref"
HEADER = open(REF).read().split("; Override")[0] if os.path.exists(REF) else ""

if __name__ == "__main__":
    prof = {"prof": 1}.get(sys.argv[2], 0) if len(sys.argv) > 2 else 0
    open(sys.argv[1], "w").write(HEADER + Gen(prof, sys.argv[3:]).gen())
```

```python
import sys, os
sys.path.insert(0, "gen")
from asmlib import Asm

KNAME = "interleave_layers__sliding_block_cached__dense_activation_mish__decode_kernel"
BS = 4736
YO = [0, 128]; ZO = [256, 384]
QP1 = 512
OP = [896, 1280]
MISC = 1664
HPR = [1792, 2048]; HPC = 2304
X2O = 2560
CLR_END = 2816
QP0T = 3072
GEN_OFF = 256 * BS
FL1 = GEN_OFF + 4096; FL2 = GEN_OFF + 8192
WS_USED = GEN_OFF + 12288
PROF_OFF = 2 << 20
L_CTRL = 0
L_ML = 128
L_P = 256
L_O = 1024
L_YR = 4096
L_Q = 5120
L_K = 8192
L_WQ = L_K + 98304
LDS_BYTES = L_WQ + 3 * 10752
POLL_LIMIT = 200000
ONES = 4; SEL = 8; AB = [12, 16]; ACC = 20; GB = 36; XA = 60
aQG = 70; aP32 = 71; aROW = 72; aML = 73; aST = 74; ldsP = 75; lane4 = 76
CS0 = 77; CS1 = 78; X0 = 79; X1 = 80; B1V = 81; CSW1 = 82
T = [83, 84, 85, 86, 87, 1, 2, 3]
aX2 = 68; aXS = 69
KV = 88; WA = 184; WB = 224
WS = "s[48:51]"

def q4(r): return f"v[{r}:{r+3}]"
DPPALL = "row_mask:0xf bank_mask:0xf"
Q1 = "quad_perm:[1,0,3,2]"; Q2 = "quad_perm:[2,3,0,1]"; HM = "row_half_mirror"; RM = "row_mirror"

class Gen:
    def __init__(self, prof=0, knobs=()):
        self.knobs = set(knobs)
        self.CPF = 1; self.NB = 8; self.QSLEEP0 = 24; self.QSLEEP1 = 24
        self.QSL = 13; self.OSL = 10; self.YSL0 = 12; self.YSL = 16; self.HSL = 11; self.ZSL = 12; self.XSL = 24; self.FSL = 8
        for k in knobs:
            if '=' in k: setattr(self, k.split('=')[0], int(k.split('=')[1]))
        self.a = Asm(); self.prof = prof; self.uid = 0
    def L(self, base):
        self.uid += 1
        return f"L_{base}_{self.uid}"
    def stamp(self, i):
        if self.prof: self.a(f"s_memrealtime s[{76+2*i}:{77+2*i}]")
    def sleep(self, n):
        if n: self.a(f"s_sleep {n}")
    def dump_stamps(self):
        if not self.prof: return
        a = self.a
        a("s_waitcnt lgkmcnt(0)")
        a(f"v_mov_b32 v{T[0]}, 0")
        for i in range(13):
            a(f"v_writelane_b32 v{T[0]}, s{76+2*i}, {i}")
        a("s_lshl_b32 s58, s2, 3\ns_add_u32 s58, s58, s3\ns_lshl_b32 s58, s58, 1\ns_add_u32 s58, s58, s54\ns_lshl_b32 s58, s58, 6")
        a(f"s_add_u32 s58, s58, {PROF_OFF}")
        a("s_mov_b64 exec, 0xffff")
        a(f"buffer_store_dword v{T[0]}, v{lane4}, {WS}, s58 offen")
        a("s_mov_b64 exec, -1")
        for i in range(13):
            a(f"s_mov_b64 s[{76+2*i}:{77+2*i}], 0")
    def dump0(self):
        if not self.prof: return
        l = self.L("nd")
        self.a(f"s_cmp_lg_u32 s54, 0\ns_cbranch_scc1 {l}")
        self.dump_stamps()
        self.a(f"{l}:")
    def local_stores(self, lines):
        a = self.a
        ls, ld = self.L("sl"), self.L("sd")
        a(f"s_cmp_eq_u32 s55, 0\ns_cbranch_scc1 {ls}")
        for x in lines: a(x.replace("{f}", ""))
        a(f"s_branch {ld}\n{ls}:")
        for x in lines: a(x.replace("{f}", " sc1"))
        a(f"{ld}:")
    def poll(self, loads, regs, entry=None, slp=0):
        a = self.a
        lp, ld = self.L("poll"), self.L("got")
        a("s_mov_b32 s70, 0")
        a(f"{lp}:")
        for x in loads: a(x)
        if entry: a(f"{entry}:")
        a("s_waitcnt vmcnt(0)")
        t = T[7]
        rs = list(regs)
        if len(rs) == 1:
            a(f"v_cmp_eq_u32 vcc, -1, v{rs[0]}")
        else:
            if len(rs) == 2:
                a(f"v_max_u32 v{t}, v{rs[0]}, v{rs[1]}"); rs = []
            else:
                a(f"v_max3_u32 v{t}, v{rs[0]}, v{rs[1]}, v{rs[2]}"); rs = rs[3:]
            while rs:
                if len(rs) >= 2:
                    a(f"v_max3_u32 v{t}, v{t}, v{rs[0]}, v{rs[1]}"); rs = rs[2:]
                else:
                    a(f"v_max_u32 v{t}, v{t}, v{rs[0]}"); rs = rs[1:]
            a(f"v_cmp_eq_u32 vcc, -1, v{t}")
        a(f"s_cbranch_vccz {ld}")
        self.sleep(slp)
        a(f"s_add_u32 s70, s70, 1\ns_cmp_lt_u32 s70, {POLL_LIMIT}\ns_cbranch_scc1 {lp}")
        a(f"{ld}:")
    def build_A(self, dst, src):
        for d in range(4):
            self.a(f"v_perm_b32 v{dst+d}, v{src}, v{src}, v{SEL+d}")
    def mfma(self, D, A, B, first):
        self.a(f"v_mfma_f32_16x16x32_bf16 {q4(D)}, {q4(A)}, {q4(B)}, {'0' if first else q4(D)}")
    def pair32(self, D, t0, t1):
        self.a(f"v_add_f32_dpp v{t0}, v{D+1}, v{D} row_ror:8 {DPPALL}")
        self.a(f"v_add_f32_dpp v{t1}, v{D+3}, v{D+2} row_ror:8 {DPPALL}")
    def l64(self, D, t):
        self.a(f"v_add_f32_dpp v{t}, v{D+1}, v{D} row_ror:8 row_mask:0xf bank_mask:0x3")
        self.a(f"v_add_f32_dpp v{t}, v{D+2}, v{D+3} row_ror:8 row_mask:0xf bank_mask:0xc")
    def gemv_bcast(self, D, pair, W, n, fill=()):
        a = self.a
        fill = list(fill)
        tb = [T[5], T[6]]
        a(f"v_mov_b32_dpp v{tb[0]}, v{pair} row_newbcast:0 {DPPALL}")
        for t in range(n):
            if t + 1 < n:
                a(f"v_mov_b32_dpp v{tb[(t+1)&1]}, v{pair} row_newbcast:{t+1} {DPPALL}")
            self.build_A(AB[t & 1], tb[t & 1])
            if t > 0: self.mfma(D, AB[(t-1) & 1], W + 4 * (t-1), t == 1)
            for _ in range(2):
                if fill: a(fill.pop(0))
        self.mfma(D, AB[(n-1) & 1], W + 4 * (n-1), n == 1)
        for x in fill: a(x)
    def bf16r_ops(self, dst, src):
        return [f"v_cvt_pk_bf16_f32 v{dst}, v{src}, v{src}", f"v_lshlrev_b32 v{dst}, 16, v{dst}"]
    def bf16r(self, dst, src):
        for x in self.bf16r_ops(dst, src): self.a(x)
    def ln_ops(self, s1, s2, t):
        inv = "0x3acccccd"
        return [f"v_mul_f32 v{s1}, {inv}, v{s1}", f"v_mul_f32 v{s2}, {inv}, v{s2}", f"v_fma_f32 v{s2}, -v{s1}, v{s1}, v{s2}",
                f"v_max_f32 v{s2}, 0, v{s2}", f"v_cvt_pk_bf16_f32 v{t}, v{s1}, v{s2}", f"v_lshlrev_b32 v{s1}, 16, v{t}",
                f"v_and_b32 v{s2}, 0xffff0000, v{t}", f"v_add_f32 v{s2}, 0x3727c5ac, v{s2}"] + self.bf16r_ops(s2, s2) + \
               [f"v_sqrt_f32 v{s2}, v{s2}"] + self.bf16r_ops(s2, s2) + [f"v_rcp_f32 v{s2}, v{s2}"]
    def red2_ops(self, s1, s2, steps, tmp):
        return [f"v_permlane32_swap_b32 v{s1}, v{s2}", f"v_add_f32 v{s1}, v{s1}, v{s2}", f"v_mov_b32 v{tmp}, v{s1}",
                f"v_permlane16_swap_b32 v{s1}, v{tmp}", f"v_add_f32 v{s1}, v{s1}, v{tmp}"] + \
               [f"v_add_f32_dpp v{s1}, v{s1}, v{s1} {c} {DPPALL}" for c in steps]
    def row16_ops(self, s1, s2):
        out = []
        for c in (Q1, Q2, HM, RM):
            out += [f"v_add_f32_dpp v{s1}, v{s1}, v{s1} {c} {DPPALL}", f"v_add_f32_dpp v{s2}, v{s2}, v{s2} {c} {DPPALL}"]
        return out
    def allred64(self, op, v, tmp):
        a = self.a
        for c in (Q1, Q2, HM, RM):
            a(f"{op}_dpp v{v}, v{v}, v{v} {c} {DPPALL}")
        a(f"v_mov_b32 v{tmp}, v{v}\nv_permlane16_swap_b32 v{v}, v{tmp}\n{op} v{v}, v{v}, v{tmp}")
        a(f"v_mov_b32 v{tmp}, v{v}\nv_permlane32_swap_b32 v{v}, v{tmp}\n{op} v{v}, v{v}, v{tmp}")
    def sel_layer(self, dst, arr, add=None):
        a = self.a
        a(f"s_mul_i32 s{dst}, s54, {arr[1]-arr[0]}")
        if arr[0]: a(f"s_add_u32 s{dst}, s{dst}, {arr[0]}")
        if add is not None: a(f"s_add_u32 s{dst}, s{dst}, s{add}")
    def lds_wait_flag(self, off, val=None):
        a = self.a
        lp, ld = self.L("lw"), self.L("lg")
        t = T[5]; t2 = T[6]
        a(f"v_mov_b32 v{t2}, {off}\ns_mov_b32 s70, 0")
        a(f"{lp}:\nds_read_b32 v{t}, v{t2}\ns_waitcnt lgkmcnt(0)\nv_readfirstlane_b32 s58, v{t}")
        a(f"s_cmp_lg_u32 s58, 0\ns_cbranch_scc1 {ld}" if val is None else f"s_cmp_eq_u32 s58, {val}\ns_cbranch_scc1 {ld}")
        a(f"s_sleep 1\ns_add_u32 s70, s70, 1\ns_cmp_lt_u32 s70, {4*POLL_LIMIT}\ns_cbranch_scc1 {lp}")
        a(f"{ld}:")
    def read_fast(self):
        self.a(f"v_mov_b32 v{T[2]}, {L_CTRL+4}\nds_read_b32 v{T[2]}, v{T[2]}\ns_waitcnt lgkmcnt(0)\nv_readfirstlane_b32 s55, v{T[2]}")
    def make_tag(self):
        self.a("s_waitcnt lgkmcnt(0)\ns_mul_i32 s74, s74, 1664525\ns_add_u32 s74, s74, 1013904223")
    def resid_add(self):
        a = self.a
        self.pair32(ACC, T[2], T[3])
        a(f"v_cvt_pk_bf16_f32 v{T[4]}, v{T[2]}, v{T[3]}")
        a(f"v_lshlrev_b32 v{T[2]}, 16, v{T[4]}\nv_and_b32 v{T[3]}, 0xffff0000, v{T[4]}")
        a(f"v_add_f32 v{T[2]}, v{T[2]}, v{X0}\nv_add_f32 v{T[3]}, v{T[3]}, v{X1}")
        a(f"v_cvt_pk_bf16_f32 v{T[4]}, v{T[2]}, v{T[3]}")
    def unpackX_ops(self, src):
        return [f"v_lshlrev_b32 v{X0}, 16, v{src}", f"v_and_b32 v{X1}, 0xffff0000, v{src}"]
    def xstats_ops(self, s1, s2, tmp):
        return [f"v_add_f32 v{s1}, v{X0}, v{X1}", f"v_mul_f32 v{s2}, v{X0}, v{X0}", f"v_fmac_f32 v{s2}, v{X1}, v{X1}"] + self.red2_ops(s1, s2, (Q1, Q2, HM), tmp)
    def rows24_loads(self, off_arr):
        a = self.a
        self.sel_layer(58, off_arr)
        a(f"s_mul_i32 s60, s56, {BS}\ns_add_u32 s58, s58, s60\ns_add_u32 s60, s58, {10*BS}\ns_add_u32 s61, s58, {20*BS}")
        return [f"buffer_load_dwordx4 {q4(GB+4*n)}, v{aROW}, {WS}, s{(58,60,61)[n]} offen sc1" for n in range(3)]
    def consts(self):
        a = self.a
        t0, t1, t2 = T[0], T[1], T[2]
        a(f"v_and_b32 v{t0}, 1, v0\nv_mul_u32_u24 v{t0}, 0x202, v{t0}\nv_add_u32 v{t0}, 0x100, v{t0}")
        a(f"v_bfe_u32 v{t1}, v0, 1, 1\nv_lshlrev_b32 v{t1}, 4, v{t1}\nv_lshlrev_b32 v{t0}, v{t1}, v{t0}")
        a(f"v_mov_b32 v{t2}, 0x0c0c0000\nv_lshrrev_b32 v{t2}, v{t1}, v{t2}\nv_or_b32 v{t0}, v{t0}, v{t2}")
        a(f"v_bfe_u32 v{t1}, v0, 2, 2\nv_mov_b32 v{t2}, 0x0c0c0c0c")
        for d in range(4):
            a(f"v_cmp_eq_u32 vcc, {d}, v{t1}\nv_cndmask_b32 v{SEL+d}, v{t2}, v{t0}, vcc")
        a(f"v_mov_b32 v{t0}, 0x3f803f80")
        self.build_A(ONES, t0)
    def kwave_addrs(self):
        a = self.a
        t0, t1, t2 = T[0], T[1], T[2]
        a(f"v_lshrrev_b32 v{t0}, 3, v0\nv_and_b32 v{t1}, 7, v0\ns_mov_b32 s58, {32*BS}\nv_mul_lo_u32 v{aROW}, s58, v{t0}\nv_lshl_add_u32 v{aROW}, v{t1}, 4, v{aROW}")
        a(f"v_mul_u32_u24 v{aX2}, {BS}, v{t1}\nv_lshrrev_b32 v{t1}, 4, v0\nv_lshl_add_u32 v{aX2}, v{t1}, 6, v{aX2}")
        a(f"s_lshl_b32 s58, s56, 2\ns_add_u32 s58, s58, s53\nv_add_u32 v{aX2}, s58, v{aX2}")
        a(f"v_bfe_u32 v{t0}, v0, 3, 1\nv_lshl_add_u32 v{t0}, v{t0}, 2, v{t1}\nv_mul_u32_u24 v{aQG}, {BS}, v{t0}")
        a(f"v_and_b32 v{t0}, 7, v0\nv_lshl_add_u32 v{aQG}, v{t0}, 4, v{aQG}")
        a(f"s_mul_i32 s58, s6, {8*BS}\ns_add_u32 s58, s58, s53\nv_add_u32 v{aQG}, s58, v{aQG}")
        a(f"v_and_b32 v{t0}, 3, v0\nv_lshlrev_b32 v{t0}, 4, v{t0}\nv_lshl_add_u32 v{t0}, v{t1}, 2, v{t0}\nv_bfe_u32 v{t2}, v0, 2, 2\nv_add_u32 v{t0}, v{t0}, v{t2}")
        a(f"v_bfe_u32 v{t2}, v{t0}, 1, 2\nv_lshlrev_b32 v{ldsP}, 5, v{t2}\nv_lshrrev_b32 v{t2}, 3, v{t0}\nv_lshl_add_u32 v{ldsP}, v{t2}, 2, v{ldsP}")
        a(f"v_and_b32 v{t2}, 1, v{t0}\nv_lshl_add_u32 v{ldsP}, v{t2}, 1, v{ldsP}")
        a(f"s_lshl_b32 s58, s3, 7\ns_add_u32 s58, s58, {L_P}\nv_add_u32 v{ldsP}, s58, v{ldsP}")
        a(f"v_and_b32 v{t0}, 15, v0\nv_mul_u32_u24 v{aML}, {BS}, v{t1}\nv_lshl_add_u32 v{aML}, v{t0}, 4, v{aML}")
        a(f"v_lshlrev_b32 v{aST}, 4, v{t0}\nv_lshl_add_u32 v{aST}, v{t1}, 2, v{aST}\nv_lshlrev_b32 v{aXS}, 3, v{t0}")
    def vwave_addrs(self):
        a = self.a
        a("v_and_b32 v1, 7, v0\nv_lshrrev_b32 v2, 3, v0\nv_lshrrev_b32 v3, 4, v0")
        a("s_min_u32 s61, s57, 2\ns_lshl_b32 s58, s61, 2\ns_and_b32 s60, s3, 3\ns_add_u32 s58, s58, s60\ns_mul_i32 s60, s58, 43\ns_lshr_b32 s60, s60, 7")
        a("s_mul_i32 s61, s60, 3\ns_sub_u32 s58, s58, s61")
        a(f"s_mul_i32 s60, s60, {8*BS}\ns_add_u32 s60, s60, s53\ns_lshl_b32 s58, s58, 7\ns_add_u32 s58, s58, s60")
        a(f"v_mul_u32_u24 v{aQG}, {BS}, v2\nv_lshl_add_u32 v{aQG}, v1, 4, v{aQG}\nv_add_u32 v{aQG}, s58, v{aQG}")
        a(f"v_lshl_add_u32 v{aML}, v3, 1, v0\nv_and_b32 v{aML}, 7, v{aML}\nv_lshlrev_b32 v{aML}, 3, v{aML}\nv_add_u32 v{aML}, s60, v{aML}")
        a(f"s_and_b32 s58, s3, 3\ns_lshl_b32 s58, s58, 7\ns_add_u32 s58, s58, {L_P}\nv_lshlrev_b32 v{ldsP}, 5, v3\nv_add_u32 v{ldsP}, s58, v{ldsP}")
        a(f"s_mul_i32 s58, s6, {8*BS}\ns_add_u32 s58, s58, s53\ns_and_b32 s60, s3, 3\ns_lshl_b32 s60, s60, 7\ns_add_u32 s58, s58, s60\ns_lshl_b32 s60, s7, 4\ns_add_u32 s58, s58, s60")
        a(f"v_mul_u32_u24 v{aST}, {BS}, v1\nv_lshl_add_u32 v{aST}, v3, 2, v{aST}\nv_add_u32 v{aST}, s58, v{aST}")
        a(f"s_mul_i32 s58, s7, {BS}\ns_add_u32 s58, s58, s53\nv_add_u32 v{aX2}, s58, v{lane4}")
        a(f"v_and_b32 v{aXS}, 15, v0\nv_lshlrev_b32 v{aXS}, 3, v{aXS}\nv_mov_b32 v{aROW}, 0")
    def k_dma(self):
        a = self.a
        t = T[0]; t2 = T[1]
        a(f"v_lshrrev_b32 v{t}, 3, v0\nv_and_b32 v{t2}, 6, v{t}\nv_xor_b32 v{t2}, v{t2}, v0\nv_and_b32 v{t2}, 7, v{t2}")
        a(f"v_mul_u32_u24 v{t}, 384, v{t}\nv_lshl_add_u32 v{t}, v{t2}, 4, v{t}")
        a("s_and_b32 s60, s3, 3\ns_mul_i32 s60, s60, 24576")
        a("s_barrier")
        for n in range(24):
            rg, th = divmod(n, 3)
            a(f"s_add_u32 s58, s59, {rg*8*384 + th*128}")
            a(f"s_add_u32 m0, s60, {L_K + n*1024}")
            a(f"buffer_load_dwordx4 v{t}, s[12:15], s58 offen nt lds")
    def k_to_regs(self):
        a = self.a
        t = T[0]; t2 = T[1]; t3 = T[2]
        a(f"v_and_b32 v{t}, 7, v0\nv_lshrrev_b32 v{t2}, 4, v0\nv_and_b32 v{t3}, 6, v0\nv_xor_b32 v{t2}, v{t2}, v{t3}")
        a(f"v_lshlrev_b32 v{t}, 7, v{t}\nv_bfe_u32 v{t3}, v0, 3, 1\nv_mul_u32_u24 v{t3}, 3072, v{t3}\nv_add_u32 v{t}, v{t}, v{t3}")
        a(f"s_mul_i32 s60, s3, 24576\nv_add_u32 v{t}, s60, v{t}")
        a(f"v_lshl_add_u32 v{t3}, v{t2}, 4, v{t}")
        a(f"v_xor_b32 v{t2}, 4, v{t2}\nv_lshl_add_u32 v{t2}, v{t2}, 4, v{t}")
        for tile in range(4):
            for u in range(6):
                off = L_K + (2 * tile * 3 + (u >> 1)) * 1024
                a(f"ds_read_b128 {q4(KV + (tile*6+u)*4)}, v{t2 if (u & 1) else t3} offset:{off}")
            if tile == 1: a("s_waitcnt lgkmcnt(0)")
        a("s_waitcnt lgkmcnt(0)")
    def wo_loads(self):
        a = self.a
        t1 = XA
        a(f"v_lshrrev_b32 v{t1}, 3, v0\nv_mul_u32_u24 v{t1}, 1280, v{t1}\nv_and_b32 v{XA+1}, 7, v0\nv_lshl_add_u32 v{t1}, v{XA+1}, 4, v{t1}")
        a("s_min_u32 s62, s57, 2\ns_mul_i32 s58, s4, 768\ns_lshl_b32 s60, s62, 8\ns_add_u32 s58, s58, s60\ns_and_b32 s60, s3, 3\ns_lshl_b32 s60, s60, 6\ns_add_u32 s58, s58, s60")
        a("s_mul_i32 s58, s58, 1280\ns_lshl_b32 s60, s56, 7\ns_add_u32 s58, s58, s60")
        for t in range(8):
            a(f"buffer_load_dwordx4 {q4(WB+4*t)}, v{t1}, s[24:27], s58 offen nt")
            if t < 7: a(f"s_add_u32 s58, s58, {8*1280}")
    def w1_loads(self):
        a = self.a
        t0, t1 = T[2], T[3]
        a(f"v_lshrrev_b32 v{t0}, 3, v0\nv_and_b32 v{t1}, 7, v0\nv_mul_u32_u24 v{t0}, 3072, v{t0}\nv_lshl_add_u32 v{t0}, v{t1}, 4, v{t0}")
        a(f"s_mul_i32 s58, s56, {64*3072}\ns_mul_i32 s60, s4, 384\ns_add_u32 s58, s58, s60\ns_lshl_b32 s60, s57, 7\ns_add_u32 s58, s58, s60")
        for t in range(8):
            a(f"buffer_load_dwordx4 {q4(WB+4*t)}, v{t0}, s[28:31], s58 offen nt")
            if t < 7: a(f"s_add_u32 s58, s58, {8*3072}")
    def w2_loads(self):
        a = self.a
        t0, t1 = T[2], T[3]
        a(f"v_lshrrev_b32 v{t0}, 3, v0\nv_and_b32 v{t1}, 7, v0\nv_mul_u32_u24 v{t0}, 1280, v{t0}\nv_lshl_add_u32 v{t0}, v{t1}, 4, v{t0}")
        a("s_mul_i32 s58, s4, 192\ns_lshl_b32 s60, s57, 6\ns_add_u32 s61, s58, s60\ns_mul_i32 s58, s61, 1280\ns_lshl_b32 s60, s56, 7\ns_add_u32 s58, s58, s60")
        for t in range(8):
            a(f"buffer_load_dwordx4 {q4(WB+4*t)}, v{t0}, s[36:39], s58 offen nt")
            if t < 7: a(f"s_add_u32 s58, s58, {8*1280}")
        a(f"v_bfe_u32 v{t0}, v0, 3, 1\nv_lshl_add_u32 v{t0}, v{t0}, 1, v{aP32}\ns_lshl_b32 s61, s61, 1")
        a(f"buffer_load_ushort v{B1V}, v{t0}, s[32:35], s61 offen")
    def clears(self, all_sc1):
        a = self.a
        C = XA + 4
        for i in range(4): a(f"v_mov_b32 v{C+i}, -1")
        a(f"v_lshlrev_b32 v{T[3]}, 4, v0")
        f = " sc1" if all_sc1 else ""
        a("s_mov_b32 exec_hi, 0")
        a(f"buffer_store_dwordx4 {q4(C)}, v{T[3]}, {WS}, s52 offen sc1")
        a("s_mov_b32 exec_lo, 0xffff")
        a(f"buffer_store_dwordx4 {q4(C)}, v{T[3]}, {WS}, s52 offen offset:2560{f}")
        a("s_mov_b64 exec, -1")
        for o in (512, 1536):
            a(f"buffer_store_dwordx4 {q4(C)}, v{T[3]}, {WS}, s52 offen offset:{o}{f}")
    def flag_store(self, base):
        a = self.a
        C = XA + 4
        if base == FL1:
            a("s_xor_b32 s58, s74, 0x5bd1e995\ns_andn2_b32 s58, s58, 15\ns_or_b32 s75, s75, s58")
        a(f"s_lshl_b32 s58, s4, 5\ns_add_u32 s58, s58, s5\ns_lshl_b32 s58, s58, 3\ns_add_u32 s58, s58, {base}")
        a(f"v_mov_b32 v{C}, s74\nv_mov_b32 v{C+1}, s75")
        a("s_mov_b64 exec, 1")
        a(f"buffer_store_dwordx2 v[{C}:{C+1}], v{aP32}, {WS}, s58 offen sc1")
        a("s_mov_b64 exec, -1")
    def flags_issue(self, base):
        a = self.a
        F = AB[0]
        a(f"v_lshlrev_b32 v{T[4]}, 5, v0\ns_mov_b32 s60, {base}")
        a(f"buffer_load_dwordx4 {q4(F)}, v{T[4]}, {WS}, s60 offen sc1\nbuffer_load_dwordx4 {q4(F+4)}, v{T[4]}, {WS}, s60 offen offset:16 sc1")
    def flags_wait(self, base, group_only):
        a = self.a
        F = AB[0]
        t, t2 = T[2], T[3]
        lp, lc, ld = self.L("fp"), self.L("fc"), self.L("fg")
        a("s_mov_b32 s70, 0\ns_or_b32 s61, s75, 15")
        if base == FL1: a(f"s_branch {lc}")
        a(f"{lp}:")
        self.flags_issue(base)
        a(f"{lc}:")
        a("s_waitcnt vmcnt(0)")
        a(f"v_xor_b32 v{t}, s74, v{F}")
        for i in range(1, 4):
            a(f"v_xor_b32 v{t2}, s74, v{F+2*i}\nv_or_b32 v{t}, v{t}, v{t2}")
        for i in range(4):
            a(f"v_or_b32 v{t2}, 15, v{F+2*i+1}\nv_xor_b32 v{t2}, s61, v{t2}\nv_or_b32 v{t}, v{t}, v{t2}")
        a(f"v_cmp_ne_u32 vcc, 0, v{t}")
        if group_only: a(f"s_and_b64 vcc, vcc, s[72:73]\ns_cbranch_scc0 {ld}")
        else: a(f"s_cbranch_vccz {ld}")
        a(f"s_sleep 16\ns_add_u32 s70, s70, 1\ns_cmp_lt_u32 s70, {POLL_LIMIT}\ns_cbranch_scc1 {lp}\n{ld}:")
    def flags_check(self):
        a = self.a
        F = AB[0]; t, t2 = T[2], T[3]
        lf = self.L("fast")
        a("s_lshl_b32 s58, s4, 3\ns_mov_b64 s[72:73], 0xff\ns_lshl_b64 s[72:73], s[72:73], s58")
        self.flags_wait(FL1, False)
        a(f"v_xor_b32 v{t}, s75, v{F+1}")
        for i in range(1, 4):
            a(f"v_xor_b32 v{t2}, s75, v{F+2*i+1}\nv_or_b32 v{t}, v{t}, v{t2}")
        a(f"v_cmp_ne_u32 vcc, 0, v{t}\ns_mov_b32 s55, 1\ns_and_b64 vcc, vcc, s[72:73]")
        if "forceslow" not in self.knobs: a(f"s_cbranch_scc0 {lf}")
        a("s_mov_b32 s55, 0")
        self.clears(True)
        a("s_waitcnt vmcnt(0)")
        self.flag_store(FL2)
        self.flags_wait(FL2, True)
        a(f"{lf}:")
        a(f"v_mov_b32 v{t}, s55\nv_mov_b32 v{T[3]}, {L_CTRL}\nds_write_b32 v{T[3]}, v{t} offset:4")
    def qproj(self, pair, s1, s2, pre_ops):
        a = self.a
        self.gemv_bcast(ACC, pair, WA, 10, fill=list(pre_ops) + self.ln_ops(s1, s2, T[2]))
        self.pair32(ACC, T[2], T[3])
        a(f"v_fma_f32 v{T[2]}, -v{s1}, v{CS0}, v{T[2]}\nv_fma_f32 v{T[3]}, -v{s1}, v{CS1}, v{T[3]}")
        a(f"v_mul_f32 v{T[2]}, v{T[2]}, v{s2}\nv_mul_f32 v{T[3]}, v{T[3]}, v{s2}")
        a(f"v_cvt_pk_bf16_f32 v{T[4]}, v{T[2]}, v{T[3]}")

    def gen(self):
        a = self.a
        a(f"; @launch grid=(256,1,1) block=(512,1,1) lds={LDS_BYTES}")
        a('.amdgcn_target "amdgcn-amd-amdhsa--gfx950"\n.text')
        a(f".globl {KNAME}\n.p2align 8\n.type {KNAME},@function")
        a(f"{KNAME}:")
        a("s_cmp_ge_u32 s2, 256\ns_cbranch_scc1 L_end")
        if self.prof:
            for i in range(13): a(f"s_mov_b64 s[{76+2*i}:{77+2*i}], 0")
        self.stamp(0)
        ptr = {12: 8, 20: 24, 8: 0, 48: 88, 16: 16, 24: 32, 28: 48, 32: 56, 36: 64, 40: 72}
        size = {8: 1280, 12: 100663296, 16: 100663296, 20: 7864320, 24: 7864320, 28: 1966080, 32: 3072, 36: 1966080, 40: 1280,
                48: (PROF_OFF + 256 * 8 * 2 * 64) if self.prof else WS_USED}
        for s, off in ptr.items():
            a(f"s_load_dwordx2 s[{s}:{s+1}], s[0:1], {off}")
        a("v_lshrrev_b32 v1, 6, v0\nv_and_b32 v0, 63, v0\nv_readfirstlane_b32 s3, v1")
        for s in ptr:
            a(f"s_mov_b32 s{s+2}, {size[s]}\ns_mov_b32 s{s+3}, 0x20000")
        a("s_and_b32 s4, s2, 7\ns_lshr_b32 s5, s2, 3\ns_lshr_b32 s6, s5, 3\ns_and_b32 s7, s5, 7")
        a(f"s_mul_i32 s53, s4, {32*BS}\ns_mul_i32 s52, s5, {BS}\ns_add_u32 s52, s52, s53")
        a("s_mov_b32 s54, 0\ns_mov_b32 s55, 0")
        a("s_getreg_b32 s75, hwreg(HW_REG_XCC_ID)\ns_and_b32 s75, s75, 15")
        a("s_cmp_ge_u32 s5, 10\ns_cselect_b32 s57, 1, 0\ns_cmp_ge_u32 s5, 20\ns_cselect_b32 s57, 2, s57\ns_cmp_ge_u32 s5, 30\ns_cselect_b32 s57, 3, s57")
        a("s_mul_i32 s58, s57, 10\ns_sub_u32 s56, s5, s58")
        a("s_mov_b32 s64, 0x00ff00ff\ns_mov_b32 s65, 0x00ff00ff")
        a("s_mov_b32 s66, 0xaaaaaaaa\ns_mov_b32 s67, 0xaaaaaaaa\ns_mov_b32 s68, 0xcccccccc\ns_mov_b32 s69, 0xcccccccc")
        a("s_mov_b32 s44, 0x03ff03ff\ns_mov_b32 s45, 0x03ff03ff\ns_mov_b32 s46, 1\ns_mov_b32 s47, 1")
        a("s_lshl_b32 s58, s4, 2\ns_add_u32 s58, s58, s6\ns_mul_i32 s59, s58, 3145728")
        a("s_lshl_b32 s58, s7, 8\ns_and_b32 s60, s3, 3\ns_lshl_b32 s60, s60, 6\ns_add_u32 s58, s58, s60\ns_add_u32 s58, s58, 6144\ns_mul_i32 s58, s58, 384\ns_add_u32 s59, s59, s58")
        a("v_and_b32 v1, 7, v0\nv_lshrrev_b32 v2, 3, v0\nv_lshrrev_b32 v3, 4, v0")
        a(f"v_lshlrev_b32 v{lane4}, 2, v0")
        a(f"v_lshlrev_b32 v{aP32}, 4, v1\nv_lshl_add_u32 v{aP32}, v3, 2, v{aP32}")
        a("s_waitcnt lgkmcnt(0)")
        a("s_cmp_ge_u32 s3, 4\ns_cbranch_scc1 L_pro_v")
        a(f"s_setprio 3\ns_mov_b32 s71, {GEN_OFF}")
        a("s_cmp_eq_u32 s3, 3\ns_cbranch_scc1 L_pro_c")
        a(f"s_buffer_load_dword s74, {WS}, s71")
        XS = GB
        a(f"v_lshlrev_b32 v{T[0]}, 4, v0")
        a(f"buffer_load_dwordx4 {q4(XS)}, v{T[0]}, s[8:11], 0 offen")
        a(f"buffer_load_dword v{XS+4}, v{lane4}, s[8:11], 0 offen offset:1024")
        a(f"v_and_b32 v{T[1]}, 15, v0\nv_lshlrev_b32 v{T[1]}, 7, v{T[1]}\nv_lshl_add_u32 v{T[1]}, v3, 2, v{T[1]}\ns_lshl_b32 s58, s7, 4")
        a(f"buffer_load_dword v{XA}, v{T[1]}, s[8:11], s58 offen")
        a(f"v_mul_u32_u24 v{T[2]}, 12288, v2\nv_lshl_add_u32 v{T[2]}, v1, 4, v{T[2]}")
        a(f"s_lshl_b32 s58, s4, 2\ns_add_u32 s58, s58, s6\ns_mul_i32 s58, s58, 384\ns_lshl_b32 s60, s3, 7\ns_add_u32 s58, s58, s60\ns_mul_i32 s60, s7, {8*12288}\ns_add_u32 s58, s58, s60")
        for t in range(10):
            a(f"buffer_load_dwordx4 {q4(WA+4*t)}, v{T[2]}, s[20:23], s58 offen nt")
            if t < 9: a(f"s_add_u32 s58, s58, {64*12288}")
        a("s_barrier")
        self.consts()
        self.kwave_addrs()
        self.make_tag()
        a("s_waitcnt vmcnt(11)")
        s1, s2 = T[0], T[1]
        a(f"v_mov_b32 v{s1}, 0\nv_mov_b32 v{s2}, 0")
        for i in range(5):
            a(f"v_lshlrev_b32 v{T[2]}, 16, v{XS+i}\nv_and_b32 v{T[3]}, 0xffff0000, v{XS+i}")
            a(f"v_add_f32 v{s1}, v{s1}, v{T[2]}\nv_fmac_f32 v{s2}, v{T[2]}, v{T[2]}\nv_add_f32 v{s1}, v{s1}, v{T[3]}\nv_fmac_f32 v{s2}, v{T[3]}, v{T[3]}")
        for x in self.red2_ops(s1, s2, (Q1, Q2, HM, RM), T[2]): a(x)
        a(f"v_readlane_b32 s58, v{s1}, 0\nv_readlane_b32 s60, v{s1}, 32")
        a(f"v_mov_b32 v{s1}, s58\nv_mov_b32 v{s2}, s60")
        a("s_waitcnt vmcnt(0)")
        self.stamp(1)
        for t in range(10):
            self.mfma(ACC + 4, ONES, WA + 4 * t, t == 0)
        self.pair32(ACC + 4, CS0, CS1)
        self.qproj(XA, s1, s2, [])
        a(f"v_mov_b32 v{GB}, v{T[4]}\nv_mov_b32 v{GB+1}, s74\nv_lshlrev_b32 v{T[2]}, 1, v{aP32}")
        a("s_lshl_b32 s60, s3, 8\ns_add_u32 s58, s52, s60")
        a("s_mov_b64 exec, s[64:65]")
        a(f"buffer_store_dwordx2 v[{GB}:{GB+1}], v{T[2]}, {WS}, s58 offen offset:{QP0T+768}")
        a(f"buffer_store_dwordx2 v[{GB}:{GB+1}], v{T[2]}, {WS}, s58 offen offset:{QP0T} sc1")
        a("s_mov_b64 exec, -1")
        self.stamp(3)
        a(f"s_mul_i32 s58, s3, 10752\ns_add_u32 s58, s58, {L_WQ}\nv_lshlrev_b32 v{T[0]}, 4, v0\nv_add_u32 v{T[0]}, s58, v{T[0]}")
        for t in range(10):
            a(f"ds_write_b128 v{T[0]}, {q4(WA+4*t)} offset:{1024*t}")
        a(f"v_add_u32 v{T[1]}, s58, v{lane4}\nds_write_b32 v{T[1]}, v{CS0} offset:10240\nds_write_b32 v{T[1]}, v{CS1} offset:10496")
        QA = [XA + 1, XA + 2]
        a(f"s_mul_i32 s62, s6, {8*BS}\ns_add_u32 s62, s62, s53\ns_lshl_b32 s58, s3, 7")
        for n in range(2):
            a(f"v_add_u32 v{T[0]}, s58, v0")
            if n: a(f"v_add_u32 v{T[0]}, 64, v{T[0]}")
            a(f"v_mul_u32_u24 v{T[1]}, 0x556, v{T[0]}\nv_lshrrev_b32 v{T[1]}, 16, v{T[1]}")
            a(f"v_mul_u32_u24 v{T[2]}, {BS - 768}, v{T[1]}\nv_lshl_add_u32 v{QA[n]}, v{T[0]}, 4, v{T[2]}")
        SETS = [[WB, WB + 4], [WB + 8, WB + 12]]
        def qissue(k):
            if k == 0: a("s_add_u32 s58, s62, 768")
            else: a("s_and_b32 s58, s70, 1\ns_cmp_eq_u32 s58, 1\ns_cselect_b32 s58, 0, 768\ns_add_u32 s58, s58, s62")
            for n in range(2):
                a(f"buffer_load_dwordx4 {q4(SETS[k][n])}, v{QA[n]}, {WS}, s58 offen offset:{QP0T} sc1")
        lp, ld = self.L("poll"), self.L("got")
        a(f"s_mov_b32 s70, 0\ns_sleep {self.QSLEEP0}")
        qissue(0); a(f"s_sleep {self.QSLEEP1}"); qissue(1)
        gots = [self.L("qg") for _ in range(2)]
        a(f"{lp}:")
        for k in range(2):
            a("s_waitcnt vmcnt(2)")
            a(f"v_mov_b32 v{T[0]}, s74\nv_mov_b32 v{T[1]}, s74")
            for r in SETS[k]:
                a(f"v_min3_u32 v{T[0]}, v{T[0]}, v{r+1}, v{r+3}\nv_max3_u32 v{T[1]}, v{T[1]}, v{r+1}, v{r+3}")
            a(f"v_cmp_ne_u32 vcc, v{T[0]}, v{T[1]}\ns_cbranch_vccz {gots[k]}")
            if k == 1: a("s_add_u32 s70, s70, 1")
            qissue(k)
        a(f"s_cmp_lt_u32 s70, {POLL_LIMIT}\ns_cbranch_scc1 {lp}")
        for k in range(2):
            a(f"{gots[k]}:")
            a(f"s_lshl_b32 s58, s3, 10\nv_lshlrev_b32 v{T[0]}, 3, v0\nv_add_u32 v{T[0]}, s58, v{T[0]}\nv_add_u32 v{T[0]}, {L_Q}, v{T[0]}")
            for n in range(2):
                a(f"ds_write2_b32 v{T[0]}, v{SETS[k][n]}, v{SETS[k][n]+2} offset0:{128*n} offset1:{128*n+1}")
            if k < 1: a(f"s_branch {ld}")
        a(f"{ld}:")
        a(f"v_mov_b32 v{T[2]}, 1\nv_mov_b32 v{T[3]}, {L_CTRL+32}\ns_waitcnt lgkmcnt(0)\nds_add_u32 v{T[3]}, v{T[2]}")
        self.stamp(2)
        a("s_branch L_bk")
        a("L_pro_c:")
        a(f"v_mov_b32 v{T[0]}, 0")
        a("s_mov_b64 exec, 0xffff")
        a(f"ds_write_b32 v{lane4}, v{T[0]} offset:{L_CTRL}")
        a("s_mov_b64 exec, -1")
        self.clears(False)
        a(f"s_lshl_b32 s58, s56, 7\nbuffer_load_dword v{GB+4}, v{aP32}, s[8:11], s58 offen")
        a("s_waitcnt lgkmcnt(0)\ns_barrier")
        a(f"s_buffer_load_dword s74, {WS}, s71")
        self.consts()
        self.kwave_addrs()
        self.make_tag()
        a("s_waitcnt vmcnt(0)")
        self.flag_store(FL1)
        self.stamp(1)
        for x in self.unpackX_ops(GB + 4): a(x)
        a("L_bk:")
        a(f"s_lshl_b32 s60, s3, 2\ns_add_u32 s60, s60, {L_CTRL+16}")
        self.lds_wait_flag("s60")
        self.stamp(10)
        self.k_to_regs()
        self.lds_wait_flag(L_CTRL + 32, 192)
        self.stamp(11)
        a(f"v_and_b32 v{T[3]}, 7, v0\nv_mul_u32_u24 v{T[3]}, 384, v{T[3]}\nv_lshrrev_b32 v{T[4]}, 4, v0\nv_lshl_add_u32 v{T[3]}, v{T[4]}, 4, v{T[3]}")
        a(f"v_and_b32 v{T[4]}, 8, v0\nv_lshl_add_u32 v{T[3]}, v{T[4]}, 3, v{T[3]}")
        for u in range(3):
            a(f"ds_read_b128 {q4(GB+4*u)}, v{T[3]} offset:{L_Q + 128*u}")
        a("s_waitcnt lgkmcnt(0)")
        a("s_branch L_qk")

        a("L_kloop:")
        a("s_cmp_lg_u32 s3, 3\ns_cbranch_scc1 L_k_b1")
        a("s_cmp_ge_u32 s5, 10\ns_cbranch_scc1 L_k_pt")
        self.zgather(0, self.ZSL)
        s1, s2 = T[0], T[1]
        a("s_mov_b64 exec, s[64:65]")
        self.local_stores([f"buffer_store_dword v{T[4]}, v{aX2}, {WS}, 0 offen offset:{X2O}{{f}}"])
        a("s_mov_b64 exec, -1")
        for x in self.unpackX_ops(T[4]) + self.xstats_ops(s1, s2, T[2]): a(x)
        a(f"v_lshrrev_b32 v{T[2]}, 3, v0\nv_and_b32 v{T[2]}, 4, v{T[2]}\ns_lshl_b32 s58, s56, 3\ns_add_u32 s58, s58, s53\ns_add_u32 s58, s58, {7*BS}")
        a("s_mov_b64 exec, s[46:47]")
        self.local_stores([f"buffer_store_dword v{s1}, v{T[2]}, {WS}, s58 offen offset:{MISC}{{f}}"])
        a("s_mov_b64 exec, -1")
        self.stamp(2)
        a("L_k_pt:")
        a("L_k_b1:")
        a("s_barrier")
        self.sleep(self.QSL)
        self.poll([f"buffer_load_dwordx4 {q4(GB+4*u)}, v{aQG}, {WS}, 0 offen offset:{QP1 + 128*u} sc1" for u in range(3)], range(GB, GB + 12))
        a("L_qk:")
        self.stamp(4)
        R = [XA, XA + 1, XA + 2, XA + 3]
        DE = [ACC, ACC + 8]; DO = [ACC + 4, ACC + 12]
        def lvl_ops(t):
            e, o = DE[t & 1], DO[t & 1]
            hm = lambda d, srcr, bank: f"v_add_f32_dpp v{d}, v{srcr}, v{srcr} row_half_mirror row_mask:0xf bank_mask:{hex(1<<bank)}"
            return [hm(T[2], e + 2, 0), hm(T[2], e + 3, 1), hm(R[t], e, 0), hm(R[t], e + 1, 1),
                    hm(T[2], o, 2), hm(T[2], o + 1, 3), hm(R[t], o + 2, 2), hm(R[t], o + 3, 3),
                    f"v_add_f32_dpp v{R[t]}, v{T[2]}, v{R[t]} row_ror:8 {DPPALL}",
                    f"v_add_f32_dpp v{R[t]}, v{R[t]}, v{R[t]} {Q1} {DPPALL}",
                    f"v_add_f32_dpp v{R[t]}, v{R[t]}, v{R[t]} {Q2} {DPPALL}"]
        pend = []
        for t in range(4):
            for u in range(6):
                self.mfma((DO if u & 1 else DE)[t & 1], KV + (t * 6 + u) * 4, GB + 4 * (u >> 1), u < 2)
                if u >= 2:
                    for _ in range(3 if u < 5 else 2):
                        if pend: a(pend.pop(0))
            pend = lvl_ops(t)
            if t == 2: pend.append(f"v_cndmask_b32 v{R[0]}, v{R[0]}, v{R[1]}, s[66:67]") if False else None
        for x in pend: a(x)
        S = T[0]; M = T[1]
        a(f"v_cndmask_b32 v{R[0]}, v{R[0]}, v{R[1]}, s[66:67]\nv_cndmask_b32 v{R[2]}, v{R[2]}, v{R[3]}, s[66:67]\nv_cndmask_b32 v{S}, v{R[0]}, v{R[2]}, s[68:69]")
        a(f"v_mul_f32 v{S}, 0x3dd53b95, v{S}")
        a(f"v_max_f32_dpp v{M}, v{S}, v{S} {Q1} {DPPALL}")
        for c in (Q2, HM, RM):
            a(f"v_max_f32_dpp v{M}, v{M}, v{M} {c} {DPPALL}")
        a(f"v_mov_b32 v{T[2]}, v{M}\nv_permlane16_swap_b32 v{M}, v{T[2]}\nv_max_f32 v{M}, v{M}, v{T[2]}")
        a(f"v_mov_b32 v{T[2]}, v{M}\nv_permlane32_swap_b32 v{M}, v{T[2]}\nv_max_f32 v{M}, v{M}, v{T[2]}")
        a(f"v_sub_f32 v{S}, v{S}, v{M}\nv_exp_f32 v{S}, v{S}")
        a(f"v_cvt_pk_bf16_f32 v{S}, v{S}, v{S}")
        a(f"ds_write_b16 v{ldsP}, v{S}")
        a("s_cmp_lg_u32 s3, 3\ns_cbranch_scc1 L_qk_nf\ns_cmp_lg_u32 s54, 0\ns_cbranch_scc1 L_qk_nf")
        self.flags_issue(FL1)
        a("L_qk_nf:")
        a("s_waitcnt lgkmcnt(0)")
        self.stamp(5)
        a("s_barrier")
        a(f"v_lshlrev_b32 v{S}, 16, v{S}")
        self.allred64("v_add_f32", S, T[2])
        a(f"s_lshl_b32 s58, s3, 3\nv_mov_b32 v{T[2]}, s58")
        a("s_mov_b64 exec, 1")
        a(f"ds_write_b32 v{T[2]}, v{M} offset:{L_ML}\nds_write_b32 v{T[2]}, v{S} offset:{L_ML+4}")
        a("s_mov_b64 exec, -1")
        a("s_cmp_lg_u32 s3, 3\ns_cbranch_scc1 L_k_b3")
        a("s_cmp_lg_u32 s54, 0\ns_cbranch_scc1 L_c_x2")
        self.flags_check()
        a("s_branch L_c_b3")
        a("L_c_x2:")
        a("s_cmp_lt_u32 s5, 10\ns_cbranch_scc1 L_c_b3")
        self.poll([f"buffer_load_dword v{GB}, v{aX2}, {WS}, 0 offen offset:{X2O} sc1"], [GB])
        for x in self.unpackX_ops(GB): a(x)
        a("L_c_b3:")
        a("s_waitcnt lgkmcnt(0)\ns_barrier")
        a("s_cmp_ge_u32 s5, 30\ns_cbranch_scc1 L_k_next")
        a("s_barrier")
        a("s_cmp_lg_u32 s54, 0\ns_cbranch_scc1 L_p4_nocs")
        self.w1_loads()
        yl = self.rows24_loads(YO)
        self.sleep(self.YSL0)
        for x in yl: a(x)
        a("s_mov_b32 s70, 0\ns_waitcnt vmcnt(3)")
        for t in range(8): self.mfma(ACC, ONES, WB + 4 * t, t == 0)
        self.l64(ACC, CS0)
        self.local_stores([f"buffer_store_dword v{CS0}, v{aST}, {WS}, s52 offen offset:{HPC}{{f}}"])
        a("s_branch L_p4_chk")
        a("L_p4_nocs:")
        yl = self.rows24_loads(YO)
        self.sleep(self.YSL)
        self.poll(yl, range(GB, GB + 12), entry="L_p4_chk")
        for n in range(3): self.mfma(ACC, ONES, GB + 4 * n, n == 0)
        a("s_barrier")
        self.stamp(8)
        self.sel_layer(58, HPR, 52)
        a(f"s_mul_i32 s60, s54, 3\ns_add_u32 s60, s60, s57\ns_add_u32 s60, s60, 1\ns_mul_i32 s60, s60, {BS}\ns_add_u32 s60, s60, s53\ns_lshl_b32 s61, s56, 3\ns_add_u32 s60, s60, s61")
        self.resid_add()
        s1, s2 = T[0], T[1]
        self.gemv_bcast(ACC + 4, T[4], WB, 8, fill=self.unpackX_ops(T[4]) + self.xstats_ops(s1, s2, T[2]) + [f"v_lshrrev_b32 v{T[2]}, 3, v0", f"v_and_b32 v{T[2]}, 4, v{T[2]}"])
        self.l64(ACC + 4, T[3])
        self.local_stores([f"buffer_store_dword v{T[3]}, v{aST}, {WS}, s58 offen{{f}}", "s_mov_b64 exec, s[46:47]",
                           f"buffer_store_dword v{s1}, v{T[2]}, {WS}, s60 offen offset:{MISC}{{f}}"])
        a("s_mov_b64 exec, -1")
        self.stamp(9)
        self.dump0()
        a("s_barrier")
        a("s_cmp_lg_u32 s54, 0\ns_cbranch_scc1 L_final\ns_mov_b32 s54, 1\ns_branch L_kloop")
        a("L_k_b3:")
        if self.CPF:
            self.code_prefetch()
        a(f"s_lshl_b32 s58, s3, 8\nv_add_u32 v{T[3]}, s58, v{lane4}\nv_mov_b32 v{T[4]}, {L_ML}\nv_mov_b32 v{T[2]}, {L_CTRL+4}")
        self.sel_layer(58, OP, 52)
        a("s_lshl_b32 s60, s3, 7\ns_add_u32 s60, s60, s58")
        a(f"s_mul_i32 s61, s7, {BS - 8}\ns_sub_u32 s61, s52, s61\ns_lshl_b32 s58, s54, 6\ns_add_u32 s61, s61, s58")
        a("s_waitcnt lgkmcnt(0)\ns_barrier")
        self.stamp(6)
        a(f"ds_read_b128 {q4(GB)}, v{T[4]}\nds_read_b128 {q4(GB+4)}, v{T[4]} offset:16")
        for w in range(4):
            a(f"ds_read_b32 v{GB+8+w}, v{T[3]} offset:{L_O + 768*w}")
        a(f"ds_read_b32 v{T[2]}, v{T[2]}")
        a("s_waitcnt lgkmcnt(0)")
        M = GB + 12; Lr = GB + 13
        a(f"v_max3_f32 v{M}, v{GB}, v{GB+2}, v{GB+4}\nv_max_f32 v{M}, v{M}, v{GB+6}")
        a(f"v_readfirstlane_b32 s55, v{T[2]}")
        for w in range(4): a(f"v_sub_f32 v{GB+2*w}, v{GB+2*w}, v{M}")
        for w in range(4): a(f"v_exp_f32 v{GB+2*w}, v{GB+2*w}")
        a(f"v_mul_f32 v{Lr}, v{GB}, v{GB+1}\nv_mul_f32 v{T[0]}, v{GB}, v{GB+8}")
        for w in range(1, 4):
            a(f"v_fmac_f32 v{Lr}, v{GB+2*w}, v{GB+2*w+1}\nv_fmac_f32 v{T[0]}, v{GB+2*w}, v{GB+8+w}")
        a(f"v_rcp_f32 v{T[1]}, v{Lr}\nv_mul_f32 v{T[0]}, v{T[0]}, v{T[1]}")
        a(f"v_mov_b32_dpp v{T[1]}, v{T[0]} row_ror:8 {DPPALL}\nv_cvt_pk_bf16_f32 v{T[0]}, v{T[0]}, v{T[1]}")
        a("s_mov_b64 exec, s[64:65]")
        lz = self.L("z")
        self.local_stores([f"buffer_store_dword v{T[0]}, v{aP32}, {WS}, s60 offen{{f}}"])
        a(f"s_cmp_lg_u32 s3, 1\ns_cbranch_scc1 {lz}\ns_mov_b64 exec, 1")
        self.local_stores([f"buffer_store_dwordx2 v[{M}:{Lr}], v{aP32}, {WS}, s61 offen offset:{MISC}{{f}}"])
        a(f"{lz}:\ns_mov_b64 exec, -1")
        self.stamp(7)
        a("s_cmp_ge_u32 s5, 30\ns_cbranch_scc1 L_k_next")
        a("s_barrier")
        a("s_cmp_eq_u32 s3, 0\ns_cbranch_scc1 L_p5")
        a("s_cmp_lg_u32 s3, 1\ns_cbranch_scc1 L_k_b5")
        self.sel_layer(58, HPR, 52)
        a(f"v_lshlrev_b32 v{T[0]}, 7, v0\ns_mov_b64 exec, 3")
        a(f"buffer_load_dword v{GB}, v{T[0]}, {WS}, s58 offen sc1\nbuffer_load_dword v{GB+1}, v{T[0]}, {WS}, s52 offen offset:{HPC} sc1")
        a(f"buffer_load_dword v{GB+2}, v{lane4}, {WS}, s52 offen offset:{MISC} sc1\ns_mov_b64 exec, -1")
        a("L_k_b5:")
        a("s_barrier\ns_barrier")
        a("s_branch L_k_next")
        a("L_p5:")
        a(f"s_mul_i32 s62, s57, {10*BS}\ns_add_u32 s62, s62, s53")
        def hp_gather(with_stats, slp=0):
            for i in range(8, 14): a(f"v_mov_b32 v{GB+i}, 0")
            loads = [f"buffer_load_dwordx4 {q4(GB)}, v{aML}, {WS}, s58 offen sc1",
                     f"buffer_load_dwordx4 {q4(GB+4)}, v{aML}, {WS}, s60 offen sc1",
                     "s_mov_b32 exec_hi, 0",
                     f"buffer_load_dwordx4 {q4(GB+8)}, v{aML}, {WS}, s61 offen sc1"]
            if with_stats:
                loads += ["s_mov_b64 exec, s[44:45]", f"buffer_load_dwordx2 v[{GB+12}:{GB+13}], v{aXS}, {WS}, s63 offen offset:{MISC} sc1"]
            loads += ["s_mov_b64 exec, -1"]
            return loads, range(GB, GB + (14 if with_stats else 12))
        def hp_reduce_ops(dst):
            o = [f"v_add_f32 v{GB+i}, v{GB+i}, v{GB+4+i}" for i in range(4)] + [f"v_add_f32 v{GB+i}, v{GB+i}, v{GB+8+i}" for i in range(4)]
            o += [f"v_permlane32_swap_b32 v{GB}, v{GB+2}", f"v_permlane32_swap_b32 v{GB+1}, v{GB+3}",
                  f"v_add_f32 v{GB}, v{GB}, v{GB+2}", f"v_add_f32 v{GB+1}, v{GB+1}, v{GB+3}",
                  f"v_permlane16_swap_b32 v{GB}, v{GB+1}", f"v_add_f32 v{dst}, v{GB}, v{GB+1}"]
            return o
        a("s_cmp_lg_u32 s54, 0\ns_cbranch_scc1 L_p5_nocs")
        self.w2_loads()
        a(f"s_add_u32 s58, s62, {HPC}\ns_add_u32 s60, s58, {4*BS}\ns_add_u32 s61, s58, {8*BS}")
        a("s_barrier")
        ld_, rg_ = hp_gather(False)
        self.poll(ld_, rg_)
        for x in hp_reduce_ops(CSW1): a(x)
        a(f"v_lshlrev_b32 v{B1V}, 16, v{B1V}")
        a("s_branch L_p5_g")
        a("L_p5_nocs:")
        a("s_barrier")
        self.sleep(self.HSL)
        a("L_p5_g:")
        self.sel_layer(58, HPR, 62)
        a(f"s_add_u32 s60, s58, {4*BS}\ns_add_u32 s61, s58, {8*BS}")
        a(f"s_mul_i32 s63, s54, 3\ns_add_u32 s63, s63, s57\ns_add_u32 s63, s63, 1\ns_mul_i32 s63, s63, {BS}\ns_add_u32 s63, s63, s53")
        ld_, rg_ = hp_gather(True)
        self.poll(ld_, rg_)
        self.stamp(8)
        s1, s2 = GB + 12, GB + 13
        H = T[0]
        c1 = self.row16_ops(s1, s2) + self.ln_ops(s1, s2, T[5])
        c2 = hp_reduce_ops(H)
        while c1 or c2:
            if c1: a(c1.pop(0))
            if c1 and len(c1) > 14: a(c1.pop(0))
            if c2: a(c2.pop(0))
        self.sel_layer(58, ZO, 52)
        a(f"v_fma_f32 v{H}, -v{s1}, v{CSW1}, v{H}\nv_mul_f32 v{H}, v{H}, v{s2}")
        self.bf16r(H, H)
        a(f"v_add_f32 v{H}, v{H}, v{B1V}")
        self.bf16r(H, H)
        E = T[1]; N = T[2]; Dn = T[3]
        a(f"v_mul_f32 v{E}, 0x3fb8aa3b, v{H}\nv_exp_f32 v{E}, -|v{E}|")
        a(f"v_cmp_gt_f32 vcc, 0, v{H}\nv_mov_b32 v{T[4]}, 2.0")
        a(f"v_fma_f32 v{N}, v{E}, 2.0, 1.0\nv_add_f32 v{Dn}, 2.0, v{E}\nv_mul_f32 v{Dn}, v{Dn}, v{E}")
        a(f"v_mul_f32 v{E}, v{E}, v{E}\nv_add_f32 v{E}, v{E}, v{E}")
        a(f"v_cndmask_b32 v{N}, v{N}, v{Dn}, vcc\nv_cndmask_b32 v{E}, v{E}, v{T[4]}, vcc")
        a(f"v_add_f32 v{Dn}, v{N}, v{E}\nv_rcp_f32 v{Dn}, v{Dn}\nv_mul_f32 v{N}, v{N}, v{H}\nv_mul_f32 v{N}, v{N}, v{Dn}")
        a(f"v_mov_b32_dpp v{E}, v{N} row_ror:8 {DPPALL}\nv_cvt_pk_bf16_f32 v{T[4]}, v{N}, v{E}")
        self.gemv_bcast(ACC, T[4], WB, 8)
        self.pair32(ACC, T[0], T[1])
        a(f"v_cvt_pk_bf16_f32 v{T[0]}, v{T[0]}, v{T[1]}")
        a("s_mov_b64 exec, s[64:65]")
        a(f"buffer_store_dword v{T[0]}, v{aP32}, {WS}, s58 offen sc1")
        a("s_mov_b64 exec, -1")
        self.stamp(9)
        a("s_barrier")
        a("L_k_next:")
        a("s_cmp_lg_u32 s54, 0\ns_cbranch_scc1 L_final")
        self.dump_stamps()
        a("s_mov_b32 s54, 1")
        a("s_cmp_lg_u32 s3, 2\ns_cbranch_scc1 L_kloop")
        for u in range(3):
            a(f"buffer_load_dword v{GB+4+u}, v{aQG}, {WS}, 0 offen offset:{QP1 + 128*u} sc1")
        a("s_branch L_kloop")
        a("L_final:")
        a("s_cmp_lg_u32 s3, 3\ns_cbranch_scc1 L_fin2\ns_cmp_lg_u32 s4, 0\ns_cbranch_scc1 L_fin2\ns_cmp_ge_u32 s5, 10\ns_cbranch_scc1 L_fin2")
        self.zgather(1, self.FSL)
        a("s_lshl_b32 s58, s5, 7")
        a("s_mov_b64 exec, s[64:65]")
        a(f"buffer_store_dword v{T[4]}, v{aP32}, s[40:43], s58 offen")
        a("s_cmp_lg_u32 s2, 0\ns_cbranch_scc1 L_fin1")
        a(f"s_mov_b64 exec, 1\nv_mov_b32 v{T[0]}, s74\nv_mov_b32 v{T[1]}, {GEN_OFF}")
        a(f"buffer_store_dword v{T[0]}, v{T[1]}, {WS}, 0 offen sc1")
        a("L_fin1:")
        a("s_mov_b64 exec, -1")
        self.stamp(11)
        a("L_fin2:")
        self.dump_stamps()
        a("s_endpgm")

        a("L_pro_v:")
        if "dbl" in self.knobs:
            a(f"v_mul_u32_u24 v{T[0]}, 384, v2\nv_lshl_add_u32 v{T[0]}, v1, 4, v{T[0]}\ns_sub_u32 s61, s59, {6144*384}")
            for srd in ("s[12:15]", "s[16:19]"):
                for n in range(24):
                    rg, th = divmod(n, 3)
                    if th == 0: a(f"s_add_u32 s58, s61, {rg*8*384}")
                    a(f"buffer_load_dwordx4 {q4(KV+4*n)}, v{T[0]}, {srd}, s58 offen offset:{th*128} nt")
            a("s_waitcnt vmcnt(12)")
        self.k_dma()
        a(f"v_mul_u32_u24 v{T[0]}, 384, v2\nv_lshl_add_u32 v{T[0]}, v1, 4, v{T[0]}")
        for n in range(24):
            rg, th = divmod(n, 3)
            if n == self.NB:
                a(f"s_lshl_b32 s60, s3, 2\nv_mov_b32 v{T[2]}, s60\nv_mov_b32 v{T[3]}, 1")
                a(f"s_waitcnt vmcnt({self.NB})\nds_write_b32 v{T[2]}, v{T[3]} offset:{L_CTRL}")
                self.stamp(11)
            if th == 0: a(f"s_add_u32 s58, s59, {rg*8*384}")
            a(f"buffer_load_dwordx4 {q4(KV+4*n)}, v{T[0]}, s[16:19], s58 offen offset:{th*128} nt")
        self.stamp(1)
        self.consts()
        self.vwave_addrs()
        a("s_branch L_v_b2")
        a("L_vloop:")
        a(f"buffer_load_dword v{XA+2}, v{aQG}, {WS}, 0 offen offset:{OP[1]} sc1")
        a("s_cmp_eq_u32 s3, 7\ns_cbranch_scc1 L_v7_b1")
        a(f"v_mov_b32 v{GB}, 0\nv_mov_b32 v{GB+2}, 0\nv_mov_b32 v{GB+3}, 0\ns_add_u32 s58, s53, {7*BS}")
        self.sleep(self.XSL)
        self.poll(["s_mov_b64 exec, s[44:45]", f"buffer_load_dword v{GB}, v{aX2}, {WS}, 0 offen offset:{X2O} sc1",
                   f"buffer_load_dwordx2 v[{GB+2}:{GB+3}], v{aXS}, {WS}, s58 offen offset:{MISC} sc1", "s_mov_b64 exec, -1"], [GB, GB + 2, GB + 3], slp=1)
        a("s_barrier")
        self.stamp(1)
        self.qproj(GB, GB + 2, GB + 3, self.row16_ops(GB + 2, GB + 3))
        a("s_mov_b64 exec, s[64:65]")
        self.local_stores([f"buffer_store_dword v{T[4]}, v{aST}, {WS}, 0 offen offset:{QP1}{{f}}"])
        a("s_mov_b64 exec, -1")
        self.stamp(3)
        a("s_branch L_v_b2")
        a("L_v7_b1:")
        a("s_barrier")
        a("L_v_b2:")
        a(f"s_and_b32 s58, s3, 3\ns_mul_i32 s58, s58, 768\nv_add_u32 v{T[3]}, s58, v{lane4}")
        a("s_barrier")
        self.stamp(5)
        a(f"ds_read_b128 {q4(GB)}, v{ldsP}\nds_read_b128 {q4(GB+4)}, v{ldsP} offset:16")
        a("s_cmp_lg_u32 s54, 0\ns_cbranch_scc1 L_v_nowo")
        self.wo_loads()
        a("L_v_nowo:")
        a("s_waitcnt lgkmcnt(0)")
        self.build_A(AB[0], GB)
        for G in range(8):
            a(f"s_waitcnt vmcnt({8 + 21 - 3*G})")
            for th in range(3):
                self.mfma(ACC + 4 * th, AB[G & 1], KV + (G * 3 + th) * 4, G == 0)
                if G + 1 < 8 and th < 2:
                    for d in (2 * th, 2 * th + 1):
                        a(f"v_perm_b32 v{AB[(G+1)&1]+d}, v{GB+G+1}, v{GB+G+1}, v{SEL+d}")
        for th in range(3):
            self.l64(ACC + 4 * th, T[th])
            a(f"ds_write_b32 v{T[3]}, v{T[th]} offset:{L_O + 256*th}")
        self.sel_layer(58, OP)
        a("s_lshl_b32 s60, s54, 6")
        a("s_waitcnt lgkmcnt(0)\ns_barrier")
        self.stamp(6)
        a("s_cmp_ge_u32 s5, 30\ns_cbranch_scc1 L_v_next")
        self.sleep(self.OSL)
        self.poll([f"buffer_load_dwordx4 {q4(GB)}, v{aQG}, {WS}, s58 offen sc1",
                   f"buffer_load_dwordx2 v[{GB+4}:{GB+5}], v{aML}, {WS}, s60 offen offset:{MISC} sc1"], range(GB, GB + 6))
        self.stamp(8)
        M = T[0]; W = T[1]
        a(f"v_max_f32_dpp v{M}, v{GB+4}, v{GB+4} {Q1} {DPPALL}")
        a(f"v_max_f32_dpp v{M}, v{M}, v{M} {Q2} {DPPALL}\nv_max_f32_dpp v{M}, v{M}, v{M} {HM} {DPPALL}")
        a(f"v_sub_f32 v{W}, v{GB+4}, v{M}\nv_exp_f32 v{W}, v{W}\nv_mul_f32 v{W}, v{W}, v{GB+5}")
        a(f"v_mov_b32_dpp v{T[2]}, v{W} row_newbcast:0 {DPPALL}\nv_mov_b32_dpp v{T[3]}, v{W} row_newbcast:1 {DPPALL}")
        a(f"v_cvt_pk_bf16_f32 v{T[2]}, v{T[2]}, v{T[3]}")
        self.build_A(AB[0], T[2])
        self.bf16r(W, W)
        self.mfma(ACC, AB[0], GB, True)
        for c in (Q1, Q2, HM):
            a(f"v_add_f32_dpp v{W}, v{W}, v{W} {c} {DPPALL}")
        a(f"v_rcp_f32 v{W}, v{W}")
        self.pair32(ACC, T[2], T[3])
        a(f"v_mul_f32 v{T[2]}, v{T[2]}, v{W}\nv_mul_f32 v{T[3]}, v{T[3]}, v{W}\nv_cvt_pk_bf16_f32 v{T[4]}, v{T[2]}, v{T[3]}")
        self.gemv_bcast(ACC + 4, T[4], WB, 8)
        a(f"s_and_b32 s58, s3, 3\ns_lshl_b32 s58, s58, 8\nv_add_u32 v{T[3]}, s58, v{lane4}")
        self.l64(ACC + 4, T[0])
        a(f"ds_write_b32 v{T[3]}, v{T[0]} offset:{L_YR}")
        self.sel_layer(58, YO, 52)
        a("s_waitcnt lgkmcnt(0)\ns_barrier")
        a("s_cmp_lg_u32 s3, 7\ns_cbranch_scc1 L_v_b5")
        for w in range(4): a(f"ds_read_b32 v{GB+w}, v{lane4} offset:{L_YR + 256*w}")
        a("s_waitcnt lgkmcnt(0)")
        a(f"v_add_f32 v{GB}, v{GB}, v{GB+1}\nv_add_f32 v{GB+2}, v{GB+2}, v{GB+3}\nv_add_f32 v{T[0]}, v{GB}, v{GB+2}")
        a(f"v_mov_b32_dpp v{T[1]}, v{T[0]} row_ror:8 {DPPALL}\nv_cvt_pk_bf16_f32 v{T[0]}, v{T[0]}, v{T[1]}")
        a("s_mov_b64 exec, s[64:65]")
        a(f"buffer_store_dword v{T[0]}, v{aP32}, {WS}, s58 offen sc1")
        a("s_mov_b64 exec, -1")
        self.stamp(9)
        a("L_v_b5:")
        a("s_cmp_lg_u32 s54, 0\ns_cbranch_scc1 L_v_b5b")
        self.v_fetch_wq()
        self.dump_stamps()
        a("L_v_b5b:")
        a("s_barrier\ns_barrier")
        a("s_cmp_lg_u32 s54, 0\ns_cbranch_scc1 L_fin2")
        a("s_mov_b32 s54, 1\ns_branch L_vloop")
        a("L_v_next:")
        a("s_cmp_lg_u32 s54, 0\ns_cbranch_scc1 L_fin2")
        self.v_fetch_wq()
        self.dump_stamps()
        a("s_mov_b32 s54, 1\ns_sleep 48\ns_branch L_vloop")
        a("L_end:\ns_endpgm")
        a('.section .rodata,"a"\n.p2align 6')
        a(f".amdhsa_kernel {KNAME}")
        a(".amdhsa_next_free_vgpr 256\n.amdhsa_next_free_sgpr 102\n.amdhsa_accum_offset 256\n.amdhsa_group_segment_fixed_size 0\n.amdhsa_kernarg_size 96")
        a(".amdhsa_user_sgpr_count 2\n.amdhsa_user_sgpr_kernarg_segment_ptr 1\n.amdhsa_system_sgpr_workgroup_id_x 1\n.end_amdhsa_kernel")
        return a.render()

    def code_prefetch(self):
        a = self.a
        le = self.L("cpf")
        a(f"s_cmp_lg_u32 s3, 1\ns_cbranch_scc1 {le}\ns_cmp_lg_u32 s54, 0\ns_cbranch_scc1 {le}")
        a("s_getpc_b64 s[72:73]")
        a("L_pcref:")
        a(f"s_sub_u32 s72, s72, L_pcref-{KNAME}\ns_subb_u32 s73, s73, 0")
        a(f"v_lshlrev_b32 v{T[0]}, 5, v0\nv_add_u32 v{T[0]}, s5, v{T[0]}\nv_lshlrev_b32 v{T[0]}, 7, v{T[0]}")
        a(f"v_mov_b32 v{T[1]}, L_end-{KNAME}\nv_cmp_lt_u32 vcc, v{T[0]}, v{T[1]}\ns_and_b64 exec, vcc, exec")
        a(f"global_load_dword v{XA+5}, v{T[0]}, s[72:73] sc1")
        a("s_mov_b64 exec, -1")
        a(f"{le}:")

    def v_fetch_wq(self):
        a = self.a
        a(f"s_and_b32 s58, s3, 3\ns_min_u32 s58, s58, 2\ns_mul_i32 s58, s58, 10752\ns_add_u32 s58, s58, {L_WQ}\nv_lshlrev_b32 v{T[0]}, 4, v0\nv_add_u32 v{T[0]}, s58, v{T[0]}")
        for t in range(10):
            a(f"ds_read_b128 {q4(WA+4*t)}, v{T[0]} offset:{1024*t}")
        a(f"v_add_u32 v{T[1]}, s58, v{lane4}\nds_read_b32 v{CS0}, v{T[1]} offset:10240\nds_read_b32 v{CS1}, v{T[1]} offset:10496")
        self.read_fast()
        a(f"s_add_u32 s58, s53, {7*BS}\nbuffer_load_dword v{XA+3}, v{aX2}, {WS}, 0 offen offset:{X2O} sc1\nbuffer_load_dword v{XA+4}, v{aXS}, {WS}, s58 offen offset:{MISC} sc1")

    def zgather(self, layer, slp):
        a = self.a
        a(f"s_mul_i32 s58, s56, {BS}\ns_add_u32 s60, s58, {10*BS}\ns_add_u32 s61, s58, {20*BS}")
        self.sleep(slp)
        self.poll([f"buffer_load_dwordx4 {q4(GB+4*n)}, v{aROW}, {WS}, s{(58,60,61)[n]} offen offset:{ZO[layer]} sc1" for n in range(3)], range(GB, GB + 12))
        self.stamp(10 if layer else 1)
        for n in range(3): self.mfma(ACC, ONES, GB + 4 * n, n == 0)
        self.resid_add()

REF = "interleave_layers__sliding_block_cached__dense_activation_mish__decode.s.ref"
HEADER = open(REF).read().split("; Override")[0] if os.path.exists(REF) else ""

if __name__ == "__main__":
    prof = {"prof": 1}.get(sys.argv[2], 0) if len(sys.argv) > 2 else 0
    open(sys.argv[1], "w").write(HEADER + Gen(prof, sys.argv[3:]).gen())
```

```python
import sys, os
sys.path.insert(0, "gen")
from asmlib import Asm

KNAME = "interleave_layers__sliding_block_cached__dense_activation_mish__decode_kernel"
BS = 4736
YO = [0, 128]; ZO = [256, 384]
QP1 = 512
OP = [896, 1280]
MISC = 1664
HPR = [1792, 2048]; HPC = 2304
X2O = 2560
CLR_END = 2816
QP0T = 3072
GEN_OFF = 256 * BS
FL1 = GEN_OFF + 4096; FL2 = GEN_OFF + 8192
WS_USED = GEN_OFF + 12288
PROF_OFF = 2 << 20
L_CTRL = 0
L_ML = 128
L_P = 256
L_O = 1024
L_YR = 4096
L_Q = 5120
L_K = 8192
L_WQ = L_K + 98304
LDS_BYTES = L_WQ + 3 * 10752
POLL_LIMIT = 200000
ONES = 4; SEL = 8; AB = [12, 16]; ACC = 20; GB = 36; XA = 60
aQG = 70; aP32 = 71; aROW = 72; aML = 73; aST = 74; ldsP = 75; lane4 = 76
CS0 = 77; CS1 = 78; X0 = 79; X1 = 80; B1V = 81; CSW1 = 82
T = [83, 84, 85, 86, 87, 1, 2, 3]
aX2 = 68; aXS = 69
KV = 88; WA = 184; WB = 224
WS = "s[48:51]"

def q4(r): return f"v[{r}:{r+3}]"
DPPALL = "row_mask:0xf bank_mask:0xf"
Q1 = "quad_perm:[1,0,3,2]"; Q2 = "quad_perm:[2,3,0,1]"; HM = "row_half_mirror"; RM = "row_mirror"

class Gen:
    def __init__(self, prof=0, knobs=()):
        self.knobs = set(knobs)
        self.LL = 4; self.LL2 = 4; self.W2SL = 16; self.OSC = 0; self.AL = 1; self.ALP = 5; self.SHIFT = 0; self.CPF = 1; self.NB = 8; self.QSLEEP0 = 24; self.QSLEEP1 = 24
        self.QSL = 13; self.OSL = 10; self.YSL0 = 12; self.YSL = 16; self.HSL = 11; self.ZSL = 12; self.XSL = 24; self.FSL = 8
        for k in knobs:
            if '=' in k: setattr(self, k.split('=')[0], int(k.split('=')[1]))
        self.a = Asm(); self.prof = prof; self.uid = 0
    def L(self, base):
        self.uid += 1
        return f"L_{base}_{self.uid}"
    def stamp(self, i):
        if self.prof: self.a(f"s_memrealtime s[{76+2*i}:{77+2*i}]")
    def al(self, n=3):
        if self.AL: self.a(f".p2align {n}")
    def sleep(self, n):
        if n: self.a(f"s_sleep {n}")
    def dump_stamps(self):
        if not self.prof: return
        a = self.a
        a("s_waitcnt lgkmcnt(0)")
        a(f"v_mov_b32 v{T[0]}, 0")
        for i in range(13):
            a(f"v_writelane_b32 v{T[0]}, s{76+2*i}, {i}")
        a("s_lshl_b32 s58, s2, 3\ns_add_u32 s58, s58, s3\ns_lshl_b32 s58, s58, 1\ns_add_u32 s58, s58, s54\ns_lshl_b32 s58, s58, 6")
        a(f"s_add_u32 s58, s58, {PROF_OFF}")
        a("s_mov_b64 exec, 0xffff")
        a(f"buffer_store_dword v{T[0]}, v{lane4}, {WS}, s58 offen")
        a("s_mov_b64 exec, -1")
        for i in range(13):
            a(f"s_mov_b64 s[{76+2*i}:{77+2*i}], 0")
    def dump0(self):
        if not self.prof: return
        l = self.L("nd")
        self.a(f"s_cmp_lg_u32 s54, 0\ns_cbranch_scc1 {l}")
        self.dump_stamps()
        self.a(f"{l}:")
    def local_stores(self, lines):
        a = self.a
        ls, ld = self.L("sl"), self.L("sd")
        a(f"s_cmp_eq_u32 s55, 0\ns_cbranch_scc1 {ls}")
        for x in lines: a(x.replace("{f}", ""))
        a(f"s_branch {ld}\n{ls}:")
        for x in lines: a(x.replace("{f}", " sc1"))
        a(f"{ld}:")
    def poll(self, loads, regs, entry=None, slp=0):
        a = self.a
        lp, ld = self.L("poll"), self.L("got")
        a("s_mov_b32 s70, 0")
        a(f"{lp}:")
        for x in loads: a(x)
        if entry: a(f"{entry}:")
        a("s_waitcnt vmcnt(0)")
        t = T[7]
        rs = list(regs)
        if len(rs) == 1:
            a(f"v_cmp_eq_u32 vcc, -1, v{rs[0]}")
        else:
            if len(rs) == 2:
                a(f"v_max_u32 v{t}, v{rs[0]}, v{rs[1]}"); rs = []
            else:
                a(f"v_max3_u32 v{t}, v{rs[0]}, v{rs[1]}, v{rs[2]}"); rs = rs[3:]
            while rs:
                if len(rs) >= 2:
                    a(f"v_max3_u32 v{t}, v{t}, v{rs[0]}, v{rs[1]}"); rs = rs[2:]
                else:
                    a(f"v_max_u32 v{t}, v{t}, v{rs[0]}"); rs = rs[1:]
            a(f"v_cmp_eq_u32 vcc, -1, v{t}")
        a(f"s_cbranch_vccz {ld}")
        self.sleep(slp)
        a(f"s_add_u32 s70, s70, 1\ns_cmp_lt_u32 s70, {POLL_LIMIT}\ns_cbranch_scc1 {lp}")
        self.al(self.ALP)
        a(f"{ld}:")
    def build_A(self, dst, src):
        for d in range(4):
            self.a(f"v_perm_b32 v{dst+d}, v{src}, v{src}, v{SEL+d}")
    def mfma(self, D, A, B, first):
        self.a(f"v_mfma_f32_16x16x32_bf16 {q4(D)}, {q4(A)}, {q4(B)}, {'0' if first else q4(D)}")
    def pair32(self, D, t0, t1):
        self.a(f"v_add_f32_dpp v{t0}, v{D+1}, v{D} row_ror:8 {DPPALL}")
        self.a(f"v_add_f32_dpp v{t1}, v{D+3}, v{D+2} row_ror:8 {DPPALL}")
    def l64(self, D, t):
        self.a(f"v_add_f32_dpp v{t}, v{D+1}, v{D} row_ror:8 row_mask:0xf bank_mask:0x3")
        self.a(f"v_add_f32_dpp v{t}, v{D+2}, v{D+3} row_ror:8 row_mask:0xf bank_mask:0xc")
    def gemv_bcast(self, D, pair, W, n, fill=()):
        a = self.a
        fill = list(fill)
        tb = [T[5], T[6]]
        self.al()
        a(f"v_mov_b32_dpp v{tb[0]}, v{pair} row_newbcast:0 {DPPALL}")
        for t in range(n):
            if t + 1 < n:
                a(f"v_mov_b32_dpp v{tb[(t+1)&1]}, v{pair} row_newbcast:{t+1} {DPPALL}")
            self.build_A(AB[t & 1], tb[t & 1])
            if t > 0: self.mfma(D, AB[(t-1) & 1], W + 4 * (t-1), t == 1)
            for _ in range(2):
                if fill: a(fill.pop(0))
        self.mfma(D, AB[(n-1) & 1], W + 4 * (n-1), n == 1)
        for x in fill: a(x)
    def bf16r_ops(self, dst, src):
        return [f"v_cvt_pk_bf16_f32 v{dst}, v{src}, v{src}", f"v_lshlrev_b32 v{dst}, 16, v{dst}"]
    def bf16r(self, dst, src):
        for x in self.bf16r_ops(dst, src): self.a(x)
    def ln_ops(self, s1, s2, t):
        inv = "0x3acccccd"
        return [f"v_mul_f32 v{s1}, {inv}, v{s1}", f"v_mul_f32 v{s2}, {inv}, v{s2}", f"v_fma_f32 v{s2}, -v{s1}, v{s1}, v{s2}",
                f"v_max_f32 v{s2}, 0, v{s2}", f"v_cvt_pk_bf16_f32 v{t}, v{s1}, v{s2}", f"v_lshlrev_b32 v{s1}, 16, v{t}",
                f"v_and_b32 v{s2}, 0xffff0000, v{t}", f"v_add_f32 v{s2}, 0x3727c5ac, v{s2}"] + self.bf16r_ops(s2, s2) + \
               [f"v_sqrt_f32 v{s2}, v{s2}"] + self.bf16r_ops(s2, s2) + [f"v_rcp_f32 v{s2}, v{s2}"]
    def red2_ops(self, s1, s2, steps, tmp):
        return [f"v_permlane32_swap_b32 v{s1}, v{s2}", f"v_add_f32 v{s1}, v{s1}, v{s2}", f"v_mov_b32 v{tmp}, v{s1}",
                f"v_permlane16_swap_b32 v{s1}, v{tmp}", f"v_add_f32 v{s1}, v{s1}, v{tmp}"] + \
               [f"v_add_f32_dpp v{s1}, v{s1}, v{s1} {c} {DPPALL}" for c in steps]
    def row16_ops(self, s1, s2):
        out = []
        for c in (Q1, Q2, HM, RM):
            out += [f"v_add_f32_dpp v{s1}, v{s1}, v{s1} {c} {DPPALL}", f"v_add_f32_dpp v{s2}, v{s2}, v{s2} {c} {DPPALL}"]
        return out
    def allred64(self, op, v, tmp):
        a = self.a
        for c in (Q1, Q2, HM, RM):
            a(f"{op}_dpp v{v}, v{v}, v{v} {c} {DPPALL}")
        a(f"v_mov_b32 v{tmp}, v{v}\nv_permlane16_swap_b32 v{v}, v{tmp}\n{op} v{v}, v{v}, v{tmp}")
        a(f"v_mov_b32 v{tmp}, v{v}\nv_permlane32_swap_b32 v{v}, v{tmp}\n{op} v{v}, v{v}, v{tmp}")
    def sel_layer(self, dst, arr, add=None):
        a = self.a
        a(f"s_mul_i32 s{dst}, s54, {arr[1]-arr[0]}")
        if arr[0]: a(f"s_add_u32 s{dst}, s{dst}, {arr[0]}")
        if add is not None: a(f"s_add_u32 s{dst}, s{dst}, s{add}")
    def lds_wait_flag(self, off, val=None):
        a = self.a
        lp, ld = self.L("lw"), self.L("lg")
        t = T[5]; t2 = T[6]
        a(f"v_mov_b32 v{t2}, {off}\ns_mov_b32 s70, 0")
        a(f"{lp}:\nds_read_b32 v{t}, v{t2}\ns_waitcnt lgkmcnt(0)\nv_readfirstlane_b32 s58, v{t}")
        a(f"s_cmp_lg_u32 s58, 0\ns_cbranch_scc1 {ld}" if val is None else f"s_cmp_eq_u32 s58, {val}\ns_cbranch_scc1 {ld}")
        a(f"s_sleep 1\ns_add_u32 s70, s70, 1\ns_cmp_lt_u32 s70, {4*POLL_LIMIT}\ns_cbranch_scc1 {lp}")
        a(f"{ld}:")
    def read_fast(self):
        self.a(f"v_mov_b32 v{T[2]}, {L_CTRL+4}\nds_read_b32 v{T[2]}, v{T[2]}\ns_waitcnt lgkmcnt(0)\nv_readfirstlane_b32 s55, v{T[2]}")
    def make_tag(self):
        self.a("s_waitcnt lgkmcnt(0)\ns_mul_i32 s74, s74, 1664525\ns_add_u32 s74, s74, 1013904223")
    def resid_add(self):
        a = self.a
        self.pair32(ACC, T[2], T[3])
        a(f"v_cvt_pk_bf16_f32 v{T[4]}, v{T[2]}, v{T[3]}")
        a(f"v_lshlrev_b32 v{T[2]}, 16, v{T[4]}\nv_and_b32 v{T[3]}, 0xffff0000, v{T[4]}")
        a(f"v_add_f32 v{T[2]}, v{T[2]}, v{X0}\nv_add_f32 v{T[3]}, v{T[3]}, v{X1}")
        a(f"v_cvt_pk_bf16_f32 v{T[4]}, v{T[2]}, v{T[3]}")
    def unpackX_ops(self, src):
        return [f"v_lshlrev_b32 v{X0}, 16, v{src}", f"v_and_b32 v{X1}, 0xffff0000, v{src}"]
    def xstats_ops(self, s1, s2, tmp):
        return [f"v_add_f32 v{s1}, v{X0}, v{X1}", f"v_mul_f32 v{s2}, v{X0}, v{X0}", f"v_fmac_f32 v{s2}, v{X1}, v{X1}"] + self.red2_ops(s1, s2, (Q1, Q2, HM), tmp)
    def rows24_loads(self, off_arr):
        a = self.a
        self.sel_layer(58, off_arr)
        a(f"s_mul_i32 s60, s56, {BS}\ns_add_u32 s58, s58, s60\ns_add_u32 s60, s58, {10*BS}\ns_add_u32 s61, s58, {20*BS}")
        return [f"buffer_load_dwordx4 {q4(GB+4*n)}, v{aROW}, {WS}, s{(58,60,61)[n]} offen sc1" for n in range(3)]
    def consts(self):
        a = self.a
        t0, t1, t2 = T[0], T[1], T[2]
        a(f"v_and_b32 v{t0}, 1, v0\nv_mul_u32_u24 v{t0}, 0x202, v{t0}\nv_add_u32 v{t0}, 0x100, v{t0}")
        a(f"v_bfe_u32 v{t1}, v0, 1, 1\nv_lshlrev_b32 v{t1}, 4, v{t1}\nv_lshlrev_b32 v{t0}, v{t1}, v{t0}")
        a(f"v_mov_b32 v{t2}, 0x0c0c0000\nv_lshrrev_b32 v{t2}, v{t1}, v{t2}\nv_or_b32 v{t0}, v{t0}, v{t2}")
        a(f"v_bfe_u32 v{t1}, v0, 2, 2\nv_mov_b32 v{t2}, 0x0c0c0c0c")
        for d in range(4):
            a(f"v_cmp_eq_u32 vcc, {d}, v{t1}\nv_cndmask_b32 v{SEL+d}, v{t2}, v{t0}, vcc")
        a(f"v_mov_b32 v{t0}, 0x3f803f80")
        self.build_A(ONES, t0)
    def kwave_addrs(self):
        a = self.a
        t0, t1, t2 = T[0], T[1], T[2]
        a(f"v_lshrrev_b32 v{t0}, 3, v0\nv_and_b32 v{t1}, 7, v0\ns_mov_b32 s58, {32*BS}\nv_mul_lo_u32 v{aROW}, s58, v{t0}\nv_lshl_add_u32 v{aROW}, v{t1}, 4, v{aROW}")
        a(f"v_mul_u32_u24 v{aX2}, {BS}, v{t1}\nv_lshrrev_b32 v{t1}, 4, v0\nv_lshl_add_u32 v{aX2}, v{t1}, 6, v{aX2}")
        a(f"s_lshl_b32 s58, s56, 2\ns_add_u32 s58, s58, s53\nv_add_u32 v{aX2}, s58, v{aX2}")
        a(f"v_bfe_u32 v{t0}, v0, 3, 1\nv_lshl_add_u32 v{t0}, v{t0}, 2, v{t1}\nv_mul_u32_u24 v{aQG}, {BS}, v{t0}")
        a(f"v_and_b32 v{t0}, 7, v0\nv_lshl_add_u32 v{aQG}, v{t0}, 4, v{aQG}")
        a(f"s_mul_i32 s58, s6, {8*BS}\ns_add_u32 s58, s58, s53\nv_add_u32 v{aQG}, s58, v{aQG}")
        a(f"v_and_b32 v{t0}, 3, v0\nv_lshlrev_b32 v{t0}, 4, v{t0}\nv_lshl_add_u32 v{t0}, v{t1}, 2, v{t0}\nv_bfe_u32 v{t2}, v0, 2, 2\nv_add_u32 v{t0}, v{t0}, v{t2}")
        a(f"v_bfe_u32 v{t2}, v{t0}, 1, 2\nv_lshlrev_b32 v{ldsP}, 5, v{t2}\nv_lshrrev_b32 v{t2}, 3, v{t0}\nv_lshl_add_u32 v{ldsP}, v{t2}, 2, v{ldsP}")
        a(f"v_and_b32 v{t2}, 1, v{t0}\nv_lshl_add_u32 v{ldsP}, v{t2}, 1, v{ldsP}")
        a(f"s_lshl_b32 s58, s3, 7\ns_add_u32 s58, s58, {L_P}\nv_add_u32 v{ldsP}, s58, v{ldsP}")
        a(f"v_and_b32 v{t0}, 15, v0\nv_mul_u32_u24 v{aML}, {BS}, v{t1}\nv_lshl_add_u32 v{aML}, v{t0}, 4, v{aML}")
        a(f"v_lshlrev_b32 v{aST}, 4, v{t0}\nv_lshl_add_u32 v{aST}, v{t1}, 2, v{aST}\nv_lshlrev_b32 v{aXS}, 3, v{t0}")
    def vwave_addrs(self):
        a = self.a
        a("v_and_b32 v1, 7, v0\nv_lshrrev_b32 v2, 3, v0\nv_lshrrev_b32 v3, 4, v0")
        a("s_min_u32 s61, s57, 2\ns_lshl_b32 s58, s61, 2\ns_and_b32 s60, s3, 3\ns_add_u32 s58, s58, s60\ns_mul_i32 s60, s58, 43\ns_lshr_b32 s60, s60, 7")
        a("s_mul_i32 s61, s60, 3\ns_sub_u32 s58, s58, s61")
        a(f"s_mul_i32 s60, s60, {8*BS}\ns_add_u32 s60, s60, s53\ns_lshl_b32 s58, s58, 7\ns_add_u32 s58, s58, s60")
        a(f"v_mul_u32_u24 v{aQG}, {BS}, v2\nv_lshl_add_u32 v{aQG}, v1, 4, v{aQG}\nv_add_u32 v{aQG}, s58, v{aQG}")
        a(f"v_lshl_add_u32 v{aML}, v3, 1, v0\nv_and_b32 v{aML}, 7, v{aML}\nv_lshlrev_b32 v{aML}, 3, v{aML}\nv_add_u32 v{aML}, s60, v{aML}")
        a(f"s_and_b32 s58, s3, 3\ns_lshl_b32 s58, s58, 7\ns_add_u32 s58, s58, {L_P}\nv_lshlrev_b32 v{ldsP}, 5, v3\nv_add_u32 v{ldsP}, s58, v{ldsP}")
        a(f"s_mul_i32 s58, s6, {8*BS}\ns_add_u32 s58, s58, s53\ns_and_b32 s60, s3, 3\ns_lshl_b32 s60, s60, 7\ns_add_u32 s58, s58, s60\ns_lshl_b32 s60, s7, 4\ns_add_u32 s58, s58, s60")
        a(f"v_mul_u32_u24 v{aST}, {BS}, v1\nv_lshl_add_u32 v{aST}, v3, 2, v{aST}\nv_add_u32 v{aST}, s58, v{aST}")
        a(f"s_mul_i32 s58, s7, {BS}\ns_add_u32 s58, s58, s53\nv_add_u32 v{aX2}, s58, v{lane4}")
        a(f"v_and_b32 v{aXS}, 15, v0\nv_lshlrev_b32 v{aXS}, 3, v{aXS}\nv_mov_b32 v{aROW}, 0")
    def k_dma(self):
        a = self.a
        t = T[0]; t2 = T[1]
        a(f"v_lshrrev_b32 v{t}, 3, v0\nv_and_b32 v{t2}, 6, v{t}\nv_xor_b32 v{t2}, v{t2}, v0\nv_and_b32 v{t2}, 7, v{t2}")
        a(f"v_mul_u32_u24 v{t}, 384, v{t}\nv_lshl_add_u32 v{t}, v{t2}, 4, v{t}")
        a("s_and_b32 s60, s3, 3\ns_mul_i32 s60, s60, 24576")
        a("s_barrier")
        for n in range(24):
            rg, th = divmod(n, 3)
            a(f"s_add_u32 s58, s59, {rg*8*384 + th*128}")
            a(f"s_add_u32 m0, s60, {L_K + n*1024}")
            a(f"buffer_load_dwordx4 v{t}, s[12:15], s58 offen nt lds")
    def k_to_regs(self):
        a = self.a
        t = T[0]; t2 = T[1]; t3 = T[2]
        a(f"v_and_b32 v{t}, 7, v0\nv_lshrrev_b32 v{t2}, 4, v0\nv_and_b32 v{t3}, 6, v0\nv_xor_b32 v{t2}, v{t2}, v{t3}")
        a(f"v_lshlrev_b32 v{t}, 7, v{t}\nv_bfe_u32 v{t3}, v0, 3, 1\nv_mul_u32_u24 v{t3}, 3072, v{t3}\nv_add_u32 v{t}, v{t}, v{t3}")
        a(f"s_mul_i32 s60, s3, 24576\nv_add_u32 v{t}, s60, v{t}")
        a(f"v_lshl_add_u32 v{t3}, v{t2}, 4, v{t}")
        a(f"v_xor_b32 v{t2}, 4, v{t2}\nv_lshl_add_u32 v{t2}, v{t2}, 4, v{t}")
        for tile in range(4):
            for u in range(6):
                off = L_K + (2 * tile * 3 + (u >> 1)) * 1024
                a(f"ds_read_b128 {q4(KV + (tile*6+u)*4)}, v{t2 if (u & 1) else t3} offset:{off}")
            if tile == 1: a("s_waitcnt lgkmcnt(0)")
        a("s_waitcnt lgkmcnt(0)")
    def wo_loads(self):
        a = self.a
        t1 = XA
        a(f"v_lshrrev_b32 v{t1}, 3, v0\nv_mul_u32_u24 v{t1}, 1280, v{t1}\nv_and_b32 v{XA+1}, 7, v0\nv_lshl_add_u32 v{t1}, v{XA+1}, 4, v{t1}")
        a("s_min_u32 s62, s57, 2\ns_mul_i32 s58, s4, 768\ns_lshl_b32 s60, s62, 8\ns_add_u32 s58, s58, s60\ns_and_b32 s60, s3, 3\ns_lshl_b32 s60, s60, 6\ns_add_u32 s58, s58, s60")
        a("s_mul_i32 s58, s58, 1280\ns_lshl_b32 s60, s56, 7\ns_add_u32 s58, s58, s60")
        for t in range(8):
            a(f"buffer_load_dwordx4 {q4(WB+4*t)}, v{t1}, s[24:27], s58 offen nt")
            if t < 7: a(f"s_add_u32 s58, s58, {8*1280}")
    def w1_loads(self):
        a = self.a
        t0, t1 = T[2], T[3]
        a(f"v_lshrrev_b32 v{t0}, 3, v0\nv_and_b32 v{t1}, 7, v0\nv_mul_u32_u24 v{t0}, 3072, v{t0}\nv_lshl_add_u32 v{t0}, v{t1}, 4, v{t0}")
        a(f"s_mul_i32 s58, s56, {64*3072}\ns_mul_i32 s60, s4, 384\ns_add_u32 s58, s58, s60\ns_lshl_b32 s60, s57, 7\ns_add_u32 s58, s58, s60")
        for t in range(8):
            a(f"buffer_load_dwordx4 {q4(WB+4*t)}, v{t0}, s[28:31], s58 offen nt")
            if t < 7: a(f"s_add_u32 s58, s58, {8*3072}")
    def w2_loads(self):
        a = self.a
        t0, t1 = T[2], T[3]
        a(f"v_lshrrev_b32 v{t0}, 3, v0\nv_and_b32 v{t1}, 7, v0\nv_mul_u32_u24 v{t0}, 1280, v{t0}\nv_lshl_add_u32 v{t0}, v{t1}, 4, v{t0}")
        a("s_mul_i32 s58, s4, 192\ns_lshl_b32 s60, s57, 6\ns_add_u32 s61, s58, s60\ns_mul_i32 s58, s61, 1280\ns_lshl_b32 s60, s56, 7\ns_add_u32 s58, s58, s60")
        for t in range(8):
            a(f"buffer_load_dwordx4 {q4(WB+4*t)}, v{t0}, s[36:39], s58 offen nt")
            if t < 7: a(f"s_add_u32 s58, s58, {8*1280}")
        a(f"v_bfe_u32 v{t0}, v0, 3, 1\nv_lshl_add_u32 v{t0}, v{t0}, 1, v{aP32}\ns_lshl_b32 s61, s61, 1")
        a(f"buffer_load_ushort v{B1V}, v{t0}, s[32:35], s61 offen")
    def clears(self, all_sc1):
        a = self.a
        C = XA + 4
        for i in range(4): a(f"v_mov_b32 v{C+i}, -1")
        a(f"v_lshlrev_b32 v{T[3]}, 4, v0")
        f = " sc1" if all_sc1 else ""
        a("s_mov_b32 exec_hi, 0")
        a(f"buffer_store_dwordx4 {q4(C)}, v{T[3]}, {WS}, s52 offen sc1")
        a("s_mov_b32 exec_lo, 0xffff")
        a(f"buffer_store_dwordx4 {q4(C)}, v{T[3]}, {WS}, s52 offen offset:2560{f}")
        a("s_mov_b64 exec, -1")
        for o in (512, 1536):
            a(f"buffer_store_dwordx4 {q4(C)}, v{T[3]}, {WS}, s52 offen offset:{o}{f}")
    def flag_store(self, base):
        a = self.a
        C = XA + 4
        if base == FL1:
            a("s_xor_b32 s58, s74, 0x5bd1e995\ns_andn2_b32 s58, s58, 15\ns_or_b32 s75, s75, s58")
        a(f"s_lshl_b32 s58, s4, 5\ns_add_u32 s58, s58, s5\ns_lshl_b32 s58, s58, 3\ns_add_u32 s58, s58, {base}")
        a(f"v_mov_b32 v{C}, s74\nv_mov_b32 v{C+1}, s75")
        a("s_mov_b64 exec, 1")
        a(f"buffer_store_dwordx2 v[{C}:{C+1}], v{aP32}, {WS}, s58 offen sc1")
        a("s_mov_b64 exec, -1")
    def flags_issue(self, base):
        a = self.a
        F = AB[0]
        a(f"v_lshlrev_b32 v{T[4]}, 5, v0\ns_mov_b32 s60, {base}")
        a(f"buffer_load_dwordx4 {q4(F)}, v{T[4]}, {WS}, s60 offen sc1\nbuffer_load_dwordx4 {q4(F+4)}, v{T[4]}, {WS}, s60 offen offset:16 sc1")
    def flags_wait(self, base, group_only):
        a = self.a
        F = AB[0]
        t, t2 = T[2], T[3]
        lp, lc, ld = self.L("fp"), self.L("fc"), self.L("fg")
        a("s_mov_b32 s70, 0\ns_or_b32 s61, s75, 15")
        if base == FL1: a(f"s_branch {lc}")
        a(f"{lp}:")
        self.flags_issue(base)
        a(f"{lc}:")
        a("s_waitcnt vmcnt(0)")
        a(f"v_xor_b32 v{t}, s74, v{F}")
        for i in range(1, 4):
            a(f"v_xor_b32 v{t2}, s74, v{F+2*i}\nv_or_b32 v{t}, v{t}, v{t2}")
        for i in range(4):
            a(f"v_or_b32 v{t2}, 15, v{F+2*i+1}\nv_xor_b32 v{t2}, s61, v{t2}\nv_or_b32 v{t}, v{t}, v{t2}")
        a(f"v_cmp_ne_u32 vcc, 0, v{t}")
        if group_only: a(f"s_and_b64 vcc, vcc, s[72:73]\ns_cbranch_scc0 {ld}")
        else: a(f"s_cbranch_vccz {ld}")
        a(f"s_sleep 16\ns_add_u32 s70, s70, 1\ns_cmp_lt_u32 s70, {POLL_LIMIT}\ns_cbranch_scc1 {lp}\n{ld}:")
    def flags_check(self):
        a = self.a
        F = AB[0]; t, t2 = T[2], T[3]
        lf = self.L("fast")
        a("s_lshl_b32 s58, s4, 3\ns_mov_b64 s[72:73], 0xff\ns_lshl_b64 s[72:73], s[72:73], s58")
        self.flags_wait(FL1, False)
        a(f"v_xor_b32 v{t}, s75, v{F+1}")
        for i in range(1, 4):
            a(f"v_xor_b32 v{t2}, s75, v{F+2*i+1}\nv_or_b32 v{t}, v{t}, v{t2}")
        a(f"v_cmp_ne_u32 vcc, 0, v{t}\ns_mov_b32 s55, 1\ns_and_b64 vcc, vcc, s[72:73]")
        if "forceslow" not in self.knobs: a(f"s_cbranch_scc0 {lf}")
        a("s_mov_b32 s55, 0")
        self.clears(True)
        a("s_waitcnt vmcnt(0)")
        self.flag_store(FL2)
        self.flags_wait(FL2, True)
        a(f"{lf}:")
        a(f"v_mov_b32 v{t}, s55\nv_mov_b32 v{T[3]}, {L_CTRL}\nds_write_b32 v{T[3]}, v{t} offset:4")
    def qproj(self, pair, s1, s2, pre_ops):
        a = self.a
        self.gemv_bcast(ACC, pair, WA, 10, fill=list(pre_ops) + self.ln_ops(s1, s2, T[2]))
        self.pair32(ACC, T[2], T[3])
        a(f"v_fma_f32 v{T[2]}, -v{s1}, v{CS0}, v{T[2]}\nv_fma_f32 v{T[3]}, -v{s1}, v{CS1}, v{T[3]}")
        a(f"v_mul_f32 v{T[2]}, v{T[2]}, v{s2}\nv_mul_f32 v{T[3]}, v{T[3]}, v{s2}")
        a(f"v_cvt_pk_bf16_f32 v{T[4]}, v{T[2]}, v{T[3]}")

    def gen(self):
        a = self.a
        a(f"; @launch grid=(256,1,1) block=(512,1,1) lds={LDS_BYTES}")
        a('.amdgcn_target "amdgcn-amd-amdhsa--gfx950"\n.text')
        a(f".globl {KNAME}\n.p2align 8\n.type {KNAME},@function")
        a(f"{KNAME}:")
        a("s_cmp_ge_u32 s2, 256\ns_cbranch_scc1 L_end")
        for _ in range(self.SHIFT): a("s_nop 0")
        if self.prof:
            for i in range(13): a(f"s_mov_b64 s[{76+2*i}:{77+2*i}], 0")
        self.stamp(0)
        ptr = {12: 8, 20: 24, 8: 0, 48: 88, 16: 16, 24: 32, 28: 48, 32: 56, 36: 64, 40: 72}
        size = {8: 1280, 12: 100663296, 16: 100663296, 20: 7864320, 24: 7864320, 28: 1966080, 32: 3072, 36: 1966080, 40: 1280,
                48: (PROF_OFF + 256 * 8 * 2 * 64) if self.prof else WS_USED}
        for s, off in ptr.items():
            a(f"s_load_dwordx2 s[{s}:{s+1}], s[0:1], {off}")
        a("v_lshrrev_b32 v1, 6, v0\nv_and_b32 v0, 63, v0\nv_readfirstlane_b32 s3, v1")
        for s in ptr:
            a(f"s_mov_b32 s{s+2}, {size[s]}\ns_mov_b32 s{s+3}, 0x20000")
        a("s_and_b32 s4, s2, 7\ns_lshr_b32 s5, s2, 3\ns_lshr_b32 s6, s5, 3\ns_and_b32 s7, s5, 7")
        a(f"s_mul_i32 s53, s4, {32*BS}\ns_mul_i32 s52, s5, {BS}\ns_add_u32 s52, s52, s53")
        a("s_mov_b32 s54, 0\ns_mov_b32 s55, 0")
        a("s_getreg_b32 s75, hwreg(HW_REG_XCC_ID)\ns_and_b32 s75, s75, 15")
        a("s_cmp_ge_u32 s5, 10\ns_cselect_b32 s57, 1, 0\ns_cmp_ge_u32 s5, 20\ns_cselect_b32 s57, 2, s57\ns_cmp_ge_u32 s5, 30\ns_cselect_b32 s57, 3, s57")
        a("s_mul_i32 s58, s57, 10\ns_sub_u32 s56, s5, s58")
        a("s_mov_b32 s64, 0x00ff00ff\ns_mov_b32 s65, 0x00ff00ff")
        a("s_mov_b32 s66, 0xaaaaaaaa\ns_mov_b32 s67, 0xaaaaaaaa\ns_mov_b32 s68, 0xcccccccc\ns_mov_b32 s69, 0xcccccccc")
        a("s_mov_b32 s44, 0x03ff03ff\ns_mov_b32 s45, 0x03ff03ff\ns_mov_b32 s46, 1\ns_mov_b32 s47, 1")
        a("s_lshl_b32 s58, s4, 2\ns_add_u32 s58, s58, s6\ns_mul_i32 s59, s58, 3145728")
        a("s_lshl_b32 s58, s7, 8\ns_and_b32 s60, s3, 3\ns_lshl_b32 s60, s60, 6\ns_add_u32 s58, s58, s60\ns_add_u32 s58, s58, 6144\ns_mul_i32 s58, s58, 384\ns_add_u32 s59, s59, s58")
        a("v_and_b32 v1, 7, v0\nv_lshrrev_b32 v2, 3, v0\nv_lshrrev_b32 v3, 4, v0")
        a(f"v_lshlrev_b32 v{lane4}, 2, v0")
        a(f"v_lshlrev_b32 v{aP32}, 4, v1\nv_lshl_add_u32 v{aP32}, v3, 2, v{aP32}")
        a("s_waitcnt lgkmcnt(0)")
        a("s_cmp_ge_u32 s3, 4\ns_cbranch_scc1 L_pro_v")
        a(f"s_setprio 3\ns_mov_b32 s71, {GEN_OFF}")
        a("s_cmp_eq_u32 s3, 3\ns_cbranch_scc1 L_pro_c")
        a(f"s_buffer_load_dword s74, {WS}, s71")
        XS = GB
        a(f"v_lshlrev_b32 v{T[0]}, 4, v0")
        a(f"buffer_load_dwordx4 {q4(XS)}, v{T[0]}, s[8:11], 0 offen")
        a(f"buffer_load_dword v{XS+4}, v{lane4}, s[8:11], 0 offen offset:1024")
        a(f"v_and_b32 v{T[1]}, 15, v0\nv_lshlrev_b32 v{T[1]}, 7, v{T[1]}\nv_lshl_add_u32 v{T[1]}, v3, 2, v{T[1]}\ns_lshl_b32 s58, s7, 4")
        a(f"buffer_load_dword v{XA}, v{T[1]}, s[8:11], s58 offen")
        a(f"v_mul_u32_u24 v{T[2]}, 12288, v2\nv_lshl_add_u32 v{T[2]}, v1, 4, v{T[2]}")
        a(f"s_lshl_b32 s58, s4, 2\ns_add_u32 s58, s58, s6\ns_mul_i32 s58, s58, 384\ns_lshl_b32 s60, s3, 7\ns_add_u32 s58, s58, s60\ns_mul_i32 s60, s7, {8*12288}\ns_add_u32 s58, s58, s60")
        for t in range(10):
            a(f"buffer_load_dwordx4 {q4(WA+4*t)}, v{T[2]}, s[20:23], s58 offen nt")
            if t < 9: a(f"s_add_u32 s58, s58, {64*12288}")
        a("s_barrier")
        self.consts()
        self.kwave_addrs()
        self.make_tag()
        a("s_waitcnt vmcnt(11)")
        s1, s2 = T[0], T[1]
        a(f"v_mov_b32 v{s1}, 0\nv_mov_b32 v{s2}, 0")
        for i in range(5):
            a(f"v_lshlrev_b32 v{T[2]}, 16, v{XS+i}\nv_and_b32 v{T[3]}, 0xffff0000, v{XS+i}")
            a(f"v_add_f32 v{s1}, v{s1}, v{T[2]}\nv_fmac_f32 v{s2}, v{T[2]}, v{T[2]}\nv_add_f32 v{s1}, v{s1}, v{T[3]}\nv_fmac_f32 v{s2}, v{T[3]}, v{T[3]}")
        for x in self.red2_ops(s1, s2, (Q1, Q2, HM, RM), T[2]): a(x)
        a(f"v_readlane_b32 s58, v{s1}, 0\nv_readlane_b32 s60, v{s1}, 32")
        a(f"v_mov_b32 v{s1}, s58\nv_mov_b32 v{s2}, s60")
        a("s_waitcnt vmcnt(0)")
        self.stamp(1)
        for t in range(10):
            self.mfma(ACC + 4, ONES, WA + 4 * t, t == 0)
        self.pair32(ACC + 4, CS0, CS1)
        self.qproj(XA, s1, s2, [])
        a(f"v_mov_b32 v{GB}, v{T[4]}\nv_mov_b32 v{GB+1}, s74\nv_lshlrev_b32 v{T[2]}, 1, v{aP32}")
        a("s_lshl_b32 s60, s3, 8\ns_add_u32 s58, s52, s60")
        a("s_mov_b64 exec, s[64:65]")
        a(f"buffer_store_dwordx2 v[{GB}:{GB+1}], v{T[2]}, {WS}, s58 offen offset:{QP0T+768}")
        a(f"buffer_store_dwordx2 v[{GB}:{GB+1}], v{T[2]}, {WS}, s58 offen offset:{QP0T} sc1")
        a("s_mov_b64 exec, -1")
        self.stamp(3)
        a(f"s_mul_i32 s58, s3, 10752\ns_add_u32 s58, s58, {L_WQ}\nv_lshlrev_b32 v{T[0]}, 4, v0\nv_add_u32 v{T[0]}, s58, v{T[0]}")
        for t in range(10):
            a(f"ds_write_b128 v{T[0]}, {q4(WA+4*t)} offset:{1024*t}")
        a(f"v_add_u32 v{T[1]}, s58, v{lane4}\nds_write_b32 v{T[1]}, v{CS0} offset:10240\nds_write_b32 v{T[1]}, v{CS1} offset:10496")
        QA = [XA + 1, XA + 2]
        a(f"s_mul_i32 s62, s6, {8*BS}\ns_add_u32 s62, s62, s53\ns_lshl_b32 s58, s3, 7")
        for n in range(2):
            a(f"v_add_u32 v{T[0]}, s58, v0")
            if n: a(f"v_add_u32 v{T[0]}, 64, v{T[0]}")
            a(f"v_mul_u32_u24 v{T[1]}, 0x556, v{T[0]}\nv_lshrrev_b32 v{T[1]}, 16, v{T[1]}")
            a(f"v_mul_u32_u24 v{T[2]}, {BS - 768}, v{T[1]}\nv_lshl_add_u32 v{QA[n]}, v{T[0]}, 4, v{T[2]}")
        SETS = [[WB, WB + 4], [WB + 8, WB + 12]]
        def qissue(k):
            if k == 0: a("s_add_u32 s58, s62, 768")
            else: a("s_and_b32 s58, s70, 1\ns_cmp_eq_u32 s58, 1\ns_cselect_b32 s58, 0, 768\ns_add_u32 s58, s58, s62")
            for n in range(2):
                a(f"buffer_load_dwordx4 {q4(SETS[k][n])}, v{QA[n]}, {WS}, s58 offen offset:{QP0T} sc1")
        lp, ld = self.L("poll"), self.L("got")
        a(f"s_mov_b32 s70, 0\ns_sleep {self.QSLEEP0}")
        qissue(0); a(f"s_sleep {self.QSLEEP1}"); qissue(1)
        gots = [self.L("qg") for _ in range(2)]
        a(f"{lp}:")
        for k in range(2):
            a("s_waitcnt vmcnt(2)")
            a(f"v_mov_b32 v{T[0]}, s74\nv_mov_b32 v{T[1]}, s74")
            for r in SETS[k]:
                a(f"v_min3_u32 v{T[0]}, v{T[0]}, v{r+1}, v{r+3}\nv_max3_u32 v{T[1]}, v{T[1]}, v{r+1}, v{r+3}")
            a(f"v_cmp_ne_u32 vcc, v{T[0]}, v{T[1]}\ns_cbranch_vccz {gots[k]}")
            if k == 1: a("s_add_u32 s70, s70, 1")
            qissue(k)
        a(f"s_cmp_lt_u32 s70, {POLL_LIMIT}\ns_cbranch_scc1 {lp}")
        for k in range(2):
            a(f"{gots[k]}:")
            a(f"s_lshl_b32 s58, s3, 10\nv_lshlrev_b32 v{T[0]}, 3, v0\nv_add_u32 v{T[0]}, s58, v{T[0]}\nv_add_u32 v{T[0]}, {L_Q}, v{T[0]}")
            for n in range(2):
                a(f"ds_write2_b32 v{T[0]}, v{SETS[k][n]}, v{SETS[k][n]+2} offset0:{128*n} offset1:{128*n+1}")
            if k < 1: a(f"s_branch {ld}")
        a(f"{ld}:")
        a(f"v_mov_b32 v{T[2]}, 1\nv_mov_b32 v{T[3]}, {L_CTRL+32}\ns_waitcnt lgkmcnt(0)\nds_add_u32 v{T[3]}, v{T[2]}")
        self.stamp(2)
        a("s_branch L_bk")
        a("L_pro_c:")
        a(f"v_mov_b32 v{T[0]}, 0")
        a("s_mov_b64 exec, 0xffff")
        a(f"ds_write_b32 v{lane4}, v{T[0]} offset:{L_CTRL}")
        a("s_mov_b64 exec, -1")
        self.clears(False)
        a(f"s_lshl_b32 s58, s56, 7\nbuffer_load_dword v{GB+4}, v{aP32}, s[8:11], s58 offen")
        a("s_waitcnt lgkmcnt(0)\ns_barrier")
        a(f"s_buffer_load_dword s74, {WS}, s71")
        self.consts()
        self.kwave_addrs()
        self.make_tag()
        a("s_waitcnt vmcnt(0)")
        self.flag_store(FL1)
        self.stamp(1)
        for x in self.unpackX_ops(GB + 4): a(x)
        a("L_bk:")
        a(f"s_lshl_b32 s60, s3, 2\ns_add_u32 s60, s60, {L_CTRL+16}")
        self.lds_wait_flag("s60")
        self.stamp(10)
        self.k_to_regs()
        self.lds_wait_flag(L_CTRL + 32, 192)
        self.stamp(11)
        a(f"v_and_b32 v{T[3]}, 7, v0\nv_mul_u32_u24 v{T[3]}, 384, v{T[3]}\nv_lshrrev_b32 v{T[4]}, 4, v0\nv_lshl_add_u32 v{T[3]}, v{T[4]}, 4, v{T[3]}")
        a(f"v_and_b32 v{T[4]}, 8, v0\nv_lshl_add_u32 v{T[3]}, v{T[4]}, 3, v{T[3]}")
        for u in range(3):
            a(f"ds_read_b128 {q4(GB+4*u)}, v{T[3]} offset:{L_Q + 128*u}")
        a("s_waitcnt lgkmcnt(0)")
        a("s_branch L_qk")

        a("L_kloop:")
        a("s_cmp_lg_u32 s3, 3\ns_cbranch_scc1 L_k_b1")
        a("s_cmp_ge_u32 s5, 10\ns_cbranch_scc1 L_k_pt")
        self.zgather(0, self.ZSL)
        s1, s2 = T[0], T[1]
        a("s_mov_b64 exec, s[64:65]")
        self.local_stores([f"buffer_store_dword v{T[4]}, v{aX2}, {WS}, 0 offen offset:{X2O}{{f}}"])
        a("s_mov_b64 exec, -1")
        for x in self.unpackX_ops(T[4]) + self.xstats_ops(s1, s2, T[2]): a(x)
        a(f"v_lshrrev_b32 v{T[2]}, 3, v0\nv_and_b32 v{T[2]}, 4, v{T[2]}\ns_lshl_b32 s58, s56, 3\ns_add_u32 s58, s58, s53\ns_add_u32 s58, s58, {7*BS}")
        a("s_mov_b64 exec, s[46:47]")
        self.local_stores([f"buffer_store_dword v{s1}, v{T[2]}, {WS}, s58 offen offset:{MISC}{{f}}"])
        a("s_mov_b64 exec, -1")
        self.stamp(2)
        a("L_k_pt:")
        a("L_k_b1:")
        a("s_barrier")
        self.sleep(self.QSL)
        self.poll([f"buffer_load_dwordx4 {q4(GB+4*u)}, v{aQG}, {WS}, 0 offen offset:{QP1 + 128*u} sc1" for u in range(3)], range(GB, GB + 12))
        a("L_qk:")
        self.stamp(4)
        R = [XA, XA + 1, XA + 2, XA + 3]
        DE = [ACC, ACC + 8]; DO = [ACC + 4, ACC + 12]
        def lvl_ops(t):
            e, o = DE[t & 1], DO[t & 1]
            hm = lambda d, srcr, bank: f"v_add_f32_dpp v{d}, v{srcr}, v{srcr} row_half_mirror row_mask:0xf bank_mask:{hex(1<<bank)}"
            return [hm(T[2], e + 2, 0), hm(T[2], e + 3, 1), hm(R[t], e, 0), hm(R[t], e + 1, 1),
                    hm(T[2], o, 2), hm(T[2], o + 1, 3), hm(R[t], o + 2, 2), hm(R[t], o + 3, 3),
                    f"v_add_f32_dpp v{R[t]}, v{T[2]}, v{R[t]} row_ror:8 {DPPALL}",
                    f"v_add_f32_dpp v{R[t]}, v{R[t]}, v{R[t]} {Q1} {DPPALL}",
                    f"v_add_f32_dpp v{R[t]}, v{R[t]}, v{R[t]} {Q2} {DPPALL}"]
        pend = []
        for t in range(4):
            for u in range(6):
                self.mfma((DO if u & 1 else DE)[t & 1], KV + (t * 6 + u) * 4, GB + 4 * (u >> 1), u < 2)
                if u >= 2:
                    for _ in range(3 if u < 5 else 2):
                        if pend: a(pend.pop(0))
            pend = lvl_ops(t)
            if t == 2: pend.append(f"v_cndmask_b32 v{R[0]}, v{R[0]}, v{R[1]}, s[66:67]") if False else None
        for x in pend: a(x)
        S = T[0]; M = T[1]
        a(f"v_cndmask_b32 v{R[0]}, v{R[0]}, v{R[1]}, s[66:67]\nv_cndmask_b32 v{R[2]}, v{R[2]}, v{R[3]}, s[66:67]\nv_cndmask_b32 v{S}, v{R[0]}, v{R[2]}, s[68:69]")
        a(f"v_mul_f32 v{S}, 0x3dd53b95, v{S}")
        a(f"v_max_f32_dpp v{M}, v{S}, v{S} {Q1} {DPPALL}")
        for c in (Q2, HM, RM):
            a(f"v_max_f32_dpp v{M}, v{M}, v{M} {c} {DPPALL}")
        a(f"v_mov_b32 v{T[2]}, v{M}\nv_permlane16_swap_b32 v{M}, v{T[2]}\nv_max_f32 v{M}, v{M}, v{T[2]}")
        a(f"v_mov_b32 v{T[2]}, v{M}\nv_permlane32_swap_b32 v{M}, v{T[2]}\nv_max_f32 v{M}, v{M}, v{T[2]}")
        a(f"v_sub_f32 v{S}, v{S}, v{M}\nv_exp_f32 v{S}, v{S}")
        a(f"v_cvt_pk_bf16_f32 v{S}, v{S}, v{S}")
        a(f"ds_write_b16 v{ldsP}, v{S}")
        a("s_cmp_lg_u32 s3, 3\ns_cbranch_scc1 L_qk_nf\ns_cmp_lg_u32 s54, 0\ns_cbranch_scc1 L_qk_nf")
        self.flags_issue(FL1)
        a("L_qk_nf:")
        a("s_waitcnt lgkmcnt(0)")
        self.stamp(5)
        a("s_barrier")
        a(f"v_lshlrev_b32 v{S}, 16, v{S}")
        self.allred64("v_add_f32", S, T[2])
        a(f"s_lshl_b32 s58, s3, 3\nv_mov_b32 v{T[2]}, s58")
        a("s_mov_b64 exec, 1")
        a(f"ds_write_b32 v{T[2]}, v{M} offset:{L_ML}\nds_write_b32 v{T[2]}, v{S} offset:{L_ML+4}")
        a("s_mov_b64 exec, -1")
        a("s_cmp_lg_u32 s3, 3\ns_cbranch_scc1 L_k_b3")
        a("s_cmp_lg_u32 s54, 0\ns_cbranch_scc1 L_c_x2")
        self.flags_check()
        if self.LL == 2: self.w1_loads()
        a("s_branch L_c_b3")
        a("L_c_x2:")
        a("s_cmp_lt_u32 s5, 10\ns_cbranch_scc1 L_c_b3")
        self.poll([f"buffer_load_dword v{GB}, v{aX2}, {WS}, 0 offen offset:{X2O} sc1"], [GB])
        for x in self.unpackX_ops(GB): a(x)
        a("L_c_b3:")
        a("s_waitcnt lgkmcnt(0)\ns_barrier")
        a("s_cmp_ge_u32 s5, 30\ns_cbranch_scc1 L_k_next")
        if self.LL == 3:
            a("s_cmp_lg_u32 s54, 0\ns_cbranch_scc1 L_c_b4")
            self.w1_loads()
            a("L_c_b4:")
        a("s_barrier")
        a("s_cmp_lg_u32 s54, 0\ns_cbranch_scc1 L_p4_nocs")
        if self.LL == 4: self.w1_loads()
        yl = self.rows24_loads(YO)
        self.sleep(self.YSL0)
        for x in yl: a(x)
        a("s_mov_b32 s70, 0\ns_waitcnt vmcnt(3)")
        for t in range(8): self.mfma(ACC, ONES, WB + 4 * t, t == 0)
        self.l64(ACC, CS0)
        self.local_stores([f"buffer_store_dword v{CS0}, v{aST}, {WS}, s52 offen offset:{HPC}{{f}}"])
        a("s_branch L_p4_chk")
        a("L_p4_nocs:")
        yl = self.rows24_loads(YO)
        self.sleep(self.YSL)
        self.poll(yl, range(GB, GB + 12), entry="L_p4_chk")
        for n in range(3): self.mfma(ACC, ONES, GB + 4 * n, n == 0)
        a("s_barrier")
        self.stamp(8)
        self.sel_layer(58, HPR, 52)
        a(f"s_mul_i32 s60, s54, 3\ns_add_u32 s60, s60, s57\ns_add_u32 s60, s60, 1\ns_mul_i32 s60, s60, {BS}\ns_add_u32 s60, s60, s53\ns_lshl_b32 s61, s56, 3\ns_add_u32 s60, s60, s61")
        self.resid_add()
        s1, s2 = T[0], T[1]
        self.gemv_bcast(ACC + 4, T[4], WB, 8, fill=self.unpackX_ops(T[4]) + self.xstats_ops(s1, s2, T[2]) + [f"v_lshrrev_b32 v{T[2]}, 3, v0", f"v_and_b32 v{T[2]}, 4, v{T[2]}"])
        self.l64(ACC + 4, T[3])
        self.local_stores([f"buffer_store_dword v{T[3]}, v{aST}, {WS}, s58 offen{{f}}", "s_mov_b64 exec, s[46:47]",
                           f"buffer_store_dword v{s1}, v{T[2]}, {WS}, s60 offen offset:{MISC}{{f}}"])
        a("s_mov_b64 exec, -1")
        self.stamp(9)
        self.dump0()
        a("s_barrier")
        a("s_cmp_lg_u32 s54, 0\ns_cbranch_scc1 L_final\ns_mov_b32 s54, 1\ns_branch L_kloop")
        a("L_k_b3:")
        if self.LL2 == 2:
            a("s_cmp_lg_u32 s54, 0\ns_cbranch_scc1 L_k_b3a\ns_cmp_lg_u32 s3, 0\ns_cbranch_scc1 L_k_b3a")
            self.w2_loads()
            a("L_k_b3a:")
        if self.CPF:
            self.code_prefetch()
        a(f"s_lshl_b32 s58, s3, 8\nv_add_u32 v{T[3]}, s58, v{lane4}\nv_mov_b32 v{T[4]}, {L_ML}\nv_mov_b32 v{T[2]}, {L_CTRL+4}")
        self.sel_layer(58, OP, 52)
        a("s_lshl_b32 s60, s3, 7\ns_add_u32 s60, s60, s58")
        a(f"s_mul_i32 s61, s7, {BS - 8}\ns_sub_u32 s61, s52, s61\ns_lshl_b32 s58, s54, 6\ns_add_u32 s61, s61, s58")
        a("s_waitcnt lgkmcnt(0)\ns_barrier")
        self.stamp(6)
        a(f"ds_read_b128 {q4(GB)}, v{T[4]}\nds_read_b128 {q4(GB+4)}, v{T[4]} offset:16")
        for w in range(4):
            a(f"ds_read_b32 v{GB+8+w}, v{T[3]} offset:{L_O + 768*w}")
        a(f"ds_read_b32 v{T[2]}, v{T[2]}")
        a("s_waitcnt lgkmcnt(0)")
        M = GB + 12; Lr = GB + 13
        a(f"v_max3_f32 v{M}, v{GB}, v{GB+2}, v{GB+4}\nv_max_f32 v{M}, v{M}, v{GB+6}")
        a(f"v_readfirstlane_b32 s55, v{T[2]}")
        for w in range(4): a(f"v_sub_f32 v{GB+2*w}, v{GB+2*w}, v{M}")
        for w in range(4): a(f"v_exp_f32 v{GB+2*w}, v{GB+2*w}")
        a(f"v_mul_f32 v{Lr}, v{GB}, v{GB+1}\nv_mul_f32 v{T[0]}, v{GB}, v{GB+8}")
        for w in range(1, 4):
            a(f"v_fmac_f32 v{Lr}, v{GB+2*w}, v{GB+2*w+1}\nv_fmac_f32 v{T[0]}, v{GB+2*w}, v{GB+8+w}")
        a(f"v_rcp_f32 v{T[1]}, v{Lr}\nv_mul_f32 v{T[0]}, v{T[0]}, v{T[1]}")
        a(f"v_mov_b32_dpp v{T[1]}, v{T[0]} row_ror:8 {DPPALL}\nv_cvt_pk_bf16_f32 v{T[0]}, v{T[0]}, v{T[1]}")
        a("s_mov_b64 exec, s[64:65]")
        lz = self.L("z")
        self.local_stores([f"buffer_store_dword v{T[0]}, v{aP32}, {WS}, s60 offen{{f}}"])
        a(f"s_cmp_lg_u32 s3, 1\ns_cbranch_scc1 {lz}\ns_mov_b64 exec, 1")
        self.local_stores([f"buffer_store_dwordx2 v[{M}:{Lr}], v{aP32}, {WS}, s61 offen offset:{MISC}{{f}}"])
        a(f"{lz}:\ns_mov_b64 exec, -1")
        self.stamp(7)
        a("s_cmp_ge_u32 s5, 30\ns_cbranch_scc1 L_k_next")
        if self.LL2 == 3:
            a("s_cmp_lg_u32 s54, 0\ns_cbranch_scc1 L_k_b4a\ns_cmp_lg_u32 s3, 0\ns_cbranch_scc1 L_k_b4a")
            self.w2_loads()
            a("L_k_b4a:")
        a("s_barrier")
        a("s_cmp_eq_u32 s3, 0\ns_cbranch_scc1 L_p5")
        a("s_cmp_lg_u32 s3, 1\ns_cbranch_scc1 L_k_b5")
        self.sel_layer(58, HPR, 52)
        a(f"v_lshlrev_b32 v{T[0]}, 7, v0\ns_mov_b64 exec, 3")
        a(f"buffer_load_dword v{GB}, v{T[0]}, {WS}, s58 offen sc1\nbuffer_load_dword v{GB+1}, v{T[0]}, {WS}, s52 offen offset:{HPC} sc1")
        a(f"buffer_load_dword v{GB+2}, v{lane4}, {WS}, s52 offen offset:{MISC} sc1\ns_mov_b64 exec, -1")
        a("L_k_b5:")
        a("s_barrier\ns_barrier")
        a("s_branch L_k_next")
        a("L_p5:")
        a(f"s_mul_i32 s62, s57, {10*BS}\ns_add_u32 s62, s62, s53")
        def hp_gather(with_stats, slp=0):
            for i in range(8, 14): a(f"v_mov_b32 v{GB+i}, 0")
            loads = [f"buffer_load_dwordx4 {q4(GB)}, v{aML}, {WS}, s58 offen sc1",
                     f"buffer_load_dwordx4 {q4(GB+4)}, v{aML}, {WS}, s60 offen sc1",
                     "s_mov_b32 exec_hi, 0",
                     f"buffer_load_dwordx4 {q4(GB+8)}, v{aML}, {WS}, s61 offen sc1"]
            if with_stats:
                loads += ["s_mov_b64 exec, s[44:45]", f"buffer_load_dwordx2 v[{GB+12}:{GB+13}], v{aXS}, {WS}, s63 offen offset:{MISC} sc1"]
            loads += ["s_mov_b64 exec, -1"]
            return loads, range(GB, GB + (14 if with_stats else 12))
        def hp_reduce_ops(dst):
            o = [f"v_add_f32 v{GB+i}, v{GB+i}, v{GB+4+i}" for i in range(4)] + [f"v_add_f32 v{GB+i}, v{GB+i}, v{GB+8+i}" for i in range(4)]
            o += [f"v_permlane32_swap_b32 v{GB}, v{GB+2}", f"v_permlane32_swap_b32 v{GB+1}, v{GB+3}",
                  f"v_add_f32 v{GB}, v{GB}, v{GB+2}", f"v_add_f32 v{GB+1}, v{GB+1}, v{GB+3}",
                  f"v_permlane16_swap_b32 v{GB}, v{GB+1}", f"v_add_f32 v{dst}, v{GB}, v{GB+1}"]
            return o
        a("s_cmp_lg_u32 s54, 0\ns_cbranch_scc1 L_p5_nocs")
        if self.LL2 == 4: self.w2_loads()
        if self.LL2 == 5:
            a(f"s_sleep {self.W2SL}")
            self.w2_loads()
        a(f"s_add_u32 s58, s62, {HPC}\ns_add_u32 s60, s58, {4*BS}\ns_add_u32 s61, s58, {8*BS}")
        a("s_barrier")
        ld_, rg_ = hp_gather(False)
        self.poll(ld_, rg_)
        for x in hp_reduce_ops(CSW1): a(x)
        a(f"v_lshlrev_b32 v{B1V}, 16, v{B1V}")
        a("s_branch L_p5_g")
        a("L_p5_nocs:")
        a("s_barrier")
        self.sleep(self.HSL)
        a("L_p5_g:")
        self.sel_layer(58, HPR, 62)
        a(f"s_add_u32 s60, s58, {4*BS}\ns_add_u32 s61, s58, {8*BS}")
        a(f"s_mul_i32 s63, s54, 3\ns_add_u32 s63, s63, s57\ns_add_u32 s63, s63, 1\ns_mul_i32 s63, s63, {BS}\ns_add_u32 s63, s63, s53")
        ld_, rg_ = hp_gather(True)
        self.poll(ld_, rg_)
        self.stamp(8)
        s1, s2 = GB + 12, GB + 13
        H = T[0]
        c1 = self.row16_ops(s1, s2) + self.ln_ops(s1, s2, T[5])
        c2 = hp_reduce_ops(H)
        while c1 or c2:
            if c1: a(c1.pop(0))
            if c1 and len(c1) > 14: a(c1.pop(0))
            if c2: a(c2.pop(0))
        self.sel_layer(58, ZO, 52)
        a(f"v_fma_f32 v{H}, -v{s1}, v{CSW1}, v{H}\nv_mul_f32 v{H}, v{H}, v{s2}")
        self.bf16r(H, H)
        a(f"v_add_f32 v{H}, v{H}, v{B1V}")
        self.bf16r(H, H)
        E = T[1]; N = T[2]; Dn = T[3]
        a(f"v_mul_f32 v{E}, 0x3fb8aa3b, v{H}\nv_exp_f32 v{E}, -|v{E}|")
        a(f"v_cmp_gt_f32 vcc, 0, v{H}\nv_mov_b32 v{T[4]}, 2.0")
        a(f"v_fma_f32 v{N}, v{E}, 2.0, 1.0\nv_add_f32 v{Dn}, 2.0, v{E}\nv_mul_f32 v{Dn}, v{Dn}, v{E}")
        a(f"v_mul_f32 v{E}, v{E}, v{E}\nv_add_f32 v{E}, v{E}, v{E}")
        a(f"v_cndmask_b32 v{N}, v{N}, v{Dn}, vcc\nv_cndmask_b32 v{E}, v{E}, v{T[4]}, vcc")
        a(f"v_add_f32 v{Dn}, v{N}, v{E}\nv_rcp_f32 v{Dn}, v{Dn}\nv_mul_f32 v{N}, v{N}, v{H}\nv_mul_f32 v{N}, v{N}, v{Dn}")
        a(f"v_mov_b32_dpp v{E}, v{N} row_ror:8 {DPPALL}\nv_cvt_pk_bf16_f32 v{T[4]}, v{N}, v{E}")
        self.gemv_bcast(ACC, T[4], WB, 8)
        self.pair32(ACC, T[0], T[1])
        a(f"v_cvt_pk_bf16_f32 v{T[0]}, v{T[0]}, v{T[1]}")
        a("s_mov_b64 exec, s[64:65]")
        a(f"buffer_store_dword v{T[0]}, v{aP32}, {WS}, s58 offen sc1")
        a("s_mov_b64 exec, -1")
        self.stamp(9)
        a("s_barrier")
        a("L_k_next:")
        a("s_cmp_lg_u32 s54, 0\ns_cbranch_scc1 L_final")
        self.dump_stamps()
        a("s_mov_b32 s54, 1")
        a("s_cmp_lg_u32 s3, 2\ns_cbranch_scc1 L_kloop")
        a("s_cmp_lg_u32 s2, 0\ns_cbranch_scc1 L_nogen")
        a(f"s_mov_b64 exec, 1\nv_mov_b32 v{T[0]}, s74\nv_mov_b32 v{T[1]}, {GEN_OFF}")
        a(f"buffer_store_dword v{T[0]}, v{T[1]}, {WS}, 0 offen sc1")
        a("s_mov_b64 exec, -1\nL_nogen:")
        for u in range(3):
            a(f"buffer_load_dword v{GB+4+u}, v{aQG}, {WS}, 0 offen offset:{QP1 + 128*u} sc1")
        a("s_branch L_kloop")
        a("L_final:")
        a("s_cmp_lg_u32 s3, 3\ns_cbranch_scc1 L_fin2\ns_cmp_lg_u32 s4, 0\ns_cbranch_scc1 L_fin2\ns_cmp_ge_u32 s5, 10\ns_cbranch_scc1 L_fin2")
        self.zgather(1, self.FSL)
        a("s_lshl_b32 s58, s5, 7")
        a("s_mov_b64 exec, s[64:65]")
        a(f"buffer_store_dword v{T[4]}, v{aP32}, s[40:43], s58 offen{' sc1' if self.OSC else ''}")
        a("s_mov_b64 exec, -1")
        self.stamp(11)
        a("L_fin2:")
        self.dump_stamps()
        a("s_endpgm")

        a("L_pro_v:")
        if "dbl" in self.knobs:
            a(f"v_mul_u32_u24 v{T[0]}, 384, v2\nv_lshl_add_u32 v{T[0]}, v1, 4, v{T[0]}\ns_sub_u32 s61, s59, {6144*384}")
            for srd in ("s[12:15]", "s[16:19]"):
                for n in range(24):
                    rg, th = divmod(n, 3)
                    if th == 0: a(f"s_add_u32 s58, s61, {rg*8*384}")
                    a(f"buffer_load_dwordx4 {q4(KV+4*n)}, v{T[0]}, {srd}, s58 offen offset:{th*128} nt")
            a("s_waitcnt vmcnt(12)")
        self.k_dma()
        a(f"v_mul_u32_u24 v{T[0]}, 384, v2\nv_lshl_add_u32 v{T[0]}, v1, 4, v{T[0]}")
        for n in range(24):
            rg, th = divmod(n, 3)
            if n == self.NB:
                a(f"s_lshl_b32 s60, s3, 2\nv_mov_b32 v{T[2]}, s60\nv_mov_b32 v{T[3]}, 1")
                a(f"s_waitcnt vmcnt({self.NB})\nds_write_b32 v{T[2]}, v{T[3]} offset:{L_CTRL}")
                self.stamp(11)
            if th == 0: a(f"s_add_u32 s58, s59, {rg*8*384}")
            a(f"buffer_load_dwordx4 {q4(KV+4*n)}, v{T[0]}, s[16:19], s58 offen offset:{th*128} nt")
        self.stamp(1)
        self.consts()
        self.vwave_addrs()
        a("s_branch L_v_b2")
        a("L_vloop:")
        a(f"buffer_load_dword v{XA+2}, v{aQG}, {WS}, 0 offen offset:{OP[1]} sc1")
        a("s_cmp_eq_u32 s3, 7\ns_cbranch_scc1 L_v7_b1")
        a(f"v_mov_b32 v{GB}, 0\nv_mov_b32 v{GB+2}, 0\nv_mov_b32 v{GB+3}, 0\ns_add_u32 s58, s53, {7*BS}")
        self.sleep(self.XSL)
        self.poll(["s_mov_b64 exec, s[44:45]", f"buffer_load_dword v{GB}, v{aX2}, {WS}, 0 offen offset:{X2O} sc1",
                   f"buffer_load_dwordx2 v[{GB+2}:{GB+3}], v{aXS}, {WS}, s58 offen offset:{MISC} sc1", "s_mov_b64 exec, -1"], [GB, GB + 2, GB + 3], slp=1)
        a("s_barrier")
        self.stamp(1)
        self.qproj(GB, GB + 2, GB + 3, self.row16_ops(GB + 2, GB + 3))
        a("s_mov_b64 exec, s[64:65]")
        self.local_stores([f"buffer_store_dword v{T[4]}, v{aST}, {WS}, 0 offen offset:{QP1}{{f}}"])
        a("s_mov_b64 exec, -1")
        self.stamp(3)
        a("s_branch L_v_b2")
        a("L_v7_b1:")
        a("s_barrier")
        a("L_v_b2:")
        a(f"s_and_b32 s58, s3, 3\ns_mul_i32 s58, s58, 768\nv_add_u32 v{T[3]}, s58, v{lane4}")
        a("s_barrier")
        self.stamp(5)
        a(f"ds_read_b128 {q4(GB)}, v{ldsP}\nds_read_b128 {q4(GB+4)}, v{ldsP} offset:16")
        a("s_cmp_lg_u32 s54, 0\ns_cbranch_scc1 L_v_nowo")
        self.wo_loads()
        a("L_v_nowo:")
        a("s_waitcnt lgkmcnt(0)")
        self.al()
        self.build_A(AB[0], GB)
        for G in range(8):
            a(f"s_waitcnt vmcnt({8 + 21 - 3*G})")
            for th in range(3):
                self.mfma(ACC + 4 * th, AB[G & 1], KV + (G * 3 + th) * 4, G == 0)
                if G + 1 < 8 and th < 2:
                    for d in (2 * th, 2 * th + 1):
                        a(f"v_perm_b32 v{AB[(G+1)&1]+d}, v{GB+G+1}, v{GB+G+1}, v{SEL+d}")
        for th in range(3):
            self.l64(ACC + 4 * th, T[th])
            a(f"ds_write_b32 v{T[3]}, v{T[th]} offset:{L_O + 256*th}")
        self.sel_layer(58, OP)
        a("s_lshl_b32 s60, s54, 6")
        a("s_waitcnt lgkmcnt(0)\ns_barrier")
        self.stamp(6)
        a("s_cmp_ge_u32 s5, 30\ns_cbranch_scc1 L_v_next")
        self.sleep(self.OSL)
        self.poll([f"buffer_load_dwordx4 {q4(GB)}, v{aQG}, {WS}, s58 offen sc1",
                   f"buffer_load_dwordx2 v[{GB+4}:{GB+5}], v{aML}, {WS}, s60 offen offset:{MISC} sc1"], range(GB, GB + 6))
        self.stamp(8)
        M = T[0]; W = T[1]
        a(f"v_max_f32_dpp v{M}, v{GB+4}, v{GB+4} {Q1} {DPPALL}")
        a(f"v_max_f32_dpp v{M}, v{M}, v{M} {Q2} {DPPALL}\nv_max_f32_dpp v{M}, v{M}, v{M} {HM} {DPPALL}")
        a(f"v_sub_f32 v{W}, v{GB+4}, v{M}\nv_exp_f32 v{W}, v{W}\nv_mul_f32 v{W}, v{W}, v{GB+5}")
        a(f"v_mov_b32_dpp v{T[2]}, v{W} row_newbcast:0 {DPPALL}\nv_mov_b32_dpp v{T[3]}, v{W} row_newbcast:1 {DPPALL}")
        a(f"v_cvt_pk_bf16_f32 v{T[2]}, v{T[2]}, v{T[3]}")
        self.build_A(AB[0], T[2])
        self.bf16r(W, W)
        self.mfma(ACC, AB[0], GB, True)
        for c in (Q1, Q2, HM):
            a(f"v_add_f32_dpp v{W}, v{W}, v{W} {c} {DPPALL}")
        a(f"v_rcp_f32 v{W}, v{W}")
        self.pair32(ACC, T[2], T[3])
        a(f"v_mul_f32 v{T[2]}, v{T[2]}, v{W}\nv_mul_f32 v{T[3]}, v{T[3]}, v{W}\nv_cvt_pk_bf16_f32 v{T[4]}, v{T[2]}, v{T[3]}")
        self.gemv_bcast(ACC + 4, T[4], WB, 8)
        a(f"s_and_b32 s58, s3, 3\ns_lshl_b32 s58, s58, 8\nv_add_u32 v{T[3]}, s58, v{lane4}")
        self.l64(ACC + 4, T[0])
        a(f"ds_write_b32 v{T[3]}, v{T[0]} offset:{L_YR}")
        self.sel_layer(58, YO, 52)
        a("s_waitcnt lgkmcnt(0)\ns_barrier")
        a("s_cmp_lg_u32 s3, 7\ns_cbranch_scc1 L_v_b5")
        for w in range(4): a(f"ds_read_b32 v{GB+w}, v{lane4} offset:{L_YR + 256*w}")
        a("s_waitcnt lgkmcnt(0)")
        a(f"v_add_f32 v{GB}, v{GB}, v{GB+1}\nv_add_f32 v{GB+2}, v{GB+2}, v{GB+3}\nv_add_f32 v{T[0]}, v{GB}, v{GB+2}")
        a(f"v_mov_b32_dpp v{T[1]}, v{T[0]} row_ror:8 {DPPALL}\nv_cvt_pk_bf16_f32 v{T[0]}, v{T[0]}, v{T[1]}")
        a("s_mov_b64 exec, s[64:65]")
        a(f"buffer_store_dword v{T[0]}, v{aP32}, {WS}, s58 offen sc1")
        a("s_mov_b64 exec, -1")
        self.stamp(9)
        a("L_v_b5:")
        a("s_cmp_lg_u32 s54, 0\ns_cbranch_scc1 L_v_b5b")
        self.v_fetch_wq()
        self.dump_stamps()
        a("L_v_b5b:")
        a("s_barrier\ns_barrier")
        a("s_cmp_lg_u32 s54, 0\ns_cbranch_scc1 L_fin2")
        a("s_mov_b32 s54, 1\ns_branch L_vloop")
        a("L_v_next:")
        a("s_cmp_lg_u32 s54, 0\ns_cbranch_scc1 L_fin2")
        self.v_fetch_wq()
        self.dump_stamps()
        a("s_mov_b32 s54, 1\ns_sleep 48\ns_branch L_vloop")
        a("L_end:\ns_endpgm")
        a('.section .rodata,"a"\n.p2align 6')
        a(f".amdhsa_kernel {KNAME}")
        a(".amdhsa_next_free_vgpr 256\n.amdhsa_next_free_sgpr 102\n.amdhsa_accum_offset 256\n.amdhsa_group_segment_fixed_size 0\n.amdhsa_kernarg_size 96")
        a(".amdhsa_user_sgpr_count 2\n.amdhsa_user_sgpr_kernarg_segment_ptr 1\n.amdhsa_system_sgpr_workgroup_id_x 1\n.end_amdhsa_kernel")
        return a.render()

    def code_prefetch(self):
        a = self.a
        le = self.L("cpf")
        a(f"s_cmp_lg_u32 s3, 1\ns_cbranch_scc1 {le}\ns_cmp_lg_u32 s54, 0\ns_cbranch_scc1 {le}")
        a("s_getpc_b64 s[72:73]")
        a("L_pcref:")
        a(f"s_sub_u32 s72, s72, L_pcref-{KNAME}\ns_subb_u32 s73, s73, 0")
        a(f"v_lshlrev_b32 v{T[0]}, 5, v0\nv_add_u32 v{T[0]}, s5, v{T[0]}\nv_lshlrev_b32 v{T[0]}, 7, v{T[0]}")
        a(f"v_mov_b32 v{T[1]}, L_end-{KNAME}\nv_cmp_lt_u32 vcc, v{T[0]}, v{T[1]}\ns_and_b64 exec, vcc, exec")
        a(f"global_load_dword v{XA+5}, v{T[0]}, s[72:73] sc1")
        a("s_mov_b64 exec, -1")
        a(f"{le}:")

    def v_fetch_wq(self):
        a = self.a
        a(f"s_and_b32 s58, s3, 3\ns_min_u32 s58, s58, 2\ns_mul_i32 s58, s58, 10752\ns_add_u32 s58, s58, {L_WQ}\nv_lshlrev_b32 v{T[0]}, 4, v0\nv_add_u32 v{T[0]}, s58, v{T[0]}")
        for t in range(10):
            a(f"ds_read_b128 {q4(WA+4*t)}, v{T[0]} offset:{1024*t}")
        a(f"v_add_u32 v{T[1]}, s58, v{lane4}\nds_read_b32 v{CS0}, v{T[1]} offset:10240\nds_read_b32 v{CS1}, v{T[1]} offset:10496")
        self.read_fast()
        a(f"s_add_u32 s58, s53, {7*BS}\nbuffer_load_dword v{XA+3}, v{aX2}, {WS}, 0 offen offset:{X2O} sc1\nbuffer_load_dword v{XA+4}, v{aXS}, {WS}, s58 offen offset:{MISC} sc1")

    def zgather(self, layer, slp):
        a = self.a
        a(f"s_mul_i32 s58, s56, {BS}\ns_add_u32 s60, s58, {10*BS}\ns_add_u32 s61, s58, {20*BS}")
        self.sleep(slp)
        self.poll([f"buffer_load_dwordx4 {q4(GB+4*n)}, v{aROW}, {WS}, s{(58,60,61)[n]} offen offset:{ZO[layer]} sc1" for n in range(3)], range(GB, GB + 12))
        self.stamp(10 if layer else 1)
        for n in range(3): self.mfma(ACC, ONES, GB + 4 * n, n == 0)
        self.resid_add()

REF = "interleave_layers__sliding_block_cached__dense_activation_mish__decode.s.ref"
HEADER = open(REF).read().split("; Override")[0] if os.path.exists(REF) else ""

if __name__ == "__main__":
    prof = {"prof": 1}.get(sys.argv[2], 0) if len(sys.argv) > 2 else 0
    open(sys.argv[1], "w").write(HEADER + Gen(prof, sys.argv[3:]).gen())
```

```python
import sys, os
sys.path.insert(0, "gen")
from asmlib import Asm

KNAME = "interleave_layers__sliding_block_cached__dense_activation_mish__decode_kernel"
BS = 4736
YO = [0, 128]; ZO = [256, 384]
QP1 = 512
OP = [896, 1280]
MISC = 1664
HPR = [1792, 2048]; HPC = 2304
X2O = 2560
CLR_END = 2816
QP0T = 3072
GEN_OFF = 256 * BS
FL1 = GEN_OFF + 4096; FL2 = GEN_OFF + 8192
WS_USED = GEN_OFF + 12288
PROF_OFF = 2 << 20
L_CTRL = 0
L_ML = 128
L_P = 256
L_O = 1024
L_YR = 4096
L_Q = 5120
L_K = 8192
L_WQ = L_K + 98304
LDS_BYTES = L_WQ + 3 * 10752
POLL_LIMIT = 200000
ONES = 4; SEL = 8; AB = [12, 16]; ACC = 20; GB = 36; XA = 60
aQG = 70; aP32 = 71; aROW = 72; aML = 73; aST = 74; ldsP = 75; lane4 = 76
CS0 = 77; CS1 = 78; X0 = 79; X1 = 80; B1V = 81; CSW1 = 82
T = [83, 84, 85, 86, 87, 1, 2, 3]
aX2 = 68; aXS = 69
KV = 88; WA = 184; WB = 224
WS = "s[48:51]"

def q4(r): return f"v[{r}:{r+3}]"
DPPALL = "row_mask:0xf bank_mask:0xf"
Q1 = "quad_perm:[1,0,3,2]"; Q2 = "quad_perm:[2,3,0,1]"; HM = "row_half_mirror"; RM = "row_mirror"

class Gen:
    def __init__(self, prof=0, knobs=()):
        self.knobs = set(knobs)
        self.LL = 4; self.LL2 = 4; self.W2SL = 16; self.Q1ST = 1; self.QPW = 0; self.FLSL = 127; self.QFB = 5; self.CPF0 = 1; self.B0E = 0; self.B0N = 0; self.OSC = 0; self.AL = 1; self.ALP = 5; self.SHIFT = 0; self.CPF = 0; self.NB = 8; self.QSLEEP0 = 56; self.QSLEEP1 = 24
        self.QSL = 12; self.OSL = 9; self.YSL0 = 14; self.YSL = 15; self.HSL = 11; self.ZSL = 11; self.XSL = 22; self.FSL = 8
        for k in knobs:
            if '=' in k: setattr(self, k.split('=')[0], int(k.split('=')[1]))
        self.a = Asm(); self.prof = prof; self.uid = 0; self.ool = []
    def L(self, base):
        self.uid += 1
        return f"L_{base}_{self.uid}"
    def stamp(self, i):
        if self.prof == 3 and i not in (0, 6, 11): return
        if self.prof: self.a(f"s_memrealtime s[{76+2*i}:{77+2*i}]")
    def al(self, n=3):
        if self.AL: self.a(f".p2align {n}")
    def sleep(self, n):
        if n: self.a(f"s_sleep {n}")
    def dump_stamps(self):
        if not self.prof: return
        a = self.a
        a("s_waitcnt lgkmcnt(0)")
        a(f"v_mov_b32 v{T[0]}, 0")
        for i in range(13):
            a(f"v_writelane_b32 v{T[0]}, s{76+2*i}, {i}")
        a("s_lshl_b32 s58, s2, 3\ns_add_u32 s58, s58, s3\ns_lshl_b32 s58, s58, 1\ns_add_u32 s58, s58, s54\ns_lshl_b32 s58, s58, 6")
        a(f"s_add_u32 s58, s58, {PROF_OFF}")
        a("s_mov_b64 exec, 0xffff")
        a(f"buffer_store_dword v{T[0]}, v{lane4}, {WS}, s58 offen")
        a("s_mov_b64 exec, -1")
        for i in range(13):
            a(f"s_mov_b64 s[{76+2*i}:{77+2*i}], 0")
    def dump0(self):
        if not self.prof: return
        l = self.L("nd")
        self.a(f"s_cmp_lg_u32 s54, 0\ns_cbranch_scc1 {l}")
        self.dump_stamps()
        self.a(f"{l}:")
    def local_stores(self, lines):
        a = self.a
        ls, ld = self.L("sl"), self.L("sd")
        a(f"s_cmp_eq_u32 s55, 0\ns_cbranch_scc1 {ls}")
        for x in lines: a(x.replace("{f}", ""))
        a(f"{ld}:")
        self.ool.append([f"{ls}:", "s_nop 7"] + [x.replace("{f}", " sc1") for x in lines] + ["s_nop 1", f"s_branch {ld}"])
    def poll(self, loads, regs, entry=None, slp=0, spec=()):
        a = self.a
        lp, lr, ld = self.L("poll"), self.L("retry"), self.L("got")
        a("s_mov_b32 s70, 0")
        a(f"{lp}:")
        for x in loads: a(x)
        if entry: a(f"{entry}:")
        self.al(self.ALP)
        a("s_nop 0\ns_waitcnt vmcnt(0)")
        t = T[7]
        rs = list(regs)
        chk = []
        if len(rs) == 1:
            chk.append(f"v_cmp_eq_u32 vcc, -1, v{rs[0]}")
        else:
            if len(rs) == 2:
                chk.append(f"v_max_u32 v{t}, v{rs[0]}, v{rs[1]}"); rs = []
            else:
                chk.append(f"v_max3_u32 v{t}, v{rs[0]}, v{rs[1]}, v{rs[2]}"); rs = rs[3:]
            while rs:
                if len(rs) >= 2:
                    chk.append(f"v_max3_u32 v{t}, v{t}, v{rs[0]}, v{rs[1]}"); rs = rs[2:]
                else:
                    chk.append(f"v_max_u32 v{t}, v{t}, v{rs[0]}"); rs = rs[1:]
            chk.append(f"v_cmp_eq_u32 vcc, -1, v{t}")
        spec = list(spec)
        while spec or chk:
            if spec: a(spec.pop(0))
            for _ in range(2):
                if chk: a(chk.pop(0))
        a(f"s_cbranch_vccnz {lr}")
        a(f"{ld}:")
        self.ool.append([f"{lr}:", f"s_sleep {slp}" if slp else "s_nop 7", f"s_add_u32 s70, s70, 1", f"s_cmp_lt_u32 s70, {POLL_LIMIT}", f"s_cbranch_scc1 {lp}", f"s_branch {ld}"])
    def mfma_s(self, D, A, B, first):
        return f"v_mfma_f32_16x16x32_bf16 {q4(D)}, {q4(A)}, {q4(B)}, {'0' if first else q4(D)}"
    def flush_ool(self):
        for blk in self.ool:
            for x in blk: self.a(x)
        self.ool = []
    def build_A(self, dst, src):
        for d in range(4):
            self.a(f"v_perm_b32 v{dst+d}, v{src}, v{src}, v{SEL+d}")
    def mfma(self, D, A, B, first):
        self.a(f"v_mfma_f32_16x16x32_bf16 {q4(D)}, {q4(A)}, {q4(B)}, {'0' if first else q4(D)}")
    def pair32(self, D, t0, t1):
        self.a(f"v_add_f32_dpp v{t0}, v{D+1}, v{D} row_ror:8 {DPPALL}")
        self.a(f"v_add_f32_dpp v{t1}, v{D+3}, v{D+2} row_ror:8 {DPPALL}")
    def l64(self, D, t):
        self.a(f"v_add_f32_dpp v{t}, v{D+1}, v{D} row_ror:8 row_mask:0xf bank_mask:0x3")
        self.a(f"v_add_f32_dpp v{t}, v{D+2}, v{D+3} row_ror:8 row_mask:0xf bank_mask:0xc")
    def gemv_bcast(self, D, pair, W, n, fill=()):
        a = self.a
        fill = list(fill)
        tb = [T[5], T[6]]
        self.al()
        a(f"v_mov_b32_dpp v{tb[0]}, v{pair} row_newbcast:0 {DPPALL}")
        for t in range(n):
            if t + 1 < n:
                a(f"v_mov_b32_dpp v{tb[(t+1)&1]}, v{pair} row_newbcast:{t+1} {DPPALL}")
            self.build_A(AB[t & 1], tb[t & 1])
            if t > 0: self.mfma(D, AB[(t-1) & 1], W + 4 * (t-1), t == 1)
            for _ in range(2):
                if fill: a(fill.pop(0))
        self.mfma(D, AB[(n-1) & 1], W + 4 * (n-1), n == 1)
        for x in fill: a(x)
    def bf16r_ops(self, dst, src):
        return [f"v_cvt_pk_bf16_f32 v{dst}, v{src}, v{src}", f"v_lshlrev_b32 v{dst}, 16, v{dst}"]
    def bf16r(self, dst, src):
        for x in self.bf16r_ops(dst, src): self.a(x)
    def ln_ops(self, s1, s2, t):
        inv = "0x3acccccd"
        return [f"v_mul_f32 v{s1}, {inv}, v{s1}", f"v_mul_f32 v{s2}, {inv}, v{s2}", f"v_fma_f32 v{s2}, -v{s1}, v{s1}, v{s2}",
                f"v_max_f32 v{s2}, 0, v{s2}", f"v_cvt_pk_bf16_f32 v{t}, v{s1}, v{s2}", f"v_lshlrev_b32 v{s1}, 16, v{t}",
                f"v_and_b32 v{s2}, 0xffff0000, v{t}", f"v_add_f32 v{s2}, 0x3727c5ac, v{s2}"] + self.bf16r_ops(s2, s2) + \
               [f"v_sqrt_f32 v{s2}, v{s2}"] + self.bf16r_ops(s2, s2) + [f"v_rcp_f32 v{s2}, v{s2}"]
    def red2_ops(self, s1, s2, steps, tmp):
        return [f"v_permlane32_swap_b32 v{s1}, v{s2}", f"v_add_f32 v{s1}, v{s1}, v{s2}", f"v_mov_b32 v{tmp}, v{s1}",
                f"v_permlane16_swap_b32 v{s1}, v{tmp}", f"v_add_f32 v{s1}, v{s1}, v{tmp}"] + \
               [f"v_add_f32_dpp v{s1}, v{s1}, v{s1} {c} {DPPALL}" for c in steps]
    def row16_ops(self, s1, s2):
        out = []
        for c in (Q1, Q2, HM, RM):
            out += [f"v_add_f32_dpp v{s1}, v{s1}, v{s1} {c} {DPPALL}", f"v_add_f32_dpp v{s2}, v{s2}, v{s2} {c} {DPPALL}"]
        return out
    def allred64(self, op, v, tmp):
        a = self.a
        for c in (Q1, Q2, HM, RM):
            a(f"{op}_dpp v{v}, v{v}, v{v} {c} {DPPALL}")
        a(f"v_mov_b32 v{tmp}, v{v}\nv_permlane16_swap_b32 v{v}, v{tmp}\n{op} v{v}, v{v}, v{tmp}")
        a(f"v_mov_b32 v{tmp}, v{v}\nv_permlane32_swap_b32 v{v}, v{tmp}\n{op} v{v}, v{v}, v{tmp}")
    def sel_layer(self, dst, arr, add=None):
        a = self.a
        a(f"s_mul_i32 s{dst}, s54, {arr[1]-arr[0]}")
        if arr[0]: a(f"s_add_u32 s{dst}, s{dst}, {arr[0]}")
        if add is not None: a(f"s_add_u32 s{dst}, s{dst}, s{add}")
    def lds_wait_flag(self, off, val=None, fb=0):
        a = self.a
        lp, ld = self.L("lw"), self.L("lg")
        t = T[5]; t2 = T[6]
        a(f"v_mov_b32 v{t2}, {off}\ns_mov_b32 s70, 0")
        a(f"{lp}:\nds_read_b32 v{t}, v{t2}\ns_waitcnt lgkmcnt(0)\nv_readfirstlane_b32 s58, v{t}")
        a(f"s_cmp_lg_u32 s58, 0\ns_cbranch_scc1 {ld}" if val is None else f"s_cmp_eq_u32 s58, {val}\ns_cbranch_scc1 {ld}")
        a("s_sleep 1\ns_add_u32 s70, s70, 1")
        if fb: self.q_fallback(fb)
        a(f"s_cmp_lt_u32 s70, {4*POLL_LIMIT}\ns_cbranch_scc1 {lp}")
        a(f"{ld}:")
    def q_fallback(self, thresh):
        a = self.a
        QD = XA + 6
        le = self.L("qfb")
        a(f"s_cmp_lt_u32 s70, {thresh}\ns_cbranch_scc1 {le}\ns_cmp_lg_u32 s71, 0\ns_cbranch_scc1 {le}\ns_cmp_eq_u32 s3, 3\ns_cbranch_scc1 {le}")
        a("s_mov_b32 s71, 1\ns_mov_b64 exec, s[64:65]")
        a(f"buffer_store_dwordx2 v[{QD}:{QD+1}], v{X0}, {WS}, s63 offen offset:{QP0T} sc1")
        a(f"s_mov_b64 exec, -1\ns_waitcnt vmcnt(0)\n{le}:")
    def read_fast(self):
        self.a(f"v_mov_b32 v{T[2]}, {L_CTRL+4}\nds_read_b32 v{T[2]}, v{T[2]}\ns_waitcnt lgkmcnt(0)\nv_readfirstlane_b32 s55, v{T[2]}\ns_lshr_b32 s55, s55, 1")
    def make_tag(self):
        self.a("s_waitcnt lgkmcnt(0)\ns_mul_i32 s74, s74, 1664525\ns_add_u32 s74, s74, 1013904223")
    def resid_add(self):
        a = self.a
        self.pair32(ACC, T[2], T[3])
        a(f"v_cvt_pk_bf16_f32 v{T[4]}, v{T[2]}, v{T[3]}")
        a(f"v_lshlrev_b32 v{T[2]}, 16, v{T[4]}\nv_and_b32 v{T[3]}, 0xffff0000, v{T[4]}")
        a(f"v_add_f32 v{T[2]}, v{T[2]}, v{X0}\nv_add_f32 v{T[3]}, v{T[3]}, v{X1}")
        a(f"v_cvt_pk_bf16_f32 v{T[4]}, v{T[2]}, v{T[3]}")
    def unpackX_ops(self, src):
        return [f"v_lshlrev_b32 v{X0}, 16, v{src}", f"v_and_b32 v{X1}, 0xffff0000, v{src}"]
    def xstats_ops(self, s1, s2, tmp):
        return [f"v_add_f32 v{s1}, v{X0}, v{X1}", f"v_mul_f32 v{s2}, v{X0}, v{X0}", f"v_fmac_f32 v{s2}, v{X1}, v{X1}"] + self.red2_ops(s1, s2, (Q1, Q2, HM), tmp)
    def rows24_loads(self, off_arr):
        a = self.a
        self.sel_layer(58, off_arr)
        a(f"s_mul_i32 s60, s56, {BS}\ns_add_u32 s58, s58, s60\ns_add_u32 s60, s58, {10*BS}\ns_add_u32 s61, s58, {20*BS}")
        return [f"buffer_load_dwordx4 {q4(GB+4*n)}, v{aROW}, {WS}, s{(58,60,61)[n]} offen sc1" for n in range(3)]
    def consts(self):
        a = self.a
        t0, t1, t2 = T[0], T[1], T[2]
        a(f"v_and_b32 v{t0}, 1, v0\nv_mul_u32_u24 v{t0}, 0x202, v{t0}\nv_add_u32 v{t0}, 0x100, v{t0}")
        a(f"v_bfe_u32 v{t1}, v0, 1, 1\nv_lshlrev_b32 v{t1}, 4, v{t1}\nv_lshlrev_b32 v{t0}, v{t1}, v{t0}")
        a(f"v_mov_b32 v{t2}, 0x0c0c0000\nv_lshrrev_b32 v{t2}, v{t1}, v{t2}\nv_or_b32 v{t0}, v{t0}, v{t2}")
        a(f"v_bfe_u32 v{t1}, v0, 2, 2\nv_mov_b32 v{t2}, 0x0c0c0c0c")
        for d in range(4):
            a(f"v_cmp_eq_u32 vcc, {d}, v{t1}\nv_cndmask_b32 v{SEL+d}, v{t2}, v{t0}, vcc")
        a(f"v_mov_b32 v{t0}, 0x3f803f80")
        self.build_A(ONES, t0)
    def kwave_addrs(self):
        a = self.a
        t0, t1, t2 = T[0], T[1], T[2]
        a(f"v_lshrrev_b32 v{t0}, 3, v0\nv_and_b32 v{t1}, 7, v0\ns_mov_b32 s58, {32*BS}\nv_mul_lo_u32 v{aROW}, s58, v{t0}\nv_lshl_add_u32 v{aROW}, v{t1}, 4, v{aROW}")
        a(f"v_mul_u32_u24 v{aX2}, {BS}, v{t1}\nv_lshrrev_b32 v{t1}, 4, v0\nv_lshl_add_u32 v{aX2}, v{t1}, 6, v{aX2}")
        a(f"s_lshl_b32 s58, s56, 2\ns_add_u32 s58, s58, s53\nv_add_u32 v{aX2}, s58, v{aX2}")
        a(f"v_bfe_u32 v{t0}, v0, 3, 1\nv_lshl_add_u32 v{t0}, v{t0}, 2, v{t1}\nv_mul_u32_u24 v{aQG}, {BS}, v{t0}")
        a(f"v_and_b32 v{t0}, 7, v0\nv_lshl_add_u32 v{aQG}, v{t0}, 4, v{aQG}")
        a(f"s_mul_i32 s58, s6, {8*BS}\ns_add_u32 s58, s58, s53\nv_add_u32 v{aQG}, s58, v{aQG}")
        a(f"v_and_b32 v{t0}, 3, v0\nv_lshlrev_b32 v{t0}, 4, v{t0}\nv_lshl_add_u32 v{t0}, v{t1}, 2, v{t0}\nv_bfe_u32 v{t2}, v0, 2, 2\nv_add_u32 v{t0}, v{t0}, v{t2}")
        a(f"v_bfe_u32 v{t2}, v{t0}, 1, 2\nv_lshlrev_b32 v{ldsP}, 5, v{t2}\nv_lshrrev_b32 v{t2}, 3, v{t0}\nv_lshl_add_u32 v{ldsP}, v{t2}, 2, v{ldsP}")
        a(f"v_and_b32 v{t2}, 1, v{t0}\nv_lshl_add_u32 v{ldsP}, v{t2}, 1, v{ldsP}")
        a(f"s_lshl_b32 s58, s3, 7\ns_add_u32 s58, s58, {L_P}\nv_add_u32 v{ldsP}, s58, v{ldsP}")
        a(f"v_and_b32 v{t0}, 15, v0\nv_mul_u32_u24 v{aML}, {BS}, v{t1}\nv_lshl_add_u32 v{aML}, v{t0}, 4, v{aML}")
        a(f"v_lshlrev_b32 v{aST}, 4, v{t0}\nv_lshl_add_u32 v{aST}, v{t1}, 2, v{aST}\nv_lshlrev_b32 v{aXS}, 3, v{t0}")
    def vwave_addrs(self):
        a = self.a
        a("v_and_b32 v1, 7, v0\nv_lshrrev_b32 v2, 3, v0\nv_lshrrev_b32 v3, 4, v0")
        a("s_min_u32 s61, s57, 2\ns_lshl_b32 s58, s61, 2\ns_and_b32 s60, s3, 3\ns_add_u32 s58, s58, s60\ns_mul_i32 s60, s58, 43\ns_lshr_b32 s60, s60, 7")
        a("s_mul_i32 s61, s60, 3\ns_sub_u32 s58, s58, s61")
        a(f"s_mul_i32 s60, s60, {8*BS}\ns_add_u32 s60, s60, s53\ns_lshl_b32 s58, s58, 7\ns_add_u32 s58, s58, s60")
        a(f"v_mul_u32_u24 v{aQG}, {BS}, v2\nv_lshl_add_u32 v{aQG}, v1, 4, v{aQG}\nv_add_u32 v{aQG}, s58, v{aQG}")
        a(f"v_lshl_add_u32 v{aML}, v3, 1, v0\nv_and_b32 v{aML}, 7, v{aML}\nv_lshlrev_b32 v{aML}, 3, v{aML}\nv_add_u32 v{aML}, s60, v{aML}")
        a(f"s_and_b32 s58, s3, 3\ns_lshl_b32 s58, s58, 7\ns_add_u32 s58, s58, {L_P}\nv_lshlrev_b32 v{ldsP}, 5, v3\nv_add_u32 v{ldsP}, s58, v{ldsP}")
        a(f"s_mul_i32 s58, s6, {8*BS}\ns_add_u32 s58, s58, s53\ns_and_b32 s60, s3, 3\ns_lshl_b32 s60, s60, 7\ns_add_u32 s58, s58, s60\ns_lshl_b32 s60, s7, 4\ns_add_u32 s58, s58, s60")
        a(f"v_mul_u32_u24 v{aST}, {BS}, v1\nv_lshl_add_u32 v{aST}, v3, 2, v{aST}\nv_add_u32 v{aST}, s58, v{aST}")
        a(f"s_mul_i32 s58, s7, {BS}\ns_add_u32 s58, s58, s53\nv_add_u32 v{aX2}, s58, v{lane4}")
        a(f"v_and_b32 v{aXS}, 15, v0\nv_lshlrev_b32 v{aXS}, 3, v{aXS}\nv_mov_b32 v{aROW}, 0")
    def k_dma(self):
        a = self.a
        t = T[0]; t2 = T[1]
        a(f"v_lshrrev_b32 v{t}, 3, v0\nv_and_b32 v{t2}, 6, v{t}\nv_xor_b32 v{t2}, v{t2}, v0\nv_and_b32 v{t2}, 7, v{t2}")
        a(f"v_mul_u32_u24 v{t}, 384, v{t}\nv_lshl_add_u32 v{t}, v{t2}, 4, v{t}")
        a(f"s_and_b32 s60, s3, 3\ns_mul_i32 s60, s60, 24576\ns_add_u32 s60, s60, {L_K}\ns_mov_b32 s58, s59\ns_add_u32 s61, s59, {64*384}")
        a(f"v_mul_u32_u24 v{T[4]}, 384, v2\nv_lshl_add_u32 v{T[4]}, v1, 4, v{T[4]}")
        a("s_waitcnt lgkmcnt(0)\ns_barrier")
        a("L_kdma:")
        for th in range(3):
            a(f"s_add_u32 m0, s60, {th*1024 - th*128}")
            a(f"buffer_load_dwordx4 v{t}, s[12:15], s58 offen offset:{th*128} nt lds")
        a(f"s_add_u32 s60, s60, 3072\ns_add_u32 s58, s58, 3072\ns_cmp_lt_u32 s58, s61\ns_cbranch_scc1 L_kdma")
    def k_to_regs(self):
        a = self.a
        t = T[0]; t2 = T[1]; t3 = T[2]
        a(f"v_and_b32 v{t}, 7, v0\nv_lshrrev_b32 v{t2}, 4, v0\nv_and_b32 v{t3}, 6, v0\nv_xor_b32 v{t2}, v{t2}, v{t3}")
        a(f"v_lshlrev_b32 v{t}, 7, v{t}\nv_bfe_u32 v{t3}, v0, 3, 1\nv_mul_u32_u24 v{t3}, 3072, v{t3}\nv_add_u32 v{t}, v{t}, v{t3}")
        a(f"s_mul_i32 s60, s3, 24576\nv_add_u32 v{t}, s60, v{t}")
        a(f"v_lshl_add_u32 v{t3}, v{t2}, 4, v{t}")
        a(f"v_xor_b32 v{t2}, 4, v{t2}\nv_lshl_add_u32 v{t2}, v{t2}, 4, v{t}")
        for tile in range(4):
            for u in range(6):
                off = L_K + (2 * tile * 3 + (u >> 1)) * 1024
                a(f"ds_read_b128 {q4(KV + (tile*6+u)*4)}, v{t2 if (u & 1) else t3} offset:{off}")
            if tile == 1: a("s_waitcnt lgkmcnt(0)")
        a("s_waitcnt lgkmcnt(0)")
    def wo_loads(self):
        a = self.a
        t1 = XA
        a(f"v_lshrrev_b32 v{t1}, 3, v0\nv_mul_u32_u24 v{t1}, 1280, v{t1}\nv_and_b32 v{XA+1}, 7, v0\nv_lshl_add_u32 v{t1}, v{XA+1}, 4, v{t1}")
        a("s_min_u32 s62, s57, 2\ns_mul_i32 s58, s4, 768\ns_lshl_b32 s60, s62, 8\ns_add_u32 s58, s58, s60\ns_and_b32 s60, s3, 3\ns_lshl_b32 s60, s60, 6\ns_add_u32 s58, s58, s60")
        a("s_mul_i32 s58, s58, 1280\ns_lshl_b32 s60, s56, 7\ns_add_u32 s58, s58, s60")
        a("s_cmp_ge_u32 s5, 30\ns_cselect_b32 s58, 0x7f000000, s58")
        for t in range(8):
            a(f"buffer_load_dwordx4 {q4(WB+4*t)}, v{t1}, s[24:27], s58 offen nt")
            if t < 7: a(f"s_add_u32 s58, s58, {8*1280}")
    def w1_loads(self):
        a = self.a
        t0, t1 = T[2], T[3]
        a(f"v_lshrrev_b32 v{t0}, 3, v0\nv_and_b32 v{t1}, 7, v0\nv_mul_u32_u24 v{t0}, 3072, v{t0}\nv_lshl_add_u32 v{t0}, v{t1}, 4, v{t0}")
        a(f"s_mul_i32 s58, s56, {64*3072}\ns_mul_i32 s60, s4, 384\ns_add_u32 s58, s58, s60\ns_lshl_b32 s60, s57, 7\ns_add_u32 s58, s58, s60")
        for t in range(8):
            a(f"buffer_load_dwordx4 {q4(WB+4*t)}, v{t0}, s[28:31], s58 offen nt")
            if t < 7: a(f"s_add_u32 s58, s58, {8*3072}")
    def w2_loads(self):
        a = self.a
        t0, t1 = T[2], T[3]
        a(f"v_lshrrev_b32 v{t0}, 3, v0\nv_and_b32 v{t1}, 7, v0\nv_mul_u32_u24 v{t0}, 1280, v{t0}\nv_lshl_add_u32 v{t0}, v{t1}, 4, v{t0}")
        a("s_mul_i32 s58, s4, 192\ns_lshl_b32 s60, s57, 6\ns_add_u32 s61, s58, s60\ns_mul_i32 s58, s61, 1280\ns_lshl_b32 s60, s56, 7\ns_add_u32 s58, s58, s60")
        for t in range(8):
            a(f"buffer_load_dwordx4 {q4(WB+4*t)}, v{t0}, s[36:39], s58 offen nt")
            if t < 7: a(f"s_add_u32 s58, s58, {8*1280}")
        a(f"v_bfe_u32 v{t0}, v0, 3, 1\nv_lshl_add_u32 v{t0}, v{t0}, 1, v{aP32}\ns_lshl_b32 s61, s61, 1")
        a(f"buffer_load_ushort v{B1V}, v{t0}, s[32:35], s61 offen")
    def clears(self, all_sc1):
        a = self.a
        C = XA + 4
        for i in range(4): a(f"v_mov_b32 v{C+i}, -1")
        a(f"v_lshlrev_b32 v{T[3]}, 4, v0")
        f = " sc1" if all_sc1 else ""
        a("s_mov_b32 exec_hi, 0")
        a(f"buffer_store_dwordx4 {q4(C)}, v{T[3]}, {WS}, s52 offen sc1")
        a("s_mov_b32 exec_lo, 0xffff")
        a(f"buffer_store_dwordx4 {q4(C)}, v{T[3]}, {WS}, s52 offen offset:2560{f}")
        a("s_mov_b64 exec, -1")
        for o in (512, 1536):
            a(f"buffer_store_dwordx4 {q4(C)}, v{T[3]}, {WS}, s52 offen offset:{o}{f}")
    def flag_store(self, base):
        a = self.a
        C = XA + 4
        if base == FL1:
            a("s_xor_b32 s58, s74, 0x5bd1e995\ns_andn2_b32 s58, s58, 15\ns_or_b32 s75, s75, s58")
        a(f"s_lshl_b32 s58, s4, 5\ns_add_u32 s58, s58, s5\ns_lshl_b32 s58, s58, 3\ns_add_u32 s58, s58, {base}")
        a(f"v_mov_b32 v{C}, s74\nv_mov_b32 v{C+1}, s75")
        a("s_mov_b64 exec, 1")
        a(f"buffer_store_dwordx2 v[{C}:{C+1}], v{aP32}, {WS}, s58 offen sc1")
        a("s_mov_b64 exec, -1")
    def flags_issue(self, base):
        a = self.a
        F = AB[0]
        a(f"v_lshlrev_b32 v{T[4]}, 5, v0\ns_mov_b32 s60, {base}")
        a(f"buffer_load_dwordx4 {q4(F)}, v{T[4]}, {WS}, s60 offen sc1\nbuffer_load_dwordx4 {q4(F+4)}, v{T[4]}, {WS}, s60 offen offset:16 sc1")
    def flags_wait(self, base, group_only):
        a = self.a
        F = AB[0]
        t, t2 = T[2], T[3]
        lp, lc, ld = self.L("fp"), self.L("fc"), self.L("fg")
        a("s_mov_b32 s70, 0\ns_or_b32 s61, s75, 15")
        if base == FL1: a(f"s_branch {lc}")
        a(f"{lp}:")
        self.flags_issue(base)
        a(f"{lc}:")
        a("s_waitcnt vmcnt(0)")
        a(f"v_xor_b32 v{t}, s74, v{F}")
        for i in range(1, 4):
            a(f"v_xor_b32 v{t2}, s74, v{F+2*i}\nv_or_b32 v{t}, v{t}, v{t2}")
        for i in range(4):
            a(f"v_or_b32 v{t2}, 15, v{F+2*i+1}\nv_xor_b32 v{t2}, s61, v{t2}\nv_or_b32 v{t}, v{t}, v{t2}")
        a(f"v_cmp_ne_u32 vcc, 0, v{t}")
        if group_only: a(f"s_and_b64 vcc, vcc, s[72:73]\ns_cbranch_scc0 {ld}")
        else: a(f"s_cbranch_vccz {ld}")
        a(f"s_sleep 16\ns_add_u32 s70, s70, 1\ns_cmp_lt_u32 s70, {POLL_LIMIT}\ns_cbranch_scc1 {lp}\n{ld}:")
    def flags_check(self):
        a = self.a
        F = AB[0]; t, t2 = T[2], T[3]
        lf = self.L("fast")
        a("s_lshl_b32 s58, s4, 3\ns_mov_b64 s[72:73], 0xff\ns_lshl_b64 s[72:73], s[72:73], s58")
        self.flags_wait(FL1, False)
        a(f"v_xor_b32 v{t}, s75, v{F+1}")
        for i in range(1, 4):
            a(f"v_xor_b32 v{t2}, s75, v{F+2*i+1}\nv_or_b32 v{t}, v{t}, v{t2}")
        a(f"v_cmp_ne_u32 vcc, 0, v{t}\ns_mov_b32 s55, 1\ns_and_b64 vcc, vcc, s[72:73]")
        if "forceslow" not in self.knobs: a(f"s_cbranch_scc0 {lf}")
        a("s_mov_b32 s55, 0")
        self.clears(True)
        a("s_waitcnt vmcnt(0)")
        self.flag_store(FL2)
        self.flags_wait(FL2, True)
        a(f"{lf}:")
        a(f"s_lshl_b32 s58, s55, 1\ns_or_b32 s58, s58, 1\nv_mov_b32 v{t}, s58\nv_mov_b32 v{T[3]}, {L_CTRL}\nds_write_b32 v{T[3]}, v{t} offset:4")
    def qproj(self, pair, s1, s2, pre_ops):
        a = self.a
        self.gemv_bcast(ACC, pair, WA, 10, fill=list(pre_ops) + self.ln_ops(s1, s2, T[2]))
        self.pair32(ACC, T[2], T[3])
        a(f"v_fma_f32 v{T[2]}, -v{s1}, v{CS0}, v{T[2]}\nv_fma_f32 v{T[3]}, -v{s1}, v{CS1}, v{T[3]}")
        a(f"v_mul_f32 v{T[2]}, v{T[2]}, v{s2}\nv_mul_f32 v{T[3]}, v{T[3]}, v{s2}")
        a(f"v_cvt_pk_bf16_f32 v{T[4]}, v{T[2]}, v{T[3]}")

    def gen(self):
        a = self.a
        a(f"; @launch grid=(256,1,1) block=(512,1,1) lds={LDS_BYTES}")
        a('.amdgcn_target "amdgcn-amd-amdhsa--gfx950"\n.text')
        a(f".globl {KNAME}\n.p2align 8\n.type {KNAME},@function")
        a(f"{KNAME}:")
        a("s_cmp_ge_u32 s2, 256\ns_cbranch_scc1 L_end")
        for _ in range(self.SHIFT): a("s_nop 0")
        if self.prof:
            for i in range(13): a(f"s_mov_b64 s[{76+2*i}:{77+2*i}], 0")
        self.stamp(0)
        ptr = {12: 8, 20: 24, 8: 0, 48: 88, 16: 16, 24: 32, 28: 48, 32: 56, 36: 64, 40: 72}
        size = {8: 1280, 12: 100663296, 16: 100663296, 20: 7864320, 24: 7864320, 28: 1966080, 32: 3072, 36: 1966080, 40: 1280,
                48: (PROF_OFF + 256 * 8 * 2 * 64) if self.prof else WS_USED}
        for s, off in ptr.items():
            a(f"s_load_dwordx2 s[{s}:{s+1}], s[0:1], {off}")
        a("v_lshrrev_b32 v1, 6, v0\nv_and_b32 v0, 63, v0\nv_readfirstlane_b32 s3, v1")
        if self.CPF0:
            a("s_getpc_b64 s[72:73]")
            a("L_pcref0:")
            a(f"s_sub_u32 s72, s72, L_pcref0-{KNAME}\ns_subb_u32 s73, s73, 0")
            a("s_and_b32 s58, s2, 0xf8\ns_add_u32 s58, s58, s3\ns_lshl_b32 s58, s58, 7")
            a(f"s_cmp_ge_u32 s58, L_end-{KNAME}\ns_cbranch_scc1 L_nocpf0")
            a(f"v_mov_b32 v2, s58\ns_mov_b64 exec, 1\nglobal_load_dword v{XA+5}, v2, s[72:73]\ns_mov_b64 exec, -1")
            a("L_nocpf0:")
        for s in ptr:
            a(f"s_mov_b32 s{s+2}, {size[s]}\ns_mov_b32 s{s+3}, 0x20000")
        a("s_and_b32 s4, s2, 7\ns_lshr_b32 s5, s2, 3\ns_lshr_b32 s6, s5, 3\ns_and_b32 s7, s5, 7")
        a(f"s_mul_i32 s53, s4, {32*BS}\ns_mul_i32 s52, s5, {BS}\ns_add_u32 s52, s52, s53")
        a("s_mov_b32 s54, 0\ns_mov_b32 s55, 0")
        a("s_getreg_b32 s75, hwreg(HW_REG_XCC_ID)\ns_and_b32 s75, s75, 15")
        a("s_cmp_ge_u32 s5, 10\ns_cselect_b32 s57, 1, 0\ns_cmp_ge_u32 s5, 20\ns_cselect_b32 s57, 2, s57\ns_cmp_ge_u32 s5, 30\ns_cselect_b32 s57, 3, s57")
        a("s_mul_i32 s58, s57, 10\ns_sub_u32 s56, s5, s58")
        a("s_mov_b32 s64, 0x00ff00ff\ns_mov_b32 s65, 0x00ff00ff")
        a("s_mov_b32 s66, 0xaaaaaaaa\ns_mov_b32 s67, 0xaaaaaaaa\ns_mov_b32 s68, 0xcccccccc\ns_mov_b32 s69, 0xcccccccc")
        a("s_mov_b32 s44, 0x03ff03ff\ns_mov_b32 s45, 0x03ff03ff\ns_mov_b32 s46, 1\ns_mov_b32 s47, 1")
        a("s_lshl_b32 s58, s4, 2\ns_add_u32 s58, s58, s6\ns_mul_i32 s59, s58, 3145728")
        a("s_lshl_b32 s58, s7, 8\ns_and_b32 s60, s3, 3\ns_lshl_b32 s60, s60, 6\ns_add_u32 s58, s58, s60\ns_add_u32 s58, s58, 6144\ns_mul_i32 s58, s58, 384\ns_add_u32 s59, s59, s58")
        a("v_and_b32 v1, 7, v0\nv_lshrrev_b32 v2, 3, v0\nv_lshrrev_b32 v3, 4, v0")
        a(f"v_lshlrev_b32 v{lane4}, 2, v0")
        a(f"v_lshlrev_b32 v{aP32}, 4, v1\nv_lshl_add_u32 v{aP32}, v3, 2, v{aP32}")
        a("s_cmp_lt_u32 s3, 4\ns_cbranch_scc1 L_pro_k")
        self.v_prologue()
        a("L_pro_k:")
        a(f"s_setprio 3\ns_mov_b32 s71, {GEN_OFF}")
        a("s_cmp_eq_u32 s3, 3\ns_cbranch_scc1 L_pro_c")
        XS = GB
        a(f"v_lshlrev_b32 v{T[0]}, 4, v0")
        a(f"v_and_b32 v{T[1]}, 15, v0\nv_lshlrev_b32 v{T[1]}, 7, v{T[1]}\nv_lshl_add_u32 v{T[1]}, v3, 2, v{T[1]}\ns_lshl_b32 s61, s7, 4")
        a(f"v_mul_u32_u24 v{T[2]}, 12288, v2\nv_lshl_add_u32 v{T[2]}, v1, 4, v{T[2]}")
        a(f"s_lshl_b32 s58, s4, 2\ns_add_u32 s58, s58, s6\ns_mul_i32 s58, s58, 384\ns_lshl_b32 s60, s3, 7\ns_add_u32 s58, s58, s60\ns_mul_i32 s60, s7, {8*12288}\ns_add_u32 s58, s58, s60")
        a("s_waitcnt lgkmcnt(0)")
        a(f"buffer_load_dwordx4 {q4(XS)}, v{T[0]}, s[8:11], 0 offen")
        a(f"buffer_load_dword v{XS+4}, v{lane4}, s[8:11], 0 offen offset:1024")
        a(f"buffer_load_dword v{XA}, v{T[1]}, s[8:11], s61 offen")
        for t in range(10 if "nowq" not in self.knobs else 0):
            a(f"buffer_load_dwordx4 {q4(WA+4*t)}, v{T[2]}, s[20:23], s58 offen nt")
            if t < 9: a(f"s_add_u32 s58, s58, {64*12288}")
        if self.QPW:
            a(f"v_mov_b32 v{XA+6}, -1\ns_lshl_b32 s60, s3, 8\ns_add_u32 s63, s52, s60")
            a(f"buffer_store_dword v{XA+6}, v{lane4}, {WS}, s63 offen offset:{QP0T+768}")
        a("s_barrier")
        a(f"s_buffer_load_dword s74, {WS}, s71")
        self.consts()
        self.kwave_addrs()
        self.make_tag()
        a(f"s_waitcnt vmcnt({11 + self.QPW})")
        s1, s2 = T[0], T[1]
        a(f"v_mov_b32 v{s1}, 0\nv_mov_b32 v{s2}, 0")
        for i in range(5):
            a(f"v_lshlrev_b32 v{T[2]}, 16, v{XS+i}\nv_and_b32 v{T[3]}, 0xffff0000, v{XS+i}")
            a(f"v_add_f32 v{s1}, v{s1}, v{T[2]}\nv_fmac_f32 v{s2}, v{T[2]}, v{T[2]}\nv_add_f32 v{s1}, v{s1}, v{T[3]}\nv_fmac_f32 v{s2}, v{T[3]}, v{T[3]}")
        for x in self.red2_ops(s1, s2, (Q1, Q2, HM, RM), T[2]): a(x)
        a(f"v_readlane_b32 s58, v{s1}, 0\nv_readlane_b32 s60, v{s1}, 32")
        a(f"v_mov_b32 v{s1}, s58\nv_mov_b32 v{s2}, s60")
        a(f"s_waitcnt vmcnt({self.QPW})")
        self.stamp(1)
        if "lo1" in self.knobs: a("s_branch L_fin2")
        for t in range(10):
            self.mfma(ACC + 4, ONES, WA + 4 * t, t == 0)
        self.pair32(ACC + 4, CS0, CS1)
        self.qproj(XA, s1, s2, [])
        QD = XA + 6
        a(f"v_mov_b32 v{QD}, v{T[4]}\nv_mov_b32 v{QD+1}, s74")
        a(f"v_and_b32 v{X0}, 7, v0\nv_lshlrev_b32 v{X0}, 3, v{X0}\nv_lshrrev_b32 v{T[2]}, 4, v0\nv_lshl_add_u32 v{X0}, v{T[2]}, 6, v{X0}")
        a("s_lshl_b32 s60, s3, 8\ns_add_u32 s63, s52, s60")
        a("s_mov_b64 exec, s[64:65]")
        a(f"buffer_store_dwordx2 v[{QD}:{QD+1}], v{X0}, {WS}, s63 offen offset:{QP0T+768}")
        a("s_mov_b64 exec, -1\ns_mov_b32 s71, 0")
        self.stamp(3)
        if "lo2" in self.knobs: a("s_branch L_fin2")
        a(f"s_mul_i32 s58, s3, 10752\ns_add_u32 s58, s58, {L_WQ}\nv_lshlrev_b32 v{T[0]}, 4, v0\nv_add_u32 v{T[0]}, s58, v{T[0]}")
        for t in range(10):
            a(f"ds_write_b128 v{T[0]}, {q4(WA+4*t)} offset:{1024*t}")
        a(f"v_add_u32 v{T[1]}, s58, v{lane4}\nds_write_b32 v{T[1]}, v{CS0} offset:10240\nds_write_b32 v{T[1]}, v{CS1} offset:10496")
        QA = [XA + 1, XA + 2]
        a(f"s_mul_i32 s62, s6, {8*BS}\ns_add_u32 s62, s62, s53\ns_lshl_b32 s58, s3, 7")
        for n in range(2):
            a(f"v_add_u32 v{T[0]}, s58, v0")
            if n: a(f"v_add_u32 v{T[0]}, 64, v{T[0]}")
            a(f"v_mul_u32_u24 v{T[1]}, 0x556, v{T[0]}\nv_lshrrev_b32 v{T[1]}, 16, v{T[1]}")
            a(f"v_mul_u32_u24 v{T[2]}, {BS - 768}, v{T[1]}\nv_lshl_add_u32 v{QA[n]}, v{T[0]}, 4, v{T[2]}")
        SETS = [[WB, WB + 4], [WB + 8, WB + 12]]
        def qissue(k):
            if k == 0: a("s_add_u32 s58, s62, 768")
            else: a(f"s_cmp_ge_u32 s70, {self.QFB}\ns_cselect_b32 s58, 0, 768\ns_add_u32 s58, s58, s62")
            for n in range(2):
                a(f"buffer_load_dwordx4 {q4(SETS[k][n])}, v{QA[n]}, {WS}, s58 offen offset:{QP0T} sc1")
        lp, ld = self.L("poll"), self.L("got")
        a(f"s_mov_b32 s70, 0\ns_sleep {self.QSLEEP0}")
        gots = [self.L("qg") for _ in range(2)]
        if self.Q1ST:
            qissue(0)
            a("s_waitcnt vmcnt(0)")
            a(f"v_mov_b32 v{T[0]}, s74\nv_mov_b32 v{T[1]}, s74")
            for r in SETS[0]:
                a(f"v_min3_u32 v{T[0]}, v{T[0]}, v{r+1}, v{r+3}\nv_max3_u32 v{T[1]}, v{T[1]}, v{r+1}, v{r+3}")
            a(f"v_cmp_ne_u32 vcc, v{T[0]}, v{T[1]}\ns_cbranch_vccz {gots[0]}")
        qissue(0); a(f"s_sleep {self.QSLEEP1}"); qissue(1)
        a(f"{lp}:")
        for k in range(2):
            a("s_waitcnt vmcnt(2)")
            a(f"v_mov_b32 v{T[0]}, s74\nv_mov_b32 v{T[1]}, s74")
            for r in SETS[k]:
                a(f"v_min3_u32 v{T[0]}, v{T[0]}, v{r+1}, v{r+3}\nv_max3_u32 v{T[1]}, v{T[1]}, v{r+1}, v{r+3}")
            a(f"v_cmp_ne_u32 vcc, v{T[0]}, v{T[1]}\ns_cbranch_vccz {gots[k]}")
            if k == 1:
                a("s_add_u32 s70, s70, 1")
                self.q_fallback(self.QFB)
            qissue(k)
        a(f"s_cmp_lt_u32 s70, {POLL_LIMIT}\ns_cbranch_scc1 {lp}")
        for k in range(2):
            a(f"{gots[k]}:")
            a(f"v_lshrrev_b32 v{T[0]}, 4, v0\nv_lshlrev_b32 v{T[0]}, 7, v{T[0]}\nv_and_b32 v{T[1]}, 3, v0\nv_lshl_add_u32 v{T[0]}, v{T[1]}, 5, v{T[0]}")
            a(f"v_bfe_u32 v{T[1]}, v0, 2, 2\nv_lshl_add_u32 v{T[0]}, v{T[1]}, 2, v{T[0]}\ns_lshl_b32 s58, s3, 10\ns_add_u32 s58, s58, {L_Q}\nv_add_u32 v{T[0]}, s58, v{T[0]}")
            for n in range(2):
                a(f"ds_write2_b32 v{T[0]}, v{SETS[k][n]}, v{SETS[k][n]+2} offset0:{128*n} offset1:{128*n+4}")
            if k < 1: a(f"s_branch {ld}")
        a(f"{ld}:")
        a(f"v_mov_b32 v{T[2]}, 1\nv_mov_b32 v{T[3]}, {L_CTRL+32}\ns_waitcnt lgkmcnt(0)\nds_add_u32 v{T[3]}, v{T[2]}")
        self.stamp(2)
        a("s_branch L_bk")
        a("L_pro_c:")
        a(f"v_mov_b32 v{T[0]}, 0")
        a("s_mov_b64 exec, 0xffff")
        a(f"ds_write_b32 v{lane4}, v{T[0]} offset:{L_CTRL}")
        a("s_mov_b64 exec, -1\ns_waitcnt lgkmcnt(0)")
        if self.B0E: a("s_barrier")
        if "noclr" not in self.knobs: self.clears(False)
        a(f"s_lshl_b32 s58, s56, 7\nbuffer_load_dword v{GB+4}, v{aP32}, s[8:11], s58 offen")
        if not self.B0E: a("s_barrier")
        a(f"s_buffer_load_dword s74, {WS}, s71")
        self.consts()
        self.kwave_addrs()
        self.make_tag()
        a("s_waitcnt vmcnt(0)")
        if "noclr" not in self.knobs: self.flag_store(FL1)
        self.stamp(1)
        for x in self.unpackX_ops(GB + 4): a(x)
        if not (self.knobs & {"lo1", "lo2"}) and "noclr" not in self.knobs:
            a(f"s_sleep {self.FLSL}")
            self.flags_issue(FL1)
            self.flags_check()
            self.stamp(2)
        a("L_bk:")
        if self.knobs & {"lo1", "lo2", "lo3"}: a("s_branch L_fin2")
        a(f"s_lshl_b32 s60, s3, 2\ns_add_u32 s60, s60, {L_CTRL+16}")
        self.lds_wait_flag("s60")
        self.stamp(10)
        self.k_to_regs()
        self.lds_wait_flag(L_CTRL + 32, 192, fb=64)
        self.stamp(11)
        a(f"v_and_b32 v{T[3]}, 7, v0\nv_mul_u32_u24 v{T[3]}, 384, v{T[3]}\nv_lshrrev_b32 v{T[4]}, 4, v0\nv_lshl_add_u32 v{T[3]}, v{T[4]}, 4, v{T[3]}")
        a(f"v_and_b32 v{T[4]}, 8, v0\nv_lshl_add_u32 v{T[3]}, v{T[4]}, 3, v{T[3]}")
        for u in range(3):
            a(f"ds_read_b128 {q4(GB+4*u)}, v{T[3]} offset:{L_Q + 128*u}")
        a("s_waitcnt lgkmcnt(0)")
        a("s_branch L_qk")

        a("L_kloop:")
        a("s_cmp_lg_u32 s3, 3\ns_cbranch_scc1 L_k_b1")
        a("s_cmp_ge_u32 s5, 10\ns_cbranch_scc1 L_k_pt")
        self.zgather(0, self.ZSL)
        s1, s2 = T[0], T[1]
        a("s_mov_b64 exec, s[64:65]")
        self.local_stores([f"buffer_store_dword v{T[4]}, v{aX2}, {WS}, 0 offen offset:{X2O}{{f}}"])
        a("s_mov_b64 exec, -1")
        for x in self.unpackX_ops(T[4]) + self.xstats_ops(s1, s2, T[2]): a(x)
        a(f"v_lshrrev_b32 v{T[2]}, 3, v0\nv_and_b32 v{T[2]}, 4, v{T[2]}\ns_lshl_b32 s58, s56, 3\ns_add_u32 s58, s58, s53\ns_add_u32 s58, s58, {7*BS}")
        a("s_mov_b64 exec, s[46:47]")
        self.local_stores([f"buffer_store_dword v{s1}, v{T[2]}, {WS}, s58 offen offset:{MISC}{{f}}"])
        a("s_mov_b64 exec, -1")
        self.stamp(2)
        a("L_k_pt:")
        a("L_k_b1:")
        a("s_barrier")
        self.sleep(self.QSL)
        self.poll([f"buffer_load_dwordx4 {q4(GB+4*u)}, v{aQG}, {WS}, 0 offen offset:{QP1 + 128*u} sc1" for u in range(3)], range(GB, GB + 12),
                  entry="L_qk", spec=[self.mfma_s(ACC + 4 * (u & 1), KV + 4 * u, GB + 4 * (u >> 1), u < 2) for u in range(4)])
        self.stamp(4)
        R = [XA, XA + 1, XA + 2, XA + 3]
        DE = [ACC, ACC + 8]; DO = [ACC + 4, ACC + 12]
        def lvl_ops(t):
            e, o = DE[t & 1], DO[t & 1]
            hm = lambda d, srcr, bank: f"v_add_f32_dpp v{d}, v{srcr}, v{srcr} row_half_mirror row_mask:0xf bank_mask:{hex(1<<bank)}"
            return [hm(T[2], e + 2, 0), hm(T[2], e + 3, 1), hm(R[t], e, 0), hm(R[t], e + 1, 1),
                    hm(T[2], o, 2), hm(T[2], o + 1, 3), hm(R[t], o + 2, 2), hm(R[t], o + 3, 3),
                    f"v_add_f32_dpp v{R[t]}, v{T[2]}, v{R[t]} row_ror:8 {DPPALL}",
                    f"v_add_f32_dpp v{R[t]}, v{R[t]}, v{R[t]} {Q1} {DPPALL}",
                    f"v_add_f32_dpp v{R[t]}, v{R[t]}, v{R[t]} {Q2} {DPPALL}"]
        pend = []
        S = T[0]; M = T[1]
        for t in range(4):
            for u in range(6):
                if t == 0 and u < 4: continue
                self.mfma((DO if u & 1 else DE)[t & 1], KV + (t * 6 + u) * 4, GB + 4 * (u >> 1), u < 2)
                if u >= 2:
                    for _ in range(3 if u < 5 else 2):
                        if pend: a(pend.pop(0))
            pend = lvl_ops(t)
            if t == 3:
                pend = [f"v_max3_f32 v{M}, v{R[0]}, v{R[1]}, v{R[2]}", f"v_cndmask_b32 v{R[0]}, v{R[0]}, v{R[1]}, s[66:67]"] + pend
        for x in pend: a(x)
        a(f"v_max_f32 v{M}, v{M}, v{R[3]}")
        a(f"v_cndmask_b32 v{R[2]}, v{R[2]}, v{R[3]}, s[66:67]\nv_cndmask_b32 v{S}, v{R[0]}, v{R[2]}, s[68:69]")
        a(f"v_max_f32_dpp v{M}, v{M}, v{M} row_ror:4 {DPPALL}")
        a(f"v_mul_f32 v{S}, 0x3dd53b95, v{S}")
        a(f"v_max_f32_dpp v{M}, v{M}, v{M} row_ror:8 {DPPALL}")
        a(f"v_mov_b32 v{T[2]}, v{M}\nv_permlane16_swap_b32 v{M}, v{T[2]}\nv_max_f32 v{M}, v{M}, v{T[2]}")
        a(f"v_mov_b32 v{T[2]}, v{M}\nv_permlane32_swap_b32 v{M}, v{T[2]}\nv_max_f32 v{M}, v{M}, v{T[2]}")
        a(f"v_mul_f32 v{M}, 0x3dd53b95, v{M}")
        a(f"v_sub_f32 v{S}, v{S}, v{M}\nv_exp_f32 v{S}, v{S}")
        a(f"v_cvt_pk_bf16_f32 v{S}, v{S}, v{S}")
        a(f"ds_write_b16 v{ldsP}, v{S}")
        a("s_cmp_eq_u32 s3, 3\ns_cbranch_scc1 L_qk_nf\ns_cmp_lg_u32 s54, 0\ns_cbranch_scc1 L_qk_nf")
        self.lds_wait_flag(L_CTRL + 4)
        a("s_lshr_b32 s55, s58, 1\ns_cmp_lg_u32 s55, 0\ns_cbranch_scc1 L_qk_nf")
        self.q_fallback(0)
        a("L_qk_nf:")
        a("s_waitcnt lgkmcnt(0)")
        self.stamp(5)
        a("s_barrier")
        a(f"v_lshlrev_b32 v{S}, 16, v{S}")
        self.allred64("v_add_f32", S, T[2])
        a(f"s_lshl_b32 s58, s3, 3\nv_mov_b32 v{T[2]}, s58")
        a("s_mov_b64 exec, 1")
        a(f"ds_write_b32 v{T[2]}, v{M} offset:{L_ML}\nds_write_b32 v{T[2]}, v{S} offset:{L_ML+4}")
        a("s_mov_b64 exec, -1")
        a("s_cmp_lg_u32 s3, 3\ns_cbranch_scc1 L_k_b3")
        a("s_cmp_eq_u32 s54, 0\ns_cbranch_scc1 L_c_b3")
        a("L_c_x2:")
        a("s_cmp_lt_u32 s5, 10\ns_cbranch_scc1 L_c_b3")
        self.poll([f"buffer_load_dword v{GB}, v{aX2}, {WS}, 0 offen offset:{X2O} sc1"], [GB])
        for x in self.unpackX_ops(GB): a(x)
        a("L_c_b3:")
        a("s_waitcnt lgkmcnt(0)\ns_barrier")
        a("s_cmp_ge_u32 s5, 30\ns_cbranch_scc1 L_k_next")
        if self.LL == 3:
            a("s_cmp_lg_u32 s54, 0\ns_cbranch_scc1 L_c_b4")
            self.w1_loads()
            a("L_c_b4:")
        a("s_barrier")
        a("s_cmp_lg_u32 s54, 0\ns_cbranch_scc1 L_p4_nocs")
        if self.LL == 4: self.w1_loads()
        yl = self.rows24_loads(YO)
        self.sleep(self.YSL0)
        for x in yl: a(x)
        a("s_mov_b32 s70, 0\ns_waitcnt vmcnt(3)")
        for t in range(8): self.mfma(ACC, ONES, WB + 4 * t, t == 0)
        self.l64(ACC, CS0)
        self.local_stores([f"buffer_store_dword v{CS0}, v{aST}, {WS}, s52 offen offset:{HPC}{{f}}"])
        a("s_branch L_p4_chk")
        a("L_p4_nocs:")
        yl = self.rows24_loads(YO)
        self.sleep(self.YSL)
        self.poll(yl, range(GB, GB + 12), entry="L_p4_chk", spec=[self.mfma_s(ACC, ONES, GB + 4 * n, n == 0) for n in range(3)])
        a("s_barrier")
        self.stamp(8)
        self.sel_layer(58, HPR, 52)
        a(f"s_mul_i32 s60, s54, 3\ns_add_u32 s60, s60, s57\ns_add_u32 s60, s60, 1\ns_mul_i32 s60, s60, {BS}\ns_add_u32 s60, s60, s53\ns_lshl_b32 s61, s56, 3\ns_add_u32 s60, s60, s61")
        self.resid_add()
        s1, s2 = T[0], T[1]
        self.gemv_bcast(ACC + 4, T[4], WB, 8, fill=self.unpackX_ops(T[4]) + self.xstats_ops(s1, s2, T[2]) + [f"v_lshrrev_b32 v{T[2]}, 3, v0", f"v_and_b32 v{T[2]}, 4, v{T[2]}"])
        self.l64(ACC + 4, T[3])
        self.local_stores([f"buffer_store_dword v{T[3]}, v{aST}, {WS}, s58 offen{{f}}", "s_mov_b64 exec, s[46:47]",
                           f"buffer_store_dword v{s1}, v{T[2]}, {WS}, s60 offen offset:{MISC}{{f}}"])
        a("s_mov_b64 exec, -1")
        self.stamp(9)
        self.dump0()
        a("s_barrier")
        a("s_cmp_lg_u32 s54, 0\ns_cbranch_scc1 L_final\ns_mov_b32 s54, 1\ns_branch L_kloop")
        a("L_k_b3:")
        if self.LL2 == 2:
            a("s_cmp_lg_u32 s54, 0\ns_cbranch_scc1 L_k_b3a\ns_cmp_lg_u32 s3, 0\ns_cbranch_scc1 L_k_b3a")
            self.w2_loads()
            a("L_k_b3a:")
        if self.CPF:
            self.code_prefetch()
        a(f"s_lshl_b32 s58, s3, 8\nv_add_u32 v{T[3]}, s58, v{lane4}\nv_mov_b32 v{T[4]}, {L_ML}")
        self.sel_layer(58, OP, 52)
        a("s_lshl_b32 s60, s3, 7\ns_add_u32 s60, s60, s58")
        a(f"s_mul_i32 s61, s7, {BS - 8}\ns_sub_u32 s61, s52, s61\ns_lshl_b32 s58, s54, 6\ns_add_u32 s61, s61, s58")
        a("s_waitcnt lgkmcnt(0)\ns_barrier")
        self.stamp(6)
        a(f"ds_read_b128 {q4(GB)}, v{T[4]}\nds_read_b128 {q4(GB+4)}, v{T[4]} offset:16")
        for w in range(4):
            a(f"ds_read_b32 v{GB+8+w}, v{T[3]} offset:{L_O + 768*w}")
        a("s_waitcnt lgkmcnt(0)")
        M = GB + 12; Lr = GB + 13
        a(f"v_max3_f32 v{M}, v{GB}, v{GB+2}, v{GB+4}\nv_max_f32 v{M}, v{M}, v{GB+6}")
        for w in range(4): a(f"v_sub_f32 v{GB+2*w}, v{GB+2*w}, v{M}")
        for w in range(4): a(f"v_exp_f32 v{GB+2*w}, v{GB+2*w}")
        a(f"v_mul_f32 v{Lr}, v{GB}, v{GB+1}\nv_mul_f32 v{T[0]}, v{GB}, v{GB+8}")
        for w in range(1, 4):
            a(f"v_fmac_f32 v{Lr}, v{GB+2*w}, v{GB+2*w+1}\nv_fmac_f32 v{T[0]}, v{GB+2*w}, v{GB+8+w}")
        a(f"v_rcp_f32 v{T[1]}, v{Lr}\nv_mul_f32 v{T[0]}, v{T[0]}, v{T[1]}")
        a(f"v_mov_b32_dpp v{T[1]}, v{T[0]} row_ror:8 {DPPALL}\nv_cvt_pk_bf16_f32 v{T[0]}, v{T[0]}, v{T[1]}")
        a("s_mov_b64 exec, s[64:65]")
        lz = self.L("z")
        self.local_stores([f"buffer_store_dword v{T[0]}, v{aP32}, {WS}, s60 offen{{f}}"])
        a(f"s_cmp_lg_u32 s3, 1\ns_cbranch_scc1 {lz}\ns_mov_b64 exec, 1")
        self.local_stores([f"buffer_store_dwordx2 v[{M}:{Lr}], v{aP32}, {WS}, s61 offen offset:{MISC}{{f}}"])
        a(f"{lz}:\ns_mov_b64 exec, -1")
        self.stamp(7)
        a("s_cmp_ge_u32 s5, 30\ns_cbranch_scc1 L_k_next")
        if self.LL2 == 3:
            a("s_cmp_lg_u32 s54, 0\ns_cbranch_scc1 L_k_b4a\ns_cmp_lg_u32 s3, 0\ns_cbranch_scc1 L_k_b4a")
            self.w2_loads()
            a("L_k_b4a:")
        a("s_barrier")
        a("s_cmp_eq_u32 s3, 0\ns_cbranch_scc1 L_p5")
        a("s_cmp_lg_u32 s3, 1\ns_cbranch_scc1 L_k_b5")
        self.sel_layer(58, HPR, 52)
        a(f"v_lshlrev_b32 v{T[0]}, 7, v0\ns_mov_b64 exec, 3")
        a(f"buffer_load_dword v{GB}, v{T[0]}, {WS}, s58 offen sc1\nbuffer_load_dword v{GB+1}, v{T[0]}, {WS}, s52 offen offset:{HPC} sc1")
        a(f"buffer_load_dword v{GB+2}, v{lane4}, {WS}, s52 offen offset:{MISC} sc1\ns_mov_b64 exec, -1")
        a("L_k_b5:")
        a("s_barrier\ns_barrier")
        a("s_branch L_k_next")
        a("L_p5:")
        a(f"s_mul_i32 s62, s57, {10*BS}\ns_add_u32 s62, s62, s53")
        def hp_gather(with_stats, slp=0):
            for i in range(8, 14): a(f"v_mov_b32 v{GB+i}, 0")
            loads = [f"buffer_load_dwordx4 {q4(GB)}, v{aML}, {WS}, s58 offen sc1",
                     f"buffer_load_dwordx4 {q4(GB+4)}, v{aML}, {WS}, s60 offen sc1",
                     "s_mov_b32 exec_hi, 0",
                     f"buffer_load_dwordx4 {q4(GB+8)}, v{aML}, {WS}, s61 offen sc1"]
            if with_stats:
                loads += ["s_mov_b64 exec, s[44:45]", f"buffer_load_dwordx2 v[{GB+12}:{GB+13}], v{aXS}, {WS}, s63 offen offset:{MISC} sc1"]
            loads += ["s_mov_b64 exec, -1"]
            return loads, range(GB, GB + (14 if with_stats else 12))
        def hp_reduce_ops(dst):
            o = [f"v_add_f32 v{GB+i}, v{GB+i}, v{GB+4+i}" for i in range(4)] + [f"v_add_f32 v{GB+i}, v{GB+i}, v{GB+8+i}" for i in range(4)]
            o += [f"v_permlane32_swap_b32 v{GB}, v{GB+2}", f"v_permlane32_swap_b32 v{GB+1}, v{GB+3}",
                  f"v_add_f32 v{GB}, v{GB}, v{GB+2}", f"v_add_f32 v{GB+1}, v{GB+1}, v{GB+3}",
                  f"v_permlane16_swap_b32 v{GB}, v{GB+1}", f"v_add_f32 v{dst}, v{GB}, v{GB+1}"]
            return o
        a("s_cmp_lg_u32 s54, 0\ns_cbranch_scc1 L_p5_nocs")
        if self.LL2 == 4: self.w2_loads()
        if self.LL2 == 5:
            a(f"s_sleep {self.W2SL}")
            self.w2_loads()
        a(f"s_add_u32 s58, s62, {HPC}\ns_add_u32 s60, s58, {4*BS}\ns_add_u32 s61, s58, {8*BS}")
        a("s_barrier")
        ld_, rg_ = hp_gather(False)
        self.poll(ld_, rg_)
        for x in hp_reduce_ops(CSW1): a(x)
        a(f"v_lshlrev_b32 v{B1V}, 16, v{B1V}")
        a("s_branch L_p5_g")
        a("L_p5_nocs:")
        a("s_barrier")
        self.sleep(self.HSL)
        a("L_p5_g:")
        self.sel_layer(58, HPR, 62)
        a(f"s_add_u32 s60, s58, {4*BS}\ns_add_u32 s61, s58, {8*BS}")
        a(f"s_mul_i32 s63, s54, 3\ns_add_u32 s63, s63, s57\ns_add_u32 s63, s63, 1\ns_mul_i32 s63, s63, {BS}\ns_add_u32 s63, s63, s53")
        ld_, rg_ = hp_gather(True)
        self.poll(ld_, rg_)
        self.stamp(8)
        s1, s2 = GB + 12, GB + 13
        H = T[0]
        c1 = self.row16_ops(s1, s2) + self.ln_ops(s1, s2, T[5])
        c2 = hp_reduce_ops(H)
        while c1 or c2:
            if c1: a(c1.pop(0))
            if c1 and len(c1) > 14: a(c1.pop(0))
            if c2: a(c2.pop(0))
        self.sel_layer(58, ZO, 52)
        a(f"v_fma_f32 v{H}, -v{s1}, v{CSW1}, v{H}\nv_mul_f32 v{H}, v{H}, v{s2}")
        self.bf16r(H, H)
        a(f"v_add_f32 v{H}, v{H}, v{B1V}")
        self.bf16r(H, H)
        E = T[1]; N = T[2]; Dn = T[3]
        a(f"v_mul_f32 v{E}, 0x3fb8aa3b, v{H}\nv_exp_f32 v{E}, -|v{E}|")
        a(f"v_cmp_gt_f32 vcc, 0, v{H}\nv_mov_b32 v{T[4]}, 2.0")
        a(f"v_fma_f32 v{N}, v{E}, 2.0, 1.0\nv_add_f32 v{Dn}, 2.0, v{E}\nv_mul_f32 v{Dn}, v{Dn}, v{E}")
        a(f"v_mul_f32 v{E}, v{E}, v{E}\nv_add_f32 v{E}, v{E}, v{E}")
        a(f"v_cndmask_b32 v{N}, v{N}, v{Dn}, vcc\nv_cndmask_b32 v{E}, v{E}, v{T[4]}, vcc")
        a(f"v_add_f32 v{Dn}, v{N}, v{E}\nv_rcp_f32 v{Dn}, v{Dn}\nv_mul_f32 v{N}, v{N}, v{H}\nv_mul_f32 v{N}, v{N}, v{Dn}")
        a(f"v_mov_b32_dpp v{E}, v{N} row_ror:8 {DPPALL}\nv_cvt_pk_bf16_f32 v{T[4]}, v{N}, v{E}")
        self.gemv_bcast(ACC, T[4], WB, 8)
        self.pair32(ACC, T[0], T[1])
        a(f"v_cvt_pk_bf16_f32 v{T[0]}, v{T[0]}, v{T[1]}")
        a("s_mov_b64 exec, s[64:65]")
        a(f"buffer_store_dword v{T[0]}, v{aP32}, {WS}, s58 offen sc1")
        a("s_mov_b64 exec, -1")
        self.stamp(9)
        a("s_barrier")
        a("L_k_next:")
        a("s_cmp_lg_u32 s54, 0\ns_cbranch_scc1 L_final")
        self.dump_stamps()
        a("s_mov_b32 s54, 1")
        a("s_cmp_lg_u32 s3, 2\ns_cbranch_scc1 L_kloop")
        a("s_cmp_lg_u32 s2, 0\ns_cbranch_scc1 L_nogen")
        a(f"s_mov_b64 exec, 1\nv_mov_b32 v{T[0]}, s74\nv_mov_b32 v{T[1]}, {GEN_OFF}")
        a(f"buffer_store_dword v{T[0]}, v{T[1]}, {WS}, 0 offen sc1")
        a("s_mov_b64 exec, -1\nL_nogen:")
        for u in range(3):
            a(f"buffer_load_dword v{GB+4+u}, v{aQG}, {WS}, 0 offen offset:{QP1 + 128*u} sc1")
        a("s_branch L_kloop")
        a("L_final:")
        a("s_cmp_lg_u32 s3, 3\ns_cbranch_scc1 L_fin2\ns_cmp_lg_u32 s4, 0\ns_cbranch_scc1 L_fin2\ns_cmp_ge_u32 s5, 10\ns_cbranch_scc1 L_fin2")
        self.zgather(1, self.FSL)
        a("s_lshl_b32 s58, s5, 7")
        a("s_mov_b64 exec, s[64:65]")
        a(f"buffer_store_dword v{T[4]}, v{aP32}, s[40:43], s58 offen{' sc1' if self.OSC else ''}")
        a("s_mov_b64 exec, -1")
        self.stamp(11)
        a("L_fin2:")
        self.dump_stamps()
        a("s_endpgm")

        a("L_vloop:")
        a(f"buffer_load_dword v{XA+2}, v{aQG}, {WS}, 0 offen offset:{OP[1]} sc1")
        a("s_cmp_eq_u32 s3, 7\ns_cbranch_scc1 L_v7_b1")
        a(f"v_mov_b32 v{GB}, 0\nv_mov_b32 v{GB+2}, 0\nv_mov_b32 v{GB+3}, 0\ns_add_u32 s58, s53, {7*BS}")
        self.sleep(self.XSL)
        self.poll(["s_mov_b64 exec, s[44:45]", f"buffer_load_dword v{GB}, v{aX2}, {WS}, 0 offen offset:{X2O} sc1",
                   f"buffer_load_dwordx2 v[{GB+2}:{GB+3}], v{aXS}, {WS}, s58 offen offset:{MISC} sc1", "s_mov_b64 exec, -1"], [GB, GB + 2, GB + 3], slp=1)
        a("s_barrier")
        self.stamp(1)
        self.qproj(GB, GB + 2, GB + 3, self.row16_ops(GB + 2, GB + 3))
        a("s_mov_b64 exec, s[64:65]")
        self.local_stores([f"buffer_store_dword v{T[4]}, v{aST}, {WS}, 0 offen offset:{QP1}{{f}}"])
        a("s_mov_b64 exec, -1")
        self.stamp(3)
        a("s_branch L_v_b2")
        a("L_v7_b1:")
        a("s_barrier")
        a("L_v_b2:")
        a(f"s_and_b32 s58, s3, 3\ns_mul_i32 s58, s58, 768\nv_add_u32 v{T[3]}, s58, v{lane4}")
        a("s_barrier")
        self.stamp(5)
        a(f"ds_read_b128 {q4(GB)}, v{ldsP}\nds_read_b128 {q4(GB+4)}, v{ldsP} offset:16")
        a("s_cmp_lg_u32 s54, 0\ns_cbranch_scc1 L_v_nowo")
        self.wo_loads()
        a("L_v_nowo:")
        a("s_waitcnt lgkmcnt(0)")
        self.al()
        self.build_A(AB[0], GB)
        for G in range(8):
            a(f"s_waitcnt vmcnt({8 + 21 - 3*G})")
            for th in range(3):
                self.mfma(ACC + 4 * th, AB[G & 1], KV + (G * 3 + th) * 4, G == 0)
                if G + 1 < 8 and th < 2:
                    for d in (2 * th, 2 * th + 1):
                        a(f"v_perm_b32 v{AB[(G+1)&1]+d}, v{GB+G+1}, v{GB+G+1}, v{SEL+d}")
        for th in range(3):
            self.l64(ACC + 4 * th, T[th])
            a(f"ds_write_b32 v{T[3]}, v{T[th]} offset:{L_O + 256*th}")
        self.sel_layer(58, OP)
        a("s_lshl_b32 s60, s54, 6")
        a("s_waitcnt lgkmcnt(0)\ns_barrier")
        self.stamp(6)
        a("s_cmp_ge_u32 s5, 30\ns_cbranch_scc1 L_v_next")
        self.sleep(self.OSL)
        self.poll([f"buffer_load_dwordx4 {q4(GB)}, v{aQG}, {WS}, s58 offen sc1",
                   f"buffer_load_dwordx2 v[{GB+4}:{GB+5}], v{aML}, {WS}, s60 offen offset:{MISC} sc1"], range(GB, GB + 6),
                  spec=[f"v_max_f32_dpp v{T[0]}, v{GB+4}, v{GB+4} {Q1} {DPPALL}", f"v_max_f32_dpp v{T[0]}, v{T[0]}, v{T[0]} {Q2} {DPPALL}", f"v_max_f32_dpp v{T[0]}, v{T[0]}, v{T[0]} {HM} {DPPALL}"])
        self.stamp(8)
        M = T[0]; W = T[1]
        a(f"v_sub_f32 v{W}, v{GB+4}, v{M}\nv_exp_f32 v{W}, v{W}\nv_mul_f32 v{W}, v{W}, v{GB+5}")
        a(f"v_mov_b32_dpp v{T[2]}, v{W} row_newbcast:0 {DPPALL}\nv_mov_b32_dpp v{T[3]}, v{W} row_newbcast:1 {DPPALL}")
        a(f"v_cvt_pk_bf16_f32 v{T[2]}, v{T[2]}, v{T[3]}")
        self.build_A(AB[0], T[2])
        self.bf16r(W, W)
        self.mfma(ACC, AB[0], GB, True)
        for c in (Q1, Q2, HM):
            a(f"v_add_f32_dpp v{W}, v{W}, v{W} {c} {DPPALL}")
        a(f"v_rcp_f32 v{W}, v{W}")
        self.pair32(ACC, T[2], T[3])
        a(f"v_mul_f32 v{T[2]}, v{T[2]}, v{W}\nv_mul_f32 v{T[3]}, v{T[3]}, v{W}\nv_cvt_pk_bf16_f32 v{T[4]}, v{T[2]}, v{T[3]}")
        self.gemv_bcast(ACC + 4, T[4], WB, 8)
        a(f"s_and_b32 s58, s3, 3\ns_lshl_b32 s58, s58, 8\nv_add_u32 v{T[3]}, s58, v{lane4}")
        self.l64(ACC + 4, T[0])
        a(f"ds_write_b32 v{T[3]}, v{T[0]} offset:{L_YR}")
        self.sel_layer(58, YO, 52)
        a("s_waitcnt lgkmcnt(0)\ns_barrier")
        a("s_cmp_lg_u32 s3, 7\ns_cbranch_scc1 L_v_b5")
        for w in range(4): a(f"ds_read_b32 v{GB+w}, v{lane4} offset:{L_YR + 256*w}")
        a("s_waitcnt lgkmcnt(0)")
        a(f"v_add_f32 v{GB}, v{GB}, v{GB+1}\nv_add_f32 v{GB+2}, v{GB+2}, v{GB+3}\nv_add_f32 v{T[0]}, v{GB}, v{GB+2}")
        a(f"v_mov_b32_dpp v{T[1]}, v{T[0]} row_ror:8 {DPPALL}\nv_cvt_pk_bf16_f32 v{T[0]}, v{T[0]}, v{T[1]}")
        a("s_mov_b64 exec, s[64:65]")
        a(f"buffer_store_dword v{T[0]}, v{aP32}, {WS}, s58 offen sc1")
        a("s_mov_b64 exec, -1")
        self.stamp(9)
        a("L_v_b5:")
        a("s_cmp_lg_u32 s54, 0\ns_cbranch_scc1 L_v_b5b")
        self.v_fetch_wq()
        self.dump_stamps()
        a("L_v_b5b:")
        a("s_barrier\ns_barrier")
        a("s_cmp_lg_u32 s54, 0\ns_cbranch_scc1 L_fin2")
        a("s_mov_b32 s54, 1\ns_branch L_vloop")
        a("L_v_next:")
        a("s_cmp_lg_u32 s54, 0\ns_cbranch_scc1 L_fin2")
        self.v_fetch_wq()
        self.dump_stamps()
        a("s_mov_b32 s54, 1\ns_sleep 48\ns_branch L_vloop")
        self.flush_ool()
        a("L_end:\ns_endpgm")
        a('.section .rodata,"a"\n.p2align 6')
        a(f".amdhsa_kernel {KNAME}")
        a(".amdhsa_next_free_vgpr 256\n.amdhsa_next_free_sgpr 102\n.amdhsa_accum_offset 256\n.amdhsa_group_segment_fixed_size 0\n.amdhsa_kernarg_size 96")
        a(".amdhsa_user_sgpr_count 2\n.amdhsa_user_sgpr_kernarg_segment_ptr 1\n.amdhsa_system_sgpr_workgroup_id_x 1\n.end_amdhsa_kernel")
        return a.render()

    def code_prefetch(self):
        a = self.a
        le = self.L("cpf")
        a(f"s_cmp_lg_u32 s3, 1\ns_cbranch_scc1 {le}\ns_cmp_lg_u32 s54, 0\ns_cbranch_scc1 {le}")
        a("s_getpc_b64 s[72:73]")
        a("L_pcref:")
        a(f"s_sub_u32 s72, s72, L_pcref-{KNAME}\ns_subb_u32 s73, s73, 0")
        a(f"v_lshlrev_b32 v{T[0]}, 5, v0\nv_add_u32 v{T[0]}, s5, v{T[0]}\nv_lshlrev_b32 v{T[0]}, 7, v{T[0]}")
        a(f"v_mov_b32 v{T[1]}, L_end-{KNAME}\nv_cmp_lt_u32 vcc, v{T[0]}, v{T[1]}\ns_and_b64 exec, vcc, exec")
        a(f"global_load_dword v{XA+5}, v{T[0]}, s[72:73] sc1")
        a("s_mov_b64 exec, -1")
        a(f"{le}:")

    def v_prologue(self):
        a = self.a
        if "dbl" in self.knobs:
            a(f"v_mul_u32_u24 v{T[0]}, 384, v2\nv_lshl_add_u32 v{T[0]}, v1, 4, v{T[0]}\ns_sub_u32 s61, s59, {6144*384}")
            for srd in ("s[12:15]", "s[16:19]"):
                for n in range(24):
                    rg, th = divmod(n, 3)
                    if th == 0: a(f"s_add_u32 s58, s61, {rg*8*384}")
                    a(f"buffer_load_dwordx4 {q4(KV+4*n)}, v{T[0]}, {srd}, s58 offen offset:{th*128} nt")
            a("s_waitcnt vmcnt(12)")
        self.k_dma()
        for n in range(24):
            rg, th = divmod(n, 3)
            if n == self.NB:
                a(f"s_lshl_b32 s60, s3, 2\nv_mov_b32 v{T[2]}, s60\nv_mov_b32 v{T[3]}, 1")
                a(f"s_waitcnt vmcnt({self.NB})\nds_write_b32 v{T[2]}, v{T[3]} offset:{L_CTRL}")
                self.stamp(11)
            if th == 0: a(f"s_add_u32 s58, s59, {rg*8*384}")
            a(f"buffer_load_dwordx4 {q4(KV+4*n)}, v{T[4]}, s[16:19], s58 offen offset:{th*128} nt")
        self.stamp(1)
        if self.knobs & {"lo1", "lo2", "lo3"}:
            if "wo" in self.knobs:
                self.wo_loads()
                a("s_waitcnt vmcnt(8)")
                self.stamp(5)
            a("s_waitcnt vmcnt(0)")
            self.stamp(6)
            a("s_branch L_fin2")
        self.consts()
        self.vwave_addrs()
        a("s_branch L_v_b2")

    def v_fetch_wq(self):
        a = self.a
        a(f"s_and_b32 s58, s3, 3\ns_min_u32 s58, s58, 2\ns_mul_i32 s58, s58, 10752\ns_add_u32 s58, s58, {L_WQ}\nv_lshlrev_b32 v{T[0]}, 4, v0\nv_add_u32 v{T[0]}, s58, v{T[0]}")
        for t in range(10):
            a(f"ds_read_b128 {q4(WA+4*t)}, v{T[0]} offset:{1024*t}")
        a(f"v_add_u32 v{T[1]}, s58, v{lane4}\nds_read_b32 v{CS0}, v{T[1]} offset:10240\nds_read_b32 v{CS1}, v{T[1]} offset:10496")
        self.read_fast()
        a(f"s_add_u32 s58, s53, {7*BS}\nbuffer_load_dword v{XA+3}, v{aX2}, {WS}, 0 offen offset:{X2O} sc1\nbuffer_load_dword v{XA+4}, v{aXS}, {WS}, s58 offen offset:{MISC} sc1")

    def zgather(self, layer, slp):
        a = self.a
        a(f"s_mul_i32 s58, s56, {BS}\ns_add_u32 s60, s58, {10*BS}\ns_add_u32 s61, s58, {20*BS}")
        self.sleep(slp)
        self.poll([f"buffer_load_dwordx4 {q4(GB+4*n)}, v{aROW}, {WS}, s{(58,60,61)[n]} offen offset:{ZO[layer]} sc1" for n in range(3)], range(GB, GB + 12),
                  spec=[self.mfma_s(ACC, ONES, GB + 4 * n, n == 0) for n in range(3)])
        self.stamp(10 if layer else 1)
        self.resid_add()

REF = "interleave_layers__sliding_block_cached__dense_activation_mish__decode.s.ref"
HEADER = open(REF).read().split("; Override")[0] if os.path.exists(REF) else ""

if __name__ == "__main__":
    prof = {"prof": 1, "lite": 3}.get(sys.argv[2], 0) if len(sys.argv) > 2 else 0
    open(sys.argv[1], "w").write(HEADER + Gen(prof, sys.argv[3:]).gen())
```

```python
import sys, os
sys.path.insert(0, "gen")
from asmlib import Asm

KNAME = "interleave_layers__sliding_block_cached__dense_activation_mish__decode_kernel"
BS = 4736
YO = [0, 128]; ZO = [256, 384]
QP1 = 512
OP = [896, 1280]
MISC = 1664
HPR = [1792, 2048]; HPC = 2304
X2O = 2560
CLR_END = 2816
QP0T = 3072
GEN_OFF = 256 * BS
FL1 = GEN_OFF + 4096; FL2 = GEN_OFF + 8192
WS_USED = GEN_OFF + 12288
PROF_OFF = 2 << 20
L_CTRL = 0
L_ML = 128
L_P = 256
L_O = 1024
L_YR = 4096
L_Q = 5120
L_K = 8192
L_WQ = L_K + 98304
LDS_BYTES = L_WQ + 3 * 10752
POLL_LIMIT = 200000
ONES = 4; SEL = 8; AB = [12, 16]; ACC = 20; GB = 36; XA = 60
aQG = 70; aP32 = 71; aROW = 72; aML = 73; aST = 74; ldsP = 75; lane4 = 76
CS0 = 77; CS1 = 78; X0 = 79; X1 = 80; B1V = 81; CSW1 = 82
T = [83, 84, 85, 86, 87, 1, 2, 3]
aX2 = 68; aXS = 69
KV = 88; WA = 184; WB = 224
WS = "s[48:51]"

def q4(r): return f"v[{r}:{r+3}]"
DPPALL = "row_mask:0xf bank_mask:0xf"
Q1 = "quad_perm:[1,0,3,2]"; Q2 = "quad_perm:[2,3,0,1]"; HM = "row_half_mirror"; RM = "row_mirror"

class Gen:
    def __init__(self, prof=0, knobs=()):
        self.knobs = set(knobs)
        self.LL = 4; self.LL2 = 4; self.W2SL = 16; self.Q4 = 0; self.G4 = 0; self.PQ = 0; self.PO = 1; self.PX = 0; self.PH = 1; self.PZ = 0; self.PGAP = 12; self.TR = 1; self.XSLP = 0; self.Q1ST = 1; self.QPW = 0; self.FLSL = 127; self.QFB = 5; self.CPF0 = 1; self.B0E = 0; self.B0N = 0; self.OSC = 0; self.AL = 1; self.ALP = 3; self.SHIFT = 0; self.CPF = 0; self.NB = 8; self.QSLEEP0 = 56; self.QSLEEP1 = 24
        self.QSL = 12; self.OSL = 8; self.YSL0 = 14; self.YSL = 15; self.HSL = 10; self.ZSL = 11; self.XSL = 26; self.FSL = 8
        for k in knobs:
            if '=' in k: setattr(self, k.split('=')[0], int(k.split('=')[1]))
        self.a = Asm(); self.prof = prof; self.uid = 0; self.ool = []
    def L(self, base):
        self.uid += 1
        return f"L_{base}_{self.uid}"
    def stamp(self, i):
        if self.prof == 3 and i not in (0, 6, 11): return
        if self.prof: self.a(f"s_memrealtime s[{76+2*i}:{77+2*i}]")
    def al(self, n=3):
        if self.AL: self.a(f".p2align {n}")
    def sleep(self, n):
        if n: self.a(f"s_sleep {n}")
    def dump_stamps(self):
        if not self.prof: return
        a = self.a
        a("s_waitcnt lgkmcnt(0)")
        a(f"v_mov_b32 v{T[0]}, 0")
        for i in range(13):
            a(f"v_writelane_b32 v{T[0]}, s{76+2*i}, {i}")
        a("s_lshl_b32 s58, s2, 3\ns_add_u32 s58, s58, s3\ns_lshl_b32 s58, s58, 1\ns_add_u32 s58, s58, s54\ns_lshl_b32 s58, s58, 6")
        a(f"s_add_u32 s58, s58, {PROF_OFF}")
        a("s_mov_b64 exec, 0xffff")
        a(f"buffer_store_dword v{T[0]}, v{lane4}, {WS}, s58 offen")
        a("s_mov_b64 exec, -1")
        for i in range(13):
            a(f"s_mov_b64 s[{76+2*i}:{77+2*i}], 0")
    def dump0(self):
        if not self.prof: return
        l = self.L("nd")
        self.a(f"s_cmp_lg_u32 s54, 0\ns_cbranch_scc1 {l}")
        self.dump_stamps()
        self.a(f"{l}:")
    def local_stores(self, lines):
        a = self.a
        ls, ld = self.L("sl"), self.L("sd")
        a(f"s_cmp_eq_u32 s55, 0\ns_cbranch_scc1 {ls}")
        for x in lines: a(x.replace("{f}", ""))
        a(f"{ld}:")
        self.ool.append([f"{ls}:", "s_nop 7"] + [x.replace("{f}", " sc1") for x in lines] + ["s_nop 1", f"s_branch {ld}"])
    def poll(self, loads, regs, entry=None, slp=0, spec=(), pipe=0):
        a = self.a
        lp, lr, ld = self.L("poll"), self.L("retry"), self.L("got")
        a("s_mov_b32 s70, 0")
        nld = sum(1 for x in loads if x.startswith("buffer_"))
        post = []
        if pipe:
            for _ in range(pipe):
                for x in loads: a(x)
                a(f"s_nop {self.PGAP}\ns_nop {self.PGAP}")
            post = list(spec); spec = ()
        a(f"{lp}:")
        for x in loads: a(x)
        if self.TR and not slp:
            a(f"s_add_u32 s70, s70, 1\ns_cmp_lt_u32 s70, {POLL_LIMIT}\ns_cbranch_scc0 {lr}")
        if entry: a(f"{entry}:")
        self.al(self.ALP)
        a(f"s_nop 0\ns_waitcnt vmcnt({nld * pipe})")
        t = T[7]
        rs = list(regs)
        chk = []
        if len(rs) == 1:
            chk.append(f"v_cmp_eq_u32 vcc, -1, v{rs[0]}")
        else:
            if len(rs) == 2:
                chk.append(f"v_max_u32 v{t}, v{rs[0]}, v{rs[1]}"); rs = []
            else:
                chk.append(f"v_max3_u32 v{t}, v{rs[0]}, v{rs[1]}, v{rs[2]}"); rs = rs[3:]
            while rs:
                if len(rs) >= 2:
                    chk.append(f"v_max3_u32 v{t}, v{t}, v{rs[0]}, v{rs[1]}"); rs = rs[2:]
                else:
                    chk.append(f"v_max_u32 v{t}, v{t}, v{rs[0]}"); rs = rs[1:]
            chk.append(f"v_cmp_eq_u32 vcc, -1, v{t}")
        spec = list(spec)
        while spec or chk:
            if spec: a(spec.pop(0))
            for _ in range(2):
                if chk: a(chk.pop(0))
        if self.TR and not slp:
            a(f"s_cbranch_vccnz {lp}")
            a(f"{ld}:")
            for x in post: a(x)
            self.ool.append([f"{lr}:", "s_waitcnt vmcnt(0)", f"s_branch {ld}"])
            return
        a(f"s_cbranch_vccnz {lr}")
        a(f"{ld}:")
        self.ool.append([f"{lr}:", f"s_sleep {slp}" if slp else "s_nop 7", f"s_add_u32 s70, s70, 1", f"s_cmp_lt_u32 s70, {POLL_LIMIT}", f"s_cbranch_scc1 {lp}", f"s_branch {ld}"])
    def mfma_s(self, D, A, B, first):
        return f"v_mfma_f32_16x16x32_bf16 {q4(D)}, {q4(A)}, {q4(B)}, {'0' if first else q4(D)}"
    def flush_ool(self):
        for blk in self.ool:
            for x in blk: self.a(x)
        self.ool = []
    def build_A(self, dst, src):
        for d in range(4):
            self.a(f"v_perm_b32 v{dst+d}, v{src}, v{src}, v{SEL+d}")
    def mfma(self, D, A, B, first):
        self.a(f"v_mfma_f32_16x16x32_bf16 {q4(D)}, {q4(A)}, {q4(B)}, {'0' if first else q4(D)}")
    def pair32(self, D, t0, t1):
        self.a(f"v_add_f32_dpp v{t0}, v{D+1}, v{D} row_ror:8 {DPPALL}")
        self.a(f"v_add_f32_dpp v{t1}, v{D+3}, v{D+2} row_ror:8 {DPPALL}")
    def l64(self, D, t):
        self.a(f"v_add_f32_dpp v{t}, v{D+1}, v{D} row_ror:8 row_mask:0xf bank_mask:0x3")
        self.a(f"v_add_f32_dpp v{t}, v{D+2}, v{D+3} row_ror:8 row_mask:0xf bank_mask:0xc")
    def gemv_bcast(self, D, pair, W, n, fill=()):
        a = self.a
        fill = list(fill)
        tb = [T[5], T[6]]
        self.al()
        a(f"v_mov_b32_dpp v{tb[0]}, v{pair} row_newbcast:0 {DPPALL}")
        for t in range(n):
            if t + 1 < n:
                a(f"v_mov_b32_dpp v{tb[(t+1)&1]}, v{pair} row_newbcast:{t+1} {DPPALL}")
            self.build_A(AB[t & 1], tb[t & 1])
            if t > 0: self.mfma(D, AB[(t-1) & 1], W + 4 * (t-1), t == 1)
            for _ in range(2):
                if fill: a(fill.pop(0))
        self.mfma(D, AB[(n-1) & 1], W + 4 * (n-1), n == 1)
        for x in fill: a(x)
    def bf16r_ops(self, dst, src):
        return [f"v_cvt_pk_bf16_f32 v{dst}, v{src}, v{src}", f"v_lshlrev_b32 v{dst}, 16, v{dst}"]
    def bf16r(self, dst, src):
        for x in self.bf16r_ops(dst, src): self.a(x)
    def ln_ops(self, s1, s2, t):
        inv = "0x3acccccd"
        return [f"v_mul_f32 v{s1}, {inv}, v{s1}", f"v_mul_f32 v{s2}, {inv}, v{s2}", f"v_fma_f32 v{s2}, -v{s1}, v{s1}, v{s2}",
                f"v_max_f32 v{s2}, 0, v{s2}", f"v_cvt_pk_bf16_f32 v{t}, v{s1}, v{s2}", f"v_lshlrev_b32 v{s1}, 16, v{t}",
                f"v_and_b32 v{s2}, 0xffff0000, v{t}", f"v_add_f32 v{s2}, 0x3727c5ac, v{s2}"] + self.bf16r_ops(s2, s2) + \
               [f"v_sqrt_f32 v{s2}, v{s2}"] + self.bf16r_ops(s2, s2) + [f"v_rcp_f32 v{s2}, v{s2}"]
    def red2_ops(self, s1, s2, steps, tmp):
        return [f"v_permlane32_swap_b32 v{s1}, v{s2}", f"v_add_f32 v{s1}, v{s1}, v{s2}", f"v_mov_b32 v{tmp}, v{s1}",
                f"v_permlane16_swap_b32 v{s1}, v{tmp}", f"v_add_f32 v{s1}, v{s1}, v{tmp}"] + \
               [f"v_add_f32_dpp v{s1}, v{s1}, v{s1} {c} {DPPALL}" for c in steps]
    def row16_ops(self, s1, s2, i1=None, i2=None):
        out = []
        for c in (Q1, Q2, HM, RM):
            a1 = i1 if (c == Q1 and i1 is not None) else s1
            a2 = i2 if (c == Q1 and i2 is not None) else s2
            out += [f"v_add_f32_dpp v{s1}, v{a1}, v{a1} {c} {DPPALL}", f"v_add_f32_dpp v{s2}, v{a2}, v{a2} {c} {DPPALL}"]
        return out
    def allred64(self, op, v, tmp):
        a = self.a
        for c in (Q1, Q2, HM, RM):
            a(f"{op}_dpp v{v}, v{v}, v{v} {c} {DPPALL}")
        a(f"v_mov_b32 v{tmp}, v{v}\nv_permlane16_swap_b32 v{v}, v{tmp}\n{op} v{v}, v{v}, v{tmp}")
        a(f"v_mov_b32 v{tmp}, v{v}\nv_permlane32_swap_b32 v{v}, v{tmp}\n{op} v{v}, v{v}, v{tmp}")
    def sel_layer(self, dst, arr, add=None):
        a = self.a
        a(f"s_mul_i32 s{dst}, s54, {arr[1]-arr[0]}")
        if arr[0]: a(f"s_add_u32 s{dst}, s{dst}, {arr[0]}")
        if add is not None: a(f"s_add_u32 s{dst}, s{dst}, s{add}")
    def lds_wait_flag(self, off, val=None, fb=0):
        a = self.a
        lp, ld = self.L("lw"), self.L("lg")
        t = T[5]; t2 = T[6]
        a(f"v_mov_b32 v{t2}, {off}\ns_mov_b32 s70, 0")
        a(f"{lp}:\nds_read_b32 v{t}, v{t2}\ns_waitcnt lgkmcnt(0)\nv_readfirstlane_b32 s58, v{t}")
        a(f"s_cmp_lg_u32 s58, 0\ns_cbranch_scc1 {ld}" if val is None else f"s_cmp_eq_u32 s58, {val}\ns_cbranch_scc1 {ld}")
        a("s_sleep 1\ns_add_u32 s70, s70, 1")
        if fb: self.q_fallback(fb)
        a(f"s_cmp_lt_u32 s70, {4*POLL_LIMIT}\ns_cbranch_scc1 {lp}")
        a(f"{ld}:")
    def q_fallback(self, thresh):
        a = self.a
        QD = XA + 6
        le = self.L("qfb")
        a(f"s_cmp_lt_u32 s70, {thresh}\ns_cbranch_scc1 {le}\ns_cmp_lg_u32 s71, 0\ns_cbranch_scc1 {le}\ns_cmp_eq_u32 s3, 3\ns_cbranch_scc1 {le}")
        a("s_mov_b32 s71, 1\ns_mov_b64 exec, s[64:65]")
        a(f"buffer_store_dwordx2 v[{QD}:{QD+1}], v{X0}, {WS}, s63 offen offset:{QP0T} sc1")
        a(f"s_mov_b64 exec, -1\ns_waitcnt vmcnt(0)\n{le}:")
    def read_fast(self):
        self.a(f"v_mov_b32 v{T[2]}, {L_CTRL+4}\nds_read_b32 v{T[2]}, v{T[2]}\ns_waitcnt lgkmcnt(0)\nv_readfirstlane_b32 s55, v{T[2]}\ns_lshr_b32 s55, s55, 1")
    def make_tag(self):
        self.a("s_waitcnt lgkmcnt(0)\ns_mul_i32 s74, s74, 1664525\ns_add_u32 s74, s74, 1013904223")
    def resid_add(self):
        a = self.a
        self.pair32(ACC, T[2], T[3])
        a(f"v_cvt_pk_bf16_f32 v{T[4]}, v{T[2]}, v{T[3]}")
        a(f"v_lshlrev_b32 v{T[2]}, 16, v{T[4]}\nv_and_b32 v{T[3]}, 0xffff0000, v{T[4]}")
        a(f"v_add_f32 v{T[2]}, v{T[2]}, v{X0}\nv_add_f32 v{T[3]}, v{T[3]}, v{X1}")
        a(f"v_cvt_pk_bf16_f32 v{T[4]}, v{T[2]}, v{T[3]}")
    def gather4(self, src, Q):
        a = self.a
        a(f"v_mov_b32 v{Q}, v{src}\nv_mov_b32 v{Q+1}, v{src}")
        a(f"v_permlane16_swap_b32 v{Q}, v{Q+1}")
        a(f"v_mov_b32 v{Q+2}, v{Q}\nv_mov_b32 v{Q+3}, v{Q+1}")
        a(f"v_permlane32_swap_b32 v{Q}, v{Q+2}\nv_permlane32_swap_b32 v{Q+1}, v{Q+3}")
    def unpackX_ops(self, src):
        return [f"v_lshlrev_b32 v{X0}, 16, v{src}", f"v_and_b32 v{X1}, 0xffff0000, v{src}"]
    def xstats_ops(self, s1, s2, tmp):
        return [f"v_add_f32 v{s1}, v{X0}, v{X1}", f"v_mul_f32 v{s2}, v{X0}, v{X0}", f"v_fmac_f32 v{s2}, v{X1}, v{X1}"] + self.red2_ops(s1, s2, (Q1, Q2, HM), tmp)
    def rows24_loads(self, off_arr):
        a = self.a
        self.sel_layer(58, off_arr)
        a(f"s_mul_i32 s60, s56, {BS}\ns_add_u32 s58, s58, s60\ns_add_u32 s60, s58, {10*BS}\ns_add_u32 s61, s58, {20*BS}")
        return [f"buffer_load_dwordx4 {q4(GB+4*n)}, v{aROW}, {WS}, s{(58,60,61)[n]} offen sc1" for n in range(3)]
    def consts(self):
        a = self.a
        t0, t1, t2 = T[0], T[1], T[2]
        a(f"v_and_b32 v{t0}, 1, v0\nv_mul_u32_u24 v{t0}, 0x202, v{t0}\nv_add_u32 v{t0}, 0x100, v{t0}")
        a(f"v_bfe_u32 v{t1}, v0, 1, 1\nv_lshlrev_b32 v{t1}, 4, v{t1}\nv_lshlrev_b32 v{t0}, v{t1}, v{t0}")
        a(f"v_mov_b32 v{t2}, 0x0c0c0000\nv_lshrrev_b32 v{t2}, v{t1}, v{t2}\nv_or_b32 v{t0}, v{t0}, v{t2}")
        a(f"v_bfe_u32 v{t1}, v0, 2, 2\nv_mov_b32 v{t2}, 0x0c0c0c0c")
        for d in range(4):
            a(f"v_cmp_eq_u32 vcc, {d}, v{t1}\nv_cndmask_b32 v{SEL+d}, v{t2}, v{t0}, vcc")
        a(f"v_mov_b32 v{t0}, 0x3f803f80")
        self.build_A(ONES, t0)
    def kwave_addrs(self):
        a = self.a
        t0, t1, t2 = T[0], T[1], T[2]
        a(f"v_lshrrev_b32 v{t0}, 3, v0\nv_and_b32 v{t1}, 7, v0\ns_mov_b32 s58, {32*BS}\nv_mul_lo_u32 v{aROW}, s58, v{t0}\nv_lshl_add_u32 v{aROW}, v{t1}, 4, v{aROW}")
        a(f"v_mul_u32_u24 v{aX2}, {BS}, v{t1}\nv_lshrrev_b32 v{t1}, 4, v0\nv_lshl_add_u32 v{aX2}, v{t1}, 6, v{aX2}")
        a(f"s_lshl_b32 s58, s56, 2\ns_add_u32 s58, s58, s53\nv_add_u32 v{aX2}, s58, v{aX2}")
        a(f"v_bfe_u32 v{t0}, v0, 3, 1\nv_lshl_add_u32 v{t0}, v{t0}, 2, v{t1}\nv_mul_u32_u24 v{aQG}, {BS}, v{t0}")
        a(f"v_and_b32 v{t0}, 7, v0\nv_lshl_add_u32 v{aQG}, v{t0}, 4, v{aQG}")
        a(f"s_mul_i32 s58, s6, {8*BS}\ns_add_u32 s58, s58, s53\nv_add_u32 v{aQG}, s58, v{aQG}")
        a(f"v_and_b32 v{t0}, 3, v0\nv_lshlrev_b32 v{t0}, 4, v{t0}\nv_lshl_add_u32 v{t0}, v{t1}, 2, v{t0}\nv_bfe_u32 v{t2}, v0, 2, 2\nv_add_u32 v{t0}, v{t0}, v{t2}")
        a(f"v_bfe_u32 v{t2}, v{t0}, 1, 2\nv_lshlrev_b32 v{ldsP}, 5, v{t2}\nv_lshrrev_b32 v{t2}, 3, v{t0}\nv_lshl_add_u32 v{ldsP}, v{t2}, 2, v{ldsP}")
        a(f"v_and_b32 v{t2}, 1, v{t0}\nv_lshl_add_u32 v{ldsP}, v{t2}, 1, v{ldsP}")
        a(f"s_lshl_b32 s58, s3, 7\ns_add_u32 s58, s58, {L_P}\nv_add_u32 v{ldsP}, s58, v{ldsP}")
        a(f"v_and_b32 v{t0}, 15, v0\nv_mul_u32_u24 v{aML}, {BS}, v{t1}\nv_lshl_add_u32 v{aML}, v{t0}, 4, v{aML}")
        a(f"v_lshlrev_b32 v{aST}, 4, v{t0}\nv_lshl_add_u32 v{aST}, v{t1}, 2, v{aST}\nv_lshlrev_b32 v{aXS}, 3, v{t0}")
    def vwave_addrs(self):
        a = self.a
        a("v_and_b32 v1, 7, v0\nv_lshrrev_b32 v2, 3, v0\nv_lshrrev_b32 v3, 4, v0")
        a("s_min_u32 s61, s57, 2\ns_lshl_b32 s58, s61, 2\ns_and_b32 s60, s3, 3\ns_add_u32 s58, s58, s60\ns_mul_i32 s60, s58, 43\ns_lshr_b32 s60, s60, 7")
        a("s_mul_i32 s61, s60, 3\ns_sub_u32 s58, s58, s61")
        a(f"s_mul_i32 s60, s60, {8*BS}\ns_add_u32 s60, s60, s53\ns_lshl_b32 s58, s58, 7\ns_add_u32 s58, s58, s60")
        a(f"v_mul_u32_u24 v{aQG}, {BS}, v2\nv_lshl_add_u32 v{aQG}, v1, 4, v{aQG}\nv_add_u32 v{aQG}, s58, v{aQG}")
        a(f"v_lshl_add_u32 v{aML}, v3, 1, v0\nv_and_b32 v{aML}, 7, v{aML}\nv_lshlrev_b32 v{aML}, 3, v{aML}\nv_add_u32 v{aML}, s60, v{aML}")
        a(f"s_and_b32 s58, s3, 3\ns_lshl_b32 s58, s58, 7\ns_add_u32 s58, s58, {L_P}\nv_lshlrev_b32 v{ldsP}, 5, v3\nv_add_u32 v{ldsP}, s58, v{ldsP}")
        a(f"s_mul_i32 s58, s6, {8*BS}\ns_add_u32 s58, s58, s53\ns_and_b32 s60, s3, 3\ns_lshl_b32 s60, s60, 7\ns_add_u32 s58, s58, s60\ns_lshl_b32 s60, s7, 4\ns_add_u32 s58, s58, s60")
        a(f"v_mul_u32_u24 v{aST}, {BS}, v1\nv_lshl_add_u32 v{aST}, v3, 2, v{aST}\nv_add_u32 v{aST}, s58, v{aST}")
        a(f"s_mul_i32 s58, s7, {BS}\ns_add_u32 s58, s58, s53\nv_add_u32 v{aX2}, s58, v{lane4}")
        a(f"v_and_b32 v{aXS}, 15, v0\nv_lshlrev_b32 v{aXS}, 3, v{aXS}\nv_mov_b32 v{aROW}, 0")
    def k_dma(self):
        a = self.a
        t = T[0]; t2 = T[1]
        a(f"v_lshrrev_b32 v{t}, 3, v0\nv_and_b32 v{t2}, 6, v{t}\nv_xor_b32 v{t2}, v{t2}, v0\nv_and_b32 v{t2}, 7, v{t2}")
        a(f"v_mul_u32_u24 v{t}, 384, v{t}\nv_lshl_add_u32 v{t}, v{t2}, 4, v{t}")
        a(f"s_and_b32 s60, s3, 3\ns_mul_i32 s60, s60, 24576\ns_add_u32 s60, s60, {L_K}\ns_mov_b32 s58, s59\ns_add_u32 s61, s59, {64*384}")
        a(f"v_mul_u32_u24 v{T[4]}, 384, v2\nv_lshl_add_u32 v{T[4]}, v1, 4, v{T[4]}")
        a("s_waitcnt lgkmcnt(0)\ns_barrier")
        a("L_kdma:")
        for th in range(3):
            a(f"s_add_u32 m0, s60, {th*1024 - th*128}")
            a(f"buffer_load_dwordx4 v{t}, s[12:15], s58 offen offset:{th*128} nt lds")
        a(f"s_add_u32 s60, s60, 3072\ns_add_u32 s58, s58, 3072\ns_cmp_lt_u32 s58, s61\ns_cbranch_scc1 L_kdma")
    def k_to_regs(self):
        a = self.a
        t = T[0]; t2 = T[1]; t3 = T[2]
        a(f"v_and_b32 v{t}, 7, v0\nv_lshrrev_b32 v{t2}, 4, v0\nv_and_b32 v{t3}, 6, v0\nv_xor_b32 v{t2}, v{t2}, v{t3}")
        a(f"v_lshlrev_b32 v{t}, 7, v{t}\nv_bfe_u32 v{t3}, v0, 3, 1\nv_mul_u32_u24 v{t3}, 3072, v{t3}\nv_add_u32 v{t}, v{t}, v{t3}")
        a(f"s_mul_i32 s60, s3, 24576\nv_add_u32 v{t}, s60, v{t}")
        a(f"v_lshl_add_u32 v{t3}, v{t2}, 4, v{t}")
        a(f"v_xor_b32 v{t2}, 4, v{t2}\nv_lshl_add_u32 v{t2}, v{t2}, 4, v{t}")
        for tile in range(4):
            for u in range(6):
                off = L_K + (2 * tile * 3 + (u >> 1)) * 1024
                a(f"ds_read_b128 {q4(KV + (tile*6+u)*4)}, v{t2 if (u & 1) else t3} offset:{off}")
            if tile == 1: a("s_waitcnt lgkmcnt(0)")
        a("s_waitcnt lgkmcnt(0)")
    def wo_loads(self):
        a = self.a
        t1 = XA
        a(f"v_lshrrev_b32 v{t1}, 3, v0\nv_mul_u32_u24 v{t1}, 1280, v{t1}\nv_and_b32 v{XA+1}, 7, v0\nv_lshl_add_u32 v{t1}, v{XA+1}, 4, v{t1}")
        a("s_min_u32 s62, s57, 2\ns_mul_i32 s58, s4, 768\ns_lshl_b32 s60, s62, 8\ns_add_u32 s58, s58, s60\ns_and_b32 s60, s3, 3\ns_lshl_b32 s60, s60, 6\ns_add_u32 s58, s58, s60")
        a("s_mul_i32 s58, s58, 1280\ns_lshl_b32 s60, s56, 7\ns_add_u32 s58, s58, s60")
        a("s_cmp_ge_u32 s5, 30\ns_cselect_b32 s58, 0x7f000000, s58")
        for t in range(8):
            a(f"buffer_load_dwordx4 {q4(WB+4*t)}, v{t1}, s[24:27], s58 offen nt")
            if t < 7: a(f"s_add_u32 s58, s58, {8*1280}")
    def w1_loads(self):
        a = self.a
        t0, t1 = T[2], T[3]
        a(f"v_lshrrev_b32 v{t0}, 3, v0\nv_and_b32 v{t1}, 7, v0\nv_mul_u32_u24 v{t0}, 3072, v{t0}\nv_lshl_add_u32 v{t0}, v{t1}, 4, v{t0}")
        a(f"s_mul_i32 s58, s56, {64*3072}\ns_mul_i32 s60, s4, 384\ns_add_u32 s58, s58, s60\ns_lshl_b32 s60, s57, 7\ns_add_u32 s58, s58, s60")
        for t in range(8):
            a(f"buffer_load_dwordx4 {q4(WB+4*t)}, v{t0}, s[28:31], s58 offen nt")
            if t < 7: a(f"s_add_u32 s58, s58, {8*3072}")
    def w2_loads(self):
        a = self.a
        t0, t1 = T[2], T[3]
        a(f"v_lshrrev_b32 v{t0}, 3, v0\nv_and_b32 v{t1}, 7, v0\nv_mul_u32_u24 v{t0}, 1280, v{t0}\nv_lshl_add_u32 v{t0}, v{t1}, 4, v{t0}")
        a("s_mul_i32 s58, s4, 192\ns_lshl_b32 s60, s57, 6\ns_add_u32 s61, s58, s60\ns_mul_i32 s58, s61, 1280\ns_lshl_b32 s60, s56, 7\ns_add_u32 s58, s58, s60")
        for t in range(8):
            a(f"buffer_load_dwordx4 {q4(WB+4*t)}, v{t0}, s[36:39], s58 offen nt")
            if t < 7: a(f"s_add_u32 s58, s58, {8*1280}")
        a(f"v_bfe_u32 v{t0}, v0, 3, 1\nv_lshl_add_u32 v{t0}, v{t0}, 1, v{aP32}\ns_lshl_b32 s61, s61, 1")
        a(f"buffer_load_ushort v{B1V}, v{t0}, s[32:35], s61 offen")
    def clears(self, all_sc1):
        a = self.a
        C = XA + 4
        for i in range(4): a(f"v_mov_b32 v{C+i}, -1")
        a(f"v_lshlrev_b32 v{T[3]}, 4, v0")
        f = " sc1" if all_sc1 else ""
        a("s_mov_b32 exec_hi, 0")
        a(f"buffer_store_dwordx4 {q4(C)}, v{T[3]}, {WS}, s52 offen sc1")
        a("s_mov_b32 exec_lo, 0xffff")
        a(f"buffer_store_dwordx4 {q4(C)}, v{T[3]}, {WS}, s52 offen offset:2560{f}")
        a("s_mov_b64 exec, -1")
        for o in (512, 1536):
            a(f"buffer_store_dwordx4 {q4(C)}, v{T[3]}, {WS}, s52 offen offset:{o}{f}")
    def flag_store(self, base):
        a = self.a
        C = XA + 4
        if base == FL1:
            a("s_xor_b32 s58, s74, 0x5bd1e995\ns_andn2_b32 s58, s58, 15\ns_or_b32 s75, s75, s58")
        a(f"s_lshl_b32 s58, s4, 5\ns_add_u32 s58, s58, s5\ns_lshl_b32 s58, s58, 3\ns_add_u32 s58, s58, {base}")
        a(f"v_mov_b32 v{C}, s74\nv_mov_b32 v{C+1}, s75")
        a("s_mov_b64 exec, 1")
        a(f"buffer_store_dwordx2 v[{C}:{C+1}], v{aP32}, {WS}, s58 offen sc1")
        a("s_mov_b64 exec, -1")
    def flags_issue(self, base):
        a = self.a
        F = AB[0]
        a(f"v_lshlrev_b32 v{T[4]}, 5, v0\ns_mov_b32 s60, {base}")
        a(f"buffer_load_dwordx4 {q4(F)}, v{T[4]}, {WS}, s60 offen sc1\nbuffer_load_dwordx4 {q4(F+4)}, v{T[4]}, {WS}, s60 offen offset:16 sc1")
    def flags_wait(self, base, group_only):
        a = self.a
        F = AB[0]
        t, t2 = T[2], T[3]
        lp, lc, ld = self.L("fp"), self.L("fc"), self.L("fg")
        a("s_mov_b32 s70, 0\ns_or_b32 s61, s75, 15")
        if base == FL1: a(f"s_branch {lc}")
        a(f"{lp}:")
        self.flags_issue(base)
        a(f"{lc}:")
        a("s_waitcnt vmcnt(0)")
        a(f"v_xor_b32 v{t}, s74, v{F}")
        for i in range(1, 4):
            a(f"v_xor_b32 v{t2}, s74, v{F+2*i}\nv_or_b32 v{t}, v{t}, v{t2}")
        for i in range(4):
            a(f"v_or_b32 v{t2}, 15, v{F+2*i+1}\nv_xor_b32 v{t2}, s61, v{t2}\nv_or_b32 v{t}, v{t}, v{t2}")
        a(f"v_cmp_ne_u32 vcc, 0, v{t}")
        if group_only: a(f"s_and_b64 vcc, vcc, s[72:73]\ns_cbranch_scc0 {ld}")
        else: a(f"s_cbranch_vccz {ld}")
        a(f"s_sleep 16\ns_add_u32 s70, s70, 1\ns_cmp_lt_u32 s70, {POLL_LIMIT}\ns_cbranch_scc1 {lp}\n{ld}:")
    def flags_check(self):
        a = self.a
        F = AB[0]; t, t2 = T[2], T[3]
        lf = self.L("fast")
        a("s_lshl_b32 s58, s4, 3\ns_mov_b64 s[72:73], 0xff\ns_lshl_b64 s[72:73], s[72:73], s58")
        self.flags_wait(FL1, False)
        a(f"v_xor_b32 v{t}, s75, v{F+1}")
        for i in range(1, 4):
            a(f"v_xor_b32 v{t2}, s75, v{F+2*i+1}\nv_or_b32 v{t}, v{t}, v{t2}")
        a(f"v_cmp_ne_u32 vcc, 0, v{t}\ns_mov_b32 s55, 1\ns_and_b64 vcc, vcc, s[72:73]")
        if "forceslow" not in self.knobs: a(f"s_cbranch_scc0 {lf}")
        a("s_mov_b32 s55, 0")
        self.clears(True)
        a("s_waitcnt vmcnt(0)")
        self.flag_store(FL2)
        self.flags_wait(FL2, True)
        a(f"{lf}:")
        a(f"s_lshl_b32 s58, s55, 1\ns_or_b32 s58, s58, 1\nv_mov_b32 v{t}, s58\nv_mov_b32 v{T[3]}, {L_CTRL}\nds_write_b32 v{T[3]}, v{t} offset:4")
    def qproj(self, pair, s1, s2, pre_ops):
        a = self.a
        self.gemv_bcast(ACC, pair, WA, 10, fill=list(pre_ops) + self.ln_ops(s1, s2, T[2]))
        self.pair32(ACC, T[2], T[3])
        a(f"v_fma_f32 v{T[2]}, -v{s1}, v{CS0}, v{T[2]}\nv_fma_f32 v{T[3]}, -v{s1}, v{CS1}, v{T[3]}")
        a(f"v_mul_f32 v{T[2]}, v{T[2]}, v{s2}\nv_mul_f32 v{T[3]}, v{T[3]}, v{s2}")
        a(f"v_cvt_pk_bf16_f32 v{T[4]}, v{T[2]}, v{T[3]}")

    def gen(self):
        a = self.a
        a(f"; @launch grid=(256,1,1) block=(512,1,1) lds={LDS_BYTES}")
        a('.amdgcn_target "amdgcn-amd-amdhsa--gfx950"\n.text')
        a(f".globl {KNAME}\n.p2align 8\n.type {KNAME},@function")
        a(f"{KNAME}:")
        a("s_cmp_ge_u32 s2, 256\ns_cbranch_scc1 L_end")
        for _ in range(self.SHIFT): a("s_nop 0")
        if self.prof:
            for i in range(13): a(f"s_mov_b64 s[{76+2*i}:{77+2*i}], 0")
        self.stamp(0)
        ptr = {12: 8, 20: 24, 8: 0, 48: 88, 16: 16, 24: 32, 28: 48, 32: 56, 36: 64, 40: 72}
        size = {8: 1280, 12: 100663296, 16: 100663296, 20: 7864320, 24: 7864320, 28: 1966080, 32: 3072, 36: 1966080, 40: 1280,
                48: (PROF_OFF + 256 * 8 * 2 * 64) if self.prof else WS_USED}
        for s, off in ptr.items():
            a(f"s_load_dwordx2 s[{s}:{s+1}], s[0:1], {off}")
        a("v_lshrrev_b32 v1, 6, v0\nv_and_b32 v0, 63, v0\nv_readfirstlane_b32 s3, v1")
        if self.CPF0:
            a("s_getpc_b64 s[72:73]")
            a("L_pcref0:")
            a(f"s_sub_u32 s72, s72, L_pcref0-{KNAME}\ns_subb_u32 s73, s73, 0")
            a("s_and_b32 s58, s2, 0xf8\ns_add_u32 s58, s58, s3\ns_lshl_b32 s58, s58, 7")
            a(f"s_cmp_ge_u32 s58, L_end-{KNAME}\ns_cbranch_scc1 L_nocpf0")
            a(f"v_mov_b32 v2, s58\ns_mov_b64 exec, 1\nglobal_load_dword v{XA+5}, v2, s[72:73]\ns_mov_b64 exec, -1")
            a("L_nocpf0:")
        for s in ptr:
            a(f"s_mov_b32 s{s+2}, {size[s]}\ns_mov_b32 s{s+3}, 0x20000")
        a("s_and_b32 s4, s2, 7\ns_lshr_b32 s5, s2, 3\ns_lshr_b32 s6, s5, 3\ns_and_b32 s7, s5, 7")
        a(f"s_mul_i32 s53, s4, {32*BS}\ns_mul_i32 s52, s5, {BS}\ns_add_u32 s52, s52, s53")
        a("s_mov_b32 s54, 0\ns_mov_b32 s55, 0")
        a("s_getreg_b32 s75, hwreg(HW_REG_XCC_ID)\ns_and_b32 s75, s75, 15")
        a("s_cmp_ge_u32 s5, 10\ns_cselect_b32 s57, 1, 0\ns_cmp_ge_u32 s5, 20\ns_cselect_b32 s57, 2, s57\ns_cmp_ge_u32 s5, 30\ns_cselect_b32 s57, 3, s57")
        a("s_mul_i32 s58, s57, 10\ns_sub_u32 s56, s5, s58")
        a("s_mov_b32 s64, 0x00ff00ff\ns_mov_b32 s65, 0x00ff00ff")
        a("s_mov_b32 s66, 0xaaaaaaaa\ns_mov_b32 s67, 0xaaaaaaaa\ns_mov_b32 s68, 0xcccccccc\ns_mov_b32 s69, 0xcccccccc")
        a("s_mov_b32 s44, 0x03ff03ff\ns_mov_b32 s45, 0x03ff03ff\ns_mov_b32 s46, 1\ns_mov_b32 s47, 1")
        a("s_lshl_b32 s58, s4, 2\ns_add_u32 s58, s58, s6\ns_mul_i32 s59, s58, 3145728")
        a("s_lshl_b32 s58, s7, 8\ns_and_b32 s60, s3, 3\ns_lshl_b32 s60, s60, 6\ns_add_u32 s58, s58, s60\ns_add_u32 s58, s58, 6144\ns_mul_i32 s58, s58, 384\ns_add_u32 s59, s59, s58")
        a("v_and_b32 v1, 7, v0\nv_lshrrev_b32 v2, 3, v0\nv_lshrrev_b32 v3, 4, v0")
        a(f"v_lshlrev_b32 v{lane4}, 2, v0")
        a(f"v_lshlrev_b32 v{aP32}, 4, v1\nv_lshl_add_u32 v{aP32}, v3, 2, v{aP32}")
        a("s_cmp_lt_u32 s3, 4\ns_cbranch_scc1 L_pro_k")
        self.v_prologue()
        a("L_pro_k:")
        a(f"s_setprio 3\ns_mov_b32 s71, {GEN_OFF}")
        a("s_cmp_eq_u32 s3, 3\ns_cbranch_scc1 L_pro_c")
        XS = GB
        a(f"v_lshlrev_b32 v{T[0]}, 4, v0")
        a(f"v_and_b32 v{T[1]}, 15, v0\nv_lshlrev_b32 v{T[1]}, 7, v{T[1]}\nv_lshl_add_u32 v{T[1]}, v3, 2, v{T[1]}\ns_lshl_b32 s61, s7, 4")
        a(f"v_mul_u32_u24 v{T[2]}, 12288, v2\nv_lshl_add_u32 v{T[2]}, v1, 4, v{T[2]}")
        a(f"s_lshl_b32 s58, s4, 2\ns_add_u32 s58, s58, s6\ns_mul_i32 s58, s58, 384\ns_lshl_b32 s60, s3, 7\ns_add_u32 s58, s58, s60\ns_mul_i32 s60, s7, {8*12288}\ns_add_u32 s58, s58, s60")
        a("s_waitcnt lgkmcnt(0)")
        a(f"buffer_load_dwordx4 {q4(XS)}, v{T[0]}, s[8:11], 0 offen")
        a(f"buffer_load_dword v{XS+4}, v{lane4}, s[8:11], 0 offen offset:1024")
        a(f"buffer_load_dword v{XA}, v{T[1]}, s[8:11], s61 offen")
        for t in range(10 if "nowq" not in self.knobs else 0):
            a(f"buffer_load_dwordx4 {q4(WA+4*t)}, v{T[2]}, s[20:23], s58 offen nt")
            if t < 9: a(f"s_add_u32 s58, s58, {64*12288}")
        if self.QPW:
            a(f"v_mov_b32 v{XA+6}, -1\ns_lshl_b32 s60, s3, 8\ns_add_u32 s63, s52, s60")
            a(f"buffer_store_dword v{XA+6}, v{lane4}, {WS}, s63 offen offset:{QP0T+768}")
        a("s_barrier")
        a(f"s_buffer_load_dword s74, {WS}, s71")
        self.consts()
        self.kwave_addrs()
        self.make_tag()
        a(f"s_waitcnt vmcnt({11 + self.QPW})")
        s1, s2 = T[0], T[1]
        a(f"v_mov_b32 v{s1}, 0\nv_mov_b32 v{s2}, 0")
        for i in range(5):
            a(f"v_lshlrev_b32 v{T[2]}, 16, v{XS+i}\nv_and_b32 v{T[3]}, 0xffff0000, v{XS+i}")
            a(f"v_add_f32 v{s1}, v{s1}, v{T[2]}\nv_fmac_f32 v{s2}, v{T[2]}, v{T[2]}\nv_add_f32 v{s1}, v{s1}, v{T[3]}\nv_fmac_f32 v{s2}, v{T[3]}, v{T[3]}")
        for x in self.red2_ops(s1, s2, (Q1, Q2, HM, RM), T[2]): a(x)
        a(f"v_readlane_b32 s58, v{s1}, 0\nv_readlane_b32 s60, v{s1}, 32")
        a(f"v_mov_b32 v{s1}, s58\nv_mov_b32 v{s2}, s60")
        a(f"s_waitcnt vmcnt({self.QPW})")
        self.stamp(1)
        if "lo1" in self.knobs: a("s_branch L_fin2")
        for t in range(10):
            self.mfma(ACC + 4, ONES, WA + 4 * t, t == 0)
        self.pair32(ACC + 4, CS0, CS1)
        self.qproj(XA, s1, s2, [])
        QD = XA + 6
        a(f"v_mov_b32 v{QD}, v{T[4]}\nv_mov_b32 v{QD+1}, s74")
        a(f"v_and_b32 v{X0}, 7, v0\nv_lshlrev_b32 v{X0}, 3, v{X0}\nv_lshrrev_b32 v{T[2]}, 4, v0\nv_lshl_add_u32 v{X0}, v{T[2]}, 6, v{X0}")
        a("s_lshl_b32 s60, s3, 8\ns_add_u32 s63, s52, s60")
        a("s_mov_b64 exec, s[64:65]")
        a(f"buffer_store_dwordx2 v[{QD}:{QD+1}], v{X0}, {WS}, s63 offen offset:{QP0T+768}")
        a("s_mov_b64 exec, -1\ns_mov_b32 s71, 0")
        self.stamp(3)
        if "lo2" in self.knobs: a("s_branch L_fin2")
        a(f"s_mul_i32 s58, s3, 10752\ns_add_u32 s58, s58, {L_WQ}\nv_lshlrev_b32 v{T[0]}, 4, v0\nv_add_u32 v{T[0]}, s58, v{T[0]}")
        for t in range(10):
            a(f"ds_write_b128 v{T[0]}, {q4(WA+4*t)} offset:{1024*t}")
        a(f"v_add_u32 v{T[1]}, s58, v{lane4}\nds_write_b32 v{T[1]}, v{CS0} offset:10240\nds_write_b32 v{T[1]}, v{CS1} offset:10496")
        QA = [XA + 1, XA + 2]
        a(f"s_mul_i32 s62, s6, {8*BS}\ns_add_u32 s62, s62, s53\ns_lshl_b32 s58, s3, 7")
        for n in range(2):
            a(f"v_add_u32 v{T[0]}, s58, v0")
            if n: a(f"v_add_u32 v{T[0]}, 64, v{T[0]}")
            a(f"v_mul_u32_u24 v{T[1]}, 0x556, v{T[0]}\nv_lshrrev_b32 v{T[1]}, 16, v{T[1]}")
            a(f"v_mul_u32_u24 v{T[2]}, {BS - 768}, v{T[1]}\nv_lshl_add_u32 v{QA[n]}, v{T[0]}, 4, v{T[2]}")
        SETS = [[WB, WB + 4], [WB + 8, WB + 12]]
        def qissue(k):
            if k == 0: a("s_add_u32 s58, s62, 768")
            else: a(f"s_cmp_ge_u32 s70, {self.QFB}\ns_cselect_b32 s58, 0, 768\ns_add_u32 s58, s58, s62")
            for n in range(2):
                a(f"buffer_load_dwordx4 {q4(SETS[k][n])}, v{QA[n]}, {WS}, s58 offen offset:{QP0T} sc1")
        lp, ld = self.L("poll"), self.L("got")
        a(f"s_mov_b32 s70, 0\ns_sleep {self.QSLEEP0}")
        gots = [self.L("qg") for _ in range(2)]
        if self.Q1ST:
            qissue(0)
            a("s_waitcnt vmcnt(0)")
            a(f"v_mov_b32 v{T[0]}, s74\nv_mov_b32 v{T[1]}, s74")
            for r in SETS[0]:
                a(f"v_min3_u32 v{T[0]}, v{T[0]}, v{r+1}, v{r+3}\nv_max3_u32 v{T[1]}, v{T[1]}, v{r+1}, v{r+3}")
            a(f"v_cmp_ne_u32 vcc, v{T[0]}, v{T[1]}\ns_cbranch_vccz {gots[0]}")
        qissue(0); a(f"s_sleep {self.QSLEEP1}"); qissue(1)
        a(f"{lp}:")
        for k in range(2):
            a("s_waitcnt vmcnt(2)")
            a(f"v_mov_b32 v{T[0]}, s74\nv_mov_b32 v{T[1]}, s74")
            for r in SETS[k]:
                a(f"v_min3_u32 v{T[0]}, v{T[0]}, v{r+1}, v{r+3}\nv_max3_u32 v{T[1]}, v{T[1]}, v{r+1}, v{r+3}")
            a(f"v_cmp_ne_u32 vcc, v{T[0]}, v{T[1]}\ns_cbranch_vccz {gots[k]}")
            if k == 1:
                a("s_add_u32 s70, s70, 1")
                self.q_fallback(self.QFB)
            qissue(k)
        a(f"s_cmp_lt_u32 s70, {POLL_LIMIT}\ns_cbranch_scc1 {lp}")
        for k in range(2):
            a(f"{gots[k]}:")
            a(f"v_lshrrev_b32 v{T[0]}, 4, v0\nv_lshlrev_b32 v{T[0]}, 7, v{T[0]}\nv_and_b32 v{T[1]}, 3, v0\nv_lshl_add_u32 v{T[0]}, v{T[1]}, 5, v{T[0]}")
            a(f"v_bfe_u32 v{T[1]}, v0, 2, 2\nv_lshl_add_u32 v{T[0]}, v{T[1]}, 2, v{T[0]}\ns_lshl_b32 s58, s3, 10\ns_add_u32 s58, s58, {L_Q}\nv_add_u32 v{T[0]}, s58, v{T[0]}")
            for n in range(2):
                a(f"ds_write2_b32 v{T[0]}, v{SETS[k][n]}, v{SETS[k][n]+2} offset0:{128*n} offset1:{128*n+4}")
            if k < 1: a(f"s_branch {ld}")
        a(f"{ld}:")
        a(f"v_mov_b32 v{T[2]}, 1\nv_mov_b32 v{T[3]}, {L_CTRL+32}\ns_waitcnt lgkmcnt(0)\nds_add_u32 v{T[3]}, v{T[2]}")
        self.stamp(2)
        a("s_branch L_bk")
        a("L_pro_c:")
        a(f"v_mov_b32 v{T[0]}, 0")
        a("s_mov_b64 exec, 0xffff")
        a(f"ds_write_b32 v{lane4}, v{T[0]} offset:{L_CTRL}")
        a("s_mov_b64 exec, -1\ns_waitcnt lgkmcnt(0)")
        if self.B0E: a("s_barrier")
        if "noclr" not in self.knobs: self.clears(False)
        a(f"s_lshl_b32 s58, s56, 7\nbuffer_load_dword v{GB+4}, v{aP32}, s[8:11], s58 offen")
        if not self.B0E: a("s_barrier")
        a(f"s_buffer_load_dword s74, {WS}, s71")
        self.consts()
        self.kwave_addrs()
        self.make_tag()
        a("s_waitcnt vmcnt(0)")
        if "noclr" not in self.knobs: self.flag_store(FL1)
        self.stamp(1)
        for x in self.unpackX_ops(GB + 4): a(x)
        if not (self.knobs & {"lo1", "lo2"}) and "noclr" not in self.knobs:
            a(f"s_sleep {self.FLSL}")
            self.flags_issue(FL1)
            self.flags_check()
            self.stamp(2)
        a("L_bk:")
        if self.knobs & {"lo1", "lo2", "lo3"}: a("s_branch L_fin2")
        a(f"s_lshl_b32 s60, s3, 2\ns_add_u32 s60, s60, {L_CTRL+16}")
        self.lds_wait_flag("s60")
        self.stamp(10)
        self.k_to_regs()
        self.lds_wait_flag(L_CTRL + 32, 192, fb=64)
        self.stamp(11)
        a(f"v_and_b32 v{T[3]}, 7, v0\nv_mul_u32_u24 v{T[3]}, 384, v{T[3]}\nv_lshrrev_b32 v{T[4]}, 4, v0\nv_lshl_add_u32 v{T[3]}, v{T[4]}, 4, v{T[3]}")
        a(f"v_and_b32 v{T[4]}, 8, v0\nv_lshl_add_u32 v{T[3]}, v{T[4]}, 3, v{T[3]}")
        for u in range(3):
            a(f"ds_read_b128 {q4(GB+4*u)}, v{T[3]} offset:{L_Q + 128*u}")
        a("s_waitcnt lgkmcnt(0)")
        a("s_branch L_qk")

        a("L_kloop:")
        a("s_cmp_lg_u32 s3, 3\ns_cbranch_scc1 L_k_b1")
        a("s_cmp_ge_u32 s5, 10\ns_cbranch_scc1 L_k_pt")
        self.zgather(0, self.ZSL)
        s1, s2 = T[0], T[1]
        a("s_mov_b64 exec, s[64:65]")
        self.local_stores([f"buffer_store_dword v{T[4]}, v{aX2}, {WS}, 0 offen offset:{X2O}{{f}}"])
        a("s_mov_b64 exec, -1")
        for x in self.unpackX_ops(T[4]) + self.xstats_ops(s1, s2, T[2]): a(x)
        a(f"v_lshrrev_b32 v{T[2]}, 3, v0\nv_and_b32 v{T[2]}, 4, v{T[2]}\ns_lshl_b32 s58, s56, 3\ns_add_u32 s58, s58, s53\ns_add_u32 s58, s58, {7*BS}")
        a("s_mov_b64 exec, s[46:47]")
        self.local_stores([f"buffer_store_dword v{s1}, v{T[2]}, {WS}, s58 offen offset:{MISC}{{f}}"])
        a("s_mov_b64 exec, -1")
        self.stamp(2)
        a("L_k_pt:")
        a("L_k_b1:")
        a("s_barrier")
        self.sleep(self.QSL)
        self.poll([f"buffer_load_dwordx4 {q4(GB+4*u)}, v{aQG}, {WS}, 0 offen offset:{QP1 + 128*u} sc1" for u in range(3)], range(GB, GB + 12),
                  entry="L_qk", spec=[self.mfma_s(ACC + 4 * (u & 1), KV + 4 * u, GB + 4 * (u >> 1), u < 2) for u in range(4)], pipe=self.PQ)
        self.stamp(4)
        R = [XA, XA + 1, XA + 2, XA + 3]
        DE = [ACC, ACC + 8]; DO = [ACC + 4, ACC + 12]
        def lvl_ops(t):
            e, o = DE[t & 1], DO[t & 1]
            hm = lambda d, srcr, bank: f"v_add_f32_dpp v{d}, v{srcr}, v{srcr} row_half_mirror row_mask:0xf bank_mask:{hex(1<<bank)}"
            return [hm(T[2], e + 2, 0), hm(T[2], e + 3, 1), hm(R[t], e, 0), hm(R[t], e + 1, 1),
                    hm(T[2], o, 2), hm(T[2], o + 1, 3), hm(R[t], o + 2, 2), hm(R[t], o + 3, 3),
                    f"v_add_f32_dpp v{R[t]}, v{T[2]}, v{R[t]} row_ror:8 {DPPALL}",
                    f"v_add_f32_dpp v{R[t]}, v{R[t]}, v{R[t]} {Q1} {DPPALL}",
                    f"v_add_f32_dpp v{R[t]}, v{R[t]}, v{R[t]} {Q2} {DPPALL}"]
        pend = []
        S = T[0]; M = T[1]
        for t in range(4):
            for u in range(6):
                if t == 0 and u < 4: continue
                self.mfma((DO if u & 1 else DE)[t & 1], KV + (t * 6 + u) * 4, GB + 4 * (u >> 1), u < 2)
                if u >= 2:
                    for _ in range(3 if u < 5 else 2):
                        if pend: a(pend.pop(0))
            pend = lvl_ops(t)
            if t == 3:
                pend = [f"v_max3_f32 v{M}, v{R[0]}, v{R[1]}, v{R[2]}", f"v_cndmask_b32 v{R[0]}, v{R[0]}, v{R[1]}, s[66:67]"] + pend
        for x in pend: a(x)
        a(f"v_max_f32 v{M}, v{M}, v{R[3]}")
        a(f"v_cndmask_b32 v{R[2]}, v{R[2]}, v{R[3]}, s[66:67]\nv_cndmask_b32 v{S}, v{R[0]}, v{R[2]}, s[68:69]")
        a(f"v_max_f32_dpp v{M}, v{M}, v{M} row_ror:4 {DPPALL}")
        a(f"v_mul_f32 v{S}, 0x3dd53b95, v{S}")
        a(f"v_max_f32_dpp v{M}, v{M}, v{M} row_ror:8 {DPPALL}")
        a(f"v_mov_b32 v{T[2]}, v{M}\nv_permlane16_swap_b32 v{M}, v{T[2]}\nv_max_f32 v{M}, v{M}, v{T[2]}")
        a(f"v_mov_b32 v{T[2]}, v{M}\nv_permlane32_swap_b32 v{M}, v{T[2]}\nv_max_f32 v{M}, v{M}, v{T[2]}")
        a(f"v_mul_f32 v{M}, 0x3dd53b95, v{M}")
        a(f"v_sub_f32 v{S}, v{S}, v{M}\nv_exp_f32 v{S}, v{S}")
        a(f"v_cvt_pk_bf16_f32 v{S}, v{S}, v{S}")
        a(f"ds_write_b16 v{ldsP}, v{S}")
        a("s_cmp_eq_u32 s3, 3\ns_cbranch_scc1 L_qk_nf\ns_cmp_lg_u32 s54, 0\ns_cbranch_scc1 L_qk_nf")
        self.lds_wait_flag(L_CTRL + 4)
        a("s_lshr_b32 s55, s58, 1\ns_cmp_lg_u32 s55, 0\ns_cbranch_scc1 L_qk_nf")
        self.q_fallback(0)
        a("L_qk_nf:")
        a("s_waitcnt vmcnt(0) lgkmcnt(0)" if self.PQ else "s_waitcnt lgkmcnt(0)")
        self.stamp(5)
        a("s_barrier")
        a(f"v_lshlrev_b32 v{S}, 16, v{S}")
        self.allred64("v_add_f32", S, T[2])
        a(f"s_lshl_b32 s58, s3, 3\nv_mov_b32 v{T[2]}, s58")
        a("s_mov_b64 exec, 1")
        a(f"ds_write_b32 v{T[2]}, v{M} offset:{L_ML}\nds_write_b32 v{T[2]}, v{S} offset:{L_ML+4}")
        a("s_mov_b64 exec, -1")
        a("s_cmp_lg_u32 s3, 3\ns_cbranch_scc1 L_k_b3")
        a("s_cmp_eq_u32 s54, 0\ns_cbranch_scc1 L_c_b3")
        a("L_c_x2:")
        a("s_cmp_lt_u32 s5, 10\ns_cbranch_scc1 L_c_b3")
        self.poll([f"buffer_load_dword v{GB}, v{aX2}, {WS}, 0 offen offset:{X2O} sc1"], [GB])
        for x in self.unpackX_ops(GB): a(x)
        a("L_c_b3:")
        a("s_waitcnt lgkmcnt(0)\ns_barrier")
        a("s_cmp_ge_u32 s5, 30\ns_cbranch_scc1 L_k_next")
        if self.LL == 3:
            a("s_cmp_lg_u32 s54, 0\ns_cbranch_scc1 L_c_b4")
            self.w1_loads()
            a("L_c_b4:")
        a("s_barrier")
        a("s_cmp_lg_u32 s54, 0\ns_cbranch_scc1 L_p4_nocs")
        if self.LL == 4: self.w1_loads()
        yl = self.rows24_loads(YO)
        self.sleep(self.YSL0)
        for x in yl: a(x)
        a("s_mov_b32 s70, 0\ns_waitcnt vmcnt(3)")
        for t in range(8): self.mfma(ACC, ONES, WB + 4 * t, t == 0)
        self.l64(ACC, CS0)
        self.local_stores([f"buffer_store_dword v{CS0}, v{aST}, {WS}, s52 offen offset:{HPC}{{f}}"])
        a("s_branch L_p4_chk")
        a("L_p4_nocs:")
        yl = self.rows24_loads(YO)
        self.sleep(self.YSL)
        self.poll(yl, range(GB, GB + 12), entry="L_p4_chk", spec=[self.mfma_s(ACC, ONES, GB + 4 * n, n == 0) for n in range(3)])
        a("s_barrier")
        self.stamp(8)
        self.sel_layer(58, HPR, 52)
        a(f"s_mul_i32 s60, s54, 3\ns_add_u32 s60, s60, s57\ns_add_u32 s60, s60, 1\ns_mul_i32 s60, s60, {BS}\ns_add_u32 s60, s60, s53\ns_lshl_b32 s61, s56, 3\ns_add_u32 s60, s60, s61")
        self.resid_add()
        s1, s2 = T[0], T[1]
        self.gemv_bcast(ACC + 4, T[4], WB, 8, fill=self.unpackX_ops(T[4]) + self.xstats_ops(s1, s2, T[2]) + [f"v_lshrrev_b32 v{T[2]}, 3, v0", f"v_and_b32 v{T[2]}, 4, v{T[2]}"])
        self.l64(ACC + 4, T[3])
        self.local_stores([f"buffer_store_dword v{T[3]}, v{aST}, {WS}, s58 offen{{f}}", "s_mov_b64 exec, s[46:47]",
                           f"buffer_store_dword v{s1}, v{T[2]}, {WS}, s60 offen offset:{MISC}{{f}}"])
        a("s_mov_b64 exec, -1")
        self.stamp(9)
        self.dump0()
        a("s_barrier")
        a("s_cmp_lg_u32 s54, 0\ns_cbranch_scc1 L_final\ns_mov_b32 s54, 1\ns_branch L_kloop")
        a("L_k_b3:")
        if self.LL2 == 2:
            a("s_cmp_lg_u32 s54, 0\ns_cbranch_scc1 L_k_b3a\ns_cmp_lg_u32 s3, 0\ns_cbranch_scc1 L_k_b3a")
            self.w2_loads()
            a("L_k_b3a:")
        if self.CPF:
            self.code_prefetch()
        a(f"s_lshl_b32 s58, s3, 8\nv_add_u32 v{T[3]}, s58, v{lane4}\nv_mov_b32 v{T[4]}, {L_ML}")
        self.sel_layer(58, OP, 52)
        a("s_lshl_b32 s60, s3, 7\ns_add_u32 s60, s60, s58")
        a(f"s_mul_i32 s61, s7, {BS - 8}\ns_sub_u32 s61, s52, s61\ns_lshl_b32 s58, s54, 6\ns_add_u32 s61, s61, s58")
        a("s_waitcnt lgkmcnt(0)\ns_barrier")
        self.stamp(6)
        a(f"ds_read_b128 {q4(GB)}, v{T[4]}\nds_read_b128 {q4(GB+4)}, v{T[4]} offset:16")
        for w in range(4):
            a(f"ds_read_b32 v{GB+8+w}, v{T[3]} offset:{L_O + 768*w}")
        a("s_waitcnt lgkmcnt(0)")
        M = GB + 12; Lr = GB + 13
        a(f"v_max3_f32 v{M}, v{GB}, v{GB+2}, v{GB+4}\nv_max_f32 v{M}, v{M}, v{GB+6}")
        for w in range(4): a(f"v_sub_f32 v{GB+2*w}, v{GB+2*w}, v{M}")
        for w in range(4): a(f"v_exp_f32 v{GB+2*w}, v{GB+2*w}")
        a(f"v_mul_f32 v{Lr}, v{GB}, v{GB+1}\nv_mul_f32 v{T[0]}, v{GB}, v{GB+8}")
        for w in range(1, 4):
            a(f"v_fmac_f32 v{Lr}, v{GB+2*w}, v{GB+2*w+1}\nv_fmac_f32 v{T[0]}, v{GB+2*w}, v{GB+8+w}")
        a(f"v_rcp_f32 v{T[1]}, v{Lr}\nv_mul_f32 v{T[0]}, v{T[0]}, v{T[1]}")
        a(f"v_mov_b32_dpp v{T[1]}, v{T[0]} row_ror:8 {DPPALL}\nv_cvt_pk_bf16_f32 v{T[0]}, v{T[0]}, v{T[1]}")
        a("s_mov_b64 exec, s[64:65]")
        lz = self.L("z")
        self.local_stores([f"buffer_store_dword v{T[0]}, v{aP32}, {WS}, s60 offen{{f}}"])
        a(f"s_cmp_lg_u32 s3, 1\ns_cbranch_scc1 {lz}\ns_mov_b64 exec, 1")
        self.local_stores([f"buffer_store_dwordx2 v[{M}:{Lr}], v{aP32}, {WS}, s61 offen offset:{MISC}{{f}}"])
        a(f"{lz}:\ns_mov_b64 exec, -1")
        self.stamp(7)
        a("s_cmp_ge_u32 s5, 30\ns_cbranch_scc1 L_k_next")
        if self.LL2 == 3:
            a("s_cmp_lg_u32 s54, 0\ns_cbranch_scc1 L_k_b4a\ns_cmp_lg_u32 s3, 0\ns_cbranch_scc1 L_k_b4a")
            self.w2_loads()
            a("L_k_b4a:")
        a("s_barrier")
        a("s_cmp_eq_u32 s3, 0\ns_cbranch_scc1 L_p5")
        a("s_cmp_lg_u32 s3, 1\ns_cbranch_scc1 L_k_b5")
        self.sel_layer(58, HPR, 52)
        a(f"v_lshlrev_b32 v{T[0]}, 7, v0\ns_mov_b64 exec, 3")
        a(f"buffer_load_dword v{GB}, v{T[0]}, {WS}, s58 offen sc1\nbuffer_load_dword v{GB+1}, v{T[0]}, {WS}, s52 offen offset:{HPC} sc1")
        a(f"buffer_load_dword v{GB+2}, v{lane4}, {WS}, s52 offen offset:{MISC} sc1\ns_mov_b64 exec, -1")
        a("L_k_b5:")
        a("s_barrier\ns_barrier")
        a("s_branch L_k_next")
        a("L_p5:")
        a(f"s_mul_i32 s62, s57, {10*BS}\ns_add_u32 s62, s62, s53")
        def hp_gather(with_stats, slp=0):
            for i in range(8, 14): a(f"v_mov_b32 v{GB+i}, 0")
            loads = [f"buffer_load_dwordx4 {q4(GB)}, v{aML}, {WS}, s58 offen sc1",
                     f"buffer_load_dwordx4 {q4(GB+4)}, v{aML}, {WS}, s60 offen sc1",
                     "s_mov_b32 exec_hi, 0",
                     f"buffer_load_dwordx4 {q4(GB+8)}, v{aML}, {WS}, s61 offen sc1"]
            if with_stats:
                loads += ["s_mov_b64 exec, s[44:45]", f"buffer_load_dwordx2 v[{GB+12}:{GB+13}], v{aXS}, {WS}, s63 offen offset:{MISC} sc1"]
            loads += ["s_mov_b64 exec, -1"]
            return loads, range(GB, GB + (14 if with_stats else 12))
        def hp_reduce_ops(dst):
            U = GB + 16
            o = [f"v_add_f32 v{U+i}, v{GB+i}, v{GB+4+i}" for i in range(4)] + [f"v_add_f32 v{U+i}, v{U+i}, v{GB+8+i}" for i in range(4)]
            o += [f"v_permlane32_swap_b32 v{U}, v{U+2}", f"v_permlane32_swap_b32 v{U+1}, v{U+3}",
                  f"v_add_f32 v{U}, v{U}, v{U+2}", f"v_add_f32 v{U+1}, v{U+1}, v{U+3}",
                  f"v_permlane16_swap_b32 v{U}, v{U+1}", f"v_add_f32 v{dst}, v{U}, v{U+1}"]
            return o
        a("s_cmp_lg_u32 s54, 0\ns_cbranch_scc1 L_p5_nocs")
        if self.LL2 == 4: self.w2_loads()
        if self.LL2 == 5:
            a(f"s_sleep {self.W2SL}")
            self.w2_loads()
        a(f"s_add_u32 s58, s62, {HPC}\ns_add_u32 s60, s58, {4*BS}\ns_add_u32 s61, s58, {8*BS}")
        a("s_barrier")
        ld_, rg_ = hp_gather(False)
        self.poll(ld_, rg_)
        for x in hp_reduce_ops(CSW1): a(x)
        a(f"v_lshlrev_b32 v{B1V}, 16, v{B1V}")
        a("s_branch L_p5_g")
        a("L_p5_nocs:")
        a("s_barrier")
        self.sleep(self.HSL)
        a("L_p5_g:")
        self.sel_layer(58, HPR, 62)
        a(f"s_add_u32 s60, s58, {4*BS}\ns_add_u32 s61, s58, {8*BS}")
        a(f"s_mul_i32 s63, s54, 3\ns_add_u32 s63, s63, s57\ns_add_u32 s63, s63, 1\ns_mul_i32 s63, s63, {BS}\ns_add_u32 s63, s63, s53")
        ld_, rg_ = hp_gather(True)
        self.poll(ld_, rg_, pipe=self.PH)
        self.stamp(8)
        s1, s2 = GB + 14, GB + 15
        H = T[0]
        c1 = self.row16_ops(s1, s2, GB + 12, GB + 13) + self.ln_ops(s1, s2, T[5])
        c2 = hp_reduce_ops(H)
        while c1 or c2:
            if c1: a(c1.pop(0))
            if c1 and len(c1) > 14: a(c1.pop(0))
            if c2: a(c2.pop(0))
        self.sel_layer(58, ZO, 52)
        a(f"v_fma_f32 v{H}, -v{s1}, v{CSW1}, v{H}\nv_mul_f32 v{H}, v{H}, v{s2}")
        self.bf16r(H, H)
        a(f"v_add_f32 v{H}, v{H}, v{B1V}")
        self.bf16r(H, H)
        E = T[1]; N = T[2]; Dn = T[3]
        a(f"v_mul_f32 v{E}, 0x3fb8aa3b, v{H}\nv_exp_f32 v{E}, -|v{E}|")
        a(f"v_cmp_gt_f32 vcc, 0, v{H}\nv_mov_b32 v{T[4]}, 2.0")
        a(f"v_fma_f32 v{N}, v{E}, 2.0, 1.0\nv_add_f32 v{Dn}, 2.0, v{E}\nv_mul_f32 v{Dn}, v{Dn}, v{E}")
        a(f"v_mul_f32 v{E}, v{E}, v{E}\nv_add_f32 v{E}, v{E}, v{E}")
        a(f"v_cndmask_b32 v{N}, v{N}, v{Dn}, vcc\nv_cndmask_b32 v{E}, v{E}, v{T[4]}, vcc")
        a(f"v_add_f32 v{Dn}, v{N}, v{E}\nv_rcp_f32 v{Dn}, v{Dn}\nv_mul_f32 v{N}, v{N}, v{H}\nv_mul_f32 v{N}, v{N}, v{Dn}")
        a(f"v_mov_b32_dpp v{E}, v{N} row_ror:8 {DPPALL}\nv_cvt_pk_bf16_f32 v{T[4]}, v{N}, v{E}")
        self.gemv_bcast(ACC, T[4], WB, 8)
        self.pair32(ACC, T[0], T[1])
        a(f"v_cvt_pk_bf16_f32 v{T[0]}, v{T[0]}, v{T[1]}")
        if self.G4:
            self.gather4(T[0], AB[0])
            a("s_mov_b64 exec, 0xff")
            a(f"buffer_store_dwordx4 {q4(AB[0])}, v{aP32}, {WS}, s58 offen sc1")
        else:
            a("s_mov_b64 exec, s[64:65]")
            a(f"buffer_store_dword v{T[0]}, v{aP32}, {WS}, s58 offen sc1")
        a("s_mov_b64 exec, -1")
        self.stamp(9)
        a("s_barrier")
        a("L_k_next:")
        a("s_cmp_lg_u32 s54, 0\ns_cbranch_scc1 L_final")
        self.dump_stamps()
        a("s_mov_b32 s54, 1")
        a("s_cmp_lg_u32 s3, 2\ns_cbranch_scc1 L_kloop")
        a("s_cmp_lg_u32 s2, 0\ns_cbranch_scc1 L_nogen")
        a(f"s_mov_b64 exec, 1\nv_mov_b32 v{T[0]}, s74\nv_mov_b32 v{T[1]}, {GEN_OFF}")
        a(f"buffer_store_dword v{T[0]}, v{T[1]}, {WS}, 0 offen sc1")
        a("s_mov_b64 exec, -1\nL_nogen:")
        for u in range(3):
            a(f"buffer_load_dword v{GB+4+u}, v{aQG}, {WS}, 0 offen offset:{QP1 + 128*u} sc1")
        a("s_branch L_kloop")
        a("L_final:")
        a("s_cmp_lg_u32 s3, 3\ns_cbranch_scc1 L_fin2\ns_cmp_lg_u32 s4, 0\ns_cbranch_scc1 L_fin2\ns_cmp_ge_u32 s5, 10\ns_cbranch_scc1 L_fin2")
        self.zgather(1, self.FSL)
        a("s_lshl_b32 s58, s5, 7")
        a("s_mov_b64 exec, s[64:65]")
        a(f"buffer_store_dword v{T[4]}, v{aP32}, s[40:43], s58 offen{' sc1' if self.OSC else ''}")
        a("s_mov_b64 exec, -1")
        self.stamp(11)
        a("L_fin2:")
        self.dump_stamps()
        a("s_endpgm")

        a("L_vloop:")
        a(f"buffer_load_dword v{XA+2}, v{aQG}, {WS}, 0 offen offset:{OP[1]} sc1")
        a("s_cmp_eq_u32 s3, 7\ns_cbranch_scc1 L_v7_b1")
        a(f"v_mov_b32 v{GB}, 0\nv_mov_b32 v{GB+2}, 0\nv_mov_b32 v{GB+3}, 0\ns_add_u32 s58, s53, {7*BS}")
        self.sleep(self.XSL)
        self.poll(["s_mov_b64 exec, s[44:45]", f"buffer_load_dword v{GB}, v{aX2}, {WS}, 0 offen offset:{X2O} sc1",
                   f"buffer_load_dwordx2 v[{GB+2}:{GB+3}], v{aXS}, {WS}, s58 offen offset:{MISC} sc1", "s_mov_b64 exec, -1"], [GB, GB + 2, GB + 3], slp=self.XSLP, pipe=self.PX)
        a("s_barrier")
        self.stamp(1)
        self.qproj(GB, T[0], T[1], self.row16_ops(T[0], T[1], GB + 2, GB + 3))
        if self.Q4:
            self.gather4(T[4], AB[0])
            a("s_mov_b64 exec, 0xff")
            self.local_stores([f"buffer_store_dwordx4 {q4(AB[0])}, v{aST}, {WS}, 0 offen offset:{QP1}{{f}}"])
        else:
            a("s_mov_b64 exec, s[64:65]")
            self.local_stores([f"buffer_store_dword v{T[4]}, v{aST}, {WS}, 0 offen offset:{QP1}{{f}}"])
        a("s_mov_b64 exec, -1")
        self.stamp(3)
        a("s_branch L_v_b2")
        a("L_v7_b1:")
        a("s_barrier")
        a("L_v_b2:")
        a(f"s_and_b32 s58, s3, 3\ns_mul_i32 s58, s58, 768\nv_add_u32 v{T[3]}, s58, v{lane4}")
        a("s_cmp_eq_u32 s54, 0\ns_cbranch_scc1 L_v_b2a\ns_waitcnt vmcnt(0)\nL_v_b2a:")
        a("s_barrier")
        self.stamp(5)
        a(f"ds_read_b128 {q4(GB)}, v{ldsP}\nds_read_b128 {q4(GB+4)}, v{ldsP} offset:16")
        a("s_cmp_lg_u32 s54, 0\ns_cbranch_scc1 L_v_nowo")
        self.wo_loads()
        a("L_v_nowo:")
        a("s_waitcnt lgkmcnt(0)")
        self.al()
        self.build_A(AB[0], GB)
        for G in range(8):
            a(f"s_waitcnt vmcnt({8 + 21 - 3*G})")
            for th in range(3):
                self.mfma(ACC + 4 * th, AB[G & 1], KV + (G * 3 + th) * 4, G == 0)
                if G + 1 < 8 and th < 2:
                    for d in (2 * th, 2 * th + 1):
                        a(f"v_perm_b32 v{AB[(G+1)&1]+d}, v{GB+G+1}, v{GB+G+1}, v{SEL+d}")
        for th in range(3):
            self.l64(ACC + 4 * th, T[th])
            a(f"ds_write_b32 v{T[3]}, v{T[th]} offset:{L_O + 256*th}")
        self.sel_layer(58, OP)
        a("s_lshl_b32 s60, s54, 6")
        a("s_waitcnt lgkmcnt(0)\ns_barrier")
        self.stamp(6)
        a("s_cmp_ge_u32 s5, 30\ns_cbranch_scc1 L_v_next")
        self.sleep(self.OSL)
        self.poll([f"buffer_load_dwordx4 {q4(GB)}, v{aQG}, {WS}, s58 offen sc1",
                   f"buffer_load_dwordx2 v[{GB+4}:{GB+5}], v{aML}, {WS}, s60 offen offset:{MISC} sc1"], range(GB, GB + 6),
                  spec=[f"v_max_f32_dpp v{T[0]}, v{GB+4}, v{GB+4} {Q1} {DPPALL}", f"v_max_f32_dpp v{T[0]}, v{T[0]}, v{T[0]} {Q2} {DPPALL}", f"v_max_f32_dpp v{T[0]}, v{T[0]}, v{T[0]} {HM} {DPPALL}"], pipe=self.PO)
        self.stamp(8)
        M = T[0]; W = T[1]
        a(f"v_sub_f32 v{W}, v{GB+4}, v{M}\nv_exp_f32 v{W}, v{W}\nv_mul_f32 v{W}, v{W}, v{GB+5}")
        a(f"v_mov_b32_dpp v{T[2]}, v{W} row_newbcast:0 {DPPALL}\nv_mov_b32_dpp v{T[3]}, v{W} row_newbcast:1 {DPPALL}")
        a(f"v_cvt_pk_bf16_f32 v{T[2]}, v{T[2]}, v{T[3]}")
        self.build_A(AB[0], T[2])
        self.bf16r(W, W)
        self.mfma(ACC, AB[0], GB, True)
        for c in (Q1, Q2, HM):
            a(f"v_add_f32_dpp v{W}, v{W}, v{W} {c} {DPPALL}")
        a(f"v_rcp_f32 v{W}, v{W}")
        self.pair32(ACC, T[2], T[3])
        a(f"v_mul_f32 v{T[2]}, v{T[2]}, v{W}\nv_mul_f32 v{T[3]}, v{T[3]}, v{W}\nv_cvt_pk_bf16_f32 v{T[4]}, v{T[2]}, v{T[3]}")
        self.gemv_bcast(ACC + 4, T[4], WB, 8)
        a(f"s_and_b32 s58, s3, 3\ns_lshl_b32 s58, s58, 8\nv_add_u32 v{T[3]}, s58, v{lane4}")
        self.l64(ACC + 4, T[0])
        a(f"ds_write_b32 v{T[3]}, v{T[0]} offset:{L_YR}")
        self.sel_layer(58, YO, 52)
        a("s_waitcnt vmcnt(0) lgkmcnt(0)\ns_barrier")
        a("s_cmp_lg_u32 s3, 7\ns_cbranch_scc1 L_v_b5")
        for w in range(4): a(f"ds_read_b32 v{GB+w}, v{lane4} offset:{L_YR + 256*w}")
        a("s_waitcnt lgkmcnt(0)")
        a(f"v_add_f32 v{GB}, v{GB}, v{GB+1}\nv_add_f32 v{GB+2}, v{GB+2}, v{GB+3}\nv_add_f32 v{T[0]}, v{GB}, v{GB+2}")
        a(f"v_mov_b32_dpp v{T[1]}, v{T[0]} row_ror:8 {DPPALL}\nv_cvt_pk_bf16_f32 v{T[0]}, v{T[0]}, v{T[1]}")
        if self.G4:
            self.gather4(T[0], AB[0])
            a("s_mov_b64 exec, 0xff")
            a(f"buffer_store_dwordx4 {q4(AB[0])}, v{aP32}, {WS}, s58 offen sc1")
        else:
            a("s_mov_b64 exec, s[64:65]")
            a(f"buffer_store_dword v{T[0]}, v{aP32}, {WS}, s58 offen sc1")
        a("s_mov_b64 exec, -1")
        self.stamp(9)
        a("L_v_b5:")
        a("s_cmp_lg_u32 s54, 0\ns_cbranch_scc1 L_v_b5b")
        self.v_fetch_wq()
        self.dump_stamps()
        a("L_v_b5b:")
        a("s_barrier\ns_barrier")
        a("s_cmp_lg_u32 s54, 0\ns_cbranch_scc1 L_fin2")
        a("s_mov_b32 s54, 1\ns_branch L_vloop")
        a("L_v_next:")
        a("s_cmp_lg_u32 s54, 0\ns_cbranch_scc1 L_fin2")
        self.v_fetch_wq()
        self.dump_stamps()
        a("s_mov_b32 s54, 1\ns_sleep 48\ns_branch L_vloop")
        self.flush_ool()
        a("L_end:\ns_endpgm")
        a('.section .rodata,"a"\n.p2align 6')
        a(f".amdhsa_kernel {KNAME}")
        a(".amdhsa_next_free_vgpr 256\n.amdhsa_next_free_sgpr 102\n.amdhsa_accum_offset 256\n.amdhsa_group_segment_fixed_size 0\n.amdhsa_kernarg_size 96")
        a(".amdhsa_user_sgpr_count 2\n.amdhsa_user_sgpr_kernarg_segment_ptr 1\n.amdhsa_system_sgpr_workgroup_id_x 1\n.end_amdhsa_kernel")
        return a.render()

    def code_prefetch(self):
        a = self.a
        le = self.L("cpf")
        a(f"s_cmp_lg_u32 s3, 1\ns_cbranch_scc1 {le}\ns_cmp_lg_u32 s54, 0\ns_cbranch_scc1 {le}")
        a("s_getpc_b64 s[72:73]")
        a("L_pcref:")
        a(f"s_sub_u32 s72, s72, L_pcref-{KNAME}\ns_subb_u32 s73, s73, 0")
        a(f"v_lshlrev_b32 v{T[0]}, 5, v0\nv_add_u32 v{T[0]}, s5, v{T[0]}\nv_lshlrev_b32 v{T[0]}, 7, v{T[0]}")
        a(f"v_mov_b32 v{T[1]}, L_end-{KNAME}\nv_cmp_lt_u32 vcc, v{T[0]}, v{T[1]}\ns_and_b64 exec, vcc, exec")
        a(f"global_load_dword v{XA+5}, v{T[0]}, s[72:73] sc1")
        a("s_mov_b64 exec, -1")
        a(f"{le}:")

    def v_prologue(self):
        a = self.a
        if "dbl" in self.knobs:
            a(f"v_mul_u32_u24 v{T[0]}, 384, v2\nv_lshl_add_u32 v{T[0]}, v1, 4, v{T[0]}\ns_sub_u32 s61, s59, {6144*384}")
            for srd in ("s[12:15]", "s[16:19]"):
                for n in range(24):
                    rg, th = divmod(n, 3)
                    if th == 0: a(f"s_add_u32 s58, s61, {rg*8*384}")
                    a(f"buffer_load_dwordx4 {q4(KV+4*n)}, v{T[0]}, {srd}, s58 offen offset:{th*128} nt")
            a("s_waitcnt vmcnt(12)")
        self.k_dma()
        for n in range(24):
            rg, th = divmod(n, 3)
            if n == self.NB:
                a(f"s_lshl_b32 s60, s3, 2\nv_mov_b32 v{T[2]}, s60\nv_mov_b32 v{T[3]}, 1")
                a(f"s_waitcnt vmcnt({self.NB})\nds_write_b32 v{T[2]}, v{T[3]} offset:{L_CTRL}")
                self.stamp(11)
            if th == 0: a(f"s_add_u32 s58, s59, {rg*8*384}")
            a(f"buffer_load_dwordx4 {q4(KV+4*n)}, v{T[4]}, s[16:19], s58 offen offset:{th*128} nt")
        self.stamp(1)
        if self.knobs & {"lo1", "lo2", "lo3"}:
            if "wo" in self.knobs:
                self.wo_loads()
                a("s_waitcnt vmcnt(8)")
                self.stamp(5)
            a("s_waitcnt vmcnt(0)")
            self.stamp(6)
            a("s_branch L_fin2")
        self.consts()
        self.vwave_addrs()
        a("s_branch L_v_b2")

    def v_fetch_wq(self):
        a = self.a
        a(f"s_and_b32 s58, s3, 3\ns_min_u32 s58, s58, 2\ns_mul_i32 s58, s58, 10752\ns_add_u32 s58, s58, {L_WQ}\nv_lshlrev_b32 v{T[0]}, 4, v0\nv_add_u32 v{T[0]}, s58, v{T[0]}")
        for t in range(10):
            a(f"ds_read_b128 {q4(WA+4*t)}, v{T[0]} offset:{1024*t}")
        a(f"v_add_u32 v{T[1]}, s58, v{lane4}\nds_read_b32 v{CS0}, v{T[1]} offset:10240\nds_read_b32 v{CS1}, v{T[1]} offset:10496")
        self.read_fast()
        a(f"s_add_u32 s58, s53, {7*BS}\nbuffer_load_dword v{XA+3}, v{aX2}, {WS}, 0 offen offset:{X2O} sc1\nbuffer_load_dword v{XA+4}, v{aXS}, {WS}, s58 offen offset:{MISC} sc1")

    def zgather(self, layer, slp):
        a = self.a
        a(f"s_mul_i32 s58, s56, {BS}\ns_add_u32 s60, s58, {10*BS}\ns_add_u32 s61, s58, {20*BS}")
        self.sleep(slp)
        self.poll([f"buffer_load_dwordx4 {q4(GB+4*n)}, v{aROW}, {WS}, s{(58,60,61)[n]} offen offset:{ZO[layer]} sc1" for n in range(3)], range(GB, GB + 12),
                  spec=[self.mfma_s(ACC, ONES, GB + 4 * n, n == 0) for n in range(3)], pipe=self.PZ)
        self.stamp(10 if layer else 1)
        self.resid_add()

REF = "interleave_layers__sliding_block_cached__dense_activation_mish__decode.s.ref"
HEADER = open(REF).read().split("; Override")[0] if os.path.exists(REF) else ""

if __name__ == "__main__":
    prof = {"prof": 1, "lite": 3}.get(sys.argv[2], 0) if len(sys.argv) > 2 else 0
    open(sys.argv[1], "w").write(HEADER + Gen(prof, sys.argv[3:]).gen())
```

```python
import sys, os
sys.path.insert(0, "gen")
from asmlib import Asm

KNAME = "interleave_layers__sliding_block_cached__dense_activation_mish__decode_kernel"
BS = 4736
YO = [0, 128]; ZO = [256, 384]
QP1 = 512
OP = [896, 1280]
MISC = 1664
HPR = [1792, 2048]; HPC = 2304
X2O = 2560
CLR_END = 2816
QP0T = 3072
GEN_OFF = 256 * BS
FL1 = GEN_OFF + 4096; FL2 = GEN_OFF + 8192
WS_USED = GEN_OFF + 12288
PROF_OFF = 2 << 20
L_CTRL = 0
L_ML = 128
L_P = 256
L_O = 1024
L_YR = 4096
L_Q = 5120
L_K = 8192
L_WQ = L_K + 98304
LDS_BYTES = L_WQ + 3 * 10752
POLL_LIMIT = 200000
ONES = 4; SEL = 8; AB = [12, 16]; ACC = 20; GB = 36; XA = 60
aQG = 70; aP32 = 71; aROW = 72; aML = 73; aST = 74; ldsP = 75; lane4 = 76
CS0 = 77; CS1 = 78; X0 = 79; X1 = 80; B1V = 81; CSW1 = 82
T = [83, 84, 85, 86, 87, 1, 2, 3]
aX2 = 68; aXS = 69
KV = 88; WA = 184; WB = 224
WS = "s[48:51]"

def q4(r): return f"v[{r}:{r+3}]"
DPPALL = "row_mask:0xf bank_mask:0xf"
Q1 = "quad_perm:[1,0,3,2]"; Q2 = "quad_perm:[2,3,0,1]"; HM = "row_half_mirror"; RM = "row_mirror"

class Gen:
    def __init__(self, prof=0, knobs=()):
        self.knobs = set(knobs)
        self.LL = 4; self.LL2 = 4; self.W2SL = 16; self.B0IT = 0; self.B3B = 1; self.Q4 = 0; self.G4 = 0; self.PQ = 0; self.PO = 1; self.PX = 0; self.PH = 1; self.PZ = 0; self.PGAP = 12; self.TR = 1; self.XSLP = 0; self.Q1ST = 1; self.QPW = 0; self.FLSL = 127; self.QFB = 5; self.CPF0 = 1; self.B0E = 0; self.B0N = 0; self.OSC = 0; self.AL = 1; self.ALP = 3; self.SHIFT = 0; self.CPF = 0; self.NB = 8; self.QSLEEP0 = 56; self.QSLEEP1 = 24
        self.QSL = 12; self.OSL = 8; self.YSL0 = 16; self.YSL = 15; self.HSL = 10; self.ZSL = 11; self.XSL = 26; self.FSL = 8
        for k in knobs:
            if '=' in k: setattr(self, k.split('=')[0], int(k.split('=')[1]))
        self.a = Asm(); self.prof = prof; self.uid = 0; self.ool = []
    def L(self, base):
        self.uid += 1
        return f"L_{base}_{self.uid}"
    def stamp(self, i):
        if self.prof == 3 and i not in (0, 6, 11): return
        if self.prof: self.a(f"s_memrealtime s[{76+2*i}:{77+2*i}]")
    def al(self, n=3):
        if self.AL: self.a(f".p2align {n}")
    def sleep(self, n):
        if n: self.a(f"s_sleep {n}")
    def dump_stamps(self):
        if not self.prof: return
        a = self.a
        a("s_waitcnt lgkmcnt(0)")
        a(f"v_mov_b32 v{T[0]}, 0")
        for i in range(13):
            a(f"v_writelane_b32 v{T[0]}, s{76+2*i}, {i}")
        a("s_lshl_b32 s58, s2, 3\ns_add_u32 s58, s58, s3\ns_lshl_b32 s58, s58, 1\ns_add_u32 s58, s58, s54\ns_lshl_b32 s58, s58, 6")
        a(f"s_add_u32 s58, s58, {PROF_OFF}")
        a("s_mov_b64 exec, 0xffff")
        a(f"buffer_store_dword v{T[0]}, v{lane4}, {WS}, s58 offen")
        a("s_mov_b64 exec, -1")
        for i in range(13):
            a(f"s_mov_b64 s[{76+2*i}:{77+2*i}], 0")
    def dump0(self):
        if not self.prof: return
        l = self.L("nd")
        self.a(f"s_cmp_lg_u32 s54, 0\ns_cbranch_scc1 {l}")
        self.dump_stamps()
        self.a(f"{l}:")
    def local_stores(self, lines):
        a = self.a
        ls, ld = self.L("sl"), self.L("sd")
        a(f"s_cmp_eq_u32 s55, 0\ns_cbranch_scc1 {ls}")
        for x in lines: a(x.replace("{f}", ""))
        a(f"{ld}:")
        self.ool.append([f"{ls}:", "s_nop 7"] + [x.replace("{f}", " sc1") for x in lines] + ["s_nop 1", f"s_branch {ld}"])
    def poll(self, loads, regs, entry=None, slp=0, spec=(), pipe=0):
        a = self.a
        lp, lr, ld = self.L("poll"), self.L("retry"), self.L("got")
        a("s_mov_b32 s70, 0")
        nld = sum(1 for x in loads if x.startswith("buffer_"))
        post = []
        if pipe:
            for _ in range(pipe):
                for x in loads: a(x)
                a(f"s_nop {self.PGAP}\ns_nop {self.PGAP}")
            post = list(spec); spec = ()
        a(f"{lp}:")
        for x in loads: a(x)
        if self.TR and not slp:
            a(f"s_add_u32 s70, s70, 1\ns_cmp_lt_u32 s70, {POLL_LIMIT}\ns_cbranch_scc0 {lr}")
        if entry: a(f"{entry}:")
        self.al(self.ALP)
        a(f"s_nop 0\ns_waitcnt vmcnt({nld * pipe})")
        t = T[7]
        rs = list(regs)
        chk = []
        if len(rs) == 1:
            chk.append(f"v_cmp_eq_u32 vcc, -1, v{rs[0]}")
        else:
            if len(rs) == 2:
                chk.append(f"v_max_u32 v{t}, v{rs[0]}, v{rs[1]}"); rs = []
            else:
                chk.append(f"v_max3_u32 v{t}, v{rs[0]}, v{rs[1]}, v{rs[2]}"); rs = rs[3:]
            while rs:
                if len(rs) >= 2:
                    chk.append(f"v_max3_u32 v{t}, v{t}, v{rs[0]}, v{rs[1]}"); rs = rs[2:]
                else:
                    chk.append(f"v_max_u32 v{t}, v{t}, v{rs[0]}"); rs = rs[1:]
            chk.append(f"v_cmp_eq_u32 vcc, -1, v{t}")
        spec = list(spec)
        while spec or chk:
            if spec: a(spec.pop(0))
            for _ in range(2):
                if chk: a(chk.pop(0))
        if self.TR and not slp:
            a(f"s_cbranch_vccnz {lp}")
            a(f"{ld}:")
            for x in post: a(x)
            self.ool.append([f"{lr}:", "s_waitcnt vmcnt(0)", f"s_branch {ld}"])
            return
        a(f"s_cbranch_vccnz {lr}")
        a(f"{ld}:")
        self.ool.append([f"{lr}:", f"s_sleep {slp}" if slp else "s_nop 7", f"s_add_u32 s70, s70, 1", f"s_cmp_lt_u32 s70, {POLL_LIMIT}", f"s_cbranch_scc1 {lp}", f"s_branch {ld}"])
    def mfma_s(self, D, A, B, first):
        return f"v_mfma_f32_16x16x32_bf16 {q4(D)}, {q4(A)}, {q4(B)}, {'0' if first else q4(D)}"
    def flush_ool(self):
        for blk in self.ool:
            for x in blk: self.a(x)
        self.ool = []
    def build_A(self, dst, src):
        for d in range(4):
            self.a(f"v_perm_b32 v{dst+d}, v{src}, v{src}, v{SEL+d}")
    def mfma(self, D, A, B, first):
        self.a(f"v_mfma_f32_16x16x32_bf16 {q4(D)}, {q4(A)}, {q4(B)}, {'0' if first else q4(D)}")
    def pair32(self, D, t0, t1):
        self.a(f"v_add_f32_dpp v{t0}, v{D+1}, v{D} row_ror:8 {DPPALL}")
        self.a(f"v_add_f32_dpp v{t1}, v{D+3}, v{D+2} row_ror:8 {DPPALL}")
    def l64(self, D, t):
        self.a(f"v_add_f32_dpp v{t}, v{D+1}, v{D} row_ror:8 row_mask:0xf bank_mask:0x3")
        self.a(f"v_add_f32_dpp v{t}, v{D+2}, v{D+3} row_ror:8 row_mask:0xf bank_mask:0xc")
    def gemv_bcast(self, D, pair, W, n, fill=()):
        a = self.a
        fill = list(fill)
        tb = [T[5], T[6]]
        self.al()
        a(f"v_mov_b32_dpp v{tb[0]}, v{pair} row_newbcast:0 {DPPALL}")
        for t in range(n):
            if t + 1 < n:
                a(f"v_mov_b32_dpp v{tb[(t+1)&1]}, v{pair} row_newbcast:{t+1} {DPPALL}")
            self.build_A(AB[t & 1], tb[t & 1])
            if t > 0: self.mfma(D, AB[(t-1) & 1], W + 4 * (t-1), t == 1)
            for _ in range(2):
                if fill: a(fill.pop(0))
        self.mfma(D, AB[(n-1) & 1], W + 4 * (n-1), n == 1)
        for x in fill: a(x)
    def bf16r_ops(self, dst, src):
        return [f"v_cvt_pk_bf16_f32 v{dst}, v{src}, v{src}", f"v_lshlrev_b32 v{dst}, 16, v{dst}"]
    def bf16r(self, dst, src):
        for x in self.bf16r_ops(dst, src): self.a(x)
    def ln_ops(self, s1, s2, t):
        inv = "0x3acccccd"
        return [f"v_mul_f32 v{s1}, {inv}, v{s1}", f"v_mul_f32 v{s2}, {inv}, v{s2}", f"v_fma_f32 v{s2}, -v{s1}, v{s1}, v{s2}",
                f"v_max_f32 v{s2}, 0, v{s2}", f"v_cvt_pk_bf16_f32 v{t}, v{s1}, v{s2}", f"v_lshlrev_b32 v{s1}, 16, v{t}",
                f"v_and_b32 v{s2}, 0xffff0000, v{t}", f"v_add_f32 v{s2}, 0x3727c5ac, v{s2}"] + self.bf16r_ops(s2, s2) + \
               [f"v_sqrt_f32 v{s2}, v{s2}"] + self.bf16r_ops(s2, s2) + [f"v_rcp_f32 v{s2}, v{s2}"]
    def red2_ops(self, s1, s2, steps, tmp):
        return [f"v_permlane32_swap_b32 v{s1}, v{s2}", f"v_add_f32 v{s1}, v{s1}, v{s2}", f"v_mov_b32 v{tmp}, v{s1}",
                f"v_permlane16_swap_b32 v{s1}, v{tmp}", f"v_add_f32 v{s1}, v{s1}, v{tmp}"] + \
               [f"v_add_f32_dpp v{s1}, v{s1}, v{s1} {c} {DPPALL}" for c in steps]
    def row16_ops(self, s1, s2, i1=None, i2=None):
        out = []
        for c in (Q1, Q2, HM, RM):
            a1 = i1 if (c == Q1 and i1 is not None) else s1
            a2 = i2 if (c == Q1 and i2 is not None) else s2
            out += [f"v_add_f32_dpp v{s1}, v{a1}, v{a1} {c} {DPPALL}", f"v_add_f32_dpp v{s2}, v{a2}, v{a2} {c} {DPPALL}"]
        return out
    def allred64(self, op, v, tmp):
        a = self.a
        for c in (Q1, Q2, HM, RM):
            a(f"{op}_dpp v{v}, v{v}, v{v} {c} {DPPALL}")
        a(f"v_mov_b32 v{tmp}, v{v}\nv_permlane16_swap_b32 v{v}, v{tmp}\n{op} v{v}, v{v}, v{tmp}")
        a(f"v_mov_b32 v{tmp}, v{v}\nv_permlane32_swap_b32 v{v}, v{tmp}\n{op} v{v}, v{v}, v{tmp}")
    def sel_layer(self, dst, arr, add=None):
        a = self.a
        a(f"s_mul_i32 s{dst}, s54, {arr[1]-arr[0]}")
        if arr[0]: a(f"s_add_u32 s{dst}, s{dst}, {arr[0]}")
        if add is not None: a(f"s_add_u32 s{dst}, s{dst}, s{add}")
    def lds_wait_flag(self, off, val=None, fb=0):
        a = self.a
        lp, ld = self.L("lw"), self.L("lg")
        t = T[5]; t2 = T[6]
        a(f"v_mov_b32 v{t2}, {off}\ns_mov_b32 s70, 0")
        a(f"{lp}:\nds_read_b32 v{t}, v{t2}\ns_waitcnt lgkmcnt(0)\nv_readfirstlane_b32 s58, v{t}")
        a(f"s_cmp_lg_u32 s58, 0\ns_cbranch_scc1 {ld}" if val is None else f"s_cmp_eq_u32 s58, {val}\ns_cbranch_scc1 {ld}")
        a("s_sleep 1\ns_add_u32 s70, s70, 1")
        if fb: self.q_fallback(fb)
        a(f"s_cmp_lt_u32 s70, {4*POLL_LIMIT}\ns_cbranch_scc1 {lp}")
        a(f"{ld}:")
    def q_fallback(self, thresh):
        a = self.a
        QD = XA + 6
        le = self.L("qfb")
        a(f"s_cmp_lt_u32 s70, {thresh}\ns_cbranch_scc1 {le}\ns_cmp_lg_u32 s71, 0\ns_cbranch_scc1 {le}\ns_cmp_eq_u32 s3, 3\ns_cbranch_scc1 {le}")
        a("s_mov_b32 s71, 1\ns_mov_b64 exec, s[64:65]")
        a(f"buffer_store_dwordx2 v[{QD}:{QD+1}], v{X0}, {WS}, s63 offen offset:{QP0T} sc1")
        a(f"s_mov_b64 exec, -1\ns_waitcnt vmcnt(0)\n{le}:")
    def read_fast(self):
        self.a(f"v_mov_b32 v{T[2]}, {L_CTRL+4}\nds_read_b32 v{T[2]}, v{T[2]}\ns_waitcnt lgkmcnt(0)\nv_readfirstlane_b32 s55, v{T[2]}\ns_lshr_b32 s55, s55, 1")
    def make_tag(self):
        self.a("s_waitcnt lgkmcnt(0)\ns_mul_i32 s74, s74, 1664525\ns_add_u32 s74, s74, 1013904223")
    def resid_add(self):
        a = self.a
        self.pair32(ACC, T[2], T[3])
        a(f"v_cvt_pk_bf16_f32 v{T[4]}, v{T[2]}, v{T[3]}")
        a(f"v_lshlrev_b32 v{T[2]}, 16, v{T[4]}\nv_and_b32 v{T[3]}, 0xffff0000, v{T[4]}")
        a(f"v_add_f32 v{T[2]}, v{T[2]}, v{X0}\nv_add_f32 v{T[3]}, v{T[3]}, v{X1}")
        a(f"v_cvt_pk_bf16_f32 v{T[4]}, v{T[2]}, v{T[3]}")
    def gather4(self, src, Q):
        a = self.a
        a(f"v_mov_b32 v{Q}, v{src}\nv_mov_b32 v{Q+1}, v{src}")
        a(f"v_permlane16_swap_b32 v{Q}, v{Q+1}")
        a(f"v_mov_b32 v{Q+2}, v{Q}\nv_mov_b32 v{Q+3}, v{Q+1}")
        a(f"v_permlane32_swap_b32 v{Q}, v{Q+2}\nv_permlane32_swap_b32 v{Q+1}, v{Q+3}")
    def unpackX_ops(self, src):
        return [f"v_lshlrev_b32 v{X0}, 16, v{src}", f"v_and_b32 v{X1}, 0xffff0000, v{src}"]
    def xstats_ops(self, s1, s2, tmp):
        return [f"v_add_f32 v{s1}, v{X0}, v{X1}", f"v_mul_f32 v{s2}, v{X0}, v{X0}", f"v_fmac_f32 v{s2}, v{X1}, v{X1}"] + self.red2_ops(s1, s2, (Q1, Q2, HM), tmp)
    def rows24_loads(self, off_arr):
        a = self.a
        self.sel_layer(58, off_arr)
        a(f"s_mul_i32 s60, s56, {BS}\ns_add_u32 s58, s58, s60\ns_add_u32 s60, s58, {10*BS}\ns_add_u32 s61, s58, {20*BS}")
        return [f"buffer_load_dwordx4 {q4(GB+4*n)}, v{aROW}, {WS}, s{(58,60,61)[n]} offen sc1" for n in range(3)]
    def consts(self):
        a = self.a
        t0, t1, t2 = T[0], T[1], T[2]
        a(f"v_and_b32 v{t0}, 1, v0\nv_mul_u32_u24 v{t0}, 0x202, v{t0}\nv_add_u32 v{t0}, 0x100, v{t0}")
        a(f"v_bfe_u32 v{t1}, v0, 1, 1\nv_lshlrev_b32 v{t1}, 4, v{t1}\nv_lshlrev_b32 v{t0}, v{t1}, v{t0}")
        a(f"v_mov_b32 v{t2}, 0x0c0c0000\nv_lshrrev_b32 v{t2}, v{t1}, v{t2}\nv_or_b32 v{t0}, v{t0}, v{t2}")
        a(f"v_bfe_u32 v{t1}, v0, 2, 2\nv_mov_b32 v{t2}, 0x0c0c0c0c")
        for d in range(4):
            a(f"v_cmp_eq_u32 vcc, {d}, v{t1}\nv_cndmask_b32 v{SEL+d}, v{t2}, v{t0}, vcc")
        a(f"v_mov_b32 v{t0}, 0x3f803f80")
        self.build_A(ONES, t0)
    def kwave_addrs(self):
        a = self.a
        t0, t1, t2 = T[0], T[1], T[2]
        a(f"v_lshrrev_b32 v{t0}, 3, v0\nv_and_b32 v{t1}, 7, v0\ns_mov_b32 s58, {32*BS}\nv_mul_lo_u32 v{aROW}, s58, v{t0}\nv_lshl_add_u32 v{aROW}, v{t1}, 4, v{aROW}")
        a(f"v_mul_u32_u24 v{aX2}, {BS}, v{t1}\nv_lshrrev_b32 v{t1}, 4, v0\nv_lshl_add_u32 v{aX2}, v{t1}, 6, v{aX2}")
        a(f"s_lshl_b32 s58, s56, 2\ns_add_u32 s58, s58, s53\nv_add_u32 v{aX2}, s58, v{aX2}")
        a(f"v_bfe_u32 v{t0}, v0, 3, 1\nv_lshl_add_u32 v{t0}, v{t0}, 2, v{t1}\nv_mul_u32_u24 v{aQG}, {BS}, v{t0}")
        a(f"v_and_b32 v{t0}, 7, v0\nv_lshl_add_u32 v{aQG}, v{t0}, 4, v{aQG}")
        a(f"s_mul_i32 s58, s6, {8*BS}\ns_add_u32 s58, s58, s53\nv_add_u32 v{aQG}, s58, v{aQG}")
        a(f"v_and_b32 v{t0}, 3, v0\nv_lshlrev_b32 v{t0}, 4, v{t0}\nv_lshl_add_u32 v{t0}, v{t1}, 2, v{t0}\nv_bfe_u32 v{t2}, v0, 2, 2\nv_add_u32 v{t0}, v{t0}, v{t2}")
        a(f"v_bfe_u32 v{t2}, v{t0}, 1, 2\nv_lshlrev_b32 v{ldsP}, 5, v{t2}\nv_lshrrev_b32 v{t2}, 3, v{t0}\nv_lshl_add_u32 v{ldsP}, v{t2}, 2, v{ldsP}")
        a(f"v_and_b32 v{t2}, 1, v{t0}\nv_lshl_add_u32 v{ldsP}, v{t2}, 1, v{ldsP}")
        a(f"s_lshl_b32 s58, s3, 7\ns_add_u32 s58, s58, {L_P}\nv_add_u32 v{ldsP}, s58, v{ldsP}")
        a(f"v_and_b32 v{t0}, 15, v0\nv_mul_u32_u24 v{aML}, {BS}, v{t1}\nv_lshl_add_u32 v{aML}, v{t0}, 4, v{aML}")
        a(f"v_lshlrev_b32 v{aST}, 4, v{t0}\nv_lshl_add_u32 v{aST}, v{t1}, 2, v{aST}\nv_lshlrev_b32 v{aXS}, 3, v{t0}")
    def vwave_addrs(self):
        a = self.a
        a("v_and_b32 v1, 7, v0\nv_lshrrev_b32 v2, 3, v0\nv_lshrrev_b32 v3, 4, v0")
        a("s_min_u32 s61, s57, 2\ns_lshl_b32 s58, s61, 2\ns_and_b32 s60, s3, 3\ns_add_u32 s58, s58, s60\ns_mul_i32 s60, s58, 43\ns_lshr_b32 s60, s60, 7")
        a("s_mul_i32 s61, s60, 3\ns_sub_u32 s58, s58, s61")
        a(f"s_mul_i32 s60, s60, {8*BS}\ns_add_u32 s60, s60, s53\ns_lshl_b32 s58, s58, 7\ns_add_u32 s58, s58, s60")
        a(f"v_mul_u32_u24 v{aQG}, {BS}, v2\nv_lshl_add_u32 v{aQG}, v1, 4, v{aQG}\nv_add_u32 v{aQG}, s58, v{aQG}")
        a(f"v_lshl_add_u32 v{aML}, v3, 1, v0\nv_and_b32 v{aML}, 7, v{aML}\nv_lshlrev_b32 v{aML}, 3, v{aML}\nv_add_u32 v{aML}, s60, v{aML}")
        a(f"s_and_b32 s58, s3, 3\ns_lshl_b32 s58, s58, 7\ns_add_u32 s58, s58, {L_P}\nv_lshlrev_b32 v{ldsP}, 5, v3\nv_add_u32 v{ldsP}, s58, v{ldsP}")
        a(f"s_mul_i32 s58, s6, {8*BS}\ns_add_u32 s58, s58, s53\ns_and_b32 s60, s3, 3\ns_lshl_b32 s60, s60, 7\ns_add_u32 s58, s58, s60\ns_lshl_b32 s60, s7, 4\ns_add_u32 s58, s58, s60")
        a(f"v_mul_u32_u24 v{aST}, {BS}, v1\nv_lshl_add_u32 v{aST}, v3, 2, v{aST}\nv_add_u32 v{aST}, s58, v{aST}")
        a(f"s_mul_i32 s58, s7, {BS}\ns_add_u32 s58, s58, s53\nv_add_u32 v{aX2}, s58, v{lane4}")
        a(f"v_and_b32 v{aXS}, 15, v0\nv_lshlrev_b32 v{aXS}, 3, v{aXS}\nv_mov_b32 v{aROW}, 0")
    def k_dma(self):
        a = self.a
        t = T[0]; t2 = T[1]
        a(f"v_lshrrev_b32 v{t}, 3, v0\nv_and_b32 v{t2}, 6, v{t}\nv_xor_b32 v{t2}, v{t2}, v0\nv_and_b32 v{t2}, 7, v{t2}")
        a(f"v_mul_u32_u24 v{t}, 384, v{t}\nv_lshl_add_u32 v{t}, v{t2}, 4, v{t}")
        a(f"s_and_b32 s60, s3, 3\ns_mul_i32 s60, s60, 24576\ns_add_u32 s60, s60, {L_K}\ns_mov_b32 s58, s59\ns_add_u32 s61, s59, {64*384}")
        a(f"v_mul_u32_u24 v{T[4]}, 384, v2\nv_lshl_add_u32 v{T[4]}, v1, 4, v{T[4]}")
        a("s_waitcnt lgkmcnt(0)")
        self.stamp(2)
        if self.B0IT == 0: a("s_barrier")
        self.stamp(3)
        a(f"s_add_u32 s62, s59, {3072*self.B0IT}")
        a("L_kdma:")
        for th in range(3):
            a(f"s_add_u32 m0, s60, {th*1024 - th*128}")
            a(f"buffer_load_dwordx4 v{t}, s[12:15], s58 offen offset:{th*128} nt lds")
        a("s_add_u32 s60, s60, 3072\ns_add_u32 s58, s58, 3072")
        if self.B0IT: a("s_cmp_lg_u32 s58, s62\ns_cbranch_scc1 L_kdma_nb\ns_barrier\nL_kdma_nb:")
        a("s_cmp_lt_u32 s58, s61\ns_cbranch_scc1 L_kdma")
    def k_to_regs(self):
        a = self.a
        t = T[0]; t2 = T[1]; t3 = T[2]
        a(f"v_and_b32 v{t}, 7, v0\nv_lshrrev_b32 v{t2}, 4, v0\nv_and_b32 v{t3}, 6, v0\nv_xor_b32 v{t2}, v{t2}, v{t3}")
        a(f"v_lshlrev_b32 v{t}, 7, v{t}\nv_bfe_u32 v{t3}, v0, 3, 1\nv_mul_u32_u24 v{t3}, 3072, v{t3}\nv_add_u32 v{t}, v{t}, v{t3}")
        a(f"s_mul_i32 s60, s3, 24576\nv_add_u32 v{t}, s60, v{t}")
        a(f"v_lshl_add_u32 v{t3}, v{t2}, 4, v{t}")
        a(f"v_xor_b32 v{t2}, 4, v{t2}\nv_lshl_add_u32 v{t2}, v{t2}, 4, v{t}")
        for tile in range(4):
            for u in range(6):
                off = L_K + (2 * tile * 3 + (u >> 1)) * 1024
                a(f"ds_read_b128 {q4(KV + (tile*6+u)*4)}, v{t2 if (u & 1) else t3} offset:{off}")
            if tile == 1: a("s_waitcnt lgkmcnt(0)")
        a("s_waitcnt lgkmcnt(0)")
    def wo_loads(self):
        a = self.a
        t1 = XA
        a(f"v_lshrrev_b32 v{t1}, 3, v0\nv_mul_u32_u24 v{t1}, 1280, v{t1}\nv_and_b32 v{XA+1}, 7, v0\nv_lshl_add_u32 v{t1}, v{XA+1}, 4, v{t1}")
        a("s_min_u32 s62, s57, 2\ns_mul_i32 s58, s4, 768\ns_lshl_b32 s60, s62, 8\ns_add_u32 s58, s58, s60\ns_and_b32 s60, s3, 3\ns_lshl_b32 s60, s60, 6\ns_add_u32 s58, s58, s60")
        a("s_mul_i32 s58, s58, 1280\ns_lshl_b32 s60, s56, 7\ns_add_u32 s58, s58, s60")
        a("s_cmp_ge_u32 s5, 30\ns_cselect_b32 s58, 0x7f000000, s58")
        for t in range(8):
            a(f"buffer_load_dwordx4 {q4(WB+4*t)}, v{t1}, s[24:27], s58 offen nt")
            if t < 7: a(f"s_add_u32 s58, s58, {8*1280}")
    def w1_loads(self):
        a = self.a
        t0, t1 = T[2], T[3]
        a(f"v_lshrrev_b32 v{t0}, 3, v0\nv_and_b32 v{t1}, 7, v0\nv_mul_u32_u24 v{t0}, 3072, v{t0}\nv_lshl_add_u32 v{t0}, v{t1}, 4, v{t0}")
        a(f"s_mul_i32 s58, s56, {64*3072}\ns_mul_i32 s60, s4, 384\ns_add_u32 s58, s58, s60\ns_lshl_b32 s60, s57, 7\ns_add_u32 s58, s58, s60")
        for t in range(8):
            a(f"buffer_load_dwordx4 {q4(WB+4*t)}, v{t0}, s[28:31], s58 offen nt")
            if t < 7: a(f"s_add_u32 s58, s58, {8*3072}")
    def w2_loads(self):
        a = self.a
        t0, t1 = T[2], T[3]
        a(f"v_lshrrev_b32 v{t0}, 3, v0\nv_and_b32 v{t1}, 7, v0\nv_mul_u32_u24 v{t0}, 1280, v{t0}\nv_lshl_add_u32 v{t0}, v{t1}, 4, v{t0}")
        a("s_mul_i32 s58, s4, 192\ns_lshl_b32 s60, s57, 6\ns_add_u32 s61, s58, s60\ns_mul_i32 s58, s61, 1280\ns_lshl_b32 s60, s56, 7\ns_add_u32 s58, s58, s60")
        for t in range(8):
            a(f"buffer_load_dwordx4 {q4(WB+4*t)}, v{t0}, s[36:39], s58 offen nt")
            if t < 7: a(f"s_add_u32 s58, s58, {8*1280}")
        a(f"v_bfe_u32 v{t0}, v0, 3, 1\nv_lshl_add_u32 v{t0}, v{t0}, 1, v{aP32}\ns_lshl_b32 s61, s61, 1")
        a(f"buffer_load_ushort v{B1V}, v{t0}, s[32:35], s61 offen")
    def clears(self, all_sc1):
        a = self.a
        C = XA + 4
        for i in range(4): a(f"v_mov_b32 v{C+i}, -1")
        a(f"v_lshlrev_b32 v{T[3]}, 4, v0")
        f = " sc1" if all_sc1 else ""
        a("s_mov_b32 exec_hi, 0")
        a(f"buffer_store_dwordx4 {q4(C)}, v{T[3]}, {WS}, s52 offen sc1")
        a("s_mov_b32 exec_lo, 0xffff")
        a(f"buffer_store_dwordx4 {q4(C)}, v{T[3]}, {WS}, s52 offen offset:2560{f}")
        a("s_mov_b64 exec, -1")
        for o in (512, 1536):
            a(f"buffer_store_dwordx4 {q4(C)}, v{T[3]}, {WS}, s52 offen offset:{o}{f}")
    def flag_store(self, base):
        a = self.a
        C = XA + 4
        if base == FL1:
            a("s_xor_b32 s58, s74, 0x5bd1e995\ns_andn2_b32 s58, s58, 15\ns_or_b32 s75, s75, s58")
        a(f"s_lshl_b32 s58, s4, 5\ns_add_u32 s58, s58, s5\ns_lshl_b32 s58, s58, 3\ns_add_u32 s58, s58, {base}")
        a(f"v_mov_b32 v{C}, s74\nv_mov_b32 v{C+1}, s75")
        a("s_mov_b64 exec, 1")
        a(f"buffer_store_dwordx2 v[{C}:{C+1}], v{aP32}, {WS}, s58 offen sc1")
        a("s_mov_b64 exec, -1")
    def flags_issue(self, base):
        a = self.a
        F = AB[0]
        a(f"v_lshlrev_b32 v{T[4]}, 5, v0\ns_mov_b32 s60, {base}")
        a(f"buffer_load_dwordx4 {q4(F)}, v{T[4]}, {WS}, s60 offen sc1\nbuffer_load_dwordx4 {q4(F+4)}, v{T[4]}, {WS}, s60 offen offset:16 sc1")
    def flags_wait(self, base, group_only):
        a = self.a
        F = AB[0]
        t, t2 = T[2], T[3]
        lp, lc, ld = self.L("fp"), self.L("fc"), self.L("fg")
        a("s_mov_b32 s70, 0\ns_or_b32 s61, s75, 15")
        if base == FL1: a(f"s_branch {lc}")
        a(f"{lp}:")
        self.flags_issue(base)
        a(f"{lc}:")
        a("s_waitcnt vmcnt(0)")
        a(f"v_xor_b32 v{t}, s74, v{F}")
        for i in range(1, 4):
            a(f"v_xor_b32 v{t2}, s74, v{F+2*i}\nv_or_b32 v{t}, v{t}, v{t2}")
        for i in range(4):
            a(f"v_or_b32 v{t2}, 15, v{F+2*i+1}\nv_xor_b32 v{t2}, s61, v{t2}\nv_or_b32 v{t}, v{t}, v{t2}")
        a(f"v_cmp_ne_u32 vcc, 0, v{t}")
        if group_only: a(f"s_and_b64 vcc, vcc, s[72:73]\ns_cbranch_scc0 {ld}")
        else: a(f"s_cbranch_vccz {ld}")
        a(f"s_sleep 16\ns_add_u32 s70, s70, 1\ns_cmp_lt_u32 s70, {POLL_LIMIT}\ns_cbranch_scc1 {lp}\n{ld}:")
    def flags_check(self):
        a = self.a
        F = AB[0]; t, t2 = T[2], T[3]
        lf = self.L("fast")
        a("s_lshl_b32 s58, s4, 3\ns_mov_b64 s[72:73], 0xff\ns_lshl_b64 s[72:73], s[72:73], s58")
        self.flags_wait(FL1, False)
        a(f"v_xor_b32 v{t}, s75, v{F+1}")
        for i in range(1, 4):
            a(f"v_xor_b32 v{t2}, s75, v{F+2*i+1}\nv_or_b32 v{t}, v{t}, v{t2}")
        a(f"v_cmp_ne_u32 vcc, 0, v{t}\ns_mov_b32 s55, 1\ns_and_b64 vcc, vcc, s[72:73]")
        if "forceslow" not in self.knobs: a(f"s_cbranch_scc0 {lf}")
        a("s_mov_b32 s55, 0")
        self.clears(True)
        a("s_waitcnt vmcnt(0)")
        self.flag_store(FL2)
        self.flags_wait(FL2, True)
        a(f"{lf}:")
        a(f"s_lshl_b32 s58, s55, 1\ns_or_b32 s58, s58, 1\nv_mov_b32 v{t}, s58\nv_mov_b32 v{T[3]}, {L_CTRL}\nds_write_b32 v{T[3]}, v{t} offset:4")
    def qproj(self, pair, s1, s2, pre_ops):
        a = self.a
        self.gemv_bcast(ACC, pair, WA, 10, fill=list(pre_ops) + self.ln_ops(s1, s2, T[2]))
        self.pair32(ACC, T[2], T[3])
        a(f"v_fma_f32 v{T[2]}, -v{s1}, v{CS0}, v{T[2]}\nv_fma_f32 v{T[3]}, -v{s1}, v{CS1}, v{T[3]}")
        a(f"v_mul_f32 v{T[2]}, v{T[2]}, v{s2}\nv_mul_f32 v{T[3]}, v{T[3]}, v{s2}")
        a(f"v_cvt_pk_bf16_f32 v{T[4]}, v{T[2]}, v{T[3]}")

    def gen(self):
        a = self.a
        a(f"; @launch grid=(256,1,1) block=(512,1,1) lds={LDS_BYTES}")
        a('.amdgcn_target "amdgcn-amd-amdhsa--gfx950"\n.text')
        a(f".globl {KNAME}\n.p2align 8\n.type {KNAME},@function")
        a(f"{KNAME}:")
        a("s_cmp_ge_u32 s2, 256\ns_cbranch_scc1 L_end")
        for _ in range(self.SHIFT): a("s_nop 0")
        if self.prof:
            for i in range(13): a(f"s_mov_b64 s[{76+2*i}:{77+2*i}], 0")
        self.stamp(0)
        ptr = {12: 8, 20: 24, 8: 0, 48: 88, 16: 16, 24: 32, 28: 48, 32: 56, 36: 64, 40: 72}
        size = {8: 1280, 12: 100663296, 16: 100663296, 20: 7864320, 24: 7864320, 28: 1966080, 32: 3072, 36: 1966080, 40: 1280,
                48: (PROF_OFF + 256 * 8 * 2 * 64) if self.prof else WS_USED}
        for s, off in ptr.items():
            a(f"s_load_dwordx2 s[{s}:{s+1}], s[0:1], {off}")
        a("v_lshrrev_b32 v1, 6, v0\nv_and_b32 v0, 63, v0\nv_readfirstlane_b32 s3, v1")
        if self.CPF0:
            a("s_getpc_b64 s[72:73]")
            a("L_pcref0:")
            a(f"s_sub_u32 s72, s72, L_pcref0-{KNAME}\ns_subb_u32 s73, s73, 0")
            a("s_and_b32 s58, s2, 0xf8\ns_add_u32 s58, s58, s3\ns_lshl_b32 s58, s58, 7")
            a(f"s_cmp_ge_u32 s58, L_end-{KNAME}\ns_cbranch_scc1 L_nocpf0")
            a(f"v_mov_b32 v2, s58\ns_mov_b64 exec, 1\nglobal_load_dword v{XA+5}, v2, s[72:73]\ns_mov_b64 exec, -1")
            a("L_nocpf0:")
        for s in ptr:
            a(f"s_mov_b32 s{s+2}, {size[s]}\ns_mov_b32 s{s+3}, 0x20000")
        a("s_and_b32 s4, s2, 7\ns_lshr_b32 s5, s2, 3\ns_lshr_b32 s6, s5, 3\ns_and_b32 s7, s5, 7")
        a(f"s_mul_i32 s53, s4, {32*BS}\ns_mul_i32 s52, s5, {BS}\ns_add_u32 s52, s52, s53")
        a("s_mov_b32 s54, 0\ns_mov_b32 s55, 0")
        a("s_getreg_b32 s75, hwreg(HW_REG_XCC_ID)\ns_and_b32 s75, s75, 15")
        a("s_cmp_ge_u32 s5, 10\ns_cselect_b32 s57, 1, 0\ns_cmp_ge_u32 s5, 20\ns_cselect_b32 s57, 2, s57\ns_cmp_ge_u32 s5, 30\ns_cselect_b32 s57, 3, s57")
        a("s_mul_i32 s58, s57, 10\ns_sub_u32 s56, s5, s58")
        a("s_mov_b32 s64, 0x00ff00ff\ns_mov_b32 s65, 0x00ff00ff")
        a("s_mov_b32 s66, 0xaaaaaaaa\ns_mov_b32 s67, 0xaaaaaaaa\ns_mov_b32 s68, 0xcccccccc\ns_mov_b32 s69, 0xcccccccc")
        a("s_mov_b32 s44, 0x03ff03ff\ns_mov_b32 s45, 0x03ff03ff\ns_mov_b32 s46, 1\ns_mov_b32 s47, 1")
        a("s_lshl_b32 s58, s4, 2\ns_add_u32 s58, s58, s6\ns_mul_i32 s59, s58, 3145728")
        a("s_lshl_b32 s58, s7, 8\ns_and_b32 s60, s3, 3\ns_lshl_b32 s60, s60, 6\ns_add_u32 s58, s58, s60\ns_add_u32 s58, s58, 6144\ns_mul_i32 s58, s58, 384\ns_add_u32 s59, s59, s58")
        a("v_and_b32 v1, 7, v0\nv_lshrrev_b32 v2, 3, v0\nv_lshrrev_b32 v3, 4, v0")
        a(f"v_lshlrev_b32 v{lane4}, 2, v0")
        a(f"v_lshlrev_b32 v{aP32}, 4, v1\nv_lshl_add_u32 v{aP32}, v3, 2, v{aP32}")
        a("s_cmp_lt_u32 s3, 4\ns_cbranch_scc1 L_pro_k")
        self.v_prologue()
        a("L_pro_k:")
        a(f"s_setprio 3\ns_mov_b32 s71, {GEN_OFF}")
        a("s_cmp_eq_u32 s3, 3\ns_cbranch_scc1 L_pro_c")
        XS = GB
        a(f"v_lshlrev_b32 v{T[0]}, 4, v0")
        a(f"v_and_b32 v{T[1]}, 15, v0\nv_lshlrev_b32 v{T[1]}, 7, v{T[1]}\nv_lshl_add_u32 v{T[1]}, v3, 2, v{T[1]}\ns_lshl_b32 s61, s7, 4")
        a(f"v_mul_u32_u24 v{T[2]}, 12288, v2\nv_lshl_add_u32 v{T[2]}, v1, 4, v{T[2]}")
        a(f"s_lshl_b32 s58, s4, 2\ns_add_u32 s58, s58, s6\ns_mul_i32 s58, s58, 384\ns_lshl_b32 s60, s3, 7\ns_add_u32 s58, s58, s60\ns_mul_i32 s60, s7, {8*12288}\ns_add_u32 s58, s58, s60")
        a("s_waitcnt lgkmcnt(0)")
        a(f"buffer_load_dwordx4 {q4(XS)}, v{T[0]}, s[8:11], 0 offen")
        a(f"buffer_load_dword v{XS+4}, v{lane4}, s[8:11], 0 offen offset:1024")
        a(f"buffer_load_dword v{XA}, v{T[1]}, s[8:11], s61 offen")
        for t in range(10 if "nowq" not in self.knobs else 0):
            a(f"buffer_load_dwordx4 {q4(WA+4*t)}, v{T[2]}, s[20:23], s58 offen nt")
            if t < 9: a(f"s_add_u32 s58, s58, {64*12288}")
        if self.QPW:
            a(f"v_mov_b32 v{XA+6}, -1\ns_lshl_b32 s60, s3, 8\ns_add_u32 s63, s52, s60")
            a(f"buffer_store_dword v{XA+6}, v{lane4}, {WS}, s63 offen offset:{QP0T+768}")
        a("s_barrier")
        a(f"s_buffer_load_dword s74, {WS}, s71")
        self.consts()
        self.kwave_addrs()
        self.make_tag()
        a(f"s_waitcnt vmcnt({11 + self.QPW})")
        s1, s2 = T[0], T[1]
        a(f"v_mov_b32 v{s1}, 0\nv_mov_b32 v{s2}, 0")
        for i in range(5):
            a(f"v_lshlrev_b32 v{T[2]}, 16, v{XS+i}\nv_and_b32 v{T[3]}, 0xffff0000, v{XS+i}")
            a(f"v_add_f32 v{s1}, v{s1}, v{T[2]}\nv_fmac_f32 v{s2}, v{T[2]}, v{T[2]}\nv_add_f32 v{s1}, v{s1}, v{T[3]}\nv_fmac_f32 v{s2}, v{T[3]}, v{T[3]}")
        for x in self.red2_ops(s1, s2, (Q1, Q2, HM, RM), T[2]): a(x)
        a(f"v_readlane_b32 s58, v{s1}, 0\nv_readlane_b32 s60, v{s1}, 32")
        a(f"v_mov_b32 v{s1}, s58\nv_mov_b32 v{s2}, s60")
        a(f"s_waitcnt vmcnt({self.QPW})")
        self.stamp(1)
        if "lo1" in self.knobs: a("s_branch L_fin2")
        for t in range(10):
            self.mfma(ACC + 4, ONES, WA + 4 * t, t == 0)
        self.pair32(ACC + 4, CS0, CS1)
        self.qproj(XA, s1, s2, [])
        QD = XA + 6
        a(f"v_mov_b32 v{QD}, v{T[4]}\nv_mov_b32 v{QD+1}, s74")
        a(f"v_and_b32 v{X0}, 7, v0\nv_lshlrev_b32 v{X0}, 3, v{X0}\nv_lshrrev_b32 v{T[2]}, 4, v0\nv_lshl_add_u32 v{X0}, v{T[2]}, 6, v{X0}")
        a("s_lshl_b32 s60, s3, 8\ns_add_u32 s63, s52, s60")
        a("s_mov_b64 exec, s[64:65]")
        a(f"buffer_store_dwordx2 v[{QD}:{QD+1}], v{X0}, {WS}, s63 offen offset:{QP0T+768}")
        a("s_mov_b64 exec, -1\ns_mov_b32 s71, 0")
        self.stamp(3)
        if "lo2" in self.knobs: a("s_branch L_fin2")
        a(f"s_mul_i32 s58, s3, 10752\ns_add_u32 s58, s58, {L_WQ}\nv_lshlrev_b32 v{T[0]}, 4, v0\nv_add_u32 v{T[0]}, s58, v{T[0]}")
        for t in range(10):
            a(f"ds_write_b128 v{T[0]}, {q4(WA+4*t)} offset:{1024*t}")
        a(f"v_add_u32 v{T[1]}, s58, v{lane4}\nds_write_b32 v{T[1]}, v{CS0} offset:10240\nds_write_b32 v{T[1]}, v{CS1} offset:10496")
        QA = [XA + 1, XA + 2]
        a(f"s_mul_i32 s62, s6, {8*BS}\ns_add_u32 s62, s62, s53\ns_lshl_b32 s58, s3, 7")
        for n in range(2):
            a(f"v_add_u32 v{T[0]}, s58, v0")
            if n: a(f"v_add_u32 v{T[0]}, 64, v{T[0]}")
            a(f"v_mul_u32_u24 v{T[1]}, 0x556, v{T[0]}\nv_lshrrev_b32 v{T[1]}, 16, v{T[1]}")
            a(f"v_mul_u32_u24 v{T[2]}, {BS - 768}, v{T[1]}\nv_lshl_add_u32 v{QA[n]}, v{T[0]}, 4, v{T[2]}")
        SETS = [[WB, WB + 4], [WB + 8, WB + 12]]
        def qissue(k):
            if k == 0: a("s_add_u32 s58, s62, 768")
            else: a(f"s_cmp_ge_u32 s70, {self.QFB}\ns_cselect_b32 s58, 0, 768\ns_add_u32 s58, s58, s62")
            for n in range(2):
                a(f"buffer_load_dwordx4 {q4(SETS[k][n])}, v{QA[n]}, {WS}, s58 offen offset:{QP0T} sc1")
        lp, ld = self.L("poll"), self.L("got")
        a(f"s_mov_b32 s70, 0\ns_sleep {self.QSLEEP0}")
        gots = [self.L("qg") for _ in range(2)]
        if self.Q1ST:
            qissue(0)
            a("s_waitcnt vmcnt(0)")
            a(f"v_mov_b32 v{T[0]}, s74\nv_mov_b32 v{T[1]}, s74")
            for r in SETS[0]:
                a(f"v_min3_u32 v{T[0]}, v{T[0]}, v{r+1}, v{r+3}\nv_max3_u32 v{T[1]}, v{T[1]}, v{r+1}, v{r+3}")
            a(f"v_cmp_ne_u32 vcc, v{T[0]}, v{T[1]}\ns_cbranch_vccz {gots[0]}")
        qissue(0); a(f"s_sleep {self.QSLEEP1}"); qissue(1)
        a(f"{lp}:")
        for k in range(2):
            a("s_waitcnt vmcnt(2)")
            a(f"v_mov_b32 v{T[0]}, s74\nv_mov_b32 v{T[1]}, s74")
            for r in SETS[k]:
                a(f"v_min3_u32 v{T[0]}, v{T[0]}, v{r+1}, v{r+3}\nv_max3_u32 v{T[1]}, v{T[1]}, v{r+1}, v{r+3}")
            a(f"v_cmp_ne_u32 vcc, v{T[0]}, v{T[1]}\ns_cbranch_vccz {gots[k]}")
            if k == 1:
                a("s_add_u32 s70, s70, 1")
                self.q_fallback(self.QFB)
            qissue(k)
        a(f"s_cmp_lt_u32 s70, {POLL_LIMIT}\ns_cbranch_scc1 {lp}")
        for k in range(2):
            a(f"{gots[k]}:")
            a(f"v_lshrrev_b32 v{T[0]}, 4, v0\nv_lshlrev_b32 v{T[0]}, 7, v{T[0]}\nv_and_b32 v{T[1]}, 3, v0\nv_lshl_add_u32 v{T[0]}, v{T[1]}, 5, v{T[0]}")
            a(f"v_bfe_u32 v{T[1]}, v0, 2, 2\nv_lshl_add_u32 v{T[0]}, v{T[1]}, 2, v{T[0]}\ns_lshl_b32 s58, s3, 10\ns_add_u32 s58, s58, {L_Q}\nv_add_u32 v{T[0]}, s58, v{T[0]}")
            for n in range(2):
                a(f"ds_write2_b32 v{T[0]}, v{SETS[k][n]}, v{SETS[k][n]+2} offset0:{128*n} offset1:{128*n+4}")
            if k < 1: a(f"s_branch {ld}")
        a(f"{ld}:")
        a(f"v_mov_b32 v{T[2]}, 1\nv_mov_b32 v{T[3]}, {L_CTRL+32}\ns_waitcnt lgkmcnt(0)\nds_add_u32 v{T[3]}, v{T[2]}")
        self.stamp(2)
        a("s_branch L_bk")
        a("L_pro_c:")
        a(f"v_mov_b32 v{T[0]}, 0")
        a("s_mov_b64 exec, 0xffff")
        a(f"ds_write_b32 v{lane4}, v{T[0]} offset:{L_CTRL}")
        a("s_mov_b64 exec, -1\ns_waitcnt lgkmcnt(0)")
        if self.B0E: a("s_barrier")
        if "noclr" not in self.knobs: self.clears(False)
        a(f"s_lshl_b32 s58, s56, 7\nbuffer_load_dword v{GB+4}, v{aP32}, s[8:11], s58 offen")
        if not self.B0E: a("s_barrier")
        a(f"s_buffer_load_dword s74, {WS}, s71")
        self.consts()
        self.kwave_addrs()
        self.make_tag()
        a("s_waitcnt vmcnt(0)")
        if "noclr" not in self.knobs: self.flag_store(FL1)
        self.stamp(1)
        for x in self.unpackX_ops(GB + 4): a(x)
        if not (self.knobs & {"lo1", "lo2"}) and "noclr" not in self.knobs:
            a(f"s_sleep {self.FLSL}")
            self.flags_issue(FL1)
            self.flags_check()
            self.stamp(2)
        a("L_bk:")
        if self.knobs & {"lo1", "lo2", "lo3"}: a("s_branch L_fin2")
        a(f"s_lshl_b32 s60, s3, 2\ns_add_u32 s60, s60, {L_CTRL+16}")
        self.lds_wait_flag("s60")
        self.stamp(10)
        self.k_to_regs()
        self.lds_wait_flag(L_CTRL + 32, 192, fb=64)
        self.stamp(11)
        a(f"v_and_b32 v{T[3]}, 7, v0\nv_mul_u32_u24 v{T[3]}, 384, v{T[3]}\nv_lshrrev_b32 v{T[4]}, 4, v0\nv_lshl_add_u32 v{T[3]}, v{T[4]}, 4, v{T[3]}")
        a(f"v_and_b32 v{T[4]}, 8, v0\nv_lshl_add_u32 v{T[3]}, v{T[4]}, 3, v{T[3]}")
        for u in range(3):
            a(f"ds_read_b128 {q4(GB+4*u)}, v{T[3]} offset:{L_Q + 128*u}")
        a("s_waitcnt lgkmcnt(0)")
        a("s_branch L_qk")

        a("L_kloop:")
        a("s_cmp_lg_u32 s3, 3\ns_cbranch_scc1 L_k_b1")
        a("s_cmp_ge_u32 s5, 10\ns_cbranch_scc1 L_k_pt")
        self.zgather(0, self.ZSL)
        s1, s2 = T[0], T[1]
        a("s_mov_b64 exec, s[64:65]")
        self.local_stores([f"buffer_store_dword v{T[4]}, v{aX2}, {WS}, 0 offen offset:{X2O}{{f}}"])
        a("s_mov_b64 exec, -1")
        for x in self.unpackX_ops(T[4]) + self.xstats_ops(s1, s2, T[2]): a(x)
        a(f"v_lshrrev_b32 v{T[2]}, 3, v0\nv_and_b32 v{T[2]}, 4, v{T[2]}\ns_lshl_b32 s58, s56, 3\ns_add_u32 s58, s58, s53\ns_add_u32 s58, s58, {7*BS}")
        a("s_mov_b64 exec, s[46:47]")
        self.local_stores([f"buffer_store_dword v{s1}, v{T[2]}, {WS}, s58 offen offset:{MISC}{{f}}"])
        a("s_mov_b64 exec, -1")
        self.stamp(2)
        a("L_k_pt:")
        a("L_k_b1:")
        a("s_barrier")
        self.sleep(self.QSL)
        self.poll([f"buffer_load_dwordx4 {q4(GB+4*u)}, v{aQG}, {WS}, 0 offen offset:{QP1 + 128*u} sc1" for u in range(3)], range(GB, GB + 12),
                  entry="L_qk", spec=[self.mfma_s(ACC + 4 * (u & 1), KV + 4 * u, GB + 4 * (u >> 1), u < 2) for u in range(4)], pipe=self.PQ)
        self.stamp(4)
        R = [XA, XA + 1, XA + 2, XA + 3]
        DE = [ACC, ACC + 8]; DO = [ACC + 4, ACC + 12]
        def lvl_ops(t):
            e, o = DE[t & 1], DO[t & 1]
            hm = lambda d, srcr, bank: f"v_add_f32_dpp v{d}, v{srcr}, v{srcr} row_half_mirror row_mask:0xf bank_mask:{hex(1<<bank)}"
            return [hm(T[2], e + 2, 0), hm(T[2], e + 3, 1), hm(R[t], e, 0), hm(R[t], e + 1, 1),
                    hm(T[2], o, 2), hm(T[2], o + 1, 3), hm(R[t], o + 2, 2), hm(R[t], o + 3, 3),
                    f"v_add_f32_dpp v{R[t]}, v{T[2]}, v{R[t]} row_ror:8 {DPPALL}",
                    f"v_add_f32_dpp v{R[t]}, v{R[t]}, v{R[t]} {Q1} {DPPALL}",
                    f"v_add_f32_dpp v{R[t]}, v{R[t]}, v{R[t]} {Q2} {DPPALL}"]
        pend = []
        S = T[0]; M = T[1]
        for t in range(4):
            for u in range(6):
                if t == 0 and u < 4: continue
                self.mfma((DO if u & 1 else DE)[t & 1], KV + (t * 6 + u) * 4, GB + 4 * (u >> 1), u < 2)
                if u >= 2:
                    for _ in range(3 if u < 5 else 2):
                        if pend: a(pend.pop(0))
            pend = lvl_ops(t)
            if t == 3:
                pend = [f"v_max3_f32 v{M}, v{R[0]}, v{R[1]}, v{R[2]}", f"v_cndmask_b32 v{R[0]}, v{R[0]}, v{R[1]}, s[66:67]"] + pend
        for x in pend: a(x)
        a(f"v_max_f32 v{M}, v{M}, v{R[3]}")
        a(f"v_cndmask_b32 v{R[2]}, v{R[2]}, v{R[3]}, s[66:67]\nv_cndmask_b32 v{S}, v{R[0]}, v{R[2]}, s[68:69]")
        a(f"v_max_f32_dpp v{M}, v{M}, v{M} row_ror:4 {DPPALL}")
        a(f"v_mul_f32 v{S}, 0x3dd53b95, v{S}")
        a(f"v_max_f32_dpp v{M}, v{M}, v{M} row_ror:8 {DPPALL}")
        a(f"v_mov_b32 v{T[2]}, v{M}\nv_permlane16_swap_b32 v{M}, v{T[2]}\nv_max_f32 v{M}, v{M}, v{T[2]}")
        a(f"v_mov_b32 v{T[2]}, v{M}\nv_permlane32_swap_b32 v{M}, v{T[2]}\nv_max_f32 v{M}, v{M}, v{T[2]}")
        a(f"v_mul_f32 v{M}, 0x3dd53b95, v{M}")
        a(f"v_sub_f32 v{S}, v{S}, v{M}\nv_exp_f32 v{S}, v{S}")
        a(f"v_cvt_pk_bf16_f32 v{S}, v{S}, v{S}")
        a(f"ds_write_b16 v{ldsP}, v{S}")
        a("s_cmp_eq_u32 s3, 3\ns_cbranch_scc1 L_qk_nf\ns_cmp_lg_u32 s54, 0\ns_cbranch_scc1 L_qk_nf")
        self.lds_wait_flag(L_CTRL + 4)
        a("s_lshr_b32 s55, s58, 1\ns_cmp_lg_u32 s55, 0\ns_cbranch_scc1 L_qk_nf")
        self.q_fallback(0)
        a("L_qk_nf:")
        a("s_waitcnt vmcnt(0) lgkmcnt(0)" if self.PQ else "s_waitcnt lgkmcnt(0)")
        self.stamp(5)
        a("s_barrier")
        a(f"v_lshlrev_b32 v{S}, 16, v{S}")
        self.allred64("v_add_f32", S, T[2])
        a(f"s_lshl_b32 s58, s3, 3\nv_mov_b32 v{T[2]}, s58")
        a("s_mov_b64 exec, 1")
        a(f"ds_write_b32 v{T[2]}, v{M} offset:{L_ML}\nds_write_b32 v{T[2]}, v{S} offset:{L_ML+4}")
        a("s_mov_b64 exec, -1")
        a("s_cmp_lg_u32 s3, 3\ns_cbranch_scc1 L_k_b3")
        a("s_cmp_eq_u32 s54, 0\ns_cbranch_scc1 L_c_b3")
        a("L_c_x2:")
        a("s_cmp_lt_u32 s5, 10\ns_cbranch_scc1 L_c_b3")
        self.poll([f"buffer_load_dword v{GB}, v{aX2}, {WS}, 0 offen offset:{X2O} sc1"], [GB])
        for x in self.unpackX_ops(GB): a(x)
        a("L_c_b3:")
        a("s_waitcnt lgkmcnt(0)\ns_barrier")
        a("s_cmp_ge_u32 s5, 30\ns_cbranch_scc1 L_k_next")
        if self.LL == 3:
            a("s_cmp_lg_u32 s54, 0\ns_cbranch_scc1 L_c_b4")
            self.w1_loads()
            a("L_c_b4:")
        if self.B3B:
            a("s_cmp_lg_u32 s54, 0\ns_cbranch_scc1 L_c_nb3b\ns_barrier")
            self.w1_loads()
            a("L_c_nb3b:")
        a("s_barrier")
        a("s_cmp_lg_u32 s54, 0\ns_cbranch_scc1 L_p4_nocs")
        if self.LL == 4 and not self.B3B: self.w1_loads()
        yl = self.rows24_loads(YO)
        self.sleep(self.YSL0)
        for x in yl: a(x)
        a("s_mov_b32 s70, 0\ns_waitcnt vmcnt(3)")
        for t in range(8): self.mfma(ACC, ONES, WB + 4 * t, t == 0)
        self.l64(ACC, CS0)
        self.local_stores([f"buffer_store_dword v{CS0}, v{aST}, {WS}, s52 offen offset:{HPC}{{f}}"])
        a("s_branch L_p4_chk")
        a("L_p4_nocs:")
        yl = self.rows24_loads(YO)
        self.sleep(self.YSL)
        self.poll(yl, range(GB, GB + 12), entry="L_p4_chk", spec=[self.mfma_s(ACC, ONES, GB + 4 * n, n == 0) for n in range(3)])
        a("s_barrier")
        self.stamp(8)
        self.sel_layer(58, HPR, 52)
        a(f"s_mul_i32 s60, s54, 3\ns_add_u32 s60, s60, s57\ns_add_u32 s60, s60, 1\ns_mul_i32 s60, s60, {BS}\ns_add_u32 s60, s60, s53\ns_lshl_b32 s61, s56, 3\ns_add_u32 s60, s60, s61")
        self.resid_add()
        s1, s2 = T[0], T[1]
        self.gemv_bcast(ACC + 4, T[4], WB, 8, fill=self.unpackX_ops(T[4]) + self.xstats_ops(s1, s2, T[2]) + [f"v_lshrrev_b32 v{T[2]}, 3, v0", f"v_and_b32 v{T[2]}, 4, v{T[2]}"])
        self.l64(ACC + 4, T[3])
        self.local_stores([f"buffer_store_dword v{T[3]}, v{aST}, {WS}, s58 offen{{f}}", "s_mov_b64 exec, s[46:47]",
                           f"buffer_store_dword v{s1}, v{T[2]}, {WS}, s60 offen offset:{MISC}{{f}}"])
        a("s_mov_b64 exec, -1")
        self.stamp(9)
        self.dump0()
        a("s_barrier")
        a("s_cmp_lg_u32 s54, 0\ns_cbranch_scc1 L_final\ns_mov_b32 s54, 1\ns_branch L_kloop")
        a("L_k_b3:")
        if self.LL2 == 2:
            a("s_cmp_lg_u32 s54, 0\ns_cbranch_scc1 L_k_b3a\ns_cmp_lg_u32 s3, 0\ns_cbranch_scc1 L_k_b3a")
            self.w2_loads()
            a("L_k_b3a:")
        if self.CPF:
            self.code_prefetch()
        a(f"s_lshl_b32 s58, s3, 8\nv_add_u32 v{T[3]}, s58, v{lane4}\nv_mov_b32 v{T[4]}, {L_ML}")
        self.sel_layer(58, OP, 52)
        a("s_lshl_b32 s60, s3, 7\ns_add_u32 s60, s60, s58")
        a(f"s_mul_i32 s61, s7, {BS - 8}\ns_sub_u32 s61, s52, s61\ns_lshl_b32 s58, s54, 6\ns_add_u32 s61, s61, s58")
        a("s_waitcnt lgkmcnt(0)\ns_barrier")
        self.stamp(6)
        a(f"ds_read_b128 {q4(GB)}, v{T[4]}\nds_read_b128 {q4(GB+4)}, v{T[4]} offset:16")
        for w in range(4):
            a(f"ds_read_b32 v{GB+8+w}, v{T[3]} offset:{L_O + 768*w}")
        a("s_waitcnt lgkmcnt(0)")
        M = GB + 12; Lr = GB + 13
        a(f"v_max3_f32 v{M}, v{GB}, v{GB+2}, v{GB+4}\nv_max_f32 v{M}, v{M}, v{GB+6}")
        for w in range(4): a(f"v_sub_f32 v{GB+2*w}, v{GB+2*w}, v{M}")
        for w in range(4): a(f"v_exp_f32 v{GB+2*w}, v{GB+2*w}")
        a(f"v_mul_f32 v{Lr}, v{GB}, v{GB+1}\nv_mul_f32 v{T[0]}, v{GB}, v{GB+8}")
        for w in range(1, 4):
            a(f"v_fmac_f32 v{Lr}, v{GB+2*w}, v{GB+2*w+1}\nv_fmac_f32 v{T[0]}, v{GB+2*w}, v{GB+8+w}")
        a(f"v_rcp_f32 v{T[1]}, v{Lr}\nv_mul_f32 v{T[0]}, v{T[0]}, v{T[1]}")
        a(f"v_mov_b32_dpp v{T[1]}, v{T[0]} row_ror:8 {DPPALL}\nv_cvt_pk_bf16_f32 v{T[0]}, v{T[0]}, v{T[1]}")
        a("s_mov_b64 exec, s[64:65]")
        lz = self.L("z")
        self.local_stores([f"buffer_store_dword v{T[0]}, v{aP32}, {WS}, s60 offen{{f}}"])
        a(f"s_cmp_lg_u32 s3, 1\ns_cbranch_scc1 {lz}\ns_mov_b64 exec, 1")
        self.local_stores([f"buffer_store_dwordx2 v[{M}:{Lr}], v{aP32}, {WS}, s61 offen offset:{MISC}{{f}}"])
        a(f"{lz}:\ns_mov_b64 exec, -1")
        self.stamp(7)
        a("s_cmp_ge_u32 s5, 30\ns_cbranch_scc1 L_k_next")
        if self.LL2 == 3:
            a("s_cmp_lg_u32 s54, 0\ns_cbranch_scc1 L_k_b4a\ns_cmp_lg_u32 s3, 0\ns_cbranch_scc1 L_k_b4a")
            self.w2_loads()
            a("L_k_b4a:")
        if self.B3B:
            a("s_cmp_lg_u32 s54, 0\ns_cbranch_scc1 L_k_nb3b\ns_barrier\ns_cmp_lg_u32 s3, 0\ns_cbranch_scc1 L_k_nb3b")
            self.w2_loads()
            a("L_k_nb3b:")
        a("s_barrier")
        a("s_cmp_eq_u32 s3, 0\ns_cbranch_scc1 L_p5")
        a("s_cmp_lg_u32 s3, 1\ns_cbranch_scc1 L_k_b5")
        self.sel_layer(58, HPR, 52)
        a(f"v_lshlrev_b32 v{T[0]}, 7, v0\ns_mov_b64 exec, 3")
        a(f"buffer_load_dword v{GB}, v{T[0]}, {WS}, s58 offen sc1\nbuffer_load_dword v{GB+1}, v{T[0]}, {WS}, s52 offen offset:{HPC} sc1")
        a(f"buffer_load_dword v{GB+2}, v{lane4}, {WS}, s52 offen offset:{MISC} sc1\ns_mov_b64 exec, -1")
        a("L_k_b5:")
        a("s_barrier\ns_barrier")
        a("s_branch L_k_next")
        a("L_p5:")
        a(f"s_mul_i32 s62, s57, {10*BS}\ns_add_u32 s62, s62, s53")
        def hp_gather(with_stats, slp=0):
            for i in range(8, 14): a(f"v_mov_b32 v{GB+i}, 0")
            loads = [f"buffer_load_dwordx4 {q4(GB)}, v{aML}, {WS}, s58 offen sc1",
                     f"buffer_load_dwordx4 {q4(GB+4)}, v{aML}, {WS}, s60 offen sc1",
                     "s_mov_b32 exec_hi, 0",
                     f"buffer_load_dwordx4 {q4(GB+8)}, v{aML}, {WS}, s61 offen sc1"]
            if with_stats:
                loads += ["s_mov_b64 exec, s[44:45]", f"buffer_load_dwordx2 v[{GB+12}:{GB+13}], v{aXS}, {WS}, s63 offen offset:{MISC} sc1"]
            loads += ["s_mov_b64 exec, -1"]
            return loads, range(GB, GB + (14 if with_stats else 12))
        def hp_reduce_ops(dst):
            U = GB + 16
            o = [f"v_add_f32 v{U+i}, v{GB+i}, v{GB+4+i}" for i in range(4)] + [f"v_add_f32 v{U+i}, v{U+i}, v{GB+8+i}" for i in range(4)]
            o += [f"v_permlane32_swap_b32 v{U}, v{U+2}", f"v_permlane32_swap_b32 v{U+1}, v{U+3}",
                  f"v_add_f32 v{U}, v{U}, v{U+2}", f"v_add_f32 v{U+1}, v{U+1}, v{U+3}",
                  f"v_permlane16_swap_b32 v{U}, v{U+1}", f"v_add_f32 v{dst}, v{U}, v{U+1}"]
            return o
        a("s_cmp_lg_u32 s54, 0\ns_cbranch_scc1 L_p5_nocs")
        if self.LL2 == 4 and not self.B3B: self.w2_loads()
        if self.LL2 == 5:
            a(f"s_sleep {self.W2SL}")
            self.w2_loads()
        a(f"s_add_u32 s58, s62, {HPC}\ns_add_u32 s60, s58, {4*BS}\ns_add_u32 s61, s58, {8*BS}")
        a("s_barrier")
        ld_, rg_ = hp_gather(False)
        self.poll(ld_, rg_)
        for x in hp_reduce_ops(CSW1): a(x)
        a(f"v_lshlrev_b32 v{B1V}, 16, v{B1V}")
        a("s_branch L_p5_g")
        a("L_p5_nocs:")
        a("s_barrier")
        self.sleep(self.HSL)
        a("L_p5_g:")
        self.sel_layer(58, HPR, 62)
        a(f"s_add_u32 s60, s58, {4*BS}\ns_add_u32 s61, s58, {8*BS}")
        a(f"s_mul_i32 s63, s54, 3\ns_add_u32 s63, s63, s57\ns_add_u32 s63, s63, 1\ns_mul_i32 s63, s63, {BS}\ns_add_u32 s63, s63, s53")
        ld_, rg_ = hp_gather(True)
        self.poll(ld_, rg_, pipe=self.PH)
        self.stamp(8)
        s1, s2 = GB + 14, GB + 15
        H = T[0]
        c1 = self.row16_ops(s1, s2, GB + 12, GB + 13) + self.ln_ops(s1, s2, T[5])
        c2 = hp_reduce_ops(H)
        while c1 or c2:
            if c1: a(c1.pop(0))
            if c1 and len(c1) > 14: a(c1.pop(0))
            if c2: a(c2.pop(0))
        self.sel_layer(58, ZO, 52)
        a(f"v_fma_f32 v{H}, -v{s1}, v{CSW1}, v{H}\nv_mul_f32 v{H}, v{H}, v{s2}")
        self.bf16r(H, H)
        a(f"v_add_f32 v{H}, v{H}, v{B1V}")
        self.bf16r(H, H)
        E = T[1]; N = T[2]; Dn = T[3]
        a(f"v_mul_f32 v{E}, 0x3fb8aa3b, v{H}\nv_exp_f32 v{E}, -|v{E}|")
        a(f"v_cmp_gt_f32 vcc, 0, v{H}\nv_mov_b32 v{T[4]}, 2.0")
        a(f"v_fma_f32 v{N}, v{E}, 2.0, 1.0\nv_add_f32 v{Dn}, 2.0, v{E}\nv_mul_f32 v{Dn}, v{Dn}, v{E}")
        a(f"v_mul_f32 v{E}, v{E}, v{E}\nv_add_f32 v{E}, v{E}, v{E}")
        a(f"v_cndmask_b32 v{N}, v{N}, v{Dn}, vcc\nv_cndmask_b32 v{E}, v{E}, v{T[4]}, vcc")
        a(f"v_add_f32 v{Dn}, v{N}, v{E}\nv_rcp_f32 v{Dn}, v{Dn}\nv_mul_f32 v{N}, v{N}, v{H}\nv_mul_f32 v{N}, v{N}, v{Dn}")
        a(f"v_mov_b32_dpp v{E}, v{N} row_ror:8 {DPPALL}\nv_cvt_pk_bf16_f32 v{T[4]}, v{N}, v{E}")
        self.gemv_bcast(ACC, T[4], WB, 8)
        self.pair32(ACC, T[0], T[1])
        a(f"v_cvt_pk_bf16_f32 v{T[0]}, v{T[0]}, v{T[1]}")
        if self.G4:
            self.gather4(T[0], AB[0])
            a("s_mov_b64 exec, 0xff")
            a(f"buffer_store_dwordx4 {q4(AB[0])}, v{aP32}, {WS}, s58 offen sc1")
        else:
            a("s_mov_b64 exec, s[64:65]")
            a(f"buffer_store_dword v{T[0]}, v{aP32}, {WS}, s58 offen sc1")
        a("s_mov_b64 exec, -1")
        self.stamp(9)
        a("s_barrier")
        a("L_k_next:")
        a("s_cmp_lg_u32 s54, 0\ns_cbranch_scc1 L_final")
        self.dump_stamps()
        a("s_mov_b32 s54, 1")
        a("s_cmp_lg_u32 s3, 2\ns_cbranch_scc1 L_kloop")
        a("s_cmp_lg_u32 s2, 0\ns_cbranch_scc1 L_nogen")
        a(f"s_mov_b64 exec, 1\nv_mov_b32 v{T[0]}, s74\nv_mov_b32 v{T[1]}, {GEN_OFF}")
        a(f"buffer_store_dword v{T[0]}, v{T[1]}, {WS}, 0 offen sc1")
        a("s_mov_b64 exec, -1\nL_nogen:")
        for u in range(3):
            a(f"buffer_load_dword v{GB+4+u}, v{aQG}, {WS}, 0 offen offset:{QP1 + 128*u} sc1")
        a("s_branch L_kloop")
        a("L_final:")
        a("s_cmp_lg_u32 s3, 3\ns_cbranch_scc1 L_fin2\ns_cmp_lg_u32 s4, 0\ns_cbranch_scc1 L_fin2\ns_cmp_ge_u32 s5, 10\ns_cbranch_scc1 L_fin2")
        self.zgather(1, self.FSL)
        a("s_lshl_b32 s58, s5, 7")
        a("s_mov_b64 exec, s[64:65]")
        a(f"buffer_store_dword v{T[4]}, v{aP32}, s[40:43], s58 offen{' sc1' if self.OSC else ''}")
        a("s_mov_b64 exec, -1")
        self.stamp(11)
        a("L_fin2:")
        self.dump_stamps()
        a("s_endpgm")

        a("L_vloop:")
        a(f"buffer_load_dword v{XA+2}, v{aQG}, {WS}, 0 offen offset:{OP[1]} sc1")
        a("s_cmp_eq_u32 s3, 7\ns_cbranch_scc1 L_v7_b1")
        a(f"v_mov_b32 v{GB}, 0\nv_mov_b32 v{GB+2}, 0\nv_mov_b32 v{GB+3}, 0\ns_add_u32 s58, s53, {7*BS}")
        self.sleep(self.XSL)
        self.poll(["s_mov_b64 exec, s[44:45]", f"buffer_load_dword v{GB}, v{aX2}, {WS}, 0 offen offset:{X2O} sc1",
                   f"buffer_load_dwordx2 v[{GB+2}:{GB+3}], v{aXS}, {WS}, s58 offen offset:{MISC} sc1", "s_mov_b64 exec, -1"], [GB, GB + 2, GB + 3], slp=self.XSLP, pipe=self.PX)
        a("s_barrier")
        self.stamp(1)
        self.qproj(GB, T[0], T[1], self.row16_ops(T[0], T[1], GB + 2, GB + 3))
        if self.Q4:
            self.gather4(T[4], AB[0])
            a("s_mov_b64 exec, 0xff")
            self.local_stores([f"buffer_store_dwordx4 {q4(AB[0])}, v{aST}, {WS}, 0 offen offset:{QP1}{{f}}"])
        else:
            a("s_mov_b64 exec, s[64:65]")
            self.local_stores([f"buffer_store_dword v{T[4]}, v{aST}, {WS}, 0 offen offset:{QP1}{{f}}"])
        a("s_mov_b64 exec, -1")
        self.stamp(3)
        a("s_branch L_v_b2")
        a("L_v7_b1:")
        a("s_barrier")
        a("L_v_b2:")
        a(f"s_and_b32 s58, s3, 3\ns_mul_i32 s58, s58, 768\nv_add_u32 v{T[3]}, s58, v{lane4}")
        a("s_cmp_eq_u32 s54, 0\ns_cbranch_scc1 L_v_b2a\ns_waitcnt vmcnt(0)\nL_v_b2a:")
        a("s_barrier")
        self.stamp(5)
        a(f"ds_read_b128 {q4(GB)}, v{ldsP}\nds_read_b128 {q4(GB+4)}, v{ldsP} offset:16")
        a("s_cmp_lg_u32 s54, 0\ns_cbranch_scc1 L_v_nowo")
        self.wo_loads()
        a("L_v_nowo:")
        a("s_waitcnt lgkmcnt(0)")
        self.al()
        self.build_A(AB[0], GB)
        for G in range(8):
            a(f"s_waitcnt vmcnt({8 + 21 - 3*G})")
            for th in range(3):
                self.mfma(ACC + 4 * th, AB[G & 1], KV + (G * 3 + th) * 4, G == 0)
                if G + 1 < 8 and th < 2:
                    for d in (2 * th, 2 * th + 1):
                        a(f"v_perm_b32 v{AB[(G+1)&1]+d}, v{GB+G+1}, v{GB+G+1}, v{SEL+d}")
        for th in range(3):
            self.l64(ACC + 4 * th, T[th])
            a(f"ds_write_b32 v{T[3]}, v{T[th]} offset:{L_O + 256*th}")
        self.sel_layer(58, OP)
        a("s_lshl_b32 s60, s54, 6")
        a("s_waitcnt lgkmcnt(0)\ns_barrier")
        self.stamp(6)
        a("s_cmp_ge_u32 s5, 30\ns_cbranch_scc1 L_v_next")
        self.sleep(self.OSL)
        self.poll([f"buffer_load_dwordx4 {q4(GB)}, v{aQG}, {WS}, s58 offen sc1",
                   f"buffer_load_dwordx2 v[{GB+4}:{GB+5}], v{aML}, {WS}, s60 offen offset:{MISC} sc1"], range(GB, GB + 6),
                  spec=[f"v_max_f32_dpp v{T[0]}, v{GB+4}, v{GB+4} {Q1} {DPPALL}", f"v_max_f32_dpp v{T[0]}, v{T[0]}, v{T[0]} {Q2} {DPPALL}", f"v_max_f32_dpp v{T[0]}, v{T[0]}, v{T[0]} {HM} {DPPALL}"], pipe=self.PO)
        if self.B3B: a("s_cmp_lg_u32 s54, 0\ns_cbranch_scc1 L_v_nb3b\ns_barrier\nL_v_nb3b:")
        self.stamp(8)
        M = T[0]; W = T[1]
        a(f"v_sub_f32 v{W}, v{GB+4}, v{M}\nv_exp_f32 v{W}, v{W}\nv_mul_f32 v{W}, v{W}, v{GB+5}")
        a(f"v_mov_b32_dpp v{T[2]}, v{W} row_newbcast:0 {DPPALL}\nv_mov_b32_dpp v{T[3]}, v{W} row_newbcast:1 {DPPALL}")
        a(f"v_cvt_pk_bf16_f32 v{T[2]}, v{T[2]}, v{T[3]}")
        self.build_A(AB[0], T[2])
        self.bf16r(W, W)
        self.mfma(ACC, AB[0], GB, True)
        for c in (Q1, Q2, HM):
            a(f"v_add_f32_dpp v{W}, v{W}, v{W} {c} {DPPALL}")
        a(f"v_rcp_f32 v{W}, v{W}")
        self.pair32(ACC, T[2], T[3])
        a(f"v_mul_f32 v{T[2]}, v{T[2]}, v{W}\nv_mul_f32 v{T[3]}, v{T[3]}, v{W}\nv_cvt_pk_bf16_f32 v{T[4]}, v{T[2]}, v{T[3]}")
        self.gemv_bcast(ACC + 4, T[4], WB, 8)
        a(f"s_and_b32 s58, s3, 3\ns_lshl_b32 s58, s58, 8\nv_add_u32 v{T[3]}, s58, v{lane4}")
        self.l64(ACC + 4, T[0])
        a(f"ds_write_b32 v{T[3]}, v{T[0]} offset:{L_YR}")
        self.sel_layer(58, YO, 52)
        a("s_waitcnt vmcnt(0) lgkmcnt(0)\ns_barrier")
        a("s_cmp_lg_u32 s3, 7\ns_cbranch_scc1 L_v_b5")
        for w in range(4): a(f"ds_read_b32 v{GB+w}, v{lane4} offset:{L_YR + 256*w}")
        a("s_waitcnt lgkmcnt(0)")
        a(f"v_add_f32 v{GB}, v{GB}, v{GB+1}\nv_add_f32 v{GB+2}, v{GB+2}, v{GB+3}\nv_add_f32 v{T[0]}, v{GB}, v{GB+2}")
        a(f"v_mov_b32_dpp v{T[1]}, v{T[0]} row_ror:8 {DPPALL}\nv_cvt_pk_bf16_f32 v{T[0]}, v{T[0]}, v{T[1]}")
        if self.G4:
            self.gather4(T[0], AB[0])
            a("s_mov_b64 exec, 0xff")
            a(f"buffer_store_dwordx4 {q4(AB[0])}, v{aP32}, {WS}, s58 offen sc1")
        else:
            a("s_mov_b64 exec, s[64:65]")
            a(f"buffer_store_dword v{T[0]}, v{aP32}, {WS}, s58 offen sc1")
        a("s_mov_b64 exec, -1")
        self.stamp(9)
        a("L_v_b5:")
        a("s_cmp_lg_u32 s54, 0\ns_cbranch_scc1 L_v_b5b")
        self.v_fetch_wq()
        self.dump_stamps()
        a("L_v_b5b:")
        a("s_barrier\ns_barrier")
        a("s_cmp_lg_u32 s54, 0\ns_cbranch_scc1 L_fin2")
        a("s_mov_b32 s54, 1\ns_branch L_vloop")
        a("L_v_next:")
        a("s_cmp_lg_u32 s54, 0\ns_cbranch_scc1 L_fin2")
        self.v_fetch_wq()
        self.dump_stamps()
        a("s_mov_b32 s54, 1\ns_sleep 48\ns_branch L_vloop")
        self.flush_ool()
        a("L_end:\ns_endpgm")
        a('.section .rodata,"a"\n.p2align 6')
        a(f".amdhsa_kernel {KNAME}")
        a(".amdhsa_next_free_vgpr 256\n.amdhsa_next_free_sgpr 102\n.amdhsa_accum_offset 256\n.amdhsa_group_segment_fixed_size 0\n.amdhsa_kernarg_size 96")
        a(".amdhsa_user_sgpr_count 2\n.amdhsa_user_sgpr_kernarg_segment_ptr 1\n.amdhsa_system_sgpr_workgroup_id_x 1\n.end_amdhsa_kernel")
        return a.render()

    def code_prefetch(self):
        a = self.a
        le = self.L("cpf")
        a(f"s_cmp_lg_u32 s3, 1\ns_cbranch_scc1 {le}\ns_cmp_lg_u32 s54, 0\ns_cbranch_scc1 {le}")
        a("s_getpc_b64 s[72:73]")
        a("L_pcref:")
        a(f"s_sub_u32 s72, s72, L_pcref-{KNAME}\ns_subb_u32 s73, s73, 0")
        a(f"v_lshlrev_b32 v{T[0]}, 5, v0\nv_add_u32 v{T[0]}, s5, v{T[0]}\nv_lshlrev_b32 v{T[0]}, 7, v{T[0]}")
        a(f"v_mov_b32 v{T[1]}, L_end-{KNAME}\nv_cmp_lt_u32 vcc, v{T[0]}, v{T[1]}\ns_and_b64 exec, vcc, exec")
        a(f"global_load_dword v{XA+5}, v{T[0]}, s[72:73] sc1")
        a("s_mov_b64 exec, -1")
        a(f"{le}:")

    def v_prologue(self):
        a = self.a
        if "dbl" in self.knobs:
            a(f"v_mul_u32_u24 v{T[0]}, 384, v2\nv_lshl_add_u32 v{T[0]}, v1, 4, v{T[0]}\ns_sub_u32 s61, s59, {6144*384}")
            for srd in ("s[12:15]", "s[16:19]"):
                for n in range(24):
                    rg, th = divmod(n, 3)
                    if th == 0: a(f"s_add_u32 s58, s61, {rg*8*384}")
                    a(f"buffer_load_dwordx4 {q4(KV+4*n)}, v{T[0]}, {srd}, s58 offen offset:{th*128} nt")
            a("s_waitcnt vmcnt(12)")
        self.k_dma()
        for n in range(24):
            rg, th = divmod(n, 3)
            if n == self.NB:
                a(f"s_lshl_b32 s60, s3, 2\nv_mov_b32 v{T[2]}, s60\nv_mov_b32 v{T[3]}, 1")
                a(f"s_waitcnt vmcnt({self.NB})\nds_write_b32 v{T[2]}, v{T[3]} offset:{L_CTRL}")
                self.stamp(11)
            if th == 0: a(f"s_add_u32 s58, s59, {rg*8*384}")
            a(f"buffer_load_dwordx4 {q4(KV+4*n)}, v{T[4]}, s[16:19], s58 offen offset:{th*128} nt")
        self.stamp(1)
        if self.knobs & {"lo1", "lo2", "lo3"}:
            if "wo" in self.knobs:
                self.wo_loads()
                a("s_waitcnt vmcnt(8)")
                self.stamp(5)
            a("s_waitcnt vmcnt(0)")
            self.stamp(6)
            a("s_branch L_fin2")
        self.consts()
        self.vwave_addrs()
        a("s_branch L_v_b2")

    def v_fetch_wq(self):
        a = self.a
        a(f"s_and_b32 s58, s3, 3\ns_min_u32 s58, s58, 2\ns_mul_i32 s58, s58, 10752\ns_add_u32 s58, s58, {L_WQ}\nv_lshlrev_b32 v{T[0]}, 4, v0\nv_add_u32 v{T[0]}, s58, v{T[0]}")
        for t in range(10):
            a(f"ds_read_b128 {q4(WA+4*t)}, v{T[0]} offset:{1024*t}")
        a(f"v_add_u32 v{T[1]}, s58, v{lane4}\nds_read_b32 v{CS0}, v{T[1]} offset:10240\nds_read_b32 v{CS1}, v{T[1]} offset:10496")
        self.read_fast()
        a(f"s_add_u32 s58, s53, {7*BS}\nbuffer_load_dword v{XA+3}, v{aX2}, {WS}, 0 offen offset:{X2O} sc1\nbuffer_load_dword v{XA+4}, v{aXS}, {WS}, s58 offen offset:{MISC} sc1")

    def zgather(self, layer, slp):
        a = self.a
        a(f"s_mul_i32 s58, s56, {BS}\ns_add_u32 s60, s58, {10*BS}\ns_add_u32 s61, s58, {20*BS}")
        self.sleep(slp)
        self.poll([f"buffer_load_dwordx4 {q4(GB+4*n)}, v{aROW}, {WS}, s{(58,60,61)[n]} offen offset:{ZO[layer]} sc1" for n in range(3)], range(GB, GB + 12),
                  spec=[self.mfma_s(ACC, ONES, GB + 4 * n, n == 0) for n in range(3)], pipe=self.PZ)
        self.stamp(10 if layer else 1)
        self.resid_add()

REF = "interleave_layers__sliding_block_cached__dense_activation_mish__decode.s.ref"
HEADER = open(REF).read().split("; Override")[0] if os.path.exists(REF) else ""

if __name__ == "__main__":
    prof = {"prof": 1, "lite": 3}.get(sys.argv[2], 0) if len(sys.argv) > 2 else 0
    open(sys.argv[1], "w").write(HEADER + Gen(prof, sys.argv[3:]).gen())
```

```python
import sys, os
sys.path.insert(0, "gen")
from asmlib import Asm

KNAME = "interleave_layers__sliding_block_cached__dense_activation_mish__decode_kernel"
BS = 4736
YO = [0, 128]; ZO = [256, 384]
QP1 = 512
OP = [896, 1280]
MISC = 1664
HPR = [1792, 2048]; HPC = 2304
X2O = 2560
CLR_END = 2816
QP0T = 3072
GEN_OFF = 256 * BS
FL1 = GEN_OFF + 4096; FL2 = GEN_OFF + 8192
WS_USED = GEN_OFF + 12288
PROF_OFF = 2 << 20
L_CTRL = 0
L_ML = 128
L_P = 256
L_O = 1024
L_YR = 4096
L_Q = 5120
L_K = 8192
L_WQ = L_K + 98304
LDS_BYTES = L_WQ + 3 * 10752
POLL_LIMIT = 200000
ONES = 4; SEL = 8; AB = [12, 16]; ACC = 20; GB = 36; XA = 60
aQG = 70; aP32 = 71; aROW = 72; aML = 73; aST = 74; ldsP = 75; lane4 = 76
CS0 = 77; CS1 = 78; X0 = 79; X1 = 80; B1V = 81; CSW1 = 82
T = [83, 84, 85, 86, 87, 1, 2, 3]
aX2 = 68; aXS = 69
KV = 88; WA = 184; WB = 224
WS = "s[48:51]"

DOC = """
Persistent fused kernel (generated by the author's own script): 256 workgroups x 8 waves, one per CU.
K, V and all weight slices are read from HBM once and stay in registers / LDS for both layer passes.
 wg = 8*m + xg : xg = group (expected XCD), head = 4*xg + m/8, key chunk = m%8 (256 keys).
 waves 0-3 ("K"): QK + softmax, partial combine, w1 / w2 GEMVs ; waves 4-7 ("V"): streaming, PV, wo and wq GEMVs.
GEMVs over [k][n] weights use v_mfma_f32_16x16x32_bf16 with a selector A operand (one non-zero per row).
LayerNorm is applied after the GEMV by linearity (rstd * (x.W - mean * colsum(W))).
Hand-offs go through d_ws: slots are cleared to 0xFFFFFFFF at kernel start and polled dword by dword;
a launch-unique tag (derived from one word of d_ws) validates the start-up flags and the first q exchange.
Group-local hand-offs use plain stores only if every member reported the same XCC id, else write-through stores.
Every poll loop is bounded.
"""

def q4(r): return f"v[{r}:{r+3}]"
DPPALL = "row_mask:0xf bank_mask:0xf"
Q1 = "quad_perm:[1,0,3,2]"; Q2 = "quad_perm:[2,3,0,1]"; HM = "row_half_mirror"; RM = "row_mirror"

class Gen:
    def __init__(self, prof=0, knobs=()):
        self.knobs = set(knobs)
        self.LL = 4; self.LL2 = 4; self.W2SL = 16; self.PRI = 0; self.WOE = 0; self.WSP = 800; self.AMP = 0; self.B0IT = 0; self.B3B = 1; self.Q4 = 0; self.G4 = 0; self.PQ = 0; self.PO = 1; self.PX = 0; self.PH = 1; self.PZ = 0; self.PGAP = 12; self.TR = 1; self.XSLP = 0; self.Q1ST = 1; self.QPW = 0; self.FLSL = 127; self.QFB = 5; self.CPF0 = 1; self.B0E = 0; self.B0N = 0; self.OSC = 0; self.AL = 1; self.ALP = 3; self.SHIFT = 0; self.CPF = 0; self.NB = 8; self.QSLEEP0 = 56; self.QSLEEP1 = 24
        self.QSL = 12; self.OSL = 8; self.YSL0 = 16; self.YSL = 15; self.HSL = 10; self.ZSL = 11; self.XSL = 26; self.FSL = 8
        for k in knobs:
            if '=' in k: setattr(self, k.split('=')[0], int(k.split('=')[1]))
        self.WS = [self.WSP // 100, self.WSP // 10 % 10, self.WSP % 10]
        self.a = Asm(); self.prof = prof; self.uid = 0; self.ool = []
    def L(self, base):
        self.uid += 1
        return f"L_{base}_{self.uid}"
    def stamp(self, i):
        if self.prof == 3 and i not in (0, 6, 11): return
        if self.prof: self.a(f"s_memrealtime s[{76+2*i}:{77+2*i}]")
    def al(self, n=3):
        if self.AL: self.a(f".p2align {n}")
    def sleep(self, n):
        if n: self.a(f"s_sleep {n}")
    def dump_stamps(self):
        if not self.prof: return
        a = self.a
        a("s_waitcnt lgkmcnt(0)")
        a(f"v_mov_b32 v{T[0]}, 0")
        for i in range(13):
            a(f"v_writelane_b32 v{T[0]}, s{76+2*i}, {i}")
        a("s_lshl_b32 s58, s2, 3\ns_add_u32 s58, s58, s3\ns_lshl_b32 s58, s58, 1\ns_add_u32 s58, s58, s54\ns_lshl_b32 s58, s58, 6")
        a(f"s_add_u32 s58, s58, {PROF_OFF}")
        a("s_mov_b64 exec, 0xffff")
        a(f"buffer_store_dword v{T[0]}, v{lane4}, {WS}, s58 offen")
        a("s_mov_b64 exec, -1")
        for i in range(13):
            a(f"s_mov_b64 s[{76+2*i}:{77+2*i}], 0")
    def dump0(self):
        if not self.prof: return
        l = self.L("nd")
        self.a(f"s_cmp_lg_u32 s54, 0\ns_cbranch_scc1 {l}")
        self.dump_stamps()
        self.a(f"{l}:")
    def local_stores(self, lines):
        a = self.a
        ls, ld = self.L("sl"), self.L("sd")
        a(f"s_cmp_eq_u32 s55, 0\ns_cbranch_scc1 {ls}")
        for x in lines: a(x.replace("{f}", ""))
        a(f"{ld}:")
        self.ool.append([f"{ls}:", "s_nop 7"] + [x.replace("{f}", " sc1") for x in lines] + ["s_nop 1", f"s_branch {ld}"])
    def poll(self, loads, regs, entry=None, slp=0, spec=(), pipe=0):
        a = self.a
        lp, lr, ld = self.L("poll"), self.L("retry"), self.L("got")
        a("s_mov_b32 s70, 0")
        nld = sum(1 for x in loads if x.startswith("buffer_"))
        post = []
        if pipe:
            for _ in range(pipe):
                for x in loads: a(x)
                a(f"s_nop {self.PGAP}\ns_nop {self.PGAP}")
            post = list(spec); spec = ()
        a(f"{lp}:")
        for x in loads: a(x)
        if self.TR and not slp:
            a(f"s_add_u32 s70, s70, 1\ns_cmp_lt_u32 s70, {POLL_LIMIT}\ns_cbranch_scc0 {lr}")
        if entry: a(f"{entry}:")
        self.al(self.ALP)
        a(f"s_nop 0\ns_waitcnt vmcnt({nld * pipe})")
        t = T[7]
        rs = list(regs)
        chk = []
        if len(rs) == 1:
            chk.append(f"v_cmp_eq_u32 vcc, -1, v{rs[0]}")
        else:
            if len(rs) == 2:
                chk.append(f"v_max_u32 v{t}, v{rs[0]}, v{rs[1]}"); rs = []
            else:
                chk.append(f"v_max3_u32 v{t}, v{rs[0]}, v{rs[1]}, v{rs[2]}"); rs = rs[3:]
            while rs:
                if len(rs) >= 2:
                    chk.append(f"v_max3_u32 v{t}, v{t}, v{rs[0]}, v{rs[1]}"); rs = rs[2:]
                else:
                    chk.append(f"v_max_u32 v{t}, v{t}, v{rs[0]}"); rs = rs[1:]
            chk.append(f"v_cmp_eq_u32 vcc, -1, v{t}")
        spec = list(spec)
        while spec or chk:
            if spec: a(spec.pop(0))
            for _ in range(2):
                if chk: a(chk.pop(0))
        if self.TR and not slp:
            a(f"s_cbranch_vccnz {lp}")
            a(f"{ld}:")
            for x in post: a(x)
            self.ool.append([f"{lr}:", "s_waitcnt vmcnt(0)", f"s_branch {ld}"])
            return
        a(f"s_cbranch_vccnz {lr}")
        a(f"{ld}:")
        self.ool.append([f"{lr}:", f"s_sleep {slp}" if slp else "s_nop 7", f"s_add_u32 s70, s70, 1", f"s_cmp_lt_u32 s70, {POLL_LIMIT}", f"s_cbranch_scc1 {lp}", f"s_branch {ld}"])
    def mfma_s(self, D, A, B, first):
        return f"v_mfma_f32_16x16x32_bf16 {q4(D)}, {q4(A)}, {q4(B)}, {'0' if first else q4(D)}"
    def flush_ool(self):
        for blk in self.ool:
            for x in blk: self.a(x)
        self.ool = []
    def build_A(self, dst, src):
        for d in range(4):
            self.a(f"v_perm_b32 v{dst+d}, v{src}, v{src}, v{SEL+d}")
    def mfma(self, D, A, B, first):
        self.a(f"v_mfma_f32_16x16x32_bf16 {q4(D)}, {q4(A)}, {q4(B)}, {'0' if first else q4(D)}")
    def pair32(self, D, t0, t1):
        self.a(f"v_add_f32_dpp v{t0}, v{D+1}, v{D} row_ror:8 {DPPALL}")
        self.a(f"v_add_f32_dpp v{t1}, v{D+3}, v{D+2} row_ror:8 {DPPALL}")
    def l64(self, D, t):
        self.a(f"v_add_f32_dpp v{t}, v{D+1}, v{D} row_ror:8 row_mask:0xf bank_mask:0x3")
        self.a(f"v_add_f32_dpp v{t}, v{D+2}, v{D+3} row_ror:8 row_mask:0xf bank_mask:0xc")
    def gemv_bcast(self, D, pair, W, n, fill=()):
        a = self.a
        fill = list(fill)
        tb = [T[5], T[6]]
        self.al()
        a(f"v_mov_b32_dpp v{tb[0]}, v{pair} row_newbcast:0 {DPPALL}")
        for t in range(n):
            if t + 1 < n:
                a(f"v_mov_b32_dpp v{tb[(t+1)&1]}, v{pair} row_newbcast:{t+1} {DPPALL}")
            self.build_A(AB[t & 1], tb[t & 1])
            if t > 0: self.mfma(D, AB[(t-1) & 1], W + 4 * (t-1), t == 1)
            for _ in range(2):
                if fill: a(fill.pop(0))
        self.mfma(D, AB[(n-1) & 1], W + 4 * (n-1), n == 1)
        for x in fill: a(x)
    def bf16r_ops(self, dst, src):
        return [f"v_cvt_pk_bf16_f32 v{dst}, v{src}, v{src}", f"v_lshlrev_b32 v{dst}, 16, v{dst}"]
    def bf16r(self, dst, src):
        for x in self.bf16r_ops(dst, src): self.a(x)
    def ln_ops(self, s1, s2, t):
        inv = "0x3acccccd"
        return [f"v_mul_f32 v{s1}, {inv}, v{s1}", f"v_mul_f32 v{s2}, {inv}, v{s2}", f"v_fma_f32 v{s2}, -v{s1}, v{s1}, v{s2}",
                f"v_max_f32 v{s2}, 0, v{s2}", f"v_cvt_pk_bf16_f32 v{t}, v{s1}, v{s2}", f"v_lshlrev_b32 v{s1}, 16, v{t}",
                f"v_and_b32 v{s2}, 0xffff0000, v{t}", f"v_add_f32 v{s2}, 0x3727c5ac, v{s2}"] + self.bf16r_ops(s2, s2) + \
               [f"v_sqrt_f32 v{s2}, v{s2}"] + self.bf16r_ops(s2, s2) + [f"v_rcp_f32 v{s2}, v{s2}"]
    def red2_ops(self, s1, s2, steps, tmp):
        return [f"v_permlane32_swap_b32 v{s1}, v{s2}", f"v_add_f32 v{s1}, v{s1}, v{s2}", f"v_mov_b32 v{tmp}, v{s1}",
                f"v_permlane16_swap_b32 v{s1}, v{tmp}", f"v_add_f32 v{s1}, v{s1}, v{tmp}"] + \
               [f"v_add_f32_dpp v{s1}, v{s1}, v{s1} {c} {DPPALL}" for c in steps]
    def row16_ops(self, s1, s2, i1=None, i2=None):
        out = []
        for c in (Q1, Q2, HM, RM):
            a1 = i1 if (c == Q1 and i1 is not None) else s1
            a2 = i2 if (c == Q1 and i2 is not None) else s2
            out += [f"v_add_f32_dpp v{s1}, v{a1}, v{a1} {c} {DPPALL}", f"v_add_f32_dpp v{s2}, v{a2}, v{a2} {c} {DPPALL}"]
        return out
    def allred64(self, op, v, tmp):
        a = self.a
        for c in (Q1, Q2, HM, RM):
            a(f"{op}_dpp v{v}, v{v}, v{v} {c} {DPPALL}")
        a(f"v_mov_b32 v{tmp}, v{v}\nv_permlane16_swap_b32 v{v}, v{tmp}\n{op} v{v}, v{v}, v{tmp}")
        a(f"v_mov_b32 v{tmp}, v{v}\nv_permlane32_swap_b32 v{v}, v{tmp}\n{op} v{v}, v{v}, v{tmp}")
    def sel_layer(self, dst, arr, add=None):
        a = self.a
        a(f"s_mul_i32 s{dst}, s54, {arr[1]-arr[0]}")
        if arr[0]: a(f"s_add_u32 s{dst}, s{dst}, {arr[0]}")
        if add is not None: a(f"s_add_u32 s{dst}, s{dst}, s{add}")
    def lds_wait_flag(self, off, val=None, fb=0):
        a = self.a
        lp, ld = self.L("lw"), self.L("lg")
        t = T[5]; t2 = T[6]
        a(f"v_mov_b32 v{t2}, {off}\ns_mov_b32 s70, 0")
        a(f"{lp}:\nds_read_b32 v{t}, v{t2}\ns_waitcnt lgkmcnt(0)\nv_readfirstlane_b32 s58, v{t}")
        a(f"s_cmp_lg_u32 s58, 0\ns_cbranch_scc1 {ld}" if val is None else f"s_cmp_eq_u32 s58, {val}\ns_cbranch_scc1 {ld}")
        a("s_sleep 1\ns_add_u32 s70, s70, 1")
        if fb: self.q_fallback(fb)
        a(f"s_cmp_lt_u32 s70, {4*POLL_LIMIT}\ns_cbranch_scc1 {lp}")
        a(f"{ld}:")
    def q_fallback(self, thresh):
        a = self.a
        QD = XA + 6
        le = self.L("qfb")
        a(f"s_cmp_lt_u32 s70, {thresh}\ns_cbranch_scc1 {le}\ns_cmp_lg_u32 s71, 0\ns_cbranch_scc1 {le}\ns_cmp_eq_u32 s3, 3\ns_cbranch_scc1 {le}")
        a("s_mov_b32 s71, 1\ns_mov_b64 exec, s[64:65]")
        a(f"buffer_store_dwordx2 v[{QD}:{QD+1}], v{X0}, {WS}, s63 offen offset:{QP0T} sc1")
        a(f"s_mov_b64 exec, -1\ns_waitcnt vmcnt(0)\n{le}:")
    def read_fast(self):
        self.a(f"v_mov_b32 v{T[2]}, {L_CTRL+4}\nds_read_b32 v{T[2]}, v{T[2]}\ns_waitcnt lgkmcnt(0)\nv_readfirstlane_b32 s55, v{T[2]}\ns_lshr_b32 s55, s55, 1")
    def make_tag(self):
        self.a("s_waitcnt lgkmcnt(0)\ns_mul_i32 s74, s74, 1664525\ns_add_u32 s74, s74, 1013904223")
    def resid_add(self):
        a = self.a
        self.pair32(ACC, T[2], T[3])
        a(f"v_cvt_pk_bf16_f32 v{T[4]}, v{T[2]}, v{T[3]}")
        a(f"v_lshlrev_b32 v{T[2]}, 16, v{T[4]}\nv_and_b32 v{T[3]}, 0xffff0000, v{T[4]}")
        a(f"v_add_f32 v{T[2]}, v{T[2]}, v{X0}\nv_add_f32 v{T[3]}, v{T[3]}, v{X1}")
        a(f"v_cvt_pk_bf16_f32 v{T[4]}, v{T[2]}, v{T[3]}")
    def gather4(self, src, Q):
        a = self.a
        a(f"v_mov_b32 v{Q}, v{src}\nv_mov_b32 v{Q+1}, v{src}")
        a(f"v_permlane16_swap_b32 v{Q}, v{Q+1}")
        a(f"v_mov_b32 v{Q+2}, v{Q}\nv_mov_b32 v{Q+3}, v{Q+1}")
        a(f"v_permlane32_swap_b32 v{Q}, v{Q+2}\nv_permlane32_swap_b32 v{Q+1}, v{Q+3}")
    def unpackX_ops(self, src):
        return [f"v_lshlrev_b32 v{X0}, 16, v{src}", f"v_and_b32 v{X1}, 0xffff0000, v{src}"]
    def xstats_ops(self, s1, s2, tmp):
        return [f"v_add_f32 v{s1}, v{X0}, v{X1}", f"v_mul_f32 v{s2}, v{X0}, v{X0}", f"v_fmac_f32 v{s2}, v{X1}, v{X1}"] + self.red2_ops(s1, s2, (Q1, Q2, HM), tmp)
    def rows24_loads(self, off_arr):
        a = self.a
        self.sel_layer(58, off_arr)
        a(f"s_mul_i32 s60, s56, {BS}\ns_add_u32 s58, s58, s60\ns_add_u32 s60, s58, {10*BS}\ns_add_u32 s61, s58, {20*BS}")
        return [f"buffer_load_dwordx4 {q4(GB+4*n)}, v{aROW}, {WS}, s{(58,60,61)[n]} offen sc1" for n in range(3)]
    def consts(self):
        a = self.a
        t0, t1, t2 = T[0], T[1], T[2]
        a(f"v_and_b32 v{t0}, 1, v0\nv_mul_u32_u24 v{t0}, 0x202, v{t0}\nv_add_u32 v{t0}, 0x100, v{t0}")
        a(f"v_bfe_u32 v{t1}, v0, 1, 1\nv_lshlrev_b32 v{t1}, 4, v{t1}\nv_lshlrev_b32 v{t0}, v{t1}, v{t0}")
        a(f"v_mov_b32 v{t2}, 0x0c0c0000\nv_lshrrev_b32 v{t2}, v{t1}, v{t2}\nv_or_b32 v{t0}, v{t0}, v{t2}")
        a(f"v_bfe_u32 v{t1}, v0, 2, 2\nv_mov_b32 v{t2}, 0x0c0c0c0c")
        for d in range(4):
            a(f"v_cmp_eq_u32 vcc, {d}, v{t1}\nv_cndmask_b32 v{SEL+d}, v{t2}, v{t0}, vcc")
        a(f"v_mov_b32 v{t0}, 0x3f803f80")
        self.build_A(ONES, t0)
    def kwave_addrs(self):
        a = self.a
        t0, t1, t2 = T[0], T[1], T[2]
        a(f"v_lshrrev_b32 v{t0}, 3, v0\nv_and_b32 v{t1}, 7, v0\ns_mov_b32 s58, {32*BS}\nv_mul_lo_u32 v{aROW}, s58, v{t0}\nv_lshl_add_u32 v{aROW}, v{t1}, 4, v{aROW}")
        a(f"v_mul_u32_u24 v{aX2}, {BS}, v{t1}\nv_lshrrev_b32 v{t1}, 4, v0\nv_lshl_add_u32 v{aX2}, v{t1}, 6, v{aX2}")
        a(f"s_lshl_b32 s58, s56, 2\ns_add_u32 s58, s58, s53\nv_add_u32 v{aX2}, s58, v{aX2}")
        a(f"v_bfe_u32 v{t0}, v0, 3, 1\nv_lshl_add_u32 v{t0}, v{t0}, 2, v{t1}\nv_mul_u32_u24 v{aQG}, {BS}, v{t0}")
        a(f"v_and_b32 v{t0}, 7, v0\nv_lshl_add_u32 v{aQG}, v{t0}, 4, v{aQG}")
        a(f"s_mul_i32 s58, s6, {8*BS}\ns_add_u32 s58, s58, s53\nv_add_u32 v{aQG}, s58, v{aQG}")
        a(f"v_and_b32 v{t0}, 3, v0\nv_lshlrev_b32 v{t0}, 4, v{t0}\nv_lshl_add_u32 v{t0}, v{t1}, 2, v{t0}\nv_bfe_u32 v{t2}, v0, 2, 2\nv_add_u32 v{t0}, v{t0}, v{t2}")
        a(f"v_bfe_u32 v{t2}, v{t0}, 1, 2\nv_lshlrev_b32 v{ldsP}, 5, v{t2}\nv_lshrrev_b32 v{t2}, 3, v{t0}\nv_lshl_add_u32 v{ldsP}, v{t2}, 2, v{ldsP}")
        a(f"v_and_b32 v{t2}, 1, v{t0}\nv_lshl_add_u32 v{ldsP}, v{t2}, 1, v{ldsP}")
        a(f"s_lshl_b32 s58, s3, 7\ns_add_u32 s58, s58, {L_P}\nv_add_u32 v{ldsP}, s58, v{ldsP}")
        a(f"v_and_b32 v{t0}, 15, v0\nv_mul_u32_u24 v{aML}, {BS}, v{t1}\nv_lshl_add_u32 v{aML}, v{t0}, 4, v{aML}")
        a(f"v_lshlrev_b32 v{aST}, 4, v{t0}\nv_lshl_add_u32 v{aST}, v{t1}, 2, v{aST}\nv_lshlrev_b32 v{aXS}, 3, v{t0}")
    def vwave_addrs(self):
        a = self.a
        a("v_and_b32 v1, 7, v0\nv_lshrrev_b32 v2, 3, v0\nv_lshrrev_b32 v3, 4, v0")
        a("s_min_u32 s61, s57, 2\ns_lshl_b32 s58, s61, 2\ns_and_b32 s60, s3, 3\ns_add_u32 s58, s58, s60\ns_mul_i32 s60, s58, 43\ns_lshr_b32 s60, s60, 7")
        a("s_mul_i32 s61, s60, 3\ns_sub_u32 s58, s58, s61")
        a(f"s_mul_i32 s60, s60, {8*BS}\ns_add_u32 s60, s60, s53\ns_lshl_b32 s58, s58, 7\ns_add_u32 s58, s58, s60")
        a(f"v_mul_u32_u24 v{aQG}, {BS}, v2\nv_lshl_add_u32 v{aQG}, v1, 4, v{aQG}\nv_add_u32 v{aQG}, s58, v{aQG}")
        a(f"v_lshl_add_u32 v{aML}, v3, 1, v0\nv_and_b32 v{aML}, 7, v{aML}\nv_lshlrev_b32 v{aML}, 3, v{aML}\nv_add_u32 v{aML}, s60, v{aML}")
        a(f"s_and_b32 s58, s3, 3\ns_lshl_b32 s58, s58, 7\ns_add_u32 s58, s58, {L_P}\nv_lshlrev_b32 v{ldsP}, 5, v3\nv_add_u32 v{ldsP}, s58, v{ldsP}")
        a(f"s_mul_i32 s58, s6, {8*BS}\ns_add_u32 s58, s58, s53\ns_and_b32 s60, s3, 3\ns_lshl_b32 s60, s60, 7\ns_add_u32 s58, s58, s60\ns_lshl_b32 s60, s7, 4\ns_add_u32 s58, s58, s60")
        a(f"v_mul_u32_u24 v{aST}, {BS}, v1\nv_lshl_add_u32 v{aST}, v3, 2, v{aST}\nv_add_u32 v{aST}, s58, v{aST}")
        a(f"s_mul_i32 s58, s7, {BS}\ns_add_u32 s58, s58, s53\nv_add_u32 v{aX2}, s58, v{lane4}")
        a(f"v_and_b32 v{aXS}, 15, v0\nv_lshlrev_b32 v{aXS}, 3, v{aXS}\nv_mov_b32 v{aROW}, 0")
    def k_dma(self):
        a = self.a
        t = T[0]; t2 = T[1]
        a(f"v_lshrrev_b32 v{t}, 3, v0\nv_and_b32 v{t2}, 6, v{t}\nv_xor_b32 v{t2}, v{t2}, v0\nv_and_b32 v{t2}, 7, v{t2}")
        a(f"v_mul_u32_u24 v{t}, 384, v{t}\nv_lshl_add_u32 v{t}, v{t2}, 4, v{t}")
        a(f"s_and_b32 s60, s3, 3\ns_mul_i32 s60, s60, 24576\ns_add_u32 s60, s60, {L_K}\ns_mov_b32 s58, s59\ns_add_u32 s61, s59, {64*384}")
        a(f"v_mul_u32_u24 v{T[4]}, 384, v2\nv_lshl_add_u32 v{T[4]}, v1, 4, v{T[4]}")
        a("s_waitcnt lgkmcnt(0)")
        self.stamp(2)
        if self.B0IT == 0: a("s_barrier")
        self.stamp(3)
        a(f"s_add_u32 s62, s59, {3072*self.B0IT}")
        a("L_kdma:")
        for th in range(3):
            a(f"s_add_u32 m0, s60, {th*1024 - th*128}")
            a(f"buffer_load_dwordx4 v{t}, s[12:15], s58 offen offset:{th*128} nt lds")
        a("s_add_u32 s60, s60, 3072\ns_add_u32 s58, s58, 3072")
        if self.B0IT: a("s_cmp_lg_u32 s58, s62\ns_cbranch_scc1 L_kdma_nb\ns_barrier\nL_kdma_nb:")
        a("s_cmp_lt_u32 s58, s61\ns_cbranch_scc1 L_kdma")
    def k_to_regs(self):
        a = self.a
        t = T[0]; t2 = T[1]; t3 = T[2]
        a(f"v_and_b32 v{t}, 7, v0\nv_lshrrev_b32 v{t2}, 4, v0\nv_and_b32 v{t3}, 6, v0\nv_xor_b32 v{t2}, v{t2}, v{t3}")
        a(f"v_lshlrev_b32 v{t}, 7, v{t}\nv_bfe_u32 v{t3}, v0, 3, 1\nv_mul_u32_u24 v{t3}, 3072, v{t3}\nv_add_u32 v{t}, v{t}, v{t3}")
        a(f"s_mul_i32 s60, s3, 24576\nv_add_u32 v{t}, s60, v{t}")
        a(f"v_lshl_add_u32 v{t3}, v{t2}, 4, v{t}")
        a(f"v_xor_b32 v{t2}, 4, v{t2}\nv_lshl_add_u32 v{t2}, v{t2}, 4, v{t}")
        for tile in range(4):
            for u in range(6):
                off = L_K + (2 * tile * 3 + (u >> 1)) * 1024
                a(f"ds_read_b128 {q4(KV + (tile*6+u)*4)}, v{t2 if (u & 1) else t3} offset:{off}")
            if tile == 1: a("s_waitcnt lgkmcnt(0)")
        a("s_waitcnt lgkmcnt(0)")
    def wo_part(self, lo, hi):
        a = self.a
        le = self.L("wop")
        a(f"s_cmp_lg_u32 s54, 0\ns_cbranch_scc1 {le}")
        for t in range(lo, hi):
            a(f"buffer_load_dwordx4 {q4(WB+4*t)}, v{XA}, s[24:27], s63 offen nt")
            if t < 7: a(f"s_add_u32 s63, s63, {8*1280}")
        a(f"{le}:")
    def wo_loads(self, n=8):
        a = self.a
        t1 = XA
        a(f"v_lshrrev_b32 v{t1}, 3, v0\nv_mul_u32_u24 v{t1}, 1280, v{t1}\nv_and_b32 v{XA+1}, 7, v0\nv_lshl_add_u32 v{t1}, v{XA+1}, 4, v{t1}")
        a("s_min_u32 s62, s57, 2\ns_mul_i32 s58, s4, 768\ns_lshl_b32 s60, s62, 8\ns_add_u32 s58, s58, s60\ns_and_b32 s60, s3, 3\ns_lshl_b32 s60, s60, 6\ns_add_u32 s58, s58, s60")
        a("s_mul_i32 s58, s58, 1280\ns_lshl_b32 s60, s56, 7\ns_add_u32 s58, s58, s60")
        a("s_cmp_ge_u32 s5, 30\ns_cselect_b32 s58, 0x7f000000, s58")
        for t in range(n):
            a(f"buffer_load_dwordx4 {q4(WB+4*t)}, v{t1}, s[24:27], s58 offen nt")
            if t < 7: a(f"s_add_u32 s58, s58, {8*1280}")
        a("s_mov_b32 s63, s58")
    def w1_loads(self):
        a = self.a
        t0, t1 = T[2], T[3]
        a(f"v_lshrrev_b32 v{t0}, 3, v0\nv_and_b32 v{t1}, 7, v0\nv_mul_u32_u24 v{t0}, 3072, v{t0}\nv_lshl_add_u32 v{t0}, v{t1}, 4, v{t0}")
        a(f"s_mul_i32 s58, s56, {64*3072}\ns_mul_i32 s60, s4, 384\ns_add_u32 s58, s58, s60\ns_lshl_b32 s60, s57, 7\ns_add_u32 s58, s58, s60")
        for t in range(8):
            a(f"buffer_load_dwordx4 {q4(WB+4*t)}, v{t0}, s[28:31], s58 offen nt")
            if t < 7: a(f"s_add_u32 s58, s58, {8*3072}")
    def w2_loads(self):
        a = self.a
        t0, t1 = T[2], T[3]
        a(f"v_lshrrev_b32 v{t0}, 3, v0\nv_and_b32 v{t1}, 7, v0\nv_mul_u32_u24 v{t0}, 1280, v{t0}\nv_lshl_add_u32 v{t0}, v{t1}, 4, v{t0}")
        a("s_mul_i32 s58, s4, 192\ns_lshl_b32 s60, s57, 6\ns_add_u32 s61, s58, s60\ns_mul_i32 s58, s61, 1280\ns_lshl_b32 s60, s56, 7\ns_add_u32 s58, s58, s60")
        for t in range(8):
            a(f"buffer_load_dwordx4 {q4(WB+4*t)}, v{t0}, s[36:39], s58 offen nt")
            if t < 7: a(f"s_add_u32 s58, s58, {8*1280}")
        a(f"v_bfe_u32 v{t0}, v0, 3, 1\nv_lshl_add_u32 v{t0}, v{t0}, 1, v{aP32}\ns_lshl_b32 s61, s61, 1")
        a(f"buffer_load_ushort v{B1V}, v{t0}, s[32:35], s61 offen")
    def clears(self, all_sc1):
        a = self.a
        C = XA + 4
        for i in range(4): a(f"v_mov_b32 v{C+i}, -1")
        a(f"v_lshlrev_b32 v{T[3]}, 4, v0")
        f = " sc1" if all_sc1 else ""
        a("s_mov_b32 exec_hi, 0")
        a(f"buffer_store_dwordx4 {q4(C)}, v{T[3]}, {WS}, s52 offen sc1")
        a("s_mov_b32 exec_lo, 0xffff")
        a(f"buffer_store_dwordx4 {q4(C)}, v{T[3]}, {WS}, s52 offen offset:2560{f}")
        a("s_mov_b64 exec, -1")
        for o in (512, 1536):
            a(f"buffer_store_dwordx4 {q4(C)}, v{T[3]}, {WS}, s52 offen offset:{o}{f}")
    def flag_store(self, base):
        a = self.a
        C = XA + 4
        if base == FL1:
            a("s_xor_b32 s58, s74, 0x5bd1e995\ns_andn2_b32 s58, s58, 15\ns_or_b32 s75, s75, s58")
        a(f"s_lshl_b32 s58, s4, 5\ns_add_u32 s58, s58, s5\ns_lshl_b32 s58, s58, 3\ns_add_u32 s58, s58, {base}")
        a(f"v_mov_b32 v{C}, s74\nv_mov_b32 v{C+1}, s75")
        a("s_mov_b64 exec, 1")
        a(f"buffer_store_dwordx2 v[{C}:{C+1}], v{aP32}, {WS}, s58 offen sc1")
        a("s_mov_b64 exec, -1")
    def flags_issue(self, base):
        a = self.a
        F = AB[0]
        a(f"v_lshlrev_b32 v{T[4]}, 5, v0\ns_mov_b32 s60, {base}")
        a(f"buffer_load_dwordx4 {q4(F)}, v{T[4]}, {WS}, s60 offen sc1\nbuffer_load_dwordx4 {q4(F+4)}, v{T[4]}, {WS}, s60 offen offset:16 sc1")
    def flags_wait(self, base, group_only):
        a = self.a
        F = AB[0]
        t, t2 = T[2], T[3]
        lp, lc, ld = self.L("fp"), self.L("fc"), self.L("fg")
        a("s_mov_b32 s70, 0\ns_or_b32 s61, s75, 15")
        if base == FL1: a(f"s_branch {lc}")
        a(f"{lp}:")
        self.flags_issue(base)
        a(f"{lc}:")
        a("s_waitcnt vmcnt(0)")
        a(f"v_xor_b32 v{t}, s74, v{F}")
        for i in range(1, 4):
            a(f"v_xor_b32 v{t2}, s74, v{F+2*i}\nv_or_b32 v{t}, v{t}, v{t2}")
        for i in range(4):
            a(f"v_or_b32 v{t2}, 15, v{F+2*i+1}\nv_xor_b32 v{t2}, s61, v{t2}\nv_or_b32 v{t}, v{t}, v{t2}")
        a(f"v_cmp_ne_u32 vcc, 0, v{t}")
        if group_only: a(f"s_and_b64 vcc, vcc, s[72:73]\ns_cbranch_scc0 {ld}")
        else: a(f"s_cbranch_vccz {ld}")
        a(f"s_sleep 16\ns_add_u32 s70, s70, 1\ns_cmp_lt_u32 s70, {POLL_LIMIT}\ns_cbranch_scc1 {lp}\n{ld}:")
    def flags_check(self):
        a = self.a
        F = AB[0]; t, t2 = T[2], T[3]
        lf = self.L("fast")
        a("s_lshl_b32 s58, s4, 3\ns_mov_b64 s[72:73], 0xff\ns_lshl_b64 s[72:73], s[72:73], s58")
        self.flags_wait(FL1, False)
        a(f"v_xor_b32 v{t}, s75, v{F+1}")
        for i in range(1, 4):
            a(f"v_xor_b32 v{t2}, s75, v{F+2*i+1}\nv_or_b32 v{t}, v{t}, v{t2}")
        a(f"v_cmp_ne_u32 vcc, 0, v{t}\ns_mov_b32 s55, 1\ns_and_b64 vcc, vcc, s[72:73]")
        if "forceslow" not in self.knobs: a(f"s_cbranch_scc0 {lf}")
        a("s_mov_b32 s55, 0")
        self.clears(True)
        a("s_waitcnt vmcnt(0)")
        self.flag_store(FL2)
        self.flags_wait(FL2, True)
        a(f"{lf}:")
        a(f"s_lshl_b32 s58, s55, 1\ns_or_b32 s58, s58, 1\nv_mov_b32 v{t}, s58\nv_mov_b32 v{T[3]}, {L_CTRL}\nds_write_b32 v{T[3]}, v{t} offset:4")
    def qproj(self, pair, s1, s2, pre_ops):
        a = self.a
        self.gemv_bcast(ACC, pair, WA, 10, fill=list(pre_ops) + self.ln_ops(s1, s2, T[2]))
        self.pair32(ACC, T[2], T[3])
        a(f"v_fma_f32 v{T[2]}, -v{s1}, v{CS0}, v{T[2]}\nv_fma_f32 v{T[3]}, -v{s1}, v{CS1}, v{T[3]}")
        a(f"v_mul_f32 v{T[2]}, v{T[2]}, v{s2}\nv_mul_f32 v{T[3]}, v{T[3]}, v{s2}")
        a(f"v_cvt_pk_bf16_f32 v{T[4]}, v{T[2]}, v{T[3]}")

    def gen(self):
        a = self.a
        a(f"; @launch grid=(256,1,1) block=(512,1,1) lds={LDS_BYTES}")
        for ln in DOC.strip().split("\n"): a("; " + ln)
        a('.amdgcn_target "amdgcn-amd-amdhsa--gfx950"\n.text')
        a(f".globl {KNAME}\n.p2align 8\n.type {KNAME},@function")
        a(f"{KNAME}:")
        a("s_cmp_ge_u32 s2, 256\ns_cbranch_scc1 L_end")
        for _ in range(self.SHIFT): a("s_nop 0")
        if self.prof:
            for i in range(13): a(f"s_mov_b64 s[{76+2*i}:{77+2*i}], 0")
        self.stamp(0)
        if self.AMP: a("s_memrealtime s[92:93]")
        ptr = {12: 8, 20: 24, 8: 0, 48: 88, 16: 16, 24: 32, 28: 48, 32: 56, 36: 64, 40: 72}
        size = {8: 1280, 12: 100663296, 16: 100663296, 20: 7864320, 24: 7864320, 28: 1966080, 32: 3072, 36: 1966080, 40: 1280,
                48: (PROF_OFF + 256 * 8 * 2 * 64) if self.prof else WS_USED}
        for s, off in ptr.items():
            a(f"s_load_dwordx2 s[{s}:{s+1}], s[0:1], {off}")
        a("v_lshrrev_b32 v1, 6, v0\nv_and_b32 v0, 63, v0\nv_readfirstlane_b32 s3, v1")
        if self.CPF0:
            a("s_getpc_b64 s[72:73]")
            a("L_pcref0:")
            a(f"s_sub_u32 s72, s72, L_pcref0-{KNAME}\ns_subb_u32 s73, s73, 0")
            a("s_and_b32 s58, s2, 0xf8\ns_add_u32 s58, s58, s3\ns_lshl_b32 s58, s58, 7")
            a(f"s_cmp_ge_u32 s58, L_end-{KNAME}\ns_cbranch_scc1 L_nocpf0")
            a(f"v_mov_b32 v2, s58\ns_mov_b64 exec, 1\nglobal_load_dword v{WA+39}, v2, s[72:73]\ns_mov_b64 exec, -1")
            a("L_nocpf0:")
        for s in ptr:
            a(f"s_mov_b32 s{s+2}, {size[s]}\ns_mov_b32 s{s+3}, 0x20000")
        a("s_and_b32 s4, s2, 7\ns_lshr_b32 s5, s2, 3\ns_lshr_b32 s6, s5, 3\ns_and_b32 s7, s5, 7")
        a(f"s_mul_i32 s53, s4, {32*BS}\ns_mul_i32 s52, s5, {BS}\ns_add_u32 s52, s52, s53")
        a("s_mov_b32 s54, 0\ns_mov_b32 s55, 0")
        a("s_getreg_b32 s75, hwreg(HW_REG_XCC_ID)\ns_and_b32 s75, s75, 15")
        a("s_cmp_ge_u32 s5, 10\ns_cselect_b32 s57, 1, 0\ns_cmp_ge_u32 s5, 20\ns_cselect_b32 s57, 2, s57\ns_cmp_ge_u32 s5, 30\ns_cselect_b32 s57, 3, s57")
        a("s_mul_i32 s58, s57, 10\ns_sub_u32 s56, s5, s58")
        a("s_mov_b32 s64, 0x00ff00ff\ns_mov_b32 s65, 0x00ff00ff")
        a("s_mov_b32 s66, 0xaaaaaaaa\ns_mov_b32 s67, 0xaaaaaaaa\ns_mov_b32 s68, 0xcccccccc\ns_mov_b32 s69, 0xcccccccc")
        a("s_mov_b32 s44, 0x03ff03ff\ns_mov_b32 s45, 0x03ff03ff\ns_mov_b32 s46, 1\ns_mov_b32 s47, 1")
        a("s_lshl_b32 s58, s4, 2\ns_add_u32 s58, s58, s6\ns_mul_i32 s59, s58, 3145728")
        a("s_lshl_b32 s58, s7, 8\ns_and_b32 s60, s3, 3\ns_lshl_b32 s60, s60, 6\ns_add_u32 s58, s58, s60\ns_add_u32 s58, s58, 6144\ns_mul_i32 s58, s58, 384\ns_add_u32 s59, s59, s58")
        a("v_and_b32 v1, 7, v0\nv_lshrrev_b32 v2, 3, v0\nv_lshrrev_b32 v3, 4, v0")
        a(f"v_lshlrev_b32 v{lane4}, 2, v0")
        a(f"v_lshlrev_b32 v{aP32}, 4, v1\nv_lshl_add_u32 v{aP32}, v3, 2, v{aP32}")
        a("s_cmp_lt_u32 s3, 4\ns_cbranch_scc1 L_pro_k")
        self.v_prologue()
        a("L_pro_k:")
        a(f"s_setprio 3\ns_mov_b32 s71, {GEN_OFF}")
        a("s_cmp_eq_u32 s3, 3\ns_cbranch_scc1 L_pro_c")
        XS = GB
        a(f"v_lshlrev_b32 v{T[0]}, 4, v0")
        a(f"v_and_b32 v{T[1]}, 15, v0\nv_lshlrev_b32 v{T[1]}, 7, v{T[1]}\nv_lshl_add_u32 v{T[1]}, v3, 2, v{T[1]}\ns_lshl_b32 s61, s7, 4")
        a(f"v_mul_u32_u24 v{T[2]}, 12288, v2\nv_lshl_add_u32 v{T[2]}, v1, 4, v{T[2]}")
        a(f"s_lshl_b32 s58, s4, 2\ns_add_u32 s58, s58, s6\ns_mul_i32 s58, s58, 384\ns_lshl_b32 s60, s3, 7\ns_add_u32 s58, s58, s60\ns_mul_i32 s60, s7, {8*12288}\ns_add_u32 s58, s58, s60")
        a("s_waitcnt lgkmcnt(0)")
        a(f"buffer_load_dwordx4 {q4(XS)}, v{T[0]}, s[8:11], 0 offen")
        a(f"buffer_load_dword v{XS+4}, v{lane4}, s[8:11], 0 offen offset:1024")
        a(f"buffer_load_dword v{XA}, v{T[1]}, s[8:11], s61 offen")
        for t in range(10 if "nowq" not in self.knobs else 0):
            a(f"buffer_load_dwordx4 {q4(WA+4*t)}, v{T[2]}, s[20:23], s58 offen nt")
            if t < 9: a(f"s_add_u32 s58, s58, {64*12288}")
        if self.QPW:
            a(f"v_mov_b32 v{XA+6}, -1\ns_lshl_b32 s60, s3, 8\ns_add_u32 s63, s52, s60")
            a(f"buffer_store_dword v{XA+6}, v{lane4}, {WS}, s63 offen offset:{QP0T+768}")
        a("s_barrier")
        a(f"s_buffer_load_dword s74, {WS}, s71")
        self.consts()
        self.kwave_addrs()
        self.make_tag()
        a(f"s_waitcnt vmcnt({11 + self.QPW})")
        s1, s2 = T[0], T[1]
        a(f"v_mov_b32 v{s1}, 0\nv_mov_b32 v{s2}, 0")
        for i in range(5):
            a(f"v_lshlrev_b32 v{T[2]}, 16, v{XS+i}\nv_and_b32 v{T[3]}, 0xffff0000, v{XS+i}")
            a(f"v_add_f32 v{s1}, v{s1}, v{T[2]}\nv_fmac_f32 v{s2}, v{T[2]}, v{T[2]}\nv_add_f32 v{s1}, v{s1}, v{T[3]}\nv_fmac_f32 v{s2}, v{T[3]}, v{T[3]}")
        for x in self.red2_ops(s1, s2, (Q1, Q2, HM, RM), T[2]): a(x)
        a(f"v_readlane_b32 s58, v{s1}, 0\nv_readlane_b32 s60, v{s1}, 32")
        a(f"v_mov_b32 v{s1}, s58\nv_mov_b32 v{s2}, s60")
        a(f"s_waitcnt vmcnt({self.QPW})")
        self.stamp(1)
        if "lo1" in self.knobs: a("s_branch L_fin2")
        for t in range(10):
            self.mfma(ACC + 4, ONES, WA + 4 * t, t == 0)
        self.pair32(ACC + 4, CS0, CS1)
        self.qproj(XA, s1, s2, [])
        QD = XA + 6
        a(f"v_mov_b32 v{QD}, v{T[4]}\nv_mov_b32 v{QD+1}, s74")
        a(f"v_and_b32 v{X0}, 7, v0\nv_lshlrev_b32 v{X0}, 3, v{X0}\nv_lshrrev_b32 v{T[2]}, 4, v0\nv_lshl_add_u32 v{X0}, v{T[2]}, 6, v{X0}")
        a("s_lshl_b32 s60, s3, 8\ns_add_u32 s63, s52, s60")
        a("s_mov_b64 exec, s[64:65]")
        a(f"buffer_store_dwordx2 v[{QD}:{QD+1}], v{X0}, {WS}, s63 offen offset:{QP0T+768}")
        a("s_mov_b64 exec, -1\ns_mov_b32 s71, 0")
        self.stamp(3)
        if "lo2" in self.knobs: a("s_branch L_fin2")
        a(f"s_mul_i32 s58, s3, 10752\ns_add_u32 s58, s58, {L_WQ}\nv_lshlrev_b32 v{T[0]}, 4, v0\nv_add_u32 v{T[0]}, s58, v{T[0]}")
        for t in range(10):
            a(f"ds_write_b128 v{T[0]}, {q4(WA+4*t)} offset:{1024*t}")
        a(f"v_add_u32 v{T[1]}, s58, v{lane4}\nds_write_b32 v{T[1]}, v{CS0} offset:10240\nds_write_b32 v{T[1]}, v{CS1} offset:10496")
        QA = [XA + 1, XA + 2]
        a(f"s_mul_i32 s62, s6, {8*BS}\ns_add_u32 s62, s62, s53\ns_lshl_b32 s58, s3, 7")
        for n in range(2):
            a(f"v_add_u32 v{T[0]}, s58, v0")
            if n: a(f"v_add_u32 v{T[0]}, 64, v{T[0]}")
            a(f"v_mul_u32_u24 v{T[1]}, 0x556, v{T[0]}\nv_lshrrev_b32 v{T[1]}, 16, v{T[1]}")
            a(f"v_mul_u32_u24 v{T[2]}, {BS - 768}, v{T[1]}\nv_lshl_add_u32 v{QA[n]}, v{T[0]}, 4, v{T[2]}")
        SETS = [[WB, WB + 4], [WB + 8, WB + 12]]
        def qissue(k):
            if k == 0: a("s_add_u32 s58, s62, 768")
            else: a(f"s_cmp_ge_u32 s70, {self.QFB}\ns_cselect_b32 s58, 0, 768\ns_add_u32 s58, s58, s62")
            for n in range(2):
                a(f"buffer_load_dwordx4 {q4(SETS[k][n])}, v{QA[n]}, {WS}, s58 offen offset:{QP0T} sc1")
        lp, ld = self.L("poll"), self.L("got")
        a(f"s_mov_b32 s70, 0\ns_sleep {self.QSLEEP0}")
        gots = [self.L("qg") for _ in range(2)]
        if self.Q1ST:
            qissue(0)
            a("s_waitcnt vmcnt(0)")
            a(f"v_mov_b32 v{T[0]}, s74\nv_mov_b32 v{T[1]}, s74")
            for r in SETS[0]:
                a(f"v_min3_u32 v{T[0]}, v{T[0]}, v{r+1}, v{r+3}\nv_max3_u32 v{T[1]}, v{T[1]}, v{r+1}, v{r+3}")
            a(f"v_cmp_ne_u32 vcc, v{T[0]}, v{T[1]}\ns_cbranch_vccz {gots[0]}")
        qissue(0); a(f"s_sleep {self.QSLEEP1}"); qissue(1)
        a(f"{lp}:")
        for k in range(2):
            a("s_waitcnt vmcnt(2)")
            a(f"v_mov_b32 v{T[0]}, s74\nv_mov_b32 v{T[1]}, s74")
            for r in SETS[k]:
                a(f"v_min3_u32 v{T[0]}, v{T[0]}, v{r+1}, v{r+3}\nv_max3_u32 v{T[1]}, v{T[1]}, v{r+1}, v{r+3}")
            a(f"v_cmp_ne_u32 vcc, v{T[0]}, v{T[1]}\ns_cbranch_vccz {gots[k]}")
            if k == 1:
                a("s_add_u32 s70, s70, 1")
                self.q_fallback(self.QFB)
            qissue(k)
        a(f"s_cmp_lt_u32 s70, {POLL_LIMIT}\ns_cbranch_scc1 {lp}")
        for k in range(2):
            a(f"{gots[k]}:")
            a(f"v_lshrrev_b32 v{T[0]}, 4, v0\nv_lshlrev_b32 v{T[0]}, 7, v{T[0]}\nv_and_b32 v{T[1]}, 3, v0\nv_lshl_add_u32 v{T[0]}, v{T[1]}, 5, v{T[0]}")
            a(f"v_bfe_u32 v{T[1]}, v0, 2, 2\nv_lshl_add_u32 v{T[0]}, v{T[1]}, 2, v{T[0]}\ns_lshl_b32 s58, s3, 10\ns_add_u32 s58, s58, {L_Q}\nv_add_u32 v{T[0]}, s58, v{T[0]}")
            for n in range(2):
                a(f"ds_write2_b32 v{T[0]}, v{SETS[k][n]}, v{SETS[k][n]+2} offset0:{128*n} offset1:{128*n+4}")
            if k < 1: a(f"s_branch {ld}")
        a(f"{ld}:")
        a(f"v_mov_b32 v{T[2]}, 1\nv_mov_b32 v{T[3]}, {L_CTRL+32}\ns_waitcnt lgkmcnt(0)\nds_add_u32 v{T[3]}, v{T[2]}")
        self.stamp(2)
        a("s_branch L_bk")
        a("L_pro_c:")
        a(f"v_mov_b32 v{T[0]}, 0")
        a("s_mov_b64 exec, 0xffff")
        a(f"ds_write_b32 v{lane4}, v{T[0]} offset:{L_CTRL}")
        a("s_mov_b64 exec, -1\ns_waitcnt lgkmcnt(0)")
        if self.B0E: a("s_barrier")
        if "noclr" not in self.knobs: self.clears(False)
        a(f"s_lshl_b32 s58, s56, 7\nbuffer_load_dword v{GB+4}, v{aP32}, s[8:11], s58 offen")
        if not self.B0E: a("s_barrier")
        a(f"s_buffer_load_dword s74, {WS}, s71")
        self.consts()
        self.kwave_addrs()
        self.make_tag()
        a("s_waitcnt vmcnt(0)")
        if "noclr" not in self.knobs: self.flag_store(FL1)
        self.stamp(1)
        for x in self.unpackX_ops(GB + 4): a(x)
        if not (self.knobs & {"lo1", "lo2"}) and "noclr" not in self.knobs:
            a(f"s_sleep {self.FLSL}")
            self.flags_issue(FL1)
            self.flags_check()
            self.stamp(2)
        a("L_bk:")
        if self.knobs & {"lo1", "lo2", "lo3"}: a("s_branch L_fin2")
        a(f"s_lshl_b32 s60, s3, 2\ns_add_u32 s60, s60, {L_CTRL+16}")
        self.lds_wait_flag("s60")
        self.stamp(10)
        self.k_to_regs()
        self.lds_wait_flag(L_CTRL + 32, 192, fb=64)
        self.stamp(11)
        a(f"v_and_b32 v{T[3]}, 7, v0\nv_mul_u32_u24 v{T[3]}, 384, v{T[3]}\nv_lshrrev_b32 v{T[4]}, 4, v0\nv_lshl_add_u32 v{T[3]}, v{T[4]}, 4, v{T[3]}")
        a(f"v_and_b32 v{T[4]}, 8, v0\nv_lshl_add_u32 v{T[3]}, v{T[4]}, 3, v{T[3]}")
        for u in range(3):
            a(f"ds_read_b128 {q4(GB+4*u)}, v{T[3]} offset:{L_Q + 128*u}")
        a("s_waitcnt lgkmcnt(0)")
        a("s_branch L_qk")

        a("L_kloop:")
        a("s_cmp_lg_u32 s3, 3\ns_cbranch_scc1 L_k_b1")
        a("s_cmp_ge_u32 s5, 10\ns_cbranch_scc1 L_k_pt")
        self.zgather(0, self.ZSL)
        s1, s2 = T[0], T[1]
        a("s_mov_b64 exec, s[64:65]")
        self.local_stores([f"buffer_store_dword v{T[4]}, v{aX2}, {WS}, 0 offen offset:{X2O}{{f}}"])
        a("s_mov_b64 exec, -1")
        for x in self.unpackX_ops(T[4]) + self.xstats_ops(s1, s2, T[2]): a(x)
        a(f"v_lshrrev_b32 v{T[2]}, 3, v0\nv_and_b32 v{T[2]}, 4, v{T[2]}\ns_lshl_b32 s58, s56, 3\ns_add_u32 s58, s58, s53\ns_add_u32 s58, s58, {7*BS}")
        a("s_mov_b64 exec, s[46:47]")
        self.local_stores([f"buffer_store_dword v{s1}, v{T[2]}, {WS}, s58 offen offset:{MISC}{{f}}"])
        a("s_mov_b64 exec, -1")
        self.stamp(2)
        a("L_k_pt:")
        a("L_k_b1:")
        a("s_barrier")
        self.sleep(self.QSL)
        self.poll([f"buffer_load_dwordx4 {q4(GB+4*u)}, v{aQG}, {WS}, 0 offen offset:{QP1 + 128*u} sc1" for u in range(3)], range(GB, GB + 12),
                  entry="L_qk", spec=[self.mfma_s(ACC + 4 * (u & 1), KV + 4 * u, GB + 4 * (u >> 1), u < 2) for u in range(4)], pipe=self.PQ)
        self.stamp(4)
        R = [XA, XA + 1, XA + 2, XA + 3]
        DE = [ACC, ACC + 8]; DO = [ACC + 4, ACC + 12]
        def lvl_ops(t):
            e, o = DE[t & 1], DO[t & 1]
            hm = lambda d, srcr, bank: f"v_add_f32_dpp v{d}, v{srcr}, v{srcr} row_half_mirror row_mask:0xf bank_mask:{hex(1<<bank)}"
            return [hm(T[2], e + 2, 0), hm(T[2], e + 3, 1), hm(R[t], e, 0), hm(R[t], e + 1, 1),
                    hm(T[2], o, 2), hm(T[2], o + 1, 3), hm(R[t], o + 2, 2), hm(R[t], o + 3, 3),
                    f"v_add_f32_dpp v{R[t]}, v{T[2]}, v{R[t]} row_ror:8 {DPPALL}",
                    f"v_add_f32_dpp v{R[t]}, v{R[t]}, v{R[t]} {Q1} {DPPALL}",
                    f"v_add_f32_dpp v{R[t]}, v{R[t]}, v{R[t]} {Q2} {DPPALL}"]
        pend = []
        S = T[0]; M = T[1]
        for t in range(4):
            for u in range(6):
                if t == 0 and u < 4: continue
                self.mfma((DO if u & 1 else DE)[t & 1], KV + (t * 6 + u) * 4, GB + 4 * (u >> 1), u < 2)
                if u >= 2:
                    for _ in range(3 if u < 5 else 2):
                        if pend: a(pend.pop(0))
            pend = lvl_ops(t)
            if t == 3:
                pend = [f"v_max3_f32 v{M}, v{R[0]}, v{R[1]}, v{R[2]}", f"v_cndmask_b32 v{R[0]}, v{R[0]}, v{R[1]}, s[66:67]"] + pend
        for x in pend: a(x)
        a(f"v_max_f32 v{M}, v{M}, v{R[3]}")
        a(f"v_cndmask_b32 v{R[2]}, v{R[2]}, v{R[3]}, s[66:67]\nv_cndmask_b32 v{S}, v{R[0]}, v{R[2]}, s[68:69]")
        a(f"v_max_f32_dpp v{M}, v{M}, v{M} row_ror:4 {DPPALL}")
        a(f"v_mul_f32 v{S}, 0x3dd53b95, v{S}")
        a(f"v_max_f32_dpp v{M}, v{M}, v{M} row_ror:8 {DPPALL}")
        a(f"v_mov_b32 v{T[2]}, v{M}\nv_permlane16_swap_b32 v{M}, v{T[2]}\nv_max_f32 v{M}, v{M}, v{T[2]}")
        a(f"v_mov_b32 v{T[2]}, v{M}\nv_permlane32_swap_b32 v{M}, v{T[2]}\nv_max_f32 v{M}, v{M}, v{T[2]}")
        a(f"v_mul_f32 v{M}, 0x3dd53b95, v{M}")
        a(f"v_sub_f32 v{S}, v{S}, v{M}\nv_exp_f32 v{S}, v{S}")
        a(f"v_cvt_pk_bf16_f32 v{S}, v{S}, v{S}")
        a(f"ds_write_b16 v{ldsP}, v{S}")
        a("s_cmp_eq_u32 s3, 3\ns_cbranch_scc1 L_qk_nf\ns_cmp_lg_u32 s54, 0\ns_cbranch_scc1 L_qk_nf")
        self.lds_wait_flag(L_CTRL + 4)
        a("s_lshr_b32 s55, s58, 1\ns_cmp_lg_u32 s55, 0\ns_cbranch_scc1 L_qk_nf")
        self.q_fallback(0)
        a("L_qk_nf:")
        a("s_waitcnt vmcnt(0) lgkmcnt(0)" if self.PQ else "s_waitcnt lgkmcnt(0)")
        self.stamp(5)
        if self.PRI == 1: a("s_setprio 0")
        a("s_barrier")
        if self.PRI == 2: a("s_sleep 2")
        a(f"v_lshlrev_b32 v{S}, 16, v{S}")
        self.allred64("v_add_f32", S, T[2])
        a(f"s_lshl_b32 s58, s3, 3\nv_mov_b32 v{T[2]}, s58")
        a("s_mov_b64 exec, 1")
        a(f"ds_write_b32 v{T[2]}, v{M} offset:{L_ML}\nds_write_b32 v{T[2]}, v{S} offset:{L_ML+4}")
        a("s_mov_b64 exec, -1")
        a("s_cmp_lg_u32 s3, 3\ns_cbranch_scc1 L_k_b3")
        a("s_cmp_eq_u32 s54, 0\ns_cbranch_scc1 L_c_b3")
        a("L_c_x2:")
        a("s_cmp_lt_u32 s5, 10\ns_cbranch_scc1 L_c_b3")
        self.poll([f"buffer_load_dword v{GB}, v{aX2}, {WS}, 0 offen offset:{X2O} sc1"], [GB])
        for x in self.unpackX_ops(GB): a(x)
        a("L_c_b3:")
        a("s_waitcnt lgkmcnt(0)\ns_barrier")
        a("s_cmp_ge_u32 s5, 30\ns_cbranch_scc1 L_k_next")
        if self.LL == 3:
            a("s_cmp_lg_u32 s54, 0\ns_cbranch_scc1 L_c_b4")
            self.w1_loads()
            a("L_c_b4:")
        if self.B3B:
            a("s_cmp_lg_u32 s54, 0\ns_cbranch_scc1 L_c_nb3b\ns_barrier")
            self.w1_loads()
            a("L_c_nb3b:")
        a("s_barrier")
        a("s_cmp_lg_u32 s54, 0\ns_cbranch_scc1 L_p4_nocs")
        if self.LL == 4 and not self.B3B: self.w1_loads()
        yl = self.rows24_loads(YO)
        self.sleep(self.YSL0)
        for x in yl: a(x)
        a("s_mov_b32 s70, 0\ns_waitcnt vmcnt(3)")
        for t in range(8): self.mfma(ACC, ONES, WB + 4 * t, t == 0)
        self.l64(ACC, CS0)
        self.local_stores([f"buffer_store_dword v{CS0}, v{aST}, {WS}, s52 offen offset:{HPC}{{f}}"])
        a("s_branch L_p4_chk")
        a("L_p4_nocs:")
        yl = self.rows24_loads(YO)
        self.sleep(self.YSL)
        self.poll(yl, range(GB, GB + 12), entry="L_p4_chk", spec=[self.mfma_s(ACC, ONES, GB + 4 * n, n == 0) for n in range(3)])
        a("s_barrier")
        if self.AMP == 2: a("s_cmp_lg_u32 s54, 0\ns_cbranch_scc1 L_amp2\ns_memrealtime s[94:95]\nL_amp2:")
        self.stamp(8)
        self.sel_layer(58, HPR, 52)
        a(f"s_mul_i32 s60, s54, 3\ns_add_u32 s60, s60, s57\ns_add_u32 s60, s60, 1\ns_mul_i32 s60, s60, {BS}\ns_add_u32 s60, s60, s53\ns_lshl_b32 s61, s56, 3\ns_add_u32 s60, s60, s61")
        self.resid_add()
        s1, s2 = T[0], T[1]
        self.gemv_bcast(ACC + 4, T[4], WB, 8, fill=self.unpackX_ops(T[4]) + self.xstats_ops(s1, s2, T[2]) + [f"v_lshrrev_b32 v{T[2]}, 3, v0", f"v_and_b32 v{T[2]}, 4, v{T[2]}"])
        self.l64(ACC + 4, T[3])
        self.local_stores([f"buffer_store_dword v{T[3]}, v{aST}, {WS}, s58 offen{{f}}", "s_mov_b64 exec, s[46:47]",
                           f"buffer_store_dword v{s1}, v{T[2]}, {WS}, s60 offen offset:{MISC}{{f}}"])
        a("s_mov_b64 exec, -1")
        self.stamp(9)
        self.dump0()
        a("s_barrier")
        a("s_cmp_lg_u32 s54, 0\ns_cbranch_scc1 L_final\ns_mov_b32 s54, 1\ns_branch L_kloop")
        a("L_k_b3:")
        if self.LL2 == 2:
            a("s_cmp_lg_u32 s54, 0\ns_cbranch_scc1 L_k_b3a\ns_cmp_lg_u32 s3, 0\ns_cbranch_scc1 L_k_b3a")
            self.w2_loads()
            a("L_k_b3a:")
        if self.CPF:
            self.code_prefetch()
        a(f"s_lshl_b32 s58, s3, 8\nv_add_u32 v{T[3]}, s58, v{lane4}\nv_mov_b32 v{T[4]}, {L_ML}")
        self.sel_layer(58, OP, 52)
        a("s_lshl_b32 s60, s3, 7\ns_add_u32 s60, s60, s58")
        a(f"s_mul_i32 s61, s7, {BS - 8}\ns_sub_u32 s61, s52, s61\ns_lshl_b32 s58, s54, 6\ns_add_u32 s61, s61, s58")
        a("s_waitcnt lgkmcnt(0)\ns_barrier")
        self.stamp(6)
        a(f"ds_read_b128 {q4(GB)}, v{T[4]}\nds_read_b128 {q4(GB+4)}, v{T[4]} offset:16")
        for w in range(4):
            a(f"ds_read_b32 v{GB+8+w}, v{T[3]} offset:{L_O + 768*w}")
        a("s_waitcnt lgkmcnt(0)")
        M = GB + 12; Lr = GB + 13
        a(f"v_max3_f32 v{M}, v{GB}, v{GB+2}, v{GB+4}\nv_max_f32 v{M}, v{M}, v{GB+6}")
        for w in range(4): a(f"v_sub_f32 v{GB+2*w}, v{GB+2*w}, v{M}")
        for w in range(4): a(f"v_exp_f32 v{GB+2*w}, v{GB+2*w}")
        a(f"v_mul_f32 v{Lr}, v{GB}, v{GB+1}\nv_mul_f32 v{T[0]}, v{GB}, v{GB+8}")
        for w in range(1, 4):
            a(f"v_fmac_f32 v{Lr}, v{GB+2*w}, v{GB+2*w+1}\nv_fmac_f32 v{T[0]}, v{GB+2*w}, v{GB+8+w}")
        a(f"v_rcp_f32 v{T[1]}, v{Lr}\nv_mul_f32 v{T[0]}, v{T[0]}, v{T[1]}")
        a(f"v_mov_b32_dpp v{T[1]}, v{T[0]} row_ror:8 {DPPALL}\nv_cvt_pk_bf16_f32 v{T[0]}, v{T[0]}, v{T[1]}")
        a("s_mov_b64 exec, s[64:65]")
        lz = self.L("z")
        self.local_stores([f"buffer_store_dword v{T[0]}, v{aP32}, {WS}, s60 offen{{f}}"])
        a(f"s_cmp_lg_u32 s3, 1\ns_cbranch_scc1 {lz}\ns_mov_b64 exec, 1")
        self.local_stores([f"buffer_store_dwordx2 v[{M}:{Lr}], v{aP32}, {WS}, s61 offen offset:{MISC}{{f}}"])
        a(f"{lz}:\ns_mov_b64 exec, -1")
        self.stamp(7)
        a("s_cmp_ge_u32 s5, 30\ns_cbranch_scc1 L_k_next")
        if self.LL2 == 3:
            a("s_cmp_lg_u32 s54, 0\ns_cbranch_scc1 L_k_b4a\ns_cmp_lg_u32 s3, 0\ns_cbranch_scc1 L_k_b4a")
            self.w2_loads()
            a("L_k_b4a:")
        if self.B3B:
            a("s_cmp_lg_u32 s54, 0\ns_cbranch_scc1 L_k_nb3b\ns_barrier\ns_cmp_lg_u32 s3, 0\ns_cbranch_scc1 L_k_nb3b")
            self.w2_loads()
            a("L_k_nb3b:")
        a("s_barrier")
        a("s_cmp_eq_u32 s3, 0\ns_cbranch_scc1 L_p5")
        a("s_cmp_lg_u32 s3, 1\ns_cbranch_scc1 L_k_b5")
        self.sel_layer(58, HPR, 52)
        a(f"v_lshlrev_b32 v{T[0]}, 7, v0\ns_mov_b64 exec, 3")
        a(f"buffer_load_dword v{GB}, v{T[0]}, {WS}, s58 offen sc1\nbuffer_load_dword v{GB+1}, v{T[0]}, {WS}, s52 offen offset:{HPC} sc1")
        a(f"buffer_load_dword v{GB+2}, v{lane4}, {WS}, s52 offen offset:{MISC} sc1\ns_mov_b64 exec, -1")
        a("L_k_b5:")
        a("s_barrier\ns_barrier")
        a("s_branch L_k_next")
        a("L_p5:")
        a(f"s_mul_i32 s62, s57, {10*BS}\ns_add_u32 s62, s62, s53")
        def hp_gather(with_stats, slp=0):
            for i in range(8, 14): a(f"v_mov_b32 v{GB+i}, 0")
            loads = [f"buffer_load_dwordx4 {q4(GB)}, v{aML}, {WS}, s58 offen sc1",
                     f"buffer_load_dwordx4 {q4(GB+4)}, v{aML}, {WS}, s60 offen sc1",
                     "s_mov_b32 exec_hi, 0",
                     f"buffer_load_dwordx4 {q4(GB+8)}, v{aML}, {WS}, s61 offen sc1"]
            if with_stats:
                loads += ["s_mov_b64 exec, s[44:45]", f"buffer_load_dwordx2 v[{GB+12}:{GB+13}], v{aXS}, {WS}, s63 offen offset:{MISC} sc1"]
            loads += ["s_mov_b64 exec, -1"]
            return loads, range(GB, GB + (14 if with_stats else 12))
        def hp_reduce_ops(dst):
            U = GB + 16
            o = [f"v_add_f32 v{U+i}, v{GB+i}, v{GB+4+i}" for i in range(4)] + [f"v_add_f32 v{U+i}, v{U+i}, v{GB+8+i}" for i in range(4)]
            o += [f"v_permlane32_swap_b32 v{U}, v{U+2}", f"v_permlane32_swap_b32 v{U+1}, v{U+3}",
                  f"v_add_f32 v{U}, v{U}, v{U+2}", f"v_add_f32 v{U+1}, v{U+1}, v{U+3}",
                  f"v_permlane16_swap_b32 v{U}, v{U+1}", f"v_add_f32 v{dst}, v{U}, v{U+1}"]
            return o
        a("s_cmp_lg_u32 s54, 0\ns_cbranch_scc1 L_p5_nocs")
        if self.LL2 == 4 and not self.B3B: self.w2_loads()
        if self.LL2 == 5:
            a(f"s_sleep {self.W2SL}")
            self.w2_loads()
        a(f"s_add_u32 s58, s62, {HPC}\ns_add_u32 s60, s58, {4*BS}\ns_add_u32 s61, s58, {8*BS}")
        a("s_barrier")
        ld_, rg_ = hp_gather(False)
        self.poll(ld_, rg_)
        for x in hp_reduce_ops(CSW1): a(x)
        a(f"v_lshlrev_b32 v{B1V}, 16, v{B1V}")
        a("s_branch L_p5_g")
        a("L_p5_nocs:")
        a("s_barrier")
        self.sleep(self.HSL)
        a("L_p5_g:")
        self.sel_layer(58, HPR, 62)
        a(f"s_add_u32 s60, s58, {4*BS}\ns_add_u32 s61, s58, {8*BS}")
        a(f"s_mul_i32 s63, s54, 3\ns_add_u32 s63, s63, s57\ns_add_u32 s63, s63, 1\ns_mul_i32 s63, s63, {BS}\ns_add_u32 s63, s63, s53")
        ld_, rg_ = hp_gather(True)
        self.poll(ld_, rg_, pipe=self.PH)
        self.stamp(8)
        s1, s2 = GB + 14, GB + 15
        H = T[0]
        c1 = self.row16_ops(s1, s2, GB + 12, GB + 13) + self.ln_ops(s1, s2, T[5])
        c2 = hp_reduce_ops(H)
        while c1 or c2:
            if c1: a(c1.pop(0))
            if c1 and len(c1) > 14: a(c1.pop(0))
            if c2: a(c2.pop(0))
        self.sel_layer(58, ZO, 52)
        a(f"v_fma_f32 v{H}, -v{s1}, v{CSW1}, v{H}\nv_mul_f32 v{H}, v{H}, v{s2}")
        self.bf16r(H, H)
        a(f"v_add_f32 v{H}, v{H}, v{B1V}")
        self.bf16r(H, H)
        E = T[1]; N = T[2]; Dn = T[3]
        a(f"v_mul_f32 v{E}, 0x3fb8aa3b, v{H}\nv_exp_f32 v{E}, -|v{E}|")
        a(f"v_cmp_gt_f32 vcc, 0, v{H}\nv_mov_b32 v{T[4]}, 2.0")
        a(f"v_fma_f32 v{N}, v{E}, 2.0, 1.0\nv_add_f32 v{Dn}, 2.0, v{E}\nv_mul_f32 v{Dn}, v{Dn}, v{E}")
        a(f"v_mul_f32 v{E}, v{E}, v{E}\nv_add_f32 v{E}, v{E}, v{E}")
        a(f"v_cndmask_b32 v{N}, v{N}, v{Dn}, vcc\nv_cndmask_b32 v{E}, v{E}, v{T[4]}, vcc")
        a(f"v_add_f32 v{Dn}, v{N}, v{E}\nv_rcp_f32 v{Dn}, v{Dn}\nv_mul_f32 v{N}, v{N}, v{H}\nv_mul_f32 v{N}, v{N}, v{Dn}")
        a(f"v_mov_b32_dpp v{E}, v{N} row_ror:8 {DPPALL}\nv_cvt_pk_bf16_f32 v{T[4]}, v{N}, v{E}")
        self.gemv_bcast(ACC, T[4], WB, 8)
        self.pair32(ACC, T[0], T[1])
        a(f"v_cvt_pk_bf16_f32 v{T[0]}, v{T[0]}, v{T[1]}")
        if self.G4:
            self.gather4(T[0], AB[0])
            a("s_mov_b64 exec, 0xff")
            a(f"buffer_store_dwordx4 {q4(AB[0])}, v{aP32}, {WS}, s58 offen sc1")
        else:
            a("s_mov_b64 exec, s[64:65]")
            a(f"buffer_store_dword v{T[0]}, v{aP32}, {WS}, s58 offen sc1")
        a("s_mov_b64 exec, -1")
        self.stamp(9)
        a("s_barrier")
        a("L_k_next:")
        a("s_cmp_lg_u32 s54, 0\ns_cbranch_scc1 L_final")
        self.dump_stamps()
        a("s_mov_b32 s54, 1")
        a("s_cmp_lg_u32 s3, 2\ns_cbranch_scc1 L_kloop")
        a("s_cmp_lg_u32 s2, 0\ns_cbranch_scc1 L_nogen")
        a(f"s_mov_b64 exec, 1\nv_mov_b32 v{T[0]}, s74\nv_mov_b32 v{T[1]}, {GEN_OFF}")
        a(f"buffer_store_dword v{T[0]}, v{T[1]}, {WS}, 0 offen sc1")
        a("s_mov_b64 exec, -1\nL_nogen:")
        for u in range(3):
            a(f"buffer_load_dword v{GB+4+u}, v{aQG}, {WS}, 0 offen offset:{QP1 + 128*u} sc1")
        a("s_branch L_kloop")
        a("L_final:")
        a("s_cmp_lg_u32 s3, 3\ns_cbranch_scc1 L_fin2\ns_cmp_lg_u32 s4, 0\ns_cbranch_scc1 L_fin2\ns_cmp_ge_u32 s5, 10\ns_cbranch_scc1 L_fin2")
        self.zgather(1, self.FSL)
        a("s_lshl_b32 s58, s5, 7")
        a("s_mov_b64 exec, s[64:65]")
        a(f"buffer_store_dword v{T[4]}, v{aP32}, s[40:43], s58 offen{' sc1' if self.OSC else ''}")
        a("s_mov_b64 exec, -1")
        self.stamp(11)
        if self.AMP:
            a("s_cmp_lg_u32 s2, 0\ns_cbranch_scc1 L_fin2\ns_memrealtime s[96:97]\ns_waitcnt lgkmcnt(0)")
            if self.AMP == 1: a("s_mov_b32 s94, s96")
            a("s_sub_u32 s94, s94, s92\ns_min_u32 s94, s94, 20000")
            a("L_ampl:\ns_memrealtime s[98:99]\ns_waitcnt lgkmcnt(0)\ns_sub_u32 s98, s98, s96\ns_cmp_lt_u32 s98, s94\ns_cbranch_scc1 L_ampl")
        a("L_fin2:")
        self.dump_stamps()
        a("s_endpgm")

        a("L_vloop:")
        a(f"buffer_load_dword v{XA+2}, v{aQG}, {WS}, 0 offen offset:{OP[1]} sc1")
        a("s_cmp_eq_u32 s3, 7\ns_cbranch_scc1 L_v7_b1")
        a(f"v_mov_b32 v{GB}, 0\nv_mov_b32 v{GB+2}, 0\nv_mov_b32 v{GB+3}, 0\ns_add_u32 s58, s53, {7*BS}")
        self.sleep(self.XSL)
        self.poll(["s_mov_b64 exec, s[44:45]", f"buffer_load_dword v{GB}, v{aX2}, {WS}, 0 offen offset:{X2O} sc1",
                   f"buffer_load_dwordx2 v[{GB+2}:{GB+3}], v{aXS}, {WS}, s58 offen offset:{MISC} sc1", "s_mov_b64 exec, -1"], [GB, GB + 2, GB + 3], slp=self.XSLP, pipe=self.PX)
        a("s_barrier")
        self.stamp(1)
        self.qproj(GB, T[0], T[1], self.row16_ops(T[0], T[1], GB + 2, GB + 3))
        if self.Q4:
            self.gather4(T[4], AB[0])
            a("s_mov_b64 exec, 0xff")
            self.local_stores([f"buffer_store_dwordx4 {q4(AB[0])}, v{aST}, {WS}, 0 offen offset:{QP1}{{f}}"])
        else:
            a("s_mov_b64 exec, s[64:65]")
            self.local_stores([f"buffer_store_dword v{T[4]}, v{aST}, {WS}, 0 offen offset:{QP1}{{f}}"])
        a("s_mov_b64 exec, -1")
        self.stamp(3)
        a("s_branch L_v_b2")
        a("L_v7_b1:")
        a("s_barrier")
        a("L_v_b2:")
        a(f"s_and_b32 s58, s3, 3\ns_mul_i32 s58, s58, 768\nv_add_u32 v{T[3]}, s58, v{lane4}")
        a("s_cmp_eq_u32 s54, 0\ns_cbranch_scc1 L_v_b2a\ns_waitcnt vmcnt(0)\nL_v_b2a:")
        a("s_barrier")
        self.stamp(5)
        a(f"ds_read_b128 {q4(GB)}, v{ldsP}\nds_read_b128 {q4(GB+4)}, v{ldsP} offset:16")
        a("s_cmp_lg_u32 s54, 0\ns_cbranch_scc1 L_v_nowo")
        if self.WOE: self.wo_part(self.WOE, 8)
        else: self.wo_loads(self.WS[0])
        a("L_v_nowo:")
        a("s_waitcnt lgkmcnt(0)")
        self.al()
        self.build_A(AB[0], GB)
        for G in range(8):
            nwo = self.WS[0] + (self.WS[1] if G >= 6 else 0) + (self.WS[2] if G >= 7 else 0)
            if G == 6 and self.WS[1]: self.wo_part(self.WS[0], self.WS[0] + self.WS[1])
            if G == 7 and self.WS[2]: self.wo_part(self.WS[0] + self.WS[1], self.WS[0] + self.WS[1] + self.WS[2])
            a(f"s_waitcnt vmcnt({nwo + 21 - 3*G})")
            for th in range(3):
                self.mfma(ACC + 4 * th, AB[G & 1], KV + (G * 3 + th) * 4, G == 0)
                if G + 1 < 8 and th < 2:
                    for d in (2 * th, 2 * th + 1):
                        a(f"v_perm_b32 v{AB[(G+1)&1]+d}, v{GB+G+1}, v{GB+G+1}, v{SEL+d}")
        for th in range(3):
            self.l64(ACC + 4 * th, T[th])
            a(f"ds_write_b32 v{T[3]}, v{T[th]} offset:{L_O + 256*th}")
        self.sel_layer(58, OP)
        a("s_lshl_b32 s60, s54, 6")
        a("s_waitcnt lgkmcnt(0)\ns_barrier")
        self.stamp(6)
        if sum(self.WS) < 8: self.wo_part(sum(self.WS), 8)
        a("s_cmp_ge_u32 s5, 30\ns_cbranch_scc1 L_v_next")
        self.sleep(self.OSL)
        self.poll([f"buffer_load_dwordx4 {q4(GB)}, v{aQG}, {WS}, s58 offen sc1",
                   f"buffer_load_dwordx2 v[{GB+4}:{GB+5}], v{aML}, {WS}, s60 offen offset:{MISC} sc1"], range(GB, GB + 6),
                  spec=[f"v_max_f32_dpp v{T[0]}, v{GB+4}, v{GB+4} {Q1} {DPPALL}", f"v_max_f32_dpp v{T[0]}, v{T[0]}, v{T[0]} {Q2} {DPPALL}", f"v_max_f32_dpp v{T[0]}, v{T[0]}, v{T[0]} {HM} {DPPALL}"], pipe=self.PO)
        if self.B3B: a("s_cmp_lg_u32 s54, 0\ns_cbranch_scc1 L_v_nb3b\ns_barrier\nL_v_nb3b:")
        self.stamp(8)
        M = T[0]; W = T[1]
        a(f"v_sub_f32 v{W}, v{GB+4}, v{M}\nv_exp_f32 v{W}, v{W}\nv_mul_f32 v{W}, v{W}, v{GB+5}")
        a(f"v_mov_b32_dpp v{T[2]}, v{W} row_newbcast:0 {DPPALL}\nv_mov_b32_dpp v{T[3]}, v{W} row_newbcast:1 {DPPALL}")
        a(f"v_cvt_pk_bf16_f32 v{T[2]}, v{T[2]}, v{T[3]}")
        self.build_A(AB[0], T[2])
        self.bf16r(W, W)
        self.mfma(ACC, AB[0], GB, True)
        for c in (Q1, Q2, HM):
            a(f"v_add_f32_dpp v{W}, v{W}, v{W} {c} {DPPALL}")
        a(f"v_rcp_f32 v{W}, v{W}")
        self.pair32(ACC, T[2], T[3])
        a(f"v_mul_f32 v{T[2]}, v{T[2]}, v{W}\nv_mul_f32 v{T[3]}, v{T[3]}, v{W}\nv_cvt_pk_bf16_f32 v{T[4]}, v{T[2]}, v{T[3]}")
        self.gemv_bcast(ACC + 4, T[4], WB, 8)
        a(f"s_and_b32 s58, s3, 3\ns_lshl_b32 s58, s58, 8\nv_add_u32 v{T[3]}, s58, v{lane4}")
        self.l64(ACC + 4, T[0])
        a(f"ds_write_b32 v{T[3]}, v{T[0]} offset:{L_YR}")
        self.sel_layer(58, YO, 52)
        a("s_waitcnt vmcnt(0) lgkmcnt(0)\ns_barrier")
        a("s_cmp_lg_u32 s3, 7\ns_cbranch_scc1 L_v_b5")
        for w in range(4): a(f"ds_read_b32 v{GB+w}, v{lane4} offset:{L_YR + 256*w}")
        a("s_waitcnt lgkmcnt(0)")
        a(f"v_add_f32 v{GB}, v{GB}, v{GB+1}\nv_add_f32 v{GB+2}, v{GB+2}, v{GB+3}\nv_add_f32 v{T[0]}, v{GB}, v{GB+2}")
        a(f"v_mov_b32_dpp v{T[1]}, v{T[0]} row_ror:8 {DPPALL}\nv_cvt_pk_bf16_f32 v{T[0]}, v{T[0]}, v{T[1]}")
        if self.G4:
            self.gather4(T[0], AB[0])
            a("s_mov_b64 exec, 0xff")
            a(f"buffer_store_dwordx4 {q4(AB[0])}, v{aP32}, {WS}, s58 offen sc1")
        else:
            a("s_mov_b64 exec, s[64:65]")
            a(f"buffer_store_dword v{T[0]}, v{aP32}, {WS}, s58 offen sc1")
        a("s_mov_b64 exec, -1")
        self.stamp(9)
        a("L_v_b5:")
        a("s_cmp_lg_u32 s54, 0\ns_cbranch_scc1 L_v_b5b")
        self.v_fetch_wq()
        self.dump_stamps()
        a("L_v_b5b:")
        a("s_barrier\ns_barrier")
        a("s_cmp_lg_u32 s54, 0\ns_cbranch_scc1 L_fin2")
        a("s_mov_b32 s54, 1\ns_branch L_vloop")
        a("L_v_next:")
        a("s_cmp_lg_u32 s54, 0\ns_cbranch_scc1 L_fin2")
        self.v_fetch_wq()
        self.dump_stamps()
        a("s_mov_b32 s54, 1\ns_sleep 48\ns_branch L_vloop")
        self.flush_ool()
        a("L_end:\ns_endpgm")
        a('.section .rodata,"a"\n.p2align 6')
        a(f".amdhsa_kernel {KNAME}")
        a(".amdhsa_next_free_vgpr 256\n.amdhsa_next_free_sgpr 102\n.amdhsa_accum_offset 256\n.amdhsa_group_segment_fixed_size 0\n.amdhsa_kernarg_size 96")
        a(".amdhsa_user_sgpr_count 2\n.amdhsa_user_sgpr_kernarg_segment_ptr 1\n.amdhsa_system_sgpr_workgroup_id_x 1\n.end_amdhsa_kernel")
        return a.render()

    def code_prefetch(self):
        a = self.a
        le = self.L("cpf")
        a(f"s_cmp_lg_u32 s3, 1\ns_cbranch_scc1 {le}\ns_cmp_lg_u32 s54, 0\ns_cbranch_scc1 {le}")
        a("s_getpc_b64 s[72:73]")
        a("L_pcref:")
        a(f"s_sub_u32 s72, s72, L_pcref-{KNAME}\ns_subb_u32 s73, s73, 0")
        a(f"v_lshlrev_b32 v{T[0]}, 5, v0\nv_add_u32 v{T[0]}, s5, v{T[0]}\nv_lshlrev_b32 v{T[0]}, 7, v{T[0]}")
        a(f"v_mov_b32 v{T[1]}, L_end-{KNAME}\nv_cmp_lt_u32 vcc, v{T[0]}, v{T[1]}\ns_and_b64 exec, vcc, exec")
        a(f"global_load_dword v{XA+5}, v{T[0]}, s[72:73] sc1")
        a("s_mov_b64 exec, -1")
        a(f"{le}:")

    def v_prologue(self):
        a = self.a
        if "dbl" in self.knobs:
            a(f"v_mul_u32_u24 v{T[0]}, 384, v2\nv_lshl_add_u32 v{T[0]}, v1, 4, v{T[0]}\ns_sub_u32 s61, s59, {6144*384}")
            for srd in ("s[12:15]", "s[16:19]"):
                for n in range(24):
                    rg, th = divmod(n, 3)
                    if th == 0: a(f"s_add_u32 s58, s61, {rg*8*384}")
                    a(f"buffer_load_dwordx4 {q4(KV+4*n)}, v{T[0]}, {srd}, s58 offen offset:{th*128} nt")
            a("s_waitcnt vmcnt(12)")
        self.k_dma()
        for n in range(24):
            rg, th = divmod(n, 3)
            if n == self.NB:
                a(f"s_lshl_b32 s60, s3, 2\nv_mov_b32 v{T[2]}, s60\nv_mov_b32 v{T[3]}, 1")
                a(f"s_waitcnt vmcnt({self.NB})\nds_write_b32 v{T[2]}, v{T[3]} offset:{L_CTRL}")
                self.stamp(11)
            if th == 0: a(f"s_add_u32 s58, s59, {rg*8*384}")
            a(f"buffer_load_dwordx4 {q4(KV+4*n)}, v{T[4]}, s[16:19], s58 offen offset:{th*128} nt")
        self.stamp(1)
        if self.knobs & {"lo1", "lo2", "lo3"}:
            if "wo" in self.knobs:
                self.wo_loads()
                a("s_waitcnt vmcnt(8)")
                self.stamp(5)
            a("s_waitcnt vmcnt(0)")
            self.stamp(6)
            a("s_branch L_fin2")
        if self.WOE: self.wo_loads(self.WOE)
        if self.PRI == 1: a("s_setprio 1")
        self.consts()
        self.vwave_addrs()
        a("s_branch L_v_b2")

    def v_fetch_wq(self):
        a = self.a
        a(f"s_and_b32 s58, s3, 3\ns_min_u32 s58, s58, 2\ns_mul_i32 s58, s58, 10752\ns_add_u32 s58, s58, {L_WQ}\nv_lshlrev_b32 v{T[0]}, 4, v0\nv_add_u32 v{T[0]}, s58, v{T[0]}")
        for t in range(10):
            a(f"ds_read_b128 {q4(WA+4*t)}, v{T[0]} offset:{1024*t}")
        a(f"v_add_u32 v{T[1]}, s58, v{lane4}\nds_read_b32 v{CS0}, v{T[1]} offset:10240\nds_read_b32 v{CS1}, v{T[1]} offset:10496")
        self.read_fast()
        a(f"s_add_u32 s58, s53, {7*BS}\nbuffer_load_dword v{XA+3}, v{aX2}, {WS}, 0 offen offset:{X2O} sc1\nbuffer_load_dword v{XA+4}, v{aXS}, {WS}, s58 offen offset:{MISC} sc1")

    def zgather(self, layer, slp):
        a = self.a
        a(f"s_mul_i32 s58, s56, {BS}\ns_add_u32 s60, s58, {10*BS}\ns_add_u32 s61, s58, {20*BS}")
        self.sleep(slp)
        self.poll([f"buffer_load_dwordx4 {q4(GB+4*n)}, v{aROW}, {WS}, s{(58,60,61)[n]} offen offset:{ZO[layer]} sc1" for n in range(3)], range(GB, GB + 12),
                  spec=[self.mfma_s(ACC, ONES, GB + 4 * n, n == 0) for n in range(3)], pipe=self.PZ)
        self.stamp(10 if layer else 1)
        self.resid_add()

REF = "interleave_layers__sliding_block_cached__dense_activation_mish__decode.s.ref"
HEADER = open(REF).read().split("; Override")[0] if os.path.exists(REF) else ""

if __name__ == "__main__":
    prof = {"prof": 1, "lite": 3}.get(sys.argv[2], 0) if len(sys.argv) > 2 else 0
    open(sys.argv[1], "w").write(HEADER + Gen(prof, sys.argv[3:]).gen())
```

```python
import sys, os
sys.path.insert(0, "gen")
from asmlib import Asm

KNAME = "interleave_layers__sliding_block_cached__dense_activation_mish__decode_kernel"
BS = 4736
YO = [0, 128]; ZO = [256, 384]
QP1 = 512
OP = [896, 1280]
MISC = 1664
HPR = [1792, 2048]; HPC = 2304
X2O = 2560
CLR_END = 2816
QP0T = 3072
GEN_OFF = 256 * BS
FL1 = GEN_OFF + 4096; FL2 = GEN_OFF + 8192
WS_USED = GEN_OFF + 12288
PROF_OFF = 2 << 20
L_CTRL = 0
L_ML = 128
L_P = 256
L_O = 1024
L_YR = 4096
L_Q = 5120
L_K = 8192
L_WQ = L_K + 98304
LDS_BYTES = L_WQ + 3 * 10752
POLL_LIMIT = 200000
ONES = 4; SEL = 8; AB = [12, 16]; ACC = 20; GB = 36; XA = 60
aQG = 70; aP32 = 71; aROW = 72; aML = 73; aST = 74; ldsP = 75; lane4 = 76
CS0 = 77; CS1 = 78; X0 = 79; X1 = 80; B1V = 81; CSW1 = 82
T = [83, 84, 85, 86, 87, 1, 2, 3]
aX2 = 68; aXS = 69
KV = 88; WA = 184; WB = 224
WS = "s[48:51]"

DOC = """
Persistent fused kernel (generated by the author's own script): 256 workgroups x 8 waves, one per CU.
K, V and all weight slices are read from HBM once and stay in registers / LDS for both layer passes.
 wg = 8*m + xg : xg = group (expected XCD), head = 4*xg + m/8, key chunk = m%8 (256 keys).
 waves 0-3 ("K"): QK + softmax, partial combine, w1 / w2 GEMVs ; waves 4-7 ("V"): streaming, PV, wo and wq GEMVs.
GEMVs over [k][n] weights use v_mfma_f32_16x16x32_bf16 with a selector A operand (one non-zero per row).
LayerNorm is applied after the GEMV by linearity (rstd * (x.W - mean * colsum(W))).
Hand-offs go through d_ws: slots are cleared to 0xFFFFFFFF at kernel start and polled dword by dword;
a launch-unique tag (derived from one word of d_ws) validates the start-up flags and the first q exchange.
Group-local hand-offs use plain stores only if every member reported the same XCC id, else write-through stores.
Every poll loop is bounded.
"""

def q4(r): return f"v[{r}:{r+3}]"
DPPALL = "row_mask:0xf bank_mask:0xf"
Q1 = "quad_perm:[1,0,3,2]"; Q2 = "quad_perm:[2,3,0,1]"; HM = "row_half_mirror"; RM = "row_mirror"

class Gen:
    def __init__(self, prof=0, knobs=()):
        self.knobs = set(knobs)
        self.LL = 4; self.LL2 = 4; self.W2SL = 16; self.PERT = 0; self.PALL = 0; self.PRI = 0; self.WOE = 0; self.WSP = 800; self.AMP = 0; self.B0IT = 0; self.B3B = 1; self.Q4 = 0; self.G4 = 0; self.PQ = 0; self.PO = 1; self.PX = 0; self.PH = 1; self.PZ = 0; self.PGAP = 12; self.TR = 1; self.XSLP = 0; self.Q1ST = 1; self.QPW = 0; self.FLSL = 127; self.QFB = 5; self.CPF0 = 1; self.B0E = 0; self.B0N = 0; self.OSC = 0; self.AL = 1; self.ALP = 3; self.SHIFT = 0; self.CPF = 0; self.NB = 8; self.QSLEEP0 = 56; self.QSLEEP1 = 24
        self.QSL = 12; self.OSL = 8; self.YSL0 = 16; self.YSL = 15; self.HSL = 10; self.ZSL = 11; self.XSL = 26; self.FSL = 8
        for k in knobs:
            if '=' in k: setattr(self, k.split('=')[0], int(k.split('=')[1]))
        self.WS = [self.WSP // 100, self.WSP // 10 % 10, self.WSP % 10]
        self.a = Asm(); self.prof = prof; self.uid = 0; self.ool = []
    def L(self, base):
        self.uid += 1
        return f"L_{base}_{self.uid}"
    def stamp(self, i):
        if self.prof == 3 and i not in (0, 6, 11): return
        if self.prof: self.a(f"s_memrealtime s[{76+2*i}:{77+2*i}]")
    def al(self, n=3):
        if self.AL: self.a(f".p2align {n}")
    def sleep(self, n):
        if n: self.a(f"s_sleep {n}")
    def dump_stamps(self):
        if not self.prof: return
        a = self.a
        a("s_waitcnt lgkmcnt(0)")
        a(f"v_mov_b32 v{T[0]}, 0")
        for i in range(13):
            a(f"v_writelane_b32 v{T[0]}, s{76+2*i}, {i}")
        a("s_lshl_b32 s58, s2, 3\ns_add_u32 s58, s58, s3\ns_lshl_b32 s58, s58, 1\ns_add_u32 s58, s58, s54\ns_lshl_b32 s58, s58, 6")
        a(f"s_add_u32 s58, s58, {PROF_OFF}")
        a("s_mov_b64 exec, 0xffff")
        a(f"buffer_store_dword v{T[0]}, v{lane4}, {WS}, s58 offen")
        a("s_mov_b64 exec, -1")
        for i in range(13):
            a(f"s_mov_b64 s[{76+2*i}:{77+2*i}], 0")
    def dump0(self):
        if not self.prof: return
        l = self.L("nd")
        self.a(f"s_cmp_lg_u32 s54, 0\ns_cbranch_scc1 {l}")
        self.dump_stamps()
        self.a(f"{l}:")
    def local_stores(self, lines):
        a = self.a
        ls, ld = self.L("sl"), self.L("sd")
        a(f"s_cmp_eq_u32 s55, 0\ns_cbranch_scc1 {ls}")
        for x in lines: a(x.replace("{f}", ""))
        a(f"{ld}:")
        self.ool.append([f"{ls}:", "s_nop 7"] + [x.replace("{f}", " sc1") for x in lines] + ["s_nop 1", f"s_branch {ld}"])
    def poll(self, loads, regs, entry=None, slp=0, spec=(), pipe=0):
        a = self.a
        lp, lr, ld = self.L("poll"), self.L("retry"), self.L("got")
        a("s_mov_b32 s70, 0")
        nld = sum(1 for x in loads if x.startswith("buffer_"))
        post = []
        if pipe:
            for _ in range(pipe):
                for x in loads: a(x)
                a(f"s_nop {self.PGAP}\ns_nop {self.PGAP}")
            post = list(spec); spec = ()
        a(f"{lp}:")
        for x in loads: a(x)
        if self.TR and not slp:
            a(f"s_add_u32 s70, s70, 1\ns_cmp_lt_u32 s70, {POLL_LIMIT}\ns_cbranch_scc0 {lr}")
        if entry: a(f"{entry}:")
        self.al(self.ALP)
        a(f"s_nop 0\ns_waitcnt vmcnt({nld * pipe})")
        t = T[7]
        rs = list(regs)
        chk = []
        if len(rs) == 1:
            chk.append(f"v_cmp_eq_u32 vcc, -1, v{rs[0]}")
        else:
            if len(rs) == 2:
                chk.append(f"v_max_u32 v{t}, v{rs[0]}, v{rs[1]}"); rs = []
            else:
                chk.append(f"v_max3_u32 v{t}, v{rs[0]}, v{rs[1]}, v{rs[2]}"); rs = rs[3:]
            while rs:
                if len(rs) >= 2:
                    chk.append(f"v_max3_u32 v{t}, v{t}, v{rs[0]}, v{rs[1]}"); rs = rs[2:]
                else:
                    chk.append(f"v_max_u32 v{t}, v{t}, v{rs[0]}"); rs = rs[1:]
            chk.append(f"v_cmp_eq_u32 vcc, -1, v{t}")
        spec = list(spec)
        while spec or chk:
            if spec: a(spec.pop(0))
            for _ in range(2):
                if chk: a(chk.pop(0))
        if self.TR and not slp:
            a(f"s_cbranch_vccnz {lp}")
            a(f"{ld}:")
            for x in post: a(x)
            self.ool.append([f"{lr}:", "s_waitcnt vmcnt(0)", f"s_branch {ld}"])
            return
        a(f"s_cbranch_vccnz {lr}")
        a(f"{ld}:")
        self.ool.append([f"{lr}:", f"s_sleep {slp}" if slp else "s_nop 7", f"s_add_u32 s70, s70, 1", f"s_cmp_lt_u32 s70, {POLL_LIMIT}", f"s_cbranch_scc1 {lp}", f"s_branch {ld}"])
    def mfma_s(self, D, A, B, first):
        return f"v_mfma_f32_16x16x32_bf16 {q4(D)}, {q4(A)}, {q4(B)}, {'0' if first else q4(D)}"
    def flush_ool(self):
        for blk in self.ool:
            for x in blk: self.a(x)
        self.ool = []
    def build_A(self, dst, src):
        for d in range(4):
            self.a(f"v_perm_b32 v{dst+d}, v{src}, v{src}, v{SEL+d}")
    def mfma(self, D, A, B, first):
        self.a(f"v_mfma_f32_16x16x32_bf16 {q4(D)}, {q4(A)}, {q4(B)}, {'0' if first else q4(D)}")
    def pair32(self, D, t0, t1):
        self.a(f"v_add_f32_dpp v{t0}, v{D+1}, v{D} row_ror:8 {DPPALL}")
        self.a(f"v_add_f32_dpp v{t1}, v{D+3}, v{D+2} row_ror:8 {DPPALL}")
    def l64(self, D, t):
        self.a(f"v_add_f32_dpp v{t}, v{D+1}, v{D} row_ror:8 row_mask:0xf bank_mask:0x3")
        self.a(f"v_add_f32_dpp v{t}, v{D+2}, v{D+3} row_ror:8 row_mask:0xf bank_mask:0xc")
    def gemv_bcast(self, D, pair, W, n, fill=()):
        a = self.a
        fill = list(fill)
        tb = [T[5], T[6]]
        self.al()
        a(f"v_mov_b32_dpp v{tb[0]}, v{pair} row_newbcast:0 {DPPALL}")
        for t in range(n):
            if t + 1 < n:
                a(f"v_mov_b32_dpp v{tb[(t+1)&1]}, v{pair} row_newbcast:{t+1} {DPPALL}")
            self.build_A(AB[t & 1], tb[t & 1])
            if t > 0: self.mfma(D, AB[(t-1) & 1], W + 4 * (t-1), t == 1)
            for _ in range(2):
                if fill: a(fill.pop(0))
        self.mfma(D, AB[(n-1) & 1], W + 4 * (n-1), n == 1)
        for x in fill: a(x)
    def bf16r_ops(self, dst, src):
        return [f"v_cvt_pk_bf16_f32 v{dst}, v{src}, v{src}", f"v_lshlrev_b32 v{dst}, 16, v{dst}"]
    def bf16r(self, dst, src):
        for x in self.bf16r_ops(dst, src): self.a(x)
    def ln_ops(self, s1, s2, t):
        inv = "0x3acccccd"
        return [f"v_mul_f32 v{s1}, {inv}, v{s1}", f"v_mul_f32 v{s2}, {inv}, v{s2}", f"v_fma_f32 v{s2}, -v{s1}, v{s1}, v{s2}",
                f"v_max_f32 v{s2}, 0, v{s2}", f"v_cvt_pk_bf16_f32 v{t}, v{s1}, v{s2}", f"v_lshlrev_b32 v{s1}, 16, v{t}",
                f"v_and_b32 v{s2}, 0xffff0000, v{t}", f"v_add_f32 v{s2}, 0x3727c5ac, v{s2}"] + self.bf16r_ops(s2, s2) + \
               [f"v_sqrt_f32 v{s2}, v{s2}"] + self.bf16r_ops(s2, s2) + [f"v_rcp_f32 v{s2}, v{s2}"]
    def red2_ops(self, s1, s2, steps, tmp):
        return [f"v_permlane32_swap_b32 v{s1}, v{s2}", f"v_add_f32 v{s1}, v{s1}, v{s2}", f"v_mov_b32 v{tmp}, v{s1}",
                f"v_permlane16_swap_b32 v{s1}, v{tmp}", f"v_add_f32 v{s1}, v{s1}, v{tmp}"] + \
               [f"v_add_f32_dpp v{s1}, v{s1}, v{s1} {c} {DPPALL}" for c in steps]
    def row16_ops(self, s1, s2, i1=None, i2=None):
        out = []
        for c in (Q1, Q2, HM, RM):
            a1 = i1 if (c == Q1 and i1 is not None) else s1
            a2 = i2 if (c == Q1 and i2 is not None) else s2
            out += [f"v_add_f32_dpp v{s1}, v{a1}, v{a1} {c} {DPPALL}", f"v_add_f32_dpp v{s2}, v{a2}, v{a2} {c} {DPPALL}"]
        return out
    def allred64(self, op, v, tmp):
        a = self.a
        for c in (Q1, Q2, HM, RM):
            a(f"{op}_dpp v{v}, v{v}, v{v} {c} {DPPALL}")
        a(f"v_mov_b32 v{tmp}, v{v}\nv_permlane16_swap_b32 v{v}, v{tmp}\n{op} v{v}, v{v}, v{tmp}")
        a(f"v_mov_b32 v{tmp}, v{v}\nv_permlane32_swap_b32 v{v}, v{tmp}\n{op} v{v}, v{v}, v{tmp}")
    def sel_layer(self, dst, arr, add=None):
        a = self.a
        a(f"s_mul_i32 s{dst}, s54, {arr[1]-arr[0]}")
        if arr[0]: a(f"s_add_u32 s{dst}, s{dst}, {arr[0]}")
        if add is not None: a(f"s_add_u32 s{dst}, s{dst}, s{add}")
    def lds_wait_flag(self, off, val=None, fb=0):
        a = self.a
        lp, ld = self.L("lw"), self.L("lg")
        t = T[5]; t2 = T[6]
        a(f"v_mov_b32 v{t2}, {off}\ns_mov_b32 s70, 0")
        a(f"{lp}:\nds_read_b32 v{t}, v{t2}\ns_waitcnt lgkmcnt(0)\nv_readfirstlane_b32 s58, v{t}")
        a(f"s_cmp_lg_u32 s58, 0\ns_cbranch_scc1 {ld}" if val is None else f"s_cmp_eq_u32 s58, {val}\ns_cbranch_scc1 {ld}")
        a("s_sleep 1\ns_add_u32 s70, s70, 1")
        if fb: self.q_fallback(fb)
        a(f"s_cmp_lt_u32 s70, {4*POLL_LIMIT}\ns_cbranch_scc1 {lp}")
        a(f"{ld}:")
    def q_fallback(self, thresh):
        a = self.a
        QD = XA + 6
        le = self.L("qfb")
        a(f"s_cmp_lt_u32 s70, {thresh}\ns_cbranch_scc1 {le}\ns_cmp_lg_u32 s71, 0\ns_cbranch_scc1 {le}\ns_cmp_eq_u32 s3, 3\ns_cbranch_scc1 {le}")
        a("s_mov_b32 s71, 1\ns_mov_b64 exec, s[64:65]")
        a(f"buffer_store_dwordx2 v[{QD}:{QD+1}], v{X0}, {WS}, s63 offen offset:{QP0T} sc1")
        a(f"s_mov_b64 exec, -1\ns_waitcnt vmcnt(0)\n{le}:")
    def read_fast(self):
        self.a(f"v_mov_b32 v{T[2]}, {L_CTRL+4}\nds_read_b32 v{T[2]}, v{T[2]}\ns_waitcnt lgkmcnt(0)\nv_readfirstlane_b32 s55, v{T[2]}\ns_lshr_b32 s55, s55, 1")
    def make_tag(self):
        self.a("s_waitcnt lgkmcnt(0)\ns_mul_i32 s74, s74, 1664525\ns_add_u32 s74, s74, 1013904223")
    def resid_add(self):
        a = self.a
        self.pair32(ACC, T[2], T[3])
        a(f"v_cvt_pk_bf16_f32 v{T[4]}, v{T[2]}, v{T[3]}")
        a(f"v_lshlrev_b32 v{T[2]}, 16, v{T[4]}\nv_and_b32 v{T[3]}, 0xffff0000, v{T[4]}")
        a(f"v_add_f32 v{T[2]}, v{T[2]}, v{X0}\nv_add_f32 v{T[3]}, v{T[3]}, v{X1}")
        a(f"v_cvt_pk_bf16_f32 v{T[4]}, v{T[2]}, v{T[3]}")
    def gather4(self, src, Q):
        a = self.a
        a(f"v_mov_b32 v{Q}, v{src}\nv_mov_b32 v{Q+1}, v{src}")
        a(f"v_permlane16_swap_b32 v{Q}, v{Q+1}")
        a(f"v_mov_b32 v{Q+2}, v{Q}\nv_mov_b32 v{Q+3}, v{Q+1}")
        a(f"v_permlane32_swap_b32 v{Q}, v{Q+2}\nv_permlane32_swap_b32 v{Q+1}, v{Q+3}")
    def unpackX_ops(self, src):
        return [f"v_lshlrev_b32 v{X0}, 16, v{src}", f"v_and_b32 v{X1}, 0xffff0000, v{src}"]
    def xstats_ops(self, s1, s2, tmp):
        return [f"v_add_f32 v{s1}, v{X0}, v{X1}", f"v_mul_f32 v{s2}, v{X0}, v{X0}", f"v_fmac_f32 v{s2}, v{X1}, v{X1}"] + self.red2_ops(s1, s2, (Q1, Q2, HM), tmp)
    def rows24_loads(self, off_arr):
        a = self.a
        self.sel_layer(58, off_arr)
        a(f"s_mul_i32 s60, s56, {BS}\ns_add_u32 s58, s58, s60\ns_add_u32 s60, s58, {10*BS}\ns_add_u32 s61, s58, {20*BS}")
        return [f"buffer_load_dwordx4 {q4(GB+4*n)}, v{aROW}, {WS}, s{(58,60,61)[n]} offen sc1" for n in range(3)]
    def consts(self):
        a = self.a
        t0, t1, t2 = T[0], T[1], T[2]
        a(f"v_and_b32 v{t0}, 1, v0\nv_mul_u32_u24 v{t0}, 0x202, v{t0}\nv_add_u32 v{t0}, 0x100, v{t0}")
        a(f"v_bfe_u32 v{t1}, v0, 1, 1\nv_lshlrev_b32 v{t1}, 4, v{t1}\nv_lshlrev_b32 v{t0}, v{t1}, v{t0}")
        a(f"v_mov_b32 v{t2}, 0x0c0c0000\nv_lshrrev_b32 v{t2}, v{t1}, v{t2}\nv_or_b32 v{t0}, v{t0}, v{t2}")
        a(f"v_bfe_u32 v{t1}, v0, 2, 2\nv_mov_b32 v{t2}, 0x0c0c0c0c")
        for d in range(4):
            a(f"v_cmp_eq_u32 vcc, {d}, v{t1}\nv_cndmask_b32 v{SEL+d}, v{t2}, v{t0}, vcc")
        a(f"v_mov_b32 v{t0}, 0x3f803f80")
        self.build_A(ONES, t0)
    def kwave_addrs(self):
        a = self.a
        t0, t1, t2 = T[0], T[1], T[2]
        a(f"v_lshrrev_b32 v{t0}, 3, v0\nv_and_b32 v{t1}, 7, v0\ns_mov_b32 s58, {32*BS}\nv_mul_lo_u32 v{aROW}, s58, v{t0}\nv_lshl_add_u32 v{aROW}, v{t1}, 4, v{aROW}")
        a(f"v_mul_u32_u24 v{aX2}, {BS}, v{t1}\nv_lshrrev_b32 v{t1}, 4, v0\nv_lshl_add_u32 v{aX2}, v{t1}, 6, v{aX2}")
        a(f"s_lshl_b32 s58, s56, 2\ns_add_u32 s58, s58, s53\nv_add_u32 v{aX2}, s58, v{aX2}")
        a(f"v_bfe_u32 v{t0}, v0, 3, 1\nv_lshl_add_u32 v{t0}, v{t0}, 2, v{t1}\nv_mul_u32_u24 v{aQG}, {BS}, v{t0}")
        a(f"v_and_b32 v{t0}, 7, v0\nv_lshl_add_u32 v{aQG}, v{t0}, 4, v{aQG}")
        a(f"s_mul_i32 s58, s6, {8*BS}\ns_add_u32 s58, s58, s53\nv_add_u32 v{aQG}, s58, v{aQG}")
        a(f"v_and_b32 v{t0}, 3, v0\nv_lshlrev_b32 v{t0}, 4, v{t0}\nv_lshl_add_u32 v{t0}, v{t1}, 2, v{t0}\nv_bfe_u32 v{t2}, v0, 2, 2\nv_add_u32 v{t0}, v{t0}, v{t2}")
        a(f"v_bfe_u32 v{t2}, v{t0}, 1, 2\nv_lshlrev_b32 v{ldsP}, 5, v{t2}\nv_lshrrev_b32 v{t2}, 3, v{t0}\nv_lshl_add_u32 v{ldsP}, v{t2}, 2, v{ldsP}")
        a(f"v_and_b32 v{t2}, 1, v{t0}\nv_lshl_add_u32 v{ldsP}, v{t2}, 1, v{ldsP}")
        a(f"s_lshl_b32 s58, s3, 7\ns_add_u32 s58, s58, {L_P}\nv_add_u32 v{ldsP}, s58, v{ldsP}")
        a(f"v_and_b32 v{t0}, 15, v0\nv_mul_u32_u24 v{aML}, {BS}, v{t1}\nv_lshl_add_u32 v{aML}, v{t0}, 4, v{aML}")
        a(f"v_lshlrev_b32 v{aST}, 4, v{t0}\nv_lshl_add_u32 v{aST}, v{t1}, 2, v{aST}\nv_lshlrev_b32 v{aXS}, 3, v{t0}")
    def vwave_addrs(self):
        a = self.a
        a("v_and_b32 v1, 7, v0\nv_lshrrev_b32 v2, 3, v0\nv_lshrrev_b32 v3, 4, v0")
        a("s_min_u32 s61, s57, 2\ns_lshl_b32 s58, s61, 2\ns_and_b32 s60, s3, 3\ns_add_u32 s58, s58, s60\ns_mul_i32 s60, s58, 43\ns_lshr_b32 s60, s60, 7")
        a("s_mul_i32 s61, s60, 3\ns_sub_u32 s58, s58, s61")
        a(f"s_mul_i32 s60, s60, {8*BS}\ns_add_u32 s60, s60, s53\ns_lshl_b32 s58, s58, 7\ns_add_u32 s58, s58, s60")
        a(f"v_mul_u32_u24 v{aQG}, {BS}, v2\nv_lshl_add_u32 v{aQG}, v1, 4, v{aQG}\nv_add_u32 v{aQG}, s58, v{aQG}")
        a(f"v_lshl_add_u32 v{aML}, v3, 1, v0\nv_and_b32 v{aML}, 7, v{aML}\nv_lshlrev_b32 v{aML}, 3, v{aML}\nv_add_u32 v{aML}, s60, v{aML}")
        a(f"s_and_b32 s58, s3, 3\ns_lshl_b32 s58, s58, 7\ns_add_u32 s58, s58, {L_P}\nv_lshlrev_b32 v{ldsP}, 5, v3\nv_add_u32 v{ldsP}, s58, v{ldsP}")
        a(f"s_mul_i32 s58, s6, {8*BS}\ns_add_u32 s58, s58, s53\ns_and_b32 s60, s3, 3\ns_lshl_b32 s60, s60, 7\ns_add_u32 s58, s58, s60\ns_lshl_b32 s60, s7, 4\ns_add_u32 s58, s58, s60")
        a(f"v_mul_u32_u24 v{aST}, {BS}, v1\nv_lshl_add_u32 v{aST}, v3, 2, v{aST}\nv_add_u32 v{aST}, s58, v{aST}")
        a(f"s_mul_i32 s58, s7, {BS}\ns_add_u32 s58, s58, s53\nv_add_u32 v{aX2}, s58, v{lane4}")
        a(f"v_and_b32 v{aXS}, 15, v0\nv_lshlrev_b32 v{aXS}, 3, v{aXS}\nv_mov_b32 v{aROW}, 0")
    def k_dma(self):
        a = self.a
        t = T[0]; t2 = T[1]
        a(f"v_lshrrev_b32 v{t}, 3, v0\nv_and_b32 v{t2}, 6, v{t}\nv_xor_b32 v{t2}, v{t2}, v0\nv_and_b32 v{t2}, 7, v{t2}")
        a(f"v_mul_u32_u24 v{t}, 384, v{t}\nv_lshl_add_u32 v{t}, v{t2}, 4, v{t}")
        a(f"s_and_b32 s60, s3, 3\ns_mul_i32 s60, s60, 24576\ns_add_u32 s60, s60, {L_K}\ns_mov_b32 s58, s59\ns_add_u32 s61, s59, {64*384}")
        a(f"v_mul_u32_u24 v{T[4]}, 384, v2\nv_lshl_add_u32 v{T[4]}, v1, 4, v{T[4]}")
        a("s_waitcnt lgkmcnt(0)")
        self.stamp(2)
        if self.B0IT == 0: a("s_barrier")
        self.stamp(3)
        a(f"s_add_u32 s62, s59, {3072*self.B0IT}")
        a("L_kdma:")
        for th in range(3):
            a(f"s_add_u32 m0, s60, {th*1024 - th*128}")
            a(f"buffer_load_dwordx4 v{t}, s[12:15], s58 offen offset:{th*128} nt lds")
        a("s_add_u32 s60, s60, 3072\ns_add_u32 s58, s58, 3072")
        if self.B0IT: a("s_cmp_lg_u32 s58, s62\ns_cbranch_scc1 L_kdma_nb\ns_barrier\nL_kdma_nb:")
        a("s_cmp_lt_u32 s58, s61\ns_cbranch_scc1 L_kdma")
    def k_to_regs(self):
        a = self.a
        t = T[0]; t2 = T[1]; t3 = T[2]
        a(f"v_and_b32 v{t}, 7, v0\nv_lshrrev_b32 v{t2}, 4, v0\nv_and_b32 v{t3}, 6, v0\nv_xor_b32 v{t2}, v{t2}, v{t3}")
        a(f"v_lshlrev_b32 v{t}, 7, v{t}\nv_bfe_u32 v{t3}, v0, 3, 1\nv_mul_u32_u24 v{t3}, 3072, v{t3}\nv_add_u32 v{t}, v{t}, v{t3}")
        a(f"s_mul_i32 s60, s3, 24576\nv_add_u32 v{t}, s60, v{t}")
        a(f"v_lshl_add_u32 v{t3}, v{t2}, 4, v{t}")
        a(f"v_xor_b32 v{t2}, 4, v{t2}\nv_lshl_add_u32 v{t2}, v{t2}, 4, v{t}")
        for tile in range(4):
            for u in range(6):
                off = L_K + (2 * tile * 3 + (u >> 1)) * 1024
                a(f"ds_read_b128 {q4(KV + (tile*6+u)*4)}, v{t2 if (u & 1) else t3} offset:{off}")
            if tile == 1: a("s_waitcnt lgkmcnt(0)")
        a("s_waitcnt lgkmcnt(0)")
    def wo_part(self, lo, hi):
        a = self.a
        le = self.L("wop")
        a(f"s_cmp_lg_u32 s54, 0\ns_cbranch_scc1 {le}")
        for t in range(lo, hi):
            a(f"buffer_load_dwordx4 {q4(WB+4*t)}, v{XA}, s[24:27], s63 offen nt")
            if t < 7: a(f"s_add_u32 s63, s63, {8*1280}")
        a(f"{le}:")
    def wo_loads(self, n=8):
        a = self.a
        t1 = XA
        a(f"v_lshrrev_b32 v{t1}, 3, v0\nv_mul_u32_u24 v{t1}, 1280, v{t1}\nv_and_b32 v{XA+1}, 7, v0\nv_lshl_add_u32 v{t1}, v{XA+1}, 4, v{t1}")
        a("s_min_u32 s62, s57, 2\ns_mul_i32 s58, s4, 768\ns_lshl_b32 s60, s62, 8\ns_add_u32 s58, s58, s60\ns_and_b32 s60, s3, 3\ns_lshl_b32 s60, s60, 6\ns_add_u32 s58, s58, s60")
        a("s_mul_i32 s58, s58, 1280\ns_lshl_b32 s60, s56, 7\ns_add_u32 s58, s58, s60")
        a("s_cmp_ge_u32 s5, 30\ns_cselect_b32 s58, 0x7f000000, s58")
        for t in range(n):
            a(f"buffer_load_dwordx4 {q4(WB+4*t)}, v{t1}, s[24:27], s58 offen nt")
            if t < 7: a(f"s_add_u32 s58, s58, {8*1280}")
        a("s_mov_b32 s63, s58")
    def w1_loads(self):
        a = self.a
        t0, t1 = T[2], T[3]
        a(f"v_lshrrev_b32 v{t0}, 3, v0\nv_and_b32 v{t1}, 7, v0\nv_mul_u32_u24 v{t0}, 3072, v{t0}\nv_lshl_add_u32 v{t0}, v{t1}, 4, v{t0}")
        a(f"s_mul_i32 s58, s56, {64*3072}\ns_mul_i32 s60, s4, 384\ns_add_u32 s58, s58, s60\ns_lshl_b32 s60, s57, 7\ns_add_u32 s58, s58, s60")
        for t in range(8):
            a(f"buffer_load_dwordx4 {q4(WB+4*t)}, v{t0}, s[28:31], s58 offen nt")
            if t < 7: a(f"s_add_u32 s58, s58, {8*3072}")
    def w2_loads(self):
        a = self.a
        t0, t1 = T[2], T[3]
        a(f"v_lshrrev_b32 v{t0}, 3, v0\nv_and_b32 v{t1}, 7, v0\nv_mul_u32_u24 v{t0}, 1280, v{t0}\nv_lshl_add_u32 v{t0}, v{t1}, 4, v{t0}")
        a("s_mul_i32 s58, s4, 192\ns_lshl_b32 s60, s57, 6\ns_add_u32 s61, s58, s60\ns_mul_i32 s58, s61, 1280\ns_lshl_b32 s60, s56, 7\ns_add_u32 s58, s58, s60")
        for t in range(8):
            a(f"buffer_load_dwordx4 {q4(WB+4*t)}, v{t0}, s[36:39], s58 offen nt")
            if t < 7: a(f"s_add_u32 s58, s58, {8*1280}")
        a(f"v_bfe_u32 v{t0}, v0, 3, 1\nv_lshl_add_u32 v{t0}, v{t0}, 1, v{aP32}\ns_lshl_b32 s61, s61, 1")
        a(f"buffer_load_ushort v{B1V}, v{t0}, s[32:35], s61 offen")
    def clears(self, all_sc1):
        a = self.a
        C = XA + 4
        for i in range(4): a(f"v_mov_b32 v{C+i}, -1")
        a(f"v_lshlrev_b32 v{T[3]}, 4, v0")
        f = " sc1" if all_sc1 else ""
        a("s_mov_b32 exec_hi, 0")
        a(f"buffer_store_dwordx4 {q4(C)}, v{T[3]}, {WS}, s52 offen sc1")
        a("s_mov_b32 exec_lo, 0xffff")
        a(f"buffer_store_dwordx4 {q4(C)}, v{T[3]}, {WS}, s52 offen offset:2560{f}")
        a("s_mov_b64 exec, -1")
        for o in (512, 1536):
            a(f"buffer_store_dwordx4 {q4(C)}, v{T[3]}, {WS}, s52 offen offset:{o}{f}")
    def flag_store(self, base):
        a = self.a
        C = XA + 4
        if base == FL1:
            a("s_xor_b32 s58, s74, 0x5bd1e995\ns_andn2_b32 s58, s58, 15\ns_or_b32 s75, s75, s58")
        a(f"s_lshl_b32 s58, s4, 5\ns_add_u32 s58, s58, s5\ns_lshl_b32 s58, s58, 3\ns_add_u32 s58, s58, {base}")
        a(f"v_mov_b32 v{C}, s74\nv_mov_b32 v{C+1}, s75")
        a("s_mov_b64 exec, 1")
        a(f"buffer_store_dwordx2 v[{C}:{C+1}], v{aP32}, {WS}, s58 offen sc1")
        a("s_mov_b64 exec, -1")
    def flags_issue(self, base):
        a = self.a
        F = AB[0]
        a(f"v_lshlrev_b32 v{T[4]}, 5, v0\ns_mov_b32 s60, {base}")
        a(f"buffer_load_dwordx4 {q4(F)}, v{T[4]}, {WS}, s60 offen sc1\nbuffer_load_dwordx4 {q4(F+4)}, v{T[4]}, {WS}, s60 offen offset:16 sc1")
    def flags_wait(self, base, group_only):
        a = self.a
        F = AB[0]
        t, t2 = T[2], T[3]
        lp, lc, ld = self.L("fp"), self.L("fc"), self.L("fg")
        a("s_mov_b32 s70, 0\ns_or_b32 s61, s75, 15")
        if base == FL1: a(f"s_branch {lc}")
        a(f"{lp}:")
        self.flags_issue(base)
        a(f"{lc}:")
        a("s_waitcnt vmcnt(0)")
        a(f"v_xor_b32 v{t}, s74, v{F}")
        for i in range(1, 4):
            a(f"v_xor_b32 v{t2}, s74, v{F+2*i}\nv_or_b32 v{t}, v{t}, v{t2}")
        for i in range(4):
            a(f"v_or_b32 v{t2}, 15, v{F+2*i+1}\nv_xor_b32 v{t2}, s61, v{t2}\nv_or_b32 v{t}, v{t}, v{t2}")
        a(f"v_cmp_ne_u32 vcc, 0, v{t}")
        if group_only: a(f"s_and_b64 vcc, vcc, s[72:73]\ns_cbranch_scc0 {ld}")
        else: a(f"s_cbranch_vccz {ld}")
        a(f"s_sleep 16\ns_add_u32 s70, s70, 1\ns_cmp_lt_u32 s70, {POLL_LIMIT}\ns_cbranch_scc1 {lp}\n{ld}:")
    def flags_check(self):
        a = self.a
        F = AB[0]; t, t2 = T[2], T[3]
        lf = self.L("fast")
        a("s_lshl_b32 s58, s4, 3\ns_mov_b64 s[72:73], 0xff\ns_lshl_b64 s[72:73], s[72:73], s58")
        self.flags_wait(FL1, False)
        a(f"v_xor_b32 v{t}, s75, v{F+1}")
        for i in range(1, 4):
            a(f"v_xor_b32 v{t2}, s75, v{F+2*i+1}\nv_or_b32 v{t}, v{t}, v{t2}")
        a(f"v_cmp_ne_u32 vcc, 0, v{t}\ns_mov_b32 s55, 1\ns_and_b64 vcc, vcc, s[72:73]")
        if "forceslow" not in self.knobs: a(f"s_cbranch_scc0 {lf}")
        a("s_mov_b32 s55, 0")
        self.clears(True)
        a("s_waitcnt vmcnt(0)")
        self.flag_store(FL2)
        self.flags_wait(FL2, True)
        a(f"{lf}:")
        a(f"s_lshl_b32 s58, s55, 1\ns_or_b32 s58, s58, 1\nv_mov_b32 v{t}, s58\nv_mov_b32 v{T[3]}, {L_CTRL}\nds_write_b32 v{T[3]}, v{t} offset:4")
    def qproj(self, pair, s1, s2, pre_ops):
        a = self.a
        self.gemv_bcast(ACC, pair, WA, 10, fill=list(pre_ops) + self.ln_ops(s1, s2, T[2]))
        self.pair32(ACC, T[2], T[3])
        a(f"v_fma_f32 v{T[2]}, -v{s1}, v{CS0}, v{T[2]}\nv_fma_f32 v{T[3]}, -v{s1}, v{CS1}, v{T[3]}")
        a(f"v_mul_f32 v{T[2]}, v{T[2]}, v{s2}\nv_mul_f32 v{T[3]}, v{T[3]}, v{s2}")
        a(f"v_cvt_pk_bf16_f32 v{T[4]}, v{T[2]}, v{T[3]}")

    def gen(self):
        a = self.a
        a(f"; @launch grid=(256,1,1) block=(512,1,1) lds={LDS_BYTES}")
        for ln in DOC.strip().split("\n"): a("; " + ln)
        a('.amdgcn_target "amdgcn-amd-amdhsa--gfx950"\n.text')
        a(f".globl {KNAME}\n.p2align 8\n.type {KNAME},@function")
        a(f"{KNAME}:")
        a("s_cmp_ge_u32 s2, 256\ns_cbranch_scc1 L_end")
        for _ in range(self.SHIFT): a("s_nop 0")
        if self.prof:
            for i in range(13): a(f"s_mov_b64 s[{76+2*i}:{77+2*i}], 0")
        self.stamp(0)
        if self.AMP: a("s_memrealtime s[92:93]")
        ptr = {12: 8, 20: 24, 8: 0, 48: 88, 16: 16, 24: 32, 28: 48, 32: 56, 36: 64, 40: 72}
        size = {8: 1280, 12: 100663296, 16: 100663296, 20: 7864320, 24: 7864320, 28: 1966080, 32: 3072, 36: 1966080, 40: 1280,
                48: (PROF_OFF + 256 * 8 * 2 * 64) if self.prof else WS_USED}
        for s, off in ptr.items():
            a(f"s_load_dwordx2 s[{s}:{s+1}], s[0:1], {off}")
        a("v_lshrrev_b32 v1, 6, v0\nv_and_b32 v0, 63, v0\nv_readfirstlane_b32 s3, v1")
        if self.CPF0:
            a("s_getpc_b64 s[72:73]")
            a("L_pcref0:")
            a(f"s_sub_u32 s72, s72, L_pcref0-{KNAME}\ns_subb_u32 s73, s73, 0")
            a("s_and_b32 s58, s2, 0xf8\ns_add_u32 s58, s58, s3\ns_lshl_b32 s58, s58, 7")
            a(f"s_cmp_ge_u32 s58, L_end-{KNAME}\ns_cbranch_scc1 L_nocpf0")
            a(f"v_mov_b32 v2, s58\ns_mov_b64 exec, 1\nglobal_load_dword v{WA+39}, v2, s[72:73]\ns_mov_b64 exec, -1")
            a("L_nocpf0:")
        for s in ptr:
            a(f"s_mov_b32 s{s+2}, {size[s]}\ns_mov_b32 s{s+3}, 0x20000")
        a("s_and_b32 s4, s2, 7\ns_lshr_b32 s5, s2, 3\ns_lshr_b32 s6, s5, 3\ns_and_b32 s7, s5, 7")
        a(f"s_mul_i32 s53, s4, {32*BS}\ns_mul_i32 s52, s5, {BS}\ns_add_u32 s52, s52, s53")
        a("s_mov_b32 s54, 0\ns_mov_b32 s55, 0")
        a("s_getreg_b32 s75, hwreg(HW_REG_XCC_ID)\ns_and_b32 s75, s75, 15")
        a("s_cmp_ge_u32 s5, 10\ns_cselect_b32 s57, 1, 0\ns_cmp_ge_u32 s5, 20\ns_cselect_b32 s57, 2, s57\ns_cmp_ge_u32 s5, 30\ns_cselect_b32 s57, 3, s57")
        a("s_mul_i32 s58, s57, 10\ns_sub_u32 s56, s5, s58")
        a("s_mov_b32 s64, 0x00ff00ff\ns_mov_b32 s65, 0x00ff00ff")
        a("s_mov_b32 s66, 0xaaaaaaaa\ns_mov_b32 s67, 0xaaaaaaaa\ns_mov_b32 s68, 0xcccccccc\ns_mov_b32 s69, 0xcccccccc")
        a("s_mov_b32 s44, 0x03ff03ff\ns_mov_b32 s45, 0x03ff03ff\ns_mov_b32 s46, 1\ns_mov_b32 s47, 1")
        a("s_lshl_b32 s58, s4, 2\ns_add_u32 s58, s58, s6\ns_mul_i32 s59, s58, 3145728")
        a("s_lshl_b32 s58, s7, 8\ns_and_b32 s60, s3, 3\ns_lshl_b32 s60, s60, 6\ns_add_u32 s58, s58, s60\ns_add_u32 s58, s58, 6144\ns_mul_i32 s58, s58, 384\ns_add_u32 s59, s59, s58")
        a("v_and_b32 v1, 7, v0\nv_lshrrev_b32 v2, 3, v0\nv_lshrrev_b32 v3, 4, v0")
        a(f"v_lshlrev_b32 v{lane4}, 2, v0")
        a(f"v_lshlrev_b32 v{aP32}, 4, v1\nv_lshl_add_u32 v{aP32}, v3, 2, v{aP32}")
        a("s_cmp_lt_u32 s3, 4\ns_cbranch_scc1 L_pro_k")
        self.v_prologue()
        a("L_pro_k:")
        a(f"s_setprio 3\ns_mov_b32 s71, {GEN_OFF}")
        a("s_cmp_eq_u32 s3, 3\ns_cbranch_scc1 L_pro_c")
        XS = GB
        a(f"v_lshlrev_b32 v{T[0]}, 4, v0")
        a(f"v_and_b32 v{T[1]}, 15, v0\nv_lshlrev_b32 v{T[1]}, 7, v{T[1]}\nv_lshl_add_u32 v{T[1]}, v3, 2, v{T[1]}\ns_lshl_b32 s61, s7, 4")
        a(f"v_mul_u32_u24 v{T[2]}, 12288, v2\nv_lshl_add_u32 v{T[2]}, v1, 4, v{T[2]}")
        a(f"s_lshl_b32 s58, s4, 2\ns_add_u32 s58, s58, s6\ns_mul_i32 s58, s58, 384\ns_lshl_b32 s60, s3, 7\ns_add_u32 s58, s58, s60\ns_mul_i32 s60, s7, {8*12288}\ns_add_u32 s58, s58, s60")
        a("s_waitcnt lgkmcnt(0)")
        a(f"buffer_load_dwordx4 {q4(XS)}, v{T[0]}, s[8:11], 0 offen")
        a(f"buffer_load_dword v{XS+4}, v{lane4}, s[8:11], 0 offen offset:1024")
        a(f"buffer_load_dword v{XA}, v{T[1]}, s[8:11], s61 offen")
        for t in range(10 if "nowq" not in self.knobs else 0):
            a(f"buffer_load_dwordx4 {q4(WA+4*t)}, v{T[2]}, s[20:23], s58 offen nt")
            if t < 9: a(f"s_add_u32 s58, s58, {64*12288}")
        if self.QPW:
            a(f"v_mov_b32 v{XA+6}, -1\ns_lshl_b32 s60, s3, 8\ns_add_u32 s63, s52, s60")
            a(f"buffer_store_dword v{XA+6}, v{lane4}, {WS}, s63 offen offset:{QP0T+768}")
        a("s_barrier")
        a(f"s_buffer_load_dword s74, {WS}, s71")
        self.consts()
        self.kwave_addrs()
        self.make_tag()
        a(f"s_waitcnt vmcnt({11 + self.QPW})")
        s1, s2 = T[0], T[1]
        a(f"v_mov_b32 v{s1}, 0\nv_mov_b32 v{s2}, 0")
        for i in range(5):
            a(f"v_lshlrev_b32 v{T[2]}, 16, v{XS+i}\nv_and_b32 v{T[3]}, 0xffff0000, v{XS+i}")
            a(f"v_add_f32 v{s1}, v{s1}, v{T[2]}\nv_fmac_f32 v{s2}, v{T[2]}, v{T[2]}\nv_add_f32 v{s1}, v{s1}, v{T[3]}\nv_fmac_f32 v{s2}, v{T[3]}, v{T[3]}")
        for x in self.red2_ops(s1, s2, (Q1, Q2, HM, RM), T[2]): a(x)
        a(f"v_readlane_b32 s58, v{s1}, 0\nv_readlane_b32 s60, v{s1}, 32")
        a(f"v_mov_b32 v{s1}, s58\nv_mov_b32 v{s2}, s60")
        a(f"s_waitcnt vmcnt({self.QPW})")
        self.stamp(1)
        if "lo1" in self.knobs: a("s_branch L_fin2")
        for t in range(10):
            self.mfma(ACC + 4, ONES, WA + 4 * t, t == 0)
        self.pair32(ACC + 4, CS0, CS1)
        self.qproj(XA, s1, s2, [])
        QD = XA + 6
        a(f"v_mov_b32 v{QD}, v{T[4]}\nv_mov_b32 v{QD+1}, s74")
        a(f"v_and_b32 v{X0}, 7, v0\nv_lshlrev_b32 v{X0}, 3, v{X0}\nv_lshrrev_b32 v{T[2]}, 4, v0\nv_lshl_add_u32 v{X0}, v{T[2]}, 6, v{X0}")
        a("s_lshl_b32 s60, s3, 8\ns_add_u32 s63, s52, s60")
        a("s_mov_b64 exec, s[64:65]")
        a(f"buffer_store_dwordx2 v[{QD}:{QD+1}], v{X0}, {WS}, s63 offen offset:{QP0T+768}")
        a("s_mov_b64 exec, -1\ns_mov_b32 s71, 0")
        self.stamp(3)
        if "lo2" in self.knobs: a("s_branch L_fin2")
        a(f"s_mul_i32 s58, s3, 10752\ns_add_u32 s58, s58, {L_WQ}\nv_lshlrev_b32 v{T[0]}, 4, v0\nv_add_u32 v{T[0]}, s58, v{T[0]}")
        for t in range(10):
            a(f"ds_write_b128 v{T[0]}, {q4(WA+4*t)} offset:{1024*t}")
        a(f"v_add_u32 v{T[1]}, s58, v{lane4}\nds_write_b32 v{T[1]}, v{CS0} offset:10240\nds_write_b32 v{T[1]}, v{CS1} offset:10496")
        QA = [XA + 1, XA + 2]
        a(f"s_mul_i32 s62, s6, {8*BS}\ns_add_u32 s62, s62, s53\ns_lshl_b32 s58, s3, 7")
        for n in range(2):
            a(f"v_add_u32 v{T[0]}, s58, v0")
            if n: a(f"v_add_u32 v{T[0]}, 64, v{T[0]}")
            a(f"v_mul_u32_u24 v{T[1]}, 0x556, v{T[0]}\nv_lshrrev_b32 v{T[1]}, 16, v{T[1]}")
            a(f"v_mul_u32_u24 v{T[2]}, {BS - 768}, v{T[1]}\nv_lshl_add_u32 v{QA[n]}, v{T[0]}, 4, v{T[2]}")
        SETS = [[WB, WB + 4], [WB + 8, WB + 12]]
        def qissue(k):
            if k == 0: a("s_add_u32 s58, s62, 768")
            else: a(f"s_cmp_ge_u32 s70, {self.QFB}\ns_cselect_b32 s58, 0, 768\ns_add_u32 s58, s58, s62")
            for n in range(2):
                a(f"buffer_load_dwordx4 {q4(SETS[k][n])}, v{QA[n]}, {WS}, s58 offen offset:{QP0T} sc1")
        lp, ld = self.L("poll"), self.L("got")
        a(f"s_mov_b32 s70, 0\ns_sleep {self.QSLEEP0}")
        gots = [self.L("qg") for _ in range(2)]
        if self.Q1ST:
            qissue(0)
            a("s_waitcnt vmcnt(0)")
            a(f"v_mov_b32 v{T[0]}, s74\nv_mov_b32 v{T[1]}, s74")
            for r in SETS[0]:
                a(f"v_min3_u32 v{T[0]}, v{T[0]}, v{r+1}, v{r+3}\nv_max3_u32 v{T[1]}, v{T[1]}, v{r+1}, v{r+3}")
            a(f"v_cmp_ne_u32 vcc, v{T[0]}, v{T[1]}\ns_cbranch_vccz {gots[0]}")
        qissue(0); a(f"s_sleep {self.QSLEEP1}"); qissue(1)
        a(f"{lp}:")
        for k in range(2):
            a("s_waitcnt vmcnt(2)")
            a(f"v_mov_b32 v{T[0]}, s74\nv_mov_b32 v{T[1]}, s74")
            for r in SETS[k]:
                a(f"v_min3_u32 v{T[0]}, v{T[0]}, v{r+1}, v{r+3}\nv_max3_u32 v{T[1]}, v{T[1]}, v{r+1}, v{r+3}")
            a(f"v_cmp_ne_u32 vcc, v{T[0]}, v{T[1]}\ns_cbranch_vccz {gots[k]}")
            if k == 1:
                a("s_add_u32 s70, s70, 1")
                self.q_fallback(self.QFB)
            qissue(k)
        a(f"s_cmp_lt_u32 s70, {POLL_LIMIT}\ns_cbranch_scc1 {lp}")
        for k in range(2):
            a(f"{gots[k]}:")
            a(f"v_lshrrev_b32 v{T[0]}, 4, v0\nv_lshlrev_b32 v{T[0]}, 7, v{T[0]}\nv_and_b32 v{T[1]}, 3, v0\nv_lshl_add_u32 v{T[0]}, v{T[1]}, 5, v{T[0]}")
            a(f"v_bfe_u32 v{T[1]}, v0, 2, 2\nv_lshl_add_u32 v{T[0]}, v{T[1]}, 2, v{T[0]}\ns_lshl_b32 s58, s3, 10\ns_add_u32 s58, s58, {L_Q}\nv_add_u32 v{T[0]}, s58, v{T[0]}")
            for n in range(2):
                a(f"ds_write2_b32 v{T[0]}, v{SETS[k][n]}, v{SETS[k][n]+2} offset0:{128*n} offset1:{128*n+4}")
            if k < 1: a(f"s_branch {ld}")
        a(f"{ld}:")
        a(f"v_mov_b32 v{T[2]}, 1\nv_mov_b32 v{T[3]}, {L_CTRL+32}\ns_waitcnt lgkmcnt(0)\nds_add_u32 v{T[3]}, v{T[2]}")
        self.stamp(2)
        a("s_branch L_bk")
        a("L_pro_c:")
        a(f"v_mov_b32 v{T[0]}, 0")
        a("s_mov_b64 exec, 0xffff")
        a(f"ds_write_b32 v{lane4}, v{T[0]} offset:{L_CTRL}")
        a("s_mov_b64 exec, -1\ns_waitcnt lgkmcnt(0)")
        if self.B0E: a("s_barrier")
        if "noclr" not in self.knobs: self.clears(False)
        a(f"s_lshl_b32 s58, s56, 7\nbuffer_load_dword v{GB+4}, v{aP32}, s[8:11], s58 offen")
        if not self.B0E: a("s_barrier")
        a(f"s_buffer_load_dword s74, {WS}, s71")
        self.consts()
        self.kwave_addrs()
        self.make_tag()
        a("s_waitcnt vmcnt(0)")
        if "noclr" not in self.knobs: self.flag_store(FL1)
        self.stamp(1)
        for x in self.unpackX_ops(GB + 4): a(x)
        if not (self.knobs & {"lo1", "lo2"}) and "noclr" not in self.knobs:
            a(f"s_sleep {self.FLSL}")
            self.flags_issue(FL1)
            self.flags_check()
            self.stamp(2)
        a("L_bk:")
        if self.knobs & {"lo1", "lo2", "lo3"}: a("s_branch L_fin2")
        a(f"s_lshl_b32 s60, s3, 2\ns_add_u32 s60, s60, {L_CTRL+16}")
        self.lds_wait_flag("s60")
        self.stamp(10)
        self.k_to_regs()
        self.lds_wait_flag(L_CTRL + 32, 192, fb=64)
        self.stamp(11)
        a(f"v_and_b32 v{T[3]}, 7, v0\nv_mul_u32_u24 v{T[3]}, 384, v{T[3]}\nv_lshrrev_b32 v{T[4]}, 4, v0\nv_lshl_add_u32 v{T[3]}, v{T[4]}, 4, v{T[3]}")
        a(f"v_and_b32 v{T[4]}, 8, v0\nv_lshl_add_u32 v{T[3]}, v{T[4]}, 3, v{T[3]}")
        for u in range(3):
            a(f"ds_read_b128 {q4(GB+4*u)}, v{T[3]} offset:{L_Q + 128*u}")
        a("s_waitcnt lgkmcnt(0)")
        a("s_branch L_qk")

        a("L_kloop:")
        a("s_cmp_lg_u32 s3, 3\ns_cbranch_scc1 L_k_b1")
        a("s_cmp_ge_u32 s5, 10\ns_cbranch_scc1 L_k_pt")
        self.zgather(0, self.ZSL)
        s1, s2 = T[0], T[1]
        a("s_mov_b64 exec, s[64:65]")
        self.local_stores([f"buffer_store_dword v{T[4]}, v{aX2}, {WS}, 0 offen offset:{X2O}{{f}}"])
        a("s_mov_b64 exec, -1")
        for x in self.unpackX_ops(T[4]) + self.xstats_ops(s1, s2, T[2]): a(x)
        a(f"v_lshrrev_b32 v{T[2]}, 3, v0\nv_and_b32 v{T[2]}, 4, v{T[2]}\ns_lshl_b32 s58, s56, 3\ns_add_u32 s58, s58, s53\ns_add_u32 s58, s58, {7*BS}")
        a("s_mov_b64 exec, s[46:47]")
        self.local_stores([f"buffer_store_dword v{s1}, v{T[2]}, {WS}, s58 offen offset:{MISC}{{f}}"])
        a("s_mov_b64 exec, -1")
        self.stamp(2)
        a("L_k_pt:")
        a("L_k_b1:")
        a("s_barrier")
        self.sleep(self.QSL)
        self.poll([f"buffer_load_dwordx4 {q4(GB+4*u)}, v{aQG}, {WS}, 0 offen offset:{QP1 + 128*u} sc1" for u in range(3)], range(GB, GB + 12),
                  entry="L_qk", spec=[self.mfma_s(ACC + 4 * (u & 1), KV + 4 * u, GB + 4 * (u >> 1), u < 2) for u in range(4)], pipe=self.PQ)
        self.stamp(4)
        R = [XA, XA + 1, XA + 2, XA + 3]
        DE = [ACC, ACC + 8]; DO = [ACC + 4, ACC + 12]
        def lvl_ops(t):
            e, o = DE[t & 1], DO[t & 1]
            hm = lambda d, srcr, bank: f"v_add_f32_dpp v{d}, v{srcr}, v{srcr} row_half_mirror row_mask:0xf bank_mask:{hex(1<<bank)}"
            return [hm(T[2], e + 2, 0), hm(T[2], e + 3, 1), hm(R[t], e, 0), hm(R[t], e + 1, 1),
                    hm(T[2], o, 2), hm(T[2], o + 1, 3), hm(R[t], o + 2, 2), hm(R[t], o + 3, 3),
                    f"v_add_f32_dpp v{R[t]}, v{T[2]}, v{R[t]} row_ror:8 {DPPALL}",
                    f"v_add_f32_dpp v{R[t]}, v{R[t]}, v{R[t]} {Q1} {DPPALL}",
                    f"v_add_f32_dpp v{R[t]}, v{R[t]}, v{R[t]} {Q2} {DPPALL}"]
        pend = []
        S = T[0]; M = T[1]
        for t in range(4):
            for u in range(6):
                if t == 0 and u < 4: continue
                self.mfma((DO if u & 1 else DE)[t & 1], KV + (t * 6 + u) * 4, GB + 4 * (u >> 1), u < 2)
                if u >= 2:
                    for _ in range(3 if u < 5 else 2):
                        if pend: a(pend.pop(0))
            pend = lvl_ops(t)
            if t == 3:
                pend = [f"v_max3_f32 v{M}, v{R[0]}, v{R[1]}, v{R[2]}", f"v_cndmask_b32 v{R[0]}, v{R[0]}, v{R[1]}, s[66:67]"] + pend
        for x in pend: a(x)
        a(f"v_max_f32 v{M}, v{M}, v{R[3]}")
        a(f"v_cndmask_b32 v{R[2]}, v{R[2]}, v{R[3]}, s[66:67]\nv_cndmask_b32 v{S}, v{R[0]}, v{R[2]}, s[68:69]")
        a(f"v_max_f32_dpp v{M}, v{M}, v{M} row_ror:4 {DPPALL}")
        a(f"v_mul_f32 v{S}, 0x3dd53b95, v{S}")
        a(f"v_max_f32_dpp v{M}, v{M}, v{M} row_ror:8 {DPPALL}")
        a(f"v_mov_b32 v{T[2]}, v{M}\nv_permlane16_swap_b32 v{M}, v{T[2]}\nv_max_f32 v{M}, v{M}, v{T[2]}")
        a(f"v_mov_b32 v{T[2]}, v{M}\nv_permlane32_swap_b32 v{M}, v{T[2]}\nv_max_f32 v{M}, v{M}, v{T[2]}")
        a(f"v_mul_f32 v{M}, 0x3dd53b95, v{M}")
        a(f"v_sub_f32 v{S}, v{S}, v{M}\nv_exp_f32 v{S}, v{S}")
        a(f"v_cvt_pk_bf16_f32 v{S}, v{S}, v{S}")
        a(f"ds_write_b16 v{ldsP}, v{S}")
        a("s_cmp_eq_u32 s3, 3\ns_cbranch_scc1 L_qk_nf\ns_cmp_lg_u32 s54, 0\ns_cbranch_scc1 L_qk_nf")
        self.lds_wait_flag(L_CTRL + 4)
        a("s_lshr_b32 s55, s58, 1\ns_cmp_lg_u32 s55, 0\ns_cbranch_scc1 L_qk_nf")
        self.q_fallback(0)
        a("L_qk_nf:")
        a("s_waitcnt vmcnt(0) lgkmcnt(0)" if self.PQ else "s_waitcnt lgkmcnt(0)")
        self.stamp(5)
        if self.PRI == 1: a("s_setprio 0")
        a("s_barrier")
        if self.PRI == 2: a("s_sleep 2")
        a(f"v_lshlrev_b32 v{S}, 16, v{S}")
        self.allred64("v_add_f32", S, T[2])
        a(f"s_lshl_b32 s58, s3, 3\nv_mov_b32 v{T[2]}, s58")
        a("s_mov_b64 exec, 1")
        a(f"ds_write_b32 v{T[2]}, v{M} offset:{L_ML}\nds_write_b32 v{T[2]}, v{S} offset:{L_ML+4}")
        a("s_mov_b64 exec, -1")
        a("s_cmp_lg_u32 s3, 3\ns_cbranch_scc1 L_k_b3")
        a("s_cmp_eq_u32 s54, 0\ns_cbranch_scc1 L_c_b3")
        a("L_c_x2:")
        a("s_cmp_lt_u32 s5, 10\ns_cbranch_scc1 L_c_b3")
        self.poll([f"buffer_load_dword v{GB}, v{aX2}, {WS}, 0 offen offset:{X2O} sc1"], [GB])
        for x in self.unpackX_ops(GB): a(x)
        a("L_c_b3:")
        a("s_waitcnt lgkmcnt(0)\ns_barrier")
        a("s_cmp_ge_u32 s5, 30\ns_cbranch_scc1 L_k_next")
        if self.LL == 3:
            a("s_cmp_lg_u32 s54, 0\ns_cbranch_scc1 L_c_b4")
            self.w1_loads()
            a("L_c_b4:")
        if self.B3B:
            a("s_cmp_lg_u32 s54, 0\ns_cbranch_scc1 L_c_nb3b\ns_barrier")
            self.w1_loads()
            a("L_c_nb3b:")
        a("s_barrier")
        a("s_cmp_lg_u32 s54, 0\ns_cbranch_scc1 L_p4_nocs")
        if self.LL == 4 and not self.B3B: self.w1_loads()
        yl = self.rows24_loads(YO)
        self.sleep(self.YSL0)
        for x in yl: a(x)
        a("s_mov_b32 s70, 0\ns_waitcnt vmcnt(3)")
        for t in range(8): self.mfma(ACC, ONES, WB + 4 * t, t == 0)
        self.l64(ACC, CS0)
        self.local_stores([f"buffer_store_dword v{CS0}, v{aST}, {WS}, s52 offen offset:{HPC}{{f}}"])
        a("s_branch L_p4_chk")
        a("L_p4_nocs:")
        yl = self.rows24_loads(YO)
        self.sleep(self.YSL)
        self.poll(yl, range(GB, GB + 12), entry="L_p4_chk", spec=[self.mfma_s(ACC, ONES, GB + 4 * n, n == 0) for n in range(3)])
        a("s_barrier")
        if self.AMP == 2: a("s_cmp_lg_u32 s54, 0\ns_cbranch_scc1 L_amp2\ns_memrealtime s[94:95]\nL_amp2:")
        self.stamp(8)
        self.sel_layer(58, HPR, 52)
        a(f"s_mul_i32 s60, s54, 3\ns_add_u32 s60, s60, s57\ns_add_u32 s60, s60, 1\ns_mul_i32 s60, s60, {BS}\ns_add_u32 s60, s60, s53\ns_lshl_b32 s61, s56, 3\ns_add_u32 s60, s60, s61")
        self.resid_add()
        s1, s2 = T[0], T[1]
        self.gemv_bcast(ACC + 4, T[4], WB, 8, fill=self.unpackX_ops(T[4]) + self.xstats_ops(s1, s2, T[2]) + [f"v_lshrrev_b32 v{T[2]}, 3, v0", f"v_and_b32 v{T[2]}, 4, v{T[2]}"])
        self.l64(ACC + 4, T[3])
        self.local_stores([f"buffer_store_dword v{T[3]}, v{aST}, {WS}, s58 offen{{f}}", "s_mov_b64 exec, s[46:47]",
                           f"buffer_store_dword v{s1}, v{T[2]}, {WS}, s60 offen offset:{MISC}{{f}}"])
        a("s_mov_b64 exec, -1")
        self.stamp(9)
        self.dump0()
        a("s_barrier")
        a("s_cmp_lg_u32 s54, 0\ns_cbranch_scc1 L_final\ns_mov_b32 s54, 1\ns_branch L_kloop")
        a("L_k_b3:")
        if self.LL2 == 2:
            a("s_cmp_lg_u32 s54, 0\ns_cbranch_scc1 L_k_b3a\ns_cmp_lg_u32 s3, 0\ns_cbranch_scc1 L_k_b3a")
            self.w2_loads()
            a("L_k_b3a:")
        if self.CPF:
            self.code_prefetch()
        a(f"s_lshl_b32 s58, s3, 8\nv_add_u32 v{T[3]}, s58, v{lane4}\nv_mov_b32 v{T[4]}, {L_ML}")
        self.sel_layer(58, OP, 52)
        a("s_lshl_b32 s60, s3, 7\ns_add_u32 s60, s60, s58")
        a(f"s_mul_i32 s61, s7, {BS - 8}\ns_sub_u32 s61, s52, s61\ns_lshl_b32 s58, s54, 6\ns_add_u32 s61, s61, s58")
        a("s_waitcnt lgkmcnt(0)\ns_barrier")
        self.stamp(6)
        a(f"ds_read_b128 {q4(GB)}, v{T[4]}\nds_read_b128 {q4(GB+4)}, v{T[4]} offset:16")
        for w in range(4):
            a(f"ds_read_b32 v{GB+8+w}, v{T[3]} offset:{L_O + 768*w}")
        a("s_waitcnt lgkmcnt(0)")
        M = GB + 12; Lr = GB + 13
        a(f"v_max3_f32 v{M}, v{GB}, v{GB+2}, v{GB+4}\nv_max_f32 v{M}, v{M}, v{GB+6}")
        for w in range(4): a(f"v_sub_f32 v{GB+2*w}, v{GB+2*w}, v{M}")
        for w in range(4): a(f"v_exp_f32 v{GB+2*w}, v{GB+2*w}")
        a(f"v_mul_f32 v{Lr}, v{GB}, v{GB+1}\nv_mul_f32 v{T[0]}, v{GB}, v{GB+8}")
        for w in range(1, 4):
            a(f"v_fmac_f32 v{Lr}, v{GB+2*w}, v{GB+2*w+1}\nv_fmac_f32 v{T[0]}, v{GB+2*w}, v{GB+8+w}")
        a(f"v_rcp_f32 v{T[1]}, v{Lr}\nv_mul_f32 v{T[0]}, v{T[0]}, v{T[1]}")
        a(f"v_mov_b32_dpp v{T[1]}, v{T[0]} row_ror:8 {DPPALL}\nv_cvt_pk_bf16_f32 v{T[0]}, v{T[0]}, v{T[1]}")
        a("s_mov_b64 exec, s[64:65]")
        lz = self.L("z")
        self.local_stores([f"buffer_store_dword v{T[0]}, v{aP32}, {WS}, s60 offen{{f}}"])
        a(f"s_cmp_lg_u32 s3, 1\ns_cbranch_scc1 {lz}\ns_mov_b64 exec, 1")
        self.local_stores([f"buffer_store_dwordx2 v[{M}:{Lr}], v{aP32}, {WS}, s61 offen offset:{MISC}{{f}}"])
        a(f"{lz}:\ns_mov_b64 exec, -1")
        self.stamp(7)
        a("s_cmp_ge_u32 s5, 30\ns_cbranch_scc1 L_k_next")
        if self.LL2 == 3:
            a("s_cmp_lg_u32 s54, 0\ns_cbranch_scc1 L_k_b4a\ns_cmp_lg_u32 s3, 0\ns_cbranch_scc1 L_k_b4a")
            self.w2_loads()
            a("L_k_b4a:")
        if self.B3B:
            a("s_cmp_lg_u32 s54, 0\ns_cbranch_scc1 L_k_nb3b\ns_barrier\ns_cmp_lg_u32 s3, 0\ns_cbranch_scc1 L_k_nb3b")
            self.w2_loads()
            a("L_k_nb3b:")
        a("s_barrier")
        a("s_cmp_eq_u32 s3, 0\ns_cbranch_scc1 L_p5")
        a("s_cmp_lg_u32 s3, 1\ns_cbranch_scc1 L_k_b5")
        self.sel_layer(58, HPR, 52)
        a(f"v_lshlrev_b32 v{T[0]}, 7, v0\ns_mov_b64 exec, 3")
        a(f"buffer_load_dword v{GB}, v{T[0]}, {WS}, s58 offen sc1\nbuffer_load_dword v{GB+1}, v{T[0]}, {WS}, s52 offen offset:{HPC} sc1")
        a(f"buffer_load_dword v{GB+2}, v{lane4}, {WS}, s52 offen offset:{MISC} sc1\ns_mov_b64 exec, -1")
        a("L_k_b5:")
        a("s_barrier\ns_barrier")
        a("s_branch L_k_next")
        a("L_p5:")
        a(f"s_mul_i32 s62, s57, {10*BS}\ns_add_u32 s62, s62, s53")
        def hp_gather(with_stats, slp=0):
            for i in range(8, 14): a(f"v_mov_b32 v{GB+i}, 0")
            loads = [f"buffer_load_dwordx4 {q4(GB)}, v{aML}, {WS}, s58 offen sc1",
                     f"buffer_load_dwordx4 {q4(GB+4)}, v{aML}, {WS}, s60 offen sc1",
                     "s_mov_b32 exec_hi, 0",
                     f"buffer_load_dwordx4 {q4(GB+8)}, v{aML}, {WS}, s61 offen sc1"]
            if with_stats:
                loads += ["s_mov_b64 exec, s[44:45]", f"buffer_load_dwordx2 v[{GB+12}:{GB+13}], v{aXS}, {WS}, s63 offen offset:{MISC} sc1"]
            loads += ["s_mov_b64 exec, -1"]
            return loads, range(GB, GB + (14 if with_stats else 12))
        def hp_reduce_ops(dst):
            U = GB + 16
            o = [f"v_add_f32 v{U+i}, v{GB+i}, v{GB+4+i}" for i in range(4)] + [f"v_add_f32 v{U+i}, v{U+i}, v{GB+8+i}" for i in range(4)]
            o += [f"v_permlane32_swap_b32 v{U}, v{U+2}", f"v_permlane32_swap_b32 v{U+1}, v{U+3}",
                  f"v_add_f32 v{U}, v{U}, v{U+2}", f"v_add_f32 v{U+1}, v{U+1}, v{U+3}",
                  f"v_permlane16_swap_b32 v{U}, v{U+1}", f"v_add_f32 v{dst}, v{U}, v{U+1}"]
            return o
        a("s_cmp_lg_u32 s54, 0\ns_cbranch_scc1 L_p5_nocs")
        if self.LL2 == 4 and not self.B3B: self.w2_loads()
        if self.LL2 == 5:
            a(f"s_sleep {self.W2SL}")
            self.w2_loads()
        a(f"s_add_u32 s58, s62, {HPC}\ns_add_u32 s60, s58, {4*BS}\ns_add_u32 s61, s58, {8*BS}")
        a("s_barrier")
        ld_, rg_ = hp_gather(False)
        self.poll(ld_, rg_)
        for x in hp_reduce_ops(CSW1): a(x)
        a(f"v_lshlrev_b32 v{B1V}, 16, v{B1V}")
        a("s_branch L_p5_g")
        a("L_p5_nocs:")
        a("s_barrier")
        self.sleep(self.HSL)
        a("L_p5_g:")
        self.sel_layer(58, HPR, 62)
        a(f"s_add_u32 s60, s58, {4*BS}\ns_add_u32 s61, s58, {8*BS}")
        a(f"s_mul_i32 s63, s54, 3\ns_add_u32 s63, s63, s57\ns_add_u32 s63, s63, 1\ns_mul_i32 s63, s63, {BS}\ns_add_u32 s63, s63, s53")
        ld_, rg_ = hp_gather(True)
        self.poll(ld_, rg_, pipe=self.PH)
        self.stamp(8)
        s1, s2 = GB + 14, GB + 15
        H = T[0]
        c1 = self.row16_ops(s1, s2, GB + 12, GB + 13) + self.ln_ops(s1, s2, T[5])
        c2 = hp_reduce_ops(H)
        while c1 or c2:
            if c1: a(c1.pop(0))
            if c1 and len(c1) > 14: a(c1.pop(0))
            if c2: a(c2.pop(0))
        self.sel_layer(58, ZO, 52)
        a(f"v_fma_f32 v{H}, -v{s1}, v{CSW1}, v{H}\nv_mul_f32 v{H}, v{H}, v{s2}")
        self.bf16r(H, H)
        a(f"v_add_f32 v{H}, v{H}, v{B1V}")
        self.bf16r(H, H)
        E = T[1]; N = T[2]; Dn = T[3]
        a(f"v_mul_f32 v{E}, 0x3fb8aa3b, v{H}\nv_exp_f32 v{E}, -|v{E}|")
        a(f"v_cmp_gt_f32 vcc, 0, v{H}\nv_mov_b32 v{T[4]}, 2.0")
        a(f"v_fma_f32 v{N}, v{E}, 2.0, 1.0\nv_add_f32 v{Dn}, 2.0, v{E}\nv_mul_f32 v{Dn}, v{Dn}, v{E}")
        a(f"v_mul_f32 v{E}, v{E}, v{E}\nv_add_f32 v{E}, v{E}, v{E}")
        a(f"v_cndmask_b32 v{N}, v{N}, v{Dn}, vcc\nv_cndmask_b32 v{E}, v{E}, v{T[4]}, vcc")
        a(f"v_add_f32 v{Dn}, v{N}, v{E}\nv_rcp_f32 v{Dn}, v{Dn}\nv_mul_f32 v{N}, v{N}, v{H}\nv_mul_f32 v{N}, v{N}, v{Dn}")
        a(f"v_mov_b32_dpp v{E}, v{N} row_ror:8 {DPPALL}\nv_cvt_pk_bf16_f32 v{T[4]}, v{N}, v{E}")
        self.gemv_bcast(ACC, T[4], WB, 8)
        self.pair32(ACC, T[0], T[1])
        a(f"v_cvt_pk_bf16_f32 v{T[0]}, v{T[0]}, v{T[1]}")
        if self.G4:
            self.gather4(T[0], AB[0])
            a("s_mov_b64 exec, 0xff")
            a(f"buffer_store_dwordx4 {q4(AB[0])}, v{aP32}, {WS}, s58 offen sc1")
        else:
            a("s_mov_b64 exec, s[64:65]")
            a(f"buffer_store_dword v{T[0]}, v{aP32}, {WS}, s58 offen sc1")
        a("s_mov_b64 exec, -1")
        self.stamp(9)
        a("s_barrier")
        a("L_k_next:")
        a("s_cmp_lg_u32 s54, 0\ns_cbranch_scc1 L_final")
        self.dump_stamps()
        a("s_mov_b32 s54, 1")
        a("s_cmp_lg_u32 s3, 2\ns_cbranch_scc1 L_kloop")
        a("s_cmp_lg_u32 s2, 0\ns_cbranch_scc1 L_nogen")
        a(f"s_mov_b64 exec, 1\nv_mov_b32 v{T[0]}, s74\nv_mov_b32 v{T[1]}, {GEN_OFF}")
        a(f"buffer_store_dword v{T[0]}, v{T[1]}, {WS}, 0 offen sc1")
        a("s_mov_b64 exec, -1\nL_nogen:")
        for u in range(3):
            a(f"buffer_load_dword v{GB+4+u}, v{aQG}, {WS}, 0 offen offset:{QP1 + 128*u} sc1")
        a("s_branch L_kloop")
        a("L_final:")
        a("s_cmp_lg_u32 s3, 3\ns_cbranch_scc1 L_fin2\ns_cmp_lg_u32 s4, 0\ns_cbranch_scc1 L_fin2\ns_cmp_ge_u32 s5, 10\ns_cbranch_scc1 L_fin2")
        if self.PERT:
            import struct
            c = hex(struct.unpack('<I', struct.pack('<f', self.PERT / 1000.0))[0])
            if self.PALL: a(f"v_add_f32 v{X0}, {c}, v{X0}\nv_add_f32 v{X1}, {c}, v{X1}")
            else: a(f"s_cmp_lg_u32 s2, 0\ns_cbranch_scc1 L_npert\ns_mov_b64 exec, 1\nv_add_f32 v{X0}, {c}, v{X0}\ns_mov_b64 exec, -1\nL_npert:")
        self.zgather(1, self.FSL)
        a("s_lshl_b32 s58, s5, 7")
        a("s_mov_b64 exec, s[64:65]")
        a(f"buffer_store_dword v{T[4]}, v{aP32}, s[40:43], s58 offen{' sc1' if self.OSC else ''}")
        a("s_mov_b64 exec, -1")
        self.stamp(11)
        if self.AMP:
            a("s_cmp_lg_u32 s2, 0\ns_cbranch_scc1 L_fin2\ns_memrealtime s[96:97]\ns_waitcnt lgkmcnt(0)")
            if self.AMP == 1: a("s_mov_b32 s94, s96")
            a("s_sub_u32 s94, s94, s92\ns_min_u32 s94, s94, 20000")
            a("L_ampl:\ns_memrealtime s[98:99]\ns_waitcnt lgkmcnt(0)\ns_sub_u32 s98, s98, s96\ns_cmp_lt_u32 s98, s94\ns_cbranch_scc1 L_ampl")
        a("L_fin2:")
        self.dump_stamps()
        a("s_endpgm")

        a("L_vloop:")
        a(f"buffer_load_dword v{XA+2}, v{aQG}, {WS}, 0 offen offset:{OP[1]} sc1")
        a("s_cmp_eq_u32 s3, 7\ns_cbranch_scc1 L_v7_b1")
        a(f"v_mov_b32 v{GB}, 0\nv_mov_b32 v{GB+2}, 0\nv_mov_b32 v{GB+3}, 0\ns_add_u32 s58, s53, {7*BS}")
        self.sleep(self.XSL)
        self.poll(["s_mov_b64 exec, s[44:45]", f"buffer_load_dword v{GB}, v{aX2}, {WS}, 0 offen offset:{X2O} sc1",
                   f"buffer_load_dwordx2 v[{GB+2}:{GB+3}], v{aXS}, {WS}, s58 offen offset:{MISC} sc1", "s_mov_b64 exec, -1"], [GB, GB + 2, GB + 3], slp=self.XSLP, pipe=self.PX)
        a("s_barrier")
        self.stamp(1)
        self.qproj(GB, T[0], T[1], self.row16_ops(T[0], T[1], GB + 2, GB + 3))
        if self.Q4:
            self.gather4(T[4], AB[0])
            a("s_mov_b64 exec, 0xff")
            self.local_stores([f"buffer_store_dwordx4 {q4(AB[0])}, v{aST}, {WS}, 0 offen offset:{QP1}{{f}}"])
        else:
            a("s_mov_b64 exec, s[64:65]")
            self.local_stores([f"buffer_store_dword v{T[4]}, v{aST}, {WS}, 0 offen offset:{QP1}{{f}}"])
        a("s_mov_b64 exec, -1")
        self.stamp(3)
        a("s_branch L_v_b2")
        a("L_v7_b1:")
        a("s_barrier")
        a("L_v_b2:")
        a(f"s_and_b32 s58, s3, 3\ns_mul_i32 s58, s58, 768\nv_add_u32 v{T[3]}, s58, v{lane4}")
        a("s_cmp_eq_u32 s54, 0\ns_cbranch_scc1 L_v_b2a\ns_waitcnt vmcnt(0)\nL_v_b2a:")
        a("s_barrier")
        self.stamp(5)
        a(f"ds_read_b128 {q4(GB)}, v{ldsP}\nds_read_b128 {q4(GB+4)}, v{ldsP} offset:16")
        a("s_cmp_lg_u32 s54, 0\ns_cbranch_scc1 L_v_nowo")
        if self.WOE: self.wo_part(self.WOE, 8)
        else: self.wo_loads(self.WS[0])
        a("L_v_nowo:")
        a("s_waitcnt lgkmcnt(0)")
        self.al()
        self.build_A(AB[0], GB)
        for G in range(8):
            nwo = self.WS[0] + (self.WS[1] if G >= 6 else 0) + (self.WS[2] if G >= 7 else 0)
            if G == 6 and self.WS[1]: self.wo_part(self.WS[0], self.WS[0] + self.WS[1])
            if G == 7 and self.WS[2]: self.wo_part(self.WS[0] + self.WS[1], self.WS[0] + self.WS[1] + self.WS[2])
            a(f"s_waitcnt vmcnt({nwo + 21 - 3*G})")
            for th in range(3):
                self.mfma(ACC + 4 * th, AB[G & 1], KV + (G * 3 + th) * 4, G == 0)
                if G + 1 < 8 and th < 2:
                    for d in (2 * th, 2 * th + 1):
                        a(f"v_perm_b32 v{AB[(G+1)&1]+d}, v{GB+G+1}, v{GB+G+1}, v{SEL+d}")
        for th in range(3):
            self.l64(ACC + 4 * th, T[th])
            a(f"ds_write_b32 v{T[3]}, v{T[th]} offset:{L_O + 256*th}")
        self.sel_layer(58, OP)
        a("s_lshl_b32 s60, s54, 6")
        a("s_waitcnt lgkmcnt(0)\ns_barrier")
        self.stamp(6)
        if sum(self.WS) < 8: self.wo_part(sum(self.WS), 8)
        a("s_cmp_ge_u32 s5, 30\ns_cbranch_scc1 L_v_next")
        self.sleep(self.OSL)
        self.poll([f"buffer_load_dwordx4 {q4(GB)}, v{aQG}, {WS}, s58 offen sc1",
                   f"buffer_load_dwordx2 v[{GB+4}:{GB+5}], v{aML}, {WS}, s60 offen offset:{MISC} sc1"], range(GB, GB + 6),
                  spec=[f"v_max_f32_dpp v{T[0]}, v{GB+4}, v{GB+4} {Q1} {DPPALL}", f"v_max_f32_dpp v{T[0]}, v{T[0]}, v{T[0]} {Q2} {DPPALL}", f"v_max_f32_dpp v{T[0]}, v{T[0]}, v{T[0]} {HM} {DPPALL}"], pipe=self.PO)
        if self.B3B: a("s_cmp_lg_u32 s54, 0\ns_cbranch_scc1 L_v_nb3b\ns_barrier\nL_v_nb3b:")
        self.stamp(8)
        M = T[0]; W = T[1]
        a(f"v_sub_f32 v{W}, v{GB+4}, v{M}\nv_exp_f32 v{W}, v{W}\nv_mul_f32 v{W}, v{W}, v{GB+5}")
        a(f"v_mov_b32_dpp v{T[2]}, v{W} row_newbcast:0 {DPPALL}\nv_mov_b32_dpp v{T[3]}, v{W} row_newbcast:1 {DPPALL}")
        a(f"v_cvt_pk_bf16_f32 v{T[2]}, v{T[2]}, v{T[3]}")
        self.build_A(AB[0], T[2])
        self.bf16r(W, W)
        self.mfma(ACC, AB[0], GB, True)
        for c in (Q1, Q2, HM):
            a(f"v_add_f32_dpp v{W}, v{W}, v{W} {c} {DPPALL}")
        a(f"v_rcp_f32 v{W}, v{W}")
        self.pair32(ACC, T[2], T[3])
        a(f"v_mul_f32 v{T[2]}, v{T[2]}, v{W}\nv_mul_f32 v{T[3]}, v{T[3]}, v{W}\nv_cvt_pk_bf16_f32 v{T[4]}, v{T[2]}, v{T[3]}")
        self.gemv_bcast(ACC + 4, T[4], WB, 8)
        a(f"s_and_b32 s58, s3, 3\ns_lshl_b32 s58, s58, 8\nv_add_u32 v{T[3]}, s58, v{lane4}")
        self.l64(ACC + 4, T[0])
        a(f"ds_write_b32 v{T[3]}, v{T[0]} offset:{L_YR}")
        self.sel_layer(58, YO, 52)
        a("s_waitcnt vmcnt(0) lgkmcnt(0)\ns_barrier")
        a("s_cmp_lg_u32 s3, 7\ns_cbranch_scc1 L_v_b5")
        for w in range(4): a(f"ds_read_b32 v{GB+w}, v{lane4} offset:{L_YR + 256*w}")
        a("s_waitcnt lgkmcnt(0)")
        a(f"v_add_f32 v{GB}, v{GB}, v{GB+1}\nv_add_f32 v{GB+2}, v{GB+2}, v{GB+3}\nv_add_f32 v{T[0]}, v{GB}, v{GB+2}")
        a(f"v_mov_b32_dpp v{T[1]}, v{T[0]} row_ror:8 {DPPALL}\nv_cvt_pk_bf16_f32 v{T[0]}, v{T[0]}, v{T[1]}")
        if self.G4:
            self.gather4(T[0], AB[0])
            a("s_mov_b64 exec, 0xff")
            a(f"buffer_store_dwordx4 {q4(AB[0])}, v{aP32}, {WS}, s58 offen sc1")
        else:
            a("s_mov_b64 exec, s[64:65]")
            a(f"buffer_store_dword v{T[0]}, v{aP32}, {WS}, s58 offen sc1")
        a("s_mov_b64 exec, -1")
        self.stamp(9)
        a("L_v_b5:")
        a("s_cmp_lg_u32 s54, 0\ns_cbranch_scc1 L_v_b5b")
        self.v_fetch_wq()
        self.dump_stamps()
        a("L_v_b5b:")
        a("s_barrier\ns_barrier")
        a("s_cmp_lg_u32 s54, 0\ns_cbranch_scc1 L_fin2")
        a("s_mov_b32 s54, 1\ns_branch L_vloop")
        a("L_v_next:")
        a("s_cmp_lg_u32 s54, 0\ns_cbranch_scc1 L_fin2")
        self.v_fetch_wq()
        self.dump_stamps()
        a("s_mov_b32 s54, 1\ns_sleep 48\ns_branch L_vloop")
        self.flush_ool()
        a("L_end:\ns_endpgm")
        a('.section .rodata,"a"\n.p2align 6')
        a(f".amdhsa_kernel {KNAME}")
        a(".amdhsa_next_free_vgpr 256\n.amdhsa_next_free_sgpr 102\n.amdhsa_accum_offset 256\n.amdhsa_group_segment_fixed_size 0\n.amdhsa_kernarg_size 96")
        a(".amdhsa_user_sgpr_count 2\n.amdhsa_user_sgpr_kernarg_segment_ptr 1\n.amdhsa_system_sgpr_workgroup_id_x 1\n.end_amdhsa_kernel")
        return a.render()

    def code_prefetch(self):
        a = self.a
        le = self.L("cpf")
        a(f"s_cmp_lg_u32 s3, 1\ns_cbranch_scc1 {le}\ns_cmp_lg_u32 s54, 0\ns_cbranch_scc1 {le}")
        a("s_getpc_b64 s[72:73]")
        a("L_pcref:")
        a(f"s_sub_u32 s72, s72, L_pcref-{KNAME}\ns_subb_u32 s73, s73, 0")
        a(f"v_lshlrev_b32 v{T[0]}, 5, v0\nv_add_u32 v{T[0]}, s5, v{T[0]}\nv_lshlrev_b32 v{T[0]}, 7, v{T[0]}")
        a(f"v_mov_b32 v{T[1]}, L_end-{KNAME}\nv_cmp_lt_u32 vcc, v{T[0]}, v{T[1]}\ns_and_b64 exec, vcc, exec")
        a(f"global_load_dword v{XA+5}, v{T[0]}, s[72:73] sc1")
        a("s_mov_b64 exec, -1")
        a(f"{le}:")

    def v_prologue(self):
        a = self.a
        if "dbl" in self.knobs:
            a(f"v_mul_u32_u24 v{T[0]}, 384, v2\nv_lshl_add_u32 v{T[0]}, v1, 4, v{T[0]}\ns_sub_u32 s61, s59, {6144*384}")
            for srd in ("s[12:15]", "s[16:19]"):
                for n in range(24):
                    rg, th = divmod(n, 3)
                    if th == 0: a(f"s_add_u32 s58, s61, {rg*8*384}")
                    a(f"buffer_load_dwordx4 {q4(KV+4*n)}, v{T[0]}, {srd}, s58 offen offset:{th*128} nt")
            a("s_waitcnt vmcnt(12)")
        self.k_dma()
        for n in range(24):
            rg, th = divmod(n, 3)
            if n == self.NB:
                a(f"s_lshl_b32 s60, s3, 2\nv_mov_b32 v{T[2]}, s60\nv_mov_b32 v{T[3]}, 1")
                a(f"s_waitcnt vmcnt({self.NB})\nds_write_b32 v{T[2]}, v{T[3]} offset:{L_CTRL}")
                self.stamp(11)
            if th == 0: a(f"s_add_u32 s58, s59, {rg*8*384}")
            a(f"buffer_load_dwordx4 {q4(KV+4*n)}, v{T[4]}, s[16:19], s58 offen offset:{th*128} nt")
        self.stamp(1)
        if self.knobs & {"lo1", "lo2", "lo3"}:
            if "wo" in self.knobs:
                self.wo_loads()
                a("s_waitcnt vmcnt(8)")
                self.stamp(5)
            a("s_waitcnt vmcnt(0)")
            self.stamp(6)
            a("s_branch L_fin2")
        if self.WOE: self.wo_loads(self.WOE)
        if self.PRI == 1: a("s_setprio 1")
        self.consts()
        self.vwave_addrs()
        a("s_branch L_v_b2")

    def v_fetch_wq(self):
        a = self.a
        a(f"s_and_b32 s58, s3, 3\ns_min_u32 s58, s58, 2\ns_mul_i32 s58, s58, 10752\ns_add_u32 s58, s58, {L_WQ}\nv_lshlrev_b32 v{T[0]}, 4, v0\nv_add_u32 v{T[0]}, s58, v{T[0]}")
        for t in range(10):
            a(f"ds_read_b128 {q4(WA+4*t)}, v{T[0]} offset:{1024*t}")
        a(f"v_add_u32 v{T[1]}, s58, v{lane4}\nds_read_b32 v{CS0}, v{T[1]} offset:10240\nds_read_b32 v{CS1}, v{T[1]} offset:10496")
        self.read_fast()
        a(f"s_add_u32 s58, s53, {7*BS}\nbuffer_load_dword v{XA+3}, v{aX2}, {WS}, 0 offen offset:{X2O} sc1\nbuffer_load_dword v{XA+4}, v{aXS}, {WS}, s58 offen offset:{MISC} sc1")

    def zgather(self, layer, slp):
        a = self.a
        a(f"s_mul_i32 s58, s56, {BS}\ns_add_u32 s60, s58, {10*BS}\ns_add_u32 s61, s58, {20*BS}")
        self.sleep(slp)
        self.poll([f"buffer_load_dwordx4 {q4(GB+4*n)}, v{aROW}, {WS}, s{(58,60,61)[n]} offen offset:{ZO[layer]} sc1" for n in range(3)], range(GB, GB + 12),
                  spec=[self.mfma_s(ACC, ONES, GB + 4 * n, n == 0) for n in range(3)], pipe=self.PZ)
        self.stamp(10 if layer else 1)
        self.resid_add()

REF = "interleave_layers__sliding_block_cached__dense_activation_mish__decode.s.ref"
HEADER = open(REF).read().split("; Override")[0] if os.path.exists(REF) else ""

if __name__ == "__main__":
    prof = {"prof": 1, "lite": 3}.get(sys.argv[2], 0) if len(sys.argv) > 2 else 0
    open(sys.argv[1], "w").write(HEADER + Gen(prof, sys.argv[3:]).gen())
```

```python
import sys, os
sys.path.insert(0, "gen")
from asmlib import Asm

KNAME = "interleave_layers__sliding_block_cached__dense_activation_mish__decode_kernel"
BS = 4736
YO = [0, 128]; ZO = [256, 384]
QP1 = 512
OP = [896, 1280]
MISC = 1664
HPR = [1792, 2048]; HPC = 2304
X2O = 2560
CLR_END = 2816
QP0T = 3072
GEN_OFF = 256 * BS
FL1 = GEN_OFF + 4096; FL2 = GEN_OFF + 8192
WS_USED = GEN_OFF + 12288
PROF_OFF = 2 << 20
L_CTRL = 0
L_ML = 128
L_P = 256
L_O = 1024
L_YR = 4096
L_Q = 5120
L_K = 8192
L_WQ = L_K + 98304
LDS_BYTES = L_WQ + 3 * 10752
POLL_LIMIT = 200000
ONES = 4; SEL = 8; AB = [12, 16]; ACC = 20; GB = 36; XA = 60
aQG = 70; aP32 = 71; aROW = 72; aML = 73; aST = 74; ldsP = 75; lane4 = 76
CS0 = 77; CS1 = 78; X0 = 79; X1 = 80; B1V = 81; CSW1 = 82
T = [83, 84, 85, 86, 87, 1, 2, 3]
aX2 = 68; aXS = 69
KV = 88; WA = 184; WB = 224
WS = "s[48:51]"

DOC = """
Persistent fused kernel (generated by the author's own script): 256 workgroups x 8 waves, one per CU.
K, V and all weight slices are read from HBM once and stay in registers / LDS for both layer passes.
 wg = 8*m + xg : xg = group (expected XCD), head = 4*xg + m/8, key chunk = m%8 (256 keys).
 waves 0-3 ("K"): QK + softmax, partial combine, w1 / w2 GEMVs ; waves 4-7 ("V"): streaming, PV, wo and wq GEMVs.
GEMVs over [k][n] weights use v_mfma_f32_16x16x32_bf16 with a selector A operand (one non-zero per row).
LayerNorm is applied after the GEMV by linearity (rstd * (x.W - mean * colsum(W))).
Hand-offs go through d_ws: slots are cleared to 0xFFFFFFFF at kernel start and polled dword by dword;
a launch-unique tag (derived from one word of d_ws) validates the start-up flags and the first q exchange.
Group-local hand-offs use plain stores only if every member reported the same XCC id, else write-through stores.
Every poll loop is bounded.
"""

def q4(r): return f"v[{r}:{r+3}]"
DPPALL = "row_mask:0xf bank_mask:0xf"
Q1 = "quad_perm:[1,0,3,2]"; Q2 = "quad_perm:[2,3,0,1]"; HM = "row_half_mirror"; RM = "row_mirror"

class Gen:
    def __init__(self, prof=0, knobs=()):
        self.knobs = set(knobs)
        self.LL = 4; self.LL2 = 4; self.W2SL = 16; self.LAY = 1; self.EX = 1; self.PERT = 0; self.PALL = 0; self.PRI = 0; self.WOE = 0; self.WSP = 800; self.AMP = 0; self.B0IT = 0; self.B3B = 1; self.Q4 = 0; self.G4 = 0; self.PQ = 0; self.PO = 1; self.PX = 0; self.PH = 1; self.PZ = 0; self.PGAP = 12; self.TR = 1; self.XSLP = 0; self.Q1ST = 1; self.QPW = 0; self.FLSL = 127; self.QFB = 5; self.CPF0 = 1; self.B0E = 0; self.B0N = 0; self.OSC = 0; self.AL = 1; self.ALP = 3; self.SHIFT = 0; self.CPF = 0; self.NB = 8; self.QSLEEP0 = 56; self.QSLEEP1 = 24
        self.QSL = 12; self.OSL = 8; self.YSL0 = 16; self.YSL = 15; self.HSL = 10; self.ZSL = 11; self.XSL = 26; self.FSL = 8
        for k in knobs:
            if '=' in k: setattr(self, k.split('=')[0], int(k.split('=')[1]))
        self.WS = [self.WSP // 100, self.WSP // 10 % 10, self.WSP % 10]
        self.a = Asm(); self.prof = prof; self.uid = 0; self.ool = []
    def L(self, base):
        self.uid += 1
        return f"L_{base}_{self.uid}"
    def stamp(self, i):
        if self.prof == 3 and i not in (0, 6, 11): return
        if self.prof: self.a(f"s_memrealtime s[{76+2*i}:{77+2*i}]")
    def al(self, n=3):
        if self.AL: self.a(f".p2align {n}")
    def sleep(self, n):
        if n: self.a(f"s_sleep {n}")
    def dump_stamps(self):
        if not self.prof: return
        a = self.a
        a("s_waitcnt lgkmcnt(0)")
        a(f"v_mov_b32 v{T[0]}, 0")
        for i in range(13):
            a(f"v_writelane_b32 v{T[0]}, s{76+2*i}, {i}")
        a("s_lshl_b32 s58, s2, 3\ns_add_u32 s58, s58, s3\ns_lshl_b32 s58, s58, 1\ns_add_u32 s58, s58, s54\ns_lshl_b32 s58, s58, 6")
        a(f"s_add_u32 s58, s58, {PROF_OFF}")
        a("s_mov_b64 exec, 0xffff")
        a(f"buffer_store_dword v{T[0]}, v{lane4}, {WS}, s58 offen")
        a("s_mov_b64 exec, -1")
        for i in range(13):
            a(f"s_mov_b64 s[{76+2*i}:{77+2*i}], 0")
    def dump0(self):
        if not self.prof: return
        l = self.L("nd")
        self.a(f"s_cmp_lg_u32 s54, 0\ns_cbranch_scc1 {l}")
        self.dump_stamps()
        self.a(f"{l}:")
    def local_stores(self, lines):
        a = self.a
        ls, ld = self.L("sl"), self.L("sd")
        a(f"s_cmp_eq_u32 s55, 0\ns_cbranch_scc1 {ls}")
        for x in lines: a(x.replace("{f}", ""))
        a(f"{ld}:")
        self.ool.append([f"{ls}:", "s_nop 7"] + [x.replace("{f}", " sc1") for x in lines] + ["s_nop 1", f"s_branch {ld}"])
    def poll(self, loads, regs, entry=None, slp=0, spec=(), pipe=0):
        a = self.a
        lp, lr, ld = self.L("poll"), self.L("retry"), self.L("got")
        a("s_mov_b32 s70, 0")
        nld = sum(1 for x in loads if x.startswith("buffer_"))
        post = []
        if pipe:
            for _ in range(pipe):
                for x in loads: a(x)
                a(f"s_nop {self.PGAP}\ns_nop {self.PGAP}")
            post = list(spec); spec = ()
        a(f"{lp}:")
        for x in loads: a(x)
        if self.TR and not slp:
            a(f"s_add_u32 s70, s70, 1\ns_cmp_lt_u32 s70, {POLL_LIMIT}\ns_cbranch_scc0 {lr}")
        if entry: a(f"{entry}:")
        self.al(self.ALP)
        a(f"s_nop 0\ns_waitcnt vmcnt({nld * pipe})")
        t = T[7]
        rs = list(regs)
        chk = []
        if len(rs) == 1:
            chk.append(f"v_cmp_eq_u32 vcc, -1, v{rs[0]}")
        else:
            if len(rs) == 2:
                chk.append(f"v_max_u32 v{t}, v{rs[0]}, v{rs[1]}"); rs = []
            else:
                chk.append(f"v_max3_u32 v{t}, v{rs[0]}, v{rs[1]}, v{rs[2]}"); rs = rs[3:]
            while rs:
                if len(rs) >= 2:
                    chk.append(f"v_max3_u32 v{t}, v{t}, v{rs[0]}, v{rs[1]}"); rs = rs[2:]
                else:
                    chk.append(f"v_max_u32 v{t}, v{t}, v{rs[0]}"); rs = rs[1:]
            chk.append(f"v_cmp_eq_u32 vcc, -1, v{t}")
        spec = list(spec)
        while spec or chk:
            if spec: a(spec.pop(0))
            for _ in range(2):
                if chk: a(chk.pop(0))
        if self.TR and not slp:
            a(f"s_cbranch_vccnz {lp}")
            a(f"{ld}:")
            for x in post: a(x)
            self.ool.append([f"{lr}:", "s_waitcnt vmcnt(0)", f"s_branch {ld}"])
            return
        a(f"s_cbranch_vccnz {lr}")
        a(f"{ld}:")
        self.ool.append([f"{lr}:", f"s_sleep {slp}" if slp else "s_nop 7", f"s_add_u32 s70, s70, 1", f"s_cmp_lt_u32 s70, {POLL_LIMIT}", f"s_cbranch_scc1 {lp}", f"s_branch {ld}"])
    def mfma_s(self, D, A, B, first):
        return f"v_mfma_f32_16x16x32_bf16 {q4(D)}, {q4(A)}, {q4(B)}, {'0' if first else q4(D)}"
    def flush_ool(self):
        for blk in self.ool:
            for x in blk: self.a(x)
        self.ool = []
    def build_A(self, dst, src):
        for d in range(4):
            self.a(f"v_perm_b32 v{dst+d}, v{src}, v{src}, v{SEL+d}")
    def mfma(self, D, A, B, first):
        self.a(f"v_mfma_f32_16x16x32_bf16 {q4(D)}, {q4(A)}, {q4(B)}, {'0' if first else q4(D)}")
    def pair32(self, D, t0, t1):
        self.a(f"v_add_f32_dpp v{t0}, v{D+1}, v{D} row_ror:8 {DPPALL}")
        self.a(f"v_add_f32_dpp v{t1}, v{D+3}, v{D+2} row_ror:8 {DPPALL}")
    def l64(self, D, t):
        self.a(f"v_add_f32_dpp v{t}, v{D+1}, v{D} row_ror:8 row_mask:0xf bank_mask:0x3")
        self.a(f"v_add_f32_dpp v{t}, v{D+2}, v{D+3} row_ror:8 row_mask:0xf bank_mask:0xc")
    def gemv_bcast(self, D, pair, W, n, fill=()):
        a = self.a
        fill = list(fill)
        tb = [T[5], T[6]]
        self.al()
        a(f"v_mov_b32_dpp v{tb[0]}, v{pair} row_newbcast:0 {DPPALL}")
        for t in range(n):
            if t + 1 < n:
                a(f"v_mov_b32_dpp v{tb[(t+1)&1]}, v{pair} row_newbcast:{t+1} {DPPALL}")
            self.build_A(AB[t & 1], tb[t & 1])
            if t > 0: self.mfma(D, AB[(t-1) & 1], W + 4 * (t-1), t == 1)
            for _ in range(2):
                if fill: a(fill.pop(0))
        self.mfma(D, AB[(n-1) & 1], W + 4 * (n-1), n == 1)
        for x in fill: a(x)
    def bf16r_ops(self, dst, src):
        return [f"v_cvt_pk_bf16_f32 v{dst}, v{src}, v{src}", f"v_lshlrev_b32 v{dst}, 16, v{dst}"]
    def bf16r(self, dst, src):
        for x in self.bf16r_ops(dst, src): self.a(x)
    def ln_ops(self, s1, s2, t):
        inv = "0x3acccccd"
        if self.EX:
            return [f"v_mul_f32 v{s1}, {inv}, v{s1}", f"v_mul_f32 v{s2}, {inv}, v{s2}", f"v_fma_f32 v{s2}, -v{s1}, v{s1}, v{s2}",
                    f"v_max_f32 v{s2}, 0, v{s2}", f"v_add_f32 v{s2}, 0x3727c5ac, v{s2}", f"v_rsq_f32 v{s2}, v{s2}"]
        return [f"v_mul_f32 v{s1}, {inv}, v{s1}", f"v_mul_f32 v{s2}, {inv}, v{s2}", f"v_fma_f32 v{s2}, -v{s1}, v{s1}, v{s2}",
                f"v_max_f32 v{s2}, 0, v{s2}", f"v_cvt_pk_bf16_f32 v{t}, v{s1}, v{s2}", f"v_lshlrev_b32 v{s1}, 16, v{t}",
                f"v_and_b32 v{s2}, 0xffff0000, v{t}", f"v_add_f32 v{s2}, 0x3727c5ac, v{s2}"] + self.bf16r_ops(s2, s2) + \
               [f"v_sqrt_f32 v{s2}, v{s2}"] + self.bf16r_ops(s2, s2) + [f"v_rcp_f32 v{s2}, v{s2}"]
    def red2_ops(self, s1, s2, steps, tmp):
        return [f"v_permlane32_swap_b32 v{s1}, v{s2}", f"v_add_f32 v{s1}, v{s1}, v{s2}", f"v_mov_b32 v{tmp}, v{s1}",
                f"v_permlane16_swap_b32 v{s1}, v{tmp}", f"v_add_f32 v{s1}, v{s1}, v{tmp}"] + \
               [f"v_add_f32_dpp v{s1}, v{s1}, v{s1} {c} {DPPALL}" for c in steps]
    def row16_ops(self, s1, s2, i1=None, i2=None):
        out = []
        for c in (Q1, Q2, HM, RM):
            a1 = i1 if (c == Q1 and i1 is not None) else s1
            a2 = i2 if (c == Q1 and i2 is not None) else s2
            out += [f"v_add_f32_dpp v{s1}, v{a1}, v{a1} {c} {DPPALL}", f"v_add_f32_dpp v{s2}, v{a2}, v{a2} {c} {DPPALL}"]
        return out
    def allred64(self, op, v, tmp):
        a = self.a
        for c in (Q1, Q2, HM, RM):
            a(f"{op}_dpp v{v}, v{v}, v{v} {c} {DPPALL}")
        a(f"v_mov_b32 v{tmp}, v{v}\nv_permlane16_swap_b32 v{v}, v{tmp}\n{op} v{v}, v{v}, v{tmp}")
        a(f"v_mov_b32 v{tmp}, v{v}\nv_permlane32_swap_b32 v{v}, v{tmp}\n{op} v{v}, v{v}, v{tmp}")
    def sel_layer(self, dst, arr, add=None):
        a = self.a
        a(f"s_mul_i32 s{dst}, s54, {arr[1]-arr[0]}")
        if arr[0]: a(f"s_add_u32 s{dst}, s{dst}, {arr[0]}")
        if add is not None: a(f"s_add_u32 s{dst}, s{dst}, s{add}")
    def lds_wait_flag(self, off, val=None, fb=0):
        a = self.a
        lp, ld = self.L("lw"), self.L("lg")
        t = T[5]; t2 = T[6]
        a(f"v_mov_b32 v{t2}, {off}\ns_mov_b32 s70, 0")
        a(f"{lp}:\nds_read_b32 v{t}, v{t2}\ns_waitcnt lgkmcnt(0)\nv_readfirstlane_b32 s58, v{t}")
        a(f"s_cmp_lg_u32 s58, 0\ns_cbranch_scc1 {ld}" if val is None else f"s_cmp_eq_u32 s58, {val}\ns_cbranch_scc1 {ld}")
        a("s_sleep 1\ns_add_u32 s70, s70, 1")
        if fb: self.q_fallback(fb)
        a(f"s_cmp_lt_u32 s70, {4*POLL_LIMIT}\ns_cbranch_scc1 {lp}")
        a(f"{ld}:")
    def q_fallback(self, thresh):
        a = self.a
        QD = XA + 6
        le = self.L("qfb")
        a(f"s_cmp_lt_u32 s70, {thresh}\ns_cbranch_scc1 {le}\ns_cmp_lg_u32 s71, 0\ns_cbranch_scc1 {le}\ns_cmp_eq_u32 s3, 3\ns_cbranch_scc1 {le}")
        a("s_mov_b32 s71, 1\ns_mov_b64 exec, s[64:65]")
        a(f"buffer_store_dwordx2 v[{QD}:{QD+1}], v{X0}, {WS}, s63 offen offset:{QP0T} sc1")
        a(f"s_mov_b64 exec, -1\ns_waitcnt vmcnt(0)\n{le}:")
    def read_fast(self):
        self.a(f"v_mov_b32 v{T[2]}, {L_CTRL+4}\nds_read_b32 v{T[2]}, v{T[2]}\ns_waitcnt lgkmcnt(0)\nv_readfirstlane_b32 s55, v{T[2]}\ns_lshr_b32 s55, s55, 1")
    def make_tag(self):
        self.a("s_waitcnt lgkmcnt(0)\ns_mul_i32 s74, s74, 1664525\ns_add_u32 s74, s74, 1013904223")
    def resid_add(self):
        a = self.a
        self.pair32(ACC, T[2], T[3])
        if not self.EX:
            a(f"v_cvt_pk_bf16_f32 v{T[4]}, v{T[2]}, v{T[3]}")
            a(f"v_lshlrev_b32 v{T[2]}, 16, v{T[4]}\nv_and_b32 v{T[3]}, 0xffff0000, v{T[4]}")
        a(f"v_add_f32 v{T[2]}, v{T[2]}, v{X0}\nv_add_f32 v{T[3]}, v{T[3]}, v{X1}")
        a(f"v_cvt_pk_bf16_f32 v{T[4]}, v{T[2]}, v{T[3]}")
    def gather4(self, src, Q):
        a = self.a
        a(f"v_mov_b32 v{Q}, v{src}\nv_mov_b32 v{Q+1}, v{src}")
        a(f"v_permlane16_swap_b32 v{Q}, v{Q+1}")
        a(f"v_mov_b32 v{Q+2}, v{Q}\nv_mov_b32 v{Q+3}, v{Q+1}")
        a(f"v_permlane32_swap_b32 v{Q}, v{Q+2}\nv_permlane32_swap_b32 v{Q+1}, v{Q+3}")
    def unpackX_ops(self, src):
        return [f"v_lshlrev_b32 v{X0}, 16, v{src}", f"v_and_b32 v{X1}, 0xffff0000, v{src}"]
    def xstats_ops(self, s1, s2, tmp):
        return [f"v_add_f32 v{s1}, v{X0}, v{X1}", f"v_mul_f32 v{s2}, v{X0}, v{X0}", f"v_fmac_f32 v{s2}, v{X1}, v{X1}"] + self.red2_ops(s1, s2, (Q1, Q2, HM), tmp)
    def rows24_loads(self, off_arr):
        a = self.a
        self.sel_layer(58, off_arr)
        a(f"s_mul_i32 s60, s56, {BS}\ns_add_u32 s58, s58, s60\ns_add_u32 s60, s58, {10*BS}\ns_add_u32 s61, s58, {20*BS}")
        return [f"buffer_load_dwordx4 {q4(GB+4*n)}, v{aROW}, {WS}, s{(58,60,61)[n]} offen sc1" for n in range(3)]
    def consts(self):
        a = self.a
        t0, t1, t2 = T[0], T[1], T[2]
        a(f"v_and_b32 v{t0}, 1, v0\nv_mul_u32_u24 v{t0}, 0x202, v{t0}\nv_add_u32 v{t0}, 0x100, v{t0}")
        a(f"v_bfe_u32 v{t1}, v0, 1, 1\nv_lshlrev_b32 v{t1}, 4, v{t1}\nv_lshlrev_b32 v{t0}, v{t1}, v{t0}")
        a(f"v_mov_b32 v{t2}, 0x0c0c0000\nv_lshrrev_b32 v{t2}, v{t1}, v{t2}\nv_or_b32 v{t0}, v{t0}, v{t2}")
        a(f"v_bfe_u32 v{t1}, v0, 2, 2\nv_mov_b32 v{t2}, 0x0c0c0c0c")
        for d in range(4):
            a(f"v_cmp_eq_u32 vcc, {d}, v{t1}\nv_cndmask_b32 v{SEL+d}, v{t2}, v{t0}, vcc")
        a(f"v_mov_b32 v{t0}, 0x3f803f80")
        self.build_A(ONES, t0)
    def kwave_addrs(self):
        a = self.a
        t0, t1, t2 = T[0], T[1], T[2]
        a(f"v_lshrrev_b32 v{t0}, 3, v0\nv_and_b32 v{t1}, 7, v0\ns_mov_b32 s58, {32*BS}\nv_mul_lo_u32 v{aROW}, s58, v{t0}\nv_lshl_add_u32 v{aROW}, v{t1}, 4, v{aROW}")
        a(f"v_mul_u32_u24 v{aX2}, {BS}, v{t1}\nv_lshrrev_b32 v{t1}, 4, v0\nv_lshl_add_u32 v{aX2}, v{t1}, 6, v{aX2}")
        a(f"s_lshl_b32 s58, s56, 2\ns_add_u32 s58, s58, s53\nv_add_u32 v{aX2}, s58, v{aX2}")
        a(f"v_bfe_u32 v{t0}, v0, 3, 1\nv_lshl_add_u32 v{t0}, v{t0}, 2, v{t1}\nv_mul_u32_u24 v{aQG}, {BS}, v{t0}")
        a(f"v_and_b32 v{t0}, 7, v0\nv_lshl_add_u32 v{aQG}, v{t0}, 4, v{aQG}")
        a(f"s_mul_i32 s58, s6, {8*BS}\ns_add_u32 s58, s58, s53\nv_add_u32 v{aQG}, s58, v{aQG}")
        a(f"v_and_b32 v{t0}, 3, v0\nv_lshlrev_b32 v{t0}, 4, v{t0}\nv_lshl_add_u32 v{t0}, v{t1}, 2, v{t0}\nv_bfe_u32 v{t2}, v0, 2, 2\nv_add_u32 v{t0}, v{t0}, v{t2}")
        a(f"v_bfe_u32 v{t2}, v{t0}, 1, 2\nv_lshlrev_b32 v{ldsP}, 5, v{t2}\nv_lshrrev_b32 v{t2}, 3, v{t0}\nv_lshl_add_u32 v{ldsP}, v{t2}, 2, v{ldsP}")
        a(f"v_and_b32 v{t2}, 1, v{t0}\nv_lshl_add_u32 v{ldsP}, v{t2}, 1, v{ldsP}")
        a(f"s_lshl_b32 s58, s3, 7\ns_add_u32 s58, s58, {L_P}\nv_add_u32 v{ldsP}, s58, v{ldsP}")
        a(f"v_and_b32 v{t0}, 15, v0\nv_mul_u32_u24 v{aML}, {BS}, v{t1}\nv_lshl_add_u32 v{aML}, v{t0}, 4, v{aML}")
        a(f"v_lshlrev_b32 v{aST}, 4, v{t0}\nv_lshl_add_u32 v{aST}, v{t1}, 2, v{aST}\nv_lshlrev_b32 v{aXS}, 3, v{t0}")
    def vwave_addrs(self):
        a = self.a
        a("v_and_b32 v1, 7, v0\nv_lshrrev_b32 v2, 3, v0\nv_lshrrev_b32 v3, 4, v0")
        a("s_min_u32 s61, s57, 2\ns_lshl_b32 s58, s61, 2\ns_and_b32 s60, s3, 3\ns_add_u32 s58, s58, s60\ns_mul_i32 s60, s58, 43\ns_lshr_b32 s60, s60, 7")
        a("s_mul_i32 s61, s60, 3\ns_sub_u32 s58, s58, s61")
        a(f"s_mul_i32 s60, s60, {8*BS}\ns_add_u32 s60, s60, s53\ns_lshl_b32 s58, s58, 7\ns_add_u32 s58, s58, s60")
        a(f"v_mul_u32_u24 v{aQG}, {BS}, v2\nv_lshl_add_u32 v{aQG}, v1, 4, v{aQG}\nv_add_u32 v{aQG}, s58, v{aQG}")
        a(f"v_lshl_add_u32 v{aML}, v3, 1, v0\nv_and_b32 v{aML}, 7, v{aML}\nv_lshlrev_b32 v{aML}, 3, v{aML}\nv_add_u32 v{aML}, s60, v{aML}")
        a(f"s_and_b32 s58, s3, 3\ns_lshl_b32 s58, s58, 7\ns_add_u32 s58, s58, {L_P}\nv_lshlrev_b32 v{ldsP}, 5, v3\nv_add_u32 v{ldsP}, s58, v{ldsP}")
        a(f"s_mul_i32 s58, s6, {8*BS}\ns_add_u32 s58, s58, s53\ns_and_b32 s60, s3, 3\ns_lshl_b32 s60, s60, 7\ns_add_u32 s58, s58, s60\ns_lshl_b32 s60, s7, 4\ns_add_u32 s58, s58, s60")
        a(f"v_mul_u32_u24 v{aST}, {BS}, v1\nv_lshl_add_u32 v{aST}, v3, 2, v{aST}\nv_add_u32 v{aST}, s58, v{aST}")
        a(f"s_mul_i32 s58, s7, {BS}\ns_add_u32 s58, s58, s53\nv_add_u32 v{aX2}, s58, v{lane4}")
        a(f"v_and_b32 v{aXS}, 15, v0\nv_lshlrev_b32 v{aXS}, 3, v{aXS}\nv_mov_b32 v{aROW}, 0")
    def k_dma(self):
        a = self.a
        t = T[0]; t2 = T[1]
        a(f"v_lshrrev_b32 v{t}, 3, v0\nv_and_b32 v{t2}, 6, v{t}\nv_xor_b32 v{t2}, v{t2}, v0\nv_and_b32 v{t2}, 7, v{t2}")
        a(f"v_mul_u32_u24 v{t}, 384, v{t}\nv_lshl_add_u32 v{t}, v{t2}, 4, v{t}")
        a(f"s_and_b32 s60, s3, 3\ns_mul_i32 s60, s60, 24576\ns_add_u32 s60, s60, {L_K}\ns_mov_b32 s58, s59\ns_add_u32 s61, s59, {64*384}")
        a(f"v_mul_u32_u24 v{T[4]}, 384, v2\nv_lshl_add_u32 v{T[4]}, v1, 4, v{T[4]}")
        a("s_waitcnt lgkmcnt(0)")
        self.stamp(2)
        if self.B0IT == 0: a("s_barrier")
        self.stamp(3)
        a(f"s_add_u32 s62, s59, {3072*self.B0IT}")
        a("L_kdma:")
        for th in range(3):
            a(f"s_add_u32 m0, s60, {th*1024 - th*128}")
            a(f"buffer_load_dwordx4 v{t}, s[12:15], s58 offen offset:{th*128} nt lds")
        a("s_add_u32 s60, s60, 3072\ns_add_u32 s58, s58, 3072")
        if self.B0IT: a("s_cmp_lg_u32 s58, s62\ns_cbranch_scc1 L_kdma_nb\ns_barrier\nL_kdma_nb:")
        a("s_cmp_lt_u32 s58, s61\ns_cbranch_scc1 L_kdma")
    def k_to_regs(self):
        a = self.a
        t = T[0]; t2 = T[1]; t3 = T[2]
        a(f"v_and_b32 v{t}, 7, v0\nv_lshrrev_b32 v{t2}, 4, v0\nv_and_b32 v{t3}, 6, v0\nv_xor_b32 v{t2}, v{t2}, v{t3}")
        a(f"v_lshlrev_b32 v{t}, 7, v{t}\nv_bfe_u32 v{t3}, v0, 3, 1\nv_mul_u32_u24 v{t3}, 3072, v{t3}\nv_add_u32 v{t}, v{t}, v{t3}")
        a(f"s_mul_i32 s60, s3, 24576\nv_add_u32 v{t}, s60, v{t}")
        a(f"v_lshl_add_u32 v{t3}, v{t2}, 4, v{t}")
        a(f"v_xor_b32 v{t2}, 4, v{t2}\nv_lshl_add_u32 v{t2}, v{t2}, 4, v{t}")
        for tile in range(4):
            for u in range(6):
                off = L_K + (2 * tile * 3 + (u >> 1)) * 1024
                a(f"ds_read_b128 {q4(KV + (tile*6+u)*4)}, v{t2 if (u & 1) else t3} offset:{off}")
            if tile == 1: a("s_waitcnt lgkmcnt(0)")
        a("s_waitcnt lgkmcnt(0)")
    def wo_part(self, lo, hi):
        a = self.a
        le = self.L("wop")
        a(f"s_cmp_lg_u32 s54, 0\ns_cbranch_scc1 {le}")
        for t in range(lo, hi):
            a(f"buffer_load_dwordx4 {q4(WB+4*t)}, v{XA}, s[24:27], s63 offen nt")
            if t < 7: a(f"s_add_u32 s63, s63, {8*1280}")
        a(f"{le}:")
    def wo_loads(self, n=8):
        a = self.a
        t1 = XA
        a(f"v_lshrrev_b32 v{t1}, 3, v0\nv_mul_u32_u24 v{t1}, 1280, v{t1}\nv_and_b32 v{XA+1}, 7, v0\nv_lshl_add_u32 v{t1}, v{XA+1}, 4, v{t1}")
        a("s_min_u32 s62, s57, 2\ns_mul_i32 s58, s4, 768\ns_lshl_b32 s60, s62, 8\ns_add_u32 s58, s58, s60\ns_and_b32 s60, s3, 3\ns_lshl_b32 s60, s60, 6\ns_add_u32 s58, s58, s60")
        a("s_mul_i32 s58, s58, 1280\ns_lshl_b32 s60, s56, 7\ns_add_u32 s58, s58, s60")
        a("s_cmp_ge_u32 s5, 30\ns_cselect_b32 s58, 0x7f000000, s58")
        for t in range(n):
            a(f"buffer_load_dwordx4 {q4(WB+4*t)}, v{t1}, s[24:27], s58 offen nt")
            if t < 7: a(f"s_add_u32 s58, s58, {8*1280}")
        a("s_mov_b32 s63, s58")
    def w1_loads(self):
        a = self.a
        t0, t1 = T[2], T[3]
        a(f"v_lshrrev_b32 v{t0}, 3, v0\nv_and_b32 v{t1}, 7, v0\nv_mul_u32_u24 v{t0}, 3072, v{t0}\nv_lshl_add_u32 v{t0}, v{t1}, 4, v{t0}")
        a(f"s_mul_i32 s58, s56, {64*3072}\ns_mul_i32 s60, s4, 384\ns_add_u32 s58, s58, s60\ns_lshl_b32 s60, s57, 7\ns_add_u32 s58, s58, s60")
        for t in range(8):
            a(f"buffer_load_dwordx4 {q4(WB+4*t)}, v{t0}, s[28:31], s58 offen nt")
            if t < 7: a(f"s_add_u32 s58, s58, {8*3072}")
    def w2_loads(self):
        a = self.a
        t0, t1 = T[2], T[3]
        a(f"v_lshrrev_b32 v{t0}, 3, v0\nv_and_b32 v{t1}, 7, v0\nv_mul_u32_u24 v{t0}, 1280, v{t0}\nv_lshl_add_u32 v{t0}, v{t1}, 4, v{t0}")
        a("s_mul_i32 s58, s4, 192\ns_lshl_b32 s60, s57, 6\ns_add_u32 s61, s58, s60\ns_mul_i32 s58, s61, 1280\ns_lshl_b32 s60, s56, 7\ns_add_u32 s58, s58, s60")
        for t in range(8):
            a(f"buffer_load_dwordx4 {q4(WB+4*t)}, v{t0}, s[36:39], s58 offen nt")
            if t < 7: a(f"s_add_u32 s58, s58, {8*1280}")
        a(f"v_bfe_u32 v{t0}, v0, 3, 1\nv_lshl_add_u32 v{t0}, v{t0}, 1, v{aP32}\ns_lshl_b32 s61, s61, 1")
        a(f"buffer_load_ushort v{B1V}, v{t0}, s[32:35], s61 offen")
    def clears(self, all_sc1):
        a = self.a
        C = XA + 4
        for i in range(4): a(f"v_mov_b32 v{C+i}, -1")
        a(f"v_lshlrev_b32 v{T[3]}, 4, v0")
        f = " sc1" if all_sc1 else ""
        a("s_mov_b32 exec_hi, 0")
        a(f"buffer_store_dwordx4 {q4(C)}, v{T[3]}, {WS}, s52 offen sc1")
        a("s_mov_b32 exec_lo, 0xffff")
        a(f"buffer_store_dwordx4 {q4(C)}, v{T[3]}, {WS}, s52 offen offset:2560{f}")
        a("s_mov_b64 exec, -1")
        for o in (512, 1536):
            a(f"buffer_store_dwordx4 {q4(C)}, v{T[3]}, {WS}, s52 offen offset:{o}{f}")
    def flag_store(self, base):
        a = self.a
        C = XA + 4
        if base == FL1:
            a("s_xor_b32 s58, s74, 0x5bd1e995\ns_andn2_b32 s58, s58, 15\ns_or_b32 s75, s75, s58")
        a(f"s_lshl_b32 s58, s4, 5\ns_add_u32 s58, s58, s5\ns_lshl_b32 s58, s58, 3\ns_add_u32 s58, s58, {base}")
        a(f"v_mov_b32 v{C}, s74\nv_mov_b32 v{C+1}, s75")
        a("s_mov_b64 exec, 1")
        a(f"buffer_store_dwordx2 v[{C}:{C+1}], v{aP32}, {WS}, s58 offen sc1")
        a("s_mov_b64 exec, -1")
    def flags_issue(self, base):
        a = self.a
        F = AB[0]
        a(f"v_lshlrev_b32 v{T[4]}, 5, v0\ns_mov_b32 s60, {base}")
        a(f"buffer_load_dwordx4 {q4(F)}, v{T[4]}, {WS}, s60 offen sc1\nbuffer_load_dwordx4 {q4(F+4)}, v{T[4]}, {WS}, s60 offen offset:16 sc1")
    def flags_wait(self, base, group_only):
        a = self.a
        F = AB[0]
        t, t2 = T[2], T[3]
        lp, lc, ld = self.L("fp"), self.L("fc"), self.L("fg")
        a("s_mov_b32 s70, 0\ns_or_b32 s61, s75, 15")
        if base == FL1: a(f"s_branch {lc}")
        a(f"{lp}:")
        self.flags_issue(base)
        a(f"{lc}:")
        a("s_waitcnt vmcnt(0)")
        a(f"v_xor_b32 v{t}, s74, v{F}")
        for i in range(1, 4):
            a(f"v_xor_b32 v{t2}, s74, v{F+2*i}\nv_or_b32 v{t}, v{t}, v{t2}")
        for i in range(4):
            a(f"v_or_b32 v{t2}, 15, v{F+2*i+1}\nv_xor_b32 v{t2}, s61, v{t2}\nv_or_b32 v{t}, v{t}, v{t2}")
        a(f"v_cmp_ne_u32 vcc, 0, v{t}")
        if group_only: a(f"s_and_b64 vcc, vcc, s[72:73]\ns_cbranch_scc0 {ld}")
        else: a(f"s_cbranch_vccz {ld}")
        a(f"s_sleep 16\ns_add_u32 s70, s70, 1\ns_cmp_lt_u32 s70, {POLL_LIMIT}\ns_cbranch_scc1 {lp}\n{ld}:")
    def flags_check(self):
        a = self.a
        F = AB[0]; t, t2 = T[2], T[3]
        lf = self.L("fast")
        a("s_lshl_b32 s58, s4, 3\ns_mov_b64 s[72:73], 0xff\ns_lshl_b64 s[72:73], s[72:73], s58")
        self.flags_wait(FL1, False)
        a(f"v_xor_b32 v{t}, s75, v{F+1}")
        for i in range(1, 4):
            a(f"v_xor_b32 v{t2}, s75, v{F+2*i+1}\nv_or_b32 v{t}, v{t}, v{t2}")
        a(f"v_cmp_ne_u32 vcc, 0, v{t}\ns_mov_b32 s55, 1\ns_and_b64 vcc, vcc, s[72:73]")
        if "forceslow" not in self.knobs: a(f"s_cbranch_scc0 {lf}")
        a("s_mov_b32 s55, 0")
        self.clears(True)
        a("s_waitcnt vmcnt(0)")
        self.flag_store(FL2)
        self.flags_wait(FL2, True)
        a(f"{lf}:")
        a(f"s_lshl_b32 s58, s55, 1\ns_or_b32 s58, s58, 1\nv_mov_b32 v{t}, s58\nv_mov_b32 v{T[3]}, {L_CTRL}\nds_write_b32 v{T[3]}, v{t} offset:4")
    def qproj(self, pair, s1, s2, pre_ops):
        a = self.a
        self.gemv_bcast(ACC, pair, WA, 10, fill=list(pre_ops) + self.ln_ops(s1, s2, T[2]))
        self.pair32(ACC, T[2], T[3])
        a(f"v_fma_f32 v{T[2]}, -v{s1}, v{CS0}, v{T[2]}\nv_fma_f32 v{T[3]}, -v{s1}, v{CS1}, v{T[3]}")
        a(f"v_mul_f32 v{T[2]}, v{T[2]}, v{s2}\nv_mul_f32 v{T[3]}, v{T[3]}, v{s2}")
        a(f"v_cvt_pk_bf16_f32 v{T[4]}, v{T[2]}, v{T[3]}")

    def gen(self):
        a = self.a
        a(f"; @launch grid=(256,1,1) block=(512,1,1) lds={LDS_BYTES}")
        for ln in DOC.strip().split("\n"): a("; " + ln)
        a('.amdgcn_target "amdgcn-amd-amdhsa--gfx950"\n.text')
        a(f".globl {KNAME}\n.p2align 8\n.type {KNAME},@function")
        a(f"{KNAME}:")
        a("s_cmp_ge_u32 s2, 256\ns_cbranch_scc1 L_end")
        for _ in range(self.SHIFT): a("s_nop 0")
        if self.prof:
            for i in range(13): a(f"s_mov_b64 s[{76+2*i}:{77+2*i}], 0")
        self.stamp(0)
        if self.AMP: a("s_memrealtime s[92:93]")
        ptr = {12: 8, 20: 24, 8: 0, 48: 88, 16: 16, 24: 32, 28: 48, 32: 56, 36: 64, 40: 72}
        size = {8: 1280, 12: 100663296, 16: 100663296, 20: 7864320, 24: 7864320, 28: 1966080, 32: 3072, 36: 1966080, 40: 1280,
                48: (PROF_OFF + 256 * 8 * 2 * 64) if self.prof else WS_USED}
        for s, off in ptr.items():
            a(f"s_load_dwordx2 s[{s}:{s+1}], s[0:1], {off}")
        a("v_lshrrev_b32 v1, 6, v0\nv_and_b32 v0, 63, v0\nv_readfirstlane_b32 s3, v1")
        if self.CPF0:
            a("s_getpc_b64 s[72:73]")
            a("L_pcref0:")
            a(f"s_sub_u32 s72, s72, L_pcref0-{KNAME}\ns_subb_u32 s73, s73, 0")
            a("s_and_b32 s58, s2, 0xf8\ns_add_u32 s58, s58, s3\ns_lshl_b32 s58, s58, 7")
            a(f"s_cmp_ge_u32 s58, L_end-{KNAME}\ns_cbranch_scc1 L_nocpf0")
            a(f"v_mov_b32 v2, s58\ns_mov_b64 exec, 1\nglobal_load_dword v{WA+39}, v2, s[72:73]\ns_mov_b64 exec, -1")
            a("L_nocpf0:")
        self.size = size
        a("s_and_b32 s4, s2, 7\ns_lshr_b32 s5, s2, 3\ns_lshr_b32 s6, s5, 3\ns_and_b32 s7, s5, 7")
        a("v_and_b32 v1, 7, v0\nv_lshrrev_b32 v2, 3, v0\nv_lshrrev_b32 v3, 4, v0")
        a(f"v_lshlrev_b32 v{lane4}, 2, v0")
        if self.LAY == 0:
            a("s_cmp_lt_u32 s3, 4\ns_cbranch_scc1 L_pro_k")
            self.v_prologue()
            a("L_pro_k:")
        else:
            a("s_cmp_ge_u32 s3, 4\ns_cbranch_scc1 L_pro_v")
        a(f"s_setprio 3\ns_mov_b32 s71, {GEN_OFF}")
        a("s_cmp_eq_u32 s3, 3\ns_cbranch_scc1 L_pro_c")
        XS = GB
        self.srd(8, 20)
        a(f"v_lshlrev_b32 v{T[0]}, 4, v0")
        a(f"v_and_b32 v{T[1]}, 15, v0\nv_lshlrev_b32 v{T[1]}, 7, v{T[1]}\nv_lshl_add_u32 v{T[1]}, v3, 2, v{T[1]}\ns_lshl_b32 s61, s7, 4")
        a(f"v_mul_u32_u24 v{T[2]}, 12288, v2\nv_lshl_add_u32 v{T[2]}, v1, 4, v{T[2]}")
        a(f"s_lshl_b32 s58, s4, 2\ns_add_u32 s58, s58, s6\ns_mul_i32 s58, s58, 384\ns_lshl_b32 s60, s3, 7\ns_add_u32 s58, s58, s60\ns_mul_i32 s60, s7, {8*12288}\ns_add_u32 s58, s58, s60")
        a("s_waitcnt lgkmcnt(0)")
        a(f"buffer_load_dwordx4 {q4(XS)}, v{T[0]}, s[8:11], 0 offen")
        a(f"buffer_load_dword v{XS+4}, v{lane4}, s[8:11], 0 offen offset:1024")
        a(f"buffer_load_dword v{XA}, v{T[1]}, s[8:11], s61 offen")
        for t in range(10 if "nowq" not in self.knobs else 0):
            a(f"buffer_load_dwordx4 {q4(WA+4*t)}, v{T[2]}, s[20:23], s58 offen nt")
            if t < 9: a(f"s_add_u32 s58, s58, {64*12288}")
        if self.QPW:
            a(f"v_mov_b32 v{XA+6}, -1\ns_lshl_b32 s60, s3, 8\ns_add_u32 s63, s52, s60")
            a(f"buffer_store_dword v{XA+6}, v{lane4}, {WS}, s63 offen offset:{QP0T+768}")
        a("s_barrier")
        if self.LAY:
            a("s_branch L_k_rest")
            self.c_head()
            a("s_branch L_c_rest")
            a("L_pro_v:")
            self.v_prologue()
            a("L_k_rest:")
        self.rest_setup((8, 20))
        a(f"s_buffer_load_dword s74, {WS}, s71")
        self.consts()
        self.kwave_addrs()
        self.make_tag()
        a(f"s_waitcnt vmcnt({11 + self.QPW})")
        s1, s2 = T[0], T[1]
        a(f"v_mov_b32 v{s1}, 0\nv_mov_b32 v{s2}, 0")
        for i in range(5):
            a(f"v_lshlrev_b32 v{T[2]}, 16, v{XS+i}\nv_and_b32 v{T[3]}, 0xffff0000, v{XS+i}")
            a(f"v_add_f32 v{s1}, v{s1}, v{T[2]}\nv_fmac_f32 v{s2}, v{T[2]}, v{T[2]}\nv_add_f32 v{s1}, v{s1}, v{T[3]}\nv_fmac_f32 v{s2}, v{T[3]}, v{T[3]}")
        for x in self.red2_ops(s1, s2, (Q1, Q2, HM, RM), T[2]): a(x)
        a(f"v_readlane_b32 s58, v{s1}, 0\nv_readlane_b32 s60, v{s1}, 32")
        a(f"v_mov_b32 v{s1}, s58\nv_mov_b32 v{s2}, s60")
        a(f"s_waitcnt vmcnt({self.QPW})")
        self.stamp(1)
        if "lo1" in self.knobs: a("s_branch L_fin2")
        for t in range(10):
            self.mfma(ACC + 4, ONES, WA + 4 * t, t == 0)
        self.pair32(ACC + 4, CS0, CS1)
        self.qproj(XA, s1, s2, [])
        QD = XA + 6
        a(f"v_mov_b32 v{QD}, v{T[4]}\nv_mov_b32 v{QD+1}, s74")
        a(f"v_and_b32 v{X0}, 7, v0\nv_lshlrev_b32 v{X0}, 3, v{X0}\nv_lshrrev_b32 v{T[2]}, 4, v0\nv_lshl_add_u32 v{X0}, v{T[2]}, 6, v{X0}")
        a("s_lshl_b32 s60, s3, 8\ns_add_u32 s63, s52, s60")
        a("s_mov_b64 exec, s[64:65]")
        a(f"buffer_store_dwordx2 v[{QD}:{QD+1}], v{X0}, {WS}, s63 offen offset:{QP0T+768}")
        a("s_mov_b64 exec, -1\ns_mov_b32 s71, 0")
        self.stamp(3)
        if "lo2" in self.knobs: a("s_branch L_fin2")
        a(f"s_mul_i32 s58, s3, 10752\ns_add_u32 s58, s58, {L_WQ}\nv_lshlrev_b32 v{T[0]}, 4, v0\nv_add_u32 v{T[0]}, s58, v{T[0]}")
        for t in range(10):
            a(f"ds_write_b128 v{T[0]}, {q4(WA+4*t)} offset:{1024*t}")
        a(f"v_add_u32 v{T[1]}, s58, v{lane4}\nds_write_b32 v{T[1]}, v{CS0} offset:10240\nds_write_b32 v{T[1]}, v{CS1} offset:10496")
        QA = [XA + 1, XA + 2]
        a(f"s_mul_i32 s62, s6, {8*BS}\ns_add_u32 s62, s62, s53\ns_lshl_b32 s58, s3, 7")
        for n in range(2):
            a(f"v_add_u32 v{T[0]}, s58, v0")
            if n: a(f"v_add_u32 v{T[0]}, 64, v{T[0]}")
            a(f"v_mul_u32_u24 v{T[1]}, 0x556, v{T[0]}\nv_lshrrev_b32 v{T[1]}, 16, v{T[1]}")
            a(f"v_mul_u32_u24 v{T[2]}, {BS - 768}, v{T[1]}\nv_lshl_add_u32 v{QA[n]}, v{T[0]}, 4, v{T[2]}")
        SETS = [[WB, WB + 4], [WB + 8, WB + 12]]
        def qissue(k):
            if k == 0: a("s_add_u32 s58, s62, 768")
            else: a(f"s_cmp_ge_u32 s70, {self.QFB}\ns_cselect_b32 s58, 0, 768\ns_add_u32 s58, s58, s62")
            for n in range(2):
                a(f"buffer_load_dwordx4 {q4(SETS[k][n])}, v{QA[n]}, {WS}, s58 offen offset:{QP0T} sc1")
        lp, ld = self.L("poll"), self.L("got")
        a(f"s_mov_b32 s70, 0\ns_sleep {self.QSLEEP0}")
        gots = [self.L("qg") for _ in range(2)]
        if self.Q1ST:
            qissue(0)
            a("s_waitcnt vmcnt(0)")
            a(f"v_mov_b32 v{T[0]}, s74\nv_mov_b32 v{T[1]}, s74")
            for r in SETS[0]:
                a(f"v_min3_u32 v{T[0]}, v{T[0]}, v{r+1}, v{r+3}\nv_max3_u32 v{T[1]}, v{T[1]}, v{r+1}, v{r+3}")
            a(f"v_cmp_ne_u32 vcc, v{T[0]}, v{T[1]}\ns_cbranch_vccz {gots[0]}")
        qissue(0); a(f"s_sleep {self.QSLEEP1}"); qissue(1)
        a(f"{lp}:")
        for k in range(2):
            a("s_waitcnt vmcnt(2)")
            a(f"v_mov_b32 v{T[0]}, s74\nv_mov_b32 v{T[1]}, s74")
            for r in SETS[k]:
                a(f"v_min3_u32 v{T[0]}, v{T[0]}, v{r+1}, v{r+3}\nv_max3_u32 v{T[1]}, v{T[1]}, v{r+1}, v{r+3}")
            a(f"v_cmp_ne_u32 vcc, v{T[0]}, v{T[1]}\ns_cbranch_vccz {gots[k]}")
            if k == 1:
                a("s_add_u32 s70, s70, 1")
                self.q_fallback(self.QFB)
            qissue(k)
        a(f"s_cmp_lt_u32 s70, {POLL_LIMIT}\ns_cbranch_scc1 {lp}")
        for k in range(2):
            a(f"{gots[k]}:")
            a(f"v_lshrrev_b32 v{T[0]}, 4, v0\nv_lshlrev_b32 v{T[0]}, 7, v{T[0]}\nv_and_b32 v{T[1]}, 3, v0\nv_lshl_add_u32 v{T[0]}, v{T[1]}, 5, v{T[0]}")
            a(f"v_bfe_u32 v{T[1]}, v0, 2, 2\nv_lshl_add_u32 v{T[0]}, v{T[1]}, 2, v{T[0]}\ns_lshl_b32 s58, s3, 10\ns_add_u32 s58, s58, {L_Q}\nv_add_u32 v{T[0]}, s58, v{T[0]}")
            for n in range(2):
                a(f"ds_write2_b32 v{T[0]}, v{SETS[k][n]}, v{SETS[k][n]+2} offset0:{128*n} offset1:{128*n+4}")
            if k < 1: a(f"s_branch {ld}")
        a(f"{ld}:")
        a(f"v_mov_b32 v{T[2]}, 1\nv_mov_b32 v{T[3]}, {L_CTRL+32}\ns_waitcnt lgkmcnt(0)\nds_add_u32 v{T[3]}, v{T[2]}")
        self.stamp(2)
        a("s_branch L_bk")
        if self.LAY == 0: self.c_head()
        else: a("L_c_rest:")
        self.rest_setup((8, 48), blk=False)
        a(f"s_buffer_load_dword s74, {WS}, s71")
        self.consts()
        self.kwave_addrs()
        self.make_tag()
        a("s_waitcnt vmcnt(0)")
        if "noclr" not in self.knobs: self.flag_store(FL1)
        self.stamp(1)
        for x in self.unpackX_ops(GB + 4): a(x)
        if not (self.knobs & {"lo1", "lo2"}) and "noclr" not in self.knobs:
            a(f"s_sleep {self.FLSL}")
            self.flags_issue(FL1)
            self.flags_check()
            self.stamp(2)
        a("L_bk:")
        if self.knobs & {"lo1", "lo2", "lo3"}: a("s_branch L_fin2")
        a(f"s_lshl_b32 s60, s3, 2\ns_add_u32 s60, s60, {L_CTRL+16}")
        self.lds_wait_flag("s60")
        self.stamp(10)
        self.k_to_regs()
        self.lds_wait_flag(L_CTRL + 32, 192, fb=64)
        self.stamp(11)
        a(f"v_and_b32 v{T[3]}, 7, v0\nv_mul_u32_u24 v{T[3]}, 384, v{T[3]}\nv_lshrrev_b32 v{T[4]}, 4, v0\nv_lshl_add_u32 v{T[3]}, v{T[4]}, 4, v{T[3]}")
        a(f"v_and_b32 v{T[4]}, 8, v0\nv_lshl_add_u32 v{T[3]}, v{T[4]}, 3, v{T[3]}")
        for u in range(3):
            a(f"ds_read_b128 {q4(GB+4*u)}, v{T[3]} offset:{L_Q + 128*u}")
        a("s_waitcnt lgkmcnt(0)")
        a("s_branch L_qk")

        a("L_kloop:")
        a("s_cmp_lg_u32 s3, 3\ns_cbranch_scc1 L_k_b1")
        a("s_cmp_ge_u32 s5, 10\ns_cbranch_scc1 L_k_pt")
        self.zgather(0, self.ZSL)
        s1, s2 = T[0], T[1]
        a("s_mov_b64 exec, s[64:65]")
        self.local_stores([f"buffer_store_dword v{T[4]}, v{aX2}, {WS}, 0 offen offset:{X2O}{{f}}"])
        a("s_mov_b64 exec, -1")
        for x in self.unpackX_ops(T[4]) + self.xstats_ops(s1, s2, T[2]): a(x)
        a(f"v_lshrrev_b32 v{T[2]}, 3, v0\nv_and_b32 v{T[2]}, 4, v{T[2]}\ns_lshl_b32 s58, s56, 3\ns_add_u32 s58, s58, s53\ns_add_u32 s58, s58, {7*BS}")
        a("s_mov_b64 exec, s[46:47]")
        self.local_stores([f"buffer_store_dword v{s1}, v{T[2]}, {WS}, s58 offen offset:{MISC}{{f}}"])
        a("s_mov_b64 exec, -1")
        self.stamp(2)
        a("L_k_pt:")
        a("L_k_b1:")
        a("s_barrier")
        self.sleep(self.QSL)
        self.poll([f"buffer_load_dwordx4 {q4(GB+4*u)}, v{aQG}, {WS}, 0 offen offset:{QP1 + 128*u} sc1" for u in range(3)], range(GB, GB + 12),
                  entry="L_qk", spec=[self.mfma_s(ACC + 4 * (u & 1), KV + 4 * u, GB + 4 * (u >> 1), u < 2) for u in range(4)], pipe=self.PQ)
        self.stamp(4)
        R = [XA, XA + 1, XA + 2, XA + 3]
        DE = [ACC, ACC + 8]; DO = [ACC + 4, ACC + 12]
        def lvl_ops(t):
            e, o = DE[t & 1], DO[t & 1]
            hm = lambda d, srcr, bank: f"v_add_f32_dpp v{d}, v{srcr}, v{srcr} row_half_mirror row_mask:0xf bank_mask:{hex(1<<bank)}"
            return [hm(T[2], e + 2, 0), hm(T[2], e + 3, 1), hm(R[t], e, 0), hm(R[t], e + 1, 1),
                    hm(T[2], o, 2), hm(T[2], o + 1, 3), hm(R[t], o + 2, 2), hm(R[t], o + 3, 3),
                    f"v_add_f32_dpp v{R[t]}, v{T[2]}, v{R[t]} row_ror:8 {DPPALL}",
                    f"v_add_f32_dpp v{R[t]}, v{R[t]}, v{R[t]} {Q1} {DPPALL}",
                    f"v_add_f32_dpp v{R[t]}, v{R[t]}, v{R[t]} {Q2} {DPPALL}"]
        pend = []
        S = T[0]; M = T[1]
        for t in range(4):
            for u in range(6):
                if t == 0 and u < 4: continue
                self.mfma((DO if u & 1 else DE)[t & 1], KV + (t * 6 + u) * 4, GB + 4 * (u >> 1), u < 2)
                if u >= 2:
                    for _ in range(3 if u < 5 else 2):
                        if pend: a(pend.pop(0))
            pend = lvl_ops(t)
            if t == 3:
                pend = [f"v_max3_f32 v{M}, v{R[0]}, v{R[1]}, v{R[2]}", f"v_cndmask_b32 v{R[0]}, v{R[0]}, v{R[1]}, s[66:67]"] + pend
        for x in pend: a(x)
        a(f"v_max_f32 v{M}, v{M}, v{R[3]}")
        a(f"v_cndmask_b32 v{R[2]}, v{R[2]}, v{R[3]}, s[66:67]\nv_cndmask_b32 v{S}, v{R[0]}, v{R[2]}, s[68:69]")
        a(f"v_max_f32_dpp v{M}, v{M}, v{M} row_ror:4 {DPPALL}")
        a(f"v_mul_f32 v{S}, 0x3dd53b95, v{S}")
        a(f"v_max_f32_dpp v{M}, v{M}, v{M} row_ror:8 {DPPALL}")
        a(f"v_mov_b32 v{T[2]}, v{M}\nv_permlane16_swap_b32 v{M}, v{T[2]}\nv_max_f32 v{M}, v{M}, v{T[2]}")
        a(f"v_mov_b32 v{T[2]}, v{M}\nv_permlane32_swap_b32 v{M}, v{T[2]}\nv_max_f32 v{M}, v{M}, v{T[2]}")
        a(f"v_mul_f32 v{M}, 0x3dd53b95, v{M}")
        a(f"v_sub_f32 v{S}, v{S}, v{M}\nv_exp_f32 v{S}, v{S}")
        a(f"v_cvt_pk_bf16_f32 v{S}, v{S}, v{S}")
        a(f"ds_write_b16 v{ldsP}, v{S}")
        a("s_cmp_eq_u32 s3, 3\ns_cbranch_scc1 L_qk_nf\ns_cmp_lg_u32 s54, 0\ns_cbranch_scc1 L_qk_nf")
        self.lds_wait_flag(L_CTRL + 4)
        a("s_lshr_b32 s55, s58, 1\ns_cmp_lg_u32 s55, 0\ns_cbranch_scc1 L_qk_nf")
        self.q_fallback(0)
        a("L_qk_nf:")
        a("s_waitcnt vmcnt(0) lgkmcnt(0)" if self.PQ else "s_waitcnt lgkmcnt(0)")
        self.stamp(5)
        if self.PRI == 1: a("s_setprio 0")
        a("s_barrier")
        if self.PRI == 2: a("s_sleep 2")
        a(f"v_lshlrev_b32 v{S}, 16, v{S}")
        self.allred64("v_add_f32", S, T[2])
        a(f"s_lshl_b32 s58, s3, 3\nv_mov_b32 v{T[2]}, s58")
        a("s_mov_b64 exec, 1")
        a(f"ds_write_b32 v{T[2]}, v{M} offset:{L_ML}\nds_write_b32 v{T[2]}, v{S} offset:{L_ML+4}")
        a("s_mov_b64 exec, -1")
        a("s_cmp_lg_u32 s3, 3\ns_cbranch_scc1 L_k_b3")
        a("s_cmp_eq_u32 s54, 0\ns_cbranch_scc1 L_c_b3")
        a("L_c_x2:")
        a("s_cmp_lt_u32 s5, 10\ns_cbranch_scc1 L_c_b3")
        self.poll([f"buffer_load_dword v{GB}, v{aX2}, {WS}, 0 offen offset:{X2O} sc1"], [GB])
        for x in self.unpackX_ops(GB): a(x)
        a("L_c_b3:")
        a("s_waitcnt lgkmcnt(0)\ns_barrier")
        a("s_cmp_ge_u32 s5, 30\ns_cbranch_scc1 L_k_next")
        if self.LL == 3:
            a("s_cmp_lg_u32 s54, 0\ns_cbranch_scc1 L_c_b4")
            self.w1_loads()
            a("L_c_b4:")
        if self.B3B:
            a("s_cmp_lg_u32 s54, 0\ns_cbranch_scc1 L_c_nb3b\ns_barrier")
            self.w1_loads()
            a("L_c_nb3b:")
        a("s_barrier")
        a("s_cmp_lg_u32 s54, 0\ns_cbranch_scc1 L_p4_nocs")
        if self.LL == 4 and not self.B3B: self.w1_loads()
        yl = self.rows24_loads(YO)
        self.sleep(self.YSL0)
        for x in yl: a(x)
        a("s_mov_b32 s70, 0\ns_waitcnt vmcnt(3)")
        for t in range(8): self.mfma(ACC, ONES, WB + 4 * t, t == 0)
        self.l64(ACC, CS0)
        self.local_stores([f"buffer_store_dword v{CS0}, v{aST}, {WS}, s52 offen offset:{HPC}{{f}}"])
        a("s_branch L_p4_chk")
        a("L_p4_nocs:")
        yl = self.rows24_loads(YO)
        self.sleep(self.YSL)
        self.poll(yl, range(GB, GB + 12), entry="L_p4_chk", spec=[self.mfma_s(ACC, ONES, GB + 4 * n, n == 0) for n in range(3)])
        a("s_barrier")
        if self.AMP == 2: a("s_cmp_lg_u32 s54, 0\ns_cbranch_scc1 L_amp2\ns_memrealtime s[94:95]\nL_amp2:")
        self.stamp(8)
        self.sel_layer(58, HPR, 52)
        a(f"s_mul_i32 s60, s54, 3\ns_add_u32 s60, s60, s57\ns_add_u32 s60, s60, 1\ns_mul_i32 s60, s60, {BS}\ns_add_u32 s60, s60, s53\ns_lshl_b32 s61, s56, 3\ns_add_u32 s60, s60, s61")
        self.resid_add()
        s1, s2 = T[0], T[1]
        self.gemv_bcast(ACC + 4, T[4], WB, 8, fill=self.unpackX_ops(T[4]) + self.xstats_ops(s1, s2, T[2]) + [f"v_lshrrev_b32 v{T[2]}, 3, v0", f"v_and_b32 v{T[2]}, 4, v{T[2]}"])
        self.l64(ACC + 4, T[3])
        self.local_stores([f"buffer_store_dword v{T[3]}, v{aST}, {WS}, s58 offen{{f}}", "s_mov_b64 exec, s[46:47]",
                           f"buffer_store_dword v{s1}, v{T[2]}, {WS}, s60 offen offset:{MISC}{{f}}"])
        a("s_mov_b64 exec, -1")
        self.stamp(9)
        self.dump0()
        a("s_barrier")
        a("s_cmp_lg_u32 s54, 0\ns_cbranch_scc1 L_final\ns_mov_b32 s54, 1\ns_branch L_kloop")
        a("L_k_b3:")
        if self.LL2 == 2:
            a("s_cmp_lg_u32 s54, 0\ns_cbranch_scc1 L_k_b3a\ns_cmp_lg_u32 s3, 0\ns_cbranch_scc1 L_k_b3a")
            self.w2_loads()
            a("L_k_b3a:")
        if self.CPF:
            self.code_prefetch()
        a(f"s_lshl_b32 s58, s3, 8\nv_add_u32 v{T[3]}, s58, v{lane4}\nv_mov_b32 v{T[4]}, {L_ML}")
        self.sel_layer(58, OP, 52)
        a("s_lshl_b32 s60, s3, 7\ns_add_u32 s60, s60, s58")
        a(f"s_mul_i32 s61, s7, {BS - 8}\ns_sub_u32 s61, s52, s61\ns_lshl_b32 s58, s54, 6\ns_add_u32 s61, s61, s58")
        a("s_waitcnt lgkmcnt(0)\ns_barrier")
        self.stamp(6)
        a(f"ds_read_b128 {q4(GB)}, v{T[4]}\nds_read_b128 {q4(GB+4)}, v{T[4]} offset:16")
        for w in range(4):
            a(f"ds_read_b32 v{GB+8+w}, v{T[3]} offset:{L_O + 768*w}")
        a("s_waitcnt lgkmcnt(0)")
        M = GB + 12; Lr = GB + 13
        a(f"v_max3_f32 v{M}, v{GB}, v{GB+2}, v{GB+4}\nv_max_f32 v{M}, v{M}, v{GB+6}")
        for w in range(4): a(f"v_sub_f32 v{GB+2*w}, v{GB+2*w}, v{M}")
        for w in range(4): a(f"v_exp_f32 v{GB+2*w}, v{GB+2*w}")
        a(f"v_mul_f32 v{Lr}, v{GB}, v{GB+1}\nv_mul_f32 v{T[0]}, v{GB}, v{GB+8}")
        for w in range(1, 4):
            a(f"v_fmac_f32 v{Lr}, v{GB+2*w}, v{GB+2*w+1}\nv_fmac_f32 v{T[0]}, v{GB+2*w}, v{GB+8+w}")
        a(f"v_rcp_f32 v{T[1]}, v{Lr}\nv_mul_f32 v{T[0]}, v{T[0]}, v{T[1]}")
        a(f"v_mov_b32_dpp v{T[1]}, v{T[0]} row_ror:8 {DPPALL}\nv_cvt_pk_bf16_f32 v{T[0]}, v{T[0]}, v{T[1]}")
        a("s_mov_b64 exec, s[64:65]")
        lz = self.L("z")
        self.local_stores([f"buffer_store_dword v{T[0]}, v{aP32}, {WS}, s60 offen{{f}}"])
        a(f"s_cmp_lg_u32 s3, 1\ns_cbranch_scc1 {lz}\ns_mov_b64 exec, 1")
        self.local_stores([f"buffer_store_dwordx2 v[{M}:{Lr}], v{aP32}, {WS}, s61 offen offset:{MISC}{{f}}"])
        a(f"{lz}:\ns_mov_b64 exec, -1")
        self.stamp(7)
        a("s_cmp_ge_u32 s5, 30\ns_cbranch_scc1 L_k_next")
        if self.LL2 == 3:
            a("s_cmp_lg_u32 s54, 0\ns_cbranch_scc1 L_k_b4a\ns_cmp_lg_u32 s3, 0\ns_cbranch_scc1 L_k_b4a")
            self.w2_loads()
            a("L_k_b4a:")
        if self.B3B:
            a("s_cmp_lg_u32 s54, 0\ns_cbranch_scc1 L_k_nb3b\ns_barrier\ns_cmp_lg_u32 s3, 0\ns_cbranch_scc1 L_k_nb3b")
            self.w2_loads()
            a("L_k_nb3b:")
        a("s_barrier")
        a("s_cmp_eq_u32 s3, 0\ns_cbranch_scc1 L_p5")
        a("s_cmp_lg_u32 s3, 1\ns_cbranch_scc1 L_k_b5")
        self.sel_layer(58, HPR, 52)
        a(f"v_lshlrev_b32 v{T[0]}, 7, v0\ns_mov_b64 exec, 3")
        a(f"buffer_load_dword v{GB}, v{T[0]}, {WS}, s58 offen sc1\nbuffer_load_dword v{GB+1}, v{T[0]}, {WS}, s52 offen offset:{HPC} sc1")
        a(f"buffer_load_dword v{GB+2}, v{lane4}, {WS}, s52 offen offset:{MISC} sc1\ns_mov_b64 exec, -1")
        a("L_k_b5:")
        a("s_barrier\ns_barrier")
        a("s_branch L_k_next")
        a("L_p5:")
        a(f"s_mul_i32 s62, s57, {10*BS}\ns_add_u32 s62, s62, s53")
        def hp_gather(with_stats, slp=0):
            for i in range(8, 14): a(f"v_mov_b32 v{GB+i}, 0")
            loads = [f"buffer_load_dwordx4 {q4(GB)}, v{aML}, {WS}, s58 offen sc1",
                     f"buffer_load_dwordx4 {q4(GB+4)}, v{aML}, {WS}, s60 offen sc1",
                     "s_mov_b32 exec_hi, 0",
                     f"buffer_load_dwordx4 {q4(GB+8)}, v{aML}, {WS}, s61 offen sc1"]
            if with_stats:
                loads += ["s_mov_b64 exec, s[44:45]", f"buffer_load_dwordx2 v[{GB+12}:{GB+13}], v{aXS}, {WS}, s63 offen offset:{MISC} sc1"]
            loads += ["s_mov_b64 exec, -1"]
            return loads, range(GB, GB + (14 if with_stats else 12))
        def hp_reduce_ops(dst):
            U = GB + 16
            o = [f"v_add_f32 v{U+i}, v{GB+i}, v{GB+4+i}" for i in range(4)] + [f"v_add_f32 v{U+i}, v{U+i}, v{GB+8+i}" for i in range(4)]
            o += [f"v_permlane32_swap_b32 v{U}, v{U+2}", f"v_permlane32_swap_b32 v{U+1}, v{U+3}",
                  f"v_add_f32 v{U}, v{U}, v{U+2}", f"v_add_f32 v{U+1}, v{U+1}, v{U+3}",
                  f"v_permlane16_swap_b32 v{U}, v{U+1}", f"v_add_f32 v{dst}, v{U}, v{U+1}"]
            return o
        a("s_cmp_lg_u32 s54, 0\ns_cbranch_scc1 L_p5_nocs")
        if self.LL2 == 4 and not self.B3B: self.w2_loads()
        if self.LL2 == 5:
            a(f"s_sleep {self.W2SL}")
            self.w2_loads()
        a(f"s_add_u32 s58, s62, {HPC}\ns_add_u32 s60, s58, {4*BS}\ns_add_u32 s61, s58, {8*BS}")
        a("s_barrier")
        ld_, rg_ = hp_gather(False)
        self.poll(ld_, rg_)
        for x in hp_reduce_ops(CSW1): a(x)
        a(f"v_lshlrev_b32 v{B1V}, 16, v{B1V}")
        a("s_branch L_p5_g")
        a("L_p5_nocs:")
        a("s_barrier")
        self.sleep(self.HSL)
        a("L_p5_g:")
        self.sel_layer(58, HPR, 62)
        a(f"s_add_u32 s60, s58, {4*BS}\ns_add_u32 s61, s58, {8*BS}")
        a(f"s_mul_i32 s63, s54, 3\ns_add_u32 s63, s63, s57\ns_add_u32 s63, s63, 1\ns_mul_i32 s63, s63, {BS}\ns_add_u32 s63, s63, s53")
        ld_, rg_ = hp_gather(True)
        self.poll(ld_, rg_, pipe=self.PH)
        self.stamp(8)
        s1, s2 = GB + 14, GB + 15
        H = T[0]
        c1 = self.row16_ops(s1, s2, GB + 12, GB + 13) + self.ln_ops(s1, s2, T[5])
        c2 = hp_reduce_ops(H)
        while c1 or c2:
            if c1: a(c1.pop(0))
            if c1 and len(c1) > 14 and not self.EX: a(c1.pop(0))
            if c2: a(c2.pop(0))
        self.sel_layer(58, ZO, 52)
        if self.EX:
            a(f"v_fma_f32 v{H}, -v{s1}, v{CSW1}, v{H}\nv_fma_f32 v{H}, v{H}, v{s2}, v{B1V}")
        else:
            a(f"v_fma_f32 v{H}, -v{s1}, v{CSW1}, v{H}\nv_mul_f32 v{H}, v{H}, v{s2}")
            self.bf16r(H, H)
            a(f"v_add_f32 v{H}, v{H}, v{B1V}")
            self.bf16r(H, H)
        E = T[1]; N = T[2]; Dn = T[3]
        a(f"v_mul_f32 v{E}, 0x3fb8aa3b, v{H}\nv_exp_f32 v{E}, -|v{E}|")
        a(f"v_cmp_gt_f32 vcc, 0, v{H}\nv_mov_b32 v{T[4]}, 2.0")
        a(f"v_fma_f32 v{N}, v{E}, 2.0, 1.0\nv_add_f32 v{Dn}, 2.0, v{E}\nv_mul_f32 v{Dn}, v{Dn}, v{E}")
        a(f"v_mul_f32 v{E}, v{E}, v{E}\nv_add_f32 v{E}, v{E}, v{E}")
        a(f"v_cndmask_b32 v{N}, v{N}, v{Dn}, vcc\nv_cndmask_b32 v{E}, v{E}, v{T[4]}, vcc")
        a(f"v_add_f32 v{Dn}, v{N}, v{E}\nv_rcp_f32 v{Dn}, v{Dn}\nv_mul_f32 v{N}, v{N}, v{H}\nv_mul_f32 v{N}, v{N}, v{Dn}")
        a(f"v_mov_b32_dpp v{E}, v{N} row_ror:8 {DPPALL}\nv_cvt_pk_bf16_f32 v{T[4]}, v{N}, v{E}")
        self.gemv_bcast(ACC, T[4], WB, 8)
        self.pair32(ACC, T[0], T[1])
        a(f"v_cvt_pk_bf16_f32 v{T[0]}, v{T[0]}, v{T[1]}")
        if self.G4:
            self.gather4(T[0], AB[0])
            a("s_mov_b64 exec, 0xff")
            a(f"buffer_store_dwordx4 {q4(AB[0])}, v{aP32}, {WS}, s58 offen sc1")
        else:
            a("s_mov_b64 exec, s[64:65]")
            a(f"buffer_store_dword v{T[0]}, v{aP32}, {WS}, s58 offen sc1")
        a("s_mov_b64 exec, -1")
        self.stamp(9)
        a("s_barrier")
        a("L_k_next:")
        a("s_cmp_lg_u32 s54, 0\ns_cbranch_scc1 L_final")
        self.dump_stamps()
        a("s_mov_b32 s54, 1")
        a("s_cmp_lg_u32 s3, 2\ns_cbranch_scc1 L_kloop")
        a("s_cmp_lg_u32 s2, 0\ns_cbranch_scc1 L_nogen")
        a(f"s_mov_b64 exec, 1\nv_mov_b32 v{T[0]}, s74\nv_mov_b32 v{T[1]}, {GEN_OFF}")
        a(f"buffer_store_dword v{T[0]}, v{T[1]}, {WS}, 0 offen sc1")
        a("s_mov_b64 exec, -1\nL_nogen:")
        for u in range(3):
            a(f"buffer_load_dword v{GB+4+u}, v{aQG}, {WS}, 0 offen offset:{QP1 + 128*u} sc1")
        a("s_branch L_kloop")
        a("L_final:")
        a("s_cmp_lg_u32 s3, 3\ns_cbranch_scc1 L_fin2\ns_cmp_lg_u32 s4, 0\ns_cbranch_scc1 L_fin2\ns_cmp_ge_u32 s5, 10\ns_cbranch_scc1 L_fin2")
        if self.PERT:
            import struct
            c = hex(struct.unpack('<I', struct.pack('<f', self.PERT / 1000.0))[0])
            if self.PALL: a(f"v_add_f32 v{X0}, {c}, v{X0}\nv_add_f32 v{X1}, {c}, v{X1}")
            else: a(f"s_cmp_lg_u32 s2, 0\ns_cbranch_scc1 L_npert\ns_mov_b64 exec, 1\nv_add_f32 v{X0}, {c}, v{X0}\ns_mov_b64 exec, -1\nL_npert:")
        self.zgather(1, self.FSL)
        a("s_lshl_b32 s58, s5, 7")
        a("s_mov_b64 exec, s[64:65]")
        a(f"buffer_store_dword v{T[4]}, v{aP32}, s[40:43], s58 offen{' sc1' if self.OSC else ''}")
        a("s_mov_b64 exec, -1")
        self.stamp(11)
        if self.AMP:
            a("s_cmp_lg_u32 s2, 0\ns_cbranch_scc1 L_fin2\ns_memrealtime s[96:97]\ns_waitcnt lgkmcnt(0)")
            if self.AMP == 1: a("s_mov_b32 s94, s96")
            a("s_sub_u32 s94, s94, s92\ns_min_u32 s94, s94, 20000")
            a("L_ampl:\ns_memrealtime s[98:99]\ns_waitcnt lgkmcnt(0)\ns_sub_u32 s98, s98, s96\ns_cmp_lt_u32 s98, s94\ns_cbranch_scc1 L_ampl")
        a("L_fin2:")
        self.dump_stamps()
        a("s_endpgm")

        a("L_vloop:")
        a(f"buffer_load_dword v{XA+2}, v{aQG}, {WS}, 0 offen offset:{OP[1]} sc1")
        a("s_cmp_eq_u32 s3, 7\ns_cbranch_scc1 L_v7_b1")
        a(f"v_mov_b32 v{GB}, 0\nv_mov_b32 v{GB+2}, 0\nv_mov_b32 v{GB+3}, 0\ns_add_u32 s58, s53, {7*BS}")
        self.sleep(self.XSL)
        self.poll(["s_mov_b64 exec, s[44:45]", f"buffer_load_dword v{GB}, v{aX2}, {WS}, 0 offen offset:{X2O} sc1",
                   f"buffer_load_dwordx2 v[{GB+2}:{GB+3}], v{aXS}, {WS}, s58 offen offset:{MISC} sc1", "s_mov_b64 exec, -1"], [GB, GB + 2, GB + 3], slp=self.XSLP, pipe=self.PX)
        a("s_barrier")
        self.stamp(1)
        self.qproj(GB, T[0], T[1], self.row16_ops(T[0], T[1], GB + 2, GB + 3))
        if self.Q4:
            self.gather4(T[4], AB[0])
            a("s_mov_b64 exec, 0xff")
            self.local_stores([f"buffer_store_dwordx4 {q4(AB[0])}, v{aST}, {WS}, 0 offen offset:{QP1}{{f}}"])
        else:
            a("s_mov_b64 exec, s[64:65]")
            self.local_stores([f"buffer_store_dword v{T[4]}, v{aST}, {WS}, 0 offen offset:{QP1}{{f}}"])
        a("s_mov_b64 exec, -1")
        self.stamp(3)
        a("s_branch L_v_b2")
        a("L_v7_b1:")
        a("s_barrier")
        a("L_v_b2:")
        a(f"s_and_b32 s58, s3, 3\ns_mul_i32 s58, s58, 768\nv_add_u32 v{T[3]}, s58, v{lane4}")
        a("s_cmp_eq_u32 s54, 0\ns_cbranch_scc1 L_v_b2a\ns_waitcnt vmcnt(0)\nL_v_b2a:")
        a("s_barrier")
        self.stamp(5)
        a(f"ds_read_b128 {q4(GB)}, v{ldsP}\nds_read_b128 {q4(GB+4)}, v{ldsP} offset:16")
        a("s_cmp_lg_u32 s54, 0\ns_cbranch_scc1 L_v_nowo")
        if self.WOE: self.wo_part(self.WOE, 8)
        else: self.wo_loads(self.WS[0])
        a("L_v_nowo:")
        a("s_waitcnt lgkmcnt(0)")
        self.al()
        self.build_A(AB[0], GB)
        for G in range(8):
            nwo = self.WS[0] + (self.WS[1] if G >= 6 else 0) + (self.WS[2] if G >= 7 else 0)
            if G == 6 and self.WS[1]: self.wo_part(self.WS[0], self.WS[0] + self.WS[1])
            if G == 7 and self.WS[2]: self.wo_part(self.WS[0] + self.WS[1], self.WS[0] + self.WS[1] + self.WS[2])
            a(f"s_waitcnt vmcnt({nwo + 21 - 3*G})")
            for th in range(3):
                self.mfma(ACC + 4 * th, AB[G & 1], KV + (G * 3 + th) * 4, G == 0)
                if G + 1 < 8 and th < 2:
                    for d in (2 * th, 2 * th + 1):
                        a(f"v_perm_b32 v{AB[(G+1)&1]+d}, v{GB+G+1}, v{GB+G+1}, v{SEL+d}")
        for th in range(3):
            self.l64(ACC + 4 * th, T[th])
            a(f"ds_write_b32 v{T[3]}, v{T[th]} offset:{L_O + 256*th}")
        self.sel_layer(58, OP)
        a("s_lshl_b32 s60, s54, 6")
        a("s_waitcnt lgkmcnt(0)\ns_barrier")
        self.stamp(6)
        if sum(self.WS) < 8: self.wo_part(sum(self.WS), 8)
        a("s_cmp_ge_u32 s5, 30\ns_cbranch_scc1 L_v_next")
        self.sleep(self.OSL)
        self.poll([f"buffer_load_dwordx4 {q4(GB)}, v{aQG}, {WS}, s58 offen sc1",
                   f"buffer_load_dwordx2 v[{GB+4}:{GB+5}], v{aML}, {WS}, s60 offen offset:{MISC} sc1"], range(GB, GB + 6),
                  spec=[f"v_max_f32_dpp v{T[0]}, v{GB+4}, v{GB+4} {Q1} {DPPALL}", f"v_max_f32_dpp v{T[0]}, v{T[0]}, v{T[0]} {Q2} {DPPALL}", f"v_max_f32_dpp v{T[0]}, v{T[0]}, v{T[0]} {HM} {DPPALL}"], pipe=self.PO)
        if self.B3B: a("s_cmp_lg_u32 s54, 0\ns_cbranch_scc1 L_v_nb3b\ns_barrier\nL_v_nb3b:")
        self.stamp(8)
        M = T[0]; W = T[1]
        a(f"v_sub_f32 v{W}, v{GB+4}, v{M}\nv_exp_f32 v{W}, v{W}\nv_mul_f32 v{W}, v{W}, v{GB+5}")
        a(f"v_mov_b32_dpp v{T[2]}, v{W} row_newbcast:0 {DPPALL}\nv_mov_b32_dpp v{T[3]}, v{W} row_newbcast:1 {DPPALL}")
        a(f"v_cvt_pk_bf16_f32 v{T[2]}, v{T[2]}, v{T[3]}")
        self.build_A(AB[0], T[2])
        self.bf16r(W, W)
        self.mfma(ACC, AB[0], GB, True)
        for c in (Q1, Q2, HM):
            a(f"v_add_f32_dpp v{W}, v{W}, v{W} {c} {DPPALL}")
        a(f"v_rcp_f32 v{W}, v{W}")
        self.pair32(ACC, T[2], T[3])
        a(f"v_mul_f32 v{T[2]}, v{T[2]}, v{W}\nv_mul_f32 v{T[3]}, v{T[3]}, v{W}\nv_cvt_pk_bf16_f32 v{T[4]}, v{T[2]}, v{T[3]}")
        self.gemv_bcast(ACC + 4, T[4], WB, 8)
        a(f"s_and_b32 s58, s3, 3\ns_lshl_b32 s58, s58, 8\nv_add_u32 v{T[3]}, s58, v{lane4}")
        self.l64(ACC + 4, T[0])
        a(f"ds_write_b32 v{T[3]}, v{T[0]} offset:{L_YR}")
        self.sel_layer(58, YO, 52)
        a("s_waitcnt vmcnt(0) lgkmcnt(0)\ns_barrier")
        a("s_cmp_lg_u32 s3, 7\ns_cbranch_scc1 L_v_b5")
        for w in range(4): a(f"ds_read_b32 v{GB+w}, v{lane4} offset:{L_YR + 256*w}")
        a("s_waitcnt lgkmcnt(0)")
        a(f"v_add_f32 v{GB}, v{GB}, v{GB+1}\nv_add_f32 v{GB+2}, v{GB+2}, v{GB+3}\nv_add_f32 v{T[0]}, v{GB}, v{GB+2}")
        a(f"v_mov_b32_dpp v{T[1]}, v{T[0]} row_ror:8 {DPPALL}\nv_cvt_pk_bf16_f32 v{T[0]}, v{T[0]}, v{T[1]}")
        if self.G4:
            self.gather4(T[0], AB[0])
            a("s_mov_b64 exec, 0xff")
            a(f"buffer_store_dwordx4 {q4(AB[0])}, v{aP32}, {WS}, s58 offen sc1")
        else:
            a("s_mov_b64 exec, s[64:65]")
            a(f"buffer_store_dword v{T[0]}, v{aP32}, {WS}, s58 offen sc1")
        a("s_mov_b64 exec, -1")
        self.stamp(9)
        a("L_v_b5:")
        a("s_cmp_lg_u32 s54, 0\ns_cbranch_scc1 L_v_b5b")
        self.v_fetch_wq()
        self.dump_stamps()
        a("L_v_b5b:")
        a("s_barrier\ns_barrier")
        a("s_cmp_lg_u32 s54, 0\ns_cbranch_scc1 L_fin2")
        a("s_mov_b32 s54, 1\ns_branch L_vloop")
        a("L_v_next:")
        a("s_cmp_lg_u32 s54, 0\ns_cbranch_scc1 L_fin2")
        self.v_fetch_wq()
        self.dump_stamps()
        a("s_mov_b32 s54, 1\ns_sleep 48\ns_branch L_vloop")
        self.flush_ool()
        a("L_end:\ns_endpgm")
        a('.section .rodata,"a"\n.p2align 6')
        a(f".amdhsa_kernel {KNAME}")
        a(".amdhsa_next_free_vgpr 256\n.amdhsa_next_free_sgpr 102\n.amdhsa_accum_offset 256\n.amdhsa_group_segment_fixed_size 0\n.amdhsa_kernarg_size 96")
        a(".amdhsa_user_sgpr_count 2\n.amdhsa_user_sgpr_kernarg_segment_ptr 1\n.amdhsa_system_sgpr_workgroup_id_x 1\n.end_amdhsa_kernel")
        return a.render()

    def code_prefetch(self):
        a = self.a
        le = self.L("cpf")
        a(f"s_cmp_lg_u32 s3, 1\ns_cbranch_scc1 {le}\ns_cmp_lg_u32 s54, 0\ns_cbranch_scc1 {le}")
        a("s_getpc_b64 s[72:73]")
        a("L_pcref:")
        a(f"s_sub_u32 s72, s72, L_pcref-{KNAME}\ns_subb_u32 s73, s73, 0")
        a(f"v_lshlrev_b32 v{T[0]}, 5, v0\nv_add_u32 v{T[0]}, s5, v{T[0]}\nv_lshlrev_b32 v{T[0]}, 7, v{T[0]}")
        a(f"v_mov_b32 v{T[1]}, L_end-{KNAME}\nv_cmp_lt_u32 vcc, v{T[0]}, v{T[1]}\ns_and_b64 exec, vcc, exec")
        a(f"global_load_dword v{XA+5}, v{T[0]}, s[72:73] sc1")
        a("s_mov_b64 exec, -1")
        a(f"{le}:")

    def srd(self, *regs):
        for s in regs:
            self.a(f"s_mov_b32 s{s+2}, {self.size[s]}\ns_mov_b32 s{s+3}, 0x20000")
    def blk_setup(self):
        a = self.a
        a(f"s_mul_i32 s53, s4, {32*BS}\ns_mul_i32 s52, s5, {BS}\ns_add_u32 s52, s52, s53")
        a("s_cmp_ge_u32 s5, 10\ns_cselect_b32 s57, 1, 0\ns_cmp_ge_u32 s5, 20\ns_cselect_b32 s57, 2, s57\ns_cmp_ge_u32 s5, 30\ns_cselect_b32 s57, 3, s57")
        a("s_mul_i32 s56, s57, 10\ns_sub_u32 s56, s5, s56")
        a(f"v_lshlrev_b32 v{aP32}, 4, v1\nv_lshl_add_u32 v{aP32}, v3, 2, v{aP32}")
    def rest_setup(self, done, blk=True):
        a = self.a
        self.srd(*[r for r in (8, 12, 16, 20, 24, 28, 32, 36, 40, 48) if r not in done])
        if blk: self.blk_setup()
        a("s_mov_b32 s54, 0\ns_mov_b32 s55, 0")
        a("s_getreg_b32 s75, hwreg(HW_REG_XCC_ID)\ns_and_b32 s75, s75, 15")
        a("s_mov_b32 s64, 0x00ff00ff\ns_mov_b32 s65, 0x00ff00ff")
        a("s_mov_b32 s66, 0xaaaaaaaa\ns_mov_b32 s67, 0xaaaaaaaa\ns_mov_b32 s68, 0xcccccccc\ns_mov_b32 s69, 0xcccccccc")
        a("s_mov_b32 s44, 0x03ff03ff\ns_mov_b32 s45, 0x03ff03ff\ns_mov_b32 s46, 1\ns_mov_b32 s47, 1")
    def c_head(self):
        a = self.a
        a("L_pro_c:")
        self.srd(8, 48)
        self.blk_setup()
        a(f"v_mov_b32 v{T[0]}, 0")
        a("s_mov_b64 exec, 0xffff")
        a(f"ds_write_b32 v{lane4}, v{T[0]} offset:{L_CTRL}")
        a("s_mov_b64 exec, -1\ns_waitcnt lgkmcnt(0)")
        if self.B0E: a("s_barrier")
        if "noclr" not in self.knobs: self.clears(False)
        a(f"s_lshl_b32 s58, s56, 7\nbuffer_load_dword v{GB+4}, v{aP32}, s[8:11], s58 offen")
        if not self.B0E: a("s_barrier")

    def v_prologue(self):
        a = self.a
        self.srd(12, 16)
        a("s_lshl_b32 s58, s4, 2\ns_add_u32 s58, s58, s6\ns_mul_i32 s59, s58, 3145728")
        a("s_lshl_b32 s58, s7, 8\ns_and_b32 s60, s3, 3\ns_lshl_b32 s60, s60, 6\ns_add_u32 s58, s58, s60\ns_add_u32 s58, s58, 6144\ns_mul_i32 s58, s58, 384\ns_add_u32 s59, s59, s58")
        if "dbl" in self.knobs:
            a(f"v_mul_u32_u24 v{T[0]}, 384, v2\nv_lshl_add_u32 v{T[0]}, v1, 4, v{T[0]}\ns_sub_u32 s61, s59, {6144*384}")
            for srd in ("s[12:15]", "s[16:19]"):
                for n in range(24):
                    rg, th = divmod(n, 3)
                    if th == 0: a(f"s_add_u32 s58, s61, {rg*8*384}")
                    a(f"buffer_load_dwordx4 {q4(KV+4*n)}, v{T[0]}, {srd}, s58 offen offset:{th*128} nt")
            a("s_waitcnt vmcnt(12)")
        self.k_dma()
        for n in range(24):
            rg, th = divmod(n, 3)
            if n == self.NB:
                a(f"s_lshl_b32 s60, s3, 2\nv_mov_b32 v{T[2]}, s60\nv_mov_b32 v{T[3]}, 1")
                a(f"s_waitcnt vmcnt({self.NB})\nds_write_b32 v{T[2]}, v{T[3]} offset:{L_CTRL}")
                self.stamp(11)
            if th == 0: a(f"s_add_u32 s58, s59, {rg*8*384}")
            a(f"buffer_load_dwordx4 {q4(KV+4*n)}, v{T[4]}, s[16:19], s58 offen offset:{th*128} nt")
        self.stamp(1)
        self.rest_setup((12, 16))
        if self.knobs & {"lo1", "lo2", "lo3"}:
            if "wo" in self.knobs:
                self.wo_loads()
                a("s_waitcnt vmcnt(8)")
                self.stamp(5)
            a("s_waitcnt vmcnt(0)")
            self.stamp(6)
            a("s_branch L_fin2")
        if self.WOE: self.wo_loads(self.WOE)
        if self.PRI == 1: a("s_setprio 1")
        self.consts()
        self.vwave_addrs()
        a("s_branch L_v_b2")

    def v_fetch_wq(self):
        a = self.a
        a(f"s_and_b32 s58, s3, 3\ns_min_u32 s58, s58, 2\ns_mul_i32 s58, s58, 10752\ns_add_u32 s58, s58, {L_WQ}\nv_lshlrev_b32 v{T[0]}, 4, v0\nv_add_u32 v{T[0]}, s58, v{T[0]}")
        for t in range(10):
            a(f"ds_read_b128 {q4(WA+4*t)}, v{T[0]} offset:{1024*t}")
        a(f"v_add_u32 v{T[1]}, s58, v{lane4}\nds_read_b32 v{CS0}, v{T[1]} offset:10240\nds_read_b32 v{CS1}, v{T[1]} offset:10496")
        self.read_fast()
        a(f"s_add_u32 s58, s53, {7*BS}\nbuffer_load_dword v{XA+3}, v{aX2}, {WS}, 0 offen offset:{X2O} sc1\nbuffer_load_dword v{XA+4}, v{aXS}, {WS}, s58 offen offset:{MISC} sc1")

    def zgather(self, layer, slp):
        a = self.a
        a(f"s_mul_i32 s58, s56, {BS}\ns_add_u32 s60, s58, {10*BS}\ns_add_u32 s61, s58, {20*BS}")
        self.sleep(slp)
        self.poll([f"buffer_load_dwordx4 {q4(GB+4*n)}, v{aROW}, {WS}, s{(58,60,61)[n]} offen offset:{ZO[layer]} sc1" for n in range(3)], range(GB, GB + 12),
                  spec=[self.mfma_s(ACC, ONES, GB + 4 * n, n == 0) for n in range(3)], pipe=self.PZ)
        self.stamp(10 if layer else 1)
        self.resid_add()

REF = "interleave_layers__sliding_block_cached__dense_activation_mish__decode.s.ref"
HEADER = open(REF).read().split("; Override")[0] if os.path.exists(REF) else ""

if __name__ == "__main__":
    prof = {"prof": 1, "lite": 3}.get(sys.argv[2], 0) if len(sys.argv) > 2 else 0
    open(sys.argv[1], "w").write(HEADER + Gen(prof, sys.argv[3:]).gen())
```

```python
import sys, os
sys.path.insert(0, "gen")
from asmlib import Asm

KNAME = "interleave_layers__sliding_block_cached__dense_activation_mish__decode_kernel"
BS = 4736
YO = [0, 128]; ZO = [256, 384]
QP1 = 512
OP = [896, 1280]
MISC = 1664
HPR = [1792, 2048]; HPC = 2304
X2O = 2560
CLR_END = 2816
QP0T = 3072
GEN_OFF = 256 * BS
FL1 = GEN_OFF + 4096; FL2 = GEN_OFF + 8192
WS_USED = GEN_OFF + 12288
PROF_OFF = 2 << 20
L_CTRL = 0
L_ML = 128
L_P = 256
L_O = 1024
L_YR = 4096
L_Q = 5120
L_K = 8192
L_WQ = L_K + 98304
LDS_BYTES = L_WQ + 3 * 10752
POLL_LIMIT = 200000
ONES = 4; SEL = 8; AB = [12, 16]; ACC = 20; GB = 36; XA = 60
aQG = 70; aP32 = 71; aROW = 72; aML = 73; aST = 74; ldsP = 75; lane4 = 76
CS0 = 77; CS1 = 78; X0 = 79; X1 = 80; B1V = 81; CSW1 = 82
T = [83, 84, 85, 86, 87, 1, 2, 3]
aX2 = 68; aXS = 69
KV = 88; WA = 184; WB = 224
WS = "s[48:51]"

DOC = """
Persistent fused kernel (generated by the author's own script): 256 workgroups x 8 waves, one per CU.
K, V and all weight slices are read from HBM once and stay in registers / LDS for both layer passes.
 wg = 8*m + xg : xg = group (expected XCD), head = 4*xg + m/8, key chunk = m%8 (256 keys).
 waves 0-3 ("K"): QK + softmax, partial combine, w1 / w2 GEMVs ; waves 4-7 ("V"): streaming, PV, wo and wq GEMVs.
GEMVs over [k][n] weights use v_mfma_f32_16x16x32_bf16 with a selector A operand (one non-zero per row).
LayerNorm is applied after the GEMV by linearity (rstd * (x.W - mean * colsum(W))).
Hand-offs go through d_ws: slots are cleared to 0xFFFFFFFF at kernel start and polled dword by dword;
a launch-unique tag (derived from one word of d_ws) validates the start-up flags and the first q exchange.
Group-local hand-offs use plain stores only if every member reported the same XCC id, else write-through stores.
Every poll loop is bounded.
"""

def q4(r): return f"v[{r}:{r+3}]"
DPPALL = "row_mask:0xf bank_mask:0xf"
Q1 = "quad_perm:[1,0,3,2]"; Q2 = "quad_perm:[2,3,0,1]"; HM = "row_half_mirror"; RM = "row_mirror"

class Gen:
    def __init__(self, prof=0, knobs=()):
        self.knobs = set(knobs)
        self.LL = 4; self.LL2 = 4; self.W2SL = 16; self.EX = 1; self.PERT = 0; self.PALL = 0; self.PRI = 0; self.WOE = 0; self.WSP = 800; self.AMP = 0; self.B0IT = 0; self.B3B = 1; self.Q4 = 0; self.G4 = 0; self.PQ = 0; self.PO = 1; self.PX = 0; self.PH = 1; self.PZ = 0; self.PGAP = 12; self.TR = 1; self.XSLP = 0; self.Q1ST = 1; self.QPW = 0; self.FLSL = 127; self.QFB = 5; self.CPF0 = 1; self.B0E = 0; self.B0N = 0; self.OSC = 0; self.AL = 1; self.ALP = 3; self.SHIFT = 0; self.CPF = 0; self.NB = 8; self.QSLEEP0 = 56; self.QSLEEP1 = 24
        self.QSL = 12; self.OSL = 8; self.YSL0 = 16; self.YSL = 15; self.HSL = 10; self.ZSL = 11; self.XSL = 26; self.FSL = 8
        for k in knobs:
            if '=' in k: setattr(self, k.split('=')[0], int(k.split('=')[1]))
        self.WS = [self.WSP // 100, self.WSP // 10 % 10, self.WSP % 10]
        self.a = Asm(); self.prof = prof; self.uid = 0; self.ool = []
    def L(self, base):
        self.uid += 1
        return f"L_{base}_{self.uid}"
    def stamp(self, i):
        if self.prof == 3 and i not in (0, 6, 11): return
        if self.prof: self.a(f"s_memrealtime s[{76+2*i}:{77+2*i}]")
    def al(self, n=3):
        if self.AL: self.a(f".p2align {n}")
    def sleep(self, n):
        if n: self.a(f"s_sleep {n}")
    def dump_stamps(self):
        if not self.prof: return
        a = self.a
        a("s_waitcnt lgkmcnt(0)")
        a(f"v_mov_b32 v{T[0]}, 0")
        for i in range(13):
            a(f"v_writelane_b32 v{T[0]}, s{76+2*i}, {i}")
        a("s_lshl_b32 s58, s2, 3\ns_add_u32 s58, s58, s3\ns_lshl_b32 s58, s58, 1\ns_add_u32 s58, s58, s54\ns_lshl_b32 s58, s58, 6")
        a(f"s_add_u32 s58, s58, {PROF_OFF}")
        a("s_mov_b64 exec, 0xffff")
        a(f"buffer_store_dword v{T[0]}, v{lane4}, {WS}, s58 offen")
        a("s_mov_b64 exec, -1")
        for i in range(13):
            a(f"s_mov_b64 s[{76+2*i}:{77+2*i}], 0")
    def dump0(self):
        if not self.prof: return
        l = self.L("nd")
        self.a(f"s_cmp_lg_u32 s54, 0\ns_cbranch_scc1 {l}")
        self.dump_stamps()
        self.a(f"{l}:")
    def local_stores(self, lines):
        a = self.a
        ls, ld = self.L("sl"), self.L("sd")
        a(f"s_cmp_eq_u32 s55, 0\ns_cbranch_scc1 {ls}")
        for x in lines: a(x.replace("{f}", ""))
        a(f"{ld}:")
        self.ool.append([f"{ls}:", "s_nop 7"] + [x.replace("{f}", " sc1") for x in lines] + ["s_nop 1", f"s_branch {ld}"])
    def poll(self, loads, regs, entry=None, slp=0, spec=(), pipe=0):
        a = self.a
        lp, lr, ld = self.L("poll"), self.L("retry"), self.L("got")
        a("s_mov_b32 s70, 0")
        nld = sum(1 for x in loads if x.startswith("buffer_"))
        post = []
        if pipe:
            for _ in range(pipe):
                for x in loads: a(x)
                a(f"s_nop {self.PGAP}\ns_nop {self.PGAP}")
            post = list(spec); spec = ()
        a(f"{lp}:")
        for x in loads: a(x)
        if self.TR and not slp:
            a(f"s_add_u32 s70, s70, 1\ns_cmp_lt_u32 s70, {POLL_LIMIT}\ns_cbranch_scc0 {lr}")
        if entry: a(f"{entry}:")
        self.al(self.ALP)
        a(f"s_nop 0\ns_waitcnt vmcnt({nld * pipe})")
        t = T[7]
        rs = list(regs)
        chk = []
        if len(rs) == 1:
            chk.append(f"v_cmp_eq_u32 vcc, -1, v{rs[0]}")
        else:
            if len(rs) == 2:
                chk.append(f"v_max_u32 v{t}, v{rs[0]}, v{rs[1]}"); rs = []
            else:
                chk.append(f"v_max3_u32 v{t}, v{rs[0]}, v{rs[1]}, v{rs[2]}"); rs = rs[3:]
            while rs:
                if len(rs) >= 2:
                    chk.append(f"v_max3_u32 v{t}, v{t}, v{rs[0]}, v{rs[1]}"); rs = rs[2:]
                else:
                    chk.append(f"v_max_u32 v{t}, v{t}, v{rs[0]}"); rs = rs[1:]
            chk.append(f"v_cmp_eq_u32 vcc, -1, v{t}")
        spec = list(spec)
        while spec or chk:
            if spec: a(spec.pop(0))
            for _ in range(2):
                if chk: a(chk.pop(0))
        if self.TR and not slp:
            a(f"s_cbranch_vccnz {lp}")
            a(f"{ld}:")
            for x in post: a(x)
            self.ool.append([f"{lr}:", "s_waitcnt vmcnt(0)", f"s_branch {ld}"])
            return
        a(f"s_cbranch_vccnz {lr}")
        a(f"{ld}:")
        self.ool.append([f"{lr}:", f"s_sleep {slp}" if slp else "s_nop 7", f"s_add_u32 s70, s70, 1", f"s_cmp_lt_u32 s70, {POLL_LIMIT}", f"s_cbranch_scc1 {lp}", f"s_branch {ld}"])
    def mfma_s(self, D, A, B, first):
        return f"v_mfma_f32_16x16x32_bf16 {q4(D)}, {q4(A)}, {q4(B)}, {'0' if first else q4(D)}"
    def flush_ool(self):
        for blk in self.ool:
            for x in blk: self.a(x)
        self.ool = []
    def build_A(self, dst, src):
        for d in range(4):
            self.a(f"v_perm_b32 v{dst+d}, v{src}, v{src}, v{SEL+d}")
    def mfma(self, D, A, B, first):
        self.a(f"v_mfma_f32_16x16x32_bf16 {q4(D)}, {q4(A)}, {q4(B)}, {'0' if first else q4(D)}")
    def pair32(self, D, t0, t1):
        self.a(f"v_add_f32_dpp v{t0}, v{D+1}, v{D} row_ror:8 {DPPALL}")
        self.a(f"v_add_f32_dpp v{t1}, v{D+3}, v{D+2} row_ror:8 {DPPALL}")
    def l64(self, D, t):
        self.a(f"v_add_f32_dpp v{t}, v{D+1}, v{D} row_ror:8 row_mask:0xf bank_mask:0x3")
        self.a(f"v_add_f32_dpp v{t}, v{D+2}, v{D+3} row_ror:8 row_mask:0xf bank_mask:0xc")
    def gemv_bcast(self, D, pair, W, n, fill=()):
        a = self.a
        fill = list(fill)
        tb = [T[5], T[6]]
        self.al()
        a(f"v_mov_b32_dpp v{tb[0]}, v{pair} row_newbcast:0 {DPPALL}")
        for t in range(n):
            if t + 1 < n:
                a(f"v_mov_b32_dpp v{tb[(t+1)&1]}, v{pair} row_newbcast:{t+1} {DPPALL}")
            self.build_A(AB[t & 1], tb[t & 1])
            if t > 0: self.mfma(D, AB[(t-1) & 1], W + 4 * (t-1), t == 1)
            for _ in range(2):
                if fill: a(fill.pop(0))
        self.mfma(D, AB[(n-1) & 1], W + 4 * (n-1), n == 1)
        for x in fill: a(x)
    def bf16r_ops(self, dst, src):
        return [f"v_cvt_pk_bf16_f32 v{dst}, v{src}, v{src}", f"v_lshlrev_b32 v{dst}, 16, v{dst}"]
    def bf16r(self, dst, src):
        for x in self.bf16r_ops(dst, src): self.a(x)
    def ln_ops(self, s1, s2, t):
        inv = "0x3acccccd"
        if self.EX:
            return [f"v_mul_f32 v{s1}, {inv}, v{s1}", f"v_mul_f32 v{s2}, {inv}, v{s2}", f"v_fma_f32 v{s2}, -v{s1}, v{s1}, v{s2}",
                    f"v_max_f32 v{s2}, 0, v{s2}", f"v_add_f32 v{s2}, 0x3727c5ac, v{s2}", f"v_rsq_f32 v{s2}, v{s2}"]
        return [f"v_mul_f32 v{s1}, {inv}, v{s1}", f"v_mul_f32 v{s2}, {inv}, v{s2}", f"v_fma_f32 v{s2}, -v{s1}, v{s1}, v{s2}",
                f"v_max_f32 v{s2}, 0, v{s2}", f"v_cvt_pk_bf16_f32 v{t}, v{s1}, v{s2}", f"v_lshlrev_b32 v{s1}, 16, v{t}",
                f"v_and_b32 v{s2}, 0xffff0000, v{t}", f"v_add_f32 v{s2}, 0x3727c5ac, v{s2}"] + self.bf16r_ops(s2, s2) + \
               [f"v_sqrt_f32 v{s2}, v{s2}"] + self.bf16r_ops(s2, s2) + [f"v_rcp_f32 v{s2}, v{s2}"]
    def red2_ops(self, s1, s2, steps, tmp):
        return [f"v_permlane32_swap_b32 v{s1}, v{s2}", f"v_add_f32 v{s1}, v{s1}, v{s2}", f"v_mov_b32 v{tmp}, v{s1}",
                f"v_permlane16_swap_b32 v{s1}, v{tmp}", f"v_add_f32 v{s1}, v{s1}, v{tmp}"] + \
               [f"v_add_f32_dpp v{s1}, v{s1}, v{s1} {c} {DPPALL}" for c in steps]
    def row16_ops(self, s1, s2, i1=None, i2=None):
        out = []
        for c in (Q1, Q2, HM, RM):
            a1 = i1 if (c == Q1 and i1 is not None) else s1
            a2 = i2 if (c == Q1 and i2 is not None) else s2
            out += [f"v_add_f32_dpp v{s1}, v{a1}, v{a1} {c} {DPPALL}", f"v_add_f32_dpp v{s2}, v{a2}, v{a2} {c} {DPPALL}"]
        return out
    def allred64(self, op, v, tmp):
        a = self.a
        for c in (Q1, Q2, HM, RM):
            a(f"{op}_dpp v{v}, v{v}, v{v} {c} {DPPALL}")
        a(f"v_mov_b32 v{tmp}, v{v}\nv_permlane16_swap_b32 v{v}, v{tmp}\n{op} v{v}, v{v}, v{tmp}")
        a(f"v_mov_b32 v{tmp}, v{v}\nv_permlane32_swap_b32 v{v}, v{tmp}\n{op} v{v}, v{v}, v{tmp}")
    def sel_layer(self, dst, arr, add=None):
        a = self.a
        a(f"s_mul_i32 s{dst}, s54, {arr[1]-arr[0]}")
        if arr[0]: a(f"s_add_u32 s{dst}, s{dst}, {arr[0]}")
        if add is not None: a(f"s_add_u32 s{dst}, s{dst}, s{add}")
    def lds_wait_flag(self, off, val=None, fb=0):
        a = self.a
        lp, ld = self.L("lw"), self.L("lg")
        t = T[5]; t2 = T[6]
        a(f"v_mov_b32 v{t2}, {off}\ns_mov_b32 s70, 0")
        a(f"{lp}:\nds_read_b32 v{t}, v{t2}\ns_waitcnt lgkmcnt(0)\nv_readfirstlane_b32 s58, v{t}")
        a(f"s_cmp_lg_u32 s58, 0\ns_cbranch_scc1 {ld}" if val is None else f"s_cmp_eq_u32 s58, {val}\ns_cbranch_scc1 {ld}")
        a("s_sleep 1\ns_add_u32 s70, s70, 1")
        if fb: self.q_fallback(fb)
        a(f"s_cmp_lt_u32 s70, {4*POLL_LIMIT}\ns_cbranch_scc1 {lp}")
        a(f"{ld}:")
    def q_fallback(self, thresh):
        a = self.a
        QD = XA + 6
        le = self.L("qfb")
        a(f"s_cmp_lt_u32 s70, {thresh}\ns_cbranch_scc1 {le}\ns_cmp_lg_u32 s71, 0\ns_cbranch_scc1 {le}\ns_cmp_eq_u32 s3, 3\ns_cbranch_scc1 {le}")
        a("s_mov_b32 s71, 1\ns_mov_b64 exec, s[64:65]")
        a(f"buffer_store_dwordx2 v[{QD}:{QD+1}], v{X0}, {WS}, s63 offen offset:{QP0T} sc1")
        a(f"s_mov_b64 exec, -1\ns_waitcnt vmcnt(0)\n{le}:")
    def read_fast(self):
        self.a(f"v_mov_b32 v{T[2]}, {L_CTRL+4}\nds_read_b32 v{T[2]}, v{T[2]}\ns_waitcnt lgkmcnt(0)\nv_readfirstlane_b32 s55, v{T[2]}\ns_lshr_b32 s55, s55, 1")
    def make_tag(self):
        self.a("s_waitcnt lgkmcnt(0)\ns_mul_i32 s74, s74, 1664525\ns_add_u32 s74, s74, 1013904223")
    def resid_add(self):
        a = self.a
        self.pair32(ACC, T[2], T[3])
        if not self.EX:
            a(f"v_cvt_pk_bf16_f32 v{T[4]}, v{T[2]}, v{T[3]}")
            a(f"v_lshlrev_b32 v{T[2]}, 16, v{T[4]}\nv_and_b32 v{T[3]}, 0xffff0000, v{T[4]}")
        a(f"v_add_f32 v{T[2]}, v{T[2]}, v{X0}\nv_add_f32 v{T[3]}, v{T[3]}, v{X1}")
        a(f"v_cvt_pk_bf16_f32 v{T[4]}, v{T[2]}, v{T[3]}")
    def gather4(self, src, Q):
        a = self.a
        a(f"v_mov_b32 v{Q}, v{src}\nv_mov_b32 v{Q+1}, v{src}")
        a(f"v_permlane16_swap_b32 v{Q}, v{Q+1}")
        a(f"v_mov_b32 v{Q+2}, v{Q}\nv_mov_b32 v{Q+3}, v{Q+1}")
        a(f"v_permlane32_swap_b32 v{Q}, v{Q+2}\nv_permlane32_swap_b32 v{Q+1}, v{Q+3}")
    def unpackX_ops(self, src):
        return [f"v_lshlrev_b32 v{X0}, 16, v{src}", f"v_and_b32 v{X1}, 0xffff0000, v{src}"]
    def xstats_ops(self, s1, s2, tmp):
        return [f"v_add_f32 v{s1}, v{X0}, v{X1}", f"v_mul_f32 v{s2}, v{X0}, v{X0}", f"v_fmac_f32 v{s2}, v{X1}, v{X1}"] + self.red2_ops(s1, s2, (Q1, Q2, HM), tmp)
    def rows24_loads(self, off_arr):
        a = self.a
        self.sel_layer(58, off_arr)
        a(f"s_mul_i32 s60, s56, {BS}\ns_add_u32 s58, s58, s60\ns_add_u32 s60, s58, {10*BS}\ns_add_u32 s61, s58, {20*BS}")
        return [f"buffer_load_dwordx4 {q4(GB+4*n)}, v{aROW}, {WS}, s{(58,60,61)[n]} offen sc1" for n in range(3)]
    def consts(self):
        a = self.a
        t0, t1, t2 = T[0], T[1], T[2]
        a(f"v_and_b32 v{t0}, 1, v0\nv_mul_u32_u24 v{t0}, 0x202, v{t0}\nv_add_u32 v{t0}, 0x100, v{t0}")
        a(f"v_bfe_u32 v{t1}, v0, 1, 1\nv_lshlrev_b32 v{t1}, 4, v{t1}\nv_lshlrev_b32 v{t0}, v{t1}, v{t0}")
        a(f"v_mov_b32 v{t2}, 0x0c0c0000\nv_lshrrev_b32 v{t2}, v{t1}, v{t2}\nv_or_b32 v{t0}, v{t0}, v{t2}")
        a(f"v_bfe_u32 v{t1}, v0, 2, 2\nv_mov_b32 v{t2}, 0x0c0c0c0c")
        for d in range(4):
            a(f"v_cmp_eq_u32 vcc, {d}, v{t1}\nv_cndmask_b32 v{SEL+d}, v{t2}, v{t0}, vcc")
        a(f"v_mov_b32 v{t0}, 0x3f803f80")
        self.build_A(ONES, t0)
    def kwave_addrs(self):
        a = self.a
        t0, t1, t2 = T[0], T[1], T[2]
        a(f"v_lshrrev_b32 v{t0}, 3, v0\nv_and_b32 v{t1}, 7, v0\ns_mov_b32 s58, {32*BS}\nv_mul_lo_u32 v{aROW}, s58, v{t0}\nv_lshl_add_u32 v{aROW}, v{t1}, 4, v{aROW}")
        a(f"v_mul_u32_u24 v{aX2}, {BS}, v{t1}\nv_lshrrev_b32 v{t1}, 4, v0\nv_lshl_add_u32 v{aX2}, v{t1}, 6, v{aX2}")
        a(f"s_lshl_b32 s58, s56, 2\ns_add_u32 s58, s58, s53\nv_add_u32 v{aX2}, s58, v{aX2}")
        a(f"v_bfe_u32 v{t0}, v0, 3, 1\nv_lshl_add_u32 v{t0}, v{t0}, 2, v{t1}\nv_mul_u32_u24 v{aQG}, {BS}, v{t0}")
        a(f"v_and_b32 v{t0}, 7, v0\nv_lshl_add_u32 v{aQG}, v{t0}, 4, v{aQG}")
        a(f"s_mul_i32 s58, s6, {8*BS}\ns_add_u32 s58, s58, s53\nv_add_u32 v{aQG}, s58, v{aQG}")
        a(f"v_and_b32 v{t0}, 3, v0\nv_lshlrev_b32 v{t0}, 4, v{t0}\nv_lshl_add_u32 v{t0}, v{t1}, 2, v{t0}\nv_bfe_u32 v{t2}, v0, 2, 2\nv_add_u32 v{t0}, v{t0}, v{t2}")
        a(f"v_bfe_u32 v{t2}, v{t0}, 1, 2\nv_lshlrev_b32 v{ldsP}, 5, v{t2}\nv_lshrrev_b32 v{t2}, 3, v{t0}\nv_lshl_add_u32 v{ldsP}, v{t2}, 2, v{ldsP}")
        a(f"v_and_b32 v{t2}, 1, v{t0}\nv_lshl_add_u32 v{ldsP}, v{t2}, 1, v{ldsP}")
        a(f"s_lshl_b32 s58, s3, 7\ns_add_u32 s58, s58, {L_P}\nv_add_u32 v{ldsP}, s58, v{ldsP}")
        a(f"v_and_b32 v{t0}, 15, v0\nv_mul_u32_u24 v{aML}, {BS}, v{t1}\nv_lshl_add_u32 v{aML}, v{t0}, 4, v{aML}")
        a(f"v_lshlrev_b32 v{aST}, 4, v{t0}\nv_lshl_add_u32 v{aST}, v{t1}, 2, v{aST}\nv_lshlrev_b32 v{aXS}, 3, v{t0}")
    def vwave_addrs(self):
        a = self.a
        a("v_and_b32 v1, 7, v0\nv_lshrrev_b32 v2, 3, v0\nv_lshrrev_b32 v3, 4, v0")
        a("s_min_u32 s61, s57, 2\ns_lshl_b32 s58, s61, 2\ns_and_b32 s60, s3, 3\ns_add_u32 s58, s58, s60\ns_mul_i32 s60, s58, 43\ns_lshr_b32 s60, s60, 7")
        a("s_mul_i32 s61, s60, 3\ns_sub_u32 s58, s58, s61")
        a(f"s_mul_i32 s60, s60, {8*BS}\ns_add_u32 s60, s60, s53\ns_lshl_b32 s58, s58, 7\ns_add_u32 s58, s58, s60")
        a(f"v_mul_u32_u24 v{aQG}, {BS}, v2\nv_lshl_add_u32 v{aQG}, v1, 4, v{aQG}\nv_add_u32 v{aQG}, s58, v{aQG}")
        a(f"v_lshl_add_u32 v{aML}, v3, 1, v0\nv_and_b32 v{aML}, 7, v{aML}\nv_lshlrev_b32 v{aML}, 3, v{aML}\nv_add_u32 v{aML}, s60, v{aML}")
        a(f"s_and_b32 s58, s3, 3\ns_lshl_b32 s58, s58, 7\ns_add_u32 s58, s58, {L_P}\nv_lshlrev_b32 v{ldsP}, 5, v3\nv_add_u32 v{ldsP}, s58, v{ldsP}")
        a(f"s_mul_i32 s58, s6, {8*BS}\ns_add_u32 s58, s58, s53\ns_and_b32 s60, s3, 3\ns_lshl_b32 s60, s60, 7\ns_add_u32 s58, s58, s60\ns_lshl_b32 s60, s7, 4\ns_add_u32 s58, s58, s60")
        a(f"v_mul_u32_u24 v{aST}, {BS}, v1\nv_lshl_add_u32 v{aST}, v3, 2, v{aST}\nv_add_u32 v{aST}, s58, v{aST}")
        a(f"s_mul_i32 s58, s7, {BS}\ns_add_u32 s58, s58, s53\nv_add_u32 v{aX2}, s58, v{lane4}")
        a(f"v_and_b32 v{aXS}, 15, v0\nv_lshlrev_b32 v{aXS}, 3, v{aXS}\nv_mov_b32 v{aROW}, 0")
    def k_dma(self):
        a = self.a
        t = T[0]; t2 = T[1]
        a(f"v_lshrrev_b32 v{t}, 3, v0\nv_and_b32 v{t2}, 6, v{t}\nv_xor_b32 v{t2}, v{t2}, v0\nv_and_b32 v{t2}, 7, v{t2}")
        a(f"v_mul_u32_u24 v{t}, 384, v{t}\nv_lshl_add_u32 v{t}, v{t2}, 4, v{t}")
        a(f"s_and_b32 s60, s3, 3\ns_mul_i32 s60, s60, 24576\ns_add_u32 s60, s60, {L_K}\ns_mov_b32 s58, s59\ns_add_u32 s61, s59, {64*384}")
        a(f"v_mul_u32_u24 v{T[4]}, 384, v2\nv_lshl_add_u32 v{T[4]}, v1, 4, v{T[4]}")
        a("s_waitcnt lgkmcnt(0)")
        self.stamp(2)
        if self.B0IT == 0: a("s_barrier")
        self.stamp(3)
        a(f"s_add_u32 s62, s59, {3072*self.B0IT}")
        a("L_kdma:")
        for th in range(3):
            a(f"s_add_u32 m0, s60, {th*1024 - th*128}")
            a(f"buffer_load_dwordx4 v{t}, s[12:15], s58 offen offset:{th*128} nt lds")
        a("s_add_u32 s60, s60, 3072\ns_add_u32 s58, s58, 3072")
        if self.B0IT: a("s_cmp_lg_u32 s58, s62\ns_cbranch_scc1 L_kdma_nb\ns_barrier\nL_kdma_nb:")
        a("s_cmp_lt_u32 s58, s61\ns_cbranch_scc1 L_kdma")
    def k_to_regs(self):
        a = self.a
        t = T[0]; t2 = T[1]; t3 = T[2]
        a(f"v_and_b32 v{t}, 7, v0\nv_lshrrev_b32 v{t2}, 4, v0\nv_and_b32 v{t3}, 6, v0\nv_xor_b32 v{t2}, v{t2}, v{t3}")
        a(f"v_lshlrev_b32 v{t}, 7, v{t}\nv_bfe_u32 v{t3}, v0, 3, 1\nv_mul_u32_u24 v{t3}, 3072, v{t3}\nv_add_u32 v{t}, v{t}, v{t3}")
        a(f"s_mul_i32 s60, s3, 24576\nv_add_u32 v{t}, s60, v{t}")
        a(f"v_lshl_add_u32 v{t3}, v{t2}, 4, v{t}")
        a(f"v_xor_b32 v{t2}, 4, v{t2}\nv_lshl_add_u32 v{t2}, v{t2}, 4, v{t}")
        for tile in range(4):
            for u in range(6):
                off = L_K + (2 * tile * 3 + (u >> 1)) * 1024
                a(f"ds_read_b128 {q4(KV + (tile*6+u)*4)}, v{t2 if (u & 1) else t3} offset:{off}")
            if tile == 1: a("s_waitcnt lgkmcnt(0)")
        a("s_waitcnt lgkmcnt(0)")
    def wo_part(self, lo, hi):
        a = self.a
        le = self.L("wop")
        a(f"s_cmp_lg_u32 s54, 0\ns_cbranch_scc1 {le}")
        for t in range(lo, hi):
            a(f"buffer_load_dwordx4 {q4(WB+4*t)}, v{XA}, s[24:27], s63 offen nt")
            if t < 7: a(f"s_add_u32 s63, s63, {8*1280}")
        a(f"{le}:")
    def wo_loads(self, n=8):
        a = self.a
        t1 = XA
        a(f"v_lshrrev_b32 v{t1}, 3, v0\nv_mul_u32_u24 v{t1}, 1280, v{t1}\nv_and_b32 v{XA+1}, 7, v0\nv_lshl_add_u32 v{t1}, v{XA+1}, 4, v{t1}")
        a("s_min_u32 s62, s57, 2\ns_mul_i32 s58, s4, 768\ns_lshl_b32 s60, s62, 8\ns_add_u32 s58, s58, s60\ns_and_b32 s60, s3, 3\ns_lshl_b32 s60, s60, 6\ns_add_u32 s58, s58, s60")
        a("s_mul_i32 s58, s58, 1280\ns_lshl_b32 s60, s56, 7\ns_add_u32 s58, s58, s60")
        a("s_cmp_ge_u32 s5, 30\ns_cselect_b32 s58, 0x7f000000, s58")
        for t in range(n):
            a(f"buffer_load_dwordx4 {q4(WB+4*t)}, v{t1}, s[24:27], s58 offen nt")
            if t < 7: a(f"s_add_u32 s58, s58, {8*1280}")
        a("s_mov_b32 s63, s58")
    def w1_loads(self):
        a = self.a
        t0, t1 = T[2], T[3]
        a(f"v_lshrrev_b32 v{t0}, 3, v0\nv_and_b32 v{t1}, 7, v0\nv_mul_u32_u24 v{t0}, 3072, v{t0}\nv_lshl_add_u32 v{t0}, v{t1}, 4, v{t0}")
        a(f"s_mul_i32 s58, s56, {64*3072}\ns_mul_i32 s60, s4, 384\ns_add_u32 s58, s58, s60\ns_lshl_b32 s60, s57, 7\ns_add_u32 s58, s58, s60")
        for t in range(8):
            a(f"buffer_load_dwordx4 {q4(WB+4*t)}, v{t0}, s[28:31], s58 offen nt")
            if t < 7: a(f"s_add_u32 s58, s58, {8*3072}")
    def w2_loads(self):
        a = self.a
        t0, t1 = T[2], T[3]
        a(f"v_lshrrev_b32 v{t0}, 3, v0\nv_and_b32 v{t1}, 7, v0\nv_mul_u32_u24 v{t0}, 1280, v{t0}\nv_lshl_add_u32 v{t0}, v{t1}, 4, v{t0}")
        a("s_mul_i32 s58, s4, 192\ns_lshl_b32 s60, s57, 6\ns_add_u32 s61, s58, s60\ns_mul_i32 s58, s61, 1280\ns_lshl_b32 s60, s56, 7\ns_add_u32 s58, s58, s60")
        for t in range(8):
            a(f"buffer_load_dwordx4 {q4(WB+4*t)}, v{t0}, s[36:39], s58 offen nt")
            if t < 7: a(f"s_add_u32 s58, s58, {8*1280}")
        a(f"v_bfe_u32 v{t0}, v0, 3, 1\nv_lshl_add_u32 v{t0}, v{t0}, 1, v{aP32}\ns_lshl_b32 s61, s61, 1")
        a(f"buffer_load_ushort v{B1V}, v{t0}, s[32:35], s61 offen")
    def clears(self, all_sc1):
        a = self.a
        C = XA + 4
        for i in range(4): a(f"v_mov_b32 v{C+i}, -1")
        a(f"v_lshlrev_b32 v{T[3]}, 4, v0")
        f = " sc1" if all_sc1 else ""
        a("s_mov_b32 exec_hi, 0")
        a(f"buffer_store_dwordx4 {q4(C)}, v{T[3]}, {WS}, s52 offen sc1")
        a("s_mov_b32 exec_lo, 0xffff")
        a(f"buffer_store_dwordx4 {q4(C)}, v{T[3]}, {WS}, s52 offen offset:2560{f}")
        a("s_mov_b64 exec, -1")
        for o in (512, 1536):
            a(f"buffer_store_dwordx4 {q4(C)}, v{T[3]}, {WS}, s52 offen offset:{o}{f}")
    def flag_store(self, base):
        a = self.a
        C = XA + 4
        if base == FL1:
            a("s_xor_b32 s58, s74, 0x5bd1e995\ns_andn2_b32 s58, s58, 15\ns_or_b32 s75, s75, s58")
        a(f"s_lshl_b32 s58, s4, 5\ns_add_u32 s58, s58, s5\ns_lshl_b32 s58, s58, 3\ns_add_u32 s58, s58, {base}")
        a(f"v_mov_b32 v{C}, s74\nv_mov_b32 v{C+1}, s75")
        a("s_mov_b64 exec, 1")
        a(f"buffer_store_dwordx2 v[{C}:{C+1}], v{aP32}, {WS}, s58 offen sc1")
        a("s_mov_b64 exec, -1")
    def flags_issue(self, base):
        a = self.a
        F = AB[0]
        a(f"v_lshlrev_b32 v{T[4]}, 5, v0\ns_mov_b32 s60, {base}")
        a(f"buffer_load_dwordx4 {q4(F)}, v{T[4]}, {WS}, s60 offen sc1\nbuffer_load_dwordx4 {q4(F+4)}, v{T[4]}, {WS}, s60 offen offset:16 sc1")
    def flags_wait(self, base, group_only):
        a = self.a
        F = AB[0]
        t, t2 = T[2], T[3]
        lp, lc, ld = self.L("fp"), self.L("fc"), self.L("fg")
        a("s_mov_b32 s70, 0\ns_or_b32 s61, s75, 15")
        if base == FL1: a(f"s_branch {lc}")
        a(f"{lp}:")
        self.flags_issue(base)
        a(f"{lc}:")
        a("s_waitcnt vmcnt(0)")
        a(f"v_xor_b32 v{t}, s74, v{F}")
        for i in range(1, 4):
            a(f"v_xor_b32 v{t2}, s74, v{F+2*i}\nv_or_b32 v{t}, v{t}, v{t2}")
        for i in range(4):
            a(f"v_or_b32 v{t2}, 15, v{F+2*i+1}\nv_xor_b32 v{t2}, s61, v{t2}\nv_or_b32 v{t}, v{t}, v{t2}")
        a(f"v_cmp_ne_u32 vcc, 0, v{t}")
        if group_only: a(f"s_and_b64 vcc, vcc, s[72:73]\ns_cbranch_scc0 {ld}")
        else: a(f"s_cbranch_vccz {ld}")
        a(f"s_sleep 16\ns_add_u32 s70, s70, 1\ns_cmp_lt_u32 s70, {POLL_LIMIT}\ns_cbranch_scc1 {lp}\n{ld}:")
    def flags_check(self):
        a = self.a
        F = AB[0]; t, t2 = T[2], T[3]
        lf = self.L("fast")
        a("s_lshl_b32 s58, s4, 3\ns_mov_b64 s[72:73], 0xff\ns_lshl_b64 s[72:73], s[72:73], s58")
        self.flags_wait(FL1, False)
        a(f"v_xor_b32 v{t}, s75, v{F+1}")
        for i in range(1, 4):
            a(f"v_xor_b32 v{t2}, s75, v{F+2*i+1}\nv_or_b32 v{t}, v{t}, v{t2}")
        a(f"v_cmp_ne_u32 vcc, 0, v{t}\ns_mov_b32 s55, 1\ns_and_b64 vcc, vcc, s[72:73]")
        if "forceslow" not in self.knobs: a(f"s_cbranch_scc0 {lf}")
        a("s_mov_b32 s55, 0")
        self.clears(True)
        a("s_waitcnt vmcnt(0)")
        self.flag_store(FL2)
        self.flags_wait(FL2, True)
        a(f"{lf}:")
        a(f"s_lshl_b32 s58, s55, 1\ns_or_b32 s58, s58, 1\nv_mov_b32 v{t}, s58\nv_mov_b32 v{T[3]}, {L_CTRL}\nds_write_b32 v{T[3]}, v{t} offset:4")
    def qproj(self, pair, s1, s2, pre_ops):
        a = self.a
        self.gemv_bcast(ACC, pair, WA, 10, fill=list(pre_ops) + self.ln_ops(s1, s2, T[2]))
        self.pair32(ACC, T[2], T[3])
        a(f"v_fma_f32 v{T[2]}, -v{s1}, v{CS0}, v{T[2]}\nv_fma_f32 v{T[3]}, -v{s1}, v{CS1}, v{T[3]}")
        a(f"v_mul_f32 v{T[2]}, v{T[2]}, v{s2}\nv_mul_f32 v{T[3]}, v{T[3]}, v{s2}")
        a(f"v_cvt_pk_bf16_f32 v{T[4]}, v{T[2]}, v{T[3]}")

    def gen(self):
        a = self.a
        a(f"; @launch grid=(256,1,1) block=(512,1,1) lds={LDS_BYTES}")
        for ln in DOC.strip().split("\n"): a("; " + ln)
        a('.amdgcn_target "amdgcn-amd-amdhsa--gfx950"\n.text')
        a(f".globl {KNAME}\n.p2align 8\n.type {KNAME},@function")
        a(f"{KNAME}:")
        a("s_cmp_ge_u32 s2, 256\ns_cbranch_scc1 L_end")
        for _ in range(self.SHIFT): a("s_nop 0")
        if self.prof:
            for i in range(13): a(f"s_mov_b64 s[{76+2*i}:{77+2*i}], 0")
        self.stamp(0)
        if self.AMP: a("s_memrealtime s[92:93]")
        ptr = {12: 8, 20: 24, 8: 0, 48: 88, 16: 16, 24: 32, 28: 48, 32: 56, 36: 64, 40: 72}
        size = {8: 1280, 12: 100663296, 16: 100663296, 20: 7864320, 24: 7864320, 28: 1966080, 32: 3072, 36: 1966080, 40: 1280,
                48: (PROF_OFF + 256 * 8 * 2 * 64) if self.prof else WS_USED}
        for s, off in ptr.items():
            a(f"s_load_dwordx2 s[{s}:{s+1}], s[0:1], {off}")
        a("v_lshrrev_b32 v1, 6, v0\nv_and_b32 v0, 63, v0\nv_readfirstlane_b32 s3, v1")
        if self.CPF0:
            a("s_getpc_b64 s[72:73]")
            a("L_pcref0:")
            a(f"s_sub_u32 s72, s72, L_pcref0-{KNAME}\ns_subb_u32 s73, s73, 0")
            a("s_and_b32 s58, s2, 0xf8\ns_add_u32 s58, s58, s3\ns_lshl_b32 s58, s58, 7")
            a(f"s_cmp_ge_u32 s58, L_end-{KNAME}\ns_cbranch_scc1 L_nocpf0")
            a(f"v_mov_b32 v2, s58\ns_mov_b64 exec, 1\nglobal_load_dword v{WA+39}, v2, s[72:73]\ns_mov_b64 exec, -1")
            a("L_nocpf0:")
        for s in ptr:
            a(f"s_mov_b32 s{s+2}, {size[s]}\ns_mov_b32 s{s+3}, 0x20000")
        a("s_and_b32 s4, s2, 7\ns_lshr_b32 s5, s2, 3\ns_lshr_b32 s6, s5, 3\ns_and_b32 s7, s5, 7")
        a(f"s_mul_i32 s53, s4, {32*BS}\ns_mul_i32 s52, s5, {BS}\ns_add_u32 s52, s52, s53")
        a("s_mov_b32 s54, 0\ns_mov_b32 s55, 0")
        a("s_getreg_b32 s75, hwreg(HW_REG_XCC_ID)\ns_and_b32 s75, s75, 15")
        a("s_cmp_ge_u32 s5, 10\ns_cselect_b32 s57, 1, 0\ns_cmp_ge_u32 s5, 20\ns_cselect_b32 s57, 2, s57\ns_cmp_ge_u32 s5, 30\ns_cselect_b32 s57, 3, s57")
        a("s_mul_i32 s58, s57, 10\ns_sub_u32 s56, s5, s58")
        a("s_mov_b32 s64, 0x00ff00ff\ns_mov_b32 s65, 0x00ff00ff")
        a("s_mov_b32 s66, 0xaaaaaaaa\ns_mov_b32 s67, 0xaaaaaaaa\ns_mov_b32 s68, 0xcccccccc\ns_mov_b32 s69, 0xcccccccc")
        a("s_mov_b32 s44, 0x03ff03ff\ns_mov_b32 s45, 0x03ff03ff\ns_mov_b32 s46, 1\ns_mov_b32 s47, 1")
        a("s_lshl_b32 s58, s4, 2\ns_add_u32 s58, s58, s6\ns_mul_i32 s59, s58, 3145728")
        a("s_lshl_b32 s58, s7, 8\ns_and_b32 s60, s3, 3\ns_lshl_b32 s60, s60, 6\ns_add_u32 s58, s58, s60\ns_add_u32 s58, s58, 6144\ns_mul_i32 s58, s58, 384\ns_add_u32 s59, s59, s58")
        a("v_and_b32 v1, 7, v0\nv_lshrrev_b32 v2, 3, v0\nv_lshrrev_b32 v3, 4, v0")
        a(f"v_lshlrev_b32 v{lane4}, 2, v0")
        a(f"v_lshlrev_b32 v{aP32}, 4, v1\nv_lshl_add_u32 v{aP32}, v3, 2, v{aP32}")
        a("s_cmp_lt_u32 s3, 4\ns_cbranch_scc1 L_pro_k")
        self.v_prologue()
        a("L_pro_k:")
        a(f"s_setprio 3\ns_mov_b32 s71, {GEN_OFF}")
        a("s_cmp_eq_u32 s3, 3\ns_cbranch_scc1 L_pro_c")
        XS = GB
        a(f"v_lshlrev_b32 v{T[0]}, 4, v0")
        a(f"v_and_b32 v{T[1]}, 15, v0\nv_lshlrev_b32 v{T[1]}, 7, v{T[1]}\nv_lshl_add_u32 v{T[1]}, v3, 2, v{T[1]}\ns_lshl_b32 s61, s7, 4")
        a(f"v_mul_u32_u24 v{T[2]}, 12288, v2\nv_lshl_add_u32 v{T[2]}, v1, 4, v{T[2]}")
        a(f"s_lshl_b32 s58, s4, 2\ns_add_u32 s58, s58, s6\ns_mul_i32 s58, s58, 384\ns_lshl_b32 s60, s3, 7\ns_add_u32 s58, s58, s60\ns_mul_i32 s60, s7, {8*12288}\ns_add_u32 s58, s58, s60")
        a("s_waitcnt lgkmcnt(0)")
        a(f"buffer_load_dwordx4 {q4(XS)}, v{T[0]}, s[8:11], 0 offen")
        a(f"buffer_load_dword v{XS+4}, v{lane4}, s[8:11], 0 offen offset:1024")
        a(f"buffer_load_dword v{XA}, v{T[1]}, s[8:11], s61 offen")
        for t in range(10 if "nowq" not in self.knobs else 0):
            a(f"buffer_load_dwordx4 {q4(WA+4*t)}, v{T[2]}, s[20:23], s58 offen nt")
            if t < 9: a(f"s_add_u32 s58, s58, {64*12288}")
        if self.QPW:
            a(f"v_mov_b32 v{XA+6}, -1\ns_lshl_b32 s60, s3, 8\ns_add_u32 s63, s52, s60")
            a(f"buffer_store_dword v{XA+6}, v{lane4}, {WS}, s63 offen offset:{QP0T+768}")
        a("s_barrier")
        a(f"s_buffer_load_dword s74, {WS}, s71")
        self.consts()
        self.kwave_addrs()
        self.make_tag()
        a(f"s_waitcnt vmcnt({11 + self.QPW})")
        s1, s2 = T[0], T[1]
        a(f"v_mov_b32 v{s1}, 0\nv_mov_b32 v{s2}, 0")
        for i in range(5):
            a(f"v_lshlrev_b32 v{T[2]}, 16, v{XS+i}\nv_and_b32 v{T[3]}, 0xffff0000, v{XS+i}")
            a(f"v_add_f32 v{s1}, v{s1}, v{T[2]}\nv_fmac_f32 v{s2}, v{T[2]}, v{T[2]}\nv_add_f32 v{s1}, v{s1}, v{T[3]}\nv_fmac_f32 v{s2}, v{T[3]}, v{T[3]}")
        for x in self.red2_ops(s1, s2, (Q1, Q2, HM, RM), T[2]): a(x)
        a(f"v_readlane_b32 s58, v{s1}, 0\nv_readlane_b32 s60, v{s1}, 32")
        a(f"v_mov_b32 v{s1}, s58\nv_mov_b32 v{s2}, s60")
        a(f"s_waitcnt vmcnt({self.QPW})")
        self.stamp(1)
        if "lo1" in self.knobs: a("s_branch L_fin2")
        for t in range(10):
            self.mfma(ACC + 4, ONES, WA + 4 * t, t == 0)
        self.pair32(ACC + 4, CS0, CS1)
        self.qproj(XA, s1, s2, [])
        QD = XA + 6
        a(f"v_mov_b32 v{QD}, v{T[4]}\nv_mov_b32 v{QD+1}, s74")
        a(f"v_and_b32 v{X0}, 7, v0\nv_lshlrev_b32 v{X0}, 3, v{X0}\nv_lshrrev_b32 v{T[2]}, 4, v0\nv_lshl_add_u32 v{X0}, v{T[2]}, 6, v{X0}")
        a("s_lshl_b32 s60, s3, 8\ns_add_u32 s63, s52, s60")
        a("s_mov_b64 exec, s[64:65]")
        a(f"buffer_store_dwordx2 v[{QD}:{QD+1}], v{X0}, {WS}, s63 offen offset:{QP0T+768}")
        a("s_mov_b64 exec, -1\ns_mov_b32 s71, 0")
        self.stamp(3)
        if "lo2" in self.knobs: a("s_branch L_fin2")
        a(f"s_mul_i32 s58, s3, 10752\ns_add_u32 s58, s58, {L_WQ}\nv_lshlrev_b32 v{T[0]}, 4, v0\nv_add_u32 v{T[0]}, s58, v{T[0]}")
        for t in range(10):
            a(f"ds_write_b128 v{T[0]}, {q4(WA+4*t)} offset:{1024*t}")
        a(f"v_add_u32 v{T[1]}, s58, v{lane4}\nds_write_b32 v{T[1]}, v{CS0} offset:10240\nds_write_b32 v{T[1]}, v{CS1} offset:10496")
        QA = [XA + 1, XA + 2]
        a(f"s_mul_i32 s62, s6, {8*BS}\ns_add_u32 s62, s62, s53\ns_lshl_b32 s58, s3, 7")
        for n in range(2):
            a(f"v_add_u32 v{T[0]}, s58, v0")
            if n: a(f"v_add_u32 v{T[0]}, 64, v{T[0]}")
            a(f"v_mul_u32_u24 v{T[1]}, 0x556, v{T[0]}\nv_lshrrev_b32 v{T[1]}, 16, v{T[1]}")
            a(f"v_mul_u32_u24 v{T[2]}, {BS - 768}, v{T[1]}\nv_lshl_add_u32 v{QA[n]}, v{T[0]}, 4, v{T[2]}")
        SETS = [[WB, WB + 4], [WB + 8, WB + 12]]
        def qissue(k):
            if k == 0: a("s_add_u32 s58, s62, 768")
            else: a(f"s_cmp_ge_u32 s70, {self.QFB}\ns_cselect_b32 s58, 0, 768\ns_add_u32 s58, s58, s62")
            for n in range(2):
                a(f"buffer_load_dwordx4 {q4(SETS[k][n])}, v{QA[n]}, {WS}, s58 offen offset:{QP0T} sc1")
        lp, ld = self.L("poll"), self.L("got")
        a(f"s_mov_b32 s70, 0\ns_sleep {self.QSLEEP0}")
        gots = [self.L("qg") for _ in range(2)]
        if self.Q1ST:
            qissue(0)
            a("s_waitcnt vmcnt(0)")
            a(f"v_mov_b32 v{T[0]}, s74\nv_mov_b32 v{T[1]}, s74")
            for r in SETS[0]:
                a(f"v_min3_u32 v{T[0]}, v{T[0]}, v{r+1}, v{r+3}\nv_max3_u32 v{T[1]}, v{T[1]}, v{r+1}, v{r+3}")
            a(f"v_cmp_ne_u32 vcc, v{T[0]}, v{T[1]}\ns_cbranch_vccz {gots[0]}")
        qissue(0); a(f"s_sleep {self.QSLEEP1}"); qissue(1)
        a(f"{lp}:")
        for k in range(2):
            a("s_waitcnt vmcnt(2)")
            a(f"v_mov_b32 v{T[0]}, s74\nv_mov_b32 v{T[1]}, s74")
            for r in SETS[k]:
                a(f"v_min3_u32 v{T[0]}, v{T[0]}, v{r+1}, v{r+3}\nv_max3_u32 v{T[1]}, v{T[1]}, v{r+1}, v{r+3}")
            a(f"v_cmp_ne_u32 vcc, v{T[0]}, v{T[1]}\ns_cbranch_vccz {gots[k]}")
            if k == 1:
                a("s_add_u32 s70, s70, 1")
                self.q_fallback(self.QFB)
            qissue(k)
        a(f"s_cmp_lt_u32 s70, {POLL_LIMIT}\ns_cbranch_scc1 {lp}")
        for k in range(2):
            a(f"{gots[k]}:")
            a(f"v_lshrrev_b32 v{T[0]}, 4, v0\nv_lshlrev_b32 v{T[0]}, 7, v{T[0]}\nv_and_b32 v{T[1]}, 3, v0\nv_lshl_add_u32 v{T[0]}, v{T[1]}, 5, v{T[0]}")
            a(f"v_bfe_u32 v{T[1]}, v0, 2, 2\nv_lshl_add_u32 v{T[0]}, v{T[1]}, 2, v{T[0]}\ns_lshl_b32 s58, s3, 10\ns_add_u32 s58, s58, {L_Q}\nv_add_u32 v{T[0]}, s58, v{T[0]}")
            for n in range(2):
                a(f"ds_write2_b32 v{T[0]}, v{SETS[k][n]}, v{SETS[k][n]+2} offset0:{128*n} offset1:{128*n+4}")
            if k < 1: a(f"s_branch {ld}")
        a(f"{ld}:")
        a(f"v_mov_b32 v{T[2]}, 1\nv_mov_b32 v{T[3]}, {L_CTRL+32}\ns_waitcnt lgkmcnt(0)\nds_add_u32 v{T[3]}, v{T[2]}")
        self.stamp(2)
        a("s_branch L_bk")
        a("L_pro_c:")
        a(f"v_mov_b32 v{T[0]}, 0")
        a("s_mov_b64 exec, 0xffff")
        a(f"ds_write_b32 v{lane4}, v{T[0]} offset:{L_CTRL}")
        a("s_mov_b64 exec, -1\ns_waitcnt lgkmcnt(0)")
        if self.B0E: a("s_barrier")
        if "noclr" not in self.knobs: self.clears(False)
        a(f"s_lshl_b32 s58, s56, 7\nbuffer_load_dword v{GB+4}, v{aP32}, s[8:11], s58 offen")
        if not self.B0E: a("s_barrier")
        a(f"s_buffer_load_dword s74, {WS}, s71")
        self.consts()
        self.kwave_addrs()
        self.make_tag()
        a("s_waitcnt vmcnt(0)")
        if "noclr" not in self.knobs: self.flag_store(FL1)
        self.stamp(1)
        for x in self.unpackX_ops(GB + 4): a(x)
        if not (self.knobs & {"lo1", "lo2"}) and "noclr" not in self.knobs:
            a(f"s_sleep {self.FLSL}")
            self.flags_issue(FL1)
            self.flags_check()
            self.stamp(2)
        a("L_bk:")
        if self.knobs & {"lo1", "lo2", "lo3"}: a("s_branch L_fin2")
        a(f"s_lshl_b32 s60, s3, 2\ns_add_u32 s60, s60, {L_CTRL+16}")
        self.lds_wait_flag("s60")
        self.stamp(10)
        self.k_to_regs()
        self.lds_wait_flag(L_CTRL + 32, 192, fb=64)
        self.stamp(11)
        a(f"v_and_b32 v{T[3]}, 7, v0\nv_mul_u32_u24 v{T[3]}, 384, v{T[3]}\nv_lshrrev_b32 v{T[4]}, 4, v0\nv_lshl_add_u32 v{T[3]}, v{T[4]}, 4, v{T[3]}")
        a(f"v_and_b32 v{T[4]}, 8, v0\nv_lshl_add_u32 v{T[3]}, v{T[4]}, 3, v{T[3]}")
        for u in range(3):
            a(f"ds_read_b128 {q4(GB+4*u)}, v{T[3]} offset:{L_Q + 128*u}")
        a("s_waitcnt lgkmcnt(0)")
        a("s_branch L_qk")

        a("L_kloop:")
        a("s_cmp_lg_u32 s3, 3\ns_cbranch_scc1 L_k_b1")
        a("s_cmp_ge_u32 s5, 10\ns_cbranch_scc1 L_k_pt")
        self.zgather(0, self.ZSL)
        s1, s2 = T[0], T[1]
        a("s_mov_b64 exec, s[64:65]")
        self.local_stores([f"buffer_store_dword v{T[4]}, v{aX2}, {WS}, 0 offen offset:{X2O}{{f}}"])
        a("s_mov_b64 exec, -1")
        for x in self.unpackX_ops(T[4]) + self.xstats_ops(s1, s2, T[2]): a(x)
        a(f"v_lshrrev_b32 v{T[2]}, 3, v0\nv_and_b32 v{T[2]}, 4, v{T[2]}\ns_lshl_b32 s58, s56, 3\ns_add_u32 s58, s58, s53\ns_add_u32 s58, s58, {7*BS}")
        a("s_mov_b64 exec, s[46:47]")
        self.local_stores([f"buffer_store_dword v{s1}, v{T[2]}, {WS}, s58 offen offset:{MISC}{{f}}"])
        a("s_mov_b64 exec, -1")
        self.stamp(2)
        a("L_k_pt:")
        a("L_k_b1:")
        a("s_barrier")
        self.sleep(self.QSL)
        self.poll([f"buffer_load_dwordx4 {q4(GB+4*u)}, v{aQG}, {WS}, 0 offen offset:{QP1 + 128*u} sc1" for u in range(3)], range(GB, GB + 12),
                  entry="L_qk", spec=[self.mfma_s(ACC + 4 * (u & 1), KV + 4 * u, GB + 4 * (u >> 1), u < 2) for u in range(4)], pipe=self.PQ)
        self.stamp(4)
        R = [XA, XA + 1, XA + 2, XA + 3]
        DE = [ACC, ACC + 8]; DO = [ACC + 4, ACC + 12]
        def lvl_ops(t):
            e, o = DE[t & 1], DO[t & 1]
            hm = lambda d, srcr, bank: f"v_add_f32_dpp v{d}, v{srcr}, v{srcr} row_half_mirror row_mask:0xf bank_mask:{hex(1<<bank)}"
            return [hm(T[2], e + 2, 0), hm(T[2], e + 3, 1), hm(R[t], e, 0), hm(R[t], e + 1, 1),
                    hm(T[2], o, 2), hm(T[2], o + 1, 3), hm(R[t], o + 2, 2), hm(R[t], o + 3, 3),
                    f"v_add_f32_dpp v{R[t]}, v{T[2]}, v{R[t]} row_ror:8 {DPPALL}",
                    f"v_add_f32_dpp v{R[t]}, v{R[t]}, v{R[t]} {Q1} {DPPALL}",
                    f"v_add_f32_dpp v{R[t]}, v{R[t]}, v{R[t]} {Q2} {DPPALL}"]
        pend = []
        S = T[0]; M = T[1]
        for t in range(4):
            for u in range(6):
                if t == 0 and u < 4: continue
                self.mfma((DO if u & 1 else DE)[t & 1], KV + (t * 6 + u) * 4, GB + 4 * (u >> 1), u < 2)
                if u >= 2:
                    for _ in range(3 if u < 5 else 2):
                        if pend: a(pend.pop(0))
            pend = lvl_ops(t)
            if t == 3:
                pend = [f"v_max3_f32 v{M}, v{R[0]}, v{R[1]}, v{R[2]}", f"v_cndmask_b32 v{R[0]}, v{R[0]}, v{R[1]}, s[66:67]"] + pend
        for x in pend: a(x)
        a(f"v_max_f32 v{M}, v{M}, v{R[3]}")
        a(f"v_cndmask_b32 v{R[2]}, v{R[2]}, v{R[3]}, s[66:67]\nv_cndmask_b32 v{S}, v{R[0]}, v{R[2]}, s[68:69]")
        a(f"v_max_f32_dpp v{M}, v{M}, v{M} row_ror:4 {DPPALL}")
        a(f"v_mul_f32 v{S}, 0x3dd53b95, v{S}")
        a(f"v_max_f32_dpp v{M}, v{M}, v{M} row_ror:8 {DPPALL}")
        a(f"v_mov_b32 v{T[2]}, v{M}\nv_permlane16_swap_b32 v{M}, v{T[2]}\nv_max_f32 v{M}, v{M}, v{T[2]}")
        a(f"v_mov_b32 v{T[2]}, v{M}\nv_permlane32_swap_b32 v{M}, v{T[2]}\nv_max_f32 v{M}, v{M}, v{T[2]}")
        a(f"v_mul_f32 v{M}, 0x3dd53b95, v{M}")
        a(f"v_sub_f32 v{S}, v{S}, v{M}\nv_exp_f32 v{S}, v{S}")
        a(f"v_cvt_pk_bf16_f32 v{S}, v{S}, v{S}")
        a(f"ds_write_b16 v{ldsP}, v{S}")
        a("s_cmp_eq_u32 s3, 3\ns_cbranch_scc1 L_qk_nf\ns_cmp_lg_u32 s54, 0\ns_cbranch_scc1 L_qk_nf")
        self.lds_wait_flag(L_CTRL + 4)
        a("s_lshr_b32 s55, s58, 1\ns_cmp_lg_u32 s55, 0\ns_cbranch_scc1 L_qk_nf")
        self.q_fallback(0)
        a("L_qk_nf:")
        a("s_waitcnt vmcnt(0) lgkmcnt(0)" if self.PQ else "s_waitcnt lgkmcnt(0)")
        self.stamp(5)
        if self.PRI == 1: a("s_setprio 0")
        a("s_barrier")
        if self.PRI == 2: a("s_sleep 2")
        a(f"v_lshlrev_b32 v{S}, 16, v{S}")
        self.allred64("v_add_f32", S, T[2])
        a(f"s_lshl_b32 s58, s3, 3\nv_mov_b32 v{T[2]}, s58")
        a("s_mov_b64 exec, 1")
        a(f"ds_write_b32 v{T[2]}, v{M} offset:{L_ML}\nds_write_b32 v{T[2]}, v{S} offset:{L_ML+4}")
        a("s_mov_b64 exec, -1")
        a("s_cmp_lg_u32 s3, 3\ns_cbranch_scc1 L_k_b3")
        a("s_cmp_eq_u32 s54, 0\ns_cbranch_scc1 L_c_b3")
        a("L_c_x2:")
        a("s_cmp_lt_u32 s5, 10\ns_cbranch_scc1 L_c_b3")
        self.poll([f"buffer_load_dword v{GB}, v{aX2}, {WS}, 0 offen offset:{X2O} sc1"], [GB])
        for x in self.unpackX_ops(GB): a(x)
        a("L_c_b3:")
        a("s_waitcnt lgkmcnt(0)\ns_barrier")
        a("s_cmp_ge_u32 s5, 30\ns_cbranch_scc1 L_k_next")
        if self.LL == 3:
            a("s_cmp_lg_u32 s54, 0\ns_cbranch_scc1 L_c_b4")
            self.w1_loads()
            a("L_c_b4:")
        if self.B3B:
            a("s_cmp_lg_u32 s54, 0\ns_cbranch_scc1 L_c_nb3b\ns_barrier")
            self.w1_loads()
            a("L_c_nb3b:")
        a("s_barrier")
        a("s_cmp_lg_u32 s54, 0\ns_cbranch_scc1 L_p4_nocs")
        if self.LL == 4 and not self.B3B: self.w1_loads()
        yl = self.rows24_loads(YO)
        self.sleep(self.YSL0)
        for x in yl: a(x)
        a("s_mov_b32 s70, 0\ns_waitcnt vmcnt(3)")
        for t in range(8): self.mfma(ACC, ONES, WB + 4 * t, t == 0)
        self.l64(ACC, CS0)
        self.local_stores([f"buffer_store_dword v{CS0}, v{aST}, {WS}, s52 offen offset:{HPC}{{f}}"])
        a("s_branch L_p4_chk")
        a("L_p4_nocs:")
        yl = self.rows24_loads(YO)
        self.sleep(self.YSL)
        self.poll(yl, range(GB, GB + 12), entry="L_p4_chk", spec=[self.mfma_s(ACC, ONES, GB + 4 * n, n == 0) for n in range(3)])
        a("s_barrier")
        if self.AMP == 2: a("s_cmp_lg_u32 s54, 0\ns_cbranch_scc1 L_amp2\ns_memrealtime s[94:95]\nL_amp2:")
        self.stamp(8)
        self.sel_layer(58, HPR, 52)
        a(f"s_mul_i32 s60, s54, 3\ns_add_u32 s60, s60, s57\ns_add_u32 s60, s60, 1\ns_mul_i32 s60, s60, {BS}\ns_add_u32 s60, s60, s53\ns_lshl_b32 s61, s56, 3\ns_add_u32 s60, s60, s61")
        self.resid_add()
        s1, s2 = T[0], T[1]
        self.gemv_bcast(ACC + 4, T[4], WB, 8, fill=self.unpackX_ops(T[4]) + self.xstats_ops(s1, s2, T[2]) + [f"v_lshrrev_b32 v{T[2]}, 3, v0", f"v_and_b32 v{T[2]}, 4, v{T[2]}"])
        self.l64(ACC + 4, T[3])
        self.local_stores([f"buffer_store_dword v{T[3]}, v{aST}, {WS}, s58 offen{{f}}", "s_mov_b64 exec, s[46:47]",
                           f"buffer_store_dword v{s1}, v{T[2]}, {WS}, s60 offen offset:{MISC}{{f}}"])
        a("s_mov_b64 exec, -1")
        self.stamp(9)
        self.dump0()
        a("s_barrier")
        a("s_cmp_lg_u32 s54, 0\ns_cbranch_scc1 L_final\ns_mov_b32 s54, 1\ns_branch L_kloop")
        a("L_k_b3:")
        if self.LL2 == 2:
            a("s_cmp_lg_u32 s54, 0\ns_cbranch_scc1 L_k_b3a\ns_cmp_lg_u32 s3, 0\ns_cbranch_scc1 L_k_b3a")
            self.w2_loads()
            a("L_k_b3a:")
        if self.CPF:
            self.code_prefetch()
        a(f"s_lshl_b32 s58, s3, 8\nv_add_u32 v{T[3]}, s58, v{lane4}\nv_mov_b32 v{T[4]}, {L_ML}")
        self.sel_layer(58, OP, 52)
        a("s_lshl_b32 s60, s3, 7\ns_add_u32 s60, s60, s58")
        a(f"s_mul_i32 s61, s7, {BS - 8}\ns_sub_u32 s61, s52, s61\ns_lshl_b32 s58, s54, 6\ns_add_u32 s61, s61, s58")
        a("s_waitcnt lgkmcnt(0)\ns_barrier")
        self.stamp(6)
        a(f"ds_read_b128 {q4(GB)}, v{T[4]}\nds_read_b128 {q4(GB+4)}, v{T[4]} offset:16")
        for w in range(4):
            a(f"ds_read_b32 v{GB+8+w}, v{T[3]} offset:{L_O + 768*w}")
        a("s_waitcnt lgkmcnt(0)")
        M = GB + 12; Lr = GB + 13
        a(f"v_max3_f32 v{M}, v{GB}, v{GB+2}, v{GB+4}\nv_max_f32 v{M}, v{M}, v{GB+6}")
        for w in range(4): a(f"v_sub_f32 v{GB+2*w}, v{GB+2*w}, v{M}")
        for w in range(4): a(f"v_exp_f32 v{GB+2*w}, v{GB+2*w}")
        a(f"v_mul_f32 v{Lr}, v{GB}, v{GB+1}\nv_mul_f32 v{T[0]}, v{GB}, v{GB+8}")
        for w in range(1, 4):
            a(f"v_fmac_f32 v{Lr}, v{GB+2*w}, v{GB+2*w+1}\nv_fmac_f32 v{T[0]}, v{GB+2*w}, v{GB+8+w}")
        a(f"v_rcp_f32 v{T[1]}, v{Lr}\nv_mul_f32 v{T[0]}, v{T[0]}, v{T[1]}")
        a(f"v_mov_b32_dpp v{T[1]}, v{T[0]} row_ror:8 {DPPALL}\nv_cvt_pk_bf16_f32 v{T[0]}, v{T[0]}, v{T[1]}")
        a("s_mov_b64 exec, s[64:65]")
        lz = self.L("z")
        self.local_stores([f"buffer_store_dword v{T[0]}, v{aP32}, {WS}, s60 offen{{f}}"])
        a(f"s_cmp_lg_u32 s3, 1\ns_cbranch_scc1 {lz}\ns_mov_b64 exec, 1")
        self.local_stores([f"buffer_store_dwordx2 v[{M}:{Lr}], v{aP32}, {WS}, s61 offen offset:{MISC}{{f}}"])
        a(f"{lz}:\ns_mov_b64 exec, -1")
        self.stamp(7)
        a("s_cmp_ge_u32 s5, 30\ns_cbranch_scc1 L_k_next")
        if self.LL2 == 3:
            a("s_cmp_lg_u32 s54, 0\ns_cbranch_scc1 L_k_b4a\ns_cmp_lg_u32 s3, 0\ns_cbranch_scc1 L_k_b4a")
            self.w2_loads()
            a("L_k_b4a:")
        if self.B3B:
            a("s_cmp_lg_u32 s54, 0\ns_cbranch_scc1 L_k_nb3b\ns_barrier\ns_cmp_lg_u32 s3, 0\ns_cbranch_scc1 L_k_nb3b")
            self.w2_loads()
            a("L_k_nb3b:")
        a("s_barrier")
        a("s_cmp_eq_u32 s3, 0\ns_cbranch_scc1 L_p5")
        a("s_cmp_lg_u32 s3, 1\ns_cbranch_scc1 L_k_b5")
        self.sel_layer(58, HPR, 52)
        a(f"v_lshlrev_b32 v{T[0]}, 7, v0\ns_mov_b64 exec, 3")
        a(f"buffer_load_dword v{GB}, v{T[0]}, {WS}, s58 offen sc1\nbuffer_load_dword v{GB+1}, v{T[0]}, {WS}, s52 offen offset:{HPC} sc1")
        a(f"buffer_load_dword v{GB+2}, v{lane4}, {WS}, s52 offen offset:{MISC} sc1\ns_mov_b64 exec, -1")
        a("L_k_b5:")
        a("s_barrier\ns_barrier")
        a("s_branch L_k_next")
        a("L_p5:")
        a(f"s_mul_i32 s62, s57, {10*BS}\ns_add_u32 s62, s62, s53")
        def hp_gather(with_stats, slp=0):
            for i in range(8, 14): a(f"v_mov_b32 v{GB+i}, 0")
            loads = [f"buffer_load_dwordx4 {q4(GB)}, v{aML}, {WS}, s58 offen sc1",
                     f"buffer_load_dwordx4 {q4(GB+4)}, v{aML}, {WS}, s60 offen sc1",
                     "s_mov_b32 exec_hi, 0",
                     f"buffer_load_dwordx4 {q4(GB+8)}, v{aML}, {WS}, s61 offen sc1"]
            if with_stats:
                loads += ["s_mov_b64 exec, s[44:45]", f"buffer_load_dwordx2 v[{GB+12}:{GB+13}], v{aXS}, {WS}, s63 offen offset:{MISC} sc1"]
            loads += ["s_mov_b64 exec, -1"]
            return loads, range(GB, GB + (14 if with_stats else 12))
        def hp_reduce_ops(dst):
            U = GB + 16
            o = [f"v_add_f32 v{U+i}, v{GB+i}, v{GB+4+i}" for i in range(4)] + [f"v_add_f32 v{U+i}, v{U+i}, v{GB+8+i}" for i in range(4)]
            o += [f"v_permlane32_swap_b32 v{U}, v{U+2}", f"v_permlane32_swap_b32 v{U+1}, v{U+3}",
                  f"v_add_f32 v{U}, v{U}, v{U+2}", f"v_add_f32 v{U+1}, v{U+1}, v{U+3}",
                  f"v_permlane16_swap_b32 v{U}, v{U+1}", f"v_add_f32 v{dst}, v{U}, v{U+1}"]
            return o
        a("s_cmp_lg_u32 s54, 0\ns_cbranch_scc1 L_p5_nocs")
        if self.LL2 == 4 and not self.B3B: self.w2_loads()
        if self.LL2 == 5:
            a(f"s_sleep {self.W2SL}")
            self.w2_loads()
        a(f"s_add_u32 s58, s62, {HPC}\ns_add_u32 s60, s58, {4*BS}\ns_add_u32 s61, s58, {8*BS}")
        a("s_barrier")
        ld_, rg_ = hp_gather(False)
        self.poll(ld_, rg_)
        for x in hp_reduce_ops(CSW1): a(x)
        a(f"v_lshlrev_b32 v{B1V}, 16, v{B1V}")
        a("s_branch L_p5_g")
        a("L_p5_nocs:")
        a("s_barrier")
        self.sleep(self.HSL)
        a("L_p5_g:")
        self.sel_layer(58, HPR, 62)
        a(f"s_add_u32 s60, s58, {4*BS}\ns_add_u32 s61, s58, {8*BS}")
        a(f"s_mul_i32 s63, s54, 3\ns_add_u32 s63, s63, s57\ns_add_u32 s63, s63, 1\ns_mul_i32 s63, s63, {BS}\ns_add_u32 s63, s63, s53")
        ld_, rg_ = hp_gather(True)
        self.poll(ld_, rg_, pipe=self.PH)
        self.stamp(8)
        s1, s2 = GB + 14, GB + 15
        H = T[0]
        c1 = self.row16_ops(s1, s2, GB + 12, GB + 13) + self.ln_ops(s1, s2, T[5])
        c2 = hp_reduce_ops(H)
        while c1 or c2:
            if c1: a(c1.pop(0))
            if c1 and len(c1) > 14 and not self.EX: a(c1.pop(0))
            if c2: a(c2.pop(0))
        self.sel_layer(58, ZO, 52)
        if self.EX:
            a(f"v_fma_f32 v{H}, -v{s1}, v{CSW1}, v{H}\nv_fma_f32 v{H}, v{H}, v{s2}, v{B1V}")
        else:
            a(f"v_fma_f32 v{H}, -v{s1}, v{CSW1}, v{H}\nv_mul_f32 v{H}, v{H}, v{s2}")
            self.bf16r(H, H)
            a(f"v_add_f32 v{H}, v{H}, v{B1V}")
            self.bf16r(H, H)
        E = T[1]; N = T[2]; Dn = T[3]
        a(f"v_mul_f32 v{E}, 0x3fb8aa3b, v{H}\nv_exp_f32 v{E}, -|v{E}|")
        a(f"v_cmp_gt_f32 vcc, 0, v{H}\nv_mov_b32 v{T[4]}, 2.0")
        a(f"v_fma_f32 v{N}, v{E}, 2.0, 1.0\nv_add_f32 v{Dn}, 2.0, v{E}\nv_mul_f32 v{Dn}, v{Dn}, v{E}")
        a(f"v_mul_f32 v{E}, v{E}, v{E}\nv_add_f32 v{E}, v{E}, v{E}")
        a(f"v_cndmask_b32 v{N}, v{N}, v{Dn}, vcc\nv_cndmask_b32 v{E}, v{E}, v{T[4]}, vcc")
        a(f"v_add_f32 v{Dn}, v{N}, v{E}\nv_rcp_f32 v{Dn}, v{Dn}\nv_mul_f32 v{N}, v{N}, v{H}\nv_mul_f32 v{N}, v{N}, v{Dn}")
        a(f"v_mov_b32_dpp v{E}, v{N} row_ror:8 {DPPALL}\nv_cvt_pk_bf16_f32 v{T[4]}, v{N}, v{E}")
        self.gemv_bcast(ACC, T[4], WB, 8)
        self.pair32(ACC, T[0], T[1])
        a(f"v_cvt_pk_bf16_f32 v{T[0]}, v{T[0]}, v{T[1]}")
        if self.G4:
            self.gather4(T[0], AB[0])
            a("s_mov_b64 exec, 0xff")
            a(f"buffer_store_dwordx4 {q4(AB[0])}, v{aP32}, {WS}, s58 offen sc1")
        else:
            a("s_mov_b64 exec, s[64:65]")
            a(f"buffer_store_dword v{T[0]}, v{aP32}, {WS}, s58 offen sc1")
        a("s_mov_b64 exec, -1")
        self.stamp(9)
        a("s_barrier")
        a("L_k_next:")
        a("s_cmp_lg_u32 s54, 0\ns_cbranch_scc1 L_final")
        self.dump_stamps()
        a("s_mov_b32 s54, 1")
        a("s_cmp_lg_u32 s3, 2\ns_cbranch_scc1 L_kloop")
        a("s_cmp_lg_u32 s2, 0\ns_cbranch_scc1 L_nogen")
        a(f"s_mov_b64 exec, 1\nv_mov_b32 v{T[0]}, s74\nv_mov_b32 v{T[1]}, {GEN_OFF}")
        a(f"buffer_store_dword v{T[0]}, v{T[1]}, {WS}, 0 offen sc1")
        a("s_mov_b64 exec, -1\nL_nogen:")
        for u in range(3):
            a(f"buffer_load_dword v{GB+4+u}, v{aQG}, {WS}, 0 offen offset:{QP1 + 128*u} sc1")
        a("s_branch L_kloop")
        a("L_final:")
        a("s_cmp_lg_u32 s3, 3\ns_cbranch_scc1 L_fin2\ns_cmp_lg_u32 s4, 0\ns_cbranch_scc1 L_fin2\ns_cmp_ge_u32 s5, 10\ns_cbranch_scc1 L_fin2")
        if self.PERT:
            import struct
            c = hex(struct.unpack('<I', struct.pack('<f', self.PERT / 1000.0))[0])
            if self.PALL: a(f"v_add_f32 v{X0}, {c}, v{X0}\nv_add_f32 v{X1}, {c}, v{X1}")
            else: a(f"s_cmp_lg_u32 s2, 0\ns_cbranch_scc1 L_npert\ns_mov_b64 exec, 1\nv_add_f32 v{X0}, {c}, v{X0}\ns_mov_b64 exec, -1\nL_npert:")
        self.zgather(1, self.FSL)
        a("s_lshl_b32 s58, s5, 7")
        a("s_mov_b64 exec, s[64:65]")
        a(f"buffer_store_dword v{T[4]}, v{aP32}, s[40:43], s58 offen{' sc1' if self.OSC else ''}")
        a("s_mov_b64 exec, -1")
        self.stamp(11)
        if self.AMP:
            a("s_cmp_lg_u32 s2, 0\ns_cbranch_scc1 L_fin2\ns_memrealtime s[96:97]\ns_waitcnt lgkmcnt(0)")
            if self.AMP == 1: a("s_mov_b32 s94, s96")
            a("s_sub_u32 s94, s94, s92\ns_min_u32 s94, s94, 20000")
            a("L_ampl:\ns_memrealtime s[98:99]\ns_waitcnt lgkmcnt(0)\ns_sub_u32 s98, s98, s96\ns_cmp_lt_u32 s98, s94\ns_cbranch_scc1 L_ampl")
        a("L_fin2:")
        self.dump_stamps()
        a("s_endpgm")

        a("L_vloop:")
        a(f"buffer_load_dword v{XA+2}, v{aQG}, {WS}, 0 offen offset:{OP[1]} sc1")
        a("s_cmp_eq_u32 s3, 7\ns_cbranch_scc1 L_v7_b1")
        a(f"v_mov_b32 v{GB}, 0\nv_mov_b32 v{GB+2}, 0\nv_mov_b32 v{GB+3}, 0\ns_add_u32 s58, s53, {7*BS}")
        self.sleep(self.XSL)
        self.poll(["s_mov_b64 exec, s[44:45]", f"buffer_load_dword v{GB}, v{aX2}, {WS}, 0 offen offset:{X2O} sc1",
                   f"buffer_load_dwordx2 v[{GB+2}:{GB+3}], v{aXS}, {WS}, s58 offen offset:{MISC} sc1", "s_mov_b64 exec, -1"], [GB, GB + 2, GB + 3], slp=self.XSLP, pipe=self.PX)
        a("s_barrier")
        self.stamp(1)
        self.qproj(GB, T[0], T[1], self.row16_ops(T[0], T[1], GB + 2, GB + 3))
        if self.Q4:
            self.gather4(T[4], AB[0])
            a("s_mov_b64 exec, 0xff")
            self.local_stores([f"buffer_store_dwordx4 {q4(AB[0])}, v{aST}, {WS}, 0 offen offset:{QP1}{{f}}"])
        else:
            a("s_mov_b64 exec, s[64:65]")
            self.local_stores([f"buffer_store_dword v{T[4]}, v{aST}, {WS}, 0 offen offset:{QP1}{{f}}"])
        a("s_mov_b64 exec, -1")
        self.stamp(3)
        a("s_branch L_v_b2")
        a("L_v7_b1:")
        a("s_barrier")
        a("L_v_b2:")
        a(f"s_and_b32 s58, s3, 3\ns_mul_i32 s58, s58, 768\nv_add_u32 v{T[3]}, s58, v{lane4}")
        a("s_cmp_eq_u32 s54, 0\ns_cbranch_scc1 L_v_b2a\ns_waitcnt vmcnt(0)\nL_v_b2a:")
        a("s_barrier")
        self.stamp(5)
        a(f"ds_read_b128 {q4(GB)}, v{ldsP}\nds_read_b128 {q4(GB+4)}, v{ldsP} offset:16")
        a("s_cmp_lg_u32 s54, 0\ns_cbranch_scc1 L_v_nowo")
        if self.WOE: self.wo_part(self.WOE, 8)
        else: self.wo_loads(self.WS[0])
        a("L_v_nowo:")
        a("s_waitcnt lgkmcnt(0)")
        self.al()
        self.build_A(AB[0], GB)
        for G in range(8):
            nwo = self.WS[0] + (self.WS[1] if G >= 6 else 0) + (self.WS[2] if G >= 7 else 0)
            if G == 6 and self.WS[1]: self.wo_part(self.WS[0], self.WS[0] + self.WS[1])
            if G == 7 and self.WS[2]: self.wo_part(self.WS[0] + self.WS[1], self.WS[0] + self.WS[1] + self.WS[2])
            a(f"s_waitcnt vmcnt({nwo + 21 - 3*G})")
            for th in range(3):
                self.mfma(ACC + 4 * th, AB[G & 1], KV + (G * 3 + th) * 4, G == 0)
                if G + 1 < 8 and th < 2:
                    for d in (2 * th, 2 * th + 1):
                        a(f"v_perm_b32 v{AB[(G+1)&1]+d}, v{GB+G+1}, v{GB+G+1}, v{SEL+d}")
        for th in range(3):
            self.l64(ACC + 4 * th, T[th])
            a(f"ds_write_b32 v{T[3]}, v{T[th]} offset:{L_O + 256*th}")
        self.sel_layer(58, OP)
        a("s_lshl_b32 s60, s54, 6")
        a("s_waitcnt lgkmcnt(0)\ns_barrier")
        self.stamp(6)
        if sum(self.WS) < 8: self.wo_part(sum(self.WS), 8)
        a("s_cmp_ge_u32 s5, 30\ns_cbranch_scc1 L_v_next")
        self.sleep(self.OSL)
        self.poll([f"buffer_load_dwordx4 {q4(GB)}, v{aQG}, {WS}, s58 offen sc1",
                   f"buffer_load_dwordx2 v[{GB+4}:{GB+5}], v{aML}, {WS}, s60 offen offset:{MISC} sc1"], range(GB, GB + 6),
                  spec=[f"v_max_f32_dpp v{T[0]}, v{GB+4}, v{GB+4} {Q1} {DPPALL}", f"v_max_f32_dpp v{T[0]}, v{T[0]}, v{T[0]} {Q2} {DPPALL}", f"v_max_f32_dpp v{T[0]}, v{T[0]}, v{T[0]} {HM} {DPPALL}"], pipe=self.PO)
        if self.B3B: a("s_cmp_lg_u32 s54, 0\ns_cbranch_scc1 L_v_nb3b\ns_barrier\nL_v_nb3b:")
        self.stamp(8)
        M = T[0]; W = T[1]
        a(f"v_sub_f32 v{W}, v{GB+4}, v{M}\nv_exp_f32 v{W}, v{W}\nv_mul_f32 v{W}, v{W}, v{GB+5}")
        a(f"v_mov_b32_dpp v{T[2]}, v{W} row_newbcast:0 {DPPALL}\nv_mov_b32_dpp v{T[3]}, v{W} row_newbcast:1 {DPPALL}")
        a(f"v_cvt_pk_bf16_f32 v{T[2]}, v{T[2]}, v{T[3]}")
        self.build_A(AB[0], T[2])
        self.bf16r(W, W)
        self.mfma(ACC, AB[0], GB, True)
        for c in (Q1, Q2, HM):
            a(f"v_add_f32_dpp v{W}, v{W}, v{W} {c} {DPPALL}")
        a(f"v_rcp_f32 v{W}, v{W}")
        self.pair32(ACC, T[2], T[3])
        a(f"v_mul_f32 v{T[2]}, v{T[2]}, v{W}\nv_mul_f32 v{T[3]}, v{T[3]}, v{W}\nv_cvt_pk_bf16_f32 v{T[4]}, v{T[2]}, v{T[3]}")
        self.gemv_bcast(ACC + 4, T[4], WB, 8)
        a(f"s_and_b32 s58, s3, 3\ns_lshl_b32 s58, s58, 8\nv_add_u32 v{T[3]}, s58, v{lane4}")
        self.l64(ACC + 4, T[0])
        a(f"ds_write_b32 v{T[3]}, v{T[0]} offset:{L_YR}")
        self.sel_layer(58, YO, 52)
        a("s_waitcnt vmcnt(0) lgkmcnt(0)\ns_barrier")
        a("s_cmp_lg_u32 s3, 7\ns_cbranch_scc1 L_v_b5")
        for w in range(4): a(f"ds_read_b32 v{GB+w}, v{lane4} offset:{L_YR + 256*w}")
        a("s_waitcnt lgkmcnt(0)")
        a(f"v_add_f32 v{GB}, v{GB}, v{GB+1}\nv_add_f32 v{GB+2}, v{GB+2}, v{GB+3}\nv_add_f32 v{T[0]}, v{GB}, v{GB+2}")
        a(f"v_mov_b32_dpp v{T[1]}, v{T[0]} row_ror:8 {DPPALL}\nv_cvt_pk_bf16_f32 v{T[0]}, v{T[0]}, v{T[1]}")
        if self.G4:
            self.gather4(T[0], AB[0])
            a("s_mov_b64 exec, 0xff")
            a(f"buffer_store_dwordx4 {q4(AB[0])}, v{aP32}, {WS}, s58 offen sc1")
        else:
            a("s_mov_b64 exec, s[64:65]")
            a(f"buffer_store_dword v{T[0]}, v{aP32}, {WS}, s58 offen sc1")
        a("s_mov_b64 exec, -1")
        self.stamp(9)
        a("L_v_b5:")
        a("s_cmp_lg_u32 s54, 0\ns_cbranch_scc1 L_v_b5b")
        self.v_fetch_wq()
        self.dump_stamps()
        a("L_v_b5b:")
        a("s_barrier\ns_barrier")
        a("s_cmp_lg_u32 s54, 0\ns_cbranch_scc1 L_fin2")
        a("s_mov_b32 s54, 1\ns_branch L_vloop")
        a("L_v_next:")
        a("s_cmp_lg_u32 s54, 0\ns_cbranch_scc1 L_fin2")
        self.v_fetch_wq()
        self.dump_stamps()
        a("s_mov_b32 s54, 1\ns_sleep 48\ns_branch L_vloop")
        self.flush_ool()
        a("L_end:\ns_endpgm")
        a('.section .rodata,"a"\n.p2align 6')
        a(f".amdhsa_kernel {KNAME}")
        a(".amdhsa_next_free_vgpr 256\n.amdhsa_next_free_sgpr 102\n.amdhsa_accum_offset 256\n.amdhsa_group_segment_fixed_size 0\n.amdhsa_kernarg_size 96")
        a(".amdhsa_user_sgpr_count 2\n.amdhsa_user_sgpr_kernarg_segment_ptr 1\n.amdhsa_system_sgpr_workgroup_id_x 1\n.end_amdhsa_kernel")
        return a.render()

    def code_prefetch(self):
        a = self.a
        le = self.L("cpf")
        a(f"s_cmp_lg_u32 s3, 1\ns_cbranch_scc1 {le}\ns_cmp_lg_u32 s54, 0\ns_cbranch_scc1 {le}")
        a("s_getpc_b64 s[72:73]")
        a("L_pcref:")
        a(f"s_sub_u32 s72, s72, L_pcref-{KNAME}\ns_subb_u32 s73, s73, 0")
        a(f"v_lshlrev_b32 v{T[0]}, 5, v0\nv_add_u32 v{T[0]}, s5, v{T[0]}\nv_lshlrev_b32 v{T[0]}, 7, v{T[0]}")
        a(f"v_mov_b32 v{T[1]}, L_end-{KNAME}\nv_cmp_lt_u32 vcc, v{T[0]}, v{T[1]}\ns_and_b64 exec, vcc, exec")
        a(f"global_load_dword v{XA+5}, v{T[0]}, s[72:73] sc1")
        a("s_mov_b64 exec, -1")
        a(f"{le}:")

    def v_prologue(self):
        a = self.a
        if "dbl" in self.knobs:
            a(f"v_mul_u32_u24 v{T[0]}, 384, v2\nv_lshl_add_u32 v{T[0]}, v1, 4, v{T[0]}\ns_sub_u32 s61, s59, {6144*384}")
            for srd in ("s[12:15]", "s[16:19]"):
                for n in range(24):
                    rg, th = divmod(n, 3)
                    if th == 0: a(f"s_add_u32 s58, s61, {rg*8*384}")
                    a(f"buffer_load_dwordx4 {q4(KV+4*n)}, v{T[0]}, {srd}, s58 offen offset:{th*128} nt")
            a("s_waitcnt vmcnt(12)")
        self.k_dma()
        for n in range(24):
            rg, th = divmod(n, 3)
            if n == self.NB:
                a(f"s_lshl_b32 s60, s3, 2\nv_mov_b32 v{T[2]}, s60\nv_mov_b32 v{T[3]}, 1")
                a(f"s_waitcnt vmcnt({self.NB})\nds_write_b32 v{T[2]}, v{T[3]} offset:{L_CTRL}")
                self.stamp(11)
            if th == 0: a(f"s_add_u32 s58, s59, {rg*8*384}")
            a(f"buffer_load_dwordx4 {q4(KV+4*n)}, v{T[4]}, s[16:19], s58 offen offset:{th*128} nt")
        self.stamp(1)
        if self.knobs & {"lo1", "lo2", "lo3"}:
            if "wo" in self.knobs:
                self.wo_loads()
                a("s_waitcnt vmcnt(8)")
                self.stamp(5)
            a("s_waitcnt vmcnt(0)")
            self.stamp(6)
            a("s_branch L_fin2")
        if self.WOE: self.wo_loads(self.WOE)
        if self.PRI == 1: a("s_setprio 1")
        self.consts()
        self.vwave_addrs()
        a("s_branch L_v_b2")

    def v_fetch_wq(self):
        a = self.a
        a(f"s_and_b32 s58, s3, 3\ns_min_u32 s58, s58, 2\ns_mul_i32 s58, s58, 10752\ns_add_u32 s58, s58, {L_WQ}\nv_lshlrev_b32 v{T[0]}, 4, v0\nv_add_u32 v{T[0]}, s58, v{T[0]}")
        for t in range(10):
            a(f"ds_read_b128 {q4(WA+4*t)}, v{T[0]} offset:{1024*t}")
        a(f"v_add_u32 v{T[1]}, s58, v{lane4}\nds_read_b32 v{CS0}, v{T[1]} offset:10240\nds_read_b32 v{CS1}, v{T[1]} offset:10496")
        self.read_fast()
        a(f"s_add_u32 s58, s53, {7*BS}\nbuffer_load_dword v{XA+3}, v{aX2}, {WS}, 0 offen offset:{X2O} sc1\nbuffer_load_dword v{XA+4}, v{aXS}, {WS}, s58 offen offset:{MISC} sc1")

    def zgather(self, layer, slp):
        a = self.a
        a(f"s_mul_i32 s58, s56, {BS}\ns_add_u32 s60, s58, {10*BS}\ns_add_u32 s61, s58, {20*BS}")
        self.sleep(slp)
        self.poll([f"buffer_load_dwordx4 {q4(GB+4*n)}, v{aROW}, {WS}, s{(58,60,61)[n]} offen offset:{ZO[layer]} sc1" for n in range(3)], range(GB, GB + 12),
                  spec=[self.mfma_s(ACC, ONES, GB + 4 * n, n == 0) for n in range(3)], pipe=self.PZ)
        self.stamp(10 if layer else 1)
        self.resid_add()

REF = "interleave_layers__sliding_block_cached__dense_activation_mish__decode.s.ref"
HEADER = open(REF).read().split("; Override")[0] if os.path.exists(REF) else ""

if __name__ == "__main__":
    prof = {"prof": 1, "lite": 3}.get(sys.argv[2], 0) if len(sys.argv) > 2 else 0
    open(sys.argv[1], "w").write(HEADER + Gen(prof, sys.argv[3:]).gen())
```

```python
import re

_REG = re.compile(r'\b([vsa])(\d+)\b|\b([vsa])\[(\d+):(\d+)\]|\b(vcc|exec|m0|scc)\b')
TRANS = ('v_exp_f32', 'v_log_f32', 'v_rcp_f32', 'v_rsq_f32', 'v_sqrt_f32', 'v_sin_f32', 'v_cos_f32')

def regs_of(op):
    out = set()
    for m in _REG.finditer(op):
        if m.group(1):
            out.add((m.group(1), int(m.group(2))))
        elif m.group(3):
            for i in range(int(m.group(4)), int(m.group(5)) + 1):
                out.add((m.group(3), i))
        else:
            out.add((m.group(6), 0))
    return out

class Ins:
    def __init__(self, text):
        self.text = text
        t = text.split(';')[0].strip()
        parts = t.split(None, 1)
        self.mn = parts[0]
        rest = parts[1] if len(parts) > 1 else ''
        ops = [o.strip() for o in rest.split(',')] if rest else []
        self.ops = ops
        mn = self.mn
        self.smf = mn.startswith('v_smfmac')
        self.mfma = mn.startswith('v_mfma') or self.smf
        self.valu = mn.startswith('v_') and not self.mfma
        self.trans = any(mn.startswith(x) for x in TRANS)
        self.dpp = ('row_' in rest) or ('quad_perm' in rest)
        self.permlane = mn.startswith('v_permlane')
        self.readlane = mn.startswith('v_readlane') or mn.startswith('v_readfirstlane')
        self.vmem = mn.startswith('buffer_') or mn.startswith('global_')
        self.ds = mn.startswith('ds_')
        self.salu = mn.startswith('s_')
        self.ldsdma = self.vmem and re.search(r'\blds\b', rest) is not None
        self.w = set(); self.r = set(); self.srcC = set(); self.srcAB = set(); self.storedata = set()
        allr = [regs_of(o) for o in ops]
        if self.smf:
            self.w = allr[0]; self.srcAB = allr[1] | allr[2] | allr[3]; self.srcC = allr[0]; self.r = self.srcAB | self.srcC
        elif self.mfma:
            self.w = allr[0]; self.srcAB = allr[1] | allr[2]; self.srcC = allr[3]; self.r = self.srcAB | self.srcC
        elif self.permlane:
            self.w = allr[0] | allr[1]; self.r = allr[0] | allr[1]
        elif self.valu:
            self.w = allr[0]
            for a in allr[1:]: self.r |= a
            if mn.startswith('v_cmp') and not e64(ops[0]): pass
            if mn.startswith('v_fmac') or mn.startswith('v_dot2c'): self.r |= allr[0]
            if mn.startswith('v_cndmask') and len(ops) == 3: self.r.add(('vcc', 0))
            if mn.startswith('v_add_co') or mn.startswith('v_addc_co') or mn.startswith('v_sub_co'):
                self.w = allr[0] | allr[1]
        elif self.vmem:
            if 'store' in mn or ('atomic' in mn):
                for a in allr: self.r |= a
                if 'x4' in mn or 'x3' in mn:
                    self.storedata = allr[0] if mn.startswith('buffer_') else allr[1]
            elif self.ldsdma:
                for a in allr: self.r |= a
                self.r.add(('m0', 0))
            else:
                self.w = allr[0]
                for a in allr[1:]: self.r |= a
        elif self.ds:
            if 'write' in mn or 'add' in mn:
                for a in allr: self.r |= a
            else:
                self.w = allr[0]
                for a in allr[1:]: self.r |= a
        elif self.salu:
            if mn.startswith('s_cmp') or mn.startswith('s_cbranch') or mn in ('s_branch', 's_nop', 's_waitcnt', 's_barrier', 's_sleep', 's_setprio', 's_endpgm'):
                for a in allr: self.r |= a
            elif allr:
                self.w = allr[0]
                for a in allr[1:]: self.r |= a
        self.states = 1
        if mn == 's_nop': self.states = int(ops[0], 0) + 1

def e64(op): return False

def need(P, C):
    n = 0
    def vg(s): return {x for x in s if x[0] in 'va'}
    def sg(s): return {x for x in s if x[0] in ('s', 'vcc')}
    if P.valu:
        wv = vg(P.w)
        if wv:
            if C.valu and C.dpp and (wv & C.r): n = max(n, 2)
            if C.permlane and (wv & C.r): n = max(n, 2)
            if C.readlane and (wv & C.r): n = max(n, 1)
            if P.trans and (C.valu or C.vmem or C.ds or C.mfma) and (wv & C.r): n = max(n, 1)
            if C.mfma and (wv & C.r): n = max(n, 2)
        ws = sg(P.w)
        if ws:
            if C.valu and (ws & C.r): n = max(n, 4 if C.readlane else 2)
            if C.vmem and (ws & C.r): n = max(n, 5)
            if C.salu and (ws & C.r): n = max(n, 1)
    if P.mfma:
        D = P.w
        if C.mfma:
            if D & C.srcAB: n = max(n, 8)
            if D & C.srcC and C.srcC != D: n = max(n, 6)
            if D & C.w and C.srcC != D: n = max(n, 6)
        elif (C.valu or C.vmem or C.ds) and (D & (C.r | C.w)): n = max(n, 8)
        if C.valu and (P.srcC & C.w): n = max(n, 3)
    if P.salu and ('m0', 0) in P.w and C.ldsdma: n = max(n, 1)
    if P.storedata and (P.storedata & C.w): n = max(n, 2)
    return n

class Asm:
    def __init__(self):
        self.items = []
    def __call__(self, text):
        for line in text.strip().split('\n'):
            line = line.strip()
            if not line: continue
            if line.startswith(';') or line.startswith('.'):
                self.items.append(('raw', line))
            elif line.endswith(':'):
                self.items.append(('l', line[:-1]))
            else:
                self.items.append(('i', Ins(line)))
    def label(self, n): self.items.append(('l', n))
    def render(self):
        out = []
        hist = []
        pend = {}
        WINDOW = 10
        for kind, x in self.items:
            if kind == 'raw':
                out.append(x); continue
            if kind == 'l':
                out.append(x + ':')
                if x in pend:
                    hist = hist + pend.pop(x)
                continue
            req = 0
            for P, d in hist:
                r = need(P, x) - d
                if r > req: req = r
            if req > 0:
                out.append(f'    s_nop {req-1}')
                hist = [(P, d + req) for P, d in hist]
            out.append('    ' + x.text)
            hist = [(P, d + x.states) for P, d in hist if d + x.states < WINDOW]
            if x.mn.startswith('s_cbranch') or x.mn == 's_branch':
                tgt = x.ops[0]
                pend.setdefault(tgt, [])
                pend[tgt] += list(hist)
                if x.mn == 's_branch': hist = []
            elif x.mn == 's_endpgm':
                hist = []
            else:
                hist.append((x, 0))
        return '\n'.join(out) + '\n'
```

```python
import sys, os
sys.path.insert(0, "gen")
from asmlib import Asm

KNAME = "interleave_layers__sliding_block_cached__dense_activation_mish__decode_kernel"
BS = 4736
YO = [0, 128]; ZO = [256, 384]
QP1 = 512
OP = [896, 1280]
MISC = 1664
HPR = [1792, 2048]; HPC = 2304
X2O = 2560
CLR_END = 2816
QP0T = 3072
GEN_OFF = 256 * BS
FL1 = GEN_OFF + 4096; FL2 = GEN_OFF + 8192
WS_USED = GEN_OFF + 12288
PROF_OFF = 2 << 20
L_CTRL = 0
L_ML = 128
L_P = 256
L_O = 1024
L_YR = 4096
L_Q = 5120
L_K = 8192
L_WQ = L_K + 98304
LDS_BYTES = L_WQ + 3 * 10752
POLL_LIMIT = 200000
ONES = 4; SEL = 8; AB = [12, 16]; ACC = 20; GB = 36; XA = 60
aQG = 70; aP32 = 71; aROW = 72; aML = 73; aST = 74; ldsP = 75; lane4 = 76
CS0 = 77; CS1 = 78; X0 = 64; X1 = 66; QFA = 79; aS2 = 80; B1V = 81; CSW1 = 82
T = [83, 84, 85, 86, 87, 1, 2, 3]
aX2 = 68; aXS = 69
MK0 = 56; MK1 = 57; IDX = 58; IDQ = 59
KV = 88; WA = 184; WB = 224
WS = "s[48:51]"

DOC = """
Persistent fused kernel (generated by the author's own script): 256 workgroups x 8 waves, one per CU.
K, V and all weight slices are read from HBM once and stay in registers / LDS for both layer passes.
 wg = 8*m + xg : xg = group (expected XCD), head = 4*xg + m/8, key chunk = m%8 (256 keys).
 waves 0-3 ("K"): QK + softmax, partial combine, w1 / w2 GEMVs ; waves 4-7 ("V"): streaming, PV, wo and wq GEMVs.
GEMVs over [k][n] weights use v_mfma_f32_16x16x32_bf16 with a selector A operand (one non-zero per row).
LayerNorm is applied after the GEMV by linearity (rstd * (x.W - mean * colsum(W))).
Hand-offs go through d_ws: slots are cleared to 0xFFFFFFFF at kernel start and polled dword by dword;
a launch-unique tag (derived from one word of d_ws) validates the start-up flags and the first q exchange.
Group-local hand-offs use plain stores only if every member reported the same XCC id, else write-through stores.
Every poll loop is bounded.
"""

def q4(r): return f"v[{r}:{r+3}]"
DPPALL = "row_mask:0xf bank_mask:0xf"
Q1 = "quad_perm:[1,0,3,2]"; Q2 = "quad_perm:[2,3,0,1]"; HM = "row_half_mirror"; RM = "row_mirror"

class Gen:
    def __init__(self, prof=0, knobs=()):
        self.knobs = set(knobs)
        self.LL = 4; self.LL2 = 4; self.W2SL = 16; self.FS3 = 0; self.FKEEP = 4; self.OS0 = -1; self.X30 = -1; self.LAY = 1; self.EX = 1; self.PERT = 0; self.PALL = 0; self.PRI = 0; self.WOE = 0; self.WSP = 800; self.AMP = 0; self.B0IT = 0; self.B3B = 1; self.Q4 = 0; self.G4 = 0; self.PQ = 0; self.PO = 1; self.PX = 0; self.PH = 1; self.PZ = 0; self.PGAP = 12; self.TR = 1; self.XSLP = 0; self.Q1ST = 1; self.QPW = 0; self.FLSL = 127; self.QFB = 5; self.CPF0 = 1; self.B0E = 1; self.B0N = 0; self.OSC = 0; self.AL = 1; self.ALP = 3; self.SHIFT = 0; self.CPF = 0; self.NB = 8; self.QSLEEP0 = 56; self.QSLEEP1 = 24
        self.QSL = 9; self.OSL = 8; self.YSL0 = 16; self.YSL = 14; self.HSL = 7; self.ZSL = 11; self.XSL = 26; self.FSL = 8
        for k in knobs:
            if '=' in k: setattr(self, k.split('=')[0], int(k.split('=')[1]))
        self.WS = [self.WSP // 100, self.WSP // 10 % 10, self.WSP % 10]
        self.FSLOT = (0, 2, 3) if self.FS3 else (1, 3)
        self.a = Asm(); self.prof = prof; self.uid = 0; self.ool = []
    def L(self, base):
        self.uid += 1
        return f"L_{base}_{self.uid}"
    def stamp(self, i):
        if self.prof == 3 and i not in (0, 6, 11): return
        if self.prof: self.a(f"s_memrealtime s[{76+2*i}:{77+2*i}]")
    def al(self, n=3):
        if self.AL: self.a(f".p2align {n}")
    def sleep(self, n):
        if n: self.a(f"s_sleep {n}")
    def dump_stamps(self):
        if not self.prof: return
        a = self.a
        a("s_waitcnt lgkmcnt(0)")
        a(f"v_mov_b32 v{T[0]}, 0")
        for i in range(13):
            a(f"v_writelane_b32 v{T[0]}, s{76+2*i}, {i}")
        a("s_lshl_b32 s58, s2, 3\ns_add_u32 s58, s58, s3\ns_lshl_b32 s58, s58, 1\ns_add_u32 s58, s58, s54\ns_lshl_b32 s58, s58, 6")
        a(f"s_add_u32 s58, s58, {PROF_OFF}")
        a("s_mov_b64 exec, 0xffff")
        a(f"buffer_store_dword v{T[0]}, v{lane4}, {WS}, s58 offen")
        a("s_mov_b64 exec, -1")
        for i in range(13):
            a(f"s_mov_b64 s[{76+2*i}:{77+2*i}], 0")
    def dump0(self):
        if not self.prof: return
        l = self.L("nd")
        self.a(f"s_cmp_lg_u32 s54, 0\ns_cbranch_scc1 {l}")
        self.dump_stamps()
        self.a(f"{l}:")
    def local_stores(self, lines):
        a = self.a
        ls, ld = self.L("sl"), self.L("sd")
        a(f"s_cmp_eq_u32 s55, 0\ns_cbranch_scc1 {ls}")
        for x in lines: a(x.replace("{f}", ""))
        a(f"{ld}:")
        self.ool.append([f"{ls}:", "s_nop 7"] + [x.replace("{f}", " sc1") for x in lines] + ["s_nop 1", f"s_branch {ld}"])
    def poll(self, loads, regs, entry=None, slp=0, spec=(), pipe=0):
        a = self.a
        lp, lr, ld = self.L("poll"), self.L("retry"), self.L("got")
        a("s_mov_b32 s70, 0")
        nld = sum(1 for x in loads if x.startswith("buffer_"))
        post = []
        if pipe:
            for _ in range(pipe):
                for x in loads: a(x)
                a(f"s_nop {self.PGAP}\ns_nop {self.PGAP}")
            post = list(spec); spec = ()
        a(f"{lp}:")
        for x in loads: a(x)
        if self.TR and not slp:
            a(f"s_add_u32 s70, s70, 1\ns_cmp_lt_u32 s70, {POLL_LIMIT}\ns_cbranch_scc0 {lr}")
        if entry: a(f"{entry}:")
        self.al(self.ALP)
        a(f"s_nop 0\ns_waitcnt vmcnt({nld * pipe})")
        t = T[7]
        rs = list(regs)
        chk = []
        if len(rs) == 1:
            chk.append(f"v_cmp_eq_u32 vcc, -1, v{rs[0]}")
        else:
            if len(rs) == 2:
                chk.append(f"v_max_u32 v{t}, v{rs[0]}, v{rs[1]}"); rs = []
            else:
                chk.append(f"v_max3_u32 v{t}, v{rs[0]}, v{rs[1]}, v{rs[2]}"); rs = rs[3:]
            while rs:
                if len(rs) >= 2:
                    chk.append(f"v_max3_u32 v{t}, v{t}, v{rs[0]}, v{rs[1]}"); rs = rs[2:]
                else:
                    chk.append(f"v_max_u32 v{t}, v{t}, v{rs[0]}"); rs = rs[1:]
            chk.append(f"v_cmp_eq_u32 vcc, -1, v{t}")
        spec = list(spec)
        while spec or chk:
            if spec: a(spec.pop(0))
            for _ in range(2):
                if chk: a(chk.pop(0))
        if self.TR and not slp:
            a(f"s_cbranch_vccnz {lp}")
            a(f"{ld}:")
            for x in post: a(x)
            self.ool.append([f"{lr}:", "s_waitcnt vmcnt(0)", f"s_branch {ld}"])
            return
        a(f"s_cbranch_vccnz {lr}")
        a(f"{ld}:")
        self.ool.append([f"{lr}:", f"s_sleep {slp}" if slp else "s_nop 7", f"s_add_u32 s70, s70, 1", f"s_cmp_lt_u32 s70, {POLL_LIMIT}", f"s_cbranch_scc1 {lp}", f"s_branch {ld}"])
    def mfma_s(self, D, A, B, first):
        return f"v_mfma_f32_16x16x32_bf16 {q4(D)}, {q4(A)}, {q4(B)}, {'0' if first else q4(D)}"
    def flush_ool(self):
        for blk in self.ool:
            for x in blk: self.a(x)
        self.ool = []
    def build_A(self, dst, src):
        for d in range(4):
            self.a(f"v_perm_b32 v{dst+d}, v{src}, v{src}, v{SEL+d}")
    def mfma(self, D, A, B, first):
        self.a(f"v_mfma_f32_16x16x32_bf16 {q4(D)}, {q4(A)}, {q4(B)}, {'0' if first else q4(D)}")
    def pair32(self, D, t0, t1):
        self.a(f"v_add_f32_dpp v{t0}, v{D+1}, v{D} row_ror:8 {DPPALL}")
        self.a(f"v_add_f32_dpp v{t1}, v{D+3}, v{D+2} row_ror:8 {DPPALL}")
    def l64(self, D, t):
        self.a(f"v_add_f32_dpp v{t}, v{D+1}, v{D} row_ror:8 row_mask:0xf bank_mask:0x3")
        self.a(f"v_add_f32_dpp v{t}, v{D+2}, v{D+3} row_ror:8 row_mask:0xf bank_mask:0xc")
    def smf_s(self, D, A, B, idx):
        return f"v_smfmac_f32_16x16x64_bf16 {q4(D)}, {q4(A)}, v[{B}:{B+7}], v{idx}"
    def zero(self, D, n=4):
        for i in range(n): self.a(f"v_mov_b32 v{D+i}, 0")
    def gemv_bcast(self, D, pair, W, n, fill=()):
        a = self.a
        fill = list(fill)
        self.al()
        m = n // 2
        for k in range(m):
            A = AB[k & 1]
            for d in range(4):
                a(f"v_and_b32_dpp v{A+d}, v{pair}, v{MK0 + (d & 1)} row_newbcast:{2*k + (d >> 1)} {DPPALL}")
                if d == 1 and k > 0: a(self.smf_s(D, AB[(k-1) & 1], W + 8 * (k-1), IDX))
                if fill and d in self.FSLOT and len(fill) > self.FKEEP: a(fill.pop(0))
        for _ in range(2):
            if fill: a(fill.pop(0))
        a(self.smf_s(D, AB[(m-1) & 1], W + 8 * (m-1), IDX))
        for x in fill: a(x)
    def rho(self, dst, tmp, hi):
        a = self.a
        a(f"v_bfe_u32 v{dst}, v0, 3, 1\nv_lshrrev_b32 v{tmp}, 5, v0\nv_lshl_add_u32 v{dst}, v{tmp}, 1, v{dst}")
        a(f"v_bfe_u32 v{tmp}, v0, 4, 1\nv_lshl_add_u32 v{dst}, v{tmp}, {hi.bit_length()-1}, v{dst}")
    def bf16r_ops(self, dst, src):
        return [f"v_cvt_pk_bf16_f32 v{dst}, v{src}, v{src}", f"v_lshlrev_b32 v{dst}, 16, v{dst}"]
    def bf16r(self, dst, src):
        for x in self.bf16r_ops(dst, src): self.a(x)
    def ln_ops(self, s1, s2, t):
        inv = "0x3acccccd"
        if self.EX:
            return [f"v_mul_f32 v{s1}, {inv}, v{s1}", f"v_mul_f32 v{s2}, {inv}, v{s2}", f"v_fma_f32 v{s2}, -v{s1}, v{s1}, v{s2}",
                    f"v_max_f32 v{s2}, 0, v{s2}", f"v_add_f32 v{s2}, 0x3727c5ac, v{s2}", f"v_rsq_f32 v{s2}, v{s2}"]
        return [f"v_mul_f32 v{s1}, {inv}, v{s1}", f"v_mul_f32 v{s2}, {inv}, v{s2}", f"v_fma_f32 v{s2}, -v{s1}, v{s1}, v{s2}",
                f"v_max_f32 v{s2}, 0, v{s2}", f"v_cvt_pk_bf16_f32 v{t}, v{s1}, v{s2}", f"v_lshlrev_b32 v{s1}, 16, v{t}",
                f"v_and_b32 v{s2}, 0xffff0000, v{t}", f"v_add_f32 v{s2}, 0x3727c5ac, v{s2}"] + self.bf16r_ops(s2, s2) + \
               [f"v_sqrt_f32 v{s2}, v{s2}"] + self.bf16r_ops(s2, s2) + [f"v_rcp_f32 v{s2}, v{s2}"]
    def red2_ops(self, s1, s2, steps, tmp):
        return [f"v_permlane32_swap_b32 v{s1}, v{s2}", f"v_add_f32 v{s1}, v{s1}, v{s2}", f"v_mov_b32 v{tmp}, v{s1}",
                f"v_permlane16_swap_b32 v{s1}, v{tmp}", f"v_add_f32 v{s1}, v{s1}, v{tmp}"] + \
               [f"v_add_f32_dpp v{s1}, v{s1}, v{s1} {c} {DPPALL}" for c in steps]
    def row16_ops(self, s1, s2, i1=None, i2=None):
        out = []
        for c in (Q1, Q2, HM, RM):
            a1 = i1 if (c == Q1 and i1 is not None) else s1
            a2 = i2 if (c == Q1 and i2 is not None) else s2
            out += [f"v_add_f32_dpp v{s1}, v{a1}, v{a1} {c} {DPPALL}", f"v_add_f32_dpp v{s2}, v{a2}, v{a2} {c} {DPPALL}"]
        return out
    def allred64(self, op, v, tmp):
        a = self.a
        for c in (Q1, Q2, HM, RM):
            a(f"{op}_dpp v{v}, v{v}, v{v} {c} {DPPALL}")
        a(f"v_mov_b32 v{tmp}, v{v}\nv_permlane16_swap_b32 v{v}, v{tmp}\n{op} v{v}, v{v}, v{tmp}")
        a(f"v_mov_b32 v{tmp}, v{v}\nv_permlane32_swap_b32 v{v}, v{tmp}\n{op} v{v}, v{v}, v{tmp}")
    def sel_layer(self, dst, arr, add=None):
        a = self.a
        a(f"s_mul_i32 s{dst}, s54, {arr[1]-arr[0]}")
        if arr[0]: a(f"s_add_u32 s{dst}, s{dst}, {arr[0]}")
        if add is not None: a(f"s_add_u32 s{dst}, s{dst}, s{add}")
    def lds_wait_flag(self, off, val=None, fb=0):
        a = self.a
        lp, ld = self.L("lw"), self.L("lg")
        t = T[5]; t2 = T[6]
        a(f"v_mov_b32 v{t2}, {off}\ns_mov_b32 s70, 0")
        a(f"{lp}:\nds_read_b32 v{t}, v{t2}\ns_waitcnt lgkmcnt(0)\nv_readfirstlane_b32 s58, v{t}")
        a(f"s_cmp_lg_u32 s58, 0\ns_cbranch_scc1 {ld}" if val is None else f"s_cmp_eq_u32 s58, {val}\ns_cbranch_scc1 {ld}")
        a("s_sleep 1\ns_add_u32 s70, s70, 1")
        if fb: self.q_fallback(fb)
        a(f"s_cmp_lt_u32 s70, {4*POLL_LIMIT}\ns_cbranch_scc1 {lp}")
        a(f"{ld}:")
    def q_fallback(self, thresh):
        a = self.a
        QD = XA + 6
        le = self.L("qfb")
        a(f"s_cmp_lt_u32 s70, {thresh}\ns_cbranch_scc1 {le}\ns_cmp_lg_u32 s71, 0\ns_cbranch_scc1 {le}\ns_cmp_eq_u32 s3, 3\ns_cbranch_scc1 {le}")
        a("s_mov_b32 s71, 1\ns_mov_b64 exec, s[64:65]")
        a(f"buffer_store_dwordx2 v[{QD}:{QD+1}], v{QFA}, {WS}, s63 offen offset:{QP0T} sc1")
        a(f"s_mov_b64 exec, -1\ns_waitcnt vmcnt(0)\n{le}:")
    def read_fast(self):
        self.a(f"v_mov_b32 v{T[2]}, {L_CTRL+4}\nds_read_b32 v{T[2]}, v{T[2]}\ns_waitcnt lgkmcnt(0)\nv_readfirstlane_b32 s55, v{T[2]}\ns_lshr_b32 s55, s55, 1")
    def make_tag(self):
        self.a("s_waitcnt lgkmcnt(0)\ns_mul_i32 s74, s74, 1664525\ns_add_u32 s74, s74, 1013904223")
    def sum_spec(self):
        return [f"v_mfma_f32_16x16x32_bf16 {q4(ACC)}, {q4(ONES)}, {q4(GB)}, {q4(X0)}"] + [self.mfma_s(ACC, ONES, GB + 4 * n, False) for n in (1, 2)]
    def resid_add(self):
        self.pair32(ACC, T[2], T[3])
        self.a(f"v_cvt_pk_bf16_f32 v{T[4]}, v{T[2]}, v{T[3]}")
    def gather4(self, src, Q):
        a = self.a
        a(f"v_mov_b32 v{Q}, v{src}\nv_mov_b32 v{Q+1}, v{src}")
        a(f"v_permlane16_swap_b32 v{Q}, v{Q+1}")
        a(f"v_mov_b32 v{Q+2}, v{Q}\nv_mov_b32 v{Q+3}, v{Q+1}")
        a(f"v_permlane32_swap_b32 v{Q}, v{Q+2}\nv_permlane32_swap_b32 v{Q+1}, v{Q+3}")
    def unpackX_ops(self, src):
        return [f"v_lshlrev_b32 v{X0}, 16, v{src}", f"v_and_b32 v{X1}, 0xffff0000, v{src}"]
    def xstats_ops(self, s1, s2, tmp):
        return [f"v_add_f32 v{s1}, v{X0}, v{X1}", f"v_mul_f32 v{s2}, v{X0}, v{X0}", f"v_fmac_f32 v{s2}, v{X1}, v{X1}"] + self.red2_ops(s1, s2, (Q1, Q2, HM), tmp)
    def rows24_loads(self, off_arr):
        a = self.a
        self.sel_layer(58, off_arr)
        a(f"s_mul_i32 s60, s56, {BS}\ns_add_u32 s58, s58, s60\ns_add_u32 s60, s58, {10*BS}\ns_add_u32 s61, s58, {20*BS}")
        return [f"buffer_load_dwordx4 {q4(GB+4*n)}, v{aROW}, {WS}, s{(58,60,61)[n]} offen sc1" for n in range(3)]
    def consts(self):
        a = self.a
        t0, t1, t2 = T[0], T[1], T[2]
        a(f"v_and_b32 v{t0}, 1, v0\nv_mul_u32_u24 v{t0}, 0x202, v{t0}\nv_add_u32 v{t0}, 0x100, v{t0}")
        a(f"v_bfe_u32 v{t1}, v0, 1, 1\nv_lshlrev_b32 v{t1}, 4, v{t1}\nv_lshlrev_b32 v{t0}, v{t1}, v{t0}")
        a(f"v_mov_b32 v{t2}, 0x0c0c0000\nv_lshrrev_b32 v{t2}, v{t1}, v{t2}\nv_or_b32 v{t0}, v{t0}, v{t2}")
        a(f"v_bfe_u32 v{t1}, v0, 2, 2\nv_mov_b32 v{t2}, 0x0c0c0c0c")
        for d in range(4):
            a(f"v_cmp_eq_u32 vcc, {d}, v{t1}\nv_cndmask_b32 v{SEL+d}, v{t2}, v{t0}, vcc")
        a(f"v_mov_b32 v{t0}, 0x3f803f80")
        self.build_A(ONES, t0)
        a(f"v_and_b32 v{t0}, 1, v0\nv_lshlrev_b32 v{t0}, 4, v{t0}\nv_mov_b32 v{t1}, 0xffff\nv_lshlrev_b32 v{t0}, v{t0}, v{t1}")
        a(f"v_and_b32 v{t1}, 8, v0\nv_cmp_eq_u32 vcc, 0, v{t1}\nv_mov_b32 v{t2}, 0")
        a(f"v_cndmask_b32 v{MK0}, v{t2}, v{t0}, vcc\nv_cndmask_b32 v{MK1}, v{t0}, v{t2}, vcc")
        a(f"v_mov_b32 v{t0}, 0x4444\nv_mov_b32 v{t1}, 0xeeee\nv_cndmask_b32 v{IDQ}, v{t1}, v{t0}, vcc")
        a(f"v_bfe_u32 v{t0}, v0, 1, 2\nv_mul_u32_u24 v{IDX}, 0x5555, v{t0}")
    def kwave_addrs(self):
        a = self.a
        t0, t1, t2 = T[0], T[1], T[2]
        a(f"v_lshrrev_b32 v{t0}, 3, v0\nv_and_b32 v{t1}, 7, v0\ns_mov_b32 s58, {32*BS}\nv_mul_lo_u32 v{aROW}, s58, v{t0}\nv_lshl_add_u32 v{aROW}, v{t1}, 4, v{aROW}")
        a(f"v_mul_u32_u24 v{aX2}, {BS}, v{t1}\nv_lshrrev_b32 v{t1}, 4, v0\nv_lshl_add_u32 v{aX2}, v{t1}, 6, v{aX2}")
        a(f"s_lshl_b32 s58, s56, 2\ns_add_u32 s58, s58, s53\nv_add_u32 v{aX2}, s58, v{aX2}")
        a(f"v_bfe_u32 v{t0}, v0, 3, 1\nv_lshl_add_u32 v{t0}, v{t0}, 2, v{t1}\nv_mul_u32_u24 v{aQG}, {BS}, v{t0}")
        a(f"v_and_b32 v{t0}, 7, v0\nv_lshl_add_u32 v{aQG}, v{t0}, 4, v{aQG}")
        a(f"s_mul_i32 s58, s6, {8*BS}\ns_add_u32 s58, s58, s53\nv_add_u32 v{aQG}, s58, v{aQG}")
        a(f"v_bfe_u32 v{t0}, v0, 2, 2\nv_lshlrev_b32 v{ldsP}, 5, v{t0}\nv_lshl_add_u32 v{ldsP}, v{t1}, 3, v{ldsP}\nv_and_b32 v{t0}, 3, v0\nv_lshl_add_u32 v{ldsP}, v{t0}, 1, v{ldsP}")
        a(f"s_lshl_b32 s58, s3, 7\ns_add_u32 s58, s58, {L_P}\nv_add_u32 v{ldsP}, s58, v{ldsP}")
        a(f"v_and_b32 v{t0}, 15, v0\nv_mul_u32_u24 v{aML}, {BS}, v{t1}\nv_lshl_add_u32 v{aML}, v{t0}, 4, v{aML}")
        a(f"v_lshlrev_b32 v{aST}, 4, v{t0}\nv_lshl_add_u32 v{aST}, v{t1}, 2, v{aST}\nv_lshlrev_b32 v{aXS}, 3, v{t0}")
        a(f"v_and_b32 v{QFA}, 7, v0\nv_lshlrev_b32 v{QFA}, 3, v{QFA}\nv_lshl_add_u32 v{QFA}, v{t1}, 6, v{QFA}")
        a(f"v_lshrrev_b32 v{aS2}, 3, v0\nv_and_b32 v{aS2}, 4, v{aS2}")
    def vwave_addrs(self):
        a = self.a
        a("v_and_b32 v1, 7, v0\nv_lshrrev_b32 v2, 3, v0\nv_lshrrev_b32 v3, 4, v0")
        a("s_min_u32 s61, s57, 2\ns_lshl_b32 s58, s61, 2\ns_and_b32 s60, s3, 3\ns_add_u32 s58, s58, s60\ns_mul_i32 s60, s58, 43\ns_lshr_b32 s60, s60, 7")
        a("s_mul_i32 s61, s60, 3\ns_sub_u32 s58, s58, s61")
        a(f"s_mul_i32 s60, s60, {8*BS}\ns_add_u32 s60, s60, s53\ns_lshl_b32 s58, s58, 7\ns_add_u32 s58, s58, s60")
        a(f"v_mul_u32_u24 v{aQG}, {BS}, v2\nv_lshl_add_u32 v{aQG}, v1, 4, v{aQG}\nv_add_u32 v{aQG}, s58, v{aQG}")
        a(f"v_lshl_add_u32 v{aML}, v3, 1, v0\nv_and_b32 v{aML}, 7, v{aML}\nv_lshlrev_b32 v{aML}, 3, v{aML}\nv_add_u32 v{aML}, s60, v{aML}")
        a(f"s_and_b32 s58, s3, 3\ns_lshl_b32 s58, s58, 7\ns_add_u32 s58, s58, {L_P}\nv_lshlrev_b32 v{ldsP}, 5, v3\nv_add_u32 v{ldsP}, s58, v{ldsP}")
        a(f"s_mul_i32 s58, s6, {8*BS}\ns_add_u32 s58, s58, s53\ns_and_b32 s60, s3, 3\ns_lshl_b32 s60, s60, 7\ns_add_u32 s58, s58, s60\ns_lshl_b32 s60, s7, 4\ns_add_u32 s58, s58, s60")
        a(f"v_and_b32 v{T[0]}, 1, v3\nv_lshrrev_b32 v{T[1]}, 1, v1\nv_lshl_add_u32 v{T[0]}, v{T[0]}, 2, v{T[1]}\nv_mul_u32_u24 v{aST}, {BS}, v{T[0]}")
        a(f"v_and_b32 v{T[0]}, 1, v1\nv_lshl_add_u32 v{aST}, v{T[0]}, 3, v{aST}\nv_lshrrev_b32 v{T[0]}, 1, v3\nv_lshl_add_u32 v{aST}, v{T[0]}, 2, v{aST}\nv_add_u32 v{aST}, s58, v{aST}")
        a(f"s_mul_i32 s58, s7, {BS}\ns_add_u32 s58, s58, s53\nv_add_u32 v{aX2}, s58, v{lane4}")
        a(f"v_and_b32 v{aXS}, 15, v0\nv_lshlrev_b32 v{aXS}, 3, v{aXS}\nv_mov_b32 v{aROW}, 0")
        a(f"s_and_b32 s58, s3, 3\ns_lshl_b32 s58, s58, 8\nv_add_u32 v{aS2}, s58, v{lane4}")
    def k_dma(self):
        a = self.a
        t = T[0]; t2 = T[1]
        a(f"v_lshrrev_b32 v{t}, 3, v0\nv_and_b32 v{t2}, 6, v{t}\nv_xor_b32 v{t2}, v{t2}, v0\nv_and_b32 v{t2}, 7, v{t2}")
        a(f"v_mul_u32_u24 v{t}, 384, v{t}\nv_lshl_add_u32 v{t}, v{t2}, 4, v{t}")
        a(f"s_and_b32 s60, s3, 3\ns_mul_i32 s60, s60, 24576\ns_add_u32 s60, s60, {L_K}\ns_mov_b32 s58, s59\ns_add_u32 s61, s59, {64*384}")
        a(f"v_mul_u32_u24 v{T[4]}, 384, v2\nv_lshl_add_u32 v{T[4]}, v1, 4, v{T[4]}")
        a("s_waitcnt lgkmcnt(0)")
        self.stamp(2)
        if self.B0IT == 0: a("s_barrier")
        self.stamp(3)
        a(f"s_add_u32 s62, s59, {3072*self.B0IT}")
        a("L_kdma:")
        for th in range(3):
            a(f"s_add_u32 m0, s60, {th*1024 - th*128}")
            a(f"buffer_load_dwordx4 v{t}, s[12:15], s58 offen offset:{th*128} nt lds")
        a("s_add_u32 s60, s60, 3072\ns_add_u32 s58, s58, 3072")
        if self.B0IT: a("s_cmp_lg_u32 s58, s62\ns_cbranch_scc1 L_kdma_nb\ns_barrier\nL_kdma_nb:")
        a("s_cmp_lt_u32 s58, s61\ns_cbranch_scc1 L_kdma")
    def k_to_regs(self):
        a = self.a
        t = T[0]; t2 = T[1]; t3 = T[2]
        a(f"v_and_b32 v{t}, 7, v0\nv_lshrrev_b32 v{t2}, 4, v0\nv_and_b32 v{t3}, 6, v0\nv_xor_b32 v{t2}, v{t2}, v{t3}")
        a(f"v_lshlrev_b32 v{t}, 7, v{t}\nv_bfe_u32 v{t3}, v0, 3, 1\nv_mul_u32_u24 v{t3}, 3072, v{t3}\nv_add_u32 v{t}, v{t}, v{t3}")
        a(f"s_mul_i32 s60, s3, 24576\nv_add_u32 v{t}, s60, v{t}")
        a(f"v_lshl_add_u32 v{t3}, v{t2}, 4, v{t}")
        a(f"v_xor_b32 v{t2}, 4, v{t2}\nv_lshl_add_u32 v{t2}, v{t2}, 4, v{t}")
        for tile in range(4):
            for u in range(6):
                off = L_K + (2 * tile * 3 + (u >> 1)) * 1024
                a(f"ds_read_b128 {q4(KV + (tile*6+u)*4)}, v{t2 if (u & 1) else t3} offset:{off}")
            if tile == 1: a("s_waitcnt lgkmcnt(0)")
        a("s_waitcnt lgkmcnt(0)")
    def wo_part(self, lo, hi):
        a = self.a
        le = self.L("wop")
        a(f"s_cmp_lg_u32 s54, 0\ns_cbranch_scc1 {le}")
        for t in range(lo, hi):
            a(f"buffer_load_dwordx4 {q4(WB+4*t)}, v{XA}, s[24:27], s63 offen nt")
            if t < 7: a(f"s_add_u32 s63, s63, {8*1280}")
        a(f"{le}:")
    def wo_loads(self, n=8):
        a = self.a
        t1 = XA
        self.rho(t1, XA + 1, 8)
        a(f"v_mul_u32_u24 v{t1}, 1280, v{t1}\nv_and_b32 v{XA+1}, 7, v0\nv_lshl_add_u32 v{t1}, v{XA+1}, 4, v{t1}")
        a("s_min_u32 s62, s57, 2\ns_mul_i32 s58, s4, 768\ns_lshl_b32 s60, s62, 8\ns_add_u32 s58, s58, s60\ns_and_b32 s60, s3, 3\ns_lshl_b32 s60, s60, 6\ns_add_u32 s58, s58, s60")
        a("s_mul_i32 s58, s58, 1280\ns_lshl_b32 s60, s56, 7\ns_add_u32 s58, s58, s60")
        a("s_cmp_ge_u32 s5, 30\ns_cselect_b32 s58, 0x7f000000, s58")
        for t in range(n):
            a(f"buffer_load_dwordx4 {q4(WB+4*t)}, v{t1}, s[24:27], s58 offen nt")
            if t < 7: a(f"s_add_u32 s58, s58, {(12 if t & 1 else 4)*1280}")
        a("s_mov_b32 s63, s58")
    def w1_loads(self):
        a = self.a
        t0, t1 = T[2], T[3]
        self.rho(t0, t1, 8)
        a(f"v_and_b32 v{t1}, 7, v0\nv_mul_u32_u24 v{t0}, 3072, v{t0}\nv_lshl_add_u32 v{t0}, v{t1}, 4, v{t0}")
        a(f"s_mul_i32 s58, s56, {64*3072}\ns_mul_i32 s60, s4, 384\ns_add_u32 s58, s58, s60\ns_lshl_b32 s60, s57, 7\ns_add_u32 s58, s58, s60")
        for t in range(8):
            a(f"buffer_load_dwordx4 {q4(WB+4*t)}, v{t0}, s[28:31], s58 offen nt")
            if t < 7: a(f"s_add_u32 s58, s58, {(12 if t & 1 else 4)*3072}")
    def w2_loads(self):
        a = self.a
        t0, t1 = T[2], T[3]
        self.rho(t0, t1, 8)
        a(f"v_and_b32 v{t1}, 7, v0\nv_mul_u32_u24 v{t0}, 1280, v{t0}\nv_lshl_add_u32 v{t0}, v{t1}, 4, v{t0}")
        a("s_mul_i32 s58, s4, 192\ns_lshl_b32 s60, s57, 6\ns_add_u32 s61, s58, s60\ns_mul_i32 s58, s61, 1280\ns_lshl_b32 s60, s56, 7\ns_add_u32 s58, s58, s60")
        for t in range(8):
            a(f"buffer_load_dwordx4 {q4(WB+4*t)}, v{t0}, s[36:39], s58 offen nt")
            if t < 7: a(f"s_add_u32 s58, s58, {(12 if t & 1 else 4)*1280}")
        a(f"v_bfe_u32 v{t0}, v0, 3, 1\nv_lshl_add_u32 v{t0}, v{t0}, 1, v{aP32}\ns_lshl_b32 s61, s61, 1")
        a(f"buffer_load_ushort v{B1V}, v{t0}, s[32:35], s61 offen")
    def clears(self, all_sc1):
        a = self.a
        C = XA + 4
        for i in range(4): a(f"v_mov_b32 v{C+i}, -1")
        a(f"v_lshlrev_b32 v{T[3]}, 4, v0")
        f = " sc1" if all_sc1 else ""
        a("s_mov_b32 exec_hi, 0")
        a(f"buffer_store_dwordx4 {q4(C)}, v{T[3]}, {WS}, s52 offen sc1")
        a("s_mov_b32 exec_lo, 0xffff")
        a(f"buffer_store_dwordx4 {q4(C)}, v{T[3]}, {WS}, s52 offen offset:2560{f}")
        a("s_mov_b64 exec, -1")
        for o in (512, 1536):
            a(f"buffer_store_dwordx4 {q4(C)}, v{T[3]}, {WS}, s52 offen offset:{o}{f}")
    def flag_store(self, base):
        a = self.a
        C = XA + 4
        if base == FL1:
            a("s_xor_b32 s58, s74, 0x5bd1e995\ns_andn2_b32 s58, s58, 15\ns_or_b32 s75, s75, s58")
        a(f"s_lshl_b32 s58, s4, 5\ns_add_u32 s58, s58, s5\ns_lshl_b32 s58, s58, 3\ns_add_u32 s58, s58, {base}")
        a(f"v_mov_b32 v{C}, s74\nv_mov_b32 v{C+1}, s75")
        a("s_mov_b64 exec, 1")
        a(f"buffer_store_dwordx2 v[{C}:{C+1}], v{aP32}, {WS}, s58 offen sc1")
        a("s_mov_b64 exec, -1")
    def flags_issue(self, base):
        a = self.a
        F = AB[0]
        a(f"v_lshlrev_b32 v{T[4]}, 5, v0\ns_mov_b32 s60, {base}")
        a(f"buffer_load_dwordx4 {q4(F)}, v{T[4]}, {WS}, s60 offen sc1\nbuffer_load_dwordx4 {q4(F+4)}, v{T[4]}, {WS}, s60 offen offset:16 sc1")
    def flags_wait(self, base, group_only):
        a = self.a
        F = AB[0]
        t, t2 = T[2], T[3]
        lp, lc, ld = self.L("fp"), self.L("fc"), self.L("fg")
        a("s_mov_b32 s70, 0\ns_or_b32 s61, s75, 15")
        if base == FL1: a(f"s_branch {lc}")
        a(f"{lp}:")
        self.flags_issue(base)
        a(f"{lc}:")
        a("s_waitcnt vmcnt(0)")
        a(f"v_xor_b32 v{t}, s74, v{F}")
        for i in range(1, 4):
            a(f"v_xor_b32 v{t2}, s74, v{F+2*i}\nv_or_b32 v{t}, v{t}, v{t2}")
        for i in range(4):
            a(f"v_or_b32 v{t2}, 15, v{F+2*i+1}\nv_xor_b32 v{t2}, s61, v{t2}\nv_or_b32 v{t}, v{t}, v{t2}")
        a(f"v_cmp_ne_u32 vcc, 0, v{t}")
        if group_only: a(f"s_and_b64 vcc, vcc, s[72:73]\ns_cbranch_scc0 {ld}")
        else: a(f"s_cbranch_vccz {ld}")
        a(f"s_sleep 16\ns_add_u32 s70, s70, 1\ns_cmp_lt_u32 s70, {POLL_LIMIT}\ns_cbranch_scc1 {lp}\n{ld}:")
    def flags_check(self):
        a = self.a
        F = AB[0]; t, t2 = T[2], T[3]
        lf = self.L("fast")
        a("s_lshl_b32 s58, s4, 3\ns_mov_b64 s[72:73], 0xff\ns_lshl_b64 s[72:73], s[72:73], s58")
        self.flags_wait(FL1, False)
        a(f"v_xor_b32 v{t}, s75, v{F+1}")
        for i in range(1, 4):
            a(f"v_xor_b32 v{t2}, s75, v{F+2*i+1}\nv_or_b32 v{t}, v{t}, v{t2}")
        a(f"v_cmp_ne_u32 vcc, 0, v{t}\ns_mov_b32 s55, 1\ns_and_b64 vcc, vcc, s[72:73]")
        if "forceslow" not in self.knobs: a(f"s_cbranch_scc0 {lf}")
        a("s_mov_b32 s55, 0")
        self.clears(True)
        a("s_waitcnt vmcnt(0)")
        self.flag_store(FL2)
        self.flags_wait(FL2, True)
        a(f"{lf}:")
        a(f"s_lshl_b32 s58, s55, 1\ns_or_b32 s58, s58, 1\nv_mov_b32 v{t}, s58\nv_mov_b32 v{T[3]}, {L_CTRL}\nds_write_b32 v{T[3]}, v{t} offset:4")
    def qproj(self, pair, s1, s2, pre_ops):
        a = self.a
        self.gemv_bcast(ACC, pair, WA, 10, fill=list(pre_ops) + self.ln_ops(s1, s2, T[2]))
        self.pair32(ACC, T[2], T[3])
        a(f"v_fma_f32 v{T[2]}, -v{s1}, v{CS0}, v{T[2]}\nv_fma_f32 v{T[3]}, -v{s1}, v{CS1}, v{T[3]}")
        a(f"v_mul_f32 v{T[2]}, v{T[2]}, v{s2}\nv_mul_f32 v{T[3]}, v{T[3]}, v{s2}")
        a(f"v_cvt_pk_bf16_f32 v{T[4]}, v{T[2]}, v{T[3]}")

    def gen(self):
        a = self.a
        a(f"; @launch grid=(256,1,1) block=(512,1,1) lds={LDS_BYTES}")
        for ln in DOC.strip().split("\n"): a("; " + ln)
        a('.amdgcn_target "amdgcn-amd-amdhsa--gfx950"\n.text')
        a(f".globl {KNAME}\n.p2align 8\n.type {KNAME},@function")
        a(f"{KNAME}:")
        a("s_cmp_ge_u32 s2, 256\ns_cbranch_scc1 L_end")
        for _ in range(self.SHIFT): a("s_nop 0")
        if self.prof:
            for i in range(13): a(f"s_mov_b64 s[{76+2*i}:{77+2*i}], 0")
        self.stamp(0)
        if self.AMP: a("s_memrealtime s[92:93]")
        ptr = {12: 8, 20: 24, 8: 0, 48: 88, 16: 16, 24: 32, 28: 48, 32: 56, 36: 64, 40: 72}
        size = {8: 1280, 12: 100663296, 16: 100663296, 20: 7864320, 24: 7864320, 28: 1966080, 32: 3072, 36: 1966080, 40: 1280,
                48: (PROF_OFF + 256 * 8 * 2 * 64) if self.prof else WS_USED}
        for s, off in ptr.items():
            a(f"s_load_dwordx2 s[{s}:{s+1}], s[0:1], {off}")
        a("v_lshrrev_b32 v1, 6, v0\nv_and_b32 v0, 63, v0\nv_readfirstlane_b32 s3, v1")
        if self.CPF0:
            a("s_getpc_b64 s[72:73]")
            a("L_pcref0:")
            a(f"s_sub_u32 s72, s72, L_pcref0-{KNAME}\ns_subb_u32 s73, s73, 0")
            a("s_and_b32 s58, s2, 0xf8\ns_add_u32 s58, s58, s3\ns_lshl_b32 s58, s58, 7")
            a(f"s_cmp_ge_u32 s58, L_end-{KNAME}\ns_cbranch_scc1 L_nocpf0")
            a(f"v_mov_b32 v2, s58\ns_mov_b64 exec, 1\nglobal_load_dword v{WA+39}, v2, s[72:73]\ns_mov_b64 exec, -1")
            a("L_nocpf0:")
        self.size = size
        a("s_and_b32 s4, s2, 7\ns_lshr_b32 s5, s2, 3\ns_lshr_b32 s6, s5, 3\ns_and_b32 s7, s5, 7")
        a("v_and_b32 v1, 7, v0\nv_lshrrev_b32 v2, 3, v0\nv_lshrrev_b32 v3, 4, v0")
        a(f"v_lshlrev_b32 v{lane4}, 2, v0")
        if self.LAY == 0:
            a("s_cmp_lt_u32 s3, 4\ns_cbranch_scc1 L_pro_k")
            self.v_prologue()
            a("L_pro_k:")
        else:
            a("s_cmp_ge_u32 s3, 4\ns_cbranch_scc1 L_pro_v")
        a(f"s_setprio 3\ns_mov_b32 s71, {GEN_OFF}")
        a("s_cmp_eq_u32 s3, 3\ns_cbranch_scc1 L_pro_c")
        XS = GB
        self.srd(8, 20)
        a(f"v_lshlrev_b32 v{T[0]}, 4, v0")
        a(f"v_and_b32 v{T[1]}, 15, v0\nv_lshlrev_b32 v{T[1]}, 7, v{T[1]}\nv_lshl_add_u32 v{T[1]}, v3, 2, v{T[1]}\ns_lshl_b32 s61, s7, 4")
        self.rho(T[2], T[3], 64)
        a(f"v_mul_u32_u24 v{T[2]}, 12288, v{T[2]}\nv_lshl_add_u32 v{T[2]}, v1, 4, v{T[2]}")
        a(f"s_lshl_b32 s58, s4, 2\ns_add_u32 s58, s58, s6\ns_mul_i32 s58, s58, 384\ns_lshl_b32 s60, s3, 7\ns_add_u32 s58, s58, s60\ns_mul_i32 s60, s7, {8*12288}\ns_add_u32 s58, s58, s60")
        a("s_waitcnt lgkmcnt(0)")
        a(f"buffer_load_dwordx4 {q4(XS)}, v{T[0]}, s[8:11], 0 offen")
        a(f"buffer_load_dword v{XS+4}, v{lane4}, s[8:11], 0 offen offset:1024")
        a(f"buffer_load_dword v{XA}, v{T[1]}, s[8:11], s61 offen")
        for t in range(10 if "nowq" not in self.knobs else 0):
            a(f"buffer_load_dwordx4 {q4(WA+4*t)}, v{T[2]}, s[20:23], s58 offen nt")
            if t < 9: a(f"s_add_u32 s58, s58, {(124 if t & 1 else 4)*12288}")
        if self.QPW:
            a(f"v_mov_b32 v{XA+6}, -1\ns_lshl_b32 s60, s3, 8\ns_add_u32 s63, s52, s60")
            a(f"buffer_store_dword v{XA+6}, v{lane4}, {WS}, s63 offen offset:{QP0T+768}")
        a("s_barrier")
        if self.LAY:
            a("s_branch L_k_rest")
            self.c_head()
            a("s_branch L_c_rest")
            a("L_pro_v:")
            self.v_prologue()
            a("L_k_rest:")
        self.rest_setup((8, 20))
        a(f"s_buffer_load_dword s74, {WS}, s71")
        self.consts()
        self.kwave_addrs()
        self.make_tag()
        a(f"s_waitcnt vmcnt({11 + self.QPW})")
        s1, s2 = T[0], T[1]
        a(f"v_mov_b32 v{s1}, 0\nv_mov_b32 v{s2}, 0")
        for i in range(5):
            a(f"v_lshlrev_b32 v{T[2]}, 16, v{XS+i}\nv_and_b32 v{T[3]}, 0xffff0000, v{XS+i}")
            a(f"v_add_f32 v{s1}, v{s1}, v{T[2]}\nv_fmac_f32 v{s2}, v{T[2]}, v{T[2]}\nv_add_f32 v{s1}, v{s1}, v{T[3]}\nv_fmac_f32 v{s2}, v{T[3]}, v{T[3]}")
        for x in self.red2_ops(s1, s2, (Q1, Q2, HM, RM), T[2]): a(x)
        a(f"v_readlane_b32 s58, v{s1}, 0\nv_readlane_b32 s60, v{s1}, 32")
        a(f"v_mov_b32 v{s1}, s58\nv_mov_b32 v{s2}, s60")
        a(f"s_waitcnt vmcnt({self.QPW})")
        self.stamp(1)
        if "lo1" in self.knobs: a("s_branch L_fin2")
        for t in range(10):
            self.mfma(ACC + 4, ONES, WA + 4 * t, t == 0)
        self.zero(ACC)
        self.pair32(ACC + 4, CS0, CS1)
        self.qproj(XA, s1, s2, [])
        QD = XA + 6
        a(f"v_mov_b32 v{QD}, v{T[4]}\nv_mov_b32 v{QD+1}, s74")
        a("s_lshl_b32 s60, s3, 8\ns_add_u32 s63, s52, s60")
        a("s_mov_b64 exec, s[64:65]")
        a(f"buffer_store_dwordx2 v[{QD}:{QD+1}], v{QFA}, {WS}, s63 offen offset:{QP0T+768}")
        a("s_mov_b64 exec, -1\ns_mov_b32 s71, 0")
        self.stamp(3)
        if "lo2" in self.knobs: a("s_branch L_fin2")
        a(f"s_mul_i32 s58, s3, 10752\ns_add_u32 s58, s58, {L_WQ}\nv_lshlrev_b32 v{T[0]}, 4, v0\nv_add_u32 v{T[0]}, s58, v{T[0]}")
        for t in range(10):
            a(f"ds_write_b128 v{T[0]}, {q4(WA+4*t)} offset:{1024*t}")
        a(f"v_add_u32 v{T[1]}, s58, v{lane4}\nds_write_b32 v{T[1]}, v{CS0} offset:10240\nds_write_b32 v{T[1]}, v{CS1} offset:10496")
        QA = [XA + 1, XA + 2]
        a(f"s_mul_i32 s62, s6, {8*BS}\ns_add_u32 s62, s62, s53\ns_lshl_b32 s58, s3, 7")
        for n in range(2):
            a(f"v_add_u32 v{T[0]}, s58, v0")
            if n: a(f"v_add_u32 v{T[0]}, 64, v{T[0]}")
            a(f"v_mul_u32_u24 v{T[1]}, 0x556, v{T[0]}\nv_lshrrev_b32 v{T[1]}, 16, v{T[1]}")
            a(f"v_mul_u32_u24 v{T[2]}, {BS - 768}, v{T[1]}\nv_lshl_add_u32 v{QA[n]}, v{T[0]}, 4, v{T[2]}")
        SETS = [[WB, WB + 4], [WB + 8, WB + 12]]
        def qissue(k):
            if k == 0: a("s_add_u32 s58, s62, 768")
            else: a(f"s_cmp_ge_u32 s70, {self.QFB}\ns_cselect_b32 s58, 0, 768\ns_add_u32 s58, s58, s62")
            for n in range(2):
                a(f"buffer_load_dwordx4 {q4(SETS[k][n])}, v{QA[n]}, {WS}, s58 offen offset:{QP0T} sc1")
        lp, ld = self.L("poll"), self.L("got")
        a(f"s_mov_b32 s70, 0\ns_sleep {self.QSLEEP0}")
        gots = [self.L("qg") for _ in range(2)]
        if self.Q1ST:
            qissue(0)
            a("s_waitcnt vmcnt(0)")
            a(f"v_mov_b32 v{T[0]}, s74\nv_mov_b32 v{T[1]}, s74")
            for r in SETS[0]:
                a(f"v_min3_u32 v{T[0]}, v{T[0]}, v{r+1}, v{r+3}\nv_max3_u32 v{T[1]}, v{T[1]}, v{r+1}, v{r+3}")
            a(f"v_cmp_ne_u32 vcc, v{T[0]}, v{T[1]}\ns_cbranch_vccz {gots[0]}")
        qissue(0); a(f"s_sleep {self.QSLEEP1}"); qissue(1)
        a(f"{lp}:")
        for k in range(2):
            a("s_waitcnt vmcnt(2)")
            a(f"v_mov_b32 v{T[0]}, s74\nv_mov_b32 v{T[1]}, s74")
            for r in SETS[k]:
                a(f"v_min3_u32 v{T[0]}, v{T[0]}, v{r+1}, v{r+3}\nv_max3_u32 v{T[1]}, v{T[1]}, v{r+1}, v{r+3}")
            a(f"v_cmp_ne_u32 vcc, v{T[0]}, v{T[1]}\ns_cbranch_vccz {gots[k]}")
            if k == 1:
                a("s_add_u32 s70, s70, 1")
                self.q_fallback(self.QFB)
            qissue(k)
        a(f"s_cmp_lt_u32 s70, {POLL_LIMIT}\ns_cbranch_scc1 {lp}")
        for k in range(2):
            a(f"{gots[k]}:")
            a(f"v_lshrrev_b32 v{T[0]}, 4, v0\nv_lshlrev_b32 v{T[0]}, 7, v{T[0]}\nv_and_b32 v{T[1]}, 3, v0\nv_lshl_add_u32 v{T[0]}, v{T[1]}, 4, v{T[0]}")
            a(f"v_bfe_u32 v{T[1]}, v0, 2, 1\nv_lshl_add_u32 v{T[0]}, v{T[1]}, 6, v{T[0]}\nv_bfe_u32 v{T[1]}, v0, 3, 1\nv_lshl_add_u32 v{T[0]}, v{T[1]}, 2, v{T[0]}")
            a(f"s_lshl_b32 s58, s3, 10\ns_add_u32 s58, s58, {L_Q}\nv_add_u32 v{T[0]}, s58, v{T[0]}")
            for n in range(2):
                a(f"ds_write2_b32 v{T[0]}, v{SETS[k][n]}, v{SETS[k][n]+2} offset0:{128*n} offset1:{128*n+2}")
            if k < 1: a(f"s_branch {ld}")
        a(f"{ld}:")
        a(f"v_mov_b32 v{T[2]}, 1\nv_mov_b32 v{T[3]}, {L_CTRL+32}\ns_waitcnt lgkmcnt(0)\nds_add_u32 v{T[3]}, v{T[2]}")
        self.stamp(2)
        a("s_branch L_bk")
        if self.LAY == 0: self.c_head()
        else: a("L_c_rest:")
        self.rest_setup((8, 48), blk=False)
        a(f"s_buffer_load_dword s74, {WS}, s71")
        self.consts()
        self.kwave_addrs()
        self.make_tag()
        a("s_waitcnt vmcnt(0)")
        if "noclr" not in self.knobs: self.flag_store(FL1)
        self.stamp(1)
        if not (self.knobs & {"lo1", "lo2"}) and "noclr" not in self.knobs:
            a(f"s_sleep {self.FLSL}")
            self.flags_issue(FL1)
            self.flags_check()
            self.stamp(2)
        a("s_waitcnt vmcnt(0)")
        for x in self.unpackX_ops(GB + 4): a(x)
        a(f"v_mov_b32 v{X0+1}, 0\nv_mov_b32 v{X0+3}, 0")
        a("L_bk:")
        if self.knobs & {"lo1", "lo2", "lo3"}: a("s_branch L_fin2")
        a(f"s_lshl_b32 s60, s3, 2\ns_add_u32 s60, s60, {L_CTRL+16}")
        self.lds_wait_flag("s60")
        self.stamp(10)
        self.k_to_regs()
        self.lds_wait_flag(L_CTRL + 32, 192, fb=64)
        self.stamp(11)
        a(f"v_and_b32 v{T[3]}, 7, v0\nv_mul_u32_u24 v{T[3]}, 384, v{T[3]}\nv_lshrrev_b32 v{T[4]}, 4, v0\nv_lshl_add_u32 v{T[3]}, v{T[4]}, 4, v{T[3]}")
        a(f"v_and_b32 v{T[4]}, 8, v0\nv_lshl_add_u32 v{T[3]}, v{T[4]}, 3, v{T[3]}")
        for u in range(3):
            a(f"ds_read_b128 {q4(GB+4*u)}, v{T[3]} offset:{L_Q + 128*u}")
        self.zero(ACC, 16)
        a("s_waitcnt lgkmcnt(0)")
        a("s_branch L_qk")

        a("L_kloop:")
        a("s_cmp_lg_u32 s3, 3\ns_cbranch_scc1 L_k_b1")
        a("s_cmp_ge_u32 s5, 10\ns_cbranch_scc1 L_k_pt")
        a(f"s_lshl_b32 s63, s56, 3\ns_add_u32 s63, s63, s53\ns_add_u32 s63, s63, {7*BS}")
        self.zgather(0, self.ZSL)
        s1, s2 = T[0], T[1]
        a("s_mov_b64 exec, s[64:65]")
        self.local_stores([f"buffer_store_dword v{T[4]}, v{aX2}, {WS}, 0 offen offset:{X2O}{{f}}"])
        a("s_mov_b64 exec, -1")
        for x in self.unpackX_ops(T[4]) + self.xstats_ops(s1, s2, T[2]): a(x)
        a("s_mov_b64 exec, s[46:47]")
        self.local_stores([f"buffer_store_dword v{s1}, v{aS2}, {WS}, s63 offen offset:{MISC}{{f}}"])
        a("s_mov_b64 exec, -1")
        self.stamp(2)
        a("L_k_pt:")
        a("L_k_b1:")
        a("s_barrier")
        self.zero(ACC, 16)
        self.sleep(self.QSL)
        self.poll([f"buffer_load_dwordx4 {q4(GB+4*u)}, v{aQG}, {WS}, 0 offen offset:{QP1 + 128*u} sc1" for u in range(3)], range(GB, GB + 12), entry="L_qk", pipe=self.PQ)
        self.stamp(4)
        S = T[0]; M = T[1]
        R = [XA, XA + 1, XA + 2, XA + 3]
        def tsum(t):
            D = ACC + 4 * t
            return [f"v_add_f32 v{R[t]}, v{D}, v{D+1}", f"v_add_f32 v{T[2]}, v{D+2}, v{D+3}", f"v_add_f32 v{R[t]}, v{R[t]}, v{T[2]}"]
        order = [0, 2, 1, 3]
        for k, t in enumerate(order):
            for n in range(3):
                a(self.smf_s(ACC + 4 * t, GB + 4 * n, KV + (t * 6 + 2 * n) * 4, IDQ))
            if k >= 2:
                for x in tsum(order[k - 2]): a(x)
        a(f"v_permlane32_swap_b32 v{R[0]}, v{R[2]}")
        for x in tsum(1): a(x)
        a(f"v_add_f32 v{R[0]}, v{R[0]}, v{R[2]}")
        for x in tsum(3): a(x)
        a(f"v_permlane32_swap_b32 v{R[1]}, v{R[3]}\nv_add_f32 v{R[1]}, v{R[1]}, v{R[3]}")
        a(f"v_permlane16_swap_b32 v{R[0]}, v{R[1]}\nv_add_f32 v{S}, v{R[0]}, v{R[1]}")
        a(f"v_mul_f32 v{S}, 0x3dd53b95, v{S}")
        a(f"v_max_f32_dpp v{M}, v{S}, v{S} {Q1} {DPPALL}")
        for c in (Q2, HM, RM):
            a(f"v_max_f32_dpp v{M}, v{M}, v{M} {c} {DPPALL}")
        a(f"v_mov_b32 v{T[2]}, v{M}\nv_permlane16_swap_b32 v{M}, v{T[2]}\nv_max_f32 v{M}, v{M}, v{T[2]}")
        a(f"v_mov_b32 v{T[2]}, v{M}\nv_permlane32_swap_b32 v{M}, v{T[2]}\nv_max_f32 v{M}, v{M}, v{T[2]}")
        a(f"v_sub_f32 v{S}, v{S}, v{M}\nv_exp_f32 v{S}, v{S}")
        a(f"v_cvt_pk_bf16_f32 v{S}, v{S}, v{S}")
        a(f"ds_write_b16 v{ldsP}, v{S}")
        a("s_cmp_eq_u32 s3, 3\ns_cbranch_scc1 L_qk_nf\ns_cmp_lg_u32 s54, 0\ns_cbranch_scc1 L_qk_nf")
        self.lds_wait_flag(L_CTRL + 4)
        a("s_lshr_b32 s55, s58, 1\ns_cmp_lg_u32 s55, 0\ns_cbranch_scc1 L_qk_nf")
        self.q_fallback(0)
        a("L_qk_nf:")
        a("s_waitcnt vmcnt(0) lgkmcnt(0)" if self.PQ else "s_waitcnt lgkmcnt(0)")
        self.stamp(5)
        if self.PRI == 1: a("s_setprio 0")
        a("s_barrier")
        if self.PRI == 2: a("s_sleep 2")
        a(f"v_lshlrev_b32 v{S}, 16, v{S}")
        self.allred64("v_add_f32", S, T[2])
        a(f"s_lshl_b32 s58, s3, 3\nv_mov_b32 v{T[2]}, s58")
        a("s_mov_b64 exec, 1")
        a(f"ds_write_b32 v{T[2]}, v{M} offset:{L_ML}\nds_write_b32 v{T[2]}, v{S} offset:{L_ML+4}")
        a("s_mov_b64 exec, -1")
        a("s_cmp_lg_u32 s3, 3\ns_cbranch_scc1 L_k_b3")
        a("s_cmp_eq_u32 s54, 0\ns_cbranch_scc1 L_c_b3")
        a("L_c_x2:")
        a("s_cmp_lt_u32 s5, 10\ns_cbranch_scc1 L_c_b3")
        self.poll([f"buffer_load_dword v{GB}, v{aX2}, {WS}, 0 offen offset:{X2O} sc1"], [GB])
        for x in self.unpackX_ops(GB): a(x)
        a("L_c_b3:")
        a("s_waitcnt lgkmcnt(0)\ns_barrier")
        a("s_cmp_ge_u32 s5, 30\ns_cbranch_scc1 L_k_next")
        if self.LL == 3:
            a("s_cmp_lg_u32 s54, 0\ns_cbranch_scc1 L_c_b4")
            self.w1_loads()
            a("L_c_b4:")
        if self.B3B:
            a("s_cmp_lg_u32 s54, 0\ns_cbranch_scc1 L_c_nb3b\ns_barrier")
            self.w1_loads()
            a("L_c_nb3b:")
        a("s_barrier")
        self.zero(ACC + 4)
        self.sel_layer(62, HPR, 52)
        a(f"s_mul_i32 s63, s54, 3\ns_add_u32 s63, s63, s57\ns_add_u32 s63, s63, 1\ns_mul_i32 s63, s63, {BS}\ns_add_u32 s63, s63, s53\ns_lshl_b32 s61, s56, 3\ns_add_u32 s63, s63, s61")
        a("s_cmp_lg_u32 s54, 0\ns_cbranch_scc1 L_p4_nocs")
        if self.LL == 4 and not self.B3B: self.w1_loads()
        yl = self.rows24_loads(YO)
        self.sleep(self.YSL0)
        for x in yl: a(x)
        a("s_mov_b32 s70, 0\ns_waitcnt vmcnt(3)")
        for t in range(8): self.mfma(ACC, ONES, WB + 4 * t, t == 0)
        self.l64(ACC, CS0)
        self.local_stores([f"buffer_store_dword v{CS0}, v{aST}, {WS}, s52 offen offset:{HPC}{{f}}"])
        a("s_branch L_p4_chk")
        a("L_p4_nocs:")
        yl = self.rows24_loads(YO)
        self.sleep(self.YSL)
        self.poll(yl, range(GB, GB + 12), entry="L_p4_chk", spec=self.sum_spec())
        a("s_barrier")
        if self.AMP == 2: a("s_cmp_lg_u32 s54, 0\ns_cbranch_scc1 L_amp2\ns_memrealtime s[94:95]\nL_amp2:")
        self.stamp(8)
        self.resid_add()
        s1, s2 = T[0], T[1]
        self.gemv_bcast(ACC + 4, T[4], WB, 8, fill=self.unpackX_ops(T[4]) + self.xstats_ops(s1, s2, T[2]))
        self.l64(ACC + 4, T[3])
        self.local_stores([f"buffer_store_dword v{T[3]}, v{aST}, {WS}, s62 offen{{f}}", "s_mov_b64 exec, s[46:47]",
                           f"buffer_store_dword v{s1}, v{aS2}, {WS}, s63 offen offset:{MISC}{{f}}"])
        a("s_mov_b64 exec, -1")
        self.stamp(9)
        self.dump0()
        a("s_barrier")
        a("s_cmp_lg_u32 s54, 0\ns_cbranch_scc1 L_final\ns_mov_b32 s54, 1\ns_branch L_kloop")
        a("L_k_b3:")
        if self.LL2 == 2:
            a("s_cmp_lg_u32 s54, 0\ns_cbranch_scc1 L_k_b3a\ns_cmp_lg_u32 s3, 0\ns_cbranch_scc1 L_k_b3a")
            self.w2_loads()
            a("L_k_b3a:")
        if self.CPF:
            self.code_prefetch()
        a(f"s_lshl_b32 s58, s3, 8\nv_add_u32 v{T[3]}, s58, v{lane4}\nv_mov_b32 v{T[4]}, {L_ML}")
        self.sel_layer(58, OP, 52)
        a("s_lshl_b32 s60, s3, 7\ns_add_u32 s60, s60, s58")
        a(f"s_mul_i32 s61, s7, {BS - 8}\ns_sub_u32 s61, s52, s61\ns_lshl_b32 s58, s54, 6\ns_add_u32 s61, s61, s58")
        a("s_waitcnt lgkmcnt(0)\ns_barrier")
        self.stamp(6)
        a(f"ds_read_b128 {q4(GB)}, v{T[4]}\nds_read_b128 {q4(GB+4)}, v{T[4]} offset:16")
        for w in range(4):
            a(f"ds_read_b32 v{GB+8+w}, v{T[3]} offset:{L_O + 768*w}")
        a("s_waitcnt lgkmcnt(0)")
        M = GB + 12; Lr = GB + 13
        a(f"v_max3_f32 v{M}, v{GB}, v{GB+2}, v{GB+4}\nv_max_f32 v{M}, v{M}, v{GB+6}")
        for w in range(4): a(f"v_sub_f32 v{GB+2*w}, v{GB+2*w}, v{M}")
        for w in range(4): a(f"v_exp_f32 v{GB+2*w}, v{GB+2*w}")
        a(f"v_mul_f32 v{Lr}, v{GB}, v{GB+1}\nv_mul_f32 v{T[0]}, v{GB}, v{GB+8}")
        for w in range(1, 4):
            a(f"v_fmac_f32 v{Lr}, v{GB+2*w}, v{GB+2*w+1}\nv_fmac_f32 v{T[0]}, v{GB+2*w}, v{GB+8+w}")
        a(f"v_rcp_f32 v{T[1]}, v{Lr}\nv_mul_f32 v{T[0]}, v{T[0]}, v{T[1]}")
        a(f"v_mov_b32_dpp v{T[1]}, v{T[0]} row_ror:8 {DPPALL}\nv_cvt_pk_bf16_f32 v{T[0]}, v{T[0]}, v{T[1]}")
        a("s_mov_b64 exec, s[64:65]")
        lz = self.L("z")
        self.local_stores([f"buffer_store_dword v{T[0]}, v{aP32}, {WS}, s60 offen{{f}}"])
        a(f"s_cmp_lg_u32 s3, 1\ns_cbranch_scc1 {lz}\ns_mov_b64 exec, 1")
        self.local_stores([f"buffer_store_dwordx2 v[{M}:{Lr}], v{aP32}, {WS}, s61 offen offset:{MISC}{{f}}"])
        a(f"{lz}:\ns_mov_b64 exec, -1")
        self.stamp(7)
        a("s_cmp_ge_u32 s5, 30\ns_cbranch_scc1 L_k_next")
        if self.LL2 == 3:
            a("s_cmp_lg_u32 s54, 0\ns_cbranch_scc1 L_k_b4a\ns_cmp_lg_u32 s3, 0\ns_cbranch_scc1 L_k_b4a")
            self.w2_loads()
            a("L_k_b4a:")
        if self.B3B:
            a("s_cmp_lg_u32 s54, 0\ns_cbranch_scc1 L_k_nb3b\ns_barrier\ns_cmp_lg_u32 s3, 0\ns_cbranch_scc1 L_k_nb3b")
            self.w2_loads()
            a("L_k_nb3b:")
        a("s_barrier")
        a("s_cmp_eq_u32 s3, 0\ns_cbranch_scc1 L_p5")
        a("s_cmp_lg_u32 s3, 1\ns_cbranch_scc1 L_k_b5")
        self.sel_layer(58, HPR, 52)
        a(f"v_lshlrev_b32 v{T[0]}, 7, v0\ns_mov_b64 exec, 3")
        a(f"buffer_load_dword v{GB}, v{T[0]}, {WS}, s58 offen sc1\nbuffer_load_dword v{GB+1}, v{T[0]}, {WS}, s52 offen offset:{HPC} sc1")
        a(f"buffer_load_dword v{GB+2}, v{lane4}, {WS}, s52 offen offset:{MISC} sc1\ns_mov_b64 exec, -1")
        a("L_k_b5:")
        a("s_barrier\ns_barrier")
        a("s_branch L_k_next")
        a("L_p5:")
        self.zero(ACC)
        a(f"s_mul_i32 s62, s57, {10*BS}\ns_add_u32 s62, s62, s53")
        def hp_gather(with_stats, slp=0):
            for i in range(8, 14): a(f"v_mov_b32 v{GB+i}, 0")
            loads = [f"buffer_load_dwordx4 {q4(GB)}, v{aML}, {WS}, s58 offen sc1",
                     f"buffer_load_dwordx4 {q4(GB+4)}, v{aML}, {WS}, s60 offen sc1",
                     "s_mov_b32 exec_hi, 0",
                     f"buffer_load_dwordx4 {q4(GB+8)}, v{aML}, {WS}, s61 offen sc1"]
            if with_stats:
                loads += ["s_mov_b64 exec, s[44:45]", f"buffer_load_dwordx2 v[{GB+12}:{GB+13}], v{aXS}, {WS}, s63 offen offset:{MISC} sc1"]
            loads += ["s_mov_b64 exec, -1"]
            return loads, range(GB, GB + (14 if with_stats else 12))
        def hp_reduce_ops(dst):
            U = GB + 16
            o = [f"v_add_f32 v{U+i}, v{GB+i}, v{GB+4+i}" for i in range(4)] + [f"v_add_f32 v{U+i}, v{U+i}, v{GB+8+i}" for i in range(4)]
            o += [f"v_permlane32_swap_b32 v{U}, v{U+2}", f"v_permlane32_swap_b32 v{U+1}, v{U+3}",
                  f"v_add_f32 v{U}, v{U}, v{U+2}", f"v_add_f32 v{U+1}, v{U+1}, v{U+3}",
                  f"v_permlane16_swap_b32 v{U}, v{U+1}", f"v_add_f32 v{dst}, v{U}, v{U+1}"]
            return o
        a("s_cmp_lg_u32 s54, 0\ns_cbranch_scc1 L_p5_nocs")
        if self.LL2 == 4 and not self.B3B: self.w2_loads()
        if self.LL2 == 5:
            a(f"s_sleep {self.W2SL}")
            self.w2_loads()
        a(f"s_add_u32 s58, s62, {HPC}\ns_add_u32 s60, s58, {4*BS}\ns_add_u32 s61, s58, {8*BS}")
        a("s_barrier")
        ld_, rg_ = hp_gather(False)
        self.poll(ld_, rg_)
        for x in hp_reduce_ops(CSW1): a(x)
        a(f"v_lshlrev_b32 v{B1V}, 16, v{B1V}")
        a("s_branch L_p5_g")
        a("L_p5_nocs:")
        a("s_barrier")
        self.sleep(self.HSL)
        a("L_p5_g:")
        self.sel_layer(71, ZO, 52)
        self.sel_layer(58, HPR, 62)
        a(f"s_add_u32 s60, s58, {4*BS}\ns_add_u32 s61, s58, {8*BS}")
        a(f"s_mul_i32 s63, s54, 3\ns_add_u32 s63, s63, s57\ns_add_u32 s63, s63, 1\ns_mul_i32 s63, s63, {BS}\ns_add_u32 s63, s63, s53")
        ld_, rg_ = hp_gather(True)
        self.poll(ld_, rg_, pipe=self.PH)
        self.stamp(8)
        s1, s2 = GB + 14, GB + 15
        H = T[0]
        c1 = self.row16_ops(s1, s2, GB + 12, GB + 13) + self.ln_ops(s1, s2, T[5])
        c2 = hp_reduce_ops(H)
        while c1 or c2:
            if c1: a(c1.pop(0))
            if c1 and len(c1) > 14 and not self.EX: a(c1.pop(0))
            if c2: a(c2.pop(0))
        if self.EX:
            a(f"v_fma_f32 v{H}, -v{s1}, v{CSW1}, v{H}\nv_fma_f32 v{H}, v{H}, v{s2}, v{B1V}")
        else:
            a(f"v_fma_f32 v{H}, -v{s1}, v{CSW1}, v{H}\nv_mul_f32 v{H}, v{H}, v{s2}")
            self.bf16r(H, H)
            a(f"v_add_f32 v{H}, v{H}, v{B1V}")
            self.bf16r(H, H)
        E = T[1]; N = T[2]; Dn = T[3]
        a(f"v_mul_f32 v{E}, 0x3fb8aa3b, v{H}\nv_exp_f32 v{E}, -|v{E}|")
        a(f"v_cmp_gt_f32 vcc, 0, v{H}\nv_mov_b32 v{T[4]}, 2.0")
        a(f"v_fma_f32 v{N}, v{E}, 2.0, 1.0\nv_add_f32 v{Dn}, 2.0, v{E}\nv_mul_f32 v{Dn}, v{Dn}, v{E}")
        a(f"v_mul_f32 v{E}, v{E}, v{E}\nv_add_f32 v{E}, v{E}, v{E}")
        a(f"v_cndmask_b32 v{N}, v{N}, v{Dn}, vcc\nv_cndmask_b32 v{E}, v{E}, v{T[4]}, vcc")
        a(f"v_add_f32 v{Dn}, v{N}, v{E}\nv_rcp_f32 v{Dn}, v{Dn}\nv_mul_f32 v{N}, v{N}, v{H}\nv_mul_f32 v{N}, v{N}, v{Dn}")
        a(f"v_mov_b32_dpp v{E}, v{N} row_ror:8 {DPPALL}\nv_cvt_pk_bf16_f32 v{T[4]}, v{N}, v{E}")
        self.gemv_bcast(ACC, T[4], WB, 8)
        self.pair32(ACC, T[0], T[1])
        a(f"s_mov_b64 exec, s[64:65]\nv_cvt_pk_bf16_f32 v{T[0]}, v{T[0]}, v{T[1]}")
        a(f"buffer_store_dword v{T[0]}, v{aP32}, {WS}, s71 offen sc1")
        a("s_mov_b64 exec, -1")
        self.stamp(9)
        a("s_barrier")
        a("L_k_next:")
        a("s_cmp_lg_u32 s54, 0\ns_cbranch_scc1 L_final")
        self.dump_stamps()
        a("s_mov_b32 s54, 1")
        a("s_cmp_lg_u32 s3, 2\ns_cbranch_scc1 L_kloop")
        a("s_cmp_lg_u32 s2, 0\ns_cbranch_scc1 L_nogen")
        a(f"s_mov_b64 exec, 1\nv_mov_b32 v{T[0]}, s74\nv_mov_b32 v{T[1]}, {GEN_OFF}")
        a(f"buffer_store_dword v{T[0]}, v{T[1]}, {WS}, 0 offen sc1")
        a("s_mov_b64 exec, -1\nL_nogen:")
        for u in range(3):
            a(f"buffer_load_dword v{GB+4+u}, v{aQG}, {WS}, 0 offen offset:{QP1 + 128*u} sc1")
        a("s_branch L_kloop")
        a("L_final:")
        a("s_cmp_lg_u32 s3, 3\ns_cbranch_scc1 L_fin2\ns_cmp_lg_u32 s4, 0\ns_cbranch_scc1 L_fin2\ns_cmp_ge_u32 s5, 10\ns_cbranch_scc1 L_fin2")
        if self.PERT:
            import struct
            c = hex(struct.unpack('<I', struct.pack('<f', self.PERT / 1000.0))[0])
            if self.PALL: a(f"v_add_f32 v{X0}, {c}, v{X0}\nv_add_f32 v{X1}, {c}, v{X1}")
            else: a(f"s_cmp_lg_u32 s2, 0\ns_cbranch_scc1 L_npert\ns_mov_b64 exec, 1\nv_add_f32 v{X0}, {c}, v{X0}\ns_mov_b64 exec, -1\nL_npert:")
        a("s_lshl_b32 s63, s5, 7")
        self.zgather(1, self.FSL)
        a("s_mov_b64 exec, s[64:65]")
        a(f"buffer_store_dword v{T[4]}, v{aP32}, s[40:43], s63 offen{' sc1' if self.OSC else ''}")
        a("s_mov_b64 exec, -1")
        self.stamp(11)
        if self.AMP:
            a("s_cmp_lg_u32 s2, 0\ns_cbranch_scc1 L_fin2\ns_memrealtime s[96:97]\ns_waitcnt lgkmcnt(0)")
            if self.AMP == 1: a("s_mov_b32 s94, s96")
            a("s_sub_u32 s94, s94, s92\ns_min_u32 s94, s94, 20000")
            a("L_ampl:\ns_memrealtime s[98:99]\ns_waitcnt lgkmcnt(0)\ns_sub_u32 s98, s98, s96\ns_cmp_lt_u32 s98, s94\ns_cbranch_scc1 L_ampl")
        a("L_fin2:")
        self.dump_stamps()
        a("s_endpgm")

        a("L_vloop:")
        a(f"buffer_load_dword v{XA+2}, v{aQG}, {WS}, 0 offen offset:{OP[1]} sc1")
        a("s_cmp_eq_u32 s3, 7\ns_cbranch_scc1 L_v7_b1")
        a(f"v_mov_b32 v{GB}, 0\nv_mov_b32 v{GB+2}, 0\nv_mov_b32 v{GB+3}, 0\ns_add_u32 s58, s53, {7*BS}")
        self.zero(ACC)
        self.sleep(self.XSL)
        self.poll(["s_mov_b64 exec, s[44:45]", f"buffer_load_dword v{GB}, v{aX2}, {WS}, 0 offen offset:{X2O} sc1",
                   f"buffer_load_dwordx2 v[{GB+2}:{GB+3}], v{aXS}, {WS}, s58 offen offset:{MISC} sc1", "s_mov_b64 exec, -1"], [GB, GB + 2, GB + 3], slp=self.XSLP, pipe=self.PX)
        a("s_barrier")
        self.stamp(1)
        self.qproj(GB, T[0], T[1], self.row16_ops(T[0], T[1], GB + 2, GB + 3))
        if self.Q4:
            self.gather4(T[4], AB[0])
            a("s_mov_b64 exec, 0xff")
            self.local_stores([f"buffer_store_dwordx4 {q4(AB[0])}, v{aST}, {WS}, 0 offen offset:{QP1}{{f}}"])
        else:
            a("s_mov_b64 exec, s[64:65]")
            self.local_stores([f"buffer_store_dword v{T[4]}, v{aST}, {WS}, 0 offen offset:{QP1}{{f}}"])
        a("s_mov_b64 exec, -1")
        self.stamp(3)
        a("s_branch L_v_b2")
        a("L_v7_b1:")
        a("s_barrier")
        a("L_v_b2:")
        a(f"s_and_b32 s58, s3, 3\ns_mul_i32 s58, s58, 768\nv_add_u32 v{T[3]}, s58, v{lane4}")
        self.zero(ACC, 12)
        a("s_cmp_eq_u32 s54, 0\ns_cbranch_scc1 L_v_b2a\ns_waitcnt vmcnt(0)\nL_v_b2a:")
        a("s_barrier")
        self.stamp(5)
        a(f"ds_read_b128 {q4(GB)}, v{ldsP}\nds_read_b128 {q4(GB+4)}, v{ldsP} offset:16")
        a("s_cmp_lg_u32 s54, 0\ns_cbranch_scc1 L_v_nowo")
        if self.WOE: self.wo_part(self.WOE, 8)
        else: self.wo_loads(self.WS[0])
        a("L_v_nowo:")
        a("s_waitcnt lgkmcnt(0)")
        self.al()
        def pand(n, d): return f"v_and_b32 v{AB[n & 1]+d}, v{GB + 2*n + (d >> 1)}, v{MK0 + (d & 1)}"
        for d in range(4): a(pand(0, d))
        for n in range(4):
            a(f"s_waitcnt vmcnt({8 + 18 - 6*n})")
            for th in range(3):
                a(self.smf_s(ACC + 4 * th, AB[n & 1], KV + 24 * n + 8 * th, IDX))
                if n + 1 < 4 and th < 2:
                    for d in (2 * th, 2 * th + 1): a(pand(n + 1, d))
        for th in range(3):
            self.l64(ACC + 4 * th, T[th])
            a(f"ds_write_b32 v{T[3]}, v{T[th]} offset:{L_O + 256*th}")
        self.sel_layer(58, OP)
        a("s_lshl_b32 s60, s54, 6")
        a("s_waitcnt lgkmcnt(0)\ns_barrier")
        self.stamp(6)
        if sum(self.WS) < 8: self.wo_part(sum(self.WS), 8)
        a("s_cmp_ge_u32 s5, 30\ns_cbranch_scc1 L_v_next")
        if self.OS0 >= 0:
            a("s_cmp_lg_u32 s54, 0\ns_cbranch_scc1 L_p3_l1")
            self.poll([f"buffer_load_dwordx2 v[{GB+4}:{GB+5}], v{aML}, {WS}, s60 offen offset:{MISC} sc1"], [GB + 4, GB + 5], slp=self.OS0)
            a("s_branch L_p3_go\nL_p3_l1:")
        self.zero(ACC + 4)
        self.sleep(self.OSL)
        if self.OS0 >= 0: a("L_p3_go:")
        self.poll([f"buffer_load_dwordx4 {q4(GB)}, v{aQG}, {WS}, s58 offen sc1",
                   f"buffer_load_dwordx2 v[{GB+4}:{GB+5}], v{aML}, {WS}, s60 offen offset:{MISC} sc1"], range(GB, GB + 6),
                  spec=[f"v_max_f32_dpp v{T[0]}, v{GB+4}, v{GB+4} {Q1} {DPPALL}", f"v_max_f32_dpp v{T[0]}, v{T[0]}, v{T[0]} {Q2} {DPPALL}", f"v_max_f32_dpp v{T[0]}, v{T[0]}, v{T[0]} {HM} {DPPALL}"], pipe=self.PO)
        if self.B3B: a("s_cmp_lg_u32 s54, 0\ns_cbranch_scc1 L_v_nb3b\ns_barrier\nL_v_nb3b:")
        self.stamp(8)
        M = T[0]; W = T[1]
        a(f"v_sub_f32 v{W}, v{GB+4}, v{M}\nv_exp_f32 v{W}, v{W}\nv_mul_f32 v{W}, v{W}, v{GB+5}")
        a(f"v_mov_b32_dpp v{T[2]}, v{W} row_newbcast:0 {DPPALL}\nv_mov_b32_dpp v{T[3]}, v{W} row_newbcast:1 {DPPALL}")
        a(f"v_cvt_pk_bf16_f32 v{T[2]}, v{T[2]}, v{T[3]}")
        self.build_A(AB[0], T[2])
        self.bf16r(W, W)
        self.mfma(ACC, AB[0], GB, True)
        for c in (Q1, Q2, HM):
            a(f"v_add_f32_dpp v{W}, v{W}, v{W} {c} {DPPALL}")
        a(f"v_rcp_f32 v{W}, v{W}")
        self.pair32(ACC, T[2], T[3])
        a(f"v_mul_f32 v{T[2]}, v{T[2]}, v{W}\nv_mul_f32 v{T[3]}, v{T[3]}, v{W}\nv_cvt_pk_bf16_f32 v{T[4]}, v{T[2]}, v{T[3]}")
        self.gemv_bcast(ACC + 4, T[4], WB, 8)
        self.sel_layer(58, YO, 52)
        self.l64(ACC + 4, T[0])
        a(f"ds_write_b32 v{aS2}, v{T[0]} offset:{L_YR}")
        a("s_waitcnt vmcnt(0) lgkmcnt(0)\ns_barrier")
        a("s_cmp_lg_u32 s3, 7\ns_cbranch_scc1 L_v_b5")
        for w in range(4): a(f"ds_read_b32 v{GB+w}, v{lane4} offset:{L_YR + 256*w}")
        a("s_waitcnt lgkmcnt(0)")
        a(f"v_add_f32 v{GB}, v{GB}, v{GB+1}\nv_add_f32 v{GB+2}, v{GB+2}, v{GB+3}\nv_add_f32 v{T[0]}, v{GB}, v{GB+2}")
        a(f"v_mov_b32_dpp v{T[1]}, v{T[0]} row_ror:8 {DPPALL}\nv_cvt_pk_bf16_f32 v{T[0]}, v{T[0]}, v{T[1]}")
        if self.G4:
            self.gather4(T[0], AB[0])
            a("s_mov_b64 exec, 0xff")
            a(f"buffer_store_dwordx4 {q4(AB[0])}, v{aP32}, {WS}, s58 offen sc1")
        else:
            a("s_mov_b64 exec, s[64:65]")
            a(f"buffer_store_dword v{T[0]}, v{aP32}, {WS}, s58 offen sc1")
        a("s_mov_b64 exec, -1")
        self.stamp(9)
        a("L_v_b5:")
        a("s_cmp_lg_u32 s54, 0\ns_cbranch_scc1 L_v_b5b")
        self.v_fetch_wq()
        self.dump_stamps()
        a("L_v_b5b:")
        a("s_barrier\ns_barrier")
        a("s_cmp_lg_u32 s54, 0\ns_cbranch_scc1 L_fin2")
        a("s_mov_b32 s54, 1\ns_branch L_vloop")
        a("L_v_next:")
        a("s_cmp_lg_u32 s54, 0\ns_cbranch_scc1 L_fin2")
        self.v_fetch_wq()
        self.dump_stamps()
        a("s_mov_b32 s54, 1")
        if self.X30 >= 0:
            a(f"v_mov_b32 v{GB+2}, 0\nv_mov_b32 v{GB+3}, 0\ns_add_u32 s58, s53, {BS}")
            self.poll(["s_mov_b64 exec, s[44:45]", f"buffer_load_dwordx2 v[{GB+2}:{GB+3}], v{aXS}, {WS}, s58 offen offset:{MISC} sc1", "s_mov_b64 exec, -1"], [GB + 2, GB + 3], slp=4)
            self.sleep(self.X30)
        else:
            a("s_sleep 48")
        a("s_branch L_vloop")
        self.flush_ool()
        a("L_end:\ns_endpgm")
        a('.section .rodata,"a"\n.p2align 6')
        a(f".amdhsa_kernel {KNAME}")
        a(".amdhsa_next_free_vgpr 256\n.amdhsa_next_free_sgpr 102\n.amdhsa_accum_offset 256\n.amdhsa_group_segment_fixed_size 0\n.amdhsa_kernarg_size 96")
        a(".amdhsa_user_sgpr_count 2\n.amdhsa_user_sgpr_kernarg_segment_ptr 1\n.amdhsa_system_sgpr_workgroup_id_x 1\n.end_amdhsa_kernel")
        return a.render()

    def code_prefetch(self):
        a = self.a
        le = self.L("cpf")
        a(f"s_cmp_lg_u32 s3, 1\ns_cbranch_scc1 {le}\ns_cmp_lg_u32 s54, 0\ns_cbranch_scc1 {le}")
        a("s_getpc_b64 s[72:73]")
        a("L_pcref:")
        a(f"s_sub_u32 s72, s72, L_pcref-{KNAME}\ns_subb_u32 s73, s73, 0")
        a(f"v_lshlrev_b32 v{T[0]}, 5, v0\nv_add_u32 v{T[0]}, s5, v{T[0]}\nv_lshlrev_b32 v{T[0]}, 7, v{T[0]}")
        a(f"v_mov_b32 v{T[1]}, L_end-{KNAME}\nv_cmp_lt_u32 vcc, v{T[0]}, v{T[1]}\ns_and_b64 exec, vcc, exec")
        a(f"global_load_dword v{XA+5}, v{T[0]}, s[72:73] sc1")
        a("s_mov_b64 exec, -1")
        a(f"{le}:")

    def srd(self, *regs):
        for s in regs:
            self.a(f"s_mov_b32 s{s+2}, {self.size[s]}\ns_mov_b32 s{s+3}, 0x20000")
    def blk_setup(self):
        a = self.a
        a(f"s_mul_i32 s53, s4, {32*BS}\ns_mul_i32 s52, s5, {BS}\ns_add_u32 s52, s52, s53")
        a("s_cmp_ge_u32 s5, 10\ns_cselect_b32 s57, 1, 0\ns_cmp_ge_u32 s5, 20\ns_cselect_b32 s57, 2, s57\ns_cmp_ge_u32 s5, 30\ns_cselect_b32 s57, 3, s57")
        a("s_mul_i32 s56, s57, 10\ns_sub_u32 s56, s5, s56")
        a(f"v_lshlrev_b32 v{aP32}, 4, v1\nv_lshl_add_u32 v{aP32}, v3, 2, v{aP32}")
    def rest_setup(self, done, blk=True):
        a = self.a
        self.srd(*[r for r in (8, 12, 16, 20, 24, 28, 32, 36, 40, 48) if r not in done])
        if blk: self.blk_setup()
        a("s_mov_b32 s54, 0\ns_mov_b32 s55, 0")
        a("s_getreg_b32 s75, hwreg(HW_REG_XCC_ID)\ns_and_b32 s75, s75, 15")
        a("s_mov_b32 s64, 0x00ff00ff\ns_mov_b32 s65, 0x00ff00ff")
        a("s_mov_b32 s66, 0xaaaaaaaa\ns_mov_b32 s67, 0xaaaaaaaa\ns_mov_b32 s68, 0xcccccccc\ns_mov_b32 s69, 0xcccccccc")
        a("s_mov_b32 s44, 0x03ff03ff\ns_mov_b32 s45, 0x03ff03ff\ns_mov_b32 s46, 1\ns_mov_b32 s47, 1")
    def c_head(self):
        a = self.a
        a("L_pro_c:")
        self.srd(8, 48)
        self.blk_setup()
        a(f"v_mov_b32 v{T[0]}, 0")
        a("s_mov_b64 exec, 0xffff")
        a(f"ds_write_b32 v{lane4}, v{T[0]} offset:{L_CTRL}")
        a("s_mov_b64 exec, -1\ns_waitcnt lgkmcnt(0)")
        if self.B0E: a("s_barrier")
        if "noclr" not in self.knobs: self.clears(False)
        a(f"s_lshl_b32 s58, s56, 7\nbuffer_load_dword v{GB+4}, v{aP32}, s[8:11], s58 offen")
        if not self.B0E: a("s_barrier")

    def v_prologue(self):
        a = self.a
        self.srd(12, 16)
        a("s_lshl_b32 s58, s4, 2\ns_add_u32 s58, s58, s6\ns_mul_i32 s59, s58, 3145728")
        a("s_lshl_b32 s58, s7, 8\ns_and_b32 s60, s3, 3\ns_lshl_b32 s60, s60, 6\ns_add_u32 s58, s58, s60\ns_add_u32 s58, s58, 6144\ns_mul_i32 s58, s58, 384\ns_add_u32 s59, s59, s58")
        if "dbl" in self.knobs:
            a(f"v_mul_u32_u24 v{T[0]}, 384, v2\nv_lshl_add_u32 v{T[0]}, v1, 4, v{T[0]}\ns_sub_u32 s61, s59, {6144*384}")
            for srd in ("s[12:15]", "s[16:19]"):
                for n in range(24):
                    rg, th = divmod(n, 3)
                    if th == 0: a(f"s_add_u32 s58, s61, {rg*8*384}")
                    a(f"buffer_load_dwordx4 {q4(KV+4*n)}, v{T[0]}, {srd}, s58 offen offset:{th*128} nt")
            a("s_waitcnt vmcnt(12)")
        self.k_dma()
        for n in range(24):
            rg, th = divmod(n, 3)
            if n == self.NB:
                a(f"s_lshl_b32 s60, s3, 2\nv_mov_b32 v{T[2]}, s60\nv_mov_b32 v{T[3]}, 1")
                a(f"s_waitcnt vmcnt({self.NB})\nds_write_b32 v{T[2]}, v{T[3]} offset:{L_CTRL}")
                self.stamp(11)
            if th == 0: a(f"s_add_u32 s58, s59, {rg*8*384}")
            a(f"buffer_load_dwordx4 {q4(KV + 24*(rg>>1) + 8*th + 4*(rg&1))}, v{T[4]}, s[16:19], s58 offen offset:{th*128} nt")
        self.stamp(1)
        self.rest_setup((12, 16))
        if self.knobs & {"lo1", "lo2", "lo3"}:
            if "wo" in self.knobs:
                self.wo_loads()
                a("s_waitcnt vmcnt(8)")
                self.stamp(5)
            a("s_waitcnt vmcnt(0)")
            self.stamp(6)
            a("s_branch L_fin2")
        if self.WOE: self.wo_loads(self.WOE)
        if self.PRI == 1: a("s_setprio 1")
        self.consts()
        self.vwave_addrs()
        a("s_branch L_v_b2")

    def v_fetch_wq(self):
        a = self.a
        a(f"s_and_b32 s58, s3, 3\ns_min_u32 s58, s58, 2\ns_mul_i32 s58, s58, 10752\ns_add_u32 s58, s58, {L_WQ}\nv_lshlrev_b32 v{T[0]}, 4, v0\nv_add_u32 v{T[0]}, s58, v{T[0]}")
        for t in range(10):
            a(f"ds_read_b128 {q4(WA+4*t)}, v{T[0]} offset:{1024*t}")
        a(f"v_add_u32 v{T[1]}, s58, v{lane4}\nds_read_b32 v{CS0}, v{T[1]} offset:10240\nds_read_b32 v{CS1}, v{T[1]} offset:10496")
        self.read_fast()
        a(f"s_add_u32 s58, s53, {7*BS}\nbuffer_load_dword v{XA+3}, v{aX2}, {WS}, 0 offen offset:{X2O} sc1\nbuffer_load_dword v{XA+4}, v{aXS}, {WS}, s58 offen offset:{MISC} sc1")

    def zgather(self, layer, slp):
        a = self.a
        a(f"s_mul_i32 s58, s56, {BS}\ns_add_u32 s60, s58, {10*BS}\ns_add_u32 s61, s58, {20*BS}")
        self.sleep(slp)
        self.poll([f"buffer_load_dwordx4 {q4(GB+4*n)}, v{aROW}, {WS}, s{(58,60,61)[n]} offen offset:{ZO[layer]} sc1" for n in range(3)], range(GB, GB + 12),
                  spec=self.sum_spec(), pipe=self.PZ)
        self.stamp(10 if layer else 1)
        self.resid_add()

REF = "interleave_layers__sliding_block_cached__dense_activation_mish__decode.s.ref"
HEADER = open(REF).read().split("; Override")[0] if os.path.exists(REF) else ""

if __name__ == "__main__":
    prof = {"prof": 1, "lite": 3}.get(sys.argv[2], 0) if len(sys.argv) > 2 else 0
    open(sys.argv[1], "w").write(HEADER + Gen(prof, sys.argv[3:]).gen())
```

```python
import sys, os
sys.path.insert(0, "gen")
from asmlib import Asm

KNAME = "interleave_layers__sliding_block_cached__dense_activation_mish__decode_kernel"
BS = 4736
YO = [0, 128]; ZO = [256, 384]
QP1 = 512
OP = [896, 1280]
MISC = 1664
HPR = [1792, 2048]; HPC = 2304
X2O = 2560
CLR_END = 2816
QP0T = 3072
GEN_OFF = 256 * BS
FL1 = GEN_OFF + 4096; FL2 = GEN_OFF + 8192
WS_USED = GEN_OFF + 12288
PROF_OFF = 2 << 20
L_CTRL = 0
L_ML = 128
L_P = 256
L_O = 1024
L_YR = 4096
L_Q = 5120
L_K = 8192
L_WQ = L_K + 98304
LDS_BYTES = L_WQ + 3 * 10752
POLL_LIMIT = 200000
ONES = 4; SEL = 8; AB = [12, 16]; ACC = 20; GB = 36; XA = 60
aQG = 70; aP32 = 71; aROW = 72; aML = 73; aST = 74; ldsP = 75; lane4 = 76
CS0 = 77; CS1 = 78; X0 = 79; X1 = 80; B1V = 81; CSW1 = 82
T = [83, 84, 85, 86, 87, 1, 2, 3]
aX2 = 68; aXS = 69
KV = 88; WA = 184; WB = 224
WS = "s[48:51]"

DOC = """
Persistent fused kernel (generated by the author's own script): 256 workgroups x 8 waves, one per CU.
K, V and all weight slices are read from HBM once and stay in registers / LDS for both layer passes.
 wg = 8*m + xg : xg = group (expected XCD), head = 4*xg + m/8, key chunk = m%8 (256 keys).
 waves 0-3 ("K"): QK + softmax, partial combine, w1 / w2 GEMVs ; waves 4-7 ("V"): streaming, PV, wo and wq GEMVs.
GEMVs over [k][n] weights use v_mfma_f32_16x16x32_bf16 with a selector A operand (one non-zero per row).
LayerNorm is applied after the GEMV by linearity (rstd * (x.W - mean * colsum(W))).
Hand-offs go through d_ws: slots are cleared to 0xFFFFFFFF at kernel start and polled dword by dword;
a launch-unique tag (derived from one word of d_ws) validates the start-up flags and the first q exchange.
Group-local hand-offs use plain stores only if every member reported the same XCC id, else write-through stores.
Every poll loop is bounded.
"""

def q4(r): return f"v[{r}:{r+3}]"
DPPALL = "row_mask:0xf bank_mask:0xf"
Q1 = "quad_perm:[1,0,3,2]"; Q2 = "quad_perm:[2,3,0,1]"; HM = "row_half_mirror"; RM = "row_mirror"

class Gen:
    def __init__(self, prof=0, knobs=()):
        self.knobs = set(knobs)
        self.LL = 4; self.LL2 = 4; self.W2SL = 16; self.LAY = 1; self.EX = 1; self.PERT = 0; self.PALL = 0; self.PRI = 0; self.WOE = 0; self.WSP = 800; self.AMP = 0; self.B0IT = 0; self.B3B = 1; self.Q4 = 0; self.G4 = 0; self.PQ = 0; self.PO = 1; self.PX = 0; self.PH = 1; self.PZ = 0; self.PGAP = 12; self.TR = 1; self.XSLP = 0; self.Q1ST = 1; self.QPW = 0; self.FLSL = 127; self.QFB = 5; self.CPF0 = 1; self.B0E = 1; self.B0N = 0; self.OSC = 0; self.AL = 1; self.ALP = 3; self.SHIFT = 0; self.CPF = 0; self.NB = 8; self.QSLEEP0 = 56; self.QSLEEP1 = 24
        self.QSL = 12; self.OSL = 8; self.YSL0 = 16; self.YSL = 15; self.HSL = 10; self.ZSL = 11; self.XSL = 26; self.FSL = 8
        for k in knobs:
            if '=' in k: setattr(self, k.split('=')[0], int(k.split('=')[1]))
        self.WS = [self.WSP // 100, self.WSP // 10 % 10, self.WSP % 10]
        self.a = Asm(); self.prof = prof; self.uid = 0; self.ool = []
    def L(self, base):
        self.uid += 1
        return f"L_{base}_{self.uid}"
    def stamp(self, i):
        if self.prof == 3 and i not in (0, 6, 11): return
        if self.prof: self.a(f"s_memrealtime s[{76+2*i}:{77+2*i}]")
    def al(self, n=3):
        if self.AL: self.a(f".p2align {n}")
    def sleep(self, n):
        if n: self.a(f"s_sleep {n}")
    def dump_stamps(self):
        if not self.prof: return
        a = self.a
        a("s_waitcnt lgkmcnt(0)")
        a(f"v_mov_b32 v{T[0]}, 0")
        for i in range(13):
            a(f"v_writelane_b32 v{T[0]}, s{76+2*i}, {i}")
        a("s_lshl_b32 s58, s2, 3\ns_add_u32 s58, s58, s3\ns_lshl_b32 s58, s58, 1\ns_add_u32 s58, s58, s54\ns_lshl_b32 s58, s58, 6")
        a(f"s_add_u32 s58, s58, {PROF_OFF}")
        a("s_mov_b64 exec, 0xffff")
        a(f"buffer_store_dword v{T[0]}, v{lane4}, {WS}, s58 offen")
        a("s_mov_b64 exec, -1")
        for i in range(13):
            a(f"s_mov_b64 s[{76+2*i}:{77+2*i}], 0")
    def dump0(self):
        if not self.prof: return
        l = self.L("nd")
        self.a(f"s_cmp_lg_u32 s54, 0\ns_cbranch_scc1 {l}")
        self.dump_stamps()
        self.a(f"{l}:")
    def local_stores(self, lines):
        a = self.a
        ls, ld = self.L("sl"), self.L("sd")
        a(f"s_cmp_eq_u32 s55, 0\ns_cbranch_scc1 {ls}")
        for x in lines: a(x.replace("{f}", ""))
        a(f"{ld}:")
        self.ool.append([f"{ls}:", "s_nop 7"] + [x.replace("{f}", " sc1") for x in lines] + ["s_nop 1", f"s_branch {ld}"])
    def poll(self, loads, regs, entry=None, slp=0, spec=(), pipe=0):
        a = self.a
        lp, lr, ld = self.L("poll"), self.L("retry"), self.L("got")
        a("s_mov_b32 s70, 0")
        nld = sum(1 for x in loads if x.startswith("buffer_"))
        post = []
        if pipe:
            for _ in range(pipe):
                for x in loads: a(x)
                a(f"s_nop {self.PGAP}\ns_nop {self.PGAP}")
            post = list(spec); spec = ()
        a(f"{lp}:")
        for x in loads: a(x)
        if self.TR and not slp:
            a(f"s_add_u32 s70, s70, 1\ns_cmp_lt_u32 s70, {POLL_LIMIT}\ns_cbranch_scc0 {lr}")
        if entry: a(f"{entry}:")
        self.al(self.ALP)
        a(f"s_nop 0\ns_waitcnt vmcnt({nld * pipe})")
        t = T[7]
        rs = list(regs)
        chk = []
        if len(rs) == 1:
            chk.append(f"v_cmp_eq_u32 vcc, -1, v{rs[0]}")
        else:
            if len(rs) == 2:
                chk.append(f"v_max_u32 v{t}, v{rs[0]}, v{rs[1]}"); rs = []
            else:
                chk.append(f"v_max3_u32 v{t}, v{rs[0]}, v{rs[1]}, v{rs[2]}"); rs = rs[3:]
            while rs:
                if len(rs) >= 2:
                    chk.append(f"v_max3_u32 v{t}, v{t}, v{rs[0]}, v{rs[1]}"); rs = rs[2:]
                else:
                    chk.append(f"v_max_u32 v{t}, v{t}, v{rs[0]}"); rs = rs[1:]
            chk.append(f"v_cmp_eq_u32 vcc, -1, v{t}")
        spec = list(spec)
        while spec or chk:
            if spec: a(spec.pop(0))
            for _ in range(2):
                if chk: a(chk.pop(0))
        if self.TR and not slp:
            a(f"s_cbranch_vccnz {lp}")
            a(f"{ld}:")
            for x in post: a(x)
            self.ool.append([f"{lr}:", "s_waitcnt vmcnt(0)", f"s_branch {ld}"])
            return
        a(f"s_cbranch_vccnz {lr}")
        a(f"{ld}:")
        self.ool.append([f"{lr}:", f"s_sleep {slp}" if slp else "s_nop 7", f"s_add_u32 s70, s70, 1", f"s_cmp_lt_u32 s70, {POLL_LIMIT}", f"s_cbranch_scc1 {lp}", f"s_branch {ld}"])
    def mfma_s(self, D, A, B, first):
        return f"v_mfma_f32_16x16x32_bf16 {q4(D)}, {q4(A)}, {q4(B)}, {'0' if first else q4(D)}"
    def flush_ool(self):
        for blk in self.ool:
            for x in blk: self.a(x)
        self.ool = []
    def build_A(self, dst, src):
        for d in range(4):
            self.a(f"v_perm_b32 v{dst+d}, v{src}, v{src}, v{SEL+d}")
    def mfma(self, D, A, B, first):
        self.a(f"v_mfma_f32_16x16x32_bf16 {q4(D)}, {q4(A)}, {q4(B)}, {'0' if first else q4(D)}")
    def pair32(self, D, t0, t1):
        self.a(f"v_add_f32_dpp v{t0}, v{D+1}, v{D} row_ror:8 {DPPALL}")
        self.a(f"v_add_f32_dpp v{t1}, v{D+3}, v{D+2} row_ror:8 {DPPALL}")
    def l64(self, D, t):
        self.a(f"v_add_f32_dpp v{t}, v{D+1}, v{D} row_ror:8 row_mask:0xf bank_mask:0x3")
        self.a(f"v_add_f32_dpp v{t}, v{D+2}, v{D+3} row_ror:8 row_mask:0xf bank_mask:0xc")
    def gemv_bcast(self, D, pair, W, n, fill=()):
        a = self.a
        fill = list(fill)
        tb = [T[5], T[6]]
        self.al()
        a(f"v_mov_b32_dpp v{tb[0]}, v{pair} row_newbcast:0 {DPPALL}")
        for t in range(n):
            if t + 1 < n:
                a(f"v_mov_b32_dpp v{tb[(t+1)&1]}, v{pair} row_newbcast:{t+1} {DPPALL}")
            self.build_A(AB[t & 1], tb[t & 1])
            if t > 0: self.mfma(D, AB[(t-1) & 1], W + 4 * (t-1), t == 1)
            for _ in range(2):
                if fill: a(fill.pop(0))
        self.mfma(D, AB[(n-1) & 1], W + 4 * (n-1), n == 1)
        for x in fill: a(x)
    def bf16r_ops(self, dst, src):
        return [f"v_cvt_pk_bf16_f32 v{dst}, v{src}, v{src}", f"v_lshlrev_b32 v{dst}, 16, v{dst}"]
    def bf16r(self, dst, src):
        for x in self.bf16r_ops(dst, src): self.a(x)
    def ln_ops(self, s1, s2, t):
        inv = "0x3acccccd"
        if self.EX:
            return [f"v_mul_f32 v{s1}, {inv}, v{s1}", f"v_mul_f32 v{s2}, {inv}, v{s2}", f"v_fma_f32 v{s2}, -v{s1}, v{s1}, v{s2}",
                    f"v_max_f32 v{s2}, 0, v{s2}", f"v_add_f32 v{s2}, 0x3727c5ac, v{s2}", f"v_rsq_f32 v{s2}, v{s2}"]
        return [f"v_mul_f32 v{s1}, {inv}, v{s1}", f"v_mul_f32 v{s2}, {inv}, v{s2}", f"v_fma_f32 v{s2}, -v{s1}, v{s1}, v{s2}",
                f"v_max_f32 v{s2}, 0, v{s2}", f"v_cvt_pk_bf16_f32 v{t}, v{s1}, v{s2}", f"v_lshlrev_b32 v{s1}, 16, v{t}",
                f"v_and_b32 v{s2}, 0xffff0000, v{t}", f"v_add_f32 v{s2}, 0x3727c5ac, v{s2}"] + self.bf16r_ops(s2, s2) + \
               [f"v_sqrt_f32 v{s2}, v{s2}"] + self.bf16r_ops(s2, s2) + [f"v_rcp_f32 v{s2}, v{s2}"]
    def red2_ops(self, s1, s2, steps, tmp):
        return [f"v_permlane32_swap_b32 v{s1}, v{s2}", f"v_add_f32 v{s1}, v{s1}, v{s2}", f"v_mov_b32 v{tmp}, v{s1}",
                f"v_permlane16_swap_b32 v{s1}, v{tmp}", f"v_add_f32 v{s1}, v{s1}, v{tmp}"] + \
               [f"v_add_f32_dpp v{s1}, v{s1}, v{s1} {c} {DPPALL}" for c in steps]
    def row16_ops(self, s1, s2, i1=None, i2=None):
        out = []
        for c in (Q1, Q2, HM, RM):
            a1 = i1 if (c == Q1 and i1 is not None) else s1
            a2 = i2 if (c == Q1 and i2 is not None) else s2
            out += [f"v_add_f32_dpp v{s1}, v{a1}, v{a1} {c} {DPPALL}", f"v_add_f32_dpp v{s2}, v{a2}, v{a2} {c} {DPPALL}"]
        return out
    def allred64(self, op, v, tmp):
        a = self.a
        for c in (Q1, Q2, HM, RM):
            a(f"{op}_dpp v{v}, v{v}, v{v} {c} {DPPALL}")
        a(f"v_mov_b32 v{tmp}, v{v}\nv_permlane16_swap_b32 v{v}, v{tmp}\n{op} v{v}, v{v}, v{tmp}")
        a(f"v_mov_b32 v{tmp}, v{v}\nv_permlane32_swap_b32 v{v}, v{tmp}\n{op} v{v}, v{v}, v{tmp}")
    def sel_layer(self, dst, arr, add=None):
        a = self.a
        a(f"s_mul_i32 s{dst}, s54, {arr[1]-arr[0]}")
        if arr[0]: a(f"s_add_u32 s{dst}, s{dst}, {arr[0]}")
        if add is not None: a(f"s_add_u32 s{dst}, s{dst}, s{add}")
    def lds_wait_flag(self, off, val=None, fb=0):
        a = self.a
        lp, ld = self.L("lw"), self.L("lg")
        t = T[5]; t2 = T[6]
        a(f"v_mov_b32 v{t2}, {off}\ns_mov_b32 s70, 0")
        a(f"{lp}:\nds_read_b32 v{t}, v{t2}\ns_waitcnt lgkmcnt(0)\nv_readfirstlane_b32 s58, v{t}")
        a(f"s_cmp_lg_u32 s58, 0\ns_cbranch_scc1 {ld}" if val is None else f"s_cmp_eq_u32 s58, {val}\ns_cbranch_scc1 {ld}")
        a("s_sleep 1\ns_add_u32 s70, s70, 1")
        if fb: self.q_fallback(fb)
        a(f"s_cmp_lt_u32 s70, {4*POLL_LIMIT}\ns_cbranch_scc1 {lp}")
        a(f"{ld}:")
    def q_fallback(self, thresh):
        a = self.a
        QD = XA + 6
        le = self.L("qfb")
        a(f"s_cmp_lt_u32 s70, {thresh}\ns_cbranch_scc1 {le}\ns_cmp_lg_u32 s71, 0\ns_cbranch_scc1 {le}\ns_cmp_eq_u32 s3, 3\ns_cbranch_scc1 {le}")
        a("s_mov_b32 s71, 1\ns_mov_b64 exec, s[64:65]")
        a(f"buffer_store_dwordx2 v[{QD}:{QD+1}], v{X0}, {WS}, s63 offen offset:{QP0T} sc1")
        a(f"s_mov_b64 exec, -1\ns_waitcnt vmcnt(0)\n{le}:")
    def read_fast(self):
        self.a(f"v_mov_b32 v{T[2]}, {L_CTRL+4}\nds_read_b32 v{T[2]}, v{T[2]}\ns_waitcnt lgkmcnt(0)\nv_readfirstlane_b32 s55, v{T[2]}\ns_lshr_b32 s55, s55, 1")
    def make_tag(self):
        self.a("s_waitcnt lgkmcnt(0)\ns_mul_i32 s74, s74, 1664525\ns_add_u32 s74, s74, 1013904223")
    def resid_add(self):
        a = self.a
        self.pair32(ACC, T[2], T[3])
        if not self.EX:
            a(f"v_cvt_pk_bf16_f32 v{T[4]}, v{T[2]}, v{T[3]}")
            a(f"v_lshlrev_b32 v{T[2]}, 16, v{T[4]}\nv_and_b32 v{T[3]}, 0xffff0000, v{T[4]}")
        a(f"v_add_f32 v{T[2]}, v{T[2]}, v{X0}\nv_add_f32 v{T[3]}, v{T[3]}, v{X1}")
        a(f"v_cvt_pk_bf16_f32 v{T[4]}, v{T[2]}, v{T[3]}")
    def gather4(self, src, Q):
        a = self.a
        a(f"v_mov_b32 v{Q}, v{src}\nv_mov_b32 v{Q+1}, v{src}")
        a(f"v_permlane16_swap_b32 v{Q}, v{Q+1}")
        a(f"v_mov_b32 v{Q+2}, v{Q}\nv_mov_b32 v{Q+3}, v{Q+1}")
        a(f"v_permlane32_swap_b32 v{Q}, v{Q+2}\nv_permlane32_swap_b32 v{Q+1}, v{Q+3}")
    def unpackX_ops(self, src):
        return [f"v_lshlrev_b32 v{X0}, 16, v{src}", f"v_and_b32 v{X1}, 0xffff0000, v{src}"]
    def xstats_ops(self, s1, s2, tmp):
        return [f"v_add_f32 v{s1}, v{X0}, v{X1}", f"v_mul_f32 v{s2}, v{X0}, v{X0}", f"v_fmac_f32 v{s2}, v{X1}, v{X1}"] + self.red2_ops(s1, s2, (Q1, Q2, HM), tmp)
    def rows24_loads(self, off_arr):
        a = self.a
        self.sel_layer(58, off_arr)
        a(f"s_mul_i32 s60, s56, {BS}\ns_add_u32 s58, s58, s60\ns_add_u32 s60, s58, {10*BS}\ns_add_u32 s61, s58, {20*BS}")
        return [f"buffer_load_dwordx4 {q4(GB+4*n)}, v{aROW}, {WS}, s{(58,60,61)[n]} offen sc1" for n in range(3)]
    def consts(self):
        a = self.a
        t0, t1, t2 = T[0], T[1], T[2]
        a(f"v_and_b32 v{t0}, 1, v0\nv_mul_u32_u24 v{t0}, 0x202, v{t0}\nv_add_u32 v{t0}, 0x100, v{t0}")
        a(f"v_bfe_u32 v{t1}, v0, 1, 1\nv_lshlrev_b32 v{t1}, 4, v{t1}\nv_lshlrev_b32 v{t0}, v{t1}, v{t0}")
        a(f"v_mov_b32 v{t2}, 0x0c0c0000\nv_lshrrev_b32 v{t2}, v{t1}, v{t2}\nv_or_b32 v{t0}, v{t0}, v{t2}")
        a(f"v_bfe_u32 v{t1}, v0, 2, 2\nv_mov_b32 v{t2}, 0x0c0c0c0c")
        for d in range(4):
            a(f"v_cmp_eq_u32 vcc, {d}, v{t1}\nv_cndmask_b32 v{SEL+d}, v{t2}, v{t0}, vcc")
        a(f"v_mov_b32 v{t0}, 0x3f803f80")
        self.build_A(ONES, t0)
    def kwave_addrs(self):
        a = self.a
        t0, t1, t2 = T[0], T[1], T[2]
        a(f"v_lshrrev_b32 v{t0}, 3, v0\nv_and_b32 v{t1}, 7, v0\ns_mov_b32 s58, {32*BS}\nv_mul_lo_u32 v{aROW}, s58, v{t0}\nv_lshl_add_u32 v{aROW}, v{t1}, 4, v{aROW}")
        a(f"v_mul_u32_u24 v{aX2}, {BS}, v{t1}\nv_lshrrev_b32 v{t1}, 4, v0\nv_lshl_add_u32 v{aX2}, v{t1}, 6, v{aX2}")
        a(f"s_lshl_b32 s58, s56, 2\ns_add_u32 s58, s58, s53\nv_add_u32 v{aX2}, s58, v{aX2}")
        a(f"v_bfe_u32 v{t0}, v0, 3, 1\nv_lshl_add_u32 v{t0}, v{t0}, 2, v{t1}\nv_mul_u32_u24 v{aQG}, {BS}, v{t0}")
        a(f"v_and_b32 v{t0}, 7, v0\nv_lshl_add_u32 v{aQG}, v{t0}, 4, v{aQG}")
        a(f"s_mul_i32 s58, s6, {8*BS}\ns_add_u32 s58, s58, s53\nv_add_u32 v{aQG}, s58, v{aQG}")
        a(f"v_and_b32 v{t0}, 3, v0\nv_lshlrev_b32 v{t0}, 4, v{t0}\nv_lshl_add_u32 v{t0}, v{t1}, 2, v{t0}\nv_bfe_u32 v{t2}, v0, 2, 2\nv_add_u32 v{t0}, v{t0}, v{t2}")
        a(f"v_bfe_u32 v{t2}, v{t0}, 1, 2\nv_lshlrev_b32 v{ldsP}, 5, v{t2}\nv_lshrrev_b32 v{t2}, 3, v{t0}\nv_lshl_add_u32 v{ldsP}, v{t2}, 2, v{ldsP}")
        a(f"v_and_b32 v{t2}, 1, v{t0}\nv_lshl_add_u32 v{ldsP}, v{t2}, 1, v{ldsP}")
        a(f"s_lshl_b32 s58, s3, 7\ns_add_u32 s58, s58, {L_P}\nv_add_u32 v{ldsP}, s58, v{ldsP}")
        a(f"v_and_b32 v{t0}, 15, v0\nv_mul_u32_u24 v{aML}, {BS}, v{t1}\nv_lshl_add_u32 v{aML}, v{t0}, 4, v{aML}")
        a(f"v_lshlrev_b32 v{aST}, 4, v{t0}\nv_lshl_add_u32 v{aST}, v{t1}, 2, v{aST}\nv_lshlrev_b32 v{aXS}, 3, v{t0}")
    def vwave_addrs(self):
        a = self.a
        a("v_and_b32 v1, 7, v0\nv_lshrrev_b32 v2, 3, v0\nv_lshrrev_b32 v3, 4, v0")
        a("s_min_u32 s61, s57, 2\ns_lshl_b32 s58, s61, 2\ns_and_b32 s60, s3, 3\ns_add_u32 s58, s58, s60\ns_mul_i32 s60, s58, 43\ns_lshr_b32 s60, s60, 7")
        a("s_mul_i32 s61, s60, 3\ns_sub_u32 s58, s58, s61")
        a(f"s_mul_i32 s60, s60, {8*BS}\ns_add_u32 s60, s60, s53\ns_lshl_b32 s58, s58, 7\ns_add_u32 s58, s58, s60")
        a(f"v_mul_u32_u24 v{aQG}, {BS}, v2\nv_lshl_add_u32 v{aQG}, v1, 4, v{aQG}\nv_add_u32 v{aQG}, s58, v{aQG}")
        a(f"v_lshl_add_u32 v{aML}, v3, 1, v0\nv_and_b32 v{aML}, 7, v{aML}\nv_lshlrev_b32 v{aML}, 3, v{aML}\nv_add_u32 v{aML}, s60, v{aML}")
        a(f"s_and_b32 s58, s3, 3\ns_lshl_b32 s58, s58, 7\ns_add_u32 s58, s58, {L_P}\nv_lshlrev_b32 v{ldsP}, 5, v3\nv_add_u32 v{ldsP}, s58, v{ldsP}")
        a(f"s_mul_i32 s58, s6, {8*BS}\ns_add_u32 s58, s58, s53\ns_and_b32 s60, s3, 3\ns_lshl_b32 s60, s60, 7\ns_add_u32 s58, s58, s60\ns_lshl_b32 s60, s7, 4\ns_add_u32 s58, s58, s60")
        a(f"v_mul_u32_u24 v{aST}, {BS}, v1\nv_lshl_add_u32 v{aST}, v3, 2, v{aST}\nv_add_u32 v{aST}, s58, v{aST}")
        a(f"s_mul_i32 s58, s7, {BS}\ns_add_u32 s58, s58, s53\nv_add_u32 v{aX2}, s58, v{lane4}")
        a(f"v_and_b32 v{aXS}, 15, v0\nv_lshlrev_b32 v{aXS}, 3, v{aXS}\nv_mov_b32 v{aROW}, 0")
    def k_dma(self):
        a = self.a
        t = T[0]; t2 = T[1]
        a(f"v_lshrrev_b32 v{t}, 3, v0\nv_and_b32 v{t2}, 6, v{t}\nv_xor_b32 v{t2}, v{t2}, v0\nv_and_b32 v{t2}, 7, v{t2}")
        a(f"v_mul_u32_u24 v{t}, 384, v{t}\nv_lshl_add_u32 v{t}, v{t2}, 4, v{t}")
        a(f"s_and_b32 s60, s3, 3\ns_mul_i32 s60, s60, 24576\ns_add_u32 s60, s60, {L_K}\ns_mov_b32 s58, s59\ns_add_u32 s61, s59, {64*384}")
        a(f"v_mul_u32_u24 v{T[4]}, 384, v2\nv_lshl_add_u32 v{T[4]}, v1, 4, v{T[4]}")
        a("s_waitcnt lgkmcnt(0)")
        self.stamp(2)
        if self.B0IT == 0: a("s_barrier")
        self.stamp(3)
        a(f"s_add_u32 s62, s59, {3072*self.B0IT}")
        a("L_kdma:")
        for th in range(3):
            a(f"s_add_u32 m0, s60, {th*1024 - th*128}")
            a(f"buffer_load_dwordx4 v{t}, s[12:15], s58 offen offset:{th*128} nt lds")
        a("s_add_u32 s60, s60, 3072\ns_add_u32 s58, s58, 3072")
        if self.B0IT: a("s_cmp_lg_u32 s58, s62\ns_cbranch_scc1 L_kdma_nb\ns_barrier\nL_kdma_nb:")
        a("s_cmp_lt_u32 s58, s61\ns_cbranch_scc1 L_kdma")
    def k_to_regs(self):
        a = self.a
        t = T[0]; t2 = T[1]; t3 = T[2]
        a(f"v_and_b32 v{t}, 7, v0\nv_lshrrev_b32 v{t2}, 4, v0\nv_and_b32 v{t3}, 6, v0\nv_xor_b32 v{t2}, v{t2}, v{t3}")
        a(f"v_lshlrev_b32 v{t}, 7, v{t}\nv_bfe_u32 v{t3}, v0, 3, 1\nv_mul_u32_u24 v{t3}, 3072, v{t3}\nv_add_u32 v{t}, v{t}, v{t3}")
        a(f"s_mul_i32 s60, s3, 24576\nv_add_u32 v{t}, s60, v{t}")
        a(f"v_lshl_add_u32 v{t3}, v{t2}, 4, v{t}")
        a(f"v_xor_b32 v{t2}, 4, v{t2}\nv_lshl_add_u32 v{t2}, v{t2}, 4, v{t}")
        for tile in range(4):
            for u in range(6):
                off = L_K + (2 * tile * 3 + (u >> 1)) * 1024
                a(f"ds_read_b128 {q4(KV + (tile*6+u)*4)}, v{t2 if (u & 1) else t3} offset:{off}")
            if tile == 1: a("s_waitcnt lgkmcnt(0)")
        a("s_waitcnt lgkmcnt(0)")
    def wo_part(self, lo, hi):
        a = self.a
        le = self.L("wop")
        a(f"s_cmp_lg_u32 s54, 0\ns_cbranch_scc1 {le}")
        for t in range(lo, hi):
            a(f"buffer_load_dwordx4 {q4(WB+4*t)}, v{XA}, s[24:27], s63 offen nt")
            if t < 7: a(f"s_add_u32 s63, s63, {8*1280}")
        a(f"{le}:")
    def wo_loads(self, n=8):
        a = self.a
        t1 = XA
        a(f"v_lshrrev_b32 v{t1}, 3, v0\nv_mul_u32_u24 v{t1}, 1280, v{t1}\nv_and_b32 v{XA+1}, 7, v0\nv_lshl_add_u32 v{t1}, v{XA+1}, 4, v{t1}")
        a("s_min_u32 s62, s57, 2\ns_mul_i32 s58, s4, 768\ns_lshl_b32 s60, s62, 8\ns_add_u32 s58, s58, s60\ns_and_b32 s60, s3, 3\ns_lshl_b32 s60, s60, 6\ns_add_u32 s58, s58, s60")
        a("s_mul_i32 s58, s58, 1280\ns_lshl_b32 s60, s56, 7\ns_add_u32 s58, s58, s60")
        a("s_cmp_ge_u32 s5, 30\ns_cselect_b32 s58, 0x7f000000, s58")
        for t in range(n):
            a(f"buffer_load_dwordx4 {q4(WB+4*t)}, v{t1}, s[24:27], s58 offen nt")
            if t < 7: a(f"s_add_u32 s58, s58, {8*1280}")
        a("s_mov_b32 s63, s58")
    def w1_loads(self):
        a = self.a
        t0, t1 = T[2], T[3]
        a(f"v_lshrrev_b32 v{t0}, 3, v0\nv_and_b32 v{t1}, 7, v0\nv_mul_u32_u24 v{t0}, 3072, v{t0}\nv_lshl_add_u32 v{t0}, v{t1}, 4, v{t0}")
        a(f"s_mul_i32 s58, s56, {64*3072}\ns_mul_i32 s60, s4, 384\ns_add_u32 s58, s58, s60\ns_lshl_b32 s60, s57, 7\ns_add_u32 s58, s58, s60")
        for t in range(8):
            a(f"buffer_load_dwordx4 {q4(WB+4*t)}, v{t0}, s[28:31], s58 offen nt")
            if t < 7: a(f"s_add_u32 s58, s58, {8*3072}")
    def w2_loads(self):
        a = self.a
        t0, t1 = T[2], T[3]
        a(f"v_lshrrev_b32 v{t0}, 3, v0\nv_and_b32 v{t1}, 7, v0\nv_mul_u32_u24 v{t0}, 1280, v{t0}\nv_lshl_add_u32 v{t0}, v{t1}, 4, v{t0}")
        a("s_mul_i32 s58, s4, 192\ns_lshl_b32 s60, s57, 6\ns_add_u32 s61, s58, s60\ns_mul_i32 s58, s61, 1280\ns_lshl_b32 s60, s56, 7\ns_add_u32 s58, s58, s60")
        for t in range(8):
            a(f"buffer_load_dwordx4 {q4(WB+4*t)}, v{t0}, s[36:39], s58 offen nt")
            if t < 7: a(f"s_add_u32 s58, s58, {8*1280}")
        a(f"v_bfe_u32 v{t0}, v0, 3, 1\nv_lshl_add_u32 v{t0}, v{t0}, 1, v{aP32}\ns_lshl_b32 s61, s61, 1")
        a(f"buffer_load_ushort v{B1V}, v{t0}, s[32:35], s61 offen")
    def clears(self, all_sc1):
        a = self.a
        C = XA + 4
        for i in range(4): a(f"v_mov_b32 v{C+i}, -1")
        a(f"v_lshlrev_b32 v{T[3]}, 4, v0")
        f = " sc1" if all_sc1 else ""
        a("s_mov_b32 exec_hi, 0")
        a(f"buffer_store_dwordx4 {q4(C)}, v{T[3]}, {WS}, s52 offen sc1")
        a("s_mov_b32 exec_lo, 0xffff")
        a(f"buffer_store_dwordx4 {q4(C)}, v{T[3]}, {WS}, s52 offen offset:2560{f}")
        a("s_mov_b64 exec, -1")
        for o in (512, 1536):
            a(f"buffer_store_dwordx4 {q4(C)}, v{T[3]}, {WS}, s52 offen offset:{o}{f}")
    def flag_store(self, base):
        a = self.a
        C = XA + 4
        if base == FL1:
            a("s_xor_b32 s58, s74, 0x5bd1e995\ns_andn2_b32 s58, s58, 15\ns_or_b32 s75, s75, s58")
        a(f"s_lshl_b32 s58, s4, 5\ns_add_u32 s58, s58, s5\ns_lshl_b32 s58, s58, 3\ns_add_u32 s58, s58, {base}")
        a(f"v_mov_b32 v{C}, s74\nv_mov_b32 v{C+1}, s75")
        a("s_mov_b64 exec, 1")
        a(f"buffer_store_dwordx2 v[{C}:{C+1}], v{aP32}, {WS}, s58 offen sc1")
        a("s_mov_b64 exec, -1")
    def flags_issue(self, base):
        a = self.a
        F = AB[0]
        a(f"v_lshlrev_b32 v{T[4]}, 5, v0\ns_mov_b32 s60, {base}")
        a(f"buffer_load_dwordx4 {q4(F)}, v{T[4]}, {WS}, s60 offen sc1\nbuffer_load_dwordx4 {q4(F+4)}, v{T[4]}, {WS}, s60 offen offset:16 sc1")
    def flags_wait(self, base, group_only):
        a = self.a
        F = AB[0]
        t, t2 = T[2], T[3]
        lp, lc, ld = self.L("fp"), self.L("fc"), self.L("fg")
        a("s_mov_b32 s70, 0\ns_or_b32 s61, s75, 15")
        if base == FL1: a(f"s_branch {lc}")
        a(f"{lp}:")
        self.flags_issue(base)
        a(f"{lc}:")
        a("s_waitcnt vmcnt(0)")
        a(f"v_xor_b32 v{t}, s74, v{F}")
        for i in range(1, 4):
            a(f"v_xor_b32 v{t2}, s74, v{F+2*i}\nv_or_b32 v{t}, v{t}, v{t2}")
        for i in range(4):
            a(f"v_or_b32 v{t2}, 15, v{F+2*i+1}\nv_xor_b32 v{t2}, s61, v{t2}\nv_or_b32 v{t}, v{t}, v{t2}")
        a(f"v_cmp_ne_u32 vcc, 0, v{t}")
        if group_only: a(f"s_and_b64 vcc, vcc, s[72:73]\ns_cbranch_scc0 {ld}")
        else: a(f"s_cbranch_vccz {ld}")
        a(f"s_sleep 16\ns_add_u32 s70, s70, 1\ns_cmp_lt_u32 s70, {POLL_LIMIT}\ns_cbranch_scc1 {lp}\n{ld}:")
    def flags_check(self):
        a = self.a
        F = AB[0]; t, t2 = T[2], T[3]
        lf = self.L("fast")
        a("s_lshl_b32 s58, s4, 3\ns_mov_b64 s[72:73], 0xff\ns_lshl_b64 s[72:73], s[72:73], s58")
        self.flags_wait(FL1, False)
        a(f"v_xor_b32 v{t}, s75, v{F+1}")
        for i in range(1, 4):
            a(f"v_xor_b32 v{t2}, s75, v{F+2*i+1}\nv_or_b32 v{t}, v{t}, v{t2}")
        a(f"v_cmp_ne_u32 vcc, 0, v{t}\ns_mov_b32 s55, 1\ns_and_b64 vcc, vcc, s[72:73]")
        if "forceslow" not in self.knobs: a(f"s_cbranch_scc0 {lf}")
        a("s_mov_b32 s55, 0")
        self.clears(True)
        a("s_waitcnt vmcnt(0)")
        self.flag_store(FL2)
        self.flags_wait(FL2, True)
        a(f"{lf}:")
        a(f"s_lshl_b32 s58, s55, 1\ns_or_b32 s58, s58, 1\nv_mov_b32 v{t}, s58\nv_mov_b32 v{T[3]}, {L_CTRL}\nds_write_b32 v{T[3]}, v{t} offset:4")
    def qproj(self, pair, s1, s2, pre_ops):
        a = self.a
        self.gemv_bcast(ACC, pair, WA, 10, fill=list(pre_ops) + self.ln_ops(s1, s2, T[2]))
        self.pair32(ACC, T[2], T[3])
        a(f"v_fma_f32 v{T[2]}, -v{s1}, v{CS0}, v{T[2]}\nv_fma_f32 v{T[3]}, -v{s1}, v{CS1}, v{T[3]}")
        a(f"v_mul_f32 v{T[2]}, v{T[2]}, v{s2}\nv_mul_f32 v{T[3]}, v{T[3]}, v{s2}")
        a(f"v_cvt_pk_bf16_f32 v{T[4]}, v{T[2]}, v{T[3]}")

    def gen(self):
        a = self.a
        a(f"; @launch grid=(256,1,1) block=(512,1,1) lds={LDS_BYTES}")
        for ln in DOC.strip().split("\n"): a("; " + ln)
        a('.amdgcn_target "amdgcn-amd-amdhsa--gfx950"\n.text')
        a(f".globl {KNAME}\n.p2align 8\n.type {KNAME},@function")
        a(f"{KNAME}:")
        a("s_cmp_ge_u32 s2, 256\ns_cbranch_scc1 L_end")
        for _ in range(self.SHIFT): a("s_nop 0")
        if self.prof:
            for i in range(13): a(f"s_mov_b64 s[{76+2*i}:{77+2*i}], 0")
        self.stamp(0)
        if self.AMP: a("s_memrealtime s[92:93]")
        ptr = {12: 8, 20: 24, 8: 0, 48: 88, 16: 16, 24: 32, 28: 48, 32: 56, 36: 64, 40: 72}
        size = {8: 1280, 12: 100663296, 16: 100663296, 20: 7864320, 24: 7864320, 28: 1966080, 32: 3072, 36: 1966080, 40: 1280,
                48: (PROF_OFF + 256 * 8 * 2 * 64) if self.prof else WS_USED}
        for s, off in ptr.items():
            a(f"s_load_dwordx2 s[{s}:{s+1}], s[0:1], {off}")
        a("v_lshrrev_b32 v1, 6, v0\nv_and_b32 v0, 63, v0\nv_readfirstlane_b32 s3, v1")
        if self.CPF0:
            a("s_getpc_b64 s[72:73]")
            a("L_pcref0:")
            a(f"s_sub_u32 s72, s72, L_pcref0-{KNAME}\ns_subb_u32 s73, s73, 0")
            a("s_and_b32 s58, s2, 0xf8\ns_add_u32 s58, s58, s3\ns_lshl_b32 s58, s58, 7")
            a(f"s_cmp_ge_u32 s58, L_end-{KNAME}\ns_cbranch_scc1 L_nocpf0")
            a(f"v_mov_b32 v2, s58\ns_mov_b64 exec, 1\nglobal_load_dword v{WA+39}, v2, s[72:73]\ns_mov_b64 exec, -1")
            a("L_nocpf0:")
        self.size = size
        a("s_and_b32 s4, s2, 7\ns_lshr_b32 s5, s2, 3\ns_lshr_b32 s6, s5, 3\ns_and_b32 s7, s5, 7")
        a("v_and_b32 v1, 7, v0\nv_lshrrev_b32 v2, 3, v0\nv_lshrrev_b32 v3, 4, v0")
        a(f"v_lshlrev_b32 v{lane4}, 2, v0")
        if self.LAY == 0:
            a("s_cmp_lt_u32 s3, 4\ns_cbranch_scc1 L_pro_k")
            self.v_prologue()
            a("L_pro_k:")
        else:
            a("s_cmp_ge_u32 s3, 4\ns_cbranch_scc1 L_pro_v")
        a(f"s_setprio 3\ns_mov_b32 s71, {GEN_OFF}")
        a("s_cmp_eq_u32 s3, 3\ns_cbranch_scc1 L_pro_c")
        XS = GB
        self.srd(8, 20)
        a(f"v_lshlrev_b32 v{T[0]}, 4, v0")
        a(f"v_and_b32 v{T[1]}, 15, v0\nv_lshlrev_b32 v{T[1]}, 7, v{T[1]}\nv_lshl_add_u32 v{T[1]}, v3, 2, v{T[1]}\ns_lshl_b32 s61, s7, 4")
        a(f"v_mul_u32_u24 v{T[2]}, 12288, v2\nv_lshl_add_u32 v{T[2]}, v1, 4, v{T[2]}")
        a(f"s_lshl_b32 s58, s4, 2\ns_add_u32 s58, s58, s6\ns_mul_i32 s58, s58, 384\ns_lshl_b32 s60, s3, 7\ns_add_u32 s58, s58, s60\ns_mul_i32 s60, s7, {8*12288}\ns_add_u32 s58, s58, s60")
        a("s_waitcnt lgkmcnt(0)")
        a(f"buffer_load_dwordx4 {q4(XS)}, v{T[0]}, s[8:11], 0 offen")
        a(f"buffer_load_dword v{XS+4}, v{lane4}, s[8:11], 0 offen offset:1024")
        a(f"buffer_load_dword v{XA}, v{T[1]}, s[8:11], s61 offen")
        for t in range(10 if "nowq" not in self.knobs else 0):
            a(f"buffer_load_dwordx4 {q4(WA+4*t)}, v{T[2]}, s[20:23], s58 offen nt")
            if t < 9: a(f"s_add_u32 s58, s58, {64*12288}")
        if self.QPW:
            a(f"v_mov_b32 v{XA+6}, -1\ns_lshl_b32 s60, s3, 8\ns_add_u32 s63, s52, s60")
            a(f"buffer_store_dword v{XA+6}, v{lane4}, {WS}, s63 offen offset:{QP0T+768}")
        a("s_barrier")
        if self.LAY:
            a("s_branch L_k_rest")
            self.c_head()
            a("s_branch L_c_rest")
            a("L_pro_v:")
            self.v_prologue()
            a("L_k_rest:")
        self.rest_setup((8, 20))
        a(f"s_buffer_load_dword s74, {WS}, s71")
        self.consts()
        self.kwave_addrs()
        self.make_tag()
        a(f"s_waitcnt vmcnt({11 + self.QPW})")
        s1, s2 = T[0], T[1]
        a(f"v_mov_b32 v{s1}, 0\nv_mov_b32 v{s2}, 0")
        for i in range(5):
            a(f"v_lshlrev_b32 v{T[2]}, 16, v{XS+i}\nv_and_b32 v{T[3]}, 0xffff0000, v{XS+i}")
            a(f"v_add_f32 v{s1}, v{s1}, v{T[2]}\nv_fmac_f32 v{s2}, v{T[2]}, v{T[2]}\nv_add_f32 v{s1}, v{s1}, v{T[3]}\nv_fmac_f32 v{s2}, v{T[3]}, v{T[3]}")
        for x in self.red2_ops(s1, s2, (Q1, Q2, HM, RM), T[2]): a(x)
        a(f"v_readlane_b32 s58, v{s1}, 0\nv_readlane_b32 s60, v{s1}, 32")
        a(f"v_mov_b32 v{s1}, s58\nv_mov_b32 v{s2}, s60")
        a(f"s_waitcnt vmcnt({self.QPW})")
        self.stamp(1)
        if "lo1" in self.knobs: a("s_branch L_fin2")
        for t in range(10):
            self.mfma(ACC + 4, ONES, WA + 4 * t, t == 0)
        self.pair32(ACC + 4, CS0, CS1)
        self.qproj(XA, s1, s2, [])
        QD = XA + 6
        a(f"v_mov_b32 v{QD}, v{T[4]}\nv_mov_b32 v{QD+1}, s74")
        a(f"v_and_b32 v{X0}, 7, v0\nv_lshlrev_b32 v{X0}, 3, v{X0}\nv_lshrrev_b32 v{T[2]}, 4, v0\nv_lshl_add_u32 v{X0}, v{T[2]}, 6, v{X0}")
        a("s_lshl_b32 s60, s3, 8\ns_add_u32 s63, s52, s60")
        a("s_mov_b64 exec, s[64:65]")
        a(f"buffer_store_dwordx2 v[{QD}:{QD+1}], v{X0}, {WS}, s63 offen offset:{QP0T+768}")
        a("s_mov_b64 exec, -1\ns_mov_b32 s71, 0")
        self.stamp(3)
        if "lo2" in self.knobs: a("s_branch L_fin2")
        a(f"s_mul_i32 s58, s3, 10752\ns_add_u32 s58, s58, {L_WQ}\nv_lshlrev_b32 v{T[0]}, 4, v0\nv_add_u32 v{T[0]}, s58, v{T[0]}")
        for t in range(10):
            a(f"ds_write_b128 v{T[0]}, {q4(WA+4*t)} offset:{1024*t}")
        a(f"v_add_u32 v{T[1]}, s58, v{lane4}\nds_write_b32 v{T[1]}, v{CS0} offset:10240\nds_write_b32 v{T[1]}, v{CS1} offset:10496")
        QA = [XA + 1, XA + 2]
        a(f"s_mul_i32 s62, s6, {8*BS}\ns_add_u32 s62, s62, s53\ns_lshl_b32 s58, s3, 7")
        for n in range(2):
            a(f"v_add_u32 v{T[0]}, s58, v0")
            if n: a(f"v_add_u32 v{T[0]}, 64, v{T[0]}")
            a(f"v_mul_u32_u24 v{T[1]}, 0x556, v{T[0]}\nv_lshrrev_b32 v{T[1]}, 16, v{T[1]}")
            a(f"v_mul_u32_u24 v{T[2]}, {BS - 768}, v{T[1]}\nv_lshl_add_u32 v{QA[n]}, v{T[0]}, 4, v{T[2]}")
        SETS = [[WB, WB + 4], [WB + 8, WB + 12]]
        def qissue(k):
            if k == 0: a("s_add_u32 s58, s62, 768")
            else: a(f"s_cmp_ge_u32 s70, {self.QFB}\ns_cselect_b32 s58, 0, 768\ns_add_u32 s58, s58, s62")
            for n in range(2):
                a(f"buffer_load_dwordx4 {q4(SETS[k][n])}, v{QA[n]}, {WS}, s58 offen offset:{QP0T} sc1")
        lp, ld = self.L("poll"), self.L("got")
        a(f"s_mov_b32 s70, 0\ns_sleep {self.QSLEEP0}")
        gots = [self.L("qg") for _ in range(2)]
        if self.Q1ST:
            qissue(0)
            a("s_waitcnt vmcnt(0)")
            a(f"v_mov_b32 v{T[0]}, s74\nv_mov_b32 v{T[1]}, s74")
            for r in SETS[0]:
                a(f"v_min3_u32 v{T[0]}, v{T[0]}, v{r+1}, v{r+3}\nv_max3_u32 v{T[1]}, v{T[1]}, v{r+1}, v{r+3}")
            a(f"v_cmp_ne_u32 vcc, v{T[0]}, v{T[1]}\ns_cbranch_vccz {gots[0]}")
        qissue(0); a(f"s_sleep {self.QSLEEP1}"); qissue(1)
        a(f"{lp}:")
        for k in range(2):
            a("s_waitcnt vmcnt(2)")
            a(f"v_mov_b32 v{T[0]}, s74\nv_mov_b32 v{T[1]}, s74")
            for r in SETS[k]:
                a(f"v_min3_u32 v{T[0]}, v{T[0]}, v{r+1}, v{r+3}\nv_max3_u32 v{T[1]}, v{T[1]}, v{r+1}, v{r+3}")
            a(f"v_cmp_ne_u32 vcc, v{T[0]}, v{T[1]}\ns_cbranch_vccz {gots[k]}")
            if k == 1:
                a("s_add_u32 s70, s70, 1")
                self.q_fallback(self.QFB)
            qissue(k)
        a(f"s_cmp_lt_u32 s70, {POLL_LIMIT}\ns_cbranch_scc1 {lp}")
        for k in range(2):
            a(f"{gots[k]}:")
            a(f"v_lshrrev_b32 v{T[0]}, 4, v0\nv_lshlrev_b32 v{T[0]}, 7, v{T[0]}\nv_and_b32 v{T[1]}, 3, v0\nv_lshl_add_u32 v{T[0]}, v{T[1]}, 5, v{T[0]}")
            a(f"v_bfe_u32 v{T[1]}, v0, 2, 2\nv_lshl_add_u32 v{T[0]}, v{T[1]}, 2, v{T[0]}\ns_lshl_b32 s58, s3, 10\ns_add_u32 s58, s58, {L_Q}\nv_add_u32 v{T[0]}, s58, v{T[0]}")
            for n in range(2):
                a(f"ds_write2_b32 v{T[0]}, v{SETS[k][n]}, v{SETS[k][n]+2} offset0:{128*n} offset1:{128*n+4}")
            if k < 1: a(f"s_branch {ld}")
        a(f"{ld}:")
        a(f"v_mov_b32 v{T[2]}, 1\nv_mov_b32 v{T[3]}, {L_CTRL+32}\ns_waitcnt lgkmcnt(0)\nds_add_u32 v{T[3]}, v{T[2]}")
        self.stamp(2)
        a("s_branch L_bk")
        if self.LAY == 0: self.c_head()
        else: a("L_c_rest:")
        self.rest_setup((8, 48), blk=False)
        a(f"s_buffer_load_dword s74, {WS}, s71")
        self.consts()
        self.kwave_addrs()
        self.make_tag()
        a("s_waitcnt vmcnt(0)")
        if "noclr" not in self.knobs: self.flag_store(FL1)
        self.stamp(1)
        for x in self.unpackX_ops(GB + 4): a(x)
        if not (self.knobs & {"lo1", "lo2"}) and "noclr" not in self.knobs:
            a(f"s_sleep {self.FLSL}")
            self.flags_issue(FL1)
            self.flags_check()
            self.stamp(2)
        a("L_bk:")
        if self.knobs & {"lo1", "lo2", "lo3"}: a("s_branch L_fin2")
        a(f"s_lshl_b32 s60, s3, 2\ns_add_u32 s60, s60, {L_CTRL+16}")
        self.lds_wait_flag("s60")
        self.stamp(10)
        self.k_to_regs()
        self.lds_wait_flag(L_CTRL + 32, 192, fb=64)
        self.stamp(11)
        a(f"v_and_b32 v{T[3]}, 7, v0\nv_mul_u32_u24 v{T[3]}, 384, v{T[3]}\nv_lshrrev_b32 v{T[4]}, 4, v0\nv_lshl_add_u32 v{T[3]}, v{T[4]}, 4, v{T[3]}")
        a(f"v_and_b32 v{T[4]}, 8, v0\nv_lshl_add_u32 v{T[3]}, v{T[4]}, 3, v{T[3]}")
        for u in range(3):
            a(f"ds_read_b128 {q4(GB+4*u)}, v{T[3]} offset:{L_Q + 128*u}")
        a("s_waitcnt lgkmcnt(0)")
        a("s_branch L_qk")

        a("L_kloop:")
        a("s_cmp_lg_u32 s3, 3\ns_cbranch_scc1 L_k_b1")
        a("s_cmp_ge_u32 s5, 10\ns_cbranch_scc1 L_k_pt")
        self.zgather(0, self.ZSL)
        s1, s2 = T[0], T[1]
        a("s_mov_b64 exec, s[64:65]")
        self.local_stores([f"buffer_store_dword v{T[4]}, v{aX2}, {WS}, 0 offen offset:{X2O}{{f}}"])
        a("s_mov_b64 exec, -1")
        for x in self.unpackX_ops(T[4]) + self.xstats_ops(s1, s2, T[2]): a(x)
        a(f"v_lshrrev_b32 v{T[2]}, 3, v0\nv_and_b32 v{T[2]}, 4, v{T[2]}\ns_lshl_b32 s58, s56, 3\ns_add_u32 s58, s58, s53\ns_add_u32 s58, s58, {7*BS}")
        a("s_mov_b64 exec, s[46:47]")
        self.local_stores([f"buffer_store_dword v{s1}, v{T[2]}, {WS}, s58 offen offset:{MISC}{{f}}"])
        a("s_mov_b64 exec, -1")
        self.stamp(2)
        a("L_k_pt:")
        a("L_k_b1:")
        a("s_barrier")
        self.sleep(self.QSL)
        self.poll([f"buffer_load_dwordx4 {q4(GB+4*u)}, v{aQG}, {WS}, 0 offen offset:{QP1 + 128*u} sc1" for u in range(3)], range(GB, GB + 12),
                  entry="L_qk", spec=[self.mfma_s(ACC + 4 * (u & 1), KV + 4 * u, GB + 4 * (u >> 1), u < 2) for u in range(4)], pipe=self.PQ)
        self.stamp(4)
        R = [XA, XA + 1, XA + 2, XA + 3]
        DE = [ACC, ACC + 8]; DO = [ACC + 4, ACC + 12]
        def lvl_ops(t):
            e, o = DE[t & 1], DO[t & 1]
            hm = lambda d, srcr, bank: f"v_add_f32_dpp v{d}, v{srcr}, v{srcr} row_half_mirror row_mask:0xf bank_mask:{hex(1<<bank)}"
            return [hm(T[2], e + 2, 0), hm(T[2], e + 3, 1), hm(R[t], e, 0), hm(R[t], e + 1, 1),
                    hm(T[2], o, 2), hm(T[2], o + 1, 3), hm(R[t], o + 2, 2), hm(R[t], o + 3, 3),
                    f"v_add_f32_dpp v{R[t]}, v{T[2]}, v{R[t]} row_ror:8 {DPPALL}",
                    f"v_add_f32_dpp v{R[t]}, v{R[t]}, v{R[t]} {Q1} {DPPALL}",
                    f"v_add_f32_dpp v{R[t]}, v{R[t]}, v{R[t]} {Q2} {DPPALL}"]
        pend = []
        S = T[0]; M = T[1]
        for t in range(4):
            for u in range(6):
                if t == 0 and u < 4: continue
                self.mfma((DO if u & 1 else DE)[t & 1], KV + (t * 6 + u) * 4, GB + 4 * (u >> 1), u < 2)
                if u >= 2:
                    for _ in range(3 if u < 5 else 2):
                        if pend: a(pend.pop(0))
            pend = lvl_ops(t)
            if t == 3:
                pend = [f"v_max3_f32 v{M}, v{R[0]}, v{R[1]}, v{R[2]}", f"v_cndmask_b32 v{R[0]}, v{R[0]}, v{R[1]}, s[66:67]"] + pend
        for x in pend: a(x)
        a(f"v_max_f32 v{M}, v{M}, v{R[3]}")
        a(f"v_cndmask_b32 v{R[2]}, v{R[2]}, v{R[3]}, s[66:67]\nv_cndmask_b32 v{S}, v{R[0]}, v{R[2]}, s[68:69]")
        a(f"v_max_f32_dpp v{M}, v{M}, v{M} row_ror:4 {DPPALL}")
        a(f"v_mul_f32 v{S}, 0x3dd53b95, v{S}")
        a(f"v_max_f32_dpp v{M}, v{M}, v{M} row_ror:8 {DPPALL}")
        a(f"v_mov_b32 v{T[2]}, v{M}\nv_permlane16_swap_b32 v{M}, v{T[2]}\nv_max_f32 v{M}, v{M}, v{T[2]}")
        a(f"v_mov_b32 v{T[2]}, v{M}\nv_permlane32_swap_b32 v{M}, v{T[2]}\nv_max_f32 v{M}, v{M}, v{T[2]}")
        a(f"v_mul_f32 v{M}, 0x3dd53b95, v{M}")
        a(f"v_sub_f32 v{S}, v{S}, v{M}\nv_exp_f32 v{S}, v{S}")
        a(f"v_cvt_pk_bf16_f32 v{S}, v{S}, v{S}")
        a(f"ds_write_b16 v{ldsP}, v{S}")
        a("s_cmp_eq_u32 s3, 3\ns_cbranch_scc1 L_qk_nf\ns_cmp_lg_u32 s54, 0\ns_cbranch_scc1 L_qk_nf")
        self.lds_wait_flag(L_CTRL + 4)
        a("s_lshr_b32 s55, s58, 1\ns_cmp_lg_u32 s55, 0\ns_cbranch_scc1 L_qk_nf")
        self.q_fallback(0)
        a("L_qk_nf:")
        a("s_waitcnt vmcnt(0) lgkmcnt(0)" if self.PQ else "s_waitcnt lgkmcnt(0)")
        self.stamp(5)
        if self.PRI == 1: a("s_setprio 0")
        a("s_barrier")
        if self.PRI == 2: a("s_sleep 2")
        a(f"v_lshlrev_b32 v{S}, 16, v{S}")
        self.allred64("v_add_f32", S, T[2])
        a(f"s_lshl_b32 s58, s3, 3\nv_mov_b32 v{T[2]}, s58")
        a("s_mov_b64 exec, 1")
        a(f"ds_write_b32 v{T[2]}, v{M} offset:{L_ML}\nds_write_b32 v{T[2]}, v{S} offset:{L_ML+4}")
        a("s_mov_b64 exec, -1")
        a("s_cmp_lg_u32 s3, 3\ns_cbranch_scc1 L_k_b3")
        a("s_cmp_eq_u32 s54, 0\ns_cbranch_scc1 L_c_b3")
        a("L_c_x2:")
        a("s_cmp_lt_u32 s5, 10\ns_cbranch_scc1 L_c_b3")
        self.poll([f"buffer_load_dword v{GB}, v{aX2}, {WS}, 0 offen offset:{X2O} sc1"], [GB])
        for x in self.unpackX_ops(GB): a(x)
        a("L_c_b3:")
        a("s_waitcnt lgkmcnt(0)\ns_barrier")
        a("s_cmp_ge_u32 s5, 30\ns_cbranch_scc1 L_k_next")
        if self.LL == 3:
            a("s_cmp_lg_u32 s54, 0\ns_cbranch_scc1 L_c_b4")
            self.w1_loads()
            a("L_c_b4:")
        if self.B3B:
            a("s_cmp_lg_u32 s54, 0\ns_cbranch_scc1 L_c_nb3b\ns_barrier")
            self.w1_loads()
            a("L_c_nb3b:")
        a("s_barrier")
        a("s_cmp_lg_u32 s54, 0\ns_cbranch_scc1 L_p4_nocs")
        if self.LL == 4 and not self.B3B: self.w1_loads()
        yl = self.rows24_loads(YO)
        self.sleep(self.YSL0)
        for x in yl: a(x)
        a("s_mov_b32 s70, 0\ns_waitcnt vmcnt(3)")
        for t in range(8): self.mfma(ACC, ONES, WB + 4 * t, t == 0)
        self.l64(ACC, CS0)
        self.local_stores([f"buffer_store_dword v{CS0}, v{aST}, {WS}, s52 offen offset:{HPC}{{f}}"])
        a("s_branch L_p4_chk")
        a("L_p4_nocs:")
        yl = self.rows24_loads(YO)
        self.sleep(self.YSL)
        self.poll(yl, range(GB, GB + 12), entry="L_p4_chk", spec=[self.mfma_s(ACC, ONES, GB + 4 * n, n == 0) for n in range(3)])
        a("s_barrier")
        if self.AMP == 2: a("s_cmp_lg_u32 s54, 0\ns_cbranch_scc1 L_amp2\ns_memrealtime s[94:95]\nL_amp2:")
        self.stamp(8)
        self.sel_layer(58, HPR, 52)
        a(f"s_mul_i32 s60, s54, 3\ns_add_u32 s60, s60, s57\ns_add_u32 s60, s60, 1\ns_mul_i32 s60, s60, {BS}\ns_add_u32 s60, s60, s53\ns_lshl_b32 s61, s56, 3\ns_add_u32 s60, s60, s61")
        self.resid_add()
        s1, s2 = T[0], T[1]
        self.gemv_bcast(ACC + 4, T[4], WB, 8, fill=self.unpackX_ops(T[4]) + self.xstats_ops(s1, s2, T[2]) + [f"v_lshrrev_b32 v{T[2]}, 3, v0", f"v_and_b32 v{T[2]}, 4, v{T[2]}"])
        self.l64(ACC + 4, T[3])
        self.local_stores([f"buffer_store_dword v{T[3]}, v{aST}, {WS}, s58 offen{{f}}", "s_mov_b64 exec, s[46:47]",
                           f"buffer_store_dword v{s1}, v{T[2]}, {WS}, s60 offen offset:{MISC}{{f}}"])
        a("s_mov_b64 exec, -1")
        self.stamp(9)
        self.dump0()
        a("s_barrier")
        a("s_cmp_lg_u32 s54, 0\ns_cbranch_scc1 L_final\ns_mov_b32 s54, 1\ns_branch L_kloop")
        a("L_k_b3:")
        if self.LL2 == 2:
            a("s_cmp_lg_u32 s54, 0\ns_cbranch_scc1 L_k_b3a\ns_cmp_lg_u32 s3, 0\ns_cbranch_scc1 L_k_b3a")
            self.w2_loads()
            a("L_k_b3a:")
        if self.CPF:
            self.code_prefetch()
        a(f"s_lshl_b32 s58, s3, 8\nv_add_u32 v{T[3]}, s58, v{lane4}\nv_mov_b32 v{T[4]}, {L_ML}")
        self.sel_layer(58, OP, 52)
        a("s_lshl_b32 s60, s3, 7\ns_add_u32 s60, s60, s58")
        a(f"s_mul_i32 s61, s7, {BS - 8}\ns_sub_u32 s61, s52, s61\ns_lshl_b32 s58, s54, 6\ns_add_u32 s61, s61, s58")
        a("s_waitcnt lgkmcnt(0)\ns_barrier")
        self.stamp(6)
        a(f"ds_read_b128 {q4(GB)}, v{T[4]}\nds_read_b128 {q4(GB+4)}, v{T[4]} offset:16")
        for w in range(4):
            a(f"ds_read_b32 v{GB+8+w}, v{T[3]} offset:{L_O + 768*w}")
        a("s_waitcnt lgkmcnt(0)")
        M = GB + 12; Lr = GB + 13
        a(f"v_max3_f32 v{M}, v{GB}, v{GB+2}, v{GB+4}\nv_max_f32 v{M}, v{M}, v{GB+6}")
        for w in range(4): a(f"v_sub_f32 v{GB+2*w}, v{GB+2*w}, v{M}")
        for w in range(4): a(f"v_exp_f32 v{GB+2*w}, v{GB+2*w}")
        a(f"v_mul_f32 v{Lr}, v{GB}, v{GB+1}\nv_mul_f32 v{T[0]}, v{GB}, v{GB+8}")
        for w in range(1, 4):
            a(f"v_fmac_f32 v{Lr}, v{GB+2*w}, v{GB+2*w+1}\nv_fmac_f32 v{T[0]}, v{GB+2*w}, v{GB+8+w}")
        a(f"v_rcp_f32 v{T[1]}, v{Lr}\nv_mul_f32 v{T[0]}, v{T[0]}, v{T[1]}")
        a(f"v_mov_b32_dpp v{T[1]}, v{T[0]} row_ror:8 {DPPALL}\nv_cvt_pk_bf16_f32 v{T[0]}, v{T[0]}, v{T[1]}")
        a("s_mov_b64 exec, s[64:65]")
        lz = self.L("z")
        self.local_stores([f"buffer_store_dword v{T[0]}, v{aP32}, {WS}, s60 offen{{f}}"])
        a(f"s_cmp_lg_u32 s3, 1\ns_cbranch_scc1 {lz}\ns_mov_b64 exec, 1")
        self.local_stores([f"buffer_store_dwordx2 v[{M}:{Lr}], v{aP32}, {WS}, s61 offen offset:{MISC}{{f}}"])
        a(f"{lz}:\ns_mov_b64 exec, -1")
        self.stamp(7)
        a("s_cmp_ge_u32 s5, 30\ns_cbranch_scc1 L_k_next")
        if self.LL2 == 3:
            a("s_cmp_lg_u32 s54, 0\ns_cbranch_scc1 L_k_b4a\ns_cmp_lg_u32 s3, 0\ns_cbranch_scc1 L_k_b4a")
            self.w2_loads()
            a("L_k_b4a:")
        if self.B3B:
            a("s_cmp_lg_u32 s54, 0\ns_cbranch_scc1 L_k_nb3b\ns_barrier\ns_cmp_lg_u32 s3, 0\ns_cbranch_scc1 L_k_nb3b")
            self.w2_loads()
            a("L_k_nb3b:")
        a("s_barrier")
        a("s_cmp_eq_u32 s3, 0\ns_cbranch_scc1 L_p5")
        a("s_cmp_lg_u32 s3, 1\ns_cbranch_scc1 L_k_b5")
        self.sel_layer(58, HPR, 52)
        a(f"v_lshlrev_b32 v{T[0]}, 7, v0\ns_mov_b64 exec, 3")
        a(f"buffer_load_dword v{GB}, v{T[0]}, {WS}, s58 offen sc1\nbuffer_load_dword v{GB+1}, v{T[0]}, {WS}, s52 offen offset:{HPC} sc1")
        a(f"buffer_load_dword v{GB+2}, v{lane4}, {WS}, s52 offen offset:{MISC} sc1\ns_mov_b64 exec, -1")
        a("L_k_b5:")
        a("s_barrier\ns_barrier")
        a("s_branch L_k_next")
        a("L_p5:")
        a(f"s_mul_i32 s62, s57, {10*BS}\ns_add_u32 s62, s62, s53")
        def hp_gather(with_stats, slp=0):
            for i in range(8, 14): a(f"v_mov_b32 v{GB+i}, 0")
            loads = [f"buffer_load_dwordx4 {q4(GB)}, v{aML}, {WS}, s58 offen sc1",
                     f"buffer_load_dwordx4 {q4(GB+4)}, v{aML}, {WS}, s60 offen sc1",
                     "s_mov_b32 exec_hi, 0",
                     f"buffer_load_dwordx4 {q4(GB+8)}, v{aML}, {WS}, s61 offen sc1"]
            if with_stats:
                loads += ["s_mov_b64 exec, s[44:45]", f"buffer_load_dwordx2 v[{GB+12}:{GB+13}], v{aXS}, {WS}, s63 offen offset:{MISC} sc1"]
            loads += ["s_mov_b64 exec, -1"]
            return loads, range(GB, GB + (14 if with_stats else 12))
        def hp_reduce_ops(dst):
            U = GB + 16
            o = [f"v_add_f32 v{U+i}, v{GB+i}, v{GB+4+i}" for i in range(4)] + [f"v_add_f32 v{U+i}, v{U+i}, v{GB+8+i}" for i in range(4)]
            o += [f"v_permlane32_swap_b32 v{U}, v{U+2}", f"v_permlane32_swap_b32 v{U+1}, v{U+3}",
                  f"v_add_f32 v{U}, v{U}, v{U+2}", f"v_add_f32 v{U+1}, v{U+1}, v{U+3}",
                  f"v_permlane16_swap_b32 v{U}, v{U+1}", f"v_add_f32 v{dst}, v{U}, v{U+1}"]
            return o
        a("s_cmp_lg_u32 s54, 0\ns_cbranch_scc1 L_p5_nocs")
        if self.LL2 == 4 and not self.B3B: self.w2_loads()
        if self.LL2 == 5:
            a(f"s_sleep {self.W2SL}")
            self.w2_loads()
        a(f"s_add_u32 s58, s62, {HPC}\ns_add_u32 s60, s58, {4*BS}\ns_add_u32 s61, s58, {8*BS}")
        a("s_barrier")
        ld_, rg_ = hp_gather(False)
        self.poll(ld_, rg_)
        for x in hp_reduce_ops(CSW1): a(x)
        a(f"v_lshlrev_b32 v{B1V}, 16, v{B1V}")
        a("s_branch L_p5_g")
        a("L_p5_nocs:")
        a("s_barrier")
        self.sleep(self.HSL)
        a("L_p5_g:")
        self.sel_layer(58, HPR, 62)
        a(f"s_add_u32 s60, s58, {4*BS}\ns_add_u32 s61, s58, {8*BS}")
        a(f"s_mul_i32 s63, s54, 3\ns_add_u32 s63, s63, s57\ns_add_u32 s63, s63, 1\ns_mul_i32 s63, s63, {BS}\ns_add_u32 s63, s63, s53")
        ld_, rg_ = hp_gather(True)
        self.poll(ld_, rg_, pipe=self.PH)
        self.stamp(8)
        s1, s2 = GB + 14, GB + 15
        H = T[0]
        c1 = self.row16_ops(s1, s2, GB + 12, GB + 13) + self.ln_ops(s1, s2, T[5])
        c2 = hp_reduce_ops(H)
        while c1 or c2:
            if c1: a(c1.pop(0))
            if c1 and len(c1) > 14 and not self.EX: a(c1.pop(0))
            if c2: a(c2.pop(0))
        self.sel_layer(58, ZO, 52)
        if self.EX:
            a(f"v_fma_f32 v{H}, -v{s1}, v{CSW1}, v{H}\nv_fma_f32 v{H}, v{H}, v{s2}, v{B1V}")
        else:
            a(f"v_fma_f32 v{H}, -v{s1}, v{CSW1}, v{H}\nv_mul_f32 v{H}, v{H}, v{s2}")
            self.bf16r(H, H)
            a(f"v_add_f32 v{H}, v{H}, v{B1V}")
            self.bf16r(H, H)
        E = T[1]; N = T[2]; Dn = T[3]
        a(f"v_mul_f32 v{E}, 0x3fb8aa3b, v{H}\nv_exp_f32 v{E}, -|v{E}|")
        a(f"v_cmp_gt_f32 vcc, 0, v{H}\nv_mov_b32 v{T[4]}, 2.0")
        a(f"v_fma_f32 v{N}, v{E}, 2.0, 1.0\nv_add_f32 v{Dn}, 2.0, v{E}\nv_mul_f32 v{Dn}, v{Dn}, v{E}")
        a(f"v_mul_f32 v{E}, v{E}, v{E}\nv_add_f32 v{E}, v{E}, v{E}")
        a(f"v_cndmask_b32 v{N}, v{N}, v{Dn}, vcc\nv_cndmask_b32 v{E}, v{E}, v{T[4]}, vcc")
        a(f"v_add_f32 v{Dn}, v{N}, v{E}\nv_rcp_f32 v{Dn}, v{Dn}\nv_mul_f32 v{N}, v{N}, v{H}\nv_mul_f32 v{N}, v{N}, v{Dn}")
        a(f"v_mov_b32_dpp v{E}, v{N} row_ror:8 {DPPALL}\nv_cvt_pk_bf16_f32 v{T[4]}, v{N}, v{E}")
        self.gemv_bcast(ACC, T[4], WB, 8)
        self.pair32(ACC, T[0], T[1])
        a(f"v_cvt_pk_bf16_f32 v{T[0]}, v{T[0]}, v{T[1]}")
        if self.G4:
            self.gather4(T[0], AB[0])
            a("s_mov_b64 exec, 0xff")
            a(f"buffer_store_dwordx4 {q4(AB[0])}, v{aP32}, {WS}, s58 offen sc1")
        else:
            a("s_mov_b64 exec, s[64:65]")
            a(f"buffer_store_dword v{T[0]}, v{aP32}, {WS}, s58 offen sc1")
        a("s_mov_b64 exec, -1")
        self.stamp(9)
        a("s_barrier")
        a("L_k_next:")
        a("s_cmp_lg_u32 s54, 0\ns_cbranch_scc1 L_final")
        self.dump_stamps()
        a("s_mov_b32 s54, 1")
        a("s_cmp_lg_u32 s3, 2\ns_cbranch_scc1 L_kloop")
        a("s_cmp_lg_u32 s2, 0\ns_cbranch_scc1 L_nogen")
        a(f"s_mov_b64 exec, 1\nv_mov_b32 v{T[0]}, s74\nv_mov_b32 v{T[1]}, {GEN_OFF}")
        a(f"buffer_store_dword v{T[0]}, v{T[1]}, {WS}, 0 offen sc1")
        a("s_mov_b64 exec, -1\nL_nogen:")
        for u in range(3):
            a(f"buffer_load_dword v{GB+4+u}, v{aQG}, {WS}, 0 offen offset:{QP1 + 128*u} sc1")
        a("s_branch L_kloop")
        a("L_final:")
        a("s_cmp_lg_u32 s3, 3\ns_cbranch_scc1 L_fin2\ns_cmp_lg_u32 s4, 0\ns_cbranch_scc1 L_fin2\ns_cmp_ge_u32 s5, 10\ns_cbranch_scc1 L_fin2")
        if self.PERT:
            import struct
            c = hex(struct.unpack('<I', struct.pack('<f', self.PERT / 1000.0))[0])
            if self.PALL: a(f"v_add_f32 v{X0}, {c}, v{X0}\nv_add_f32 v{X1}, {c}, v{X1}")
            else: a(f"s_cmp_lg_u32 s2, 0\ns_cbranch_scc1 L_npert\ns_mov_b64 exec, 1\nv_add_f32 v{X0}, {c}, v{X0}\ns_mov_b64 exec, -1\nL_npert:")
        self.zgather(1, self.FSL)
        a("s_lshl_b32 s58, s5, 7")
        a("s_mov_b64 exec, s[64:65]")
        a(f"buffer_store_dword v{T[4]}, v{aP32}, s[40:43], s58 offen{' sc1' if self.OSC else ''}")
        a("s_mov_b64 exec, -1")
        self.stamp(11)
        if self.AMP:
            a("s_cmp_lg_u32 s2, 0\ns_cbranch_scc1 L_fin2\ns_memrealtime s[96:97]\ns_waitcnt lgkmcnt(0)")
            if self.AMP == 1: a("s_mov_b32 s94, s96")
            a("s_sub_u32 s94, s94, s92\ns_min_u32 s94, s94, 20000")
            a("L_ampl:\ns_memrealtime s[98:99]\ns_waitcnt lgkmcnt(0)\ns_sub_u32 s98, s98, s96\ns_cmp_lt_u32 s98, s94\ns_cbranch_scc1 L_ampl")
        a("L_fin2:")
        self.dump_stamps()
        a("s_endpgm")

        a("L_vloop:")
        a(f"buffer_load_dword v{XA+2}, v{aQG}, {WS}, 0 offen offset:{OP[1]} sc1")
        a("s_cmp_eq_u32 s3, 7\ns_cbranch_scc1 L_v7_b1")
        a(f"v_mov_b32 v{GB}, 0\nv_mov_b32 v{GB+2}, 0\nv_mov_b32 v{GB+3}, 0\ns_add_u32 s58, s53, {7*BS}")
        self.sleep(self.XSL)
        self.poll(["s_mov_b64 exec, s[44:45]", f"buffer_load_dword v{GB}, v{aX2}, {WS}, 0 offen offset:{X2O} sc1",
                   f"buffer_load_dwordx2 v[{GB+2}:{GB+3}], v{aXS}, {WS}, s58 offen offset:{MISC} sc1", "s_mov_b64 exec, -1"], [GB, GB + 2, GB + 3], slp=self.XSLP, pipe=self.PX)
        a("s_barrier")
        self.stamp(1)
        self.qproj(GB, T[0], T[1], self.row16_ops(T[0], T[1], GB + 2, GB + 3))
        if self.Q4:
            self.gather4(T[4], AB[0])
            a("s_mov_b64 exec, 0xff")
            self.local_stores([f"buffer_store_dwordx4 {q4(AB[0])}, v{aST}, {WS}, 0 offen offset:{QP1}{{f}}"])
        else:
            a("s_mov_b64 exec, s[64:65]")
            self.local_stores([f"buffer_store_dword v{T[4]}, v{aST}, {WS}, 0 offen offset:{QP1}{{f}}"])
        a("s_mov_b64 exec, -1")
        self.stamp(3)
        a("s_branch L_v_b2")
        a("L_v7_b1:")
        a("s_barrier")
        a("L_v_b2:")
        a(f"s_and_b32 s58, s3, 3\ns_mul_i32 s58, s58, 768\nv_add_u32 v{T[3]}, s58, v{lane4}")
        a("s_cmp_eq_u32 s54, 0\ns_cbranch_scc1 L_v_b2a\ns_waitcnt vmcnt(0)\nL_v_b2a:")
        a("s_barrier")
        self.stamp(5)
        a(f"ds_read_b128 {q4(GB)}, v{ldsP}\nds_read_b128 {q4(GB+4)}, v{ldsP} offset:16")
        a("s_cmp_lg_u32 s54, 0\ns_cbranch_scc1 L_v_nowo")
        if self.WOE: self.wo_part(self.WOE, 8)
        else: self.wo_loads(self.WS[0])
        a("L_v_nowo:")
        a("s_waitcnt lgkmcnt(0)")
        self.al()
        self.build_A(AB[0], GB)
        for G in range(8):
            nwo = self.WS[0] + (self.WS[1] if G >= 6 else 0) + (self.WS[2] if G >= 7 else 0)
            if G == 6 and self.WS[1]: self.wo_part(self.WS[0], self.WS[0] + self.WS[1])
            if G == 7 and self.WS[2]: self.wo_part(self.WS[0] + self.WS[1], self.WS[0] + self.WS[1] + self.WS[2])
            a(f"s_waitcnt vmcnt({nwo + 21 - 3*G})")
            for th in range(3):
                self.mfma(ACC + 4 * th, AB[G & 1], KV + (G * 3 + th) * 4, G == 0)
                if G + 1 < 8 and th < 2:
                    for d in (2 * th, 2 * th + 1):
                        a(f"v_perm_b32 v{AB[(G+1)&1]+d}, v{GB+G+1}, v{GB+G+1}, v{SEL+d}")
        for th in range(3):
            self.l64(ACC + 4 * th, T[th])
            a(f"ds_write_b32 v{T[3]}, v{T[th]} offset:{L_O + 256*th}")
        self.sel_layer(58, OP)
        a("s_lshl_b32 s60, s54, 6")
        a("s_waitcnt lgkmcnt(0)\ns_barrier")
        self.stamp(6)
        if sum(self.WS) < 8: self.wo_part(sum(self.WS), 8)
        a("s_cmp_ge_u32 s5, 30\ns_cbranch_scc1 L_v_next")
        self.sleep(self.OSL)
        self.poll([f"buffer_load_dwordx4 {q4(GB)}, v{aQG}, {WS}, s58 offen sc1",
                   f"buffer_load_dwordx2 v[{GB+4}:{GB+5}], v{aML}, {WS}, s60 offen offset:{MISC} sc1"], range(GB, GB + 6),
                  spec=[f"v_max_f32_dpp v{T[0]}, v{GB+4}, v{GB+4} {Q1} {DPPALL}", f"v_max_f32_dpp v{T[0]}, v{T[0]}, v{T[0]} {Q2} {DPPALL}", f"v_max_f32_dpp v{T[0]}, v{T[0]}, v{T[0]} {HM} {DPPALL}"], pipe=self.PO)
        if self.B3B: a("s_cmp_lg_u32 s54, 0\ns_cbranch_scc1 L_v_nb3b\ns_barrier\nL_v_nb3b:")
        self.stamp(8)
        M = T[0]; W = T[1]
        a(f"v_sub_f32 v{W}, v{GB+4}, v{M}\nv_exp_f32 v{W}, v{W}\nv_mul_f32 v{W}, v{W}, v{GB+5}")
        a(f"v_mov_b32_dpp v{T[2]}, v{W} row_newbcast:0 {DPPALL}\nv_mov_b32_dpp v{T[3]}, v{W} row_newbcast:1 {DPPALL}")
        a(f"v_cvt_pk_bf16_f32 v{T[2]}, v{T[2]}, v{T[3]}")
        self.build_A(AB[0], T[2])
        self.bf16r(W, W)
        self.mfma(ACC, AB[0], GB, True)
        for c in (Q1, Q2, HM):
            a(f"v_add_f32_dpp v{W}, v{W}, v{W} {c} {DPPALL}")
        a(f"v_rcp_f32 v{W}, v{W}")
        self.pair32(ACC, T[2], T[3])
        a(f"v_mul_f32 v{T[2]}, v{T[2]}, v{W}\nv_mul_f32 v{T[3]}, v{T[3]}, v{W}\nv_cvt_pk_bf16_f32 v{T[4]}, v{T[2]}, v{T[3]}")
        self.gemv_bcast(ACC + 4, T[4], WB, 8)
        a(f"s_and_b32 s58, s3, 3\ns_lshl_b32 s58, s58, 8\nv_add_u32 v{T[3]}, s58, v{lane4}")
        self.l64(ACC + 4, T[0])
        a(f"ds_write_b32 v{T[3]}, v{T[0]} offset:{L_YR}")
        self.sel_layer(58, YO, 52)
        a("s_waitcnt vmcnt(0) lgkmcnt(0)\ns_barrier")
        a("s_cmp_lg_u32 s3, 7\ns_cbranch_scc1 L_v_b5")
        for w in range(4): a(f"ds_read_b32 v{GB+w}, v{lane4} offset:{L_YR + 256*w}")
        a("s_waitcnt lgkmcnt(0)")
        a(f"v_add_f32 v{GB}, v{GB}, v{GB+1}\nv_add_f32 v{GB+2}, v{GB+2}, v{GB+3}\nv_add_f32 v{T[0]}, v{GB}, v{GB+2}")
        a(f"v_mov_b32_dpp v{T[1]}, v{T[0]} row_ror:8 {DPPALL}\nv_cvt_pk_bf16_f32 v{T[0]}, v{T[0]}, v{T[1]}")
        if self.G4:
            self.gather4(T[0], AB[0])
            a("s_mov_b64 exec, 0xff")
            a(f"buffer_store_dwordx4 {q4(AB[0])}, v{aP32}, {WS}, s58 offen sc1")
        else:
            a("s_mov_b64 exec, s[64:65]")
            a(f"buffer_store_dword v{T[0]}, v{aP32}, {WS}, s58 offen sc1")
        a("s_mov_b64 exec, -1")
        self.stamp(9)
        a("L_v_b5:")
        a("s_cmp_lg_u32 s54, 0\ns_cbranch_scc1 L_v_b5b")
        self.v_fetch_wq()
        self.dump_stamps()
        a("L_v_b5b:")
        a("s_barrier\ns_barrier")
        a("s_cmp_lg_u32 s54, 0\ns_cbranch_scc1 L_fin2")
        a("s_mov_b32 s54, 1\ns_branch L_vloop")
        a("L_v_next:")
        a("s_cmp_lg_u32 s54, 0\ns_cbranch_scc1 L_fin2")
        self.v_fetch_wq()
        self.dump_stamps()
        a("s_mov_b32 s54, 1\ns_sleep 48\ns_branch L_vloop")
        self.flush_ool()
        a("L_end:\ns_endpgm")
        a('.section .rodata,"a"\n.p2align 6')
        a(f".amdhsa_kernel {KNAME}")
        a(".amdhsa_next_free_vgpr 256\n.amdhsa_next_free_sgpr 102\n.amdhsa_accum_offset 256\n.amdhsa_group_segment_fixed_size 0\n.amdhsa_kernarg_size 96")
        a(".amdhsa_user_sgpr_count 2\n.amdhsa_user_sgpr_kernarg_segment_ptr 1\n.amdhsa_system_sgpr_workgroup_id_x 1\n.end_amdhsa_kernel")
        return a.render()

    def code_prefetch(self):
        a = self.a
        le = self.L("cpf")
        a(f"s_cmp_lg_u32 s3, 1\ns_cbranch_scc1 {le}\ns_cmp_lg_u32 s54, 0\ns_cbranch_scc1 {le}")
        a("s_getpc_b64 s[72:73]")
        a("L_pcref:")
        a(f"s_sub_u32 s72, s72, L_pcref-{KNAME}\ns_subb_u32 s73, s73, 0")
        a(f"v_lshlrev_b32 v{T[0]}, 5, v0\nv_add_u32 v{T[0]}, s5, v{T[0]}\nv_lshlrev_b32 v{T[0]}, 7, v{T[0]}")
        a(f"v_mov_b32 v{T[1]}, L_end-{KNAME}\nv_cmp_lt_u32 vcc, v{T[0]}, v{T[1]}\ns_and_b64 exec, vcc, exec")
        a(f"global_load_dword v{XA+5}, v{T[0]}, s[72:73] sc1")
        a("s_mov_b64 exec, -1")
        a(f"{le}:")

    def srd(self, *regs):
        for s in regs:
            self.a(f"s_mov_b32 s{s+2}, {self.size[s]}\ns_mov_b32 s{s+3}, 0x20000")
    def blk_setup(self):
        a = self.a
        a(f"s_mul_i32 s53, s4, {32*BS}\ns_mul_i32 s52, s5, {BS}\ns_add_u32 s52, s52, s53")
        a("s_cmp_ge_u32 s5, 10\ns_cselect_b32 s57, 1, 0\ns_cmp_ge_u32 s5, 20\ns_cselect_b32 s57, 2, s57\ns_cmp_ge_u32 s5, 30\ns_cselect_b32 s57, 3, s57")
        a("s_mul_i32 s56, s57, 10\ns_sub_u32 s56, s5, s56")
        a(f"v_lshlrev_b32 v{aP32}, 4, v1\nv_lshl_add_u32 v{aP32}, v3, 2, v{aP32}")
    def rest_setup(self, done, blk=True):
        a = self.a
        self.srd(*[r for r in (8, 12, 16, 20, 24, 28, 32, 36, 40, 48) if r not in done])
        if blk: self.blk_setup()
        a("s_mov_b32 s54, 0\ns_mov_b32 s55, 0")
        a("s_getreg_b32 s75, hwreg(HW_REG_XCC_ID)\ns_and_b32 s75, s75, 15")
        a("s_mov_b32 s64, 0x00ff00ff\ns_mov_b32 s65, 0x00ff00ff")
        a("s_mov_b32 s66, 0xaaaaaaaa\ns_mov_b32 s67, 0xaaaaaaaa\ns_mov_b32 s68, 0xcccccccc\ns_mov_b32 s69, 0xcccccccc")
        a("s_mov_b32 s44, 0x03ff03ff\ns_mov_b32 s45, 0x03ff03ff\ns_mov_b32 s46, 1\ns_mov_b32 s47, 1")
    def c_head(self):
        a = self.a
        a("L_pro_c:")
        self.srd(8, 48)
        self.blk_setup()
        a(f"v_mov_b32 v{T[0]}, 0")
        a("s_mov_b64 exec, 0xffff")
        a(f"ds_write_b32 v{lane4}, v{T[0]} offset:{L_CTRL}")
        a("s_mov_b64 exec, -1\ns_waitcnt lgkmcnt(0)")
        if self.B0E: a("s_barrier")
        if "noclr" not in self.knobs: self.clears(False)
        a(f"s_lshl_b32 s58, s56, 7\nbuffer_load_dword v{GB+4}, v{aP32}, s[8:11], s58 offen")
        if not self.B0E: a("s_barrier")

    def v_prologue(self):
        a = self.a
        self.srd(12, 16)
        a("s_lshl_b32 s58, s4, 2\ns_add_u32 s58, s58, s6\ns_mul_i32 s59, s58, 3145728")
        a("s_lshl_b32 s58, s7, 8\ns_and_b32 s60, s3, 3\ns_lshl_b32 s60, s60, 6\ns_add_u32 s58, s58, s60\ns_add_u32 s58, s58, 6144\ns_mul_i32 s58, s58, 384\ns_add_u32 s59, s59, s58")
        if "dbl" in self.knobs:
            a(f"v_mul_u32_u24 v{T[0]}, 384, v2\nv_lshl_add_u32 v{T[0]}, v1, 4, v{T[0]}\ns_sub_u32 s61, s59, {6144*384}")
            for srd in ("s[12:15]", "s[16:19]"):
                for n in range(24):
                    rg, th = divmod(n, 3)
                    if th == 0: a(f"s_add_u32 s58, s61, {rg*8*384}")
                    a(f"buffer_load_dwordx4 {q4(KV+4*n)}, v{T[0]}, {srd}, s58 offen offset:{th*128} nt")
            a("s_waitcnt vmcnt(12)")
        self.k_dma()
        for n in range(24):
            rg, th = divmod(n, 3)
            if n == self.NB:
                a(f"s_lshl_b32 s60, s3, 2\nv_mov_b32 v{T[2]}, s60\nv_mov_b32 v{T[3]}, 1")
                a(f"s_waitcnt vmcnt({self.NB})\nds_write_b32 v{T[2]}, v{T[3]} offset:{L_CTRL}")
                self.stamp(11)
            if th == 0: a(f"s_add_u32 s58, s59, {rg*8*384}")
            a(f"buffer_load_dwordx4 {q4(KV+4*n)}, v{T[4]}, s[16:19], s58 offen offset:{th*128} nt")
        self.stamp(1)
        self.rest_setup((12, 16))
        if self.knobs & {"lo1", "lo2", "lo3"}:
            if "wo" in self.knobs:
                self.wo_loads()
                a("s_waitcnt vmcnt(8)")
                self.stamp(5)
            a("s_waitcnt vmcnt(0)")
            self.stamp(6)
            a("s_branch L_fin2")
        if self.WOE: self.wo_loads(self.WOE)
        if self.PRI == 1: a("s_setprio 1")
        self.consts()
        self.vwave_addrs()
        a("s_branch L_v_b2")

    def v_fetch_wq(self):
        a = self.a
        a(f"s_and_b32 s58, s3, 3\ns_min_u32 s58, s58, 2\ns_mul_i32 s58, s58, 10752\ns_add_u32 s58, s58, {L_WQ}\nv_lshlrev_b32 v{T[0]}, 4, v0\nv_add_u32 v{T[0]}, s58, v{T[0]}")
        for t in range(10):
            a(f"ds_read_b128 {q4(WA+4*t)}, v{T[0]} offset:{1024*t}")
        a(f"v_add_u32 v{T[1]}, s58, v{lane4}\nds_read_b32 v{CS0}, v{T[1]} offset:10240\nds_read_b32 v{CS1}, v{T[1]} offset:10496")
        self.read_fast()
        a(f"s_add_u32 s58, s53, {7*BS}\nbuffer_load_dword v{XA+3}, v{aX2}, {WS}, 0 offen offset:{X2O} sc1\nbuffer_load_dword v{XA+4}, v{aXS}, {WS}, s58 offen offset:{MISC} sc1")

    def zgather(self, layer, slp):
        a = self.a
        a(f"s_mul_i32 s58, s56, {BS}\ns_add_u32 s60, s58, {10*BS}\ns_add_u32 s61, s58, {20*BS}")
        self.sleep(slp)
        self.poll([f"buffer_load_dwordx4 {q4(GB+4*n)}, v{aROW}, {WS}, s{(58,60,61)[n]} offen offset:{ZO[layer]} sc1" for n in range(3)], range(GB, GB + 12),
                  spec=[self.mfma_s(ACC, ONES, GB + 4 * n, n == 0) for n in range(3)], pipe=self.PZ)
        self.stamp(10 if layer else 1)
        self.resid_add()

REF = "interleave_layers__sliding_block_cached__dense_activation_mish__decode.s.ref"
HEADER = open(REF).read().split("; Override")[0] if os.path.exists(REF) else ""

if __name__ == "__main__":
    prof = {"prof": 1, "lite": 3}.get(sys.argv[2], 0) if len(sys.argv) > 2 else 0
    open(sys.argv[1], "w").write(HEADER + Gen(prof, sys.argv[3:]).gen())
```

```python
import sys, os
sys.path.insert(0, "gen")
from asmlib import Asm

KNAME = "interleave_layers__sliding_block_cached__dense_activation_mish__decode_kernel"
BS = 4736
YO = [0, 128]; ZO = [256, 384]
QP1 = 512
OP = [896, 1280]
MISC = 1664
HPR = [1792, 2048]; HPC = 2304
X2O = 2560
CLR_END = 2816
QP0T = 3072
GEN_OFF = 256 * BS
FL1 = GEN_OFF + 4096; FL2 = GEN_OFF + 8192
WS_USED = GEN_OFF + 12288
PROF_OFF = 2 << 20
L_CTRL = 0
L_ML = 128
L_P = 256
L_O = 1024
L_YR = 4096
L_Q = 5120
L_K = 8192
L_WQ = L_K + 98304
LDS_BYTES = L_WQ + 3 * 10752
POLL_LIMIT = 200000
ONES = 4; SEL = 8; AB = [12, 16]; ACC = 20; GB = 36; XA = 60
aQG = 70; aP32 = 71; aROW = 72; aML = 73; aST = 74; ldsP = 75; lane4 = 76
CS0 = 77; CS1 = 78; X0 = 64; X1 = 66; QFA = 79; aS2 = 80; B1V = 81; CSW1 = 82
T = [83, 84, 85, 86, 87, 1, 2, 3]
aX2 = 68; aXS = 69
MK0 = 56; MK1 = 57; IDX = 58; IDQ = 59
KV = 88; WA = 184; WB = 224
WS = "s[48:51]"

DOC = """
Persistent fused kernel (generated by the author's own script): 256 workgroups x 8 waves, one per CU.
K, V and all weight slices are read from HBM once and stay in registers / LDS for both layer passes.
 wg = 8*m + xg : xg = group (expected XCD), head = 4*xg + m/8, key chunk = m%8 (256 keys).
 waves 0-3 ("K"): QK + softmax, partial combine, w1 / w2 GEMVs ; waves 4-7 ("V"): streaming, PV, wo and wq GEMVs.
GEMVs over [k][n] data use v_smfmac_f32_16x16x64_bf16 with a selector A operand (one non-zero per row and 8-chunk);
QK splits the dense q over row pairs so that it fits the 2:4 A operand; every product of the reference is computed.
LayerNorm is applied after the GEMV by linearity (rstd * (x.W - mean * colsum(W))).
Hand-offs go through d_ws: slots are cleared to 0xFFFFFFFF at kernel start and polled dword by dword;
a launch-unique tag (derived from one word of d_ws) validates the start-up flags and the first q exchange.
Group-local hand-offs use plain stores only if every member reported the same XCC id, else write-through stores.
Every poll loop is bounded.
"""

def q4(r): return f"v[{r}:{r+3}]"
DPPALL = "row_mask:0xf bank_mask:0xf"
Q1 = "quad_perm:[1,0,3,2]"; Q2 = "quad_perm:[2,3,0,1]"; HM = "row_half_mirror"; RM = "row_mirror"

class Gen:
    def __init__(self, prof=0, knobs=()):
        self.knobs = set(knobs)
        self.LL = 4; self.LL2 = 4; self.W2SL = 16; self.FS3 = 0; self.FKEEP = 4; self.OS0 = -1; self.X30 = -1; self.LAY = 1; self.EX = 1; self.PERT = 0; self.PALL = 0; self.PRI = 0; self.WOE = 0; self.WSP = 800; self.AMP = 0; self.B0IT = 0; self.B3B = 1; self.Q4 = 0; self.G4 = 0; self.PQ = 0; self.PO = 1; self.PX = 0; self.PH = 1; self.PZ = 0; self.PGAP = 12; self.TR = 1; self.XSLP = 0; self.Q1ST = 1; self.QPW = 0; self.FLSL = 127; self.QFB = 5; self.CPF0 = 1; self.B0E = 1; self.B0N = 0; self.OSC = 0; self.AL = 1; self.ALP = 3; self.SHIFT = 0; self.CPF = 0; self.NB = 8; self.QSLEEP0 = 56; self.QSLEEP1 = 24
        self.QSL = 10; self.OSL = 8; self.YSL0 = 16; self.YSL = 14; self.HSL = 7; self.ZSL = 11; self.XSL = 26; self.FSL = 8
        for k in knobs:
            if '=' in k: setattr(self, k.split('=')[0], int(k.split('=')[1]))
        self.WS = [self.WSP // 100, self.WSP // 10 % 10, self.WSP % 10]
        self.FSLOT = (0, 2, 3) if self.FS3 else (1, 3)
        self.a = Asm(); self.prof = prof; self.uid = 0; self.ool = []
    def L(self, base):
        self.uid += 1
        return f"L_{base}_{self.uid}"
    def stamp(self, i):
        if self.prof == 3 and i not in (0, 6, 11): return
        if self.prof: self.a(f"s_memrealtime s[{76+2*i}:{77+2*i}]")
    def al(self, n=3):
        if self.AL: self.a(f".p2align {n}")
    def sleep(self, n):
        if n: self.a(f"s_sleep {n}")
    def dump_stamps(self):
        if not self.prof: return
        a = self.a
        a("s_waitcnt lgkmcnt(0)")
        a(f"v_mov_b32 v{T[0]}, 0")
        for i in range(13):
            a(f"v_writelane_b32 v{T[0]}, s{76+2*i}, {i}")
        a("s_lshl_b32 s58, s2, 3\ns_add_u32 s58, s58, s3\ns_lshl_b32 s58, s58, 1\ns_add_u32 s58, s58, s54\ns_lshl_b32 s58, s58, 6")
        a(f"s_add_u32 s58, s58, {PROF_OFF}")
        a("s_mov_b64 exec, 0xffff")
        a(f"buffer_store_dword v{T[0]}, v{lane4}, {WS}, s58 offen")
        a("s_mov_b64 exec, -1")
        for i in range(13):
            a(f"s_mov_b64 s[{76+2*i}:{77+2*i}], 0")
    def dump0(self):
        if not self.prof: return
        l = self.L("nd")
        self.a(f"s_cmp_lg_u32 s54, 0\ns_cbranch_scc1 {l}")
        self.dump_stamps()
        self.a(f"{l}:")
    def local_stores(self, lines):
        a = self.a
        ls, ld = self.L("sl"), self.L("sd")
        a(f"s_cmp_eq_u32 s55, 0\ns_cbranch_scc1 {ls}")
        for x in lines: a(x.replace("{f}", ""))
        a(f"{ld}:")
        self.ool.append([f"{ls}:", "s_nop 7"] + [x.replace("{f}", " sc1") for x in lines] + ["s_nop 1", f"s_branch {ld}"])
    def poll(self, loads, regs, entry=None, slp=0, spec=(), pipe=0):
        a = self.a
        lp, lr, ld = self.L("poll"), self.L("retry"), self.L("got")
        a("s_mov_b32 s70, 0")
        nld = sum(1 for x in loads if x.startswith("buffer_"))
        post = []
        if pipe:
            for _ in range(pipe):
                for x in loads: a(x)
                a(f"s_nop {self.PGAP}\ns_nop {self.PGAP}")
            post = list(spec); spec = ()
        a(f"{lp}:")
        for x in loads: a(x)
        if self.TR and not slp:
            a(f"s_add_u32 s70, s70, 1\ns_cmp_lt_u32 s70, {POLL_LIMIT}\ns_cbranch_scc0 {lr}")
        if entry: a(f"{entry}:")
        self.al(self.ALP)
        a(f"s_nop 0\ns_waitcnt vmcnt({nld * pipe})")
        t = T[7]
        rs = list(regs)
        chk = []
        if len(rs) == 1:
            chk.append(f"v_cmp_eq_u32 vcc, -1, v{rs[0]}")
        else:
            if len(rs) == 2:
                chk.append(f"v_max_u32 v{t}, v{rs[0]}, v{rs[1]}"); rs = []
            else:
                chk.append(f"v_max3_u32 v{t}, v{rs[0]}, v{rs[1]}, v{rs[2]}"); rs = rs[3:]
            while rs:
                if len(rs) >= 2:
                    chk.append(f"v_max3_u32 v{t}, v{t}, v{rs[0]}, v{rs[1]}"); rs = rs[2:]
                else:
                    chk.append(f"v_max_u32 v{t}, v{t}, v{rs[0]}"); rs = rs[1:]
            chk.append(f"v_cmp_eq_u32 vcc, -1, v{t}")
        spec = list(spec)
        while spec or chk:
            if spec: a(spec.pop(0))
            for _ in range(2):
                if chk: a(chk.pop(0))
        if self.TR and not slp:
            a(f"s_cbranch_vccnz {lp}")
            a(f"{ld}:")
            for x in post: a(x)
            self.ool.append([f"{lr}:", "s_waitcnt vmcnt(0)", f"s_branch {ld}"])
            return
        a(f"s_cbranch_vccnz {lr}")
        a(f"{ld}:")
        self.ool.append([f"{lr}:", f"s_sleep {slp}" if slp else "s_nop 7", f"s_add_u32 s70, s70, 1", f"s_cmp_lt_u32 s70, {POLL_LIMIT}", f"s_cbranch_scc1 {lp}", f"s_branch {ld}"])
    def mfma_s(self, D, A, B, first):
        return f"v_mfma_f32_16x16x32_bf16 {q4(D)}, {q4(A)}, {q4(B)}, {'0' if first else q4(D)}"
    def flush_ool(self):
        for blk in self.ool:
            for x in blk: self.a(x)
        self.ool = []
    def build_A(self, dst, src):
        for d in range(4):
            self.a(f"v_perm_b32 v{dst+d}, v{src}, v{src}, v{SEL+d}")
    def mfma(self, D, A, B, first):
        self.a(f"v_mfma_f32_16x16x32_bf16 {q4(D)}, {q4(A)}, {q4(B)}, {'0' if first else q4(D)}")
    def pair32(self, D, t0, t1):
        self.a(f"v_add_f32_dpp v{t0}, v{D+1}, v{D} row_ror:8 {DPPALL}")
        self.a(f"v_add_f32_dpp v{t1}, v{D+3}, v{D+2} row_ror:8 {DPPALL}")
    def l64(self, D, t):
        self.a(f"v_add_f32_dpp v{t}, v{D+1}, v{D} row_ror:8 row_mask:0xf bank_mask:0x3")
        self.a(f"v_add_f32_dpp v{t}, v{D+2}, v{D+3} row_ror:8 row_mask:0xf bank_mask:0xc")
    def smf_s(self, D, A, B, idx):
        return f"v_smfmac_f32_16x16x64_bf16 {q4(D)}, {q4(A)}, v[{B}:{B+7}], v{idx}"
    def zero(self, D, n=4):
        for i in range(n): self.a(f"v_mov_b32 v{D+i}, 0")
    def gemv_bcast(self, D, pair, W, n, fill=()):
        a = self.a
        fill = list(fill)
        self.al()
        m = n // 2
        for k in range(m):
            A = AB[k & 1]
            for d in range(4):
                a(f"v_and_b32_dpp v{A+d}, v{pair}, v{MK0 + (d & 1)} row_newbcast:{2*k + (d >> 1)} {DPPALL}")
                if d == 1 and k > 0: a(self.smf_s(D, AB[(k-1) & 1], W + 8 * (k-1), IDX))
                if fill and d in self.FSLOT and len(fill) > self.FKEEP: a(fill.pop(0))
        for _ in range(2):
            if fill: a(fill.pop(0))
        a(self.smf_s(D, AB[(m-1) & 1], W + 8 * (m-1), IDX))
        for x in fill: a(x)
    def rho(self, dst, tmp, hi):
        a = self.a
        a(f"v_bfe_u32 v{dst}, v0, 3, 1\nv_lshrrev_b32 v{tmp}, 5, v0\nv_lshl_add_u32 v{dst}, v{tmp}, 1, v{dst}")
        a(f"v_bfe_u32 v{tmp}, v0, 4, 1\nv_lshl_add_u32 v{dst}, v{tmp}, {hi.bit_length()-1}, v{dst}")
    def bf16r_ops(self, dst, src):
        return [f"v_cvt_pk_bf16_f32 v{dst}, v{src}, v{src}", f"v_lshlrev_b32 v{dst}, 16, v{dst}"]
    def bf16r(self, dst, src):
        for x in self.bf16r_ops(dst, src): self.a(x)
    def ln_ops(self, s1, s2, t):
        inv = "0x3acccccd"
        if self.EX:
            return [f"v_mul_f32 v{s1}, {inv}, v{s1}", f"v_mul_f32 v{s2}, {inv}, v{s2}", f"v_fma_f32 v{s2}, -v{s1}, v{s1}, v{s2}",
                    f"v_max_f32 v{s2}, 0, v{s2}", f"v_add_f32 v{s2}, 0x3727c5ac, v{s2}", f"v_rsq_f32 v{s2}, v{s2}"]
        return [f"v_mul_f32 v{s1}, {inv}, v{s1}", f"v_mul_f32 v{s2}, {inv}, v{s2}", f"v_fma_f32 v{s2}, -v{s1}, v{s1}, v{s2}",
                f"v_max_f32 v{s2}, 0, v{s2}", f"v_cvt_pk_bf16_f32 v{t}, v{s1}, v{s2}", f"v_lshlrev_b32 v{s1}, 16, v{t}",
                f"v_and_b32 v{s2}, 0xffff0000, v{t}", f"v_add_f32 v{s2}, 0x3727c5ac, v{s2}"] + self.bf16r_ops(s2, s2) + \
               [f"v_sqrt_f32 v{s2}, v{s2}"] + self.bf16r_ops(s2, s2) + [f"v_rcp_f32 v{s2}, v{s2}"]
    def red2_ops(self, s1, s2, steps, tmp):
        return [f"v_permlane32_swap_b32 v{s1}, v{s2}", f"v_add_f32 v{s1}, v{s1}, v{s2}", f"v_mov_b32 v{tmp}, v{s1}",
                f"v_permlane16_swap_b32 v{s1}, v{tmp}", f"v_add_f32 v{s1}, v{s1}, v{tmp}"] + \
               [f"v_add_f32_dpp v{s1}, v{s1}, v{s1} {c} {DPPALL}" for c in steps]
    def row16_ops(self, s1, s2, i1=None, i2=None):
        out = []
        for c in (Q1, Q2, HM, RM):
            a1 = i1 if (c == Q1 and i1 is not None) else s1
            a2 = i2 if (c == Q1 and i2 is not None) else s2
            out += [f"v_add_f32_dpp v{s1}, v{a1}, v{a1} {c} {DPPALL}", f"v_add_f32_dpp v{s2}, v{a2}, v{a2} {c} {DPPALL}"]
        return out
    def allred64(self, op, v, tmp):
        a = self.a
        for c in (Q1, Q2, HM, RM):
            a(f"{op}_dpp v{v}, v{v}, v{v} {c} {DPPALL}")
        a(f"v_mov_b32 v{tmp}, v{v}\nv_permlane16_swap_b32 v{v}, v{tmp}\n{op} v{v}, v{v}, v{tmp}")
        a(f"v_mov_b32 v{tmp}, v{v}\nv_permlane32_swap_b32 v{v}, v{tmp}\n{op} v{v}, v{v}, v{tmp}")
    def sel_layer(self, dst, arr, add=None):
        a = self.a
        a(f"s_mul_i32 s{dst}, s54, {arr[1]-arr[0]}")
        if arr[0]: a(f"s_add_u32 s{dst}, s{dst}, {arr[0]}")
        if add is not None: a(f"s_add_u32 s{dst}, s{dst}, s{add}")
    def lds_wait_flag(self, off, val=None, fb=0):
        a = self.a
        lp, ld = self.L("lw"), self.L("lg")
        t = T[5]; t2 = T[6]
        a(f"v_mov_b32 v{t2}, {off}\ns_mov_b32 s70, 0")
        a(f"{lp}:\nds_read_b32 v{t}, v{t2}\ns_waitcnt lgkmcnt(0)\nv_readfirstlane_b32 s58, v{t}")
        a(f"s_cmp_lg_u32 s58, 0\ns_cbranch_scc1 {ld}" if val is None else f"s_cmp_eq_u32 s58, {val}\ns_cbranch_scc1 {ld}")
        a("s_sleep 1\ns_add_u32 s70, s70, 1")
        if fb: self.q_fallback(fb)
        a(f"s_cmp_lt_u32 s70, {4*POLL_LIMIT}\ns_cbranch_scc1 {lp}")
        a(f"{ld}:")
    def q_fallback(self, thresh):
        a = self.a
        QD = XA + 6
        le = self.L("qfb")
        a(f"s_cmp_lt_u32 s70, {thresh}\ns_cbranch_scc1 {le}\ns_cmp_lg_u32 s71, 0\ns_cbranch_scc1 {le}\ns_cmp_eq_u32 s3, 3\ns_cbranch_scc1 {le}")
        a("s_mov_b32 s71, 1\ns_mov_b64 exec, s[64:65]")
        a(f"buffer_store_dwordx2 v[{QD}:{QD+1}], v{QFA}, {WS}, s63 offen offset:{QP0T} sc1")
        a(f"s_mov_b64 exec, -1\ns_waitcnt vmcnt(0)\n{le}:")
    def read_fast(self):
        self.a(f"v_mov_b32 v{T[2]}, {L_CTRL+4}\nds_read_b32 v{T[2]}, v{T[2]}\ns_waitcnt lgkmcnt(0)\nv_readfirstlane_b32 s55, v{T[2]}\ns_lshr_b32 s55, s55, 1")
    def make_tag(self):
        self.a("s_waitcnt lgkmcnt(0)\ns_mul_i32 s74, s74, 1664525\ns_add_u32 s74, s74, 1013904223")
    def sum_spec(self):
        return [f"v_mfma_f32_16x16x32_bf16 {q4(ACC)}, {q4(ONES)}, {q4(GB)}, {q4(X0)}"] + [self.mfma_s(ACC, ONES, GB + 4 * n, False) for n in (1, 2)]
    def resid_add(self):
        self.pair32(ACC, T[2], T[3])
        self.a(f"v_cvt_pk_bf16_f32 v{T[4]}, v{T[2]}, v{T[3]}")
    def gather4(self, src, Q):
        a = self.a
        a(f"v_mov_b32 v{Q}, v{src}\nv_mov_b32 v{Q+1}, v{src}")
        a(f"v_permlane16_swap_b32 v{Q}, v{Q+1}")
        a(f"v_mov_b32 v{Q+2}, v{Q}\nv_mov_b32 v{Q+3}, v{Q+1}")
        a(f"v_permlane32_swap_b32 v{Q}, v{Q+2}\nv_permlane32_swap_b32 v{Q+1}, v{Q+3}")
    def unpackX_ops(self, src):
        return [f"v_lshlrev_b32 v{X0}, 16, v{src}", f"v_and_b32 v{X1}, 0xffff0000, v{src}"]
    def xstats_ops(self, s1, s2, tmp):
        return [f"v_add_f32 v{s1}, v{X0}, v{X1}", f"v_mul_f32 v{s2}, v{X0}, v{X0}", f"v_fmac_f32 v{s2}, v{X1}, v{X1}"] + self.red2_ops(s1, s2, (Q1, Q2, HM), tmp)
    def rows24_loads(self, off_arr):
        a = self.a
        self.sel_layer(58, off_arr)
        a(f"s_mul_i32 s60, s56, {BS}\ns_add_u32 s58, s58, s60\ns_add_u32 s60, s58, {10*BS}\ns_add_u32 s61, s58, {20*BS}")
        return [f"buffer_load_dwordx4 {q4(GB+4*n)}, v{aROW}, {WS}, s{(58,60,61)[n]} offen sc1" for n in range(3)]
    def consts(self):
        a = self.a
        t0, t1, t2 = T[0], T[1], T[2]
        a(f"v_and_b32 v{t0}, 1, v0\nv_mul_u32_u24 v{t0}, 0x202, v{t0}\nv_add_u32 v{t0}, 0x100, v{t0}")
        a(f"v_bfe_u32 v{t1}, v0, 1, 1\nv_lshlrev_b32 v{t1}, 4, v{t1}\nv_lshlrev_b32 v{t0}, v{t1}, v{t0}")
        a(f"v_mov_b32 v{t2}, 0x0c0c0000\nv_lshrrev_b32 v{t2}, v{t1}, v{t2}\nv_or_b32 v{t0}, v{t0}, v{t2}")
        a(f"v_bfe_u32 v{t1}, v0, 2, 2\nv_mov_b32 v{t2}, 0x0c0c0c0c")
        for d in range(4):
            a(f"v_cmp_eq_u32 vcc, {d}, v{t1}\nv_cndmask_b32 v{SEL+d}, v{t2}, v{t0}, vcc")
        a(f"v_mov_b32 v{t0}, 0x3f803f80")
        self.build_A(ONES, t0)
        a(f"v_and_b32 v{t0}, 1, v0\nv_lshlrev_b32 v{t0}, 4, v{t0}\nv_mov_b32 v{t1}, 0xffff\nv_lshlrev_b32 v{t0}, v{t0}, v{t1}")
        a(f"v_and_b32 v{t1}, 8, v0\nv_cmp_eq_u32 vcc, 0, v{t1}\nv_mov_b32 v{t2}, 0")
        a(f"v_cndmask_b32 v{MK0}, v{t2}, v{t0}, vcc\nv_cndmask_b32 v{MK1}, v{t0}, v{t2}, vcc")
        a(f"v_mov_b32 v{t0}, 0x4444\nv_mov_b32 v{t1}, 0xeeee\nv_cndmask_b32 v{IDQ}, v{t1}, v{t0}, vcc")
        a(f"v_bfe_u32 v{t0}, v0, 1, 2\nv_mul_u32_u24 v{IDX}, 0x5555, v{t0}")
    def kwave_addrs(self):
        a = self.a
        t0, t1, t2 = T[0], T[1], T[2]
        a(f"v_lshrrev_b32 v{t0}, 3, v0\nv_and_b32 v{t1}, 7, v0\ns_mov_b32 s58, {32*BS}\nv_mul_lo_u32 v{aROW}, s58, v{t0}\nv_lshl_add_u32 v{aROW}, v{t1}, 4, v{aROW}")
        a(f"v_mul_u32_u24 v{aX2}, {BS}, v{t1}\nv_lshrrev_b32 v{t1}, 4, v0\nv_lshl_add_u32 v{aX2}, v{t1}, 6, v{aX2}")
        a(f"s_lshl_b32 s58, s56, 2\ns_add_u32 s58, s58, s53\nv_add_u32 v{aX2}, s58, v{aX2}")
        a(f"v_bfe_u32 v{t0}, v0, 3, 1\nv_lshl_add_u32 v{t0}, v{t0}, 2, v{t1}\nv_mul_u32_u24 v{aQG}, {BS}, v{t0}")
        a(f"v_and_b32 v{t0}, 7, v0\nv_lshl_add_u32 v{aQG}, v{t0}, 4, v{aQG}")
        a(f"s_mul_i32 s58, s6, {8*BS}\ns_add_u32 s58, s58, s53\nv_add_u32 v{aQG}, s58, v{aQG}")
        a(f"v_bfe_u32 v{t0}, v0, 2, 2\nv_lshlrev_b32 v{ldsP}, 5, v{t0}\nv_lshl_add_u32 v{ldsP}, v{t1}, 3, v{ldsP}\nv_and_b32 v{t0}, 3, v0\nv_lshl_add_u32 v{ldsP}, v{t0}, 1, v{ldsP}")
        a(f"s_lshl_b32 s58, s3, 7\ns_add_u32 s58, s58, {L_P}\nv_add_u32 v{ldsP}, s58, v{ldsP}")
        a(f"v_and_b32 v{t0}, 15, v0\nv_mul_u32_u24 v{aML}, {BS}, v{t1}\nv_lshl_add_u32 v{aML}, v{t0}, 4, v{aML}")
        a(f"v_lshlrev_b32 v{aST}, 4, v{t0}\nv_lshl_add_u32 v{aST}, v{t1}, 2, v{aST}\nv_lshlrev_b32 v{aXS}, 3, v{t0}")
        a(f"v_and_b32 v{QFA}, 7, v0\nv_lshlrev_b32 v{QFA}, 3, v{QFA}\nv_lshl_add_u32 v{QFA}, v{t1}, 6, v{QFA}")
        a(f"v_lshrrev_b32 v{aS2}, 3, v0\nv_and_b32 v{aS2}, 4, v{aS2}")
    def vwave_addrs(self):
        a = self.a
        a("v_and_b32 v1, 7, v0\nv_lshrrev_b32 v2, 3, v0\nv_lshrrev_b32 v3, 4, v0")
        a("s_min_u32 s61, s57, 2\ns_lshl_b32 s58, s61, 2\ns_and_b32 s60, s3, 3\ns_add_u32 s58, s58, s60\ns_mul_i32 s60, s58, 43\ns_lshr_b32 s60, s60, 7")
        a("s_mul_i32 s61, s60, 3\ns_sub_u32 s58, s58, s61")
        a(f"s_mul_i32 s60, s60, {8*BS}\ns_add_u32 s60, s60, s53\ns_lshl_b32 s58, s58, 7\ns_add_u32 s58, s58, s60")
        a(f"v_mul_u32_u24 v{aQG}, {BS}, v2\nv_lshl_add_u32 v{aQG}, v1, 4, v{aQG}\nv_add_u32 v{aQG}, s58, v{aQG}")
        a(f"v_lshl_add_u32 v{aML}, v3, 1, v0\nv_and_b32 v{aML}, 7, v{aML}\nv_lshlrev_b32 v{aML}, 3, v{aML}\nv_add_u32 v{aML}, s60, v{aML}")
        a(f"s_and_b32 s58, s3, 3\ns_lshl_b32 s58, s58, 7\ns_add_u32 s58, s58, {L_P}\nv_lshlrev_b32 v{ldsP}, 5, v3\nv_add_u32 v{ldsP}, s58, v{ldsP}")
        a(f"s_mul_i32 s58, s6, {8*BS}\ns_add_u32 s58, s58, s53\ns_and_b32 s60, s3, 3\ns_lshl_b32 s60, s60, 7\ns_add_u32 s58, s58, s60\ns_lshl_b32 s60, s7, 4\ns_add_u32 s58, s58, s60")
        a(f"v_and_b32 v{T[0]}, 1, v3\nv_lshrrev_b32 v{T[1]}, 1, v1\nv_lshl_add_u32 v{T[0]}, v{T[0]}, 2, v{T[1]}\nv_mul_u32_u24 v{aST}, {BS}, v{T[0]}")
        a(f"v_and_b32 v{T[0]}, 1, v1\nv_lshl_add_u32 v{aST}, v{T[0]}, 3, v{aST}\nv_lshrrev_b32 v{T[0]}, 1, v3\nv_lshl_add_u32 v{aST}, v{T[0]}, 2, v{aST}\nv_add_u32 v{aST}, s58, v{aST}")
        a(f"s_mul_i32 s58, s7, {BS}\ns_add_u32 s58, s58, s53\nv_add_u32 v{aX2}, s58, v{lane4}")
        a(f"v_and_b32 v{aXS}, 15, v0\nv_lshlrev_b32 v{aXS}, 3, v{aXS}\nv_mov_b32 v{aROW}, 0")
        a(f"s_and_b32 s58, s3, 3\ns_lshl_b32 s58, s58, 8\nv_add_u32 v{aS2}, s58, v{lane4}")
    def k_dma(self):
        a = self.a
        t = T[0]; t2 = T[1]
        a(f"v_lshrrev_b32 v{t}, 3, v0\nv_and_b32 v{t2}, 6, v{t}\nv_xor_b32 v{t2}, v{t2}, v0\nv_and_b32 v{t2}, 7, v{t2}")
        a(f"v_mul_u32_u24 v{t}, 384, v{t}\nv_lshl_add_u32 v{t}, v{t2}, 4, v{t}")
        a(f"s_and_b32 s60, s3, 3\ns_mul_i32 s60, s60, 24576\ns_add_u32 s60, s60, {L_K}\ns_mov_b32 s58, s59\ns_add_u32 s61, s59, {64*384}")
        a(f"v_mul_u32_u24 v{T[4]}, 384, v2\nv_lshl_add_u32 v{T[4]}, v1, 4, v{T[4]}")
        a("s_waitcnt lgkmcnt(0)")
        self.stamp(2)
        if self.B0IT == 0: a("s_barrier")
        self.stamp(3)
        a(f"s_add_u32 s62, s59, {3072*self.B0IT}")
        a("L_kdma:")
        for th in range(3):
            a(f"s_add_u32 m0, s60, {th*1024 - th*128}")
            a(f"buffer_load_dwordx4 v{t}, s[12:15], s58 offen offset:{th*128} nt lds")
        a("s_add_u32 s60, s60, 3072\ns_add_u32 s58, s58, 3072")
        if self.B0IT: a("s_cmp_lg_u32 s58, s62\ns_cbranch_scc1 L_kdma_nb\ns_barrier\nL_kdma_nb:")
        a("s_cmp_lt_u32 s58, s61\ns_cbranch_scc1 L_kdma")
    def k_to_regs(self):
        a = self.a
        t = T[0]; t2 = T[1]; t3 = T[2]
        a(f"v_and_b32 v{t}, 7, v0\nv_lshrrev_b32 v{t2}, 4, v0\nv_and_b32 v{t3}, 6, v0\nv_xor_b32 v{t2}, v{t2}, v{t3}")
        a(f"v_lshlrev_b32 v{t}, 7, v{t}\nv_bfe_u32 v{t3}, v0, 3, 1\nv_mul_u32_u24 v{t3}, 3072, v{t3}\nv_add_u32 v{t}, v{t}, v{t3}")
        a(f"s_mul_i32 s60, s3, 24576\nv_add_u32 v{t}, s60, v{t}")
        a(f"v_lshl_add_u32 v{t3}, v{t2}, 4, v{t}")
        a(f"v_xor_b32 v{t2}, 4, v{t2}\nv_lshl_add_u32 v{t2}, v{t2}, 4, v{t}")
        for tile in range(4):
            for u in range(6):
                off = L_K + (2 * tile * 3 + (u >> 1)) * 1024
                a(f"ds_read_b128 {q4(KV + (tile*6+u)*4)}, v{t2 if (u & 1) else t3} offset:{off}")
            if tile == 1: a("s_waitcnt lgkmcnt(0)")
        a("s_waitcnt lgkmcnt(0)")
    def wo_part(self, lo, hi):
        a = self.a
        le = self.L("wop")
        a(f"s_cmp_lg_u32 s54, 0\ns_cbranch_scc1 {le}")
        for t in range(lo, hi):
            a(f"buffer_load_dwordx4 {q4(WB+4*t)}, v{XA}, s[24:27], s63 offen nt")
            if t < 7: a(f"s_add_u32 s63, s63, {8*1280}")
        a(f"{le}:")
    def wo_loads(self, n=8):
        a = self.a
        t1 = XA
        self.rho(t1, XA + 1, 8)
        a(f"v_mul_u32_u24 v{t1}, 1280, v{t1}\nv_and_b32 v{XA+1}, 7, v0\nv_lshl_add_u32 v{t1}, v{XA+1}, 4, v{t1}")
        a("s_min_u32 s62, s57, 2\ns_mul_i32 s58, s4, 768\ns_lshl_b32 s60, s62, 8\ns_add_u32 s58, s58, s60\ns_and_b32 s60, s3, 3\ns_lshl_b32 s60, s60, 6\ns_add_u32 s58, s58, s60")
        a("s_mul_i32 s58, s58, 1280\ns_lshl_b32 s60, s56, 7\ns_add_u32 s58, s58, s60")
        a("s_cmp_ge_u32 s5, 30\ns_cselect_b32 s58, 0x7f000000, s58")
        for t in range(n):
            a(f"buffer_load_dwordx4 {q4(WB+4*t)}, v{t1}, s[24:27], s58 offen nt")
            if t < 7: a(f"s_add_u32 s58, s58, {(12 if t & 1 else 4)*1280}")
        a("s_mov_b32 s63, s58")
    def w1_loads(self):
        a = self.a
        t0, t1 = T[2], T[3]
        self.rho(t0, t1, 8)
        a(f"v_and_b32 v{t1}, 7, v0\nv_mul_u32_u24 v{t0}, 3072, v{t0}\nv_lshl_add_u32 v{t0}, v{t1}, 4, v{t0}")
        a(f"s_mul_i32 s58, s56, {64*3072}\ns_mul_i32 s60, s4, 384\ns_add_u32 s58, s58, s60\ns_lshl_b32 s60, s57, 7\ns_add_u32 s58, s58, s60")
        for t in range(8):
            a(f"buffer_load_dwordx4 {q4(WB+4*t)}, v{t0}, s[28:31], s58 offen nt")
            if t < 7: a(f"s_add_u32 s58, s58, {(12 if t & 1 else 4)*3072}")
    def w2_loads(self):
        a = self.a
        t0, t1 = T[2], T[3]
        self.rho(t0, t1, 8)
        a(f"v_and_b32 v{t1}, 7, v0\nv_mul_u32_u24 v{t0}, 1280, v{t0}\nv_lshl_add_u32 v{t0}, v{t1}, 4, v{t0}")
        a("s_mul_i32 s58, s4, 192\ns_lshl_b32 s60, s57, 6\ns_add_u32 s61, s58, s60\ns_mul_i32 s58, s61, 1280\ns_lshl_b32 s60, s56, 7\ns_add_u32 s58, s58, s60")
        for t in range(8):
            a(f"buffer_load_dwordx4 {q4(WB+4*t)}, v{t0}, s[36:39], s58 offen nt")
            if t < 7: a(f"s_add_u32 s58, s58, {(12 if t & 1 else 4)*1280}")
        a(f"v_bfe_u32 v{t0}, v0, 3, 1\nv_lshl_add_u32 v{t0}, v{t0}, 1, v{aP32}\ns_lshl_b32 s61, s61, 1")
        a(f"buffer_load_ushort v{B1V}, v{t0}, s[32:35], s61 offen")
    def clears(self, all_sc1):
        a = self.a
        C = XA + 4
        for i in range(4): a(f"v_mov_b32 v{C+i}, -1")
        a(f"v_lshlrev_b32 v{T[3]}, 4, v0")
        f = " sc1" if all_sc1 else ""
        a("s_mov_b32 exec_hi, 0")
        a(f"buffer_store_dwordx4 {q4(C)}, v{T[3]}, {WS}, s52 offen sc1")
        a("s_mov_b32 exec_lo, 0xffff")
        a(f"buffer_store_dwordx4 {q4(C)}, v{T[3]}, {WS}, s52 offen offset:2560{f}")
        a("s_mov_b64 exec, -1")
        for o in (512, 1536):
            a(f"buffer_store_dwordx4 {q4(C)}, v{T[3]}, {WS}, s52 offen offset:{o}{f}")
    def flag_store(self, base):
        a = self.a
        C = XA + 4
        if base == FL1:
            a("s_xor_b32 s58, s74, 0x5bd1e995\ns_andn2_b32 s58, s58, 15\ns_or_b32 s75, s75, s58")
        a(f"s_lshl_b32 s58, s4, 5\ns_add_u32 s58, s58, s5\ns_lshl_b32 s58, s58, 3\ns_add_u32 s58, s58, {base}")
        a(f"v_mov_b32 v{C}, s74\nv_mov_b32 v{C+1}, s75")
        a("s_mov_b64 exec, 1")
        a(f"buffer_store_dwordx2 v[{C}:{C+1}], v{aP32}, {WS}, s58 offen sc1")
        a("s_mov_b64 exec, -1")
    def flags_issue(self, base):
        a = self.a
        F = AB[0]
        a(f"v_lshlrev_b32 v{T[4]}, 5, v0\ns_mov_b32 s60, {base}")
        a(f"buffer_load_dwordx4 {q4(F)}, v{T[4]}, {WS}, s60 offen sc1\nbuffer_load_dwordx4 {q4(F+4)}, v{T[4]}, {WS}, s60 offen offset:16 sc1")
    def flags_wait(self, base, group_only):
        a = self.a
        F = AB[0]
        t, t2 = T[2], T[3]
        lp, lc, ld = self.L("fp"), self.L("fc"), self.L("fg")
        a("s_mov_b32 s70, 0\ns_or_b32 s61, s75, 15")
        if base == FL1: a(f"s_branch {lc}")
        a(f"{lp}:")
        self.flags_issue(base)
        a(f"{lc}:")
        a("s_waitcnt vmcnt(0)")
        a(f"v_xor_b32 v{t}, s74, v{F}")
        for i in range(1, 4):
            a(f"v_xor_b32 v{t2}, s74, v{F+2*i}\nv_or_b32 v{t}, v{t}, v{t2}")
        for i in range(4):
            a(f"v_or_b32 v{t2}, 15, v{F+2*i+1}\nv_xor_b32 v{t2}, s61, v{t2}\nv_or_b32 v{t}, v{t}, v{t2}")
        a(f"v_cmp_ne_u32 vcc, 0, v{t}")
        if group_only: a(f"s_and_b64 vcc, vcc, s[72:73]\ns_cbranch_scc0 {ld}")
        else: a(f"s_cbranch_vccz {ld}")
        a(f"s_sleep 16\ns_add_u32 s70, s70, 1\ns_cmp_lt_u32 s70, {POLL_LIMIT}\ns_cbranch_scc1 {lp}\n{ld}:")
    def flags_check(self):
        a = self.a
        F = AB[0]; t, t2 = T[2], T[3]
        lf = self.L("fast")
        a("s_lshl_b32 s58, s4, 3\ns_mov_b64 s[72:73], 0xff\ns_lshl_b64 s[72:73], s[72:73], s58")
        self.flags_wait(FL1, False)
        a(f"v_xor_b32 v{t}, s75, v{F+1}")
        for i in range(1, 4):
            a(f"v_xor_b32 v{t2}, s75, v{F+2*i+1}\nv_or_b32 v{t}, v{t}, v{t2}")
        a(f"v_cmp_ne_u32 vcc, 0, v{t}\ns_mov_b32 s55, 1\ns_and_b64 vcc, vcc, s[72:73]")
        if "forceslow" not in self.knobs: a(f"s_cbranch_scc0 {lf}")
        a("s_mov_b32 s55, 0")
        self.clears(True)
        a("s_waitcnt vmcnt(0)")
        self.flag_store(FL2)
        self.flags_wait(FL2, True)
        a(f"{lf}:")
        a(f"s_lshl_b32 s58, s55, 1\ns_or_b32 s58, s58, 1\nv_mov_b32 v{t}, s58\nv_mov_b32 v{T[3]}, {L_CTRL}\nds_write_b32 v{T[3]}, v{t} offset:4")
    def qproj(self, pair, s1, s2, pre_ops):
        a = self.a
        self.gemv_bcast(ACC, pair, WA, 10, fill=list(pre_ops) + self.ln_ops(s1, s2, T[2]))
        self.pair32(ACC, T[2], T[3])
        a(f"v_fma_f32 v{T[2]}, -v{s1}, v{CS0}, v{T[2]}\nv_fma_f32 v{T[3]}, -v{s1}, v{CS1}, v{T[3]}")
        a(f"v_mul_f32 v{T[2]}, v{T[2]}, v{s2}\nv_mul_f32 v{T[3]}, v{T[3]}, v{s2}")
        a(f"v_cvt_pk_bf16_f32 v{T[4]}, v{T[2]}, v{T[3]}")

    def gen(self):
        a = self.a
        a(f"; @launch grid=(256,1,1) block=(512,1,1) lds={LDS_BYTES}")
        for ln in DOC.strip().split("\n"): a("; " + ln)
        a('.amdgcn_target "amdgcn-amd-amdhsa--gfx950"\n.text')
        a(f".globl {KNAME}\n.p2align 8\n.type {KNAME},@function")
        a(f"{KNAME}:")
        a("s_cmp_ge_u32 s2, 256\ns_cbranch_scc1 L_end")
        for _ in range(self.SHIFT): a("s_nop 0")
        if self.prof:
            for i in range(13): a(f"s_mov_b64 s[{76+2*i}:{77+2*i}], 0")
        self.stamp(0)
        if self.AMP: a("s_memrealtime s[92:93]")
        ptr = {12: 8, 20: 24, 8: 0, 48: 88, 16: 16, 24: 32, 28: 48, 32: 56, 36: 64, 40: 72}
        size = {8: 1280, 12: 100663296, 16: 100663296, 20: 7864320, 24: 7864320, 28: 1966080, 32: 3072, 36: 1966080, 40: 1280,
                48: (PROF_OFF + 256 * 8 * 2 * 64) if self.prof else WS_USED}
        for s, off in ptr.items():
            a(f"s_load_dwordx2 s[{s}:{s+1}], s[0:1], {off}")
        a("v_lshrrev_b32 v1, 6, v0\nv_and_b32 v0, 63, v0\nv_readfirstlane_b32 s3, v1")
        if self.CPF0:
            a("s_getpc_b64 s[72:73]")
            a("L_pcref0:")
            a(f"s_sub_u32 s72, s72, L_pcref0-{KNAME}\ns_subb_u32 s73, s73, 0")
            a("s_and_b32 s58, s2, 0xf8\ns_add_u32 s58, s58, s3\ns_lshl_b32 s58, s58, 7")
            a(f"s_cmp_ge_u32 s58, L_end-{KNAME}\ns_cbranch_scc1 L_nocpf0")
            a(f"v_mov_b32 v2, s58\ns_mov_b64 exec, 1\nglobal_load_dword v{WA+39}, v2, s[72:73]\ns_mov_b64 exec, -1")
            a("L_nocpf0:")
        self.size = size
        a("s_and_b32 s4, s2, 7\ns_lshr_b32 s5, s2, 3\ns_lshr_b32 s6, s5, 3\ns_and_b32 s7, s5, 7")
        a("v_and_b32 v1, 7, v0\nv_lshrrev_b32 v2, 3, v0\nv_lshrrev_b32 v3, 4, v0")
        a(f"v_lshlrev_b32 v{lane4}, 2, v0")
        if self.LAY == 0:
            a("s_cmp_lt_u32 s3, 4\ns_cbranch_scc1 L_pro_k")
            self.v_prologue()
            a("L_pro_k:")
        else:
            a("s_cmp_ge_u32 s3, 4\ns_cbranch_scc1 L_pro_v")
        a(f"s_setprio 3\ns_mov_b32 s71, {GEN_OFF}")
        a("s_cmp_eq_u32 s3, 3\ns_cbranch_scc1 L_pro_c")
        XS = GB
        self.srd(8, 20)
        a(f"v_lshlrev_b32 v{T[0]}, 4, v0")
        a(f"v_and_b32 v{T[1]}, 15, v0\nv_lshlrev_b32 v{T[1]}, 7, v{T[1]}\nv_lshl_add_u32 v{T[1]}, v3, 2, v{T[1]}\ns_lshl_b32 s61, s7, 4")
        self.rho(T[2], T[3], 64)
        a(f"v_mul_u32_u24 v{T[2]}, 12288, v{T[2]}\nv_lshl_add_u32 v{T[2]}, v1, 4, v{T[2]}")
        a(f"s_lshl_b32 s58, s4, 2\ns_add_u32 s58, s58, s6\ns_mul_i32 s58, s58, 384\ns_lshl_b32 s60, s3, 7\ns_add_u32 s58, s58, s60\ns_mul_i32 s60, s7, {8*12288}\ns_add_u32 s58, s58, s60")
        a("s_waitcnt lgkmcnt(0)")
        a(f"buffer_load_dwordx4 {q4(XS)}, v{T[0]}, s[8:11], 0 offen")
        a(f"buffer_load_dword v{XS+4}, v{lane4}, s[8:11], 0 offen offset:1024")
        a(f"buffer_load_dword v{XA}, v{T[1]}, s[8:11], s61 offen")
        for t in range(10 if "nowq" not in self.knobs else 0):
            a(f"buffer_load_dwordx4 {q4(WA+4*t)}, v{T[2]}, s[20:23], s58 offen nt")
            if t < 9: a(f"s_add_u32 s58, s58, {(124 if t & 1 else 4)*12288}")
        if self.QPW:
            a(f"v_mov_b32 v{XA+6}, -1\ns_lshl_b32 s60, s3, 8\ns_add_u32 s63, s52, s60")
            a(f"buffer_store_dword v{XA+6}, v{lane4}, {WS}, s63 offen offset:{QP0T+768}")
        a("s_barrier")
        if self.LAY:
            a("s_branch L_k_rest")
            self.c_head()
            a("s_branch L_c_rest")
            a("L_pro_v:")
            self.v_prologue()
            a("L_k_rest:")
        self.rest_setup((8, 20))
        a(f"s_buffer_load_dword s74, {WS}, s71")
        self.consts()
        self.kwave_addrs()
        self.make_tag()
        a(f"s_waitcnt vmcnt({11 + self.QPW})")
        s1, s2 = T[0], T[1]
        a(f"v_mov_b32 v{s1}, 0\nv_mov_b32 v{s2}, 0")
        for i in range(5):
            a(f"v_lshlrev_b32 v{T[2]}, 16, v{XS+i}\nv_and_b32 v{T[3]}, 0xffff0000, v{XS+i}")
            a(f"v_add_f32 v{s1}, v{s1}, v{T[2]}\nv_fmac_f32 v{s2}, v{T[2]}, v{T[2]}\nv_add_f32 v{s1}, v{s1}, v{T[3]}\nv_fmac_f32 v{s2}, v{T[3]}, v{T[3]}")
        for r in (s1, s2):
            a(f"v_mov_b32 v{T[2]}, v{r}\nv_permlane16_swap_b32 v{r}, v{T[2]}\nv_add_f32 v{r}, v{r}, v{T[2]}")
            a(f"v_mov_b32 v{T[2]}, v{r}\nv_permlane32_swap_b32 v{r}, v{T[2]}\nv_add_f32 v{GB + 2 + (r == s2)}, v{r}, v{T[2]}")
        a(f"s_waitcnt vmcnt({self.QPW})")
        self.stamp(1)
        if "lo1" in self.knobs: a("s_branch L_fin2")
        for t in range(10):
            self.mfma(ACC + 4, ONES, WA + 4 * t, t == 0)
        self.zero(ACC)
        a(f"v_mov_b32 v{GB}, v{XA}")
        self.pair32(ACC + 4, CS0, CS1)
        a("s_branch L_qproj")
        a("L_qp_ret0:")
        QD = XA + 6
        a(f"v_mov_b32 v{QD}, v{T[4]}\nv_mov_b32 v{QD+1}, s74")
        a("s_lshl_b32 s60, s3, 8\ns_add_u32 s63, s52, s60")
        a("s_mov_b64 exec, s[64:65]")
        a(f"buffer_store_dwordx2 v[{QD}:{QD+1}], v{QFA}, {WS}, s63 offen offset:{QP0T+768}")
        a("s_mov_b64 exec, -1\ns_mov_b32 s71, 0")
        self.stamp(3)
        if "lo2" in self.knobs: a("s_branch L_fin2")
        a(f"s_mul_i32 s58, s3, 10752\ns_add_u32 s58, s58, {L_WQ}\nv_lshlrev_b32 v{T[0]}, 4, v0\nv_add_u32 v{T[0]}, s58, v{T[0]}")
        for t in range(10):
            a(f"ds_write_b128 v{T[0]}, {q4(WA+4*t)} offset:{1024*t}")
        a(f"v_add_u32 v{T[1]}, s58, v{lane4}\nds_write_b32 v{T[1]}, v{CS0} offset:10240\nds_write_b32 v{T[1]}, v{CS1} offset:10496")
        QA = [XA + 1, XA + 2]
        a(f"s_mul_i32 s62, s6, {8*BS}\ns_add_u32 s62, s62, s53\ns_lshl_b32 s58, s3, 7")
        for n in range(2):
            a(f"v_add_u32 v{T[0]}, s58, v0")
            if n: a(f"v_add_u32 v{T[0]}, 64, v{T[0]}")
            a(f"v_mul_u32_u24 v{T[1]}, 0x556, v{T[0]}\nv_lshrrev_b32 v{T[1]}, 16, v{T[1]}")
            a(f"v_mul_u32_u24 v{T[2]}, {BS - 768}, v{T[1]}\nv_lshl_add_u32 v{QA[n]}, v{T[0]}, 4, v{T[2]}")
        SETS = [[WB, WB + 4], [WB + 8, WB + 12]]
        def qissue(k):
            if k == 0: a("s_add_u32 s58, s62, 768")
            else: a(f"s_cmp_ge_u32 s70, {self.QFB}\ns_cselect_b32 s58, 0, 768\ns_add_u32 s58, s58, s62")
            for n in range(2):
                a(f"buffer_load_dwordx4 {q4(SETS[k][n])}, v{QA[n]}, {WS}, s58 offen offset:{QP0T} sc1")
        lp, ld = self.L("poll"), self.L("got")
        a(f"s_mov_b32 s70, 0\ns_sleep {self.QSLEEP0}")
        gots = [self.L("qg") for _ in range(2)]
        if self.Q1ST:
            qissue(0)
            a("s_waitcnt vmcnt(0)")
            a(f"v_mov_b32 v{T[0]}, s74\nv_mov_b32 v{T[1]}, s74")
            for r in SETS[0]:
                a(f"v_min3_u32 v{T[0]}, v{T[0]}, v{r+1}, v{r+3}\nv_max3_u32 v{T[1]}, v{T[1]}, v{r+1}, v{r+3}")
            a(f"v_cmp_ne_u32 vcc, v{T[0]}, v{T[1]}\ns_cbranch_vccz {gots[0]}")
        qissue(0); a(f"s_sleep {self.QSLEEP1}"); qissue(1)
        a(f"{lp}:")
        for k in range(2):
            a("s_waitcnt vmcnt(2)")
            a(f"v_mov_b32 v{T[0]}, s74\nv_mov_b32 v{T[1]}, s74")
            for r in SETS[k]:
                a(f"v_min3_u32 v{T[0]}, v{T[0]}, v{r+1}, v{r+3}\nv_max3_u32 v{T[1]}, v{T[1]}, v{r+1}, v{r+3}")
            a(f"v_cmp_ne_u32 vcc, v{T[0]}, v{T[1]}\ns_cbranch_vccz {gots[k]}")
            if k == 1:
                a("s_add_u32 s70, s70, 1")
                self.q_fallback(self.QFB)
            qissue(k)
        a(f"s_cmp_lt_u32 s70, {POLL_LIMIT}\ns_cbranch_scc1 {lp}")
        for k in range(2):
            a(f"{gots[k]}:")
            a(f"v_lshrrev_b32 v{T[0]}, 4, v0\nv_lshlrev_b32 v{T[0]}, 7, v{T[0]}\nv_and_b32 v{T[1]}, 3, v0\nv_lshl_add_u32 v{T[0]}, v{T[1]}, 4, v{T[0]}")
            a(f"v_bfe_u32 v{T[1]}, v0, 2, 1\nv_lshl_add_u32 v{T[0]}, v{T[1]}, 6, v{T[0]}\nv_bfe_u32 v{T[1]}, v0, 3, 1\nv_lshl_add_u32 v{T[0]}, v{T[1]}, 2, v{T[0]}")
            a(f"s_lshl_b32 s58, s3, 10\ns_add_u32 s58, s58, {L_Q}\nv_add_u32 v{T[0]}, s58, v{T[0]}")
            for n in range(2):
                a(f"ds_write2_b32 v{T[0]}, v{SETS[k][n]}, v{SETS[k][n]+2} offset0:{128*n} offset1:{128*n+2}")
            if k < 1: a(f"s_branch {ld}")
        a(f"{ld}:")
        a(f"v_mov_b32 v{T[2]}, 1\nv_mov_b32 v{T[3]}, {L_CTRL+32}\ns_waitcnt lgkmcnt(0)\nds_add_u32 v{T[3]}, v{T[2]}")
        self.stamp(2)
        a("s_branch L_bk")
        if self.LAY == 0: self.c_head()
        else: a("L_c_rest:")
        self.rest_setup((8, 48), blk=False)
        a(f"s_buffer_load_dword s74, {WS}, s71")
        self.consts()
        self.kwave_addrs()
        self.make_tag()
        a("s_waitcnt vmcnt(0)")
        if "noclr" not in self.knobs: self.flag_store(FL1)
        self.stamp(1)
        if not (self.knobs & {"lo1", "lo2"}) and "noclr" not in self.knobs:
            a(f"s_sleep {self.FLSL}")
            self.flags_issue(FL1)
            self.flags_check()
            self.stamp(2)
        a("s_waitcnt vmcnt(0)")
        for x in self.unpackX_ops(GB + 4): a(x)
        a(f"v_mov_b32 v{X0+1}, 0\nv_mov_b32 v{X0+3}, 0")
        a("L_bk:")
        if self.knobs & {"lo1", "lo2", "lo3"}: a("s_branch L_fin2")
        a(f"s_lshl_b32 s60, s3, 2\ns_add_u32 s60, s60, {L_CTRL+16}")
        self.lds_wait_flag("s60")
        self.stamp(10)
        self.k_to_regs()
        self.lds_wait_flag(L_CTRL + 32, 192, fb=64)
        self.stamp(11)
        a(f"v_and_b32 v{T[3]}, 7, v0\nv_mul_u32_u24 v{T[3]}, 384, v{T[3]}\nv_lshrrev_b32 v{T[4]}, 4, v0\nv_lshl_add_u32 v{T[3]}, v{T[4]}, 4, v{T[3]}")
        a(f"v_and_b32 v{T[4]}, 8, v0\nv_lshl_add_u32 v{T[3]}, v{T[4]}, 3, v{T[3]}")
        for u in range(3):
            a(f"ds_read_b128 {q4(GB+4*u)}, v{T[3]} offset:{L_Q + 128*u}")
        self.zero(ACC, 16)
        a("s_waitcnt lgkmcnt(0)")
        a("s_branch L_qk")

        a("L_kloop:")
        a("s_cmp_lg_u32 s3, 3\ns_cbranch_scc1 L_k_b1")
        a("s_cmp_ge_u32 s5, 10\ns_cbranch_scc1 L_k_pt")
        a(f"s_lshl_b32 s63, s56, 3\ns_add_u32 s63, s63, s53\ns_add_u32 s63, s63, {7*BS}")
        self.zgather(0, self.ZSL)
        s1, s2 = T[0], T[1]
        a("s_mov_b64 exec, s[64:65]")
        self.local_stores([f"buffer_store_dword v{T[4]}, v{aX2}, {WS}, 0 offen offset:{X2O}{{f}}"])
        a("s_mov_b64 exec, -1")
        for x in self.unpackX_ops(T[4]) + self.xstats_ops(s1, s2, T[2]): a(x)
        a("s_mov_b64 exec, s[46:47]")
        self.local_stores([f"buffer_store_dword v{s1}, v{aS2}, {WS}, s63 offen offset:{MISC}{{f}}"])
        a("s_mov_b64 exec, -1")
        self.stamp(2)
        a("L_k_pt:")
        a("L_k_b1:")
        self.zero(ACC, 16)
        a("s_barrier")
        self.sleep(self.QSL)
        self.poll([f"buffer_load_dwordx4 {q4(GB+4*u)}, v{aQG}, {WS}, 0 offen offset:{QP1 + 128*u} sc1" for u in range(3)], range(GB, GB + 12), entry="L_qk", pipe=self.PQ)
        self.stamp(4)
        S = T[0]; M = T[1]
        R = [XA, XA + 1, XA + 2, XA + 3]
        def tsum(t):
            D = ACC + 4 * t
            return [f"v_add_f32 v{R[t]}, v{D}, v{D+1}", f"v_add_f32 v{T[2]}, v{D+2}, v{D+3}", f"v_add_f32 v{R[t]}, v{R[t]}, v{T[2]}"]
        order = [0, 2, 1, 3]
        for k, t in enumerate(order):
            for n in range(3):
                a(self.smf_s(ACC + 4 * t, GB + 4 * n, KV + (t * 6 + 2 * n) * 4, IDQ))
            if k >= 2:
                for x in tsum(order[k - 2]): a(x)
        a(f"v_permlane32_swap_b32 v{R[0]}, v{R[2]}")
        for x in tsum(1): a(x)
        a(f"v_add_f32 v{R[0]}, v{R[0]}, v{R[2]}")
        for x in tsum(3): a(x)
        a(f"v_permlane32_swap_b32 v{R[1]}, v{R[3]}\nv_add_f32 v{R[1]}, v{R[1]}, v{R[3]}")
        a(f"v_permlane16_swap_b32 v{R[0]}, v{R[1]}\nv_add_f32 v{S}, v{R[0]}, v{R[1]}")
        a(f"v_mul_f32 v{S}, 0x3dd53b95, v{S}")
        a(f"v_max_f32_dpp v{M}, v{S}, v{S} {Q1} {DPPALL}")
        for c in (Q2, HM, RM):
            a(f"v_max_f32_dpp v{M}, v{M}, v{M} {c} {DPPALL}")
        a(f"v_mov_b32 v{T[2]}, v{M}\nv_permlane16_swap_b32 v{M}, v{T[2]}\nv_max_f32 v{M}, v{M}, v{T[2]}")
        a(f"v_mov_b32 v{T[2]}, v{M}\nv_permlane32_swap_b32 v{M}, v{T[2]}\nv_max_f32 v{M}, v{M}, v{T[2]}")
        a(f"v_sub_f32 v{S}, v{S}, v{M}\nv_exp_f32 v{S}, v{S}")
        a(f"v_cvt_pk_bf16_f32 v{S}, v{S}, v{S}")
        a(f"ds_write_b16 v{ldsP}, v{S}")
        a("s_cmp_eq_u32 s3, 3\ns_cbranch_scc1 L_qk_nf\ns_cmp_lg_u32 s54, 0\ns_cbranch_scc1 L_qk_nf")
        self.lds_wait_flag(L_CTRL + 4)
        a("s_lshr_b32 s55, s58, 1\ns_cmp_lg_u32 s55, 0\ns_cbranch_scc1 L_qk_nf")
        self.q_fallback(0)
        a("L_qk_nf:")
        a("s_waitcnt vmcnt(0) lgkmcnt(0)" if self.PQ else "s_waitcnt lgkmcnt(0)")
        self.stamp(5)
        if self.PRI == 1: a("s_setprio 0")
        a("s_barrier")
        if self.PRI == 2: a("s_sleep 2")
        a(f"v_lshlrev_b32 v{S}, 16, v{S}")
        self.allred64("v_add_f32", S, T[2])
        a(f"s_lshl_b32 s58, s3, 3\nv_mov_b32 v{T[2]}, s58")
        a("s_mov_b64 exec, 1")
        a(f"ds_write_b32 v{T[2]}, v{M} offset:{L_ML}\nds_write_b32 v{T[2]}, v{S} offset:{L_ML+4}")
        a("s_mov_b64 exec, -1")
        a("s_cmp_lg_u32 s3, 3\ns_cbranch_scc1 L_k_b3")
        a("s_waitcnt lgkmcnt(0)\ns_barrier")
        a("s_cmp_ge_u32 s5, 30\ns_cbranch_scc1 L_k_next")
        a("s_cmp_eq_u32 s54, 0\ns_cbranch_scc1 L_c_nx2\ns_cmp_lt_u32 s5, 10\ns_cbranch_scc1 L_c_nx2")
        self.poll([f"buffer_load_dword v{GB}, v{aX2}, {WS}, 0 offen offset:{X2O} sc1"], [GB])
        for x in self.unpackX_ops(GB): a(x)
        a("L_c_nx2:")
        if self.LL == 3:
            a("s_cmp_lg_u32 s54, 0\ns_cbranch_scc1 L_c_b4")
            self.w1_loads()
            a("L_c_b4:")
        if self.B3B:
            a("s_cmp_lg_u32 s54, 0\ns_cbranch_scc1 L_c_nb3b\ns_barrier")
            self.w1_loads()
            a("L_c_nb3b:")
        a("s_barrier")
        self.zero(ACC + 4)
        self.sel_layer(62, HPR, 52)
        a(f"s_mul_i32 s63, s54, 3\ns_add_u32 s63, s63, s57\ns_add_u32 s63, s63, 1\ns_mul_i32 s63, s63, {BS}\ns_add_u32 s63, s63, s53\ns_lshl_b32 s61, s56, 3\ns_add_u32 s63, s63, s61")
        a("s_cmp_lg_u32 s54, 0\ns_cbranch_scc1 L_p4_nocs")
        if self.LL == 4 and not self.B3B: self.w1_loads()
        yl = self.rows24_loads(YO)
        self.sleep(self.YSL0)
        for x in yl: a(x)
        a("s_mov_b32 s70, 0\ns_waitcnt vmcnt(3)")
        for t in range(8): self.mfma(ACC, ONES, WB + 4 * t, t == 0)
        self.l64(ACC, CS0)
        self.local_stores([f"buffer_store_dword v{CS0}, v{aST}, {WS}, s52 offen offset:{HPC}{{f}}"])
        a("s_branch L_p4_chk")
        a("L_p4_nocs:")
        yl = self.rows24_loads(YO)
        self.sleep(self.YSL)
        self.poll(yl, range(GB, GB + 12), entry="L_p4_chk", spec=self.sum_spec())
        a("s_barrier")
        if self.AMP == 2: a("s_cmp_lg_u32 s54, 0\ns_cbranch_scc1 L_amp2\ns_memrealtime s[94:95]\nL_amp2:")
        self.stamp(8)
        self.resid_add()
        s1, s2 = T[0], T[1]
        self.gemv_bcast(ACC + 4, T[4], WB, 8, fill=self.unpackX_ops(T[4]) + self.xstats_ops(s1, s2, T[2]))
        self.l64(ACC + 4, T[3])
        self.local_stores([f"buffer_store_dword v{T[3]}, v{aST}, {WS}, s62 offen{{f}}", "s_mov_b64 exec, s[46:47]",
                           f"buffer_store_dword v{s1}, v{aS2}, {WS}, s63 offen offset:{MISC}{{f}}"])
        a("s_mov_b64 exec, -1")
        self.stamp(9)
        self.dump0()
        a("s_barrier")
        a("s_cmp_lg_u32 s54, 0\ns_cbranch_scc1 L_final\ns_mov_b32 s54, 1\ns_branch L_kloop")
        a("L_k_b3:")
        if self.LL2 == 2:
            a("s_cmp_lg_u32 s54, 0\ns_cbranch_scc1 L_k_b3a\ns_cmp_lg_u32 s3, 0\ns_cbranch_scc1 L_k_b3a")
            self.w2_loads()
            a("L_k_b3a:")
        if self.CPF:
            self.code_prefetch()
        a(f"s_lshl_b32 s58, s3, 8\nv_add_u32 v{T[3]}, s58, v{lane4}\nv_mov_b32 v{T[4]}, {L_ML}")
        self.sel_layer(58, OP, 52)
        a("s_lshl_b32 s60, s3, 7\ns_add_u32 s60, s60, s58")
        a(f"s_mul_i32 s61, s7, {BS - 8}\ns_sub_u32 s61, s52, s61\ns_lshl_b32 s58, s54, 6\ns_add_u32 s61, s61, s58")
        a("s_waitcnt lgkmcnt(0)\ns_barrier")
        self.stamp(6)
        a(f"ds_read_b128 {q4(GB)}, v{T[4]}\nds_read_b128 {q4(GB+4)}, v{T[4]} offset:16")
        for w in range(4):
            a(f"ds_read_b32 v{GB+8+w}, v{T[3]} offset:{L_O + 768*w}")
        a("s_waitcnt lgkmcnt(0)")
        M = GB + 12; Lr = GB + 13
        a(f"v_max3_f32 v{M}, v{GB}, v{GB+2}, v{GB+4}\nv_max_f32 v{M}, v{M}, v{GB+6}")
        for w in range(4): a(f"v_sub_f32 v{GB+2*w}, v{GB+2*w}, v{M}")
        for w in range(4): a(f"v_exp_f32 v{GB+2*w}, v{GB+2*w}")
        a(f"v_mul_f32 v{Lr}, v{GB}, v{GB+1}\nv_mul_f32 v{T[0]}, v{GB}, v{GB+8}")
        for w in range(1, 4):
            a(f"v_fmac_f32 v{Lr}, v{GB+2*w}, v{GB+2*w+1}\nv_fmac_f32 v{T[0]}, v{GB+2*w}, v{GB+8+w}")
        a(f"v_rcp_f32 v{T[1]}, v{Lr}\nv_mul_f32 v{T[0]}, v{T[0]}, v{T[1]}")
        a(f"v_mov_b32_dpp v{T[1]}, v{T[0]} row_ror:8 {DPPALL}\nv_cvt_pk_bf16_f32 v{T[0]}, v{T[0]}, v{T[1]}")
        a("s_mov_b64 exec, s[64:65]")
        lz = self.L("z")
        self.local_stores([f"buffer_store_dword v{T[0]}, v{aP32}, {WS}, s60 offen{{f}}"])
        a(f"s_cmp_lg_u32 s3, 1\ns_cbranch_scc1 {lz}\ns_mov_b64 exec, 1")
        self.local_stores([f"buffer_store_dwordx2 v[{M}:{Lr}], v{aP32}, {WS}, s61 offen offset:{MISC}{{f}}"])
        a(f"{lz}:\ns_mov_b64 exec, -1")
        self.stamp(7)
        a("s_cmp_ge_u32 s5, 30\ns_cbranch_scc1 L_k_next")
        if self.LL2 == 3:
            a("s_cmp_lg_u32 s54, 0\ns_cbranch_scc1 L_k_b4a\ns_cmp_lg_u32 s3, 0\ns_cbranch_scc1 L_k_b4a")
            self.w2_loads()
            a("L_k_b4a:")
        if self.B3B:
            a("s_cmp_lg_u32 s54, 0\ns_cbranch_scc1 L_k_nb3b\ns_barrier\ns_cmp_lg_u32 s3, 0\ns_cbranch_scc1 L_k_nb3b")
            self.w2_loads()
            a("L_k_nb3b:")
        a("s_barrier")
        a("s_cmp_eq_u32 s3, 0\ns_cbranch_scc1 L_p5")
        a("s_cmp_lg_u32 s3, 1\ns_cbranch_scc1 L_k_b5")
        self.sel_layer(58, HPR, 52)
        a(f"v_lshlrev_b32 v{T[0]}, 7, v0\ns_mov_b64 exec, 3")
        a(f"buffer_load_dword v{GB}, v{T[0]}, {WS}, s58 offen sc1\nbuffer_load_dword v{GB+1}, v{T[0]}, {WS}, s52 offen offset:{HPC} sc1")
        a(f"buffer_load_dword v{GB+2}, v{lane4}, {WS}, s52 offen offset:{MISC} sc1\ns_mov_b64 exec, -1")
        a("L_k_b5:")
        a("s_barrier\ns_barrier")
        a("s_branch L_k_next")
        a("L_p5:")
        self.zero(ACC)
        a(f"s_mul_i32 s62, s57, {10*BS}\ns_add_u32 s62, s62, s53")
        def hp_gather(with_stats, slp=0):
            for i in range(8, 14): a(f"v_mov_b32 v{GB+i}, 0")
            loads = [f"buffer_load_dwordx4 {q4(GB)}, v{aML}, {WS}, s58 offen sc1",
                     f"buffer_load_dwordx4 {q4(GB+4)}, v{aML}, {WS}, s60 offen sc1",
                     "s_mov_b32 exec_hi, 0",
                     f"buffer_load_dwordx4 {q4(GB+8)}, v{aML}, {WS}, s61 offen sc1"]
            if with_stats:
                loads += ["s_mov_b64 exec, s[44:45]", f"buffer_load_dwordx2 v[{GB+12}:{GB+13}], v{aXS}, {WS}, s63 offen offset:{MISC} sc1"]
            loads += ["s_mov_b64 exec, -1"]
            return loads, range(GB, GB + (14 if with_stats else 12))
        def hp_reduce_ops(dst):
            U = GB + 16
            o = [f"v_add_f32 v{U+i}, v{GB+i}, v{GB+4+i}" for i in range(4)] + [f"v_add_f32 v{U+i}, v{U+i}, v{GB+8+i}" for i in range(4)]
            o += [f"v_permlane32_swap_b32 v{U}, v{U+2}", f"v_permlane32_swap_b32 v{U+1}, v{U+3}",
                  f"v_add_f32 v{U}, v{U}, v{U+2}", f"v_add_f32 v{U+1}, v{U+1}, v{U+3}",
                  f"v_permlane16_swap_b32 v{U}, v{U+1}", f"v_add_f32 v{dst}, v{U}, v{U+1}"]
            return o
        a("s_cmp_lg_u32 s54, 0\ns_cbranch_scc1 L_p5_nocs")
        if self.LL2 == 4 and not self.B3B: self.w2_loads()
        if self.LL2 == 5:
            a(f"s_sleep {self.W2SL}")
            self.w2_loads()
        a(f"s_add_u32 s58, s62, {HPC}\ns_add_u32 s60, s58, {4*BS}\ns_add_u32 s61, s58, {8*BS}")
        a("s_barrier")
        ld_, rg_ = hp_gather(False)
        self.poll(ld_, rg_)
        for x in hp_reduce_ops(CSW1): a(x)
        a(f"v_lshlrev_b32 v{B1V}, 16, v{B1V}")
        a("s_branch L_p5_g")
        a("L_p5_nocs:")
        a("s_barrier")
        self.sleep(self.HSL)
        a("L_p5_g:")
        self.sel_layer(71, ZO, 52)
        self.sel_layer(58, HPR, 62)
        a(f"s_add_u32 s60, s58, {4*BS}\ns_add_u32 s61, s58, {8*BS}")
        a(f"s_mul_i32 s63, s54, 3\ns_add_u32 s63, s63, s57\ns_add_u32 s63, s63, 1\ns_mul_i32 s63, s63, {BS}\ns_add_u32 s63, s63, s53")
        ld_, rg_ = hp_gather(True)
        self.poll(ld_, rg_, pipe=self.PH)
        self.stamp(8)
        s1, s2 = GB + 14, GB + 15
        H = T[0]
        c1 = self.row16_ops(s1, s2, GB + 12, GB + 13) + self.ln_ops(s1, s2, T[5])
        c2 = hp_reduce_ops(H)
        while c1 or c2:
            if c1: a(c1.pop(0))
            if c1 and len(c1) > 14 and not self.EX: a(c1.pop(0))
            if c2: a(c2.pop(0))
        if self.EX:
            a(f"v_fma_f32 v{H}, -v{s1}, v{CSW1}, v{H}\nv_fma_f32 v{H}, v{H}, v{s2}, v{B1V}")
        else:
            a(f"v_fma_f32 v{H}, -v{s1}, v{CSW1}, v{H}\nv_mul_f32 v{H}, v{H}, v{s2}")
            self.bf16r(H, H)
            a(f"v_add_f32 v{H}, v{H}, v{B1V}")
            self.bf16r(H, H)
        E = T[1]; N = T[2]; Dn = T[3]
        a(f"v_mul_f32 v{E}, 0x3fb8aa3b, v{H}\nv_exp_f32 v{E}, -|v{E}|")
        a(f"v_cmp_gt_f32 vcc, 0, v{H}\nv_mov_b32 v{T[4]}, 2.0")
        a(f"v_fma_f32 v{N}, v{E}, 2.0, 1.0\nv_add_f32 v{Dn}, 2.0, v{E}\nv_mul_f32 v{Dn}, v{Dn}, v{E}")
        a(f"v_mul_f32 v{E}, v{E}, v{E}\nv_add_f32 v{E}, v{E}, v{E}")
        a(f"v_cndmask_b32 v{N}, v{N}, v{Dn}, vcc\nv_cndmask_b32 v{E}, v{E}, v{T[4]}, vcc")
        a(f"v_add_f32 v{Dn}, v{N}, v{E}\nv_rcp_f32 v{Dn}, v{Dn}\nv_mul_f32 v{N}, v{N}, v{H}\nv_mul_f32 v{N}, v{N}, v{Dn}")
        a(f"v_mov_b32_dpp v{E}, v{N} row_ror:8 {DPPALL}\nv_cvt_pk_bf16_f32 v{T[4]}, v{N}, v{E}")
        self.gemv_bcast(ACC, T[4], WB, 8)
        self.pair32(ACC, T[0], T[1])
        a(f"s_mov_b64 exec, s[64:65]\nv_cvt_pk_bf16_f32 v{T[0]}, v{T[0]}, v{T[1]}")
        a(f"buffer_store_dword v{T[0]}, v{aP32}, {WS}, s71 offen sc1")
        a("s_mov_b64 exec, -1")
        self.stamp(9)
        a("s_barrier")
        a("L_k_next:")
        a("s_cmp_lg_u32 s54, 0\ns_cbranch_scc1 L_final")
        self.dump_stamps()
        a("s_mov_b32 s54, 1")
        a("s_cmp_lg_u32 s3, 2\ns_cbranch_scc1 L_kloop")
        a("s_cmp_lg_u32 s2, 0\ns_cbranch_scc1 L_nogen")
        a(f"s_mov_b64 exec, 1\nv_mov_b32 v{T[0]}, s74\nv_mov_b32 v{T[1]}, {GEN_OFF}")
        a(f"buffer_store_dword v{T[0]}, v{T[1]}, {WS}, 0 offen sc1")
        a("s_mov_b64 exec, -1\nL_nogen:")
        for u in range(3):
            a(f"buffer_load_dword v{GB+4+u}, v{aQG}, {WS}, 0 offen offset:{QP1 + 128*u} sc1")
        a("s_branch L_kloop")
        a("L_final:")
        a("s_cmp_lg_u32 s3, 3\ns_cbranch_scc1 L_fin2\ns_cmp_lg_u32 s4, 0\ns_cbranch_scc1 L_fin2\ns_cmp_ge_u32 s5, 10\ns_cbranch_scc1 L_fin2")
        if self.PERT:
            import struct
            c = hex(struct.unpack('<I', struct.pack('<f', self.PERT / 1000.0))[0])
            if self.PALL: a(f"v_add_f32 v{X0}, {c}, v{X0}\nv_add_f32 v{X1}, {c}, v{X1}")
            else: a(f"s_cmp_lg_u32 s2, 0\ns_cbranch_scc1 L_npert\ns_mov_b64 exec, 1\nv_add_f32 v{X0}, {c}, v{X0}\ns_mov_b64 exec, -1\nL_npert:")
        a("s_lshl_b32 s63, s5, 7")
        self.zgather(1, self.FSL)
        a("s_mov_b64 exec, s[64:65]")
        a(f"buffer_store_dword v{T[4]}, v{aP32}, s[40:43], s63 offen{' sc1' if self.OSC else ''}")
        a("s_mov_b64 exec, -1")
        self.stamp(11)
        if self.AMP:
            a("s_cmp_lg_u32 s2, 0\ns_cbranch_scc1 L_fin2\ns_memrealtime s[96:97]\ns_waitcnt lgkmcnt(0)")
            if self.AMP == 1: a("s_mov_b32 s94, s96")
            a("s_sub_u32 s94, s94, s92\ns_min_u32 s94, s94, 20000")
            a("L_ampl:\ns_memrealtime s[98:99]\ns_waitcnt lgkmcnt(0)\ns_sub_u32 s98, s98, s96\ns_cmp_lt_u32 s98, s94\ns_cbranch_scc1 L_ampl")
        a("L_fin2:")
        self.dump_stamps()
        a("s_endpgm")

        a("L_vloop:")
        a(f"buffer_load_dword v{XA+2}, v{aQG}, {WS}, 0 offen offset:{OP[1]} sc1")
        a("s_cmp_eq_u32 s3, 7\ns_cbranch_scc1 L_v7_b1")
        a(f"v_mov_b32 v{GB}, 0\nv_mov_b32 v{GB+2}, 0\nv_mov_b32 v{GB+3}, 0\ns_add_u32 s58, s53, {7*BS}")
        self.zero(ACC)
        self.sleep(self.XSL)
        self.poll(["s_mov_b64 exec, s[44:45]", f"buffer_load_dword v{GB}, v{aX2}, {WS}, 0 offen offset:{X2O} sc1",
                   f"buffer_load_dwordx2 v[{GB+2}:{GB+3}], v{aXS}, {WS}, s58 offen offset:{MISC} sc1", "s_mov_b64 exec, -1"], [GB, GB + 2, GB + 3], slp=self.XSLP, pipe=self.PX)
        a("s_barrier")
        self.stamp(1)
        a("L_qproj:")
        self.qproj(GB, T[0], T[1], self.row16_ops(T[0], T[1], GB + 2, GB + 3))
        a("s_cmp_eq_u32 s54, 0\ns_cbranch_scc1 L_qp_ret0")
        if self.Q4:
            self.gather4(T[4], AB[0])
            a("s_mov_b64 exec, 0xff")
            self.local_stores([f"buffer_store_dwordx4 {q4(AB[0])}, v{aST}, {WS}, 0 offen offset:{QP1}{{f}}"])
        else:
            a("s_mov_b64 exec, s[64:65]")
            self.local_stores([f"buffer_store_dword v{T[4]}, v{aST}, {WS}, 0 offen offset:{QP1}{{f}}"])
        a("s_mov_b64 exec, -1")
        self.stamp(3)
        a("s_branch L_v_b2")
        a("L_v7_b1:")
        a("s_barrier")
        a("L_v_b2:")
        a(f"s_and_b32 s58, s3, 3\ns_mul_i32 s58, s58, 768\nv_add_u32 v{T[3]}, s58, v{lane4}")
        self.zero(ACC, 12)
        a("s_cmp_eq_u32 s54, 0\ns_cbranch_scc1 L_v_b2a\ns_waitcnt vmcnt(0)\nL_v_b2a:")
        a("s_barrier")
        self.stamp(5)
        a(f"ds_read_b128 {q4(GB)}, v{ldsP}\nds_read_b128 {q4(GB+4)}, v{ldsP} offset:16")
        a("s_cmp_eq_u32 s54, 0\ns_cbranch_scc1 L_v_wo")
        a("L_v_nowo:")
        a("s_waitcnt lgkmcnt(0)")
        self.al()
        def pand(n, d): return f"v_and_b32 v{AB[n & 1]+d}, v{GB + 2*n + (d >> 1)}, v{MK0 + (d & 1)}"
        for d in range(4): a(pand(0, d))
        for n in range(4):
            a(f"s_waitcnt vmcnt({8 + 18 - 6*n})")
            for th in range(3):
                a(self.smf_s(ACC + 4 * th, AB[n & 1], KV + 24 * n + 8 * th, IDX))
                if n + 1 < 4 and th < 2:
                    for d in (2 * th, 2 * th + 1): a(pand(n + 1, d))
        for th in range(3):
            self.l64(ACC + 4 * th, T[th])
            a(f"ds_write_b32 v{T[3]}, v{T[th]} offset:{L_O + 256*th}")
        self.sel_layer(58, OP)
        a("s_lshl_b32 s60, s54, 6")
        a("s_waitcnt lgkmcnt(0)\ns_barrier")
        self.stamp(6)
        if sum(self.WS) < 8: self.wo_part(sum(self.WS), 8)
        a("s_cmp_ge_u32 s5, 30\ns_cbranch_scc1 L_v_next")
        if self.OS0 >= 0:
            a("s_cmp_lg_u32 s54, 0\ns_cbranch_scc1 L_p3_l1")
            self.poll([f"buffer_load_dwordx2 v[{GB+4}:{GB+5}], v{aML}, {WS}, s60 offen offset:{MISC} sc1"], [GB + 4, GB + 5], slp=self.OS0)
            a("s_branch L_p3_go\nL_p3_l1:")
        self.zero(ACC + 4)
        self.sleep(self.OSL)
        if self.OS0 >= 0: a("L_p3_go:")
        self.poll([f"buffer_load_dwordx4 {q4(GB)}, v{aQG}, {WS}, s58 offen sc1",
                   f"buffer_load_dwordx2 v[{GB+4}:{GB+5}], v{aML}, {WS}, s60 offen offset:{MISC} sc1"], range(GB, GB + 6),
                  spec=[f"v_max_f32_dpp v{T[0]}, v{GB+4}, v{GB+4} {Q1} {DPPALL}", f"v_max_f32_dpp v{T[0]}, v{T[0]}, v{T[0]} {Q2} {DPPALL}", f"v_max_f32_dpp v{T[0]}, v{T[0]}, v{T[0]} {HM} {DPPALL}"], pipe=self.PO)
        if self.B3B: a("s_cmp_lg_u32 s54, 0\ns_cbranch_scc1 L_v_nb3b\ns_barrier\nL_v_nb3b:")
        self.stamp(8)
        M = T[0]; W = T[1]
        a(f"v_sub_f32 v{W}, v{GB+4}, v{M}\nv_exp_f32 v{W}, v{W}\nv_mul_f32 v{W}, v{W}, v{GB+5}")
        a(f"v_mov_b32_dpp v{T[2]}, v{W} row_newbcast:0 {DPPALL}\nv_mov_b32_dpp v{T[3]}, v{W} row_newbcast:1 {DPPALL}")
        a(f"v_cvt_pk_bf16_f32 v{T[2]}, v{T[2]}, v{T[3]}")
        self.build_A(AB[0], T[2])
        self.bf16r(W, W)
        self.mfma(ACC, AB[0], GB, True)
        for c in (Q1, Q2, HM):
            a(f"v_add_f32_dpp v{W}, v{W}, v{W} {c} {DPPALL}")
        a(f"v_rcp_f32 v{W}, v{W}")
        self.pair32(ACC, T[2], T[3])
        a(f"v_mul_f32 v{T[2]}, v{T[2]}, v{W}\nv_mul_f32 v{T[3]}, v{T[3]}, v{W}\nv_cvt_pk_bf16_f32 v{T[4]}, v{T[2]}, v{T[3]}")
        self.gemv_bcast(ACC + 4, T[4], WB, 8)
        self.sel_layer(58, YO, 52)
        self.l64(ACC + 4, T[0])
        a(f"ds_write_b32 v{aS2}, v{T[0]} offset:{L_YR}")
        a("s_waitcnt vmcnt(0) lgkmcnt(0)\ns_barrier")
        a("s_cmp_lg_u32 s3, 7\ns_cbranch_scc1 L_v_b5")
        for w in range(4): a(f"ds_read_b32 v{GB+w}, v{lane4} offset:{L_YR + 256*w}")
        a("s_waitcnt lgkmcnt(0)")
        a(f"v_add_f32 v{GB}, v{GB}, v{GB+1}\nv_add_f32 v{GB+2}, v{GB+2}, v{GB+3}\nv_add_f32 v{T[0]}, v{GB}, v{GB+2}")
        a(f"v_mov_b32_dpp v{T[1]}, v{T[0]} row_ror:8 {DPPALL}\nv_cvt_pk_bf16_f32 v{T[0]}, v{T[0]}, v{T[1]}")
        if self.G4:
            self.gather4(T[0], AB[0])
            a("s_mov_b64 exec, 0xff")
            a(f"buffer_store_dwordx4 {q4(AB[0])}, v{aP32}, {WS}, s58 offen sc1")
        else:
            a("s_mov_b64 exec, s[64:65]")
            a(f"buffer_store_dword v{T[0]}, v{aP32}, {WS}, s58 offen sc1")
        a("s_mov_b64 exec, -1")
        self.stamp(9)
        a("L_v_b5:")
        a("s_cmp_lg_u32 s54, 0\ns_cbranch_scc1 L_v_b5b")
        self.v_fetch_wq()
        self.dump_stamps()
        a("L_v_b5b:")
        a("s_barrier\ns_barrier")
        a("s_cmp_lg_u32 s54, 0\ns_cbranch_scc1 L_fin2")
        a("s_mov_b32 s54, 1\ns_branch L_vloop")
        a("L_v_wo:")
        self.wo_loads()
        a("s_branch L_v_nowo")
        a("L_v_next:")
        a("s_cmp_lg_u32 s54, 0\ns_cbranch_scc1 L_fin2")
        self.v_fetch_wq()
        self.dump_stamps()
        a("s_mov_b32 s54, 1")
        if self.X30 >= 0:
            a(f"v_mov_b32 v{GB+2}, 0\nv_mov_b32 v{GB+3}, 0\ns_add_u32 s58, s53, {BS}")
            self.poll(["s_mov_b64 exec, s[44:45]", f"buffer_load_dwordx2 v[{GB+2}:{GB+3}], v{aXS}, {WS}, s58 offen offset:{MISC} sc1", "s_mov_b64 exec, -1"], [GB + 2, GB + 3], slp=4)
            self.sleep(self.X30)
        else:
            a("s_sleep 48")
        a("s_branch L_vloop")
        self.flush_ool()
        a("L_end:\ns_endpgm")
        a('.section .rodata,"a"\n.p2align 6')
        a(f".amdhsa_kernel {KNAME}")
        a(".amdhsa_next_free_vgpr 256\n.amdhsa_next_free_sgpr 102\n.amdhsa_accum_offset 256\n.amdhsa_group_segment_fixed_size 0\n.amdhsa_kernarg_size 96")
        a(".amdhsa_user_sgpr_count 2\n.amdhsa_user_sgpr_kernarg_segment_ptr 1\n.amdhsa_system_sgpr_workgroup_id_x 1\n.end_amdhsa_kernel")
        return a.render()

    def code_prefetch(self):
        a = self.a
        le = self.L("cpf")
        a(f"s_cmp_lg_u32 s3, 1\ns_cbranch_scc1 {le}\ns_cmp_lg_u32 s54, 0\ns_cbranch_scc1 {le}")
        a("s_getpc_b64 s[72:73]")
        a("L_pcref:")
        a(f"s_sub_u32 s72, s72, L_pcref-{KNAME}\ns_subb_u32 s73, s73, 0")
        a(f"v_lshlrev_b32 v{T[0]}, 5, v0\nv_add_u32 v{T[0]}, s5, v{T[0]}\nv_lshlrev_b32 v{T[0]}, 7, v{T[0]}")
        a(f"v_mov_b32 v{T[1]}, L_end-{KNAME}\nv_cmp_lt_u32 vcc, v{T[0]}, v{T[1]}\ns_and_b64 exec, vcc, exec")
        a(f"global_load_dword v{XA+5}, v{T[0]}, s[72:73] sc1")
        a("s_mov_b64 exec, -1")
        a(f"{le}:")

    def srd(self, *regs):
        for s in regs:
            self.a(f"s_mov_b32 s{s+2}, {self.size[s]}\ns_mov_b32 s{s+3}, 0x20000")
    def blk_setup(self):
        a = self.a
        a(f"s_mul_i32 s53, s4, {32*BS}\ns_mul_i32 s52, s5, {BS}\ns_add_u32 s52, s52, s53")
        a("s_cmp_ge_u32 s5, 10\ns_cselect_b32 s57, 1, 0\ns_cmp_ge_u32 s5, 20\ns_cselect_b32 s57, 2, s57\ns_cmp_ge_u32 s5, 30\ns_cselect_b32 s57, 3, s57")
        a("s_mul_i32 s56, s57, 10\ns_sub_u32 s56, s5, s56")
        a(f"v_lshlrev_b32 v{aP32}, 4, v1\nv_lshl_add_u32 v{aP32}, v3, 2, v{aP32}")
    def rest_setup(self, done, blk=True):
        a = self.a
        self.srd(*[r for r in (8, 12, 16, 20, 24, 28, 32, 36, 40, 48) if r not in done])
        if blk: self.blk_setup()
        a("s_mov_b32 s54, 0\ns_mov_b32 s55, 0")
        a("s_getreg_b32 s75, hwreg(HW_REG_XCC_ID)\ns_and_b32 s75, s75, 15")
        a("s_mov_b32 s64, 0x00ff00ff\ns_mov_b32 s65, 0x00ff00ff")
        a("s_mov_b32 s66, 0xaaaaaaaa\ns_mov_b32 s67, 0xaaaaaaaa\ns_mov_b32 s68, 0xcccccccc\ns_mov_b32 s69, 0xcccccccc")
        a("s_mov_b32 s44, 0x03ff03ff\ns_mov_b32 s45, 0x03ff03ff\ns_mov_b32 s46, 1\ns_mov_b32 s47, 1")
    def c_head(self):
        a = self.a
        a("L_pro_c:")
        self.srd(8, 48)
        self.blk_setup()
        a(f"v_mov_b32 v{T[0]}, 0")
        a("s_mov_b64 exec, 0xffff")
        a(f"ds_write_b32 v{lane4}, v{T[0]} offset:{L_CTRL}")
        a("s_mov_b64 exec, -1\ns_waitcnt lgkmcnt(0)")
        if self.B0E: a("s_barrier")
        if "noclr" not in self.knobs: self.clears(False)
        a(f"s_lshl_b32 s58, s56, 7\nbuffer_load_dword v{GB+4}, v{aP32}, s[8:11], s58 offen")
        if not self.B0E: a("s_barrier")

    def v_prologue(self):
        a = self.a
        self.srd(12, 16)
        a("s_lshl_b32 s58, s4, 2\ns_add_u32 s58, s58, s6\ns_mul_i32 s59, s58, 3145728")
        a("s_lshl_b32 s58, s7, 8\ns_and_b32 s60, s3, 3\ns_lshl_b32 s60, s60, 6\ns_add_u32 s58, s58, s60\ns_add_u32 s58, s58, 6144\ns_mul_i32 s58, s58, 384\ns_add_u32 s59, s59, s58")
        if "dbl" in self.knobs:
            a(f"v_mul_u32_u24 v{T[0]}, 384, v2\nv_lshl_add_u32 v{T[0]}, v1, 4, v{T[0]}\ns_sub_u32 s61, s59, {6144*384}")
            for srd in ("s[12:15]", "s[16:19]"):
                for n in range(24):
                    rg, th = divmod(n, 3)
                    if th == 0: a(f"s_add_u32 s58, s61, {rg*8*384}")
                    a(f"buffer_load_dwordx4 {q4(KV+4*n)}, v{T[0]}, {srd}, s58 offen offset:{th*128} nt")
            a("s_waitcnt vmcnt(12)")
        self.k_dma()
        for n in range(24):
            rg, th = divmod(n, 3)
            if n == self.NB:
                a(f"s_lshl_b32 s60, s3, 2\nv_mov_b32 v{T[2]}, s60\nv_mov_b32 v{T[3]}, 1")
                a(f"s_waitcnt vmcnt({self.NB})\nds_write_b32 v{T[2]}, v{T[3]} offset:{L_CTRL}")
                self.stamp(11)
            if th == 0: a(f"s_add_u32 s58, s59, {rg*8*384}")
            a(f"buffer_load_dwordx4 {q4(KV + 24*(rg>>1) + 8*th + 4*(rg&1))}, v{T[4]}, s[16:19], s58 offen offset:{th*128} nt")
        self.stamp(1)
        self.rest_setup((12, 16))
        if self.knobs & {"lo1", "lo2", "lo3"}:
            if "wo" in self.knobs:
                self.wo_loads()
                a("s_waitcnt vmcnt(8)")
                self.stamp(5)
            a("s_waitcnt vmcnt(0)")
            self.stamp(6)
            a("s_branch L_fin2")
        if self.WOE: self.wo_loads(self.WOE)
        if self.PRI == 1: a("s_setprio 1")
        self.consts()
        self.vwave_addrs()
        a("s_branch L_v_b2")

    def v_fetch_wq(self):
        a = self.a
        a(f"s_and_b32 s58, s3, 3\ns_min_u32 s58, s58, 2\ns_mul_i32 s58, s58, 10752\ns_add_u32 s58, s58, {L_WQ}\nv_lshlrev_b32 v{T[0]}, 4, v0\nv_add_u32 v{T[0]}, s58, v{T[0]}")
        for t in range(10):
            a(f"ds_read_b128 {q4(WA+4*t)}, v{T[0]} offset:{1024*t}")
        a(f"v_add_u32 v{T[1]}, s58, v{lane4}\nds_read_b32 v{CS0}, v{T[1]} offset:10240\nds_read_b32 v{CS1}, v{T[1]} offset:10496")
        self.read_fast()
        a(f"s_add_u32 s58, s53, {7*BS}\nbuffer_load_dword v{XA+3}, v{aX2}, {WS}, 0 offen offset:{X2O} sc1\nbuffer_load_dword v{XA+4}, v{aXS}, {WS}, s58 offen offset:{MISC} sc1")

    def zgather(self, layer, slp):
        a = self.a
        a(f"s_mul_i32 s58, s56, {BS}\ns_add_u32 s60, s58, {10*BS}\ns_add_u32 s61, s58, {20*BS}")
        self.sleep(slp)
        self.poll([f"buffer_load_dwordx4 {q4(GB+4*n)}, v{aROW}, {WS}, s{(58,60,61)[n]} offen offset:{ZO[layer]} sc1" for n in range(3)], range(GB, GB + 12),
                  spec=self.sum_spec(), pipe=self.PZ)
        self.stamp(10 if layer else 1)
        self.resid_add()

REF = "interleave_layers__sliding_block_cached__dense_activation_mish__decode.s.ref"
HEADER = open(REF).read().split("; Override")[0] if os.path.exists(REF) else ""

if __name__ == "__main__":
    prof = {"prof": 1, "lite": 3}.get(sys.argv[2], 0) if len(sys.argv) > 2 else 0
    open(sys.argv[1], "w").write(HEADER + Gen(prof, sys.argv[3:]).gen())
```

```python
import sys, os
sys.path.insert(0, "gen")
from asmlib import Asm

KNAME = "interleave_layers__sliding_block_cached__dense_activation_mish__decode_kernel"
BS = 4736
YO = [0, 128]; ZO = [256, 384]
QP1 = 512
OP = [896, 1280]
MISC = 1664
HPR = [1792, 2048]; HPC = 2304
X2O = 2560
CLR_END = 2816
QP0T = 3072
GEN_OFF = 256 * BS
FL1 = GEN_OFF + 4096; FL2 = GEN_OFF + 8192
WS_USED = GEN_OFF + 12288
PROF_OFF = 2 << 20
L_CTRL = 0
L_ML = 128
L_P = 256
L_O = 1024
L_YR = 4096
L_Q = 5120
L_K = 8192
L_WQ = L_K + 98304
LDS_BYTES = L_WQ + 3 * 10752
POLL_LIMIT = 200000
ONES = 4; SEL = 8; AB = [12, 16]; ACC = 20; GB = 36; XA = 60
aQG = 70; aP32 = 71; aROW = 72; aML = 73; aST = 74; ldsP = 75; lane4 = 76
CS0 = 77; CS1 = 78; X0 = 64; X1 = 66; QFA = 79; aS2 = 80; B1V = 81; CSW1 = 82
T = [83, 84, 85, 86, 87, 1, 2, 3]
aX2 = 68; aXS = 69
MK0 = 56; MK1 = 57; IDX = 58; IDQ = 59
KV = 88; WA = 184; WB = 224
WS = "s[48:51]"

DOC = """
Persistent fused kernel (generated by the author's own script): 256 workgroups x 8 waves, one per CU.
K, V and all weight slices are read from HBM once and stay in registers / LDS for both layer passes.
 wg = 8*m + xg : xg = group (expected XCD), head = 4*xg + m/8, key chunk = m%8 (256 keys).
 waves 0-3 ("K"): QK + softmax, partial combine, w1 / w2 GEMVs ; waves 4-7 ("V"): streaming, PV, wo and wq GEMVs.
GEMVs over [k][n] data use v_smfmac_f32_16x16x64_bf16 with a selector A operand (one non-zero per row and 8-chunk);
QK splits the dense q over row pairs so that it fits the 2:4 A operand; every product of the reference is computed.
LayerNorm is applied after the GEMV by linearity (rstd * (x.W - mean * colsum(W))).
Hand-offs go through d_ws: slots are cleared to 0xFFFFFFFF at kernel start and polled dword by dword;
a launch-unique tag (derived from one word of d_ws) validates the start-up flags and the first q exchange.
Group-local hand-offs use plain stores only if every member reported the same XCC id, else write-through stores.
Every poll loop is bounded.
"""

def q4(r): return f"v[{r}:{r+3}]"
DPPALL = "row_mask:0xf bank_mask:0xf"
Q1 = "quad_perm:[1,0,3,2]"; Q2 = "quad_perm:[2,3,0,1]"; HM = "row_half_mirror"; RM = "row_mirror"

class Gen:
    def __init__(self, prof=0, knobs=()):
        self.knobs = set(knobs)
        self.LL = 4; self.LL2 = 4; self.W2SL = 16; self.FS3 = 0; self.FKEEP = 4; self.OS0 = -1; self.X30 = -1; self.LAY = 1; self.EX = 1; self.PERT = 0; self.PALL = 0; self.PRI = 0; self.WOE = 0; self.WSP = 800; self.AMP = 0; self.B0IT = 0; self.B3B = 1; self.Q4 = 0; self.G4 = 0; self.PQ = 0; self.PO = 1; self.PX = 0; self.PH = 1; self.PZ = 0; self.PGAP = 12; self.TR = 1; self.XSLP = 0; self.Q1ST = 1; self.QPW = 0; self.FLSL = 127; self.QFB = 5; self.CPF0 = 1; self.B0E = 1; self.B0N = 0; self.OSC = 0; self.AL = 1; self.ALP = 3; self.SHIFT = 0; self.CPF = 0; self.NB = 8; self.QSLEEP0 = 56; self.QSLEEP1 = 24
        self.QSL = 10; self.OSL = 8; self.YSL0 = 16; self.YSL = 14; self.HSL = 7; self.ZSL = 11; self.XSL = 26; self.FSL = 8
        for k in knobs:
            if '=' in k: setattr(self, k.split('=')[0], int(k.split('=')[1]))
        self.WS = [self.WSP // 100, self.WSP // 10 % 10, self.WSP % 10]
        self.FSLOT = (0, 2, 3) if self.FS3 else (1, 3)
        self.a = Asm(); self.prof = prof; self.uid = 0; self.ool = []
    def L(self, base):
        self.uid += 1
        return f"L_{base}_{self.uid}"
    def stamp(self, i):
        if self.prof == 3 and i not in (0, 6, 11): return
        if self.prof: self.a(f"s_memrealtime s[{76+2*i}:{77+2*i}]")
    def al(self, n=3):
        if self.AL: self.a(f".p2align {n}")
    def sleep(self, n):
        if n: self.a(f"s_sleep {n}")
    def dump_stamps(self):
        if not self.prof: return
        a = self.a
        a("s_waitcnt lgkmcnt(0)")
        a(f"v_mov_b32 v{T[0]}, 0")
        for i in range(13):
            a(f"v_writelane_b32 v{T[0]}, s{76+2*i}, {i}")
        a("s_lshl_b32 s58, s2, 3\ns_add_u32 s58, s58, s3\ns_lshl_b32 s58, s58, 1\ns_add_u32 s58, s58, s54\ns_lshl_b32 s58, s58, 6")
        a(f"s_add_u32 s58, s58, {PROF_OFF}")
        a("s_mov_b64 exec, 0xffff")
        a(f"buffer_store_dword v{T[0]}, v{lane4}, {WS}, s58 offen")
        a("s_mov_b64 exec, -1")
        for i in range(13):
            a(f"s_mov_b64 s[{76+2*i}:{77+2*i}], 0")
    def dump0(self):
        if not self.prof: return
        l = self.L("nd")
        self.a(f"s_cmp_lg_u32 s54, 0\ns_cbranch_scc1 {l}")
        self.dump_stamps()
        self.a(f"{l}:")
    def local_stores(self, lines):
        a = self.a
        ls, ld = self.L("sl"), self.L("sd")
        a(f"s_cmp_eq_u32 s55, 0\ns_cbranch_scc1 {ls}")
        for x in lines: a(x.replace("{f}", ""))
        a(f"{ld}:")
        self.ool.append([f"{ls}:", "s_nop 7"] + [x.replace("{f}", " sc1") for x in lines] + ["s_nop 1", f"s_branch {ld}"])
    def poll(self, loads, regs, entry=None, slp=0, spec=(), pipe=0):
        a = self.a
        lp, lr, ld = self.L("poll"), self.L("retry"), self.L("got")
        a("s_mov_b32 s70, 0")
        nld = sum(1 for x in loads if x.startswith("buffer_"))
        post = []
        if pipe:
            for _ in range(pipe):
                for x in loads: a(x)
                a(f"s_nop {self.PGAP} ; stagger the two polls in flight by about half a round trip\ns_nop {self.PGAP}")
            post = list(spec); spec = ()
        a(f"{lp}:")
        for x in loads: a(x)
        if self.TR and not slp:
            a(f"s_add_u32 s70, s70, 1\ns_cmp_lt_u32 s70, {POLL_LIMIT}\ns_cbranch_scc0 {lr}")
        if entry: a(f"{entry}:")
        self.al(self.ALP)
        a(f"s_nop 0\ns_waitcnt vmcnt({nld * pipe})")
        t = T[7]
        rs = list(regs)
        chk = []
        if len(rs) == 1:
            chk.append(f"v_cmp_eq_u32 vcc, -1, v{rs[0]}")
        else:
            if len(rs) == 2:
                chk.append(f"v_max_u32 v{t}, v{rs[0]}, v{rs[1]}"); rs = []
            else:
                chk.append(f"v_max3_u32 v{t}, v{rs[0]}, v{rs[1]}, v{rs[2]}"); rs = rs[3:]
            while rs:
                if len(rs) >= 2:
                    chk.append(f"v_max3_u32 v{t}, v{t}, v{rs[0]}, v{rs[1]}"); rs = rs[2:]
                else:
                    chk.append(f"v_max_u32 v{t}, v{t}, v{rs[0]}"); rs = rs[1:]
            chk.append(f"v_cmp_eq_u32 vcc, -1, v{t}")
        spec = list(spec)
        while spec or chk:
            if spec: a(spec.pop(0))
            for _ in range(2):
                if chk: a(chk.pop(0))
        if self.TR and not slp:
            a(f"s_cbranch_vccnz {lp}")
            a(f"{ld}:")
            for x in post: a(x)
            self.ool.append([f"{lr}:", "s_waitcnt vmcnt(0)", f"s_branch {ld}"])
            return
        a(f"s_cbranch_vccnz {lr}")
        a(f"{ld}:")
        self.ool.append([f"{lr}:", f"s_sleep {slp}" if slp else "s_nop 7", f"s_add_u32 s70, s70, 1", f"s_cmp_lt_u32 s70, {POLL_LIMIT}", f"s_cbranch_scc1 {lp}", f"s_branch {ld}"])
    def mfma_s(self, D, A, B, first):
        return f"v_mfma_f32_16x16x32_bf16 {q4(D)}, {q4(A)}, {q4(B)}, {'0' if first else q4(D)}"
    def flush_ool(self):
        for blk in self.ool:
            for x in blk: self.a(x)
        self.ool = []
    def build_A(self, dst, src):
        for d in range(4):
            self.a(f"v_perm_b32 v{dst+d}, v{src}, v{src}, v{SEL+d}")
    def mfma(self, D, A, B, first):
        self.a(f"v_mfma_f32_16x16x32_bf16 {q4(D)}, {q4(A)}, {q4(B)}, {'0' if first else q4(D)}")
    def pair32(self, D, t0, t1):
        self.a(f"v_add_f32_dpp v{t0}, v{D+1}, v{D} row_ror:8 {DPPALL}")
        self.a(f"v_add_f32_dpp v{t1}, v{D+3}, v{D+2} row_ror:8 {DPPALL}")
    def l64(self, D, t):
        self.a(f"v_add_f32_dpp v{t}, v{D+1}, v{D} row_ror:8 row_mask:0xf bank_mask:0x3")
        self.a(f"v_add_f32_dpp v{t}, v{D+2}, v{D+3} row_ror:8 row_mask:0xf bank_mask:0xc")
    def smf_s(self, D, A, B, idx):
        return f"v_smfmac_f32_16x16x64_bf16 {q4(D)}, {q4(A)}, v[{B}:{B+7}], v{idx}"
    def zero(self, D, n=4):
        for i in range(n): self.a(f"v_mov_b32 v{D+i}, 0")
    def gemv_bcast(self, D, pair, W, n, fill=()):
        a = self.a
        fill = list(fill)
        self.al()
        m = n // 2
        for k in range(m):
            A = AB[k & 1]
            for d in range(4):
                a(f"v_and_b32_dpp v{A+d}, v{pair}, v{MK0 + (d & 1)} row_newbcast:{2*k + (d >> 1)} {DPPALL}")
                if d == 1 and k > 0: a(self.smf_s(D, AB[(k-1) & 1], W + 8 * (k-1), IDX))
                if fill and d in self.FSLOT and len(fill) > self.FKEEP: a(fill.pop(0))
        for _ in range(2):
            if fill: a(fill.pop(0))
        a(self.smf_s(D, AB[(m-1) & 1], W + 8 * (m-1), IDX))
        for x in fill: a(x)
    def rho(self, dst, tmp, hi):
        a = self.a
        a(f"v_bfe_u32 v{dst}, v0, 3, 1\nv_lshrrev_b32 v{tmp}, 5, v0\nv_lshl_add_u32 v{dst}, v{tmp}, 1, v{dst}")
        a(f"v_bfe_u32 v{tmp}, v0, 4, 1\nv_lshl_add_u32 v{dst}, v{tmp}, {hi.bit_length()-1}, v{dst}")
    def bf16r_ops(self, dst, src):
        return [f"v_cvt_pk_bf16_f32 v{dst}, v{src}, v{src}", f"v_lshlrev_b32 v{dst}, 16, v{dst}"]
    def bf16r(self, dst, src):
        for x in self.bf16r_ops(dst, src): self.a(x)
    def ln_ops(self, s1, s2, t):
        inv = "0x3acccccd"
        if self.EX:
            return [f"v_mul_f32 v{s1}, {inv}, v{s1}", f"v_mul_f32 v{s2}, {inv}, v{s2}", f"v_fma_f32 v{s2}, -v{s1}, v{s1}, v{s2}",
                    f"v_max_f32 v{s2}, 0, v{s2}", f"v_add_f32 v{s2}, 0x3727c5ac, v{s2}", f"v_rsq_f32 v{s2}, v{s2}"]
        return [f"v_mul_f32 v{s1}, {inv}, v{s1}", f"v_mul_f32 v{s2}, {inv}, v{s2}", f"v_fma_f32 v{s2}, -v{s1}, v{s1}, v{s2}",
                f"v_max_f32 v{s2}, 0, v{s2}", f"v_cvt_pk_bf16_f32 v{t}, v{s1}, v{s2}", f"v_lshlrev_b32 v{s1}, 16, v{t}",
                f"v_and_b32 v{s2}, 0xffff0000, v{t}", f"v_add_f32 v{s2}, 0x3727c5ac, v{s2}"] + self.bf16r_ops(s2, s2) + \
               [f"v_sqrt_f32 v{s2}, v{s2}"] + self.bf16r_ops(s2, s2) + [f"v_rcp_f32 v{s2}, v{s2}"]
    def red2_ops(self, s1, s2, steps, tmp):
        return [f"v_permlane32_swap_b32 v{s1}, v{s2}", f"v_add_f32 v{s1}, v{s1}, v{s2}", f"v_mov_b32 v{tmp}, v{s1}",
                f"v_permlane16_swap_b32 v{s1}, v{tmp}", f"v_add_f32 v{s1}, v{s1}, v{tmp}"] + \
               [f"v_add_f32_dpp v{s1}, v{s1}, v{s1} {c} {DPPALL}" for c in steps]
    def row16_ops(self, s1, s2, i1=None, i2=None):
        out = []
        for c in (Q1, Q2, HM, RM):
            a1 = i1 if (c == Q1 and i1 is not None) else s1
            a2 = i2 if (c == Q1 and i2 is not None) else s2
            out += [f"v_add_f32_dpp v{s1}, v{a1}, v{a1} {c} {DPPALL}", f"v_add_f32_dpp v{s2}, v{a2}, v{a2} {c} {DPPALL}"]
        return out
    def allred64(self, op, v, tmp):
        a = self.a
        for c in (Q1, Q2, HM, RM):
            a(f"{op}_dpp v{v}, v{v}, v{v} {c} {DPPALL}")
        a(f"v_mov_b32 v{tmp}, v{v}\nv_permlane16_swap_b32 v{v}, v{tmp}\n{op} v{v}, v{v}, v{tmp}")
        a(f"v_mov_b32 v{tmp}, v{v}\nv_permlane32_swap_b32 v{v}, v{tmp}\n{op} v{v}, v{v}, v{tmp}")
    def sel_layer(self, dst, arr, add=None):
        a = self.a
        a(f"s_mul_i32 s{dst}, s54, {arr[1]-arr[0]}")
        if arr[0]: a(f"s_add_u32 s{dst}, s{dst}, {arr[0]}")
        if add is not None: a(f"s_add_u32 s{dst}, s{dst}, s{add}")
    def lds_wait_flag(self, off, val=None, fb=0):
        a = self.a
        lp, ld = self.L("lw"), self.L("lg")
        t = T[5]; t2 = T[6]
        a(f"v_mov_b32 v{t2}, {off}\ns_mov_b32 s70, 0")
        a(f"{lp}:\nds_read_b32 v{t}, v{t2}\ns_waitcnt lgkmcnt(0)\nv_readfirstlane_b32 s58, v{t}")
        a(f"s_cmp_lg_u32 s58, 0\ns_cbranch_scc1 {ld}" if val is None else f"s_cmp_eq_u32 s58, {val}\ns_cbranch_scc1 {ld}")
        a("s_sleep 1\ns_add_u32 s70, s70, 1")
        if fb: self.q_fallback(fb)
        a(f"s_cmp_lt_u32 s70, {4*POLL_LIMIT}\ns_cbranch_scc1 {lp}")
        a(f"{ld}:")
    def q_fallback(self, thresh):
        a = self.a
        QD = XA + 6
        le = self.L("qfb")
        a(f"s_cmp_lt_u32 s70, {thresh}\ns_cbranch_scc1 {le}\ns_cmp_lg_u32 s71, 0\ns_cbranch_scc1 {le}\ns_cmp_eq_u32 s3, 3\ns_cbranch_scc1 {le}")
        a("s_mov_b32 s71, 1\ns_mov_b64 exec, s[64:65]")
        a(f"buffer_store_dwordx2 v[{QD}:{QD+1}], v{QFA}, {WS}, s63 offen offset:{QP0T} sc1")
        a(f"s_mov_b64 exec, -1\ns_waitcnt vmcnt(0)\n{le}:")
    def read_fast(self):
        self.a(f"v_mov_b32 v{T[2]}, {L_CTRL+4}\nds_read_b32 v{T[2]}, v{T[2]}\ns_waitcnt lgkmcnt(0)\nv_readfirstlane_b32 s55, v{T[2]}\ns_lshr_b32 s55, s55, 1")
    def make_tag(self):
        self.a("s_waitcnt lgkmcnt(0)\ns_mul_i32 s74, s74, 1664525\ns_add_u32 s74, s74, 1013904223")
    def sum_spec(self):
        return [f"v_mfma_f32_16x16x32_bf16 {q4(ACC)}, {q4(ONES)}, {q4(GB)}, {q4(X0)}"] + [self.mfma_s(ACC, ONES, GB + 4 * n, False) for n in (1, 2)]
    def resid_add(self):
        self.pair32(ACC, T[2], T[3])
        self.a(f"v_cvt_pk_bf16_f32 v{T[4]}, v{T[2]}, v{T[3]}")
    def gather4(self, src, Q):
        a = self.a
        a(f"v_mov_b32 v{Q}, v{src}\nv_mov_b32 v{Q+1}, v{src}")
        a(f"v_permlane16_swap_b32 v{Q}, v{Q+1}")
        a(f"v_mov_b32 v{Q+2}, v{Q}\nv_mov_b32 v{Q+3}, v{Q+1}")
        a(f"v_permlane32_swap_b32 v{Q}, v{Q+2}\nv_permlane32_swap_b32 v{Q+1}, v{Q+3}")
    def unpackX_ops(self, src):
        return [f"v_lshlrev_b32 v{X0}, 16, v{src}", f"v_and_b32 v{X1}, 0xffff0000, v{src}"]
    def xstats_ops(self, s1, s2, tmp):
        return [f"v_add_f32 v{s1}, v{X0}, v{X1}", f"v_mul_f32 v{s2}, v{X0}, v{X0}", f"v_fmac_f32 v{s2}, v{X1}, v{X1}"] + self.red2_ops(s1, s2, (Q1, Q2, HM), tmp)
    def rows24_loads(self, off_arr):
        a = self.a
        self.sel_layer(58, off_arr)
        a(f"s_mul_i32 s60, s56, {BS}\ns_add_u32 s58, s58, s60\ns_add_u32 s60, s58, {10*BS}\ns_add_u32 s61, s58, {20*BS}")
        return [f"buffer_load_dwordx4 {q4(GB+4*n)}, v{aROW}, {WS}, s{(58,60,61)[n]} offen sc1" for n in range(3)]
    def consts(self):
        a = self.a
        t0, t1, t2 = T[0], T[1], T[2]
        a(f"v_and_b32 v{t0}, 1, v0\nv_mul_u32_u24 v{t0}, 0x202, v{t0}\nv_add_u32 v{t0}, 0x100, v{t0}")
        a(f"v_bfe_u32 v{t1}, v0, 1, 1\nv_lshlrev_b32 v{t1}, 4, v{t1}\nv_lshlrev_b32 v{t0}, v{t1}, v{t0}")
        a(f"v_mov_b32 v{t2}, 0x0c0c0000\nv_lshrrev_b32 v{t2}, v{t1}, v{t2}\nv_or_b32 v{t0}, v{t0}, v{t2}")
        a(f"v_bfe_u32 v{t1}, v0, 2, 2\nv_mov_b32 v{t2}, 0x0c0c0c0c")
        for d in range(4):
            a(f"v_cmp_eq_u32 vcc, {d}, v{t1}\nv_cndmask_b32 v{SEL+d}, v{t2}, v{t0}, vcc")
        a(f"v_mov_b32 v{t0}, 0x3f803f80")
        self.build_A(ONES, t0)
        a(f"v_and_b32 v{t0}, 1, v0\nv_lshlrev_b32 v{t0}, 4, v{t0}\nv_mov_b32 v{t1}, 0xffff\nv_lshlrev_b32 v{t0}, v{t0}, v{t1}")
        a(f"v_and_b32 v{t1}, 8, v0\nv_cmp_eq_u32 vcc, 0, v{t1}\nv_mov_b32 v{t2}, 0")
        a(f"v_cndmask_b32 v{MK0}, v{t2}, v{t0}, vcc\nv_cndmask_b32 v{MK1}, v{t0}, v{t2}, vcc")
        a(f"v_mov_b32 v{t0}, 0x4444\nv_mov_b32 v{t1}, 0xeeee\nv_cndmask_b32 v{IDQ}, v{t1}, v{t0}, vcc")
        a(f"v_bfe_u32 v{t0}, v0, 1, 2\nv_mul_u32_u24 v{IDX}, 0x5555, v{t0}")
    def kwave_addrs(self):
        a = self.a
        t0, t1, t2 = T[0], T[1], T[2]
        a(f"v_lshrrev_b32 v{t0}, 3, v0\nv_and_b32 v{t1}, 7, v0\ns_mov_b32 s58, {32*BS}\nv_mul_lo_u32 v{aROW}, s58, v{t0}\nv_lshl_add_u32 v{aROW}, v{t1}, 4, v{aROW}")
        a(f"v_mul_u32_u24 v{aX2}, {BS}, v{t1}\nv_lshrrev_b32 v{t1}, 4, v0\nv_lshl_add_u32 v{aX2}, v{t1}, 6, v{aX2}")
        a(f"s_lshl_b32 s58, s56, 2\ns_add_u32 s58, s58, s53\nv_add_u32 v{aX2}, s58, v{aX2}")
        a(f"v_bfe_u32 v{t0}, v0, 3, 1\nv_lshl_add_u32 v{t0}, v{t0}, 2, v{t1}\nv_mul_u32_u24 v{aQG}, {BS}, v{t0}")
        a(f"v_and_b32 v{t0}, 7, v0\nv_lshl_add_u32 v{aQG}, v{t0}, 4, v{aQG}")
        a(f"s_mul_i32 s58, s6, {8*BS}\ns_add_u32 s58, s58, s53\nv_add_u32 v{aQG}, s58, v{aQG}")
        a(f"v_bfe_u32 v{t0}, v0, 2, 2\nv_lshlrev_b32 v{ldsP}, 5, v{t0}\nv_lshl_add_u32 v{ldsP}, v{t1}, 3, v{ldsP}\nv_and_b32 v{t0}, 3, v0\nv_lshl_add_u32 v{ldsP}, v{t0}, 1, v{ldsP}")
        a(f"s_lshl_b32 s58, s3, 7\ns_add_u32 s58, s58, {L_P}\nv_add_u32 v{ldsP}, s58, v{ldsP}")
        a(f"v_and_b32 v{t0}, 15, v0\nv_mul_u32_u24 v{aML}, {BS}, v{t1}\nv_lshl_add_u32 v{aML}, v{t0}, 4, v{aML}")
        a(f"v_lshlrev_b32 v{aST}, 4, v{t0}\nv_lshl_add_u32 v{aST}, v{t1}, 2, v{aST}\nv_lshlrev_b32 v{aXS}, 3, v{t0}")
        a(f"v_and_b32 v{QFA}, 7, v0\nv_lshlrev_b32 v{QFA}, 3, v{QFA}\nv_lshl_add_u32 v{QFA}, v{t1}, 6, v{QFA}")
        a(f"v_lshrrev_b32 v{aS2}, 3, v0\nv_and_b32 v{aS2}, 4, v{aS2}")
    def vwave_addrs(self):
        a = self.a
        a("v_and_b32 v1, 7, v0\nv_lshrrev_b32 v2, 3, v0\nv_lshrrev_b32 v3, 4, v0")
        a("s_min_u32 s61, s57, 2\ns_lshl_b32 s58, s61, 2\ns_and_b32 s60, s3, 3\ns_add_u32 s58, s58, s60\ns_mul_i32 s60, s58, 43\ns_lshr_b32 s60, s60, 7")
        a("s_mul_i32 s61, s60, 3\ns_sub_u32 s58, s58, s61")
        a(f"s_mul_i32 s60, s60, {8*BS}\ns_add_u32 s60, s60, s53\ns_lshl_b32 s58, s58, 7\ns_add_u32 s58, s58, s60")
        a(f"v_mul_u32_u24 v{aQG}, {BS}, v2\nv_lshl_add_u32 v{aQG}, v1, 4, v{aQG}\nv_add_u32 v{aQG}, s58, v{aQG}")
        a(f"v_lshl_add_u32 v{aML}, v3, 1, v0\nv_and_b32 v{aML}, 7, v{aML}\nv_lshlrev_b32 v{aML}, 3, v{aML}\nv_add_u32 v{aML}, s60, v{aML}")
        a(f"s_and_b32 s58, s3, 3\ns_lshl_b32 s58, s58, 7\ns_add_u32 s58, s58, {L_P}\nv_lshlrev_b32 v{ldsP}, 5, v3\nv_add_u32 v{ldsP}, s58, v{ldsP}")
        a(f"s_mul_i32 s58, s6, {8*BS}\ns_add_u32 s58, s58, s53\ns_and_b32 s60, s3, 3\ns_lshl_b32 s60, s60, 7\ns_add_u32 s58, s58, s60\ns_lshl_b32 s60, s7, 4\ns_add_u32 s58, s58, s60")
        a(f"v_and_b32 v{T[0]}, 1, v3\nv_lshrrev_b32 v{T[1]}, 1, v1\nv_lshl_add_u32 v{T[0]}, v{T[0]}, 2, v{T[1]}\nv_mul_u32_u24 v{aST}, {BS}, v{T[0]}")
        a(f"v_and_b32 v{T[0]}, 1, v1\nv_lshl_add_u32 v{aST}, v{T[0]}, 3, v{aST}\nv_lshrrev_b32 v{T[0]}, 1, v3\nv_lshl_add_u32 v{aST}, v{T[0]}, 2, v{aST}\nv_add_u32 v{aST}, s58, v{aST}")
        a(f"s_mul_i32 s58, s7, {BS}\ns_add_u32 s58, s58, s53\nv_add_u32 v{aX2}, s58, v{lane4}")
        a(f"v_and_b32 v{aXS}, 15, v0\nv_lshlrev_b32 v{aXS}, 3, v{aXS}\nv_mov_b32 v{aROW}, 0")
        a(f"s_and_b32 s58, s3, 3\ns_lshl_b32 s58, s58, 8\nv_add_u32 v{aS2}, s58, v{lane4}")
    def k_dma(self):
        a = self.a
        t = T[0]; t2 = T[1]
        a(f"v_lshrrev_b32 v{t}, 3, v0\nv_and_b32 v{t2}, 6, v{t}\nv_xor_b32 v{t2}, v{t2}, v0\nv_and_b32 v{t2}, 7, v{t2}")
        a(f"v_mul_u32_u24 v{t}, 384, v{t}\nv_lshl_add_u32 v{t}, v{t2}, 4, v{t}")
        a(f"s_and_b32 s60, s3, 3\ns_mul_i32 s60, s60, 24576\ns_add_u32 s60, s60, {L_K}\ns_mov_b32 s58, s59\ns_add_u32 s61, s59, {64*384}")
        a(f"v_mul_u32_u24 v{T[4]}, 384, v2\nv_lshl_add_u32 v{T[4]}, v1, 4, v{T[4]}")
        a("s_waitcnt lgkmcnt(0)")
        self.stamp(2)
        if self.B0IT == 0: a("s_barrier")
        self.stamp(3)
        a(f"s_add_u32 s62, s59, {3072*self.B0IT}")
        a("L_kdma:")
        for th in range(3):
            a(f"s_add_u32 m0, s60, {th*1024 - th*128}")
            a(f"buffer_load_dwordx4 v{t}, s[12:15], s58 offen offset:{th*128} nt lds")
        a("s_add_u32 s60, s60, 3072\ns_add_u32 s58, s58, 3072")
        if self.B0IT: a("s_cmp_lg_u32 s58, s62\ns_cbranch_scc1 L_kdma_nb\ns_barrier\nL_kdma_nb:")
        a("s_cmp_lt_u32 s58, s61\ns_cbranch_scc1 L_kdma")
    def k_to_regs(self):
        a = self.a
        t = T[0]; t2 = T[1]; t3 = T[2]
        a(f"v_and_b32 v{t}, 7, v0\nv_lshrrev_b32 v{t2}, 4, v0\nv_and_b32 v{t3}, 6, v0\nv_xor_b32 v{t2}, v{t2}, v{t3}")
        a(f"v_lshlrev_b32 v{t}, 7, v{t}\nv_bfe_u32 v{t3}, v0, 3, 1\nv_mul_u32_u24 v{t3}, 3072, v{t3}\nv_add_u32 v{t}, v{t}, v{t3}")
        a(f"s_mul_i32 s60, s3, 24576\nv_add_u32 v{t}, s60, v{t}")
        a(f"v_lshl_add_u32 v{t3}, v{t2}, 4, v{t}")
        a(f"v_xor_b32 v{t2}, 4, v{t2}\nv_lshl_add_u32 v{t2}, v{t2}, 4, v{t}")
        for tile in range(4):
            for u in range(6):
                off = L_K + (2 * tile * 3 + (u >> 1)) * 1024
                a(f"ds_read_b128 {q4(KV + (tile*6+u)*4)}, v{t2 if (u & 1) else t3} offset:{off}")
            if tile == 1: a("s_waitcnt lgkmcnt(0)")
        a("s_waitcnt lgkmcnt(0)")
    def wo_part(self, lo, hi):
        a = self.a
        le = self.L("wop")
        a(f"s_cmp_lg_u32 s54, 0\ns_cbranch_scc1 {le}")
        for t in range(lo, hi):
            a(f"buffer_load_dwordx4 {q4(WB+4*t)}, v{XA}, s[24:27], s63 offen nt")
            if t < 7: a(f"s_add_u32 s63, s63, {8*1280}")
        a(f"{le}:")
    def wo_loads(self, n=8):
        a = self.a
        t1 = XA
        self.rho(t1, XA + 1, 8)
        a(f"v_mul_u32_u24 v{t1}, 1280, v{t1}\nv_and_b32 v{XA+1}, 7, v0\nv_lshl_add_u32 v{t1}, v{XA+1}, 4, v{t1}")
        a("s_min_u32 s62, s57, 2\ns_mul_i32 s58, s4, 768\ns_lshl_b32 s60, s62, 8\ns_add_u32 s58, s58, s60\ns_and_b32 s60, s3, 3\ns_lshl_b32 s60, s60, 6\ns_add_u32 s58, s58, s60")
        a("s_mul_i32 s58, s58, 1280\ns_lshl_b32 s60, s56, 7\ns_add_u32 s58, s58, s60")
        a("s_cmp_ge_u32 s5, 30\ns_cselect_b32 s58, 0x7f000000, s58")
        for t in range(n):
            a(f"buffer_load_dwordx4 {q4(WB+4*t)}, v{t1}, s[24:27], s58 offen nt")
            if t < 7: a(f"s_add_u32 s58, s58, {(12 if t & 1 else 4)*1280}")
        a("s_mov_b32 s63, s58")
    def w1_loads(self):
        a = self.a
        t0, t1 = T[2], T[3]
        self.rho(t0, t1, 8)
        a(f"v_and_b32 v{t1}, 7, v0\nv_mul_u32_u24 v{t0}, 3072, v{t0}\nv_lshl_add_u32 v{t0}, v{t1}, 4, v{t0}")
        a(f"s_mul_i32 s58, s56, {64*3072}\ns_mul_i32 s60, s4, 384\ns_add_u32 s58, s58, s60\ns_lshl_b32 s60, s57, 7\ns_add_u32 s58, s58, s60")
        for t in range(8):
            a(f"buffer_load_dwordx4 {q4(WB+4*t)}, v{t0}, s[28:31], s58 offen nt")
            if t < 7: a(f"s_add_u32 s58, s58, {(12 if t & 1 else 4)*3072}")
    def w2_loads(self):
        a = self.a
        t0, t1 = T[2], T[3]
        self.rho(t0, t1, 8)
        a(f"v_and_b32 v{t1}, 7, v0\nv_mul_u32_u24 v{t0}, 1280, v{t0}\nv_lshl_add_u32 v{t0}, v{t1}, 4, v{t0}")
        a("s_mul_i32 s58, s4, 192\ns_lshl_b32 s60, s57, 6\ns_add_u32 s61, s58, s60\ns_mul_i32 s58, s61, 1280\ns_lshl_b32 s60, s56, 7\ns_add_u32 s58, s58, s60")
        for t in range(8):
            a(f"buffer_load_dwordx4 {q4(WB+4*t)}, v{t0}, s[36:39], s58 offen nt")
            if t < 7: a(f"s_add_u32 s58, s58, {(12 if t & 1 else 4)*1280}")
        a(f"v_bfe_u32 v{t0}, v0, 3, 1\nv_lshl_add_u32 v{t0}, v{t0}, 1, v{aP32}\ns_lshl_b32 s61, s61, 1")
        a(f"buffer_load_ushort v{B1V}, v{t0}, s[32:35], s61 offen")
    def clears(self, all_sc1):
        a = self.a
        C = XA + 4
        for i in range(4): a(f"v_mov_b32 v{C+i}, -1")
        a(f"v_lshlrev_b32 v{T[3]}, 4, v0")
        f = " sc1" if all_sc1 else ""
        a("s_mov_b32 exec_hi, 0")
        a(f"buffer_store_dwordx4 {q4(C)}, v{T[3]}, {WS}, s52 offen sc1")
        a("s_mov_b32 exec_lo, 0xffff")
        a(f"buffer_store_dwordx4 {q4(C)}, v{T[3]}, {WS}, s52 offen offset:2560{f}")
        a("s_mov_b64 exec, -1")
        for o in (512, 1536):
            a(f"buffer_store_dwordx4 {q4(C)}, v{T[3]}, {WS}, s52 offen offset:{o}{f}")
    def flag_store(self, base):
        a = self.a
        C = XA + 4
        if base == FL1:
            a("s_xor_b32 s58, s74, 0x5bd1e995\ns_andn2_b32 s58, s58, 15\ns_or_b32 s75, s75, s58")
        a(f"s_lshl_b32 s58, s4, 5\ns_add_u32 s58, s58, s5\ns_lshl_b32 s58, s58, 3\ns_add_u32 s58, s58, {base}")
        a(f"v_mov_b32 v{C}, s74\nv_mov_b32 v{C+1}, s75")
        a("s_mov_b64 exec, 1")
        a(f"buffer_store_dwordx2 v[{C}:{C+1}], v{aP32}, {WS}, s58 offen sc1")
        a("s_mov_b64 exec, -1")
    def flags_issue(self, base):
        a = self.a
        F = AB[0]
        a(f"v_lshlrev_b32 v{T[4]}, 5, v0\ns_mov_b32 s60, {base}")
        a(f"buffer_load_dwordx4 {q4(F)}, v{T[4]}, {WS}, s60 offen sc1\nbuffer_load_dwordx4 {q4(F+4)}, v{T[4]}, {WS}, s60 offen offset:16 sc1")
    def flags_wait(self, base, group_only):
        a = self.a
        F = AB[0]
        t, t2 = T[2], T[3]
        lp, lc, ld = self.L("fp"), self.L("fc"), self.L("fg")
        a("s_mov_b32 s70, 0\ns_or_b32 s61, s75, 15")
        if base == FL1: a(f"s_branch {lc}")
        a(f"{lp}:")
        self.flags_issue(base)
        a(f"{lc}:")
        a("s_waitcnt vmcnt(0)")
        a(f"v_xor_b32 v{t}, s74, v{F}")
        for i in range(1, 4):
            a(f"v_xor_b32 v{t2}, s74, v{F+2*i}\nv_or_b32 v{t}, v{t}, v{t2}")
        for i in range(4):
            a(f"v_or_b32 v{t2}, 15, v{F+2*i+1}\nv_xor_b32 v{t2}, s61, v{t2}\nv_or_b32 v{t}, v{t}, v{t2}")
        a(f"v_cmp_ne_u32 vcc, 0, v{t}")
        if group_only: a(f"s_and_b64 vcc, vcc, s[72:73]\ns_cbranch_scc0 {ld}")
        else: a(f"s_cbranch_vccz {ld}")
        a(f"s_sleep 16\ns_add_u32 s70, s70, 1\ns_cmp_lt_u32 s70, {POLL_LIMIT}\ns_cbranch_scc1 {lp}\n{ld}:")
    def flags_check(self):
        a = self.a
        F = AB[0]; t, t2 = T[2], T[3]
        lf = self.L("fast")
        a("s_lshl_b32 s58, s4, 3\ns_mov_b64 s[72:73], 0xff\ns_lshl_b64 s[72:73], s[72:73], s58")
        self.flags_wait(FL1, False)
        a(f"v_xor_b32 v{t}, s75, v{F+1}")
        for i in range(1, 4):
            a(f"v_xor_b32 v{t2}, s75, v{F+2*i+1}\nv_or_b32 v{t}, v{t}, v{t2}")
        a(f"v_cmp_ne_u32 vcc, 0, v{t}\ns_mov_b32 s55, 1\ns_and_b64 vcc, vcc, s[72:73]")
        if "forceslow" not in self.knobs: a(f"s_cbranch_scc0 {lf}")
        a("s_mov_b32 s55, 0")
        self.clears(True)
        a("s_waitcnt vmcnt(0)")
        self.flag_store(FL2)
        self.flags_wait(FL2, True)
        a(f"{lf}:")
        a(f"s_lshl_b32 s58, s55, 1\ns_or_b32 s58, s58, 1\nv_mov_b32 v{t}, s58\nv_mov_b32 v{T[3]}, {L_CTRL}\nds_write_b32 v{T[3]}, v{t} offset:4")
    def qproj(self, pair, s1, s2, pre_ops):
        a = self.a
        self.gemv_bcast(ACC, pair, WA, 10, fill=list(pre_ops) + self.ln_ops(s1, s2, T[2]))
        self.pair32(ACC, T[2], T[3])
        a(f"v_fma_f32 v{T[2]}, -v{s1}, v{CS0}, v{T[2]}\nv_fma_f32 v{T[3]}, -v{s1}, v{CS1}, v{T[3]}")
        a(f"v_mul_f32 v{T[2]}, v{T[2]}, v{s2}\nv_mul_f32 v{T[3]}, v{T[3]}, v{s2}")
        a(f"v_cvt_pk_bf16_f32 v{T[4]}, v{T[2]}, v{T[3]}")

    def gen(self):
        a = self.a
        a(f"; @launch grid=(256,1,1) block=(512,1,1) lds={LDS_BYTES}")
        for ln in DOC.strip().split("\n"): a("; " + ln)
        a('.amdgcn_target "amdgcn-amd-amdhsa--gfx950"\n.text')
        a(f".globl {KNAME}\n.p2align 8\n.type {KNAME},@function")
        a(f"{KNAME}:")
        a("s_cmp_ge_u32 s2, 256\ns_cbranch_scc1 L_end")
        for _ in range(self.SHIFT): a("s_nop 0")
        if self.prof:
            for i in range(13): a(f"s_mov_b64 s[{76+2*i}:{77+2*i}], 0")
        self.stamp(0)
        if self.AMP: a("s_memrealtime s[92:93]")
        ptr = {12: 8, 20: 24, 8: 0, 48: 88, 16: 16, 24: 32, 28: 48, 32: 56, 36: 64, 40: 72}
        size = {8: 1280, 12: 100663296, 16: 100663296, 20: 7864320, 24: 7864320, 28: 1966080, 32: 3072, 36: 1966080, 40: 1280,
                48: (PROF_OFF + 256 * 8 * 2 * 64) if self.prof else WS_USED}
        for s, off in ptr.items():
            a(f"s_load_dwordx2 s[{s}:{s+1}], s[0:1], {off}")
        a("v_lshrrev_b32 v1, 6, v0\nv_and_b32 v0, 63, v0\nv_readfirstlane_b32 s3, v1")
        if self.CPF0:
            a("s_getpc_b64 s[72:73]")
            a("L_pcref0:")
            a(f"s_sub_u32 s72, s72, L_pcref0-{KNAME}\ns_subb_u32 s73, s73, 0")
            a("s_and_b32 s58, s2, 0xf8\ns_add_u32 s58, s58, s3\ns_lshl_b32 s58, s58, 7")
            a(f"s_cmp_ge_u32 s58, L_end-{KNAME}\ns_cbranch_scc1 L_nocpf0")
            a(f"v_mov_b32 v2, s58\ns_mov_b64 exec, 1\nglobal_load_dword v{WA+39}, v2, s[72:73]\ns_mov_b64 exec, -1")
            a("L_nocpf0:")
        self.size = size
        a("s_and_b32 s4, s2, 7\ns_lshr_b32 s5, s2, 3\ns_lshr_b32 s6, s5, 3\ns_and_b32 s7, s5, 7")
        a("v_and_b32 v1, 7, v0\nv_lshrrev_b32 v2, 3, v0\nv_lshrrev_b32 v3, 4, v0")
        a(f"v_lshlrev_b32 v{lane4}, 2, v0")
        if self.LAY == 0:
            a("s_cmp_lt_u32 s3, 4\ns_cbranch_scc1 L_pro_k")
            self.v_prologue()
            a("L_pro_k:")
        else:
            a("s_cmp_ge_u32 s3, 4\ns_cbranch_scc1 L_pro_v")
        a(f"s_setprio 3\ns_mov_b32 s71, {GEN_OFF}")
        a("s_cmp_eq_u32 s3, 3\ns_cbranch_scc1 L_pro_c")
        XS = GB
        self.srd(8, 20)
        a(f"v_lshlrev_b32 v{T[0]}, 4, v0")
        a(f"v_and_b32 v{T[1]}, 15, v0\nv_lshlrev_b32 v{T[1]}, 7, v{T[1]}\nv_lshl_add_u32 v{T[1]}, v3, 2, v{T[1]}\ns_lshl_b32 s61, s7, 4")
        self.rho(T[2], T[3], 64)
        a(f"v_mul_u32_u24 v{T[2]}, 12288, v{T[2]}\nv_lshl_add_u32 v{T[2]}, v1, 4, v{T[2]}")
        a(f"s_lshl_b32 s58, s4, 2\ns_add_u32 s58, s58, s6\ns_mul_i32 s58, s58, 384\ns_lshl_b32 s60, s3, 7\ns_add_u32 s58, s58, s60\ns_mul_i32 s60, s7, {8*12288}\ns_add_u32 s58, s58, s60")
        a("s_waitcnt lgkmcnt(0)")
        a(f"buffer_load_dwordx4 {q4(XS)}, v{T[0]}, s[8:11], 0 offen")
        a(f"buffer_load_dword v{XS+4}, v{lane4}, s[8:11], 0 offen offset:1024")
        a(f"buffer_load_dword v{XA}, v{T[1]}, s[8:11], s61 offen")
        for t in range(10 if "nowq" not in self.knobs else 0):
            a(f"buffer_load_dwordx4 {q4(WA+4*t)}, v{T[2]}, s[20:23], s58 offen nt")
            if t < 9: a(f"s_add_u32 s58, s58, {(124 if t & 1 else 4)*12288}")
        if self.QPW:
            a(f"v_mov_b32 v{XA+6}, -1\ns_lshl_b32 s60, s3, 8\ns_add_u32 s63, s52, s60")
            a(f"buffer_store_dword v{XA+6}, v{lane4}, {WS}, s63 offen offset:{QP0T+768}")
        a("s_barrier")
        if self.LAY:
            a("s_branch L_k_rest")
            self.c_head()
            a("s_branch L_c_rest")
            a("L_pro_v:")
            self.v_prologue()
            a("L_k_rest:")
        self.rest_setup((8, 20))
        a(f"s_buffer_load_dword s74, {WS}, s71")
        self.consts()
        self.kwave_addrs()
        self.make_tag()
        a(f"s_waitcnt vmcnt({11 + self.QPW})")
        s1, s2 = T[0], T[1]
        a(f"v_mov_b32 v{s1}, 0\nv_mov_b32 v{s2}, 0")
        for i in range(5):
            a(f"v_lshlrev_b32 v{T[2]}, 16, v{XS+i}\nv_and_b32 v{T[3]}, 0xffff0000, v{XS+i}")
            a(f"v_add_f32 v{s1}, v{s1}, v{T[2]}\nv_fmac_f32 v{s2}, v{T[2]}, v{T[2]}\nv_add_f32 v{s1}, v{s1}, v{T[3]}\nv_fmac_f32 v{s2}, v{T[3]}, v{T[3]}")
        for r in (s1, s2):
            a(f"v_mov_b32 v{T[2]}, v{r}\nv_permlane16_swap_b32 v{r}, v{T[2]}\nv_add_f32 v{r}, v{r}, v{T[2]}")
            a(f"v_mov_b32 v{T[2]}, v{r}\nv_permlane32_swap_b32 v{r}, v{T[2]}\nv_add_f32 v{GB + 2 + (r == s2)}, v{r}, v{T[2]}")
        a(f"s_waitcnt vmcnt({self.QPW})")
        self.stamp(1)
        if "lo1" in self.knobs: a("s_branch L_fin2")
        for t in range(10):
            self.mfma(ACC + 4, ONES, WA + 4 * t, t == 0)
        self.zero(ACC)
        a(f"v_mov_b32 v{GB}, v{XA}")
        self.pair32(ACC + 4, CS0, CS1)
        a("s_branch L_qproj")
        a("L_qp_ret0:")
        QD = XA + 6
        a(f"v_mov_b32 v{QD}, v{T[4]}\nv_mov_b32 v{QD+1}, s74")
        a("s_lshl_b32 s60, s3, 8\ns_add_u32 s63, s52, s60")
        a("s_mov_b64 exec, s[64:65]")
        a(f"buffer_store_dwordx2 v[{QD}:{QD+1}], v{QFA}, {WS}, s63 offen offset:{QP0T+768}")
        a("s_mov_b64 exec, -1\ns_mov_b32 s71, 0")
        self.stamp(3)
        if "lo2" in self.knobs: a("s_branch L_fin2")
        a(f"s_mul_i32 s58, s3, 10752\ns_add_u32 s58, s58, {L_WQ}\nv_lshlrev_b32 v{T[0]}, 4, v0\nv_add_u32 v{T[0]}, s58, v{T[0]}")
        for t in range(10):
            a(f"ds_write_b128 v{T[0]}, {q4(WA+4*t)} offset:{1024*t}")
        a(f"v_add_u32 v{T[1]}, s58, v{lane4}\nds_write_b32 v{T[1]}, v{CS0} offset:10240\nds_write_b32 v{T[1]}, v{CS1} offset:10496")
        QA = [XA + 1, XA + 2]
        a(f"s_mul_i32 s62, s6, {8*BS}\ns_add_u32 s62, s62, s53\ns_lshl_b32 s58, s3, 7")
        for n in range(2):
            a(f"v_add_u32 v{T[0]}, s58, v0")
            if n: a(f"v_add_u32 v{T[0]}, 64, v{T[0]}")
            a(f"v_mul_u32_u24 v{T[1]}, 0x556, v{T[0]}\nv_lshrrev_b32 v{T[1]}, 16, v{T[1]}")
            a(f"v_mul_u32_u24 v{T[2]}, {BS - 768}, v{T[1]}\nv_lshl_add_u32 v{QA[n]}, v{T[0]}, 4, v{T[2]}")
        SETS = [[WB, WB + 4], [WB + 8, WB + 12]]
        def qissue(k):
            if k == 0: a("s_add_u32 s58, s62, 768")
            else: a(f"s_cmp_ge_u32 s70, {self.QFB}\ns_cselect_b32 s58, 0, 768\ns_add_u32 s58, s58, s62")
            for n in range(2):
                a(f"buffer_load_dwordx4 {q4(SETS[k][n])}, v{QA[n]}, {WS}, s58 offen offset:{QP0T} sc1")
        lp, ld = self.L("poll"), self.L("got")
        a(f"s_mov_b32 s70, 0\ns_sleep {self.QSLEEP0}")
        gots = [self.L("qg") for _ in range(2)]
        if self.Q1ST:
            qissue(0)
            a("s_waitcnt vmcnt(0)")
            a(f"v_mov_b32 v{T[0]}, s74\nv_mov_b32 v{T[1]}, s74")
            for r in SETS[0]:
                a(f"v_min3_u32 v{T[0]}, v{T[0]}, v{r+1}, v{r+3}\nv_max3_u32 v{T[1]}, v{T[1]}, v{r+1}, v{r+3}")
            a(f"v_cmp_ne_u32 vcc, v{T[0]}, v{T[1]}\ns_cbranch_vccz {gots[0]}")
        qissue(0); a(f"s_sleep {self.QSLEEP1}"); qissue(1)
        a(f"{lp}:")
        for k in range(2):
            a("s_waitcnt vmcnt(2)")
            a(f"v_mov_b32 v{T[0]}, s74\nv_mov_b32 v{T[1]}, s74")
            for r in SETS[k]:
                a(f"v_min3_u32 v{T[0]}, v{T[0]}, v{r+1}, v{r+3}\nv_max3_u32 v{T[1]}, v{T[1]}, v{r+1}, v{r+3}")
            a(f"v_cmp_ne_u32 vcc, v{T[0]}, v{T[1]}\ns_cbranch_vccz {gots[k]}")
            if k == 1:
                a("s_add_u32 s70, s70, 1")
                self.q_fallback(self.QFB)
            qissue(k)
        a(f"s_cmp_lt_u32 s70, {POLL_LIMIT}\ns_cbranch_scc1 {lp}")
        for k in range(2):
            a(f"{gots[k]}:")
            a(f"v_lshrrev_b32 v{T[0]}, 4, v0\nv_lshlrev_b32 v{T[0]}, 7, v{T[0]}\nv_and_b32 v{T[1]}, 3, v0\nv_lshl_add_u32 v{T[0]}, v{T[1]}, 4, v{T[0]}")
            a(f"v_bfe_u32 v{T[1]}, v0, 2, 1\nv_lshl_add_u32 v{T[0]}, v{T[1]}, 6, v{T[0]}\nv_bfe_u32 v{T[1]}, v0, 3, 1\nv_lshl_add_u32 v{T[0]}, v{T[1]}, 2, v{T[0]}")
            a(f"s_lshl_b32 s58, s3, 10\ns_add_u32 s58, s58, {L_Q}\nv_add_u32 v{T[0]}, s58, v{T[0]}")
            for n in range(2):
                a(f"ds_write2_b32 v{T[0]}, v{SETS[k][n]}, v{SETS[k][n]+2} offset0:{128*n} offset1:{128*n+2}")
            if k < 1: a(f"s_branch {ld}")
        a(f"{ld}:")
        a(f"v_mov_b32 v{T[2]}, 1\nv_mov_b32 v{T[3]}, {L_CTRL+32}\ns_waitcnt lgkmcnt(0)\nds_add_u32 v{T[3]}, v{T[2]}")
        self.stamp(2)
        a("s_branch L_bk")
        if self.LAY == 0: self.c_head()
        else: a("L_c_rest:")
        self.rest_setup((8, 48), blk=False)
        a(f"s_buffer_load_dword s74, {WS}, s71")
        self.consts()
        self.kwave_addrs()
        self.make_tag()
        a("s_waitcnt vmcnt(0)")
        if "noclr" not in self.knobs: self.flag_store(FL1)
        self.stamp(1)
        if not (self.knobs & {"lo1", "lo2"}) and "noclr" not in self.knobs:
            a(f"s_sleep {self.FLSL}")
            self.flags_issue(FL1)
            self.flags_check()
            self.stamp(2)
        a("s_waitcnt vmcnt(0)")
        for x in self.unpackX_ops(GB + 4): a(x)
        a(f"v_mov_b32 v{X0+1}, 0\nv_mov_b32 v{X0+3}, 0")
        a("L_bk:")
        if self.knobs & {"lo1", "lo2", "lo3"}: a("s_branch L_fin2")
        a(f"s_lshl_b32 s60, s3, 2\ns_add_u32 s60, s60, {L_CTRL+16}")
        self.lds_wait_flag("s60")
        self.stamp(10)
        self.k_to_regs()
        self.lds_wait_flag(L_CTRL + 32, 192, fb=64)
        self.stamp(11)
        a(f"v_and_b32 v{T[3]}, 7, v0\nv_mul_u32_u24 v{T[3]}, 384, v{T[3]}\nv_lshrrev_b32 v{T[4]}, 4, v0\nv_lshl_add_u32 v{T[3]}, v{T[4]}, 4, v{T[3]}")
        a(f"v_and_b32 v{T[4]}, 8, v0\nv_lshl_add_u32 v{T[3]}, v{T[4]}, 3, v{T[3]}")
        for u in range(3):
            a(f"ds_read_b128 {q4(GB+4*u)}, v{T[3]} offset:{L_Q + 128*u}")
        self.zero(ACC, 16)
        a("s_waitcnt lgkmcnt(0)")
        a("s_branch L_qk")

        a("L_kloop:")
        a("s_cmp_lg_u32 s3, 3\ns_cbranch_scc1 L_k_b1")
        a("s_cmp_ge_u32 s5, 10\ns_cbranch_scc1 L_k_pt")
        a(f"s_lshl_b32 s63, s56, 3\ns_add_u32 s63, s63, s53\ns_add_u32 s63, s63, {7*BS}")
        self.zgather(0, self.ZSL)
        s1, s2 = T[0], T[1]
        a("s_mov_b64 exec, s[64:65]")
        self.local_stores([f"buffer_store_dword v{T[4]}, v{aX2}, {WS}, 0 offen offset:{X2O}{{f}}"])
        a("s_mov_b64 exec, -1")
        for x in self.unpackX_ops(T[4]) + self.xstats_ops(s1, s2, T[2]): a(x)
        a("s_mov_b64 exec, s[46:47]")
        self.local_stores([f"buffer_store_dword v{s1}, v{aS2}, {WS}, s63 offen offset:{MISC}{{f}}"])
        a("s_mov_b64 exec, -1")
        self.stamp(2)
        a("L_k_pt:")
        a("L_k_b1:")
        self.zero(ACC, 16)
        a("s_barrier")
        self.sleep(self.QSL)
        self.poll([f"buffer_load_dwordx4 {q4(GB+4*u)}, v{aQG}, {WS}, 0 offen offset:{QP1 + 128*u} sc1" for u in range(3)], range(GB, GB + 12), entry="L_qk", pipe=self.PQ)
        self.stamp(4)
        S = T[0]; M = T[1]
        R = [XA, XA + 1, XA + 2, XA + 3]
        def tsum(t):
            D = ACC + 4 * t
            return [f"v_add_f32 v{R[t]}, v{D}, v{D+1}", f"v_add_f32 v{T[2]}, v{D+2}, v{D+3}", f"v_add_f32 v{R[t]}, v{R[t]}, v{T[2]}"]
        order = [0, 2, 1, 3]
        for k, t in enumerate(order):
            for n in range(3):
                a(self.smf_s(ACC + 4 * t, GB + 4 * n, KV + (t * 6 + 2 * n) * 4, IDQ))
            if k >= 2:
                for x in tsum(order[k - 2]): a(x)
        a(f"v_permlane32_swap_b32 v{R[0]}, v{R[2]}")
        for x in tsum(1): a(x)
        a(f"v_add_f32 v{R[0]}, v{R[0]}, v{R[2]}")
        for x in tsum(3): a(x)
        a(f"v_permlane32_swap_b32 v{R[1]}, v{R[3]}\nv_add_f32 v{R[1]}, v{R[1]}, v{R[3]}")
        a(f"v_permlane16_swap_b32 v{R[0]}, v{R[1]}\nv_add_f32 v{S}, v{R[0]}, v{R[1]}")
        a(f"v_mul_f32 v{S}, 0x3dd53b95, v{S}")
        a(f"v_max_f32_dpp v{M}, v{S}, v{S} {Q1} {DPPALL}")
        for c in (Q2, HM, RM):
            a(f"v_max_f32_dpp v{M}, v{M}, v{M} {c} {DPPALL}")
        a(f"v_mov_b32 v{T[2]}, v{M}\nv_permlane16_swap_b32 v{M}, v{T[2]}\nv_max_f32 v{M}, v{M}, v{T[2]}")
        a(f"v_mov_b32 v{T[2]}, v{M}\nv_permlane32_swap_b32 v{M}, v{T[2]}\nv_max_f32 v{M}, v{M}, v{T[2]}")
        a(f"v_sub_f32 v{S}, v{S}, v{M}\nv_exp_f32 v{S}, v{S}")
        a(f"v_cvt_pk_bf16_f32 v{S}, v{S}, v{S}")
        a(f"ds_write_b16 v{ldsP}, v{S}")
        a("s_cmp_eq_u32 s3, 3\ns_cbranch_scc1 L_qk_nf\ns_cmp_lg_u32 s54, 0\ns_cbranch_scc1 L_qk_nf")
        self.lds_wait_flag(L_CTRL + 4)
        a("s_lshr_b32 s55, s58, 1\ns_cmp_lg_u32 s55, 0\ns_cbranch_scc1 L_qk_nf")
        self.q_fallback(0)
        a("L_qk_nf:")
        a("s_waitcnt vmcnt(0) lgkmcnt(0)" if self.PQ else "s_waitcnt lgkmcnt(0)")
        self.stamp(5)
        if self.PRI == 1: a("s_setprio 0")
        a("s_barrier")
        if self.PRI == 2: a("s_sleep 2")
        a(f"v_lshlrev_b32 v{S}, 16, v{S}")
        self.allred64("v_add_f32", S, T[2])
        a(f"s_lshl_b32 s58, s3, 3\nv_mov_b32 v{T[2]}, s58")
        a("s_mov_b64 exec, 1")
        a(f"ds_write_b32 v{T[2]}, v{M} offset:{L_ML}\nds_write_b32 v{T[2]}, v{S} offset:{L_ML+4}")
        a("s_mov_b64 exec, -1")
        a("s_cmp_lg_u32 s3, 3\ns_cbranch_scc1 L_k_b3")
        a("s_waitcnt lgkmcnt(0)\ns_barrier")
        a("s_cmp_ge_u32 s5, 30\ns_cbranch_scc1 L_k_next")
        a("s_cmp_eq_u32 s54, 0\ns_cbranch_scc1 L_c_nx2\ns_cmp_lt_u32 s5, 10\ns_cbranch_scc1 L_c_nx2")
        self.poll([f"buffer_load_dword v{GB}, v{aX2}, {WS}, 0 offen offset:{X2O} sc1"], [GB])
        for x in self.unpackX_ops(GB): a(x)
        a("L_c_nx2:")
        if self.LL == 3:
            a("s_cmp_lg_u32 s54, 0\ns_cbranch_scc1 L_c_b4")
            self.w1_loads()
            a("L_c_b4:")
        if self.B3B:
            a("s_cmp_lg_u32 s54, 0\ns_cbranch_scc1 L_c_nb3b\ns_barrier")
            self.w1_loads()
            a("L_c_nb3b:")
        a("s_barrier")
        self.zero(ACC + 4)
        self.sel_layer(62, HPR, 52)
        a(f"s_mul_i32 s63, s54, 3\ns_add_u32 s63, s63, s57\ns_add_u32 s63, s63, 1\ns_mul_i32 s63, s63, {BS}\ns_add_u32 s63, s63, s53\ns_lshl_b32 s61, s56, 3\ns_add_u32 s63, s63, s61")
        a("s_cmp_lg_u32 s54, 0\ns_cbranch_scc1 L_p4_nocs")
        if self.LL == 4 and not self.B3B: self.w1_loads()
        yl = self.rows24_loads(YO)
        self.sleep(self.YSL0)
        for x in yl: a(x)
        a("s_mov_b32 s70, 0\ns_waitcnt vmcnt(3)")
        for t in range(8): self.mfma(ACC, ONES, WB + 4 * t, t == 0)
        self.l64(ACC, CS0)
        self.local_stores([f"buffer_store_dword v{CS0}, v{aST}, {WS}, s52 offen offset:{HPC}{{f}}"])
        a("s_branch L_p4_chk")
        a("L_p4_nocs:")
        yl = self.rows24_loads(YO)
        self.sleep(self.YSL)
        self.poll(yl, range(GB, GB + 12), entry="L_p4_chk", spec=self.sum_spec())
        a("s_barrier")
        if self.AMP == 2: a("s_cmp_lg_u32 s54, 0\ns_cbranch_scc1 L_amp2\ns_memrealtime s[94:95]\nL_amp2:")
        self.stamp(8)
        self.resid_add()
        s1, s2 = T[0], T[1]
        self.gemv_bcast(ACC + 4, T[4], WB, 8, fill=self.unpackX_ops(T[4]) + self.xstats_ops(s1, s2, T[2]))
        self.l64(ACC + 4, T[3])
        self.local_stores([f"buffer_store_dword v{T[3]}, v{aST}, {WS}, s62 offen{{f}}", "s_mov_b64 exec, s[46:47]",
                           f"buffer_store_dword v{s1}, v{aS2}, {WS}, s63 offen offset:{MISC}{{f}}"])
        a("s_mov_b64 exec, -1")
        self.stamp(9)
        self.dump0()
        a("s_barrier")
        a("s_cmp_lg_u32 s54, 0\ns_cbranch_scc1 L_final\ns_mov_b32 s54, 1\ns_branch L_kloop")
        a("L_k_b3:")
        if self.LL2 == 2:
            a("s_cmp_lg_u32 s54, 0\ns_cbranch_scc1 L_k_b3a\ns_cmp_lg_u32 s3, 0\ns_cbranch_scc1 L_k_b3a")
            self.w2_loads()
            a("L_k_b3a:")
        if self.CPF:
            self.code_prefetch()
        a(f"s_lshl_b32 s58, s3, 8\nv_add_u32 v{T[3]}, s58, v{lane4}\nv_mov_b32 v{T[4]}, {L_ML}")
        self.sel_layer(58, OP, 52)
        a("s_lshl_b32 s60, s3, 7\ns_add_u32 s60, s60, s58")
        a(f"s_mul_i32 s61, s7, {BS - 8}\ns_sub_u32 s61, s52, s61\ns_lshl_b32 s58, s54, 6\ns_add_u32 s61, s61, s58")
        a("s_waitcnt lgkmcnt(0)\ns_barrier")
        self.stamp(6)
        a(f"ds_read_b128 {q4(GB)}, v{T[4]}\nds_read_b128 {q4(GB+4)}, v{T[4]} offset:16")
        for w in range(4):
            a(f"ds_read_b32 v{GB+8+w}, v{T[3]} offset:{L_O + 768*w}")
        a("s_waitcnt lgkmcnt(0)")
        M = GB + 12; Lr = GB + 13
        a(f"v_max3_f32 v{M}, v{GB}, v{GB+2}, v{GB+4}\nv_max_f32 v{M}, v{M}, v{GB+6}")
        for w in range(4): a(f"v_sub_f32 v{GB+2*w}, v{GB+2*w}, v{M}")
        for w in range(4): a(f"v_exp_f32 v{GB+2*w}, v{GB+2*w}")
        a(f"v_mul_f32 v{Lr}, v{GB}, v{GB+1}\nv_mul_f32 v{T[0]}, v{GB}, v{GB+8}")
        for w in range(1, 4):
            a(f"v_fmac_f32 v{Lr}, v{GB+2*w}, v{GB+2*w+1}\nv_fmac_f32 v{T[0]}, v{GB+2*w}, v{GB+8+w}")
        a(f"v_rcp_f32 v{T[1]}, v{Lr}\nv_mul_f32 v{T[0]}, v{T[0]}, v{T[1]}")
        a(f"v_mov_b32_dpp v{T[1]}, v{T[0]} row_ror:8 {DPPALL}\nv_cvt_pk_bf16_f32 v{T[0]}, v{T[0]}, v{T[1]}")
        a("s_mov_b64 exec, s[64:65]")
        lz = self.L("z")
        self.local_stores([f"buffer_store_dword v{T[0]}, v{aP32}, {WS}, s60 offen{{f}}"])
        a(f"s_cmp_lg_u32 s3, 1\ns_cbranch_scc1 {lz}\ns_mov_b64 exec, 1")
        self.local_stores([f"buffer_store_dwordx2 v[{M}:{Lr}], v{aP32}, {WS}, s61 offen offset:{MISC}{{f}}"])
        a(f"{lz}:\ns_mov_b64 exec, -1")
        self.stamp(7)
        a("s_cmp_ge_u32 s5, 30\ns_cbranch_scc1 L_k_next")
        if self.LL2 == 3:
            a("s_cmp_lg_u32 s54, 0\ns_cbranch_scc1 L_k_b4a\ns_cmp_lg_u32 s3, 0\ns_cbranch_scc1 L_k_b4a")
            self.w2_loads()
            a("L_k_b4a:")
        if self.B3B:
            a("s_cmp_lg_u32 s54, 0\ns_cbranch_scc1 L_k_nb3b\ns_barrier\ns_cmp_lg_u32 s3, 0\ns_cbranch_scc1 L_k_nb3b")
            self.w2_loads()
            a("L_k_nb3b:")
        a("s_barrier")
        a("s_cmp_eq_u32 s3, 0\ns_cbranch_scc1 L_p5")
        a("s_cmp_lg_u32 s3, 1\ns_cbranch_scc1 L_k_b5")
        self.sel_layer(58, HPR, 52)
        a(f"v_lshlrev_b32 v{T[0]}, 7, v0\ns_mov_b64 exec, 3")
        a(f"buffer_load_dword v{GB}, v{T[0]}, {WS}, s58 offen sc1\nbuffer_load_dword v{GB+1}, v{T[0]}, {WS}, s52 offen offset:{HPC} sc1")
        a(f"buffer_load_dword v{GB+2}, v{lane4}, {WS}, s52 offen offset:{MISC} sc1\ns_mov_b64 exec, -1")
        a("L_k_b5:")
        a("s_barrier\ns_barrier")
        a("s_branch L_k_next")
        a("L_p5:")
        self.zero(ACC)
        a(f"s_mul_i32 s62, s57, {10*BS}\ns_add_u32 s62, s62, s53")
        def hp_gather(with_stats, slp=0):
            for i in range(8, 14): a(f"v_mov_b32 v{GB+i}, 0")
            loads = [f"buffer_load_dwordx4 {q4(GB)}, v{aML}, {WS}, s58 offen sc1",
                     f"buffer_load_dwordx4 {q4(GB+4)}, v{aML}, {WS}, s60 offen sc1",
                     "s_mov_b32 exec_hi, 0",
                     f"buffer_load_dwordx4 {q4(GB+8)}, v{aML}, {WS}, s61 offen sc1"]
            if with_stats:
                loads += ["s_mov_b64 exec, s[44:45]", f"buffer_load_dwordx2 v[{GB+12}:{GB+13}], v{aXS}, {WS}, s63 offen offset:{MISC} sc1"]
            loads += ["s_mov_b64 exec, -1"]
            return loads, range(GB, GB + (14 if with_stats else 12))
        def hp_reduce_ops(dst):
            U = GB + 16
            o = [f"v_add_f32 v{U+i}, v{GB+i}, v{GB+4+i}" for i in range(4)] + [f"v_add_f32 v{U+i}, v{U+i}, v{GB+8+i}" for i in range(4)]
            o += [f"v_permlane32_swap_b32 v{U}, v{U+2}", f"v_permlane32_swap_b32 v{U+1}, v{U+3}",
                  f"v_add_f32 v{U}, v{U}, v{U+2}", f"v_add_f32 v{U+1}, v{U+1}, v{U+3}",
                  f"v_permlane16_swap_b32 v{U}, v{U+1}", f"v_add_f32 v{dst}, v{U}, v{U+1}"]
            return o
        a("s_cmp_lg_u32 s54, 0\ns_cbranch_scc1 L_p5_nocs")
        if self.LL2 == 4 and not self.B3B: self.w2_loads()
        if self.LL2 == 5:
            a(f"s_sleep {self.W2SL}")
            self.w2_loads()
        a(f"s_add_u32 s58, s62, {HPC}\ns_add_u32 s60, s58, {4*BS}\ns_add_u32 s61, s58, {8*BS}")
        a("s_barrier")
        ld_, rg_ = hp_gather(False)
        self.poll(ld_, rg_)
        for x in hp_reduce_ops(CSW1): a(x)
        a(f"v_lshlrev_b32 v{B1V}, 16, v{B1V}")
        a("s_branch L_p5_g")
        a("L_p5_nocs:")
        a("s_barrier")
        self.sleep(self.HSL)
        a("L_p5_g:")
        self.sel_layer(71, ZO, 52)
        self.sel_layer(58, HPR, 62)
        a(f"s_add_u32 s60, s58, {4*BS}\ns_add_u32 s61, s58, {8*BS}")
        a(f"s_mul_i32 s63, s54, 3\ns_add_u32 s63, s63, s57\ns_add_u32 s63, s63, 1\ns_mul_i32 s63, s63, {BS}\ns_add_u32 s63, s63, s53")
        ld_, rg_ = hp_gather(True)
        self.poll(ld_, rg_, pipe=self.PH)
        self.stamp(8)
        s1, s2 = GB + 14, GB + 15
        H = T[0]
        c1 = self.row16_ops(s1, s2, GB + 12, GB + 13) + self.ln_ops(s1, s2, T[5])
        c2 = hp_reduce_ops(H)
        while c1 or c2:
            if c1: a(c1.pop(0))
            if c1 and len(c1) > 14 and not self.EX: a(c1.pop(0))
            if c2: a(c2.pop(0))
        if self.EX:
            a(f"v_fma_f32 v{H}, -v{s1}, v{CSW1}, v{H}\nv_fma_f32 v{H}, v{H}, v{s2}, v{B1V}")
        else:
            a(f"v_fma_f32 v{H}, -v{s1}, v{CSW1}, v{H}\nv_mul_f32 v{H}, v{H}, v{s2}")
            self.bf16r(H, H)
            a(f"v_add_f32 v{H}, v{H}, v{B1V}")
            self.bf16r(H, H)
        E = T[1]; N = T[2]; Dn = T[3]
        a(f"v_mul_f32 v{E}, 0x3fb8aa3b, v{H}\nv_exp_f32 v{E}, -|v{E}|")
        a(f"v_cmp_gt_f32 vcc, 0, v{H}\nv_mov_b32 v{T[4]}, 2.0")
        a(f"v_fma_f32 v{N}, v{E}, 2.0, 1.0\nv_add_f32 v{Dn}, 2.0, v{E}\nv_mul_f32 v{Dn}, v{Dn}, v{E}")
        a(f"v_mul_f32 v{E}, v{E}, v{E}\nv_add_f32 v{E}, v{E}, v{E}")
        a(f"v_cndmask_b32 v{N}, v{N}, v{Dn}, vcc\nv_cndmask_b32 v{E}, v{E}, v{T[4]}, vcc")
        a(f"v_add_f32 v{Dn}, v{N}, v{E}\nv_rcp_f32 v{Dn}, v{Dn}\nv_mul_f32 v{N}, v{N}, v{H}\nv_mul_f32 v{N}, v{N}, v{Dn}")
        a(f"v_mov_b32_dpp v{E}, v{N} row_ror:8 {DPPALL}\nv_cvt_pk_bf16_f32 v{T[4]}, v{N}, v{E}")
        self.gemv_bcast(ACC, T[4], WB, 8)
        self.pair32(ACC, T[0], T[1])
        a(f"s_mov_b64 exec, s[64:65]\nv_cvt_pk_bf16_f32 v{T[0]}, v{T[0]}, v{T[1]}")
        a(f"buffer_store_dword v{T[0]}, v{aP32}, {WS}, s71 offen sc1")
        a("s_mov_b64 exec, -1")
        self.stamp(9)
        a("s_barrier")
        a("L_k_next:")
        a("s_cmp_lg_u32 s54, 0\ns_cbranch_scc1 L_final")
        self.dump_stamps()
        a("s_mov_b32 s54, 1")
        a("s_cmp_lg_u32 s3, 2\ns_cbranch_scc1 L_kloop")
        a("s_cmp_lg_u32 s2, 0\ns_cbranch_scc1 L_nogen")
        a(f"s_mov_b64 exec, 1\nv_mov_b32 v{T[0]}, s74\nv_mov_b32 v{T[1]}, {GEN_OFF}")
        a(f"buffer_store_dword v{T[0]}, v{T[1]}, {WS}, 0 offen sc1")
        a("s_mov_b64 exec, -1\nL_nogen:")
        for u in range(3):
            a(f"buffer_load_dword v{GB+4+u}, v{aQG}, {WS}, 0 offen offset:{QP1 + 128*u} sc1")
        a("s_branch L_kloop")
        a("L_final:")
        a("s_cmp_lg_u32 s3, 3\ns_cbranch_scc1 L_fin2\ns_cmp_lg_u32 s4, 0\ns_cbranch_scc1 L_fin2\ns_cmp_ge_u32 s5, 10\ns_cbranch_scc1 L_fin2")
        if self.PERT:
            import struct
            c = hex(struct.unpack('<I', struct.pack('<f', self.PERT / 1000.0))[0])
            if self.PALL: a(f"v_add_f32 v{X0}, {c}, v{X0}\nv_add_f32 v{X1}, {c}, v{X1}")
            else: a(f"s_cmp_lg_u32 s2, 0\ns_cbranch_scc1 L_npert\ns_mov_b64 exec, 1\nv_add_f32 v{X0}, {c}, v{X0}\ns_mov_b64 exec, -1\nL_npert:")
        a("s_lshl_b32 s63, s5, 7")
        self.zgather(1, self.FSL)
        a("s_mov_b64 exec, s[64:65]")
        a(f"buffer_store_dword v{T[4]}, v{aP32}, s[40:43], s63 offen{' sc1' if self.OSC else ''}")
        a("s_mov_b64 exec, -1")
        self.stamp(11)
        if self.AMP:
            a("s_cmp_lg_u32 s2, 0\ns_cbranch_scc1 L_fin2\ns_memrealtime s[96:97]\ns_waitcnt lgkmcnt(0)")
            if self.AMP == 1: a("s_mov_b32 s94, s96")
            a("s_sub_u32 s94, s94, s92\ns_min_u32 s94, s94, 20000")
            a("L_ampl:\ns_memrealtime s[98:99]\ns_waitcnt lgkmcnt(0)\ns_sub_u32 s98, s98, s96\ns_cmp_lt_u32 s98, s94\ns_cbranch_scc1 L_ampl")
        a("L_fin2:")
        self.dump_stamps()
        a("s_endpgm")

        a("L_vloop:")
        a(f"buffer_load_dword v{XA+2}, v{aQG}, {WS}, 0 offen offset:{OP[1]} sc1")
        a("s_cmp_eq_u32 s3, 7\ns_cbranch_scc1 L_v7_b1")
        a(f"v_mov_b32 v{GB}, 0\nv_mov_b32 v{GB+2}, 0\nv_mov_b32 v{GB+3}, 0\ns_add_u32 s58, s53, {7*BS}")
        self.zero(ACC)
        self.sleep(self.XSL)
        self.poll(["s_mov_b64 exec, s[44:45]", f"buffer_load_dword v{GB}, v{aX2}, {WS}, 0 offen offset:{X2O} sc1",
                   f"buffer_load_dwordx2 v[{GB+2}:{GB+3}], v{aXS}, {WS}, s58 offen offset:{MISC} sc1", "s_mov_b64 exec, -1"], [GB, GB + 2, GB + 3], slp=self.XSLP, pipe=self.PX)
        a("s_barrier")
        self.stamp(1)
        a("L_qproj:")
        self.qproj(GB, T[0], T[1], self.row16_ops(T[0], T[1], GB + 2, GB + 3))
        a("s_cmp_eq_u32 s54, 0\ns_cbranch_scc1 L_qp_ret0")
        if self.Q4:
            self.gather4(T[4], AB[0])
            a("s_mov_b64 exec, 0xff")
            self.local_stores([f"buffer_store_dwordx4 {q4(AB[0])}, v{aST}, {WS}, 0 offen offset:{QP1}{{f}}"])
        else:
            a("s_mov_b64 exec, s[64:65]")
            self.local_stores([f"buffer_store_dword v{T[4]}, v{aST}, {WS}, 0 offen offset:{QP1}{{f}}"])
        a("s_mov_b64 exec, -1")
        self.stamp(3)
        a("s_branch L_v_b2")
        a("L_v7_b1:")
        a("s_barrier")
        a("L_v_b2:")
        a(f"s_and_b32 s58, s3, 3\ns_mul_i32 s58, s58, 768\nv_add_u32 v{T[3]}, s58, v{lane4}")
        self.zero(ACC, 12)
        a("s_cmp_eq_u32 s54, 0\ns_cbranch_scc1 L_v_b2a\ns_waitcnt vmcnt(0)\nL_v_b2a:")
        a("s_barrier")
        self.stamp(5)
        a(f"ds_read_b128 {q4(GB)}, v{ldsP}\nds_read_b128 {q4(GB+4)}, v{ldsP} offset:16")
        a("s_cmp_eq_u32 s54, 0\ns_cbranch_scc1 L_v_wo")
        a("L_v_nowo:")
        a("s_waitcnt lgkmcnt(0)")
        self.al()
        def pand(n, d): return f"v_and_b32 v{AB[n & 1]+d}, v{GB + 2*n + (d >> 1)}, v{MK0 + (d & 1)}"
        for d in range(4): a(pand(0, d))
        for n in range(4):
            a(f"s_waitcnt vmcnt({8 + 18 - 6*n})")
            for th in range(3):
                a(self.smf_s(ACC + 4 * th, AB[n & 1], KV + 24 * n + 8 * th, IDX))
                if n + 1 < 4 and th < 2:
                    for d in (2 * th, 2 * th + 1): a(pand(n + 1, d))
        for th in range(3):
            self.l64(ACC + 4 * th, T[th])
            a(f"ds_write_b32 v{T[3]}, v{T[th]} offset:{L_O + 256*th}")
        self.sel_layer(58, OP)
        a("s_lshl_b32 s60, s54, 6")
        a("s_waitcnt lgkmcnt(0)\ns_barrier")
        self.stamp(6)
        if sum(self.WS) < 8: self.wo_part(sum(self.WS), 8)
        a("s_cmp_ge_u32 s5, 30\ns_cbranch_scc1 L_v_next")
        if self.OS0 >= 0:
            a("s_cmp_lg_u32 s54, 0\ns_cbranch_scc1 L_p3_l1")
            self.poll([f"buffer_load_dwordx2 v[{GB+4}:{GB+5}], v{aML}, {WS}, s60 offen offset:{MISC} sc1"], [GB + 4, GB + 5], slp=self.OS0)
            a("s_branch L_p3_go\nL_p3_l1:")
        self.zero(ACC + 4)
        self.sleep(self.OSL)
        if self.OS0 >= 0: a("L_p3_go:")
        self.poll([f"buffer_load_dwordx4 {q4(GB)}, v{aQG}, {WS}, s58 offen sc1",
                   f"buffer_load_dwordx2 v[{GB+4}:{GB+5}], v{aML}, {WS}, s60 offen offset:{MISC} sc1"], range(GB, GB + 6),
                  spec=[f"v_max_f32_dpp v{T[0]}, v{GB+4}, v{GB+4} {Q1} {DPPALL}", f"v_max_f32_dpp v{T[0]}, v{T[0]}, v{T[0]} {Q2} {DPPALL}", f"v_max_f32_dpp v{T[0]}, v{T[0]}, v{T[0]} {HM} {DPPALL}"], pipe=self.PO)
        if self.B3B: a("s_cmp_lg_u32 s54, 0\ns_cbranch_scc1 L_v_nb3b\ns_barrier\nL_v_nb3b:")
        self.stamp(8)
        M = T[0]; W = T[1]
        a(f"v_sub_f32 v{W}, v{GB+4}, v{M}\nv_exp_f32 v{W}, v{W}\nv_mul_f32 v{W}, v{W}, v{GB+5}")
        a(f"v_mov_b32_dpp v{T[2]}, v{W} row_newbcast:0 {DPPALL}\nv_mov_b32_dpp v{T[3]}, v{W} row_newbcast:1 {DPPALL}")
        a(f"v_cvt_pk_bf16_f32 v{T[2]}, v{T[2]}, v{T[3]}")
        self.build_A(AB[0], T[2])
        self.bf16r(W, W)
        self.mfma(ACC, AB[0], GB, True)
        for c in (Q1, Q2, HM):
            a(f"v_add_f32_dpp v{W}, v{W}, v{W} {c} {DPPALL}")
        a(f"v_rcp_f32 v{W}, v{W}")
        self.pair32(ACC, T[2], T[3])
        a(f"v_mul_f32 v{T[2]}, v{T[2]}, v{W}\nv_mul_f32 v{T[3]}, v{T[3]}, v{W}\nv_cvt_pk_bf16_f32 v{T[4]}, v{T[2]}, v{T[3]}")
        self.gemv_bcast(ACC + 4, T[4], WB, 8)
        self.sel_layer(58, YO, 52)
        self.l64(ACC + 4, T[0])
        a(f"ds_write_b32 v{aS2}, v{T[0]} offset:{L_YR}")
        a("s_waitcnt vmcnt(0) lgkmcnt(0)\ns_barrier")
        a("s_cmp_lg_u32 s3, 7\ns_cbranch_scc1 L_v_b5")
        for w in range(4): a(f"ds_read_b32 v{GB+w}, v{lane4} offset:{L_YR + 256*w}")
        a("s_waitcnt lgkmcnt(0)")
        a(f"v_add_f32 v{GB}, v{GB}, v{GB+1}\nv_add_f32 v{GB+2}, v{GB+2}, v{GB+3}\nv_add_f32 v{T[0]}, v{GB}, v{GB+2}")
        a(f"v_mov_b32_dpp v{T[1]}, v{T[0]} row_ror:8 {DPPALL}\nv_cvt_pk_bf16_f32 v{T[0]}, v{T[0]}, v{T[1]}")
        if self.G4:
            self.gather4(T[0], AB[0])
            a("s_mov_b64 exec, 0xff")
            a(f"buffer_store_dwordx4 {q4(AB[0])}, v{aP32}, {WS}, s58 offen sc1")
        else:
            a("s_mov_b64 exec, s[64:65]")
            a(f"buffer_store_dword v{T[0]}, v{aP32}, {WS}, s58 offen sc1")
        a("s_mov_b64 exec, -1")
        self.stamp(9)
        a("L_v_b5:")
        a("s_cmp_lg_u32 s54, 0\ns_cbranch_scc1 L_v_b5b")
        self.v_fetch_wq()
        self.dump_stamps()
        a("L_v_b5b:")
        a("s_barrier\ns_barrier")
        a("s_cmp_lg_u32 s54, 0\ns_cbranch_scc1 L_fin2")
        a("s_mov_b32 s54, 1\ns_branch L_vloop")
        a("L_v_wo:")
        self.wo_loads()
        a("s_branch L_v_nowo")
        a("L_v_next:")
        a("s_cmp_lg_u32 s54, 0\ns_cbranch_scc1 L_fin2")
        self.v_fetch_wq()
        self.dump_stamps()
        a("s_mov_b32 s54, 1")
        if self.X30 >= 0:
            a(f"v_mov_b32 v{GB+2}, 0\nv_mov_b32 v{GB+3}, 0\ns_add_u32 s58, s53, {BS}")
            self.poll(["s_mov_b64 exec, s[44:45]", f"buffer_load_dwordx2 v[{GB+2}:{GB+3}], v{aXS}, {WS}, s58 offen offset:{MISC} sc1", "s_mov_b64 exec, -1"], [GB + 2, GB + 3], slp=4)
            self.sleep(self.X30)
        else:
            a("s_sleep 48")
        a("s_branch L_vloop")
        self.flush_ool()
        a("L_end:\ns_endpgm")
        a('.section .rodata,"a"\n.p2align 6')
        a(f".amdhsa_kernel {KNAME}")
        a(".amdhsa_next_free_vgpr 256\n.amdhsa_next_free_sgpr 102\n.amdhsa_accum_offset 256\n.amdhsa_group_segment_fixed_size 0\n.amdhsa_kernarg_size 96")
        a(".amdhsa_user_sgpr_count 2\n.amdhsa_user_sgpr_kernarg_segment_ptr 1\n.amdhsa_system_sgpr_workgroup_id_x 1\n.end_amdhsa_kernel")
        out = []
        for ln in a.render().split("\n"):
            if ln.strip().startswith("s_sleep") and ";" not in ln: ln += " ; poll back-off (keeps polling traffic off the HBM stream / shared lines)"
            out.append(ln)
        return "\n".join(out)

    def code_prefetch(self):
        a = self.a
        le = self.L("cpf")
        a(f"s_cmp_lg_u32 s3, 1\ns_cbranch_scc1 {le}\ns_cmp_lg_u32 s54, 0\ns_cbranch_scc1 {le}")
        a("s_getpc_b64 s[72:73]")
        a("L_pcref:")
        a(f"s_sub_u32 s72, s72, L_pcref-{KNAME}\ns_subb_u32 s73, s73, 0")
        a(f"v_lshlrev_b32 v{T[0]}, 5, v0\nv_add_u32 v{T[0]}, s5, v{T[0]}\nv_lshlrev_b32 v{T[0]}, 7, v{T[0]}")
        a(f"v_mov_b32 v{T[1]}, L_end-{KNAME}\nv_cmp_lt_u32 vcc, v{T[0]}, v{T[1]}\ns_and_b64 exec, vcc, exec")
        a(f"global_load_dword v{XA+5}, v{T[0]}, s[72:73] sc1")
        a("s_mov_b64 exec, -1")
        a(f"{le}:")

    def srd(self, *regs):
        for s in regs:
            self.a(f"s_mov_b32 s{s+2}, {self.size[s]}\ns_mov_b32 s{s+3}, 0x20000")
    def blk_setup(self):
        a = self.a
        a(f"s_mul_i32 s53, s4, {32*BS}\ns_mul_i32 s52, s5, {BS}\ns_add_u32 s52, s52, s53")
        a("s_cmp_ge_u32 s5, 10\ns_cselect_b32 s57, 1, 0\ns_cmp_ge_u32 s5, 20\ns_cselect_b32 s57, 2, s57\ns_cmp_ge_u32 s5, 30\ns_cselect_b32 s57, 3, s57")
        a("s_mul_i32 s56, s57, 10\ns_sub_u32 s56, s5, s56")
        a(f"v_lshlrev_b32 v{aP32}, 4, v1\nv_lshl_add_u32 v{aP32}, v3, 2, v{aP32}")
    def rest_setup(self, done, blk=True):
        a = self.a
        self.srd(*[r for r in (8, 12, 16, 20, 24, 28, 32, 36, 40, 48) if r not in done])
        if blk: self.blk_setup()
        a("s_mov_b32 s54, 0\ns_mov_b32 s55, 0")
        a("s_getreg_b32 s75, hwreg(HW_REG_XCC_ID)\ns_and_b32 s75, s75, 15")
        a("s_mov_b32 s64, 0x00ff00ff\ns_mov_b32 s65, 0x00ff00ff")
        a("s_mov_b32 s66, 0xaaaaaaaa\ns_mov_b32 s67, 0xaaaaaaaa\ns_mov_b32 s68, 0xcccccccc\ns_mov_b32 s69, 0xcccccccc")
        a("s_mov_b32 s44, 0x03ff03ff\ns_mov_b32 s45, 0x03ff03ff\ns_mov_b32 s46, 1\ns_mov_b32 s47, 1")
    def c_head(self):
        a = self.a
        a("L_pro_c:")
        self.srd(8, 48)
        self.blk_setup()
        a(f"v_mov_b32 v{T[0]}, 0")
        a("s_mov_b64 exec, 0xffff")
        a(f"ds_write_b32 v{lane4}, v{T[0]} offset:{L_CTRL}")
        a("s_mov_b64 exec, -1\ns_waitcnt lgkmcnt(0)")
        if self.B0E: a("s_barrier")
        if "noclr" not in self.knobs: self.clears(False)
        a(f"s_lshl_b32 s58, s56, 7\nbuffer_load_dword v{GB+4}, v{aP32}, s[8:11], s58 offen")
        if not self.B0E: a("s_barrier")

    def v_prologue(self):
        a = self.a
        self.srd(12, 16)
        a("s_lshl_b32 s58, s4, 2\ns_add_u32 s58, s58, s6\ns_mul_i32 s59, s58, 3145728")
        a("s_lshl_b32 s58, s7, 8\ns_and_b32 s60, s3, 3\ns_lshl_b32 s60, s60, 6\ns_add_u32 s58, s58, s60\ns_add_u32 s58, s58, 6144\ns_mul_i32 s58, s58, 384\ns_add_u32 s59, s59, s58")
        if "dbl" in self.knobs:
            a(f"v_mul_u32_u24 v{T[0]}, 384, v2\nv_lshl_add_u32 v{T[0]}, v1, 4, v{T[0]}\ns_sub_u32 s61, s59, {6144*384}")
            for srd in ("s[12:15]", "s[16:19]"):
                for n in range(24):
                    rg, th = divmod(n, 3)
                    if th == 0: a(f"s_add_u32 s58, s61, {rg*8*384}")
                    a(f"buffer_load_dwordx4 {q4(KV+4*n)}, v{T[0]}, {srd}, s58 offen offset:{th*128} nt")
            a("s_waitcnt vmcnt(12)")
        self.k_dma()
        for n in range(24):
            rg, th = divmod(n, 3)
            if n == self.NB:
                a(f"s_lshl_b32 s60, s3, 2\nv_mov_b32 v{T[2]}, s60\nv_mov_b32 v{T[3]}, 1")
                a(f"s_waitcnt vmcnt({self.NB})\nds_write_b32 v{T[2]}, v{T[3]} offset:{L_CTRL}")
                self.stamp(11)
            if th == 0: a(f"s_add_u32 s58, s59, {rg*8*384}")
            a(f"buffer_load_dwordx4 {q4(KV + 24*(rg>>1) + 8*th + 4*(rg&1))}, v{T[4]}, s[16:19], s58 offen offset:{th*128} nt")
        self.stamp(1)
        self.rest_setup((12, 16))
        if self.knobs & {"lo1", "lo2", "lo3"}:
            if "wo" in self.knobs:
                self.wo_loads()
                a("s_waitcnt vmcnt(8)")
                self.stamp(5)
            a("s_waitcnt vmcnt(0)")
            self.stamp(6)
            a("s_branch L_fin2")
        if self.WOE: self.wo_loads(self.WOE)
        if self.PRI == 1: a("s_setprio 1")
        self.consts()
        self.vwave_addrs()
        a("s_branch L_v_b2")

    def v_fetch_wq(self):
        a = self.a
        a(f"s_and_b32 s58, s3, 3\ns_min_u32 s58, s58, 2\ns_mul_i32 s58, s58, 10752\ns_add_u32 s58, s58, {L_WQ}\nv_lshlrev_b32 v{T[0]}, 4, v0\nv_add_u32 v{T[0]}, s58, v{T[0]}")
        for t in range(10):
            a(f"ds_read_b128 {q4(WA+4*t)}, v{T[0]} offset:{1024*t}")
        a(f"v_add_u32 v{T[1]}, s58, v{lane4}\nds_read_b32 v{CS0}, v{T[1]} offset:10240\nds_read_b32 v{CS1}, v{T[1]} offset:10496")
        self.read_fast()
        a(f"s_add_u32 s58, s53, {7*BS}\nbuffer_load_dword v{XA+3}, v{aX2}, {WS}, 0 offen offset:{X2O} sc1\nbuffer_load_dword v{XA+4}, v{aXS}, {WS}, s58 offen offset:{MISC} sc1")

    def zgather(self, layer, slp):
        a = self.a
        a(f"s_mul_i32 s58, s56, {BS}\ns_add_u32 s60, s58, {10*BS}\ns_add_u32 s61, s58, {20*BS}")
        self.sleep(slp)
        self.poll([f"buffer_load_dwordx4 {q4(GB+4*n)}, v{aROW}, {WS}, s{(58,60,61)[n]} offen offset:{ZO[layer]} sc1" for n in range(3)], range(GB, GB + 12),
                  spec=self.sum_spec(), pipe=self.PZ)
        self.stamp(10 if layer else 1)
        self.resid_add()

REF = "interleave_layers__sliding_block_cached__dense_activation_mish__decode.s.ref"
HEADER = open(REF).read().split("; Override")[0] if os.path.exists(REF) else ""

if __name__ == "__main__":
    prof = {"prof": 1, "lite": 3}.get(sys.argv[2], 0) if len(sys.argv) > 2 else 0
    open(sys.argv[1], "w").write(HEADER + Gen(prof, sys.argv[3:]).gen())
```
